```python
import torch

def _softmax(x, axis=-1):
    return torch.softmax(x, dim=axis)
def _gelu(x):
    return torch.nn.functional.gelu(x, approximate="tanh")
def _silu(x):
    return torch.nn.functional.silu(x)
def _sigmoid(x):
    return torch.sigmoid(x)
def _layernorm(x, axis=-1, eps=1e-5):
    m = x.mean(dim=axis, keepdim=True)
    v = x.var(dim=axis, keepdim=True, unbiased=False)
    return (x - m) / torch.sqrt(v + eps)
def _scatter_add(tgt, idx, src, axis=0):
    return tgt.clone().index_add_(axis, idx, src)
def _segment_sum(src, seg, n):
    out = torch.zeros((n,) + src.shape[1:], dtype=src.dtype)
    return out.index_add_(0, seg, src)
def _pad(x, pw):
    flat = tuple(v for pair in reversed(pw) for v in pair)
    return torch.nn.functional.pad(x, flat)

kernel_name = 'gated_mix__sliding_block__linear_attn_block__prompt'

def setup_inputs():

    _w = (lambda a: (lambda t: t.to(torch.bfloat16) if t.is_floating_point() else t)(torch.as_tensor(a)))
    def _A_setup():
        B, S, D = 1, 2048, 448
        return {
            "x": _w((lambda *s: torch.randn(*s, dtype=torch.bfloat16) * 0.05)(B, S, D)),
            "wqkv": _w((lambda *s: torch.randn(*s, dtype=torch.bfloat16) * 1.6)(D, 3 * D)),
            "wo": _w((lambda *s: torch.randn(*s, dtype=torch.bfloat16) * 0.05)(D, D)),
        }
    _A_in = _A_setup()

    def _B_setup():
        B, S, D = 1, 2048, 448
        return {
            "x": _w((lambda *s: torch.randn(*s, dtype=torch.bfloat16) * 0.05)(B, S, D)),
            "wqkv": _w((lambda *s: torch.randn(*s, dtype=torch.bfloat16) * 1.6)(D, 3 * D)),
            "wo": _w((lambda *s: torch.randn(*s, dtype=torch.bfloat16) * 0.8)(D, D)),
        }
    _B_in = _B_setup()

    return {
        "A_x": _A_in["x"],
        "A_wqkv": _A_in["wqkv"],
        "A_wo": _A_in["wo"],
        "B_x": _B_in["x"],
        "B_wqkv": _B_in["wqkv"],
        "B_wo": _B_in["wo"],
        "gate_w": _w((lambda *s: torch.randn(*s, dtype=torch.bfloat16) * 0.05)(448) * 16.0),
    }

def reference(A_x, A_wqkv, A_wo, B_x, B_wqkv, B_wo, gate_w):
    def _A_ref(x, wqkv, wo):
        B, S, D = x.shape
        H = 16; Dh = D // H; W = 256
        qkv = (lambda x, *d: x.permute(*d))((x @ wqkv).reshape(B, S, 3, H, Dh), 2, 0, 3, 1, 4)
        q, k, v = qkv[0], qkv[1], qkv[2]
        scores = torch.einsum("bhqd,bhkd->bhqk", q, k) * (Dh ** -0.5)
        idx = torch.arange(S)
        mask = (idx[:, None] - idx[None, :] >= 0) & (idx[:, None] - idx[None, :] < W)
        scores = torch.where(mask[None, None], scores, -1e9)
        p = _softmax(scores, axis=-1)
        o = torch.einsum("bhqk,bhkd->bhqd", p, v)
        return (lambda x, *d: x.permute(*d))(o, 0, 2, 1, 3).reshape(B, S, D) @ wo

    def _B_ref(x, wqkv, wo):
        B, S, D = x.shape
        H = 16; Dh = D // H
        qkv = (lambda x, *d: x.permute(*d))((x @ wqkv).reshape(B, S, 3, H, Dh), 2, 0, 3, 1, 4)
        q, k, v = qkv[0], qkv[1], qkv[2]
        phi = lambda t: torch.where(t > 0, t + 1, torch.exp(t)) + 1e-6
        pq, pk = phi(q), phi(k)
        kv = torch.einsum("bhsd,bhse->bhde", pk, v)
        z = torch.einsum("bhsd->bhd", pk)
        num = torch.einsum("bhqd,bhde->bhqe", pq, kv)
        den = torch.einsum("bhqd,bhd->bhq", pq, z)[..., None] + 1e-6
        o = num / den
        return (lambda x, *d: x.permute(*d))(o, 0, 2, 1, 3).reshape(B, S, D) @ wo

    x = A_x
    g = _sigmoid((x * gate_w).sum(-1, keepdims=True))
    a = _A_ref(x, A_wqkv, A_wo)
    b = _B_ref(x, B_wqkv, B_wo)
    return g * a + (1 - g) * b
```

```python
import re

REG = re.compile(r'^(-|abs\(|\|)?([vsa])(\d+)\)?\|?$')
RNG = re.compile(r'^(-)?([vsa])\[(\d+):(\d+)\]$')
TRANS = ('v_exp_f32', 'v_log_f32', 'v_rcp_f32', 'v_rsq_f32', 'v_sqrt_f32', 'v_sin_f32', 'v_cos_f32')


def regs_of(op):
    op = op.strip()
    m = REG.match(op)
    if m:
        return {(m.group(2), int(m.group(3)))}
    m = RNG.match(op)
    if m:
        return {(m.group(2), i) for i in range(int(m.group(3)), int(m.group(4)) + 1)}
    if op == 'vcc':
        return {('s', 'vcc')}
    if op in ('vcc_lo', 'vcc_hi'):
        return {('s', 'vcc')}
    if op in ('exec', 'exec_lo', 'exec_hi'):
        return {('s', 'exec')}
    if op == 'm0':
        return {('s', 'm0')}
    return set()


class I:
    def __init__(self, text):
        self.tag = None
        m = re.search(r';@tag=(\S+)', text)
        if m:
            self.tag = m.group(1)
        body = text.split(';')[0].strip()
        self.text = body
        parts = body.split(None, 1)
        self.op = parts[0]
        rest = parts[1] if len(parts) > 1 else ''
        ops = [o.strip() for o in rest.split(',')] if rest else []
        self.mods = []
        if ops:
            toks = ops[-1].split()
            ops[-1] = toks[0] if toks else ''
            self.mods = toks[1:]
        self.ops = ops
        op = self.op
        base = re.sub(r'_e(32|64)$', '', op)
        self.base = base
        self.kind = 'other'
        R = [regs_of(o) for o in ops]
        W = set()
        S = set()
        self.srcC = set()
        self.srcAB = set()
        if op.startswith('v_mfma'):
            self.kind = 'mfma'
            W = R[0]
            self.srcAB = R[1] | R[2]
            self.srcC = R[3]
            S = self.srcAB | self.srcC
            self.passes = 8 if '32x32' in op else 4
        elif op.startswith('ds_'):
            self.kind = 'ds'
            if op.startswith('ds_read') or '_rtn' in op or op.startswith('ds_bpermute') or op.startswith('ds_swizzle'):
                W = R[0]
                for r in R[1:]:
                    S |= r
            else:
                for r in R:
                    S |= r
        elif op.startswith('buffer_') or op.startswith('global_'):
            self.kind = 'vmem'
            self.lds = 'lds' in self.mods or '_lds_' in op
            if self.lds:
                for r in R:
                    S |= r
                S |= {('s', 'm0')}
            elif 'load' in op:
                W = R[0]
                for r in R[1:]:
                    S |= r
            else:
                for r in R:
                    S |= r
                self.wide_store = ('x4' in op or 'x3' in op)
                self.store_data = R[0] if op.startswith('buffer_') else R[1]
        elif op.startswith('v_'):
            self.kind = 'valu'
            if base.startswith('v_permlane') and 'swap' in base:
                W = R[0] | R[1]
                S = R[0] | R[1]
            elif base.startswith('v_cmp'):
                W = R[0]
                for r in R[1:]:
                    S |= r
            elif base in ('v_add_co_u32', 'v_sub_co_u32', 'v_addc_co_u32'):
                W = R[0] | R[1]
                for r in R[2:]:
                    S |= r
            else:
                W = R[0]
                for r in R[1:]:
                    S |= r
                if base in ('v_fmac_f32', 'v_writelane_b32'):
                    S |= R[0]
        elif op.startswith('s_'):
            if op.startswith('s_load') or op.startswith('s_memtime') or op.startswith('s_memrealtime'):
                self.kind = 'smem'
                W = R[0]
                for r in R[1:]:
                    S |= r
            elif op in ('s_waitcnt', 's_nop', 's_barrier', 's_endpgm', 's_sleep', 's_setprio') or op.startswith('s_cbranch') or op == 's_branch':
                self.kind = 'sopp'
            else:
                self.kind = 'salu'
                if op.startswith('s_cmp') or op.startswith('s_bitcmp'):
                    for r in R:
                        S |= r
                else:
                    W = R[0]
                    for r in R[1:]:
                        S |= r
                    if 'saveexec' in op:
                        W = W | {('s', 'exec')}
        self.W = W
        self.S = S
        self.trans = base in TRANS


def _waitcnt(vm=None, lg=None):
    s = 's_waitcnt'
    if vm is not None:
        s += f' vmcnt({vm})'
    if lg is not None:
        s += f' lgkmcnt({lg})'
    return s


class State:
    def __init__(self):
        self.reset()

    def reset(self):
        self.ds = []
        self.vm = []
        self.hist = []


def finalize(lines, nop_report=None):
    out = []
    st = State()

    def push_hist(ins, states=1):
        st.hist.append((ins, states))
        if len(st.hist) > 40:
            st.hist.pop(0)

    def emit_wait(vm=None, lg=None):
        if vm is not None:
            assert vm <= 63
            del st.vm[:len(st.vm) - vm]
        if lg is not None:
            lg = min(lg, 15)
            del st.ds[:max(0, len(st.ds) - lg)]
        out.append('    ' + _waitcnt(vm, lg))
        push_hist(None)

    for raw in lines:
        text = raw.strip()
        if not text or text.startswith(';'):
            if text:
                out.append('    ' + text)
            continue
        if text.startswith('!!'):
            out.append('    ' + text[2:].strip())
            continue
        if text.startswith('!'):
            t = text[1:].strip()
            if t.endswith(':') or t.startswith('.'):
                out.append(t)
            else:
                out.append('    ' + t)
                push_hist(None)
            continue
        if text.endswith(':') or text.startswith('.'):
            out.append(text)
            continue
        if text.startswith('@'):
            p = text.split()
            if p[0] == '@reset':
                st.reset()
            elif p[0] == '@drain':
                vm = 0 if any(w for w, _ in st.vm) else None
                lg = 0 if st.ds else None
                if vm is not None or lg is not None:
                    emit_wait(vm, lg)
            elif p[0] in ('@wait_vm', '@wait_ds'):
                q = st.vm if p[0] == '@wait_vm' else st.ds
                idx = [i for i, (_, t) in enumerate(q) if t == p[1]]
                if idx:
                    n = len(q) - 1 - idx[-1]
                    if p[0] == '@wait_vm':
                        emit_wait(vm=n)
                    else:
                        emit_wait(lg=n)
            else:
                raise ValueError(text)
            continue
        ins = I(text)
        if ins.op == 's_waitcnt':
            m = re.search(r'vmcnt\((\d+)\)', text)
            l = re.search(r'lgkmcnt\((\d+)\)', text)
            emit_wait(int(m.group(1)) if m else None, int(l.group(1)) if l else None)
            continue
        touched = ins.W | ins.S
        vm = lg = None
        for i, (w, _) in enumerate(st.ds):
            if w & touched:
                lg = len(st.ds) - 1 - i
        for i, (w, _) in enumerate(st.vm):
            if w & touched:
                vm = len(st.vm) - 1 - i
        if vm is not None or lg is not None:
            emit_wait(vm, lg)
        need = 0
        dist = 0
        for prev, states in reversed(st.hist):
            if prev is not None:
                req = 0
                pv = {r for r in prev.W if r[0] in 'va'}
                ps = {r for r in prev.W if r[0] == 's'}
                if prev.kind == 'mfma':
                    big = prev.passes == 8
                    if ins.kind == 'mfma':
                        if pv & ins.srcAB:
                            req = max(req, 12 if big else 8)
                        if pv & ins.srcC and not (ins.srcC == pv and ins.passes == prev.passes):
                            req = max(req, 10 if big else 6)
                    elif pv & touched:
                        req = max(req, 12 if big else 8)
                    if ins.kind == 'valu' and (prev.srcC & ins.W):
                        req = max(req, 7 if big else 3)
                elif prev.kind == 'valu':
                    if ins.kind == 'mfma' and (pv & ins.S):
                        req = max(req, 2)
                    if ins.base.startswith('v_permlane') and (pv & ins.S):
                        req = max(req, 2)
                    if ins.base in ('v_readfirstlane_b32', 'v_readlane_b32') and (pv & ins.S):
                        req = max(req, 1)
                    if prev.trans and ins.kind == 'valu' and not ins.trans and (pv & ins.S):
                        req = max(req, 1)
                    if prev.trans and ins.kind in ('ds', 'vmem') and (pv & ins.S):
                        req = max(req, 1)
                    if ps:
                        if ins.kind == 'valu' and (ps & ins.S):
                            req = max(req, 2)
                        if ins.kind == 'vmem' and (ps & ins.S):
                            req = max(req, 5)
                        if ins.kind == 'salu' and (ps & ins.S):
                            req = max(req, 1)
                elif prev.kind == 'salu':
                    if ('s', 'm0') in ps and ins.kind == 'vmem' and getattr(ins, 'lds', False):
                        req = max(req, 1)
                elif prev.kind == 'vmem' and getattr(prev, 'wide_store', False):
                    if prev.store_data & ins.W:
                        req = max(req, 2)
                need = max(need, req - dist)
            dist += states
            if dist >= 20:
                break
        if need > 0:
            if nop_report is not None:
                nop_report.append((need, ins.text))
            n = need
            while n > 0:
                k = min(n, 16)
                out.append(f'    s_nop {k - 1}')
                push_hist(None, k)
                n -= k
        out.append('    ' + ins.text)
        if ins.op == 's_nop':
            push_hist(None, int(ins.ops[0]) + 1)
        else:
            push_hist(ins)
        if ins.kind == 'ds':
            st.ds.append((set(ins.W), ins.tag))
        elif ins.kind == 'vmem':
            st.vm.append((set(ins.W), ins.tag))
    return out


def merge(slots, fillers, start=0, per=None):
    out = []
    n = len(slots) - start
    fi = 0
    total = len(fillers)
    for i, s in enumerate(slots):
        out += s
        if i >= start and fi < total:
            if per is None:
                want = (total * (i - start + 1) + n - 1) // n - fi
            else:
                want = per
            for _ in range(want):
                if fi < total:
                    f = fillers[fi]
                    out += f if isinstance(f, list) else [f]
                    fi += 1
    while fi < total:
        f = fillers[fi]
        out += f if isinstance(f, list) else [f]
        fi += 1
    return out
```

```python
import sys, math, struct
from asmlib import finalize, merge

NAME = "gated_mix__sliding_block__linear_attn_block__prompt"
OPT = dict(stamps=False, lead=22, dump=False, prefetch=True)
for a in sys.argv[2:]:
    k, v = a.split('=')
    OPT[k] = int(v)


def fhex(x):
    return '0x%08x' % struct.unpack('<I', struct.pack('<f', x))[0]


LOG2E = math.log2(math.e)
KSCALE = LOG2E * 28 ** -0.5
SPIN = 60000

SLOT = 8192
def p1x(c): return 24576 * (c % 6)
def p1w(c): return 24576 * (c % 6) + 16384
P2 = 3 * SLOT
QB = 10 * SLOT
QA = QB + 28672
KL = 4 * SLOT
VL = 7 * SLOT
KVRED = 0
STG = 0
WOB = 10 * SLOT
PQ = 18 * SLOT
MISC = 19 * SLOT
G1 = MISC + 1024
KVF = MISC + 2048
RED = [17 * SLOT, 17 * SLOT + 4096, 3 * SLOT + 4096, MISC + 4096]
ST_K, ST_V, ST_WA1, ST_WB, ST_WA2 = 28, 29, 30, 31, 32
E_P1A, E_P1B, E_P2A, E_P2, E_KVW, E_PQ, E_P3 = 33, 34, 35, 36, 37, 38, 39
C_EPOCH, C_KOK, C_VOK, C_KVRDY, C_R1 = 40, 41, 42, 43, 44

KG, VG, OA, OB, KVP, KVT = 0x000000, 0x200000, 0x400000, 0x600000, 0x800000, 0xA00000
FK, FV, FOA, FOB, EPW = 0xA40000, 0xA48000, 0xA50000, 0xA60000, 0xA70000
STAMPS = 0xB00000
DUMP = 0xC00000
WS_SIZE = 0x1000000

sX, sAW, sAO, sBW, sBO, sGW, sOUT, sDBG, sWS = 4, 6, 8, 12, 14, 16, 18, 20, 22
sWave, sH, sRB, sPar, sHH = 24, 25, 26, 27, 28
sT0, sT1, sT2, sTO = 29, 30, 31, 3
sWSD = 32
sStamp = 76

_lab = [0]
slow = []


def lab(p):
    _lab[0] += 1
    return f"L_{p}_{_lab[0]}"


def srd(d, ptr, size, add=0):
    o = []
    if add:
        o += [f"s_add_u32 s{d}, s{ptr}, {add}", f"s_addc_u32 s{d+1}, s{ptr+1}, 0"]
    else:
        o += [f"s_mov_b32 s{d}, s{ptr}", f"s_mov_b32 s{d+1}, s{ptr+1}"]
    o += [f"s_mov_b32 s{d+2}, {size}", f"s_mov_b32 s{d+3}, 0x20000"]
    return o


def stamp(i):
    if not OPT['stamps']:
        return []
    return [f"!s_memtime s[{sStamp+2*i}:{sStamp+2*i+1}]"]


def stamp_flush(vt, vlane):
    if not OPT['stamps']:
        return []
    o = ["s_mov_b64 exec, -1", "s_waitcnt lgkmcnt(0)", f"v_mov_b32 v{vt}, 0"]
    for i in range(12):
        o.append(f"v_writelane_b32 v{vt}, s{sStamp+2*i}, {i}")
    o += [f"s_lshl_b32 s{sT0}, s2, 3", f"s_add_u32 s{sT0}, s{sT0}, s{sWave}", f"s_lshl_b32 s{sT0}, s{sT0}, 8",
          f"s_add_u32 s{sT0}, s{sT0}, {STAMPS}",
          f"v_lshlrev_b32 v{vt+1}, 2, v{vlane}",
          f"buffer_store_dword v{vt}, v{vt+1}, s[{sWSD}:{sWSD+3}], s{sT0} offen"]
    return o


SLEEP = [0]


def spin_lds(idx, target, vF, vM, ne0=False):
    L = lab('sp')
    if SLEEP[0]:
        L2 = lab('spx')
        cmp_ = f"v_cmp_ne_u32 vcc, 0, v{vF}" if ne0 else f"v_cmp_eq_u32 vcc, {target}, v{vF}"
        return ["@drain", f"!s_mov_b32 s{sTO}, 0", f"!{L}:",
                f"!ds_read_b32 v{vF}, v{vM} offset:{4*idx}",
                f"!s_add_u32 s{sTO}, s{sTO}, 1", f"!s_cmp_gt_u32 s{sTO}, {SPIN}", "!s_cbranch_scc1 L_abort",
                "!s_waitcnt lgkmcnt(0)", f"!{cmp_}", f"!s_cbranch_vccnz {L2}",
                f"!!s_sleep {SLEEP[0]}", f"!!s_branch {L}", f"!{L2}:"]
    cmp_ = f"v_cmp_eq_u32 vcc, 0, v{vF}" if ne0 else f"v_cmp_ne_u32 vcc, {target}, v{vF}"
    return ["@drain", f"!s_mov_b32 s{sTO}, 0", f"!{L}:",
            f"!ds_read_b32 v{vF}, v{vM} offset:{4*idx}",
            f"!s_add_u32 s{sTO}, s{sTO}, 1", f"!s_cmp_gt_u32 s{sTO}, {SPIN}", "!s_cbranch_scc1 L_abort",
            "!s_waitcnt lgkmcnt(0)", f"!{cmp_}", f"!s_cbranch_vccnz {L}"]


def spin_lds_nodrain(idx, target, vF, vM, ne0=False):
    o = spin_lds(idx, target, vF, vM, ne0)
    return ["s_waitcnt lgkmcnt(0)"] + o[1:]


def check_early(idx, vF, vM):
    return [f"ds_read_b32 v{vF}, v{vM} offset:{4*idx}"]


def check_late(idx, target, vF, vM, ne0=False):
    Ls, Lb = lab('slow'), lab('back')
    cmp_ = f"v_cmp_eq_u32 vcc, 0, v{vF}" if ne0 else f"v_cmp_ne_u32 vcc, {target}, v{vF}"
    slow.extend([f"{Ls}:", f"s_mov_b32 s{sTO}, 0", f"{Ls}_s:",
                 f"ds_read_b32 v{vF}, v{vM} offset:{4*idx}",
                 f"s_add_u32 s{sTO}, s{sTO}, 1", f"s_cmp_gt_u32 s{sTO}, {SPIN}", "s_cbranch_scc1 L_abort",
                 "s_waitcnt lgkmcnt(0)", cmp_, f"s_cbranch_vccnz {Ls}_s", f"s_branch {Lb}"])
    return [cmp_, f"!s_cbranch_vccnz {Ls}", f"!{Lb}:"]


def signal(idx, vM, vOne):
    return ["s_mov_b64 exec, 1", f"ds_add_u32 v{vM}, v{vOne} offset:{4*idx}", "s_mov_b64 exec, -1"]


def mfma(d, a, b, c):
    cs = f"v[{c}:{c+15}]" if isinstance(c, int) and c >= 0 else "0"
    return f"v_mfma_f32_32x32x16_bf16 v[{d}:{d+15}], v[{a}:{a+3}], v[{b}:{b+3}], {cs}"


def prologue():
    o = []
    o += [f"s_load_dwordx16 s[4:19], s[0:1], 0", f"s_load_dwordx4 s[20:23], s[0:1], 64"]
    o += stamp(0)
    o += ["s_cmp_ge_u32 s2, 256", "!s_cbranch_scc1 L_exit",
          "v_lshrrev_b32 v1, 6, v0", "v_and_b32 v0, 63, v0",
          f"v_readfirstlane_b32 s{sWave}, v1",
          f"s_and_b32 s{sT0}, s2, 7", f"s_lshr_b32 s{sT1}, s2, 3",
          f"s_and_b32 s{sH}, s{sT0}, 1", f"s_lshl_b32 s{sH}, s{sH}, 3",
          f"s_and_b32 s{sT2}, s{sT1}, 7", f"s_add_u32 s{sH}, s{sH}, s{sT2}",
          f"s_lshr_b32 s{sRB}, s{sT0}, 1", f"s_lshl_b32 s{sRB}, s{sRB}, 2",
          f"s_lshr_b32 s{sT2}, s{sT1}, 3", f"s_add_u32 s{sRB}, s{sRB}, s{sT2}",
          f"s_and_b32 s{sPar}, s{sH}, 1", f"s_lshr_b32 s{sHH}, s{sH}, 1",
          "v_lshlrev_b32 v1, 2, v0", "v_mov_b32 v2, 0",
          f"v_add_u32 v1, {MISC}, v1",
          "ds_write_b32 v1, v2",
          "s_waitcnt lgkmcnt(0)", "s_barrier"]
    o += srd(sWSD, sWS, WS_SIZE)
    o += [f"s_cmp_ge_u32 s{sWave}, 6", "!s_cbranch_scc1 L_xwave",
          f"s_cmp_ge_u32 s{sWave}, 4", "!s_cbranch_scc1 L_lwave"]
    return o


vL16, vXA, vW0, vW1, vQB, vQA, vM, vOne, vF, vEp, vLow, vG = 1, 2, 6, 7, 8, 9, 10, 11, 12, 13, 14, 15
PK = 16
WB = 32
MK = 56
accA, accB = 64, 96
XF = 128
QF = 240
vMA, vMB = 248, 249
TMP = 250
sMask = 40
sL2E, sEps, sKS, sTile, sSt = 72, 73, 74, 75, 36


def c_setup():
    o = []
    lo, hh, t0, t1, t2 = 20, 21, 22, 23, 24
    o += [f"v_lshlrev_b32 v{vL16}, 4, v0",
          f"v_and_b32 v{lo}, 31, v0", f"v_lshrrev_b32 v{hh}, 5, v0",
          f"v_mov_b32 v{vM}, {MISC}", f"v_mov_b32 v{vOne}, 1",
          f"s_lshl_b32 s{sTile}, s{sRB}, 2", f"s_add_u32 s{sTile}, s{sTile}, s{sWave}",
          f"s_mov_b32 s{sL2E}, {fhex(LOG2E)}", f"s_mov_b32 s{sEps}, {fhex(1e-6)}", f"s_mov_b32 s{sKS}, {fhex(KSCALE)}"]
    o += [f"v_bfe_u32 v{t0}, v0, 1, 3", f"v_xor_b32 v{t0}, v{t0}, v{hh}",
          f"s_lshl_b32 s{sT0}, s{sWave}, 12",
          f"v_lshlrev_b32 v{t1}, 7, v{lo}", f"v_add_u32 v{t1}, s{sT0}, v{t1}"]
    for s in range(4):
        o += [f"v_xor_b32 v{t2}, {2*s}, v{t0}", f"v_lshl_add_u32 v{vXA+s}, v{t2}, 4, v{t1}"]
    r, cg, row = 25, 26, 27
    o += [f"v_bfe_u32 v{r}, v0, 2, 2", f"v_bfe_u32 v{t0}, v0, 4, 1", f"v_and_b32 v{cg}, 3, v0",
          f"v_lshl_add_u32 v{cg}, v{t0}, 2, v{cg}",
          f"v_lshl_add_u32 v{row}, v{hh}, 3, v{r}"]
    o += [f"v_lshrrev_b32 v{t0}, 1, v{r}",
          f"v_lshlrev_b32 v{t1}, 7, v{row}", f"v_add_u32 v{t1}, 16384, v{t1}",
          f"v_lshl_add_u32 v{vW0}, v{t0}, 6, v{t1}",
          f"v_xor_b32 v{vW1}, 64, v{vW0}",
          f"v_lshl_add_u32 v{vW0}, v{cg}, 3, v{vW0}",
          f"s_xor_b32 s{sT0}, s{sPar}, 1",
          f"v_add_u32 v{t2}, s{sT0}, v{cg}", f"v_and_b32 v{t2}, 7, v{t2}",
          f"v_lshl_add_u32 v{vW1}, v{t2}, 3, v{vW1}"]
    o += [f"v_lshlrev_b32 v{t1}, 6, v{row}",
          f"v_add_u32 v{t2}, s{sPar}, v{cg}", f"v_and_b32 v{t2}, 7, v{t2}",
          f"v_lshl_add_u32 v{vQB}, v{t2}, 3, v{t1}", f"v_add_u32 v{vQB}, {QB}, v{vQB}",
          f"v_and_b32 v{t0}, 1, v{cg}", f"v_lshlrev_b32 v{t0}, 1, v{t0}",
          f"v_bfe_u32 v{t2}, v{cg}, 1, 1", f"v_or_b32 v{t0}, v{t0}, v{t2}",
          f"v_and_b32 v{t2}, 4, v{cg}", f"v_or_b32 v{t0}, v{t0}, v{t2}",
          f"v_lshl_add_u32 v{vQA}, v{t0}, 3, v{t1}", f"v_add_u32 v{vQA}, {QA}, v{vQA}"]
    o += [f"v_add_u32 v{vLow}, -1, v{hh}",
          f"s_sub_u32 s{sT0}, s{sPar}, 1",
          f"v_not_b32 v{t0}, v{vLow}",
          f"v_or_b32 v{vMA}, s{sT0}, v{t0}",
          f"s_not_b32 s{sT0}, s{sT0}",
          f"v_or_b32 v{vMB}, s{sT0}, v{vLow}"]
    o += [f"v_lshlrev_b32 v{t0}, 2, v{hh}", f"v_sub_u32 v{t0}, v{lo}, v{t0}"]
    for rr in range(16):
        b = 8 * (rr >> 2) + (rr & 3)
        o.append(f"v_cmp_le_i32 s[{sMask+2*rr}:{sMask+2*rr+1}], {b}, v{t0}")
    o += [f"v_mov_b32 v{t1}, 0xffff", f"v_mov_b32 v{t2}, 0xffff0000"]
    for p in range(8):
        o += [f"v_cndmask_b32 v{MK+p}, 0, v{t1}, s[{sMask+4*p}:{sMask+4*p+1}]",
              f"v_cndmask_b32 v{t0}, 0, v{t2}, s[{sMask+4*p+2}:{sMask+4*p+3}]",
              f"v_or_b32 v{MK+p}, v{MK+p}, v{t0}"]
    return o


def tr(d, a, off):
    return f"ds_read_b64_tr_b16 v[{d}:{d+1}], v{a} offset:{off}"


def gemm_frags(isY):
    fr = []
    for k in range(28):
        c, s = divmod(k, 4)
        for j in range(2):
            base = p1x(c) - (73728 if 3 <= c <= 5 else 0)
            xo = p1x(c) - (73728 if 3 <= c <= 5 else 0)
            fr.append(dict(step=c, addr=(vW0, vW1)[j], off=base + s * 2048, du=512, k=k,
                           acc=accA + 16 * j, wfirst=not isY, p=1,
                           xread=(f"ds_read_b128 v[{XF+4*k}:{XF+4*k+3}], v{vXA+s} offset:{xo}" if j == 0 else None)))
    for k in range(28):
        c, s = divmod(k, 4)
        for j in range(2):
            fr.append(dict(step=7 + c, addr=(vW0, vW1)[j], off=c * 8192 + s * 2048, du=512, k=k,
                           acc=accB + 16 * j, wfirst=False, p=2, xread=None))
    for q, (a, st) in enumerate(((vQB, 14), (vQA, 21))):
        for k in range(28):
            c, s = divmod(k, 4)
            fr.append(dict(step=st + c, addr=a, off=c * 4096 + s * 1024, du=256, k=k,
                           acc=accA + 16 * q, wfirst=True, p=3 + q, xread=None))
    return fr


def gemm_slots(isY):
    fr = gemm_frags(isY)
    N = len(fr)
    D = 5
    slots = []
    issued = 0
    early_done = set()
    checked = set()
    for n in range(N):
        cur = []
        f = fr[n]
        if f['p'] == 1 and f['step'] < 6:
            lim = min(n + D, 8 * f['step'] + 7)
        else:
            lim = min(n + D, N - 1)
        while issued <= lim:
            g = fr[issued]
            st = g['step']
            if st not in checked:
                checked.add(st)
                if st <= 6:
                    if st == 3:
                        cur += [f"v_add_u32 v{r}, 73728, v{r}" for r in (vXA, vXA+1, vXA+2, vXA+3, vW0, vW1)]
                    if st == 6:
                        cur += [f"v_subrev_u32 v{r}, 73728, v{r}" for r in (vXA, vXA+1, vXA+2, vXA+3, vW0, vW1)]
                    cur += spin_lds(st, 2, vF, vM)
                    if st == 0:
                        cur += stamp(1)
                else:
                    if st == 7:
                        cur += [f"v_add_u32 v{r}, {P2-16384}, v{r}" for r in (vW0, vW1)]
                    if st not in early_done:
                        cur += check_early(st, vF, vM)
                    cur += check_late(st, 2, vF, vM)
            b = WB + 4 * (issued % 6)
            if g['xread']:
                cur.append(g['xread'])
            cur += [tr(b, g['addr'], g['off']), tr(b + 2, g['addr'], g['off'] + g['du'])]
            issued += 1
            last_of_step = issued == N or fr[issued]['step'] != st
            if last_of_step:
                ev = {2: E_P1A, 5: E_P1B, 7: E_P2A, 13: E_P2, 27: E_P3}.get(st)
                if ev is not None:
                    cur += signal(ev, vM, vOne)
        if issued + 2 < N:
            st = fr[issued + 2]['step']
            if st > 6 and st not in checked and st not in early_done and n >= 48:
                early_done.add(st)
                cur += check_early(st, vF, vM)
        b = WB + 4 * (n % 6)
        x = XF + 4 * f['k']
        A, B = (b, x) if f['wfirst'] else (x, b)
        cur.append(mfma(f['acc'], A, B, f['acc'] if f['k'] else None))
        slots.append(cur)
    return slots


def phi_pairs(acc, n, dst):
    o = []
    for p in range(n):
        a, b = acc + 2 * p, acc + 2 * p + 1
        ta, tb = TMP + 2 * (p % 2), TMP + 2 * (p % 2) + 1
        o += [f"v_mul_f32 v{ta}, s{sL2E}, v{a}", f"v_mul_f32 v{tb}, s{sL2E}, v{b}",
              f"v_exp_f32_e64 v{ta}, v{ta} clamp", f"v_exp_f32_e64 v{tb}, v{tb} clamp",
              f"v_max_f32 v{a}, 0, v{a}", f"v_max_f32 v{b}, 0, v{b}",
              f"v_add_f32 v{a}, v{a}, v{ta}", f"v_add_f32 v{b}, v{b}, v{tb}",
              f"v_add_f32 v{a}, s{sEps}, v{a}", f"v_add_f32 v{b}, s{sEps}, v{b}",
              f"v_cvt_pk_bf16_f32 v{dst+p}, v{a}, v{b}"]
    return o


def flag_store(vtmp, soff):
    return [f"v_mov_b32 v{vtmp}, 0", "s_mov_b64 exec, 1",
            f"buffer_store_dword v{vEp}, v{vtmp}, s[{sWSD}:{sWSD+3}], s{soff} offen sc1",
            "s_mov_b64 exec, -1"]


def get_epoch():
    return [check_early(C_EPOCH, vEp, vM), [], [], check_late(C_EPOCH, 0, vEp, vM, ne0=True)]


def qb_epilogue():
    a = accA
    t, u = TMP + 4, TMP + 5
    o = [f"v_mov_b32 v{t}, v{a+12}", f"v_mov_b32 v{u}, v{a+12}"]
    ph = phi_pairs(a, 8, PK)
    o += ph[:4]
    o += [f"v_permlane32_swap_b32 v{t}, v{u}",
          f"v_mul_f32 v{u}, s{sL2E}, v{u}", f"v_exp_f32_e64 v{u}, -v{u}"]
    o += ph[4:8]
    o += [f"v_add_f32 v{u}, 1.0, v{u}", f"v_rcp_f32 v{vG}, v{u}"]
    o += ph[8:]
    o += [f"v_sub_f32 v{u}, 1.0, v{vG}",
          f"v_and_b32 v{PK+6}, v{PK+6}, v{vLow}", f"v_and_b32 v{PK+7}, v{PK+7}, v{vLow}",
          f"s_lshl_b32 s{sT0}, s{sWave}, 11", f"s_add_u32 s{sT0}, s{sT0}, {PQ}",
          f"v_add_u32 v{t}, s{sT0}, v{vL16}",
          f"ds_write_b128 v{t}, v[{PK}:{PK+3}]", f"ds_write_b128 v{t}, v[{PK+4}:{PK+7}] offset:1024",
          f"s_lshl_b32 s{sT0}, s{sWave}, 8", f"s_add_u32 s{sT0}, s{sT0}, {G1}",
          f"v_lshl_add_u32 v{t}, v0, 2, s{sT0}",
          f"ds_write_b32 v{t}, v{u}"]
    o += [signal(E_PQ, vM, vOne)]
    return o


def c_gemm(isY):
    slots = gemm_slots(isY)
    p1, p2, p3a, p3b = slots[:56], slots[56:112], slots[112:140], slots[140:168]
    o = []
    for s in p1:
        o += s
    o += stamp(2)
    if not isY:
        f = [f"s_mul_i32 s{sSt}, s{sTile}, 28672", f"s_lshl_b32 s{sT0}, s{sHH}, 12",
             f"s_add_u32 s{sSt}, s{sSt}, s{sT0}",
             f"s_lshl_b32 s{sSt+1}, s{sTile}, 3", f"s_add_u32 s{sSt+1}, s{sSt+1}, s{sHH}",
             f"s_lshl_b32 s{sSt+1}, s{sSt+1}, 6", f"s_add_u32 s{sSt+1}, s{sSt+1}, {FK}"]
        for j in range(2):
            a = accA + 16 * j
            d = PK + 8 * j
            f += [f"v_mul_f32 v{a+i}, s{sKS}, v{a+i}" for i in range(16)]
            f += [f"v_cvt_pk_bf16_f32 v{d+i}, v{a+2*i}, v{a+2*i+1}" for i in range(8)]
            f += [f"v_permlane32_swap_b32 v{d+x}, v{d+x+2}" for x in (0, 1, 4, 5)]
            f += [f"buffer_store_dwordx4 v[{d+4*e}:{d+4*e+3}], v{vL16}, s[{sKD}:{sKD+3}], s{sSt} offen offset:{(4*j+2*e)*512} sc1 ;@tag=kst" for e in range(2)]
        g = get_epoch() + [["@wait_vm kst"] + flag_store(TMP, sSt + 1)]
        o += merge(p2[:30], f, start=3) + merge(p2[30:], g, start=OPT.get('kflag', 16))
        o += stamp(3)
        f = [f"s_mul_i32 s{sSt}, s{sTile}, 28672", f"s_lshl_b32 s{sT0}, s{sHH}, 10",
             f"s_add_u32 s{sSt}, s{sSt}, s{sT0}", f"s_add_u32 s{sSt}, s{sSt}, {VG}",
             f"s_add_u32 s{sSt+2}, s{sSt}, 14336",
             f"s_add_u32 s{sSt+1}, s{sSt+1}, {FV-FK}",
             f"v_lshrrev_b32 v{TMP+1}, 5, v0", f"v_mul_u32_u24 v{TMP+1}, {7168-512}, v{TMP+1}",
             f"v_add_u32 v{TMP+1}, v{TMP+1}, v{vL16}"]
        for j in range(2):
            a = accB + 16 * j
            d = PK + 8 * j
            f += [f"v_cvt_pk_bf16_f32 v{d+i}, v{a+2*i}, v{a+2*i+1}" for i in range(8)]
            f += [f"buffer_store_dwordx4 v[{d+4*e}:{d+4*e+3}], v{TMP+1}, s[{sKD}:{sKD+3}], s{sSt+2*e} offen offset:{512*j} sc1 ;@tag=vst" for e in range(2)]
        o += merge(p3a, f, start=5, per=3)
        o += stamp(4)
        q = qb_epilogue()
        g = [["@wait_vm vst"] + flag_store(TMP + 4, sSt + 1)]
        o += merge(p3b[:5], g, start=4) + merge(p3b[5:], q, start=0)
    else:
        f = phi_pairs(accA, 16, PK)
        o += merge(p2, f + get_epoch(), start=3)
        o += stamp(3)
        PV = accA + 16
        f = []
        for j in range(2):
            a = accB + 16 * j
            f += [f"v_cvt_pk_bf16_f32 v{PV+8*j+i}, v{a+2*i}, v{a+2*i+1}" for i in range(8)]
        f += [f"s_mov_b32 vcc_lo, 0x10000000", f"s_mov_b32 vcc_hi, 0x10000000", f"v_mov_b32 v{TMP}, 0x3f803f80"]
        f = f[:-3] + [f"s_mov_b32 s{sSt+2}, 0x10000000", f"s_mov_b32 s{sSt+3}, 0x10000000", f"v_mov_b32 v{TMP}, 0x3f803f80"]
        f += [f"v_cndmask_b32 v{PV+i}, v{PV+i}, v{TMP}, s[{sSt+2}:{sSt+3}]" for i in range(16)]
        f += [mfma(accB, PK, PV, None), mfma(accB + 16, PK + 8, PV + 8, None),
              mfma(accB, PK + 4, PV + 4, accB), mfma(accB + 16, PK + 12, PV + 12, accB + 16)]
        f += [f"s_lshl_b32 s{sT0}, s{sWave}, 13", f"v_add_u32 v{TMP}, s{sT0}, v{vL16}",
              f"s_lshl_b32 s{sT0}, s{sWave}, 11", f"v_add_u32 v{TMP+1}, s{sT0}, v{vL16}"]
        f += [check_early(E_P2A, TMP + 2, vM), [], check_late(E_P2A, 4, TMP + 2, vM), []]
        f += [[], [], [], []]
        f1 = f
        f2 = [f"ds_write_b128 v{TMP}, v[{accB+4*i}:{accB+4*i+3}] offset:{KVRED+1024*i}" for i in range(8)]
        f2 += [signal(E_KVW, vM, vOne)]
        f2 += [f"v_mov_b32 v{PK+2*i+1}, v{vEp}" for i in range(8)]
        f2 += [f"s_lshr_b32 s{sT0}, s{sWave}, 1", f"s_add_u32 s{sT0}, s{sT0}, s{sH}", f"s_lshl_b32 s{sT0}, s{sT0}, 4",
               f"s_add_u32 s{sT0}, s{sT0}, s{sRB}", f"s_lshl_b32 s{sT0}, s{sT0}, 1",
               f"s_and_b32 s{sT1}, s{sWave}, 1", f"s_add_u32 s{sT0}, s{sT0}, s{sT1}", f"s_lshl_b32 s{sSt}, s{sT0}, 12",
               f"s_add_u32 s{sSt}, s{sSt}, {KVP}"]
        f2 += [check_early(E_KVW, TMP + 2, vM), [], check_late(E_KVW, 4, TMP + 2, vM)]
        f2 += [f"ds_read_b128 v[{accB+8*w+4*e}:{accB+8*w+4*e+3}], v{TMP+1} offset:{KVRED+8192*w+1024*e}" for w in range(4) for e in range(2)]
        f3 = [f"v_lshlrev_b32 v{TMP}, 3, v0"]
        for i in range(8):
            f3 += [f"v_add_f32 v{accB+i}, v{accB+i}, v{accB+8+i}", f"v_add_f32 v{accB+16+i}, v{accB+16+i}, v{accB+24+i}"]
        for i in range(8):
            f3 += [f"v_add_f32 v{PK+2*i}, v{accB+i}, v{accB+16+i}",
                   f"buffer_store_dwordx2 v[{PK+2*i}:{PK+2*i+1}], v{TMP}, s[{sWSD}:{sWSD+3}], s{sSt} offen offset:{512*i} sc1"]
        o += merge(p3a[:16], f1, start=4) + merge(p3a[16:], f2, start=0)
        o += stamp(4)
        o += merge(p3b[:7], f3, start=0) + merge(p3b[7:], qb_epilogue(), start=0)
    o += stamp(5)
    a = accA + 16
    o += [f"v_cvt_pk_bf16_f32 v{QF+i}, v{a+2*i}, v{a+2*i+1}" for i in range(8)]
    o += [f"v_and_b32 v{QF}, v{QF}, v{vMA}", f"v_and_b32 v{QF+1}, v{QF+1}, v{vMA}",
          f"v_and_b32 v{QF+6}, v{QF+6}, v{vMB}", f"v_and_b32 v{QF+7}, v{QF+7}, v{vMB}"]
    return o


sKD = 100 - 4 - 0
sKD = 96

CM, SA, SB, SC, SF, SX = 128, 144, 160, 176, 192, 64
PA, PB, PF = 208, 216, 224
OACC = 96
KF = (32, 40)
VF = (48, 16)
vKA, vVA, vMx = 2, 3, 4
NEG = '0xf149f2ca'


def attention(guard):
    sI0 = sSt
    o = []

    def kread(i, buf):
        return [f"ds_read_b128 v[{buf+4*s}:{buf+4*s+3}], v{vKA} offset:{2048*i+1024*s}" for s in range(2)]

    def vread(i, buf):
        return [f"ds_read_b128 v[{buf+4*s}:{buf+4*s+3}], v{vVA} offset:{2048*i+1024*s}" for s in range(2)]

    def qk(d, buf, c):
        return [mfma(d, buf, QF, c), mfma(d, buf + 4, QF + 4, d)]

    def setc(i, src):
        L = lab('g')
        return [f"s_cmp_lg_u32 s{sI0}, {i}", f"!s_cbranch_scc1 {L}", "!!s_nop 7"] + \
               [f"!!v_mov_b32 v{CM+r}, {src}" for r in range(16)] + ["!!s_nop 1", f"!{L}:"]

    def maxes(s, first):
        m = []
        if first:
            m.append(f"v_max3_f32 v{vMx}, v{s}, v{s+1}, v{s+2}")
            rest = list(range(3, 16))
        else:
            rest = list(range(16))
        while rest:
            if len(rest) >= 2:
                m.append(f"v_max3_f32 v{vMx}, v{vMx}, v{s+rest[0]}, v{s+rest[1]}")
                rest = rest[2:]
            else:
                m.append(f"v_max_f32 v{vMx}, v{vMx}, v{s+rest[0]}")
                rest = []
        return m

    C1 = CM if guard else None
    if guard:
        o += [f"v_mov_b32 v{CM+r}, {NEG}" for r in range(16)]
    o += spin_lds(ST_K, 2, vF, vM)
    o += stamp(6)
    o += kread(0, KF[0]) + kread(1, KF[1])
    b1 = {0: SF, 8: SC}
    bufs = {}
    for i in range(1, 8):
        b1[i] = (SA, SB, SX)[i % 3]
        bufs[i] = (SA, SB)[i % 2]
    mx = {i: maxes(b1[i], first=(i == 1)) for i in range(1, 8)}
    for i in range(9):
        if guard:
            o += setc(i, "0")
        m = qk(b1[i], KF[i % 2], C1)
        nxt = kread(i + 2, KF[i % 2]) if i + 2 <= 8 else []
        o += [m[0]] + mx.get(i - 2, [])[4:] + [m[1]] + nxt + mx.get(i - 1, [])[:4]
    o += mx[7][4:]
    o += check_early(ST_V, vF, vM)
    o += kread(1, KF[1]) + kread(2, KF[0])
    o += [f"v_cndmask_b32 v{SC+r}, v{SF+r}, v{SC+r}, s[{sMask+2*r}:{sMask+2*r+1}]" for r in range(16)]
    o += maxes(SC, first=False)
    t = TMP
    o += [f"v_mov_b32 v{t}, v{vMx}", f"v_permlane32_swap_b32 v{t}, v{vMx}",
          f"v_max_f32 v{vMx}, v{vMx}, v{t}", f"v_sub_f32 v{vMx}, 0, v{vMx}"]
    o += check_late(ST_V, 2, vF, vM)
    o += stamp(7)
    o += vread(0, VF[0]) + vread(8, VF[1])
    if guard:
        o += [f"v_mov_b32 v{CM+r}, {NEG}" for r in range(16)]
        o += [f"s_max_u32 s{sI0}, s{sI0}, 1"]
        o += setc(1, f"v{vMx}")
    else:
        o += [f"v_mov_b32 v{CM+r}, v{vMx}" for r in range(16)]
    def expcvt(s, p, sub):
        e = []
        for r in range(16):
            if sub:
                e.append(f"v_add_f32 v{s+r}, v{s+r}, v{vMx}")
        for r in range(16):
            e.append(f"v_exp_f32 v{s+r}, v{s+r}")
            if r % 2 == 1 and r >= 3:
                e.append(f"v_cvt_pk_bf16_f32 v{p+(r-3)//2}, v{s+r-3}, v{s+r-2}")
        e.append(f"v_cvt_pk_bf16_f32 v{p+7}, v{s+14}, v{s+15}")
        return e

    def spread(mf, va):
        r = []
        n = len(mf)
        k = 0
        for idx, g in enumerate(mf):
            r += g
            want = (len(va) * (idx + 1)) // n - k
            r += va[k:k + want]
            k += want
        return r

    ev = expcvt(SC, PA, True)
    ev += [x for p in range(8) for x in (f"v_and_b32 v{PB+p}, v{PA+p}, v{MK+p}", f"v_xor_b32 v{PF+p}, v{PA+p}, v{PB+p}")]
    q1 = qk(bufs[1], KF[1], CM)
    o += spread([[q1[0]], [q1[1]] + kread(3, KF[1])], ev)
    prev_pv = [mfma(OACC, VF[0], PF, None), mfma(OACC, VF[0] + 4, PF + 4, OACC),
               mfma(OACC, VF[1], PB, OACC), mfma(OACC, VF[1] + 4, PB + 4, OACC)]
    prev_after = {1: vread(1, VF[0]), 3: vread(2, VF[1])}
    for i in range(1, 8):
        P = (PB, PA)[i % 2]
        groups = []
        nq = []
        pre = []
        if i + 1 <= 7:
            if guard:
                pre = setc(i + 1, f"v{vMx}")
            nq = qk(bufs[i + 1], KF[(i + 1) % 2], CM)
        seq = []
        if nq:
            seq.append([nq[0]])
            seq.append([nq[1]] + (kread(i + 3, KF[(i + 1) % 2]) if i + 3 <= 7 else []))
        for idx, m_ in enumerate(prev_pv):
            seq.append([m_] + prev_after.get(idx, []))
        o += pre
        o += spread(seq, expcvt(bufs[i], P, False))
        vb = VF[(i + 1) % 2]
        prev_pv = [mfma(OACC, vb, P, OACC), mfma(OACC, vb + 4, P + 4, OACC)]
        prev_after = {1: vread(i + 2, vb)} if i + 2 <= 7 else {}
    o += prev_pv
    return o


def c_tail():
    t, u = TMP, TMP + 1
    o = [f"s_lshl_b32 s{sSt}, s{sTile}, 4", f"s_add_u32 s{sSt}, s{sSt}, s{sH}",
         f"s_lshl_b32 s{sSt+1}, s{sSt}, 6", f"s_add_u32 s{sSt+1}, s{sSt+1}, {FOA}",
         f"s_lshl_b32 s{sSt}, s{sSt}, 11", f"s_add_u32 s{sSt}, s{sSt}, {OA}"]
    o += [f"v_mov_b32 v{t}, v{OACC+12}", f"v_mov_b32 v{u}, v{OACC+12}", f"v_permlane32_swap_b32 v{t}, v{u}",
          f"v_rcp_f32 v{u}, v{u}", f"v_mul_f32 v{u}, v{u}, v{vG}", f"v_and_b32 v{t}, v{u}, v{vLow}"]
    for p in range(8):
        sc = u if p < 6 else t
        o += [f"v_mul_f32 v{OACC+2*p}, v{OACC+2*p}, v{sc}", f"v_mul_f32 v{OACC+2*p+1}, v{OACC+2*p+1}, v{sc}",
              f"v_cvt_pk_bf16_f32 v{PA+p}, v{OACC+2*p}, v{OACC+2*p+1}"]
        if p in (3, 7):
            e = p // 4
            o.append(f"buffer_store_dwordx4 v[{PA+4*e}:{PA+4*e+3}], v{vL16}, s[{sWSD}:{sWSD+3}], s{sSt} offen offset:{1024*e} sc1")
    o += stamp(8)
    o += ["s_waitcnt vmcnt(0)"] + flag_store(t, sSt + 1)
    o += stamp(9)
    o += stamp_flush(TMP, 0)
    o += ["s_endpgm"]
    return o


def c_wave():
    o = []
    o += c_setup()
    o += srd(sKD, sWS, WS_SIZE)
    o += [f"s_cmp_eq_u32 s{sH}, 15", f"s_cselect_b32 s{sKD+2}, 0, s{sKD+2}"]
    o += code_prefetch()
    o += [f"s_cmp_eq_u32 s{sPar}, 0", "!s_cbranch_scc1 L_cY"]
    o += c_gemm(False)
    o += ["@drain", "s_nop 7", "s_branch L_attn", "@reset", "L_cY:"]
    o += c_gemm(True)
    o += ["@drain", "s_nop 7", "@reset", "L_attn:"]
    o += [f"s_lshl_b32 s{sT0}, s{sWave}, 11",
          f"s_add_u32 s{sT1}, s{sT0}, {KL}", f"v_add_u32 v{vKA}, s{sT1}, v{vL16}",
          f"s_add_u32 s{sT1}, s{sT0}, {VL}", f"v_add_u32 v{vVA}, s{sT1}, v{vL16}",
          f"s_cmp_lt_u32 s{sTile}, 8", "!s_cbranch_scc1 L_attn_g"]
    o += attention(False)
    o += ["L_ctail:"]
    o += c_tail()
    o += ["@reset", "L_attn_g:", f"s_sub_u32 s{sSt}, 8, s{sTile}"]
    o += attention(True)
    o += ["s_nop 15", "s_branch L_ctail", "@reset"]
    return o


def code_prefetch():
    if not OPT['prefetch']:
        return []
    o = ["s_getpc_b64 s[38:39]", "L_pc:",
         f"s_sub_u32 s38, s38, L_pc-{NAME}_kernel", "s_subb_u32 s39, s39, 0",
         f"s_lshl_b32 s{sT0}, s{sWave}, 13",
         f"v_lshl_add_u32 v20, v0, 7, s{sT0}",
         f"v_min_u32 v20, L_end-{NAME}_kernel-4, v20",
         "global_load_dword v21, v20, s[38:39]"]
    return o


sXD, sWD, sQBD, sQAD, sGD = 36, 40, 44, 48, 52
sKGD, sVGD, sOAD, sOBD = 56, 60, 64, 68
sOff, sLi, sHW = 72, 73, 74
vX, vW, vQ, vPat, vK, vV, vWO = 2, 3, 4, 5, 6, 7, 8
GV = 16


def dma(vaddr, sd, soff, lds, extra="", tag=None):
    o = [f"s_add_u32 m0, s{sLi}, {lds}"]
    if isinstance(soff, int):
        if soff:
            o.append(f"s_mov_b32 s{sOff}, {soff}")
            so = f"s{sOff}"
        else:
            so = "0"
    else:
        so = soff
    o.append(f"buffer_load_dwordx4 v{vaddr}, s[{sd}:{sd+3}], {so} offen {extra} lds" + (f" ;@tag={tag}" if tag else ""))
    return o


def h_common():
    return [f"v_lshlrev_b32 v{vL16}, 4, v0", f"v_mov_b32 v{vM}, {MISC}", f"v_mov_b32 v{vOne}, 1",
            f"s_sub_u32 s{sHW}, s{sWave}, 4"]


def l_wave():
    o = ["@reset", "L_lwave:"]
    o += ["s_setprio 2"]
    o += h_common()
    t0, t1, t2 = 24, 25, 26
    o += [f"s_lshl_b32 s{sLi}, s{sHW}, 10"]
    o += srd(sXD, sX, 1835008)
    o += [f"v_lshrrev_b32 v{t0}, 3, v0", f"s_lshl_b32 s{sT0}, s{sRB}, 4", f"s_add_u32 s{sT0}, s{sT0}, s{sHW}",
          f"s_lshl_b32 s{sT0}, s{sT0}, 3", f"v_add_u32 v{t1}, s{sT0}, v{t0}", f"v_mul_u32_u24 v{vX}, 896, v{t1}",
          f"v_lshrrev_b32 v{t1}, 4, v0", f"s_lshl_b32 s{sT0}, s{sHW}, 2", f"v_add_u32 v{t1}, s{sT0}, v{t1}",
          f"v_and_b32 v{t2}, 7, v0", f"v_xor_b32 v{t1}, v{t1}, v{t2}", f"v_lshl_add_u32 v{vX}, v{t1}, 4, v{vX}"]
    o += [f"s_cmp_eq_u32 s{sPar}, 0",
          f"s_cselect_b32 s{sWD}, s{sBW}, s{sAW}", f"s_cselect_b32 s{sWD+1}, s{sBW+1}, s{sAW+1}",
          f"s_lshl_b32 s{sT2}, s{sPar}, 4", f"s_add_u32 s{sT1}, s{sT2}, 112", f"s_add_u32 s{sT2}, s{sT2}, 48",
          f"s_mov_b32 s{sWD+2}, 1204224", f"s_mov_b32 s{sWD+3}, 0x20000",
          f"s_cmp_eq_u32 s{sH}, 15", f"s_cselect_b32 s{sWD+2}, 0, s{sWD+2}",
          f"s_mul_i32 s{sT1}, s{sT1}, s{sHH}", f"s_add_u32 s{sT1}, s{sT1}, 896",
          f"s_lshl_b32 s{sT0}, s{sHW}, 3", f"v_add_u32 v{t1}, s{sT0}, v{t0}", f"v_mul_u32_u24 v{vW}, 2688, v{t1}",
          f"v_bfe_u32 v{t1}, v0, 2, 1", f"v_bfe_u32 v{t2}, v0, 4, 1", f"v_xor_b32 v{t1}, v{t1}, v{t2}",
          f"v_mul_u32_u24 v{t2}, s{sT2}, v{t1}", f"v_add3_u32 v{vW}, v{vW}, v{t2}, s{sT1}",
          f"v_and_b32 v{t2}, 3, v0", f"v_lshl_add_u32 v{vW}, v{t2}, 4, v{vW}"]
    first = []
    ops = []
    for c in range(7):
        for ii in range(8):
            ops.append((dma(vX, sXD, 16 * ii * 896 + 128 * c, p1x(c) + 2048 * ii), c))
        for ii in range(4):
            ops.append((dma(vW, sWD, (64 * c + 16 * ii) * 2688, p1w(c) + 2048 * ii), c))
    for c in range(7):
        for ii in range(4):
            ops.append((dma(vW, sWD, (64 * c + 16 * ii) * 2688 + 896, P2 + 8192 * c + 2048 * ii), 7 + c))
    for q, (sd, base) in enumerate(((sQBD, QB), (sQAD, QA))):
        for c in range(7):
            for ii in range(2):
                ops.append((dma(vQ, sd, (64 * c + 32 * ii) * 2688, base + 4096 * c + 2048 * ii), 14 + 7 * q + c))
    late = srd(sQBD, sBW, 1204224) + srd(sQAD, sAW, 1204224) + srd(sGD, sGW, 896)
    late += [f"v_lshrrev_b32 v{t0}, 2, v0", f"s_lshl_b32 s{sT0}, s{sHW}, 4", f"v_add_u32 v{t0}, s{sT0}, v{t0}",
             f"v_mul_u32_u24 v{vQ}, 2688, v{t0}", f"v_and_b32 v{t1}, 3, v0", f"v_lshl_add_u32 v{vQ}, v{t1}, 4, v{vQ}",
             f"s_mul_i32 s{sT0}, s{sH}, 56", f"s_lshl_b32 s{sT1}, s{sPar}, 3", f"s_sub_u32 s{sT0}, s{sT0}, s{sT1}",
             f"v_add_u32 v{vQ}, s{sT0}, v{vQ}",
             f"v_bfe_u32 v{t0}, v0, 4, 1", f"v_lshlrev_b32 v{t0}, 5, v{t0}", f"v_and_b32 v{t1}, 15, v0",
             f"s_lshl_b32 s{sT0}, s{sHW}, 4", f"v_add3_u32 v{t0}, v{t0}, v{t1}, s{sT0}",
             f"v_lshlrev_b32 v{t1}, 1, v{t0}",
             f"s_xor_b32 s{sT0}, s{sPar}, 1", f"s_mul_i32 s{sT0}, s{sT0}, 56", f"s_add_u32 s{sT0}, s{sT0}, {QB}",
             f"v_lshl_add_u32 v{vPat}, v{t0}, 6, s{sT0}"]
    late += [f"buffer_load_ushort v{GV+c}, v{t1}, s[{sGD}:{sGD+3}], 0 offen offset:{128*c}" for c in range(7)]
    late += srd(sKGD, sWS, 1835008) + srd(sVGD, sWS, 1835008, add=VG)
    late += [f"s_lshl_b32 s{sT0}, s{sRB}, 2", f"s_sub_u32 s{sT0}, s{sT0}, 8", f"s_mul_i32 s{sT0}, s{sT0}, 28672",
             f"s_mul_i32 s{sT1}, s{sH}, 7", f"s_lshr_b32 s{sT1}, s{sT1}, 1", f"s_lshl_b32 s{sT1}, s{sT1}, 9",
             f"s_add_u32 s{sT1}, s{sT1}, s{sT0}", f"s_add_u32 s{sT1}, s{sT1}, s{sLi}",
             f"v_add_u32 v{vK}, s{sT1}, v{vL16}",
             f"s_mul_i32 s{sT1}, s{sH}, 448", f"s_mul_i32 s{sT2}, s{sHW}, 14336",
             f"s_add_u32 s{sT1}, s{sT1}, s{sT2}", f"s_add_u32 s{sT1}, s{sT1}, s{sT0}",
             f"v_lshrrev_b32 v{t0}, 5, v0", f"v_mul_u32_u24 v{t0}, {7168-512}, v{t0}",
             f"v_add3_u32 v{vV}, v{t0}, v{vL16}, s{sT1}"]
    LEAD = OPT['lead']
    assert LEAD <= 35
    last_of = {}
    for n, (_, st) in enumerate(ops):
        last_of[st] = n
    sig_next = 0

    def do_signal(st):
        r = [f"@wait_vm s{st}"]
        if 14 <= st <= 20:
            r.append(f"ds_write_b16 v{vPat}, v{GV+st-14} offset:{4096*(st-14)}")
        return r + signal(st, vM, vOne)

    for n, (ins, st) in enumerate(ops):
        if n == 72:
            o += spin_lds_nodrain(E_P1A, 4, vF, vM)
        if n == 108:
            o += spin_lds_nodrain(E_P1B, 4, vF, vM)
        if last_of[st] == n:
            ins = ins[:-1] + [ins[-1] + f" ;@tag=s{st}"]
        o += ins
        if n == 11:
            o += late
        while sig_next < 28 and last_of[sig_next] + LEAD <= n:
            o += do_signal(sig_next)
            sig_next += 1
    o += stamp(1)
    kops = []
    for j in range(12):
        kops.append(dma(vK, sKGD, 0, KL + 2048 * j, "sc1", tag=("s28" if j == 11 else None)) + [f"v_add_u32 v{vK}, 28672, v{vK}"])
    vops = []
    for j in range(12):
        vops.append(dma(vV, sVGD, 0, VL + 2048 * j, "sc1", tag=("s29" if j == 11 else None)) + [f"v_add_u32 v{vV}, 28672, v{vV}"])
    Lk, Lb = lab('knr'), lab('kb')
    rest = []
    for st in range(sig_next, 28):
        rest += do_signal(st)
    o += check_early(C_KOK, vF, vM)
    o += [f"v_cmp_eq_u32 vcc, 0, v{vF}", f"!s_cbranch_vccnz {Lk}"]
    fast = []
    sn = sig_next
    base_n = len(ops)
    for j, k in enumerate(kops):
        fast += k
        while sn < 28 and last_of[sn] + LEAD <= base_n + j:
            fast += do_signal(sn)
            sn += 1
    for st in range(sn, 28):
        fast += do_signal(st)
    o += fast
    o += [f"s_branch {Lb}", "@reset", f"{Lk}:"]
    nout = len(ops) - (last_of[sig_next - 1] + 1) if sig_next else len(ops)
    for st in range(sig_next, 28):
        rem = len(ops) - 1 - last_of[st]
        o += [f"s_waitcnt vmcnt({rem})"]
        if 14 <= st <= 20:
            o.append(f"ds_write_b16 v{vPat}, v{GV+st-14} offset:{4096*(st-14)}")
        o += signal(st, vM, vOne)
    o += spin_lds_nodrain(C_KOK, 0, vF, vM, ne0=True)
    for k in kops:
        o += k
    o += ["@reset", f"{Lb}:"]
    o += stamp(2)
    Lv, Lb2 = lab('vnr'), lab('vb')
    o += check_early(C_VOK, vF, vM)
    o += [f"v_cmp_eq_u32 vcc, 0, v{vF}", f"!s_cbranch_vccz {Lv}",
          "s_waitcnt vmcnt(0)"] + signal(ST_K, vM, vOne) + spin_lds_nodrain(C_VOK, 0, vF, vM, ne0=True)
    o += ["s_mov_b32 exec_lo, 0x0fffffff", "s_mov_b32 exec_hi, 0x0fffffff"]
    for v in vops:
        o += v
    o += ["s_mov_b64 exec, -1", f"s_branch {Lb2}", "@reset", f"{Lv}:"]
    o += ["s_mov_b32 exec_lo, 0x0fffffff", "s_mov_b32 exec_hi, 0x0fffffff"]
    for v in vops:
        o += v
    o += ["s_mov_b64 exec, -1", "s_waitcnt vmcnt(12)"] + signal(ST_K, vM, vOne)
    o += ["@reset", f"{Lb2}:"]
    o += stamp(3)
    o += [f"s_cmp_ge_u32 s{sH}, 14", "!s_cbranch_scc0 L_lwo",
          "s_waitcnt vmcnt(0)"] + signal(ST_V, vM, vOne) + ["s_waitcnt lgkmcnt(0)"] + stamp_flush(20, 0) + ["s_endpgm", "@reset", "L_lwo:"]
    o += srd(sXD, sAO, 401408) + srd(sWD, sBO, 401408)
    o += [f"v_lshrrev_b32 v{t0}, 3, v0", f"s_lshl_b32 s{sT0}, s{sHW}, 3", f"v_add_u32 v{t1}, s{sT0}, v{t0}",
          f"v_mul_u32_u24 v{vWO}, 896, v{t1}",
          f"v_bfe_u32 v{t1}, v0, 2, 1", f"v_bfe_u32 v{t2}, v0, 4, 1", f"v_xor_b32 v{t1}, v{t1}, v{t2}",
          f"v_lshl_add_u32 v{vWO}, v{t1}, 6, v{vWO}", f"v_and_b32 v{t2}, 3, v0", f"v_lshl_add_u32 v{vWO}, v{t2}, 4, v{vWO}",
          f"s_lshl_b32 s{sT0}, s{sHH}, 7", f"v_add_u32 v{vWO}, s{sT0}, v{vWO}"]
    o += ["s_waitcnt vmcnt(0)"] + signal(ST_V, vM, vOne)
    o += stamp(4)
    o += spin_lds_nodrain(E_P3, 4, vF, vM)

    def woa(rho):
        r = []
        for kh in range(2):
            for ii in range(7):
                r += dma(vWO, sXD, (224 * kh + 112 * rho + 16 * ii) * 896, STG + 14336 * kh + 2048 * ii,
                         tag=(f"wa{rho}" if kh == 1 and ii == 6 else None))
        return r
    o += woa(0)
    for ii in range(28):
        o += dma(vWO, sWD, 16 * ii * 896, WOB + 2048 * ii, tag=("wb" if ii == 27 else None))
        if ii == 20:
            o += ["@wait_vm wa0"] + signal(ST_WA1, vM, vOne)
    o += p3_setup()
    o += spin_lds_nodrain(ST_WA1, 2, vF, vM)
    o += woa_read(0) + signal(C_R1, vM, vOne)
    o += ["@wait_vm wb"] + signal(ST_WB, vM, vOne)
    o += spin_lds_nodrain(C_R1, 4, vF, vM)
    o += woa(1)
    o += ["@wait_vm wa1"] + signal(ST_WA2, vM, vOne)
    o += stamp(5)
    o += get_epoch_h()
    o += ["@drain", "s_branch L_p3", "@reset"]
    return o


def get_epoch_h():
    return spin_lds_nodrain(C_EPOCH, 0, vEp, vM, ne0=True)


WA = 128
OF = 64
ACC = 32
BB = 16
vA0, vA1, vA0s, vA1s = 2, 3, 4, 5
vOG, vFl = 6, 7
sKh, sRt, sTT = 75, 64, 65


def p3_setup():
    t0, t1, t2, r, cg = 20, 21, 22, 23, 24
    return [f"s_lshr_b32 s{sKh}, s{sHW}, 1", f"s_and_b32 s{sRt}, s{sHW}, 1",
            f"s_lshl_b32 s{sTT}, s{sRB}, 1", f"s_add_u32 s{sTT}, s{sTT}, s{sPar}", f"s_lshl_b32 s{sTT}, s{sTT}, 1",
            f"s_add_u32 s{sTT}, s{sTT}, s{sRt}",
            f"v_bfe_u32 v{r}, v0, 2, 2", f"v_bfe_u32 v{t0}, v0, 4, 1", f"v_and_b32 v{cg}, 3, v0",
            f"v_lshl_add_u32 v{cg}, v{t0}, 2, v{cg}",
            f"v_lshrrev_b32 v{t0}, 1, v{r}", f"v_xor_b32 v{t0}, s{sKh}, v{t0}",
            f"v_lshlrev_b32 v{t1}, 7, v{r}", f"v_lshl_add_u32 v{t1}, v{t0}, 6, v{t1}",
            f"v_lshl_add_u32 v{vA0s}, v{cg}, 3, v{t1}", f"v_xor_b32 v{vA1s}, 64, v{vA0s}",
            f"v_lshrrev_b32 v{t0}, 5, v0", f"v_lshlrev_b32 v{t0}, 9, v{t0}",
            f"v_add_u32 v{vA0}, v{vA0s}, v{t0}", f"v_add_u32 v{vA1}, v{vA1s}, v{t0}",
            f"s_mul_i32 s{sT0}, s{sKh}, 14336"] + \
           [f"v_add_u32 v{a}, s{sT0}, v{a}" for a in (vA0, vA1, vA0s, vA1s)]


def wo_frag(dst, j, hl, s, base):
    a, asp = (vA0, vA0s) if j == 0 else (vA1, vA1s)
    off = base + (28 * hl + 16 * s) * 128
    return [tr(dst, a, off), tr(dst + 2, asp if s == 1 else a, off + 1024)]


def woa_read(rho):
    o = []
    for hl in range(4):
        for s in range(2):
            for j in range(2):
                o += wo_frag(WA + 64 * j + 8 * (4 * rho + hl) + 4 * s, j, hl, s, STG)
    return o


def poll_flags(fbase, vtmp):
    L = lab('pf')
    return [f"s_mov_b32 s{sT1}, {fbase}", f"!s_mov_b32 s{sTO}, 0", "!s_mov_b64 exec, 0xff", f"!{L}:",
            f"!buffer_load_dword v{vtmp}, v{vFl}, s[{sWSD}:{sWSD+3}], s{sT1} offen sc1",
            f"!s_add_u32 s{sTO}, s{sTO}, 1", f"!s_cmp_gt_u32 s{sTO}, {SPIN}", "!s_cbranch_scc1 L_abort",
            "!s_waitcnt vmcnt(0)", f"!v_cmp_ne_u32 vcc, v{vtmp}, v{vEp}", f"!s_cbranch_vccnz {L}",
            "!s_mov_b64 exec, -1"]


def phase3():
    o = ["@reset", "L_p3:"]
    t0 = 20
    o += [f"s_lshl_b32 s{sT0}, s{sTT}, 1", f"s_add_u32 s{sT0}, s{sT0}, s{sKh}", f"s_lshl_b32 s{sT0}, s{sT0}, 3",
          f"v_add_u32 v{vFl}, s{sT0}, v0", f"v_lshlrev_b32 v{vFl}, 6, v{vFl}",
          f"s_lshl_b32 s{sT0}, s{sT0}, 11", f"v_add_u32 v{vOG}, s{sT0}, v{vL16}"]
    o += spin_lds_nodrain(ST_WA2, 2, vF, vM)
    o += woa_read(1)
    o += spin_lds_nodrain(ST_WB, 2, vF, vM)
    o += stamp(6)
    o += [f"s_mul_i32 s{sT0}, s{sKh}, 14336", f"s_add_u32 s{sT0}, s{sT0}, {WOB}"]
    o += [f"v_add_u32 v{a}, s{sT0}, v{a}" for a in (vA0, vA1, vA0s, vA1s)]

    def oloads(base):
        r = []
        for g in range(4):
            r.append(f"s_mov_b32 s{sT2}, {base + 4096*g}")
            for e in range(4):
                n = 4 * g + e
                r.append(f"buffer_load_dwordx4 v[{OF+4*n}:{OF+4*n+3}], v{vOG}, s[{sWSD}:{sWSD+3}], s{sT2} offen offset:{1024*e} sc1")
        return r
    o += poll_flags(FOB, t0)
    o += stamp(7)
    o += oloads(OB)
    fr = [(n, j) for n in range(16) for j in range(2)]
    rd = lambda i: wo_frag(BB + 4 * (i % 4), fr[i][1], fr[i][0] // 2, fr[i][0] % 2, 0)
    o += rd(0) + rd(1) + rd(2)
    for i, (n, j) in enumerate(fr):
        if i + 3 < len(fr):
            o += rd(i + 3)
        o.append(mfma(ACC + 16 * j, BB + 4 * (i % 4), OF + 4 * n, ACC + 16 * j if n else None))
    o += stamp(8)
    o += poll_flags(FOA, t0)
    o += stamp(9)
    o += oloads(OA)
    for n in range(16):
        for j in range(2):
            o.append(mfma(ACC + 16 * j, WA + 64 * j + 4 * n, OF + 4 * n, ACC + 16 * j))
    def redaddr(dst, sidx):
        return [f"s_mov_b32 s{sT0}, {RED[0]}", f"s_cmp_eq_u32 s{sidx}, 1", f"s_cselect_b32 s{sT0}, {RED[1]}, s{sT0}",
                f"s_cmp_eq_u32 s{sidx}, 2", f"s_cselect_b32 s{sT0}, {RED[2]}, s{sT0}",
                f"s_cmp_eq_u32 s{sidx}, 3", f"s_cselect_b32 s{sT0}, {RED[3]}, s{sT0}",
                f"v_add_u32 v{dst}, s{sT0}, v{vL16}"]
    o += redaddr(vA0, sHW) + [f"s_xor_b32 s{sT1}, s{sHW}, 2"] + redaddr(vA1, sT1)
    o += srd(sXD + 4, sOUT, 1835008)
    sO = sXD + 4
    o += [f"v_and_b32 v8, 31, v0", f"s_lshl_b32 s{sT0}, s{sTT}, 5", f"v_add_u32 v8, s{sT0}, v8",
          f"v_mul_u32_u24 v8, 896, v8", f"v_lshrrev_b32 v9, 5, v0",
          f"v_lshl_add_u32 v8, v9, 4, v8",
          f"s_lshl_b32 s{sT0}, s{sHH}, 1", f"s_add_u32 s{sT0}, s{sT0}, s{sKh}", f"s_lshl_b32 s{sT0}, s{sT0}, 6",
          f"v_add_u32 v8, s{sT0}, v8"]
    o += [f"ds_write_b128 v{vA0}, v[{ACC+16+4*i}:{ACC+16+4*i+3}] offset:{1024*i}" for i in range(4)]
    o += ["s_waitcnt lgkmcnt(0)", "s_barrier"]
    o += [f"ds_read_b128 v[{OF+4*i}:{OF+4*i+3}], v{vA1} offset:{1024*i}" for i in range(4)]
    for p in range(8):
        o += [f"v_add_f32 v{ACC+2*p}, v{ACC+2*p}, v{OF+2*p}", f"v_add_f32 v{ACC+2*p+1}, v{ACC+2*p+1}, v{OF+2*p+1}",
              f"v_cvt_pk_bf16_f32 v{BB+p}, v{ACC+2*p}, v{ACC+2*p+1}"]
    o += [f"v_permlane32_swap_b32 v{BB+x}, v{BB+x+2}" for x in (0, 1, 4, 5)]
    o += [f"buffer_store_dwordx4 v[{BB+4*e}:{BB+4*e+3}], v8, s[{sO}:{sO+3}], 0 offen offset:{32*e}" for e in range(2)]
    o += stamp(10)
    if OPT['stamps']:
        o += ["s_waitcnt vmcnt(0)"] + stamp(11)
    o += stamp_flush(20, 0)
    o += ["s_endpgm"]
    return o


def spin_vm(body, cond):
    L = lab('pv')
    o = ["@drain", f"!s_mov_b32 s{sTO}, 0", f"!{L}:"]
    o += ["!" + b for b in body]
    o += [f"!s_add_u32 s{sTO}, s{sTO}, 1", f"!s_cmp_gt_u32 s{sTO}, {SPIN}", "!s_cbranch_scc1 L_abort",
          "!s_waitcnt vmcnt(0)"]
    o += ["!" + c for c in cond]
    o += [f"!s_cbranch_vccnz {L}"]
    return o


def ob_tiles():
    KVr = 16
    o = spin_lds(E_PQ, 4, vF, vM)
    t0, t1 = 24, 25
    o += [f"s_sub_u32 s{sT2}, s{sHW}, 2",
          f"s_lshl_b32 s{sT0}, s{sT2}, 12", f"s_add_u32 s{sT0}, s{sT0}, {PQ}", f"v_add_u32 v{t0}, s{sT0}, v{vL16}",
          f"s_lshl_b32 s{sT0}, s{sT2}, 9", f"s_add_u32 s{sT0}, s{sT0}, {G1}", f"v_lshl_add_u32 v{t1}, v0, 2, s{sT0}"]
    for b in range(2):
        o += [f"ds_read_b128 v[{64+8*b+4*s}:{64+8*b+4*s+3}], v{t0} offset:{2048*b+1024*s}" for s in range(2)]
        o += [f"ds_read_b32 v{26+b}, v{t1} offset:{256*b}"]
    for b in range(2):
        o += [mfma(96 + 16 * b, KVr, 64 + 8 * b, None)]
    for b in range(2):
        o += [mfma(96 + 16 * b, KVr + 4, 64 + 8 * b + 4, 96 + 16 * b)]
    o += [f"s_lshl_b32 s{sT0}, s{sRB}, 1", f"s_add_u32 s{sT0}, s{sT0}, s{sT2}", f"s_lshl_b32 s{sT0}, s{sT0}, 5",
          f"s_add_u32 s{sT0}, s{sT0}, s{sH}",
          f"s_lshl_b32 s40, s{sT0}, 6", f"s_add_u32 s40, s40, {FOB}",
          f"s_lshl_b32 s41, s{sT0}, 11", f"s_add_u32 s41, s41, {OB}",
          f"s_add_u32 s42, s41, {16*2048}",
          f"v_lshrrev_b32 v{vLow}, 5, v0", f"v_add_u32 v{vLow}, -1, v{vLow}",
          f"s_mov_b32 s43, {fhex(1e-6)}"]
    for b in range(2):
        A = 96 + 16 * b
        t, u = 28, 29
        o += [f"v_mov_b32 v{t}, v{A+12}", f"v_mov_b32 v{u}, v{A+12}", f"v_permlane32_swap_b32 v{t}, v{u}",
              f"v_add_f32 v{u}, s43, v{u}", f"v_rcp_f32 v{u}, v{u}", f"v_mul_f32 v{u}, v{u}, v{26+b}",
              f"v_and_b32 v{t}, v{u}, v{vLow}"]
        D = 80 + 8 * b
        for p in range(8):
            sc = u if p < 6 else t
            o += [f"v_mul_f32 v{A+2*p}, v{A+2*p}, v{sc}", f"v_mul_f32 v{A+2*p+1}, v{A+2*p+1}, v{sc}",
                  f"v_cvt_pk_bf16_f32 v{D+p}, v{A+2*p}, v{A+2*p+1}"]
        o += [f"buffer_store_dwordx4 v[{D+4*e}:{D+4*e+3}], v{vL16}, s[{sWSD}:{sWSD+3}], s{41+b} offen offset:{1024*e} sc1" for e in range(2)]
    o += ["s_waitcnt vmcnt(0)", f"v_lshlrev_b32 v{t0}, 10, v0", "s_mov_b64 exec, 3",
          f"buffer_store_dword v{vEp}, v{t0}, s[{sWSD}:{sWSD+3}], s40 offen sc1", "s_mov_b64 exec, -1"]
    return o


def x_wave():
    o = ["@reset", "L_xwave:"]
    o += h_common()
    o += [f"s_cmp_eq_u32 s{sWave}, 7", "!s_cbranch_scc1 L_x1"]
    sDD = 36
    t0, t1, t2 = 20, 21, 22
    o += srd(sDD, sDBG, 256)
    o += [f"v_mov_b32 v{t0}, 0", "s_cmp_eq_u32 s2, 0", "!s_cbranch_scc0 L_x0poll",
          f"s_mov_b32 s{sT0}, {EPW}",
          f"buffer_load_dword v{vEp}, v{t0}, s[{sWSD}:{sWSD+3}], s{sT0} offen sc1",
          f"v_add_u32 v{vEp}, 1, v{vEp}", f"v_max_u32 v{vEp}, 1, v{vEp}",
          "s_mov_b64 exec, 1",
          f"buffer_store_dword v{vEp}, v{t0}, s[{sDD}:{sDD+3}], 0 offen sc1",
          f"buffer_store_dword v{vEp}, v{t0}, s[{sWSD}:{sWSD+3}], s{sT0} offen sc1",
          "s_mov_b64 exec, -1", "s_branch L_x0have", "@reset", "L_x0poll:"]
    o += spin_lds(3, 2, vF, vM)
    o += spin_vm([f"buffer_load_dword v{vEp}, v{t0}, s[{sDD}:{sDD+3}], 0 offen sc1"], [f"v_cmp_eq_u32 vcc, 0, v{vEp}"])
    o += ["@reset", "L_x0have:", f"ds_write_b32 v{vM}, v{vEp} offset:{4*C_EPOCH}"]
    o += stamp(1)
    o += [f"s_mul_i32 s{sT0}, s{sH}, 28", f"s_add_u32 s{sT1}, s{sT0}, 27",
          f"s_lshr_b32 s{sT0}, s{sT0}, 6", f"s_lshr_b32 s{sT1}, s{sT1}, 6", f"s_sub_u32 s{sT1}, s{sT1}, s{sT0}",
          f"v_and_b32 v{t1}, s{sT1}, v0", f"v_add_u32 v{t1}, s{sT0}, v{t1}",
          f"v_lshrrev_b32 v{t2}, 1, v0", f"s_lshl_b32 s{sT0}, s{sRB}, 2", f"s_sub_u32 s{sT0}, s{sT0}, 8",
          f"v_add_u32 v{t2}, s{sT0}, v{t2}",
          f"v_lshl_add_u32 v{t1}, v{t2}, 3, v{t1}", f"v_lshlrev_b32 v{vFl}, 6, v{t1}",
          f"v_cmp_le_i32 s[40:41], 0, v{t2}", f"s_and_b32 s40, s40, 0xffffff", "s_mov_b32 s41, 0"]
    o += spin_lds(E_P2, 4, vF, vM)
    o += [f"v_and_b32 v{t0}, 7, v0", f"v_lshrrev_b32 v{t1}, 3, v0",
          f"v_and_b32 v{t2}, 3, v{t0}", f"v_cmp_eq_u32 vcc, 0, v{t2}",
          f"v_mov_b32 v24, 0x3f803f80", f"v_cndmask_b32 v24, 0, v24, vcc",
          "v_mov_b32 v25, v24", "v_mov_b32 v26, v24", "v_mov_b32 v27, v24",
          f"v_lshrrev_b32 v{t0}, 2, v{t0}", f"v_lshlrev_b32 v{t0}, 9, v{t0}",
          f"v_lshl_add_u32 v{t0}, v{t2}, 4, v{t0}", f"v_lshl_add_u32 v{t0}, v{t1}, 10, v{t0}",
          f"v_add_u32 v{t0}, {VL+448}, v{t0}"]
    o += [f"ds_write_b128 v{t0}, v[24:27] offset:{8192*i}" for i in range(3)]
    o += stamp(2)
    for base, c in ((FK, C_KOK), (FV, C_VOK)):
        o += [f"s_mov_b32 s{sT1}, {base}", "s_mov_b64 exec, s[40:41]"]
        o += spin_vm([f"buffer_load_dword v{t1}, v{vFl}, s[{sWSD}:{sWSD+3}], s{sT1} offen sc1"],
                     [f"v_cmp_ne_u32 vcc, v{t1}, v{vEp}"])
        o += ["s_mov_b64 exec, -1", f"ds_write_b32 v{vM}, v{vOne} offset:{4*c}"]
        o += stamp(3 if c == C_KOK else 4)
    o += spin_lds(C_KVRDY, 0, vF, vM, ne0=True)
    o += [f"v_add_u32 v{t0}, {KVF}, v{vL16}",
          f"ds_read_b128 v[16:19], v{t0}", f"ds_read_b128 v[20:23], v{t0} offset:1024",
          "@drain", "s_branch L_xob", "@reset"]
    o += ["L_x1:"]
    o += spin_lds(C_EPOCH, 0, vEp, vM, ne0=True)
    t0 = 24
    o += [f"v_lshlrev_b32 v{t0}, 3, v0",
          f"s_lshl_b32 s40, s{sH}, 17", f"s_lshl_b32 s{sT0}, s{sRB}, 9", f"s_add_u32 s40, s40, s{sT0}", f"s_add_u32 s40, s40, {KVP}",
          f"s_lshl_b32 s41, s{sH}, 13", f"s_add_u32 s41, s41, {KVT}", f"s_add_u32 s42, s41, s{sT0}"]
    o += spin_lds(OPT.get('kvgate', 17), 2, vF, vM)
    o += stamp(1)

    def tagcheck():
        c = [f"v_xor_b32 v25, v65, v{vEp}"]
        for j in range(1, 16):
            c += [f"v_xor_b32 v26, v{65+2*j}, v{vEp}", "v_or_b32 v25, v25, v26"]
        c += ["v_cmp_ne_u32 vcc, 0, v25"]
        return c
    body = [f"s_mov_b32 s{sT1}, s40"]
    for j in range(16):
        body += [f"buffer_load_dwordx2 v[{64+2*j}:{65+2*j}], v{t0}, s[{sWSD}:{sWSD+3}], s{sT1} offen sc1",
                 f"s_add_u32 s{sT1}, s{sT1}, 8192"]
    o += spin_vm(body, tagcheck())
    o += stamp(2)
    for st in (1, 2, 4, 8):
        for j in range(0, 16, 2 * st):
            o.append(f"v_add_f32 v{64+2*j}, v{64+2*j}, v{64+2*(j+st)}")
    o += [f"buffer_store_dwordx2 v[64:65], v{t0}, s[{sWSD}:{sWSD+3}], s42 offen sc1"]
    body = [f"s_add_u32 s{sT1}, s41, 4096"]
    for j in range(16):
        so = "s41" if j < 8 else f"s{sT1}"
        body += [f"buffer_load_dwordx2 v[{64+2*j}:{65+2*j}], v{t0}, s[{sWSD}:{sWSD+3}], {so} offen offset:{512*(j%8)} sc1"]
    o += ["s_nop 1"] + spin_vm(body, tagcheck())
    o += stamp(3)
    o += [f"v_cvt_pk_bf16_f32 v{16+p}, v{64+4*p}, v{66+4*p}" for p in range(8)]
    o += [f"v_add_u32 v{t0}, {KVF}, v{vL16}",
          f"ds_write_b128 v{t0}, v[16:19]", f"ds_write_b128 v{t0}, v[20:23] offset:1024",
          f"ds_write_b32 v{vM}, v{vOne} offset:{4*C_KVRDY}", "@drain", "@reset"]
    o += ["L_xob:"]
    o += ob_tiles()
    o += stamp(5)
    o += [f"s_cmp_ge_u32 s{sH}, 14", "!s_cbranch_scc0 L_xp3"] + stamp_flush(20, 0) + ["s_endpgm", "@reset", "L_xp3:"]
    o += p3_setup()
    o += spin_lds_nodrain(ST_WA1, 2, vF, vM)
    o += woa_read(0) + signal(C_R1, vM, vOne)
    o += ["@drain"]
    return o


HEADER = f"""; Fused sliding-window attention + linear attention + gated output projection (gfx950).
; @launch grid=(256,1,1) block=(512,1,1) lds=163840
.amdgcn_target "amdgcn-amd-amdhsa--gfx950"
.text
.globl {NAME}_kernel
.p2align 8
.type {NAME}_kernel,@function
{NAME}_kernel:
"""
FOOTER = f"""
.section .rodata,"a"
.p2align 6
.amdhsa_kernel {NAME}_kernel
  .amdhsa_next_free_vgpr 256
  .amdhsa_next_free_sgpr 102
  .amdhsa_accum_offset 256
  .amdhsa_group_segment_fixed_size 0
  .amdhsa_kernarg_size 80
  .amdhsa_user_sgpr_count 2
  .amdhsa_user_sgpr_kernarg_segment_ptr 1
  .amdhsa_system_sgpr_workgroup_id_x 1
.end_amdhsa_kernel
"""


def main():
    global sKD
    sKD = 8
    body = prologue()
    c = c_wave()
    SLEEP[0] = OPT.get('sleep', 0)
    l = l_wave()
    x = x_wave()
    p3 = phase3()
    rep = []
    lines = finalize(body + c + l + x + p3, rep)
    lines += ['    ' + s if not s.endswith(':') else s for s in slow]
    lines += ["L_abort:", "L_exit:", "    s_endpgm", "L_end:"]
    open(sys.argv[1], 'w').write(HEADER + "\n".join(lines) + FOOTER)
    big = [r for r in rep if r[0] >= 3]
    print("nops inserted:", len(rep), "total states", sum(r[0] for r in rep))
    for r in big:
        print("   ", r)


main()
```

```python
import sys, math, struct
from asmlib import finalize, merge

NAME = "gated_mix__sliding_block__linear_attn_block__prompt"
OPT = dict(stamps=False, lead=22, dump=False, prefetch=True)
for a in sys.argv[2:]:
    k, v = a.split('=')
    OPT[k] = int(v)


def fhex(x):
    return '0x%08x' % struct.unpack('<I', struct.pack('<f', x))[0]


LOG2E = math.log2(math.e)
KSCALE = LOG2E * 28 ** -0.5
SPIN = 60000

SLOT = 8192
def p1x(c): return 24576 * (c % 6)
def p1w(c): return 24576 * (c % 6) + 16384
P2 = 3 * SLOT
QB = 10 * SLOT
QA = QB + 28672
KL = 4 * SLOT
VL = 7 * SLOT
KVRED = 0
STG = 0
WOB = 10 * SLOT
PQ = 18 * SLOT
MISC = 19 * SLOT
G1 = MISC + 1024
KVF = MISC + 2048
RED = [17 * SLOT, 17 * SLOT + 4096, 3 * SLOT + 4096, MISC + 4096]
ST_K, ST_V, ST_WA1, ST_WB, ST_WA2 = 28, 29, 30, 31, 32
E_P1A, E_P1B, E_P2A, E_P2, E_KVW, E_PQ, E_P3 = 33, 34, 35, 36, 37, 38, 39
C_EPOCH, C_KOK, C_VOK, C_KVRDY, C_R1 = 40, 41, 42, 43, 44

KG, VG, OA, OB, KVP, KVT = 0x000000, 0x200000, 0x400000, 0x600000, 0x800000, 0xA00000
FK, FV, FOA, FOB, EPW = 0xA40000, 0xA48000, 0xA50000, 0xA60000, 0xA70000
STAMPS = 0xB00000
DUMP = 0xC00000
WS_SIZE = 0x1000000

sX, sAW, sAO, sBW, sBO, sGW, sOUT, sDBG, sWS = 4, 6, 8, 12, 14, 16, 18, 20, 22
sWave, sH, sRB, sPar, sHH = 24, 25, 26, 27, 28
sT0, sT1, sT2, sTO = 29, 30, 31, 3
sWSD = 32
sStamp = 76

_lab = [0]
slow = []


def lab(p):
    _lab[0] += 1
    return f"L_{p}_{_lab[0]}"


def srd(d, ptr, size, add=0):
    o = []
    if add:
        o += [f"s_add_u32 s{d}, s{ptr}, {add}", f"s_addc_u32 s{d+1}, s{ptr+1}, 0"]
    else:
        o += [f"s_mov_b32 s{d}, s{ptr}", f"s_mov_b32 s{d+1}, s{ptr+1}"]
    o += [f"s_mov_b32 s{d+2}, {size}", f"s_mov_b32 s{d+3}, 0x20000"]
    return o


def stamp(i):
    if not OPT['stamps']:
        return []
    return [f"!s_memtime s[{sStamp+2*i}:{sStamp+2*i+1}]"]


def stamp_flush(vt, vlane):
    if not OPT['stamps']:
        return []
    o = ["s_mov_b64 exec, -1", "s_waitcnt lgkmcnt(0)", f"v_mov_b32 v{vt}, 0"]
    for i in range(12):
        o.append(f"v_writelane_b32 v{vt}, s{sStamp+2*i}, {i}")
    o += [f"s_lshl_b32 s{sT0}, s2, 3", f"s_add_u32 s{sT0}, s{sT0}, s{sWave}", f"s_lshl_b32 s{sT0}, s{sT0}, 8",
          f"s_add_u32 s{sT0}, s{sT0}, {STAMPS}",
          f"v_lshlrev_b32 v{vt+1}, 2, v{vlane}",
          f"buffer_store_dword v{vt}, v{vt+1}, s[{sWSD}:{sWSD+3}], s{sT0} offen"]
    return o


SLEEP = [0]


def spin_lds(idx, target, vF, vM, ne0=False):
    L = lab('sp')
    if SLEEP[0]:
        L2 = lab('spx')
        cmp_ = f"v_cmp_ne_u32 vcc, 0, v{vF}" if ne0 else f"v_cmp_eq_u32 vcc, {target}, v{vF}"
        return ["@drain", f"!s_mov_b32 s{sTO}, 0", f"!{L}:",
                f"!ds_read_b32 v{vF}, v{vM} offset:{4*idx}",
                f"!s_add_u32 s{sTO}, s{sTO}, 1", f"!s_cmp_gt_u32 s{sTO}, {SPIN}", "!s_cbranch_scc1 L_abort",
                "!s_waitcnt lgkmcnt(0)", f"!{cmp_}", f"!s_cbranch_vccnz {L2}",
                f"!!s_sleep {SLEEP[0]}", f"!!s_branch {L}", f"!{L2}:"]
    cmp_ = f"v_cmp_eq_u32 vcc, 0, v{vF}" if ne0 else f"v_cmp_ne_u32 vcc, {target}, v{vF}"
    return ["@drain", f"!s_mov_b32 s{sTO}, 0", f"!{L}:",
            f"!ds_read_b32 v{vF}, v{vM} offset:{4*idx}",
            f"!s_add_u32 s{sTO}, s{sTO}, 1", f"!s_cmp_gt_u32 s{sTO}, {SPIN}", "!s_cbranch_scc1 L_abort",
            "!s_waitcnt lgkmcnt(0)", f"!{cmp_}", f"!s_cbranch_vccnz {L}"]


def spin_lds_nodrain(idx, target, vF, vM, ne0=False):
    o = spin_lds(idx, target, vF, vM, ne0)
    return ["s_waitcnt lgkmcnt(0)"] + o[1:]


def check_early(idx, vF, vM):
    return [f"ds_read_b32 v{vF}, v{vM} offset:{4*idx}"]


def check_late(idx, target, vF, vM, ne0=False):
    Ls, Lb = lab('slow'), lab('back')
    cmp_ = f"v_cmp_eq_u32 vcc, 0, v{vF}" if ne0 else f"v_cmp_ne_u32 vcc, {target}, v{vF}"
    slow.extend([f"{Ls}:", f"s_mov_b32 s{sTO}, 0", f"{Ls}_s:",
                 f"ds_read_b32 v{vF}, v{vM} offset:{4*idx}",
                 f"s_add_u32 s{sTO}, s{sTO}, 1", f"s_cmp_gt_u32 s{sTO}, {SPIN}", "s_cbranch_scc1 L_abort",
                 "s_waitcnt lgkmcnt(0)", cmp_, f"s_cbranch_vccnz {Ls}_s", f"s_branch {Lb}"])
    return [cmp_, f"!s_cbranch_vccnz {Ls}", f"!{Lb}:"]


def signal(idx, vM, vOne):
    return ["s_mov_b64 exec, 1", f"ds_add_u32 v{vM}, v{vOne} offset:{4*idx}", "s_mov_b64 exec, -1"]


def mfma(d, a, b, c):
    cs = f"v[{c}:{c+15}]" if isinstance(c, int) and c >= 0 else "0"
    return f"v_mfma_f32_32x32x16_bf16 v[{d}:{d+15}], v[{a}:{a+3}], v[{b}:{b+3}], {cs}"


def prologue():
    o = []
    o += [f"s_load_dwordx16 s[4:19], s[0:1], 0", f"s_load_dwordx4 s[20:23], s[0:1], 64"]
    o += stamp(0)
    o += ["s_cmp_ge_u32 s2, 256", "!s_cbranch_scc1 L_exit",
          "v_lshrrev_b32 v1, 6, v0", "v_and_b32 v0, 63, v0",
          f"v_readfirstlane_b32 s{sWave}, v1",
          f"s_and_b32 s{sT0}, s2, 7", f"s_lshr_b32 s{sT1}, s2, 3",
          f"s_and_b32 s{sH}, s{sT0}, 1", f"s_lshl_b32 s{sH}, s{sH}, 3",
          f"s_and_b32 s{sT2}, s{sT1}, 7", f"s_add_u32 s{sH}, s{sH}, s{sT2}",
          f"s_lshr_b32 s{sRB}, s{sT0}, 1", f"s_lshl_b32 s{sRB}, s{sRB}, 2",
          f"s_lshr_b32 s{sT2}, s{sT1}, 3", f"s_add_u32 s{sRB}, s{sRB}, s{sT2}",
          f"s_and_b32 s{sPar}, s{sH}, 1", f"s_lshr_b32 s{sHH}, s{sH}, 1",
          "v_lshlrev_b32 v1, 2, v0", "v_mov_b32 v2, 0",
          f"v_add_u32 v1, {MISC}, v1",
          "ds_write_b32 v1, v2",
          "s_waitcnt lgkmcnt(0)", "s_barrier"]
    o += srd(sWSD, sWS, WS_SIZE)
    o += [f"s_cmp_ge_u32 s{sWave}, 6", "!s_cbranch_scc1 L_xwave",
          f"s_cmp_ge_u32 s{sWave}, 4", "!s_cbranch_scc1 L_lwave"]
    return o


vL16, vXA, vW0, vW1, vQB, vQA, vM, vOne, vF, vEp, vLow, vG = 1, 2, 6, 7, 8, 9, 10, 11, 12, 13, 14, 15
PK = 16
WB = 32
MK = 56
accA, accB = 64, 96
XF = 128
QF = 240
vMA, vMB = 248, 249
TMP = 250
sMask = 40
sL2E, sEps, sKS, sTile, sSt = 72, 73, 74, 75, 36


def c_setup():
    o = []
    lo, hh, t0, t1, t2 = 20, 21, 22, 23, 24
    o += [f"v_lshlrev_b32 v{vL16}, 4, v0",
          f"v_and_b32 v{lo}, 31, v0", f"v_lshrrev_b32 v{hh}, 5, v0",
          f"v_mov_b32 v{vM}, {MISC}", f"v_mov_b32 v{vOne}, 1",
          f"s_lshl_b32 s{sTile}, s{sRB}, 2", f"s_add_u32 s{sTile}, s{sTile}, s{sWave}",
          f"s_mov_b32 s{sL2E}, {fhex(LOG2E)}", f"s_mov_b32 s{sEps}, {fhex(1e-6)}", f"s_mov_b32 s{sKS}, {fhex(KSCALE)}"]
    o += [f"v_bfe_u32 v{t0}, v0, 1, 3", f"v_xor_b32 v{t0}, v{t0}, v{hh}",
          f"s_lshl_b32 s{sT0}, s{sWave}, 12",
          f"v_lshlrev_b32 v{t1}, 7, v{lo}", f"v_add_u32 v{t1}, s{sT0}, v{t1}"]
    for s in range(4):
        o += [f"v_xor_b32 v{t2}, {2*s}, v{t0}", f"v_lshl_add_u32 v{vXA+s}, v{t2}, 4, v{t1}"]
    r, cg, row = 25, 26, 27
    o += [f"v_bfe_u32 v{r}, v0, 2, 2", f"v_bfe_u32 v{t0}, v0, 4, 1", f"v_and_b32 v{cg}, 3, v0",
          f"v_lshl_add_u32 v{cg}, v{t0}, 2, v{cg}",
          f"v_lshl_add_u32 v{row}, v{hh}, 3, v{r}"]
    o += [f"v_lshrrev_b32 v{t0}, 1, v{r}",
          f"v_lshlrev_b32 v{t1}, 7, v{row}", f"v_add_u32 v{t1}, 16384, v{t1}",
          f"v_lshl_add_u32 v{vW0}, v{t0}, 6, v{t1}",
          f"v_xor_b32 v{vW1}, 64, v{vW0}",
          f"v_lshl_add_u32 v{vW0}, v{cg}, 3, v{vW0}",
          f"s_xor_b32 s{sT0}, s{sPar}, 1",
          f"v_add_u32 v{t2}, s{sT0}, v{cg}", f"v_and_b32 v{t2}, 7, v{t2}",
          f"v_lshl_add_u32 v{vW1}, v{t2}, 3, v{vW1}"]
    o += [f"v_lshlrev_b32 v{t1}, 6, v{row}",
          f"v_add_u32 v{t2}, s{sPar}, v{cg}", f"v_and_b32 v{t2}, 7, v{t2}",
          f"v_lshl_add_u32 v{vQB}, v{t2}, 3, v{t1}", f"v_add_u32 v{vQB}, {QB}, v{vQB}",
          f"v_and_b32 v{t0}, 1, v{cg}", f"v_lshlrev_b32 v{t0}, 1, v{t0}",
          f"v_bfe_u32 v{t2}, v{cg}, 1, 1", f"v_or_b32 v{t0}, v{t0}, v{t2}",
          f"v_and_b32 v{t2}, 4, v{cg}", f"v_or_b32 v{t0}, v{t0}, v{t2}",
          f"v_lshl_add_u32 v{vQA}, v{t0}, 3, v{t1}", f"v_add_u32 v{vQA}, {QA}, v{vQA}"]
    o += [f"v_add_u32 v{vLow}, -1, v{hh}",
          f"s_sub_u32 s{sT0}, s{sPar}, 1",
          f"v_not_b32 v{t0}, v{vLow}",
          f"v_or_b32 v{vMA}, s{sT0}, v{t0}",
          f"s_not_b32 s{sT0}, s{sT0}",
          f"v_or_b32 v{vMB}, s{sT0}, v{vLow}"]
    o += [f"v_lshlrev_b32 v{t0}, 2, v{hh}", f"v_sub_u32 v{t0}, v{lo}, v{t0}"]
    for rr in range(16):
        b = 8 * (rr >> 2) + (rr & 3)
        o.append(f"v_cmp_le_i32 s[{sMask+2*rr}:{sMask+2*rr+1}], {b}, v{t0}")
    o += [f"v_mov_b32 v{t1}, 0xffff", f"v_mov_b32 v{t2}, 0xffff0000"]
    for p in range(8):
        o += [f"v_cndmask_b32 v{MK+p}, 0, v{t1}, s[{sMask+4*p}:{sMask+4*p+1}]",
              f"v_cndmask_b32 v{t0}, 0, v{t2}, s[{sMask+4*p+2}:{sMask+4*p+3}]",
              f"v_or_b32 v{MK+p}, v{MK+p}, v{t0}"]
    return o


def tr(d, a, off):
    return f"ds_read_b64_tr_b16 v[{d}:{d+1}], v{a} offset:{off}"


def gemm_frags(isY):
    fr = []
    for k in range(28):
        c, s = divmod(k, 4)
        for j in range(2):
            base = p1x(c) - (73728 if 3 <= c <= 5 else 0)
            xo = p1x(c) - (73728 if 3 <= c <= 5 else 0)
            fr.append(dict(step=c, addr=(vW0, vW1)[j], off=base + s * 2048, du=512, k=k,
                           acc=accA + 16 * j, wfirst=not isY, p=1,
                           xread=(f"ds_read_b128 v[{XF+4*k}:{XF+4*k+3}], v{vXA+s} offset:{xo}" if j == 0 else None)))
    for k in range(28):
        c, s = divmod(k, 4)
        for j in range(2):
            fr.append(dict(step=7 + c, addr=(vW0, vW1)[j], off=c * 8192 + s * 2048, du=512, k=k,
                           acc=accB + 16 * j, wfirst=False, p=2, xread=None))
    for q, (a, st) in enumerate(((vQB, 14), (vQA, 21))):
        for k in range(28):
            c, s = divmod(k, 4)
            fr.append(dict(step=st + c, addr=a, off=c * 4096 + s * 1024, du=256, k=k,
                           acc=accA + 16 * q, wfirst=True, p=3 + q, xread=None))
    return fr


def gemm_slots(isY):
    fr = gemm_frags(isY)
    N = len(fr)
    D = 5
    slots = []
    issued = 0
    early_done = set()
    checked = set()
    for n in range(N):
        cur = []
        f = fr[n]
        if f['p'] == 1 and f['step'] < 6:
            lim = min(n + D, 8 * f['step'] + 7)
        else:
            lim = min(n + D, N - 1)
        while issued <= lim:
            g = fr[issued]
            st = g['step']
            if st not in checked:
                checked.add(st)
                if st <= 6:
                    if st == 3:
                        cur += [f"v_add_u32 v{r}, 73728, v{r}" for r in (vXA, vXA+1, vXA+2, vXA+3, vW0, vW1)]
                    if st == 6:
                        cur += [f"v_subrev_u32 v{r}, 73728, v{r}" for r in (vXA, vXA+1, vXA+2, vXA+3, vW0, vW1)]
                    cur += spin_lds(st, 2, vF, vM)
                    if st == 0:
                        cur += stamp(1)
                else:
                    if st == 7:
                        cur += [f"v_add_u32 v{r}, {P2-16384}, v{r}" for r in (vW0, vW1)]
                    if st not in early_done:
                        cur += check_early(st, vF, vM)
                    cur += check_late(st, 2, vF, vM)
            b = WB + 4 * (issued % 6)
            if g['xread']:
                cur.append(g['xread'])
            cur += [tr(b, g['addr'], g['off']), tr(b + 2, g['addr'], g['off'] + g['du'])]
            issued += 1
            last_of_step = issued == N or fr[issued]['step'] != st
            if last_of_step:
                ev = {2: E_P1A, 5: E_P1B, 7: E_P2A, 13: E_P2, 27: E_P3}.get(st)
                if ev is not None:
                    cur += signal(ev, vM, vOne)
        if issued + 2 < N:
            st = fr[issued + 2]['step']
            if st > 6 and st not in checked and st not in early_done and n >= 48:
                early_done.add(st)
                cur += check_early(st, vF, vM)
        b = WB + 4 * (n % 6)
        x = XF + 4 * f['k']
        A, B = (b, x) if f['wfirst'] else (x, b)
        cur.append(mfma(f['acc'], A, B, f['acc'] if f['k'] else None))
        slots.append(cur)
    return slots


def phi_pairs(acc, n, dst):
    o = []
    for p in range(n):
        a, b = acc + 2 * p, acc + 2 * p + 1
        ta, tb = TMP + 2 * (p % 2), TMP + 2 * (p % 2) + 1
        o += [f"v_mul_f32 v{ta}, s{sL2E}, v{a}", f"v_mul_f32 v{tb}, s{sL2E}, v{b}",
              f"v_exp_f32_e64 v{ta}, v{ta} clamp", f"v_exp_f32_e64 v{tb}, v{tb} clamp",
              f"v_max_f32 v{a}, 0, v{a}", f"v_max_f32 v{b}, 0, v{b}",
              f"v_add_f32 v{a}, v{a}, v{ta}", f"v_add_f32 v{b}, v{b}, v{tb}",
              f"v_add_f32 v{a}, s{sEps}, v{a}", f"v_add_f32 v{b}, s{sEps}, v{b}",
              f"v_cvt_pk_bf16_f32 v{dst+p}, v{a}, v{b}"]
    return o


def flag_store(vtmp, soff):
    return [f"v_mov_b32 v{vtmp}, 0", "s_mov_b64 exec, 1",
            f"buffer_store_dword v{vEp}, v{vtmp}, s[{sWSD}:{sWSD+3}], s{soff} offen sc1",
            "s_mov_b64 exec, -1"]


def get_epoch():
    return [check_early(C_EPOCH, vEp, vM), [], [], check_late(C_EPOCH, 0, vEp, vM, ne0=True)]


def qb_epilogue():
    a = accA
    t, u = TMP + 4, TMP + 5
    o = [f"v_mov_b32 v{t}, v{a+12}", f"v_mov_b32 v{u}, v{a+12}"]
    ph = phi_pairs(a, 8, PK)
    o += ph[:4]
    o += [f"v_permlane32_swap_b32 v{t}, v{u}",
          f"v_mul_f32 v{u}, s{sL2E}, v{u}", f"v_exp_f32_e64 v{u}, -v{u}"]
    o += ph[4:8]
    o += [f"v_add_f32 v{u}, 1.0, v{u}", f"v_rcp_f32 v{vG}, v{u}"]
    o += ph[8:]
    o += [f"v_sub_f32 v{u}, 1.0, v{vG}",
          f"v_and_b32 v{PK+6}, v{PK+6}, v{vLow}", f"v_and_b32 v{PK+7}, v{PK+7}, v{vLow}",
          f"s_lshl_b32 s{sT0}, s{sWave}, 11", f"s_add_u32 s{sT0}, s{sT0}, {PQ}",
          f"v_add_u32 v{t}, s{sT0}, v{vL16}",
          f"ds_write_b128 v{t}, v[{PK}:{PK+3}]", f"ds_write_b128 v{t}, v[{PK+4}:{PK+7}] offset:1024",
          f"s_lshl_b32 s{sT0}, s{sWave}, 8", f"s_add_u32 s{sT0}, s{sT0}, {G1}",
          f"v_lshl_add_u32 v{t}, v0, 2, s{sT0}",
          f"ds_write_b32 v{t}, v{u}"]
    o += [signal(E_PQ, vM, vOne)]
    return o


def c_gemm(isY):
    slots = gemm_slots(isY)
    p1, p2, p3a, p3b = slots[:56], slots[56:112], slots[112:140], slots[140:168]
    o = []
    for s in p1:
        o += s
    o += stamp(2)
    if not isY:
        f = [f"s_mul_i32 s{sSt}, s{sTile}, 28672", f"s_lshl_b32 s{sT0}, s{sHH}, 12",
             f"s_add_u32 s{sSt}, s{sSt}, s{sT0}",
             f"s_lshl_b32 s{sSt+1}, s{sTile}, 3", f"s_add_u32 s{sSt+1}, s{sSt+1}, s{sHH}",
             f"s_lshl_b32 s{sSt+1}, s{sSt+1}, 6", f"s_add_u32 s{sSt+1}, s{sSt+1}, {FK}"]
        for j in range(2):
            a = accA + 16 * j
            d = PK + 8 * j
            f += [f"v_mul_f32 v{a+i}, s{sKS}, v{a+i}" for i in range(16)]
            f += [f"v_cvt_pk_bf16_f32 v{d+i}, v{a+2*i}, v{a+2*i+1}" for i in range(8)]
            f += [f"v_permlane32_swap_b32 v{d+x}, v{d+x+2}" for x in (0, 1, 4, 5)]
            f += [f"buffer_store_dwordx4 v[{d+4*e}:{d+4*e+3}], v{vL16}, s[{sKD}:{sKD+3}], s{sSt} offen offset:{(4*j+2*e)*512} sc1 ;@tag=kst" for e in range(2)]
        g = get_epoch() + [["@wait_vm kst"] + flag_store(TMP, sSt + 1)]
        o += merge(p2[:30], f, start=3) + merge(p2[30:], g, start=OPT.get('kflag', 16))
        o += stamp(3)
        f = [f"s_mul_i32 s{sSt}, s{sTile}, 28672", f"s_lshl_b32 s{sT0}, s{sHH}, 10",
             f"s_add_u32 s{sSt}, s{sSt}, s{sT0}", f"s_add_u32 s{sSt}, s{sSt}, {VG}",
             f"s_add_u32 s{sSt+2}, s{sSt}, 14336",
             f"s_add_u32 s{sSt+1}, s{sSt+1}, {FV-FK}",
             f"v_lshrrev_b32 v{TMP+1}, 5, v0", f"v_mul_u32_u24 v{TMP+1}, {7168-512}, v{TMP+1}",
             f"v_add_u32 v{TMP+1}, v{TMP+1}, v{vL16}"]
        for j in range(2):
            a = accB + 16 * j
            d = PK + 8 * j
            f += [f"v_cvt_pk_bf16_f32 v{d+i}, v{a+2*i}, v{a+2*i+1}" for i in range(8)]
            f += [f"buffer_store_dwordx4 v[{d+4*e}:{d+4*e+3}], v{TMP+1}, s[{sKD}:{sKD+3}], s{sSt+2*e} offen offset:{512*j} sc1 ;@tag=vst" for e in range(2)]
        o += merge(p3a, f, start=5, per=3)
        o += stamp(4)
        q = qb_epilogue()
        g = [["@wait_vm vst"] + flag_store(TMP + 4, sSt + 1)]
        o += merge(p3b[:5], g, start=4) + merge(p3b[5:], q, start=0)
    else:
        f = phi_pairs(accA, 16, PK)
        o += merge(p2, f + get_epoch(), start=3)
        o += stamp(3)
        PV = accA + 16
        f = []
        for j in range(2):
            a = accB + 16 * j
            f += [f"v_cvt_pk_bf16_f32 v{PV+8*j+i}, v{a+2*i}, v{a+2*i+1}" for i in range(8)]
        f += [f"s_mov_b32 vcc_lo, 0x10000000", f"s_mov_b32 vcc_hi, 0x10000000", f"v_mov_b32 v{TMP}, 0x3f803f80"]
        f = f[:-3] + [f"s_mov_b32 s{sSt+2}, 0x10000000", f"s_mov_b32 s{sSt+3}, 0x10000000", f"v_mov_b32 v{TMP}, 0x3f803f80"]
        f += [f"v_cndmask_b32 v{PV+i}, v{PV+i}, v{TMP}, s[{sSt+2}:{sSt+3}]" for i in range(16)]
        f += [mfma(accB, PK, PV, None), mfma(accB + 16, PK + 8, PV + 8, None),
              mfma(accB, PK + 4, PV + 4, accB), mfma(accB + 16, PK + 12, PV + 12, accB + 16)]
        f += [f"s_lshl_b32 s{sT0}, s{sWave}, 13", f"v_add_u32 v{TMP}, s{sT0}, v{vL16}",
              f"s_lshl_b32 s{sT0}, s{sWave}, 11", f"v_add_u32 v{TMP+1}, s{sT0}, v{vL16}"]
        f += [check_early(E_P2A, TMP + 2, vM), [], check_late(E_P2A, 4, TMP + 2, vM), []]
        f += [[], [], [], []]
        f1 = f
        f2 = [f"ds_write_b128 v{TMP}, v[{accB+4*i}:{accB+4*i+3}] offset:{KVRED+1024*i}" for i in range(8)]
        f2 += [signal(E_KVW, vM, vOne)]
        f2 += [f"v_mov_b32 v{PK+2*i+1}, v{vEp}" for i in range(8)]
        f2 += [f"s_lshr_b32 s{sT0}, s{sWave}, 1", f"s_add_u32 s{sT0}, s{sT0}, s{sH}", f"s_lshl_b32 s{sT0}, s{sT0}, 4",
               f"s_add_u32 s{sT0}, s{sT0}, s{sRB}", f"s_lshl_b32 s{sT0}, s{sT0}, 1",
               f"s_and_b32 s{sT1}, s{sWave}, 1", f"s_add_u32 s{sT0}, s{sT0}, s{sT1}", f"s_lshl_b32 s{sSt}, s{sT0}, 12",
               f"s_add_u32 s{sSt}, s{sSt}, {KVP}"]
        f2 += [check_early(E_KVW, TMP + 2, vM), [], check_late(E_KVW, 4, TMP + 2, vM)]
        f2 += [f"ds_read_b128 v[{accB+8*w+4*e}:{accB+8*w+4*e+3}], v{TMP+1} offset:{KVRED+8192*w+1024*e}" for w in range(4) for e in range(2)]
        f3 = [f"v_lshlrev_b32 v{TMP}, 3, v0"]
        for i in range(8):
            f3 += [f"v_add_f32 v{accB+i}, v{accB+i}, v{accB+8+i}", f"v_add_f32 v{accB+16+i}, v{accB+16+i}, v{accB+24+i}"]
        for i in range(8):
            f3 += [f"v_add_f32 v{PK+2*i}, v{accB+i}, v{accB+16+i}",
                   f"buffer_store_dwordx2 v[{PK+2*i}:{PK+2*i+1}], v{TMP}, s[{sWSD}:{sWSD+3}], s{sSt} offen offset:{512*i} sc1"]
        o += merge(p3a[:16], f1, start=4) + merge(p3a[16:], f2, start=0)
        o += stamp(4)
        o += merge(p3b[:7], f3, start=0) + merge(p3b[7:], qb_epilogue(), start=0)
    o += stamp(5)
    a = accA + 16
    o += [f"v_cvt_pk_bf16_f32 v{QF+i}, v{a+2*i}, v{a+2*i+1}" for i in range(8)]
    o += [f"v_and_b32 v{QF}, v{QF}, v{vMA}", f"v_and_b32 v{QF+1}, v{QF+1}, v{vMA}",
          f"v_and_b32 v{QF+6}, v{QF+6}, v{vMB}", f"v_and_b32 v{QF+7}, v{QF+7}, v{vMB}"]
    return o


sKD = 100 - 4 - 0
sKD = 96

CM, SA, SB, SC, SF, SX = 128, 144, 160, 176, 192, 64
PA, PB, PF = 208, 216, 224
OACC = 96
KF = (32, 40)
VF = (48, 16)
vKA, vVA, vMx = 2, 3, 4
NEG = '0xf149f2ca'


def attention(guard):
    sI0 = sSt
    o = []

    def kread(i, buf):
        return [f"ds_read_b128 v[{buf+4*s}:{buf+4*s+3}], v{vKA} offset:{2048*i+1024*s}" for s in range(2)]

    def vread(i, buf):
        return [f"ds_read_b128 v[{buf+4*s}:{buf+4*s+3}], v{vVA} offset:{2048*i+1024*s}" for s in range(2)]

    def qk(d, buf, c):
        return [mfma(d, buf, QF, c), mfma(d, buf + 4, QF + 4, d)]

    def setc(i, src):
        L = lab('g')
        return [f"s_cmp_lg_u32 s{sI0}, {i}", f"!s_cbranch_scc1 {L}", "!!s_nop 7"] + \
               [f"!!v_mov_b32 v{CM+r}, {src}" for r in range(16)] + ["!!s_nop 1", f"!{L}:"]

    def maxes(s, first):
        m = []
        if first:
            m.append(f"v_max3_f32 v{vMx}, v{s}, v{s+1}, v{s+2}")
            rest = list(range(3, 16))
        else:
            rest = list(range(16))
        while rest:
            if len(rest) >= 2:
                m.append(f"v_max3_f32 v{vMx}, v{vMx}, v{s+rest[0]}, v{s+rest[1]}")
                rest = rest[2:]
            else:
                m.append(f"v_max_f32 v{vMx}, v{vMx}, v{s+rest[0]}")
                rest = []
        return m

    C1 = CM if guard else None
    if guard:
        o += [f"v_mov_b32 v{CM+r}, {NEG}" for r in range(16)]
    o += spin_lds(ST_K, 2, vF, vM)
    o += stamp(6)
    o += kread(0, KF[0]) + kread(1, KF[1])
    b1 = {0: SF, 8: SC}
    bufs = {}
    for i in range(1, 8):
        b1[i] = (SA, SB, SX)[i % 3]
        bufs[i] = (SA, SB)[i % 2]
    mx = {i: maxes(b1[i], first=(i == 1)) for i in range(1, 8)}
    for i in range(9):
        if guard:
            o += setc(i, "0")
        m = qk(b1[i], KF[i % 2], C1)
        nxt = kread(i + 2, KF[i % 2]) if i + 2 <= 8 else []
        o += [m[0]] + mx.get(i - 2, [])[4:] + [m[1]] + nxt + mx.get(i - 1, [])[:4]
    o += mx[7][4:]
    o += check_early(ST_V, vF, vM)
    o += kread(1, KF[1]) + kread(2, KF[0])
    o += [f"v_cndmask_b32 v{SC+r}, v{SF+r}, v{SC+r}, s[{sMask+2*r}:{sMask+2*r+1}]" for r in range(16)]
    o += maxes(SC, first=False)
    t = TMP
    o += [f"v_mov_b32 v{t}, v{vMx}", f"v_permlane32_swap_b32 v{t}, v{vMx}",
          f"v_max_f32 v{vMx}, v{vMx}, v{t}", f"v_sub_f32 v{vMx}, 0, v{vMx}"]
    o += check_late(ST_V, 2, vF, vM)
    o += stamp(7)
    o += vread(0, VF[0]) + vread(8, VF[1])
    if guard:
        o += [f"v_mov_b32 v{CM+r}, {NEG}" for r in range(16)]
        o += [f"s_max_u32 s{sI0}, s{sI0}, 1"]
        o += setc(1, f"v{vMx}")
    else:
        o += [f"v_mov_b32 v{CM+r}, v{vMx}" for r in range(16)]
    def expcvt(s, p, sub):
        e = []
        for r in range(16):
            if sub:
                e.append(f"v_add_f32 v{s+r}, v{s+r}, v{vMx}")
        for r in range(16):
            e.append(f"v_exp_f32 v{s+r}, v{s+r}")
            if r % 2 == 1 and r >= 3:
                e.append(f"v_cvt_pk_bf16_f32 v{p+(r-3)//2}, v{s+r-3}, v{s+r-2}")
        e.append(f"v_cvt_pk_bf16_f32 v{p+7}, v{s+14}, v{s+15}")
        return e

    def spread(mf, va):
        r = []
        n = len(mf)
        k = 0
        for idx, g in enumerate(mf):
            r += g
            want = (len(va) * (idx + 1)) // n - k
            r += va[k:k + want]
            k += want
        return r

    ev = expcvt(SC, PA, True)
    ev += [x for p in range(8) for x in (f"v_and_b32 v{PB+p}, v{PA+p}, v{MK+p}", f"v_xor_b32 v{PF+p}, v{PA+p}, v{PB+p}")]
    q1 = qk(bufs[1], KF[1], CM)
    o += spread([[q1[0]], [q1[1]] + kread(3, KF[1])], ev)
    prev_pv = [mfma(OACC, VF[0], PF, None), mfma(OACC, VF[0] + 4, PF + 4, OACC),
               mfma(OACC, VF[1], PB, OACC), mfma(OACC, VF[1] + 4, PB + 4, OACC)]
    prev_after = {1: vread(1, VF[0]), 3: vread(2, VF[1])}
    for i in range(1, 8):
        P = (PB, PA)[i % 2]
        groups = []
        nq = []
        pre = []
        if i + 1 <= 7:
            if guard:
                pre = setc(i + 1, f"v{vMx}")
            nq = qk(bufs[i + 1], KF[(i + 1) % 2], CM)
        seq = []
        if nq:
            seq.append([nq[0]])
            seq.append([nq[1]] + (kread(i + 3, KF[(i + 1) % 2]) if i + 3 <= 7 else []))
        for idx, m_ in enumerate(prev_pv):
            seq.append([m_] + prev_after.get(idx, []))
        o += pre
        o += spread(seq, expcvt(bufs[i], P, False))
        vb = VF[(i + 1) % 2]
        prev_pv = [mfma(OACC, vb, P, OACC), mfma(OACC, vb + 4, P + 4, OACC)]
        prev_after = {1: vread(i + 2, vb)} if i + 2 <= 7 else {}
    o += prev_pv
    return o


def c_tail():
    t, u = TMP, TMP + 1
    o = [f"s_lshl_b32 s{sSt}, s{sTile}, 4", f"s_add_u32 s{sSt}, s{sSt}, s{sH}",
         f"s_lshl_b32 s{sSt+1}, s{sSt}, 6", f"s_add_u32 s{sSt+1}, s{sSt+1}, {FOA}",
         f"s_lshl_b32 s{sSt}, s{sSt}, 11", f"s_add_u32 s{sSt}, s{sSt}, {OA}"]
    o += [f"v_mov_b32 v{t}, v{OACC+12}", f"v_mov_b32 v{u}, v{OACC+12}", f"v_permlane32_swap_b32 v{t}, v{u}",
          f"v_rcp_f32 v{u}, v{u}", f"v_mul_f32 v{u}, v{u}, v{vG}", f"v_and_b32 v{t}, v{u}, v{vLow}"]
    for p in range(8):
        sc = u if p < 6 else t
        o += [f"v_mul_f32 v{OACC+2*p}, v{OACC+2*p}, v{sc}", f"v_mul_f32 v{OACC+2*p+1}, v{OACC+2*p+1}, v{sc}",
              f"v_cvt_pk_bf16_f32 v{PA+p}, v{OACC+2*p}, v{OACC+2*p+1}"]
        if p in (3, 7):
            e = p // 4
            o.append(f"buffer_store_dwordx4 v[{PA+4*e}:{PA+4*e+3}], v{vL16}, s[{sWSD}:{sWSD+3}], s{sSt} offen offset:{1024*e} sc1")
    o += stamp(8)
    o += ["s_waitcnt vmcnt(0)"] + flag_store(t, sSt + 1)
    o += stamp(9)
    o += stamp_flush(TMP, 0)
    o += ["s_endpgm"]
    return o


def c_wave():
    o = []
    o += c_setup()
    o += srd(sKD, sWS, WS_SIZE)
    o += [f"s_cmp_eq_u32 s{sH}, 15", f"s_cselect_b32 s{sKD+2}, 0, s{sKD+2}"]
    o += code_prefetch()
    o += [f"s_cmp_eq_u32 s{sPar}, 0", "!s_cbranch_scc1 L_cY"]
    o += c_gemm(False)
    o += ["@drain", "s_nop 7", "s_branch L_attn", "@reset", "L_cY:"]
    o += c_gemm(True)
    o += ["@drain", "s_nop 7", "@reset", "L_attn:"]
    o += [f"s_lshl_b32 s{sT0}, s{sWave}, 11",
          f"s_add_u32 s{sT1}, s{sT0}, {KL}", f"v_add_u32 v{vKA}, s{sT1}, v{vL16}",
          f"s_add_u32 s{sT1}, s{sT0}, {VL}", f"v_add_u32 v{vVA}, s{sT1}, v{vL16}",
          f"s_cmp_lt_u32 s{sTile}, 8", "!s_cbranch_scc1 L_attn_g"]
    o += attention(False)
    o += ["L_ctail:"]
    o += c_tail()
    o += ["@reset", "L_attn_g:", f"s_sub_u32 s{sSt}, 8, s{sTile}"]
    o += attention(True)
    o += ["s_nop 15", "s_branch L_ctail", "@reset"]
    return o


def code_prefetch():
    if not OPT['prefetch']:
        return []
    o = ["s_getpc_b64 s[38:39]", "L_pc:",
         f"s_sub_u32 s38, s38, L_pc-{NAME}_kernel", "s_subb_u32 s39, s39, 0",
         f"s_lshl_b32 s{sT0}, s{sWave}, 13",
         f"v_lshl_add_u32 v20, v0, 7, s{sT0}",
         f"v_min_u32 v20, L_end-{NAME}_kernel-4, v20",
         "global_load_dword v21, v20, s[38:39]"]
    return o


sXD, sWD, sQBD, sQAD, sGD = 36, 40, 44, 48, 52
sKGD, sVGD, sOAD, sOBD = 56, 60, 64, 68
sOff, sLi, sHW = 72, 73, 74
vX, vW, vQ, vPat, vK, vV, vWO = 2, 3, 4, 5, 6, 7, 8
GV = 16


def dma(vaddr, sd, soff, lds, extra="", tag=None):
    o = [f"s_add_u32 m0, s{sLi}, {lds}"]
    if isinstance(soff, int):
        if soff:
            o.append(f"s_mov_b32 s{sOff}, {soff}")
            so = f"s{sOff}"
        else:
            so = "0"
    else:
        so = soff
    o.append(f"buffer_load_dwordx4 v{vaddr}, s[{sd}:{sd+3}], {so} offen {extra} lds" + (f" ;@tag={tag}" if tag else ""))
    return o


def h_common():
    return [f"v_lshlrev_b32 v{vL16}, 4, v0", f"v_mov_b32 v{vM}, {MISC}", f"v_mov_b32 v{vOne}, 1",
            f"s_sub_u32 s{sHW}, s{sWave}, 4"]


def l_wave():
    o = ["@reset", "L_lwave:"]
    o += ["s_setprio 2"]
    o += h_common()
    t0, t1, t2 = 24, 25, 26
    o += [f"s_lshl_b32 s{sLi}, s{sHW}, 10"]
    o += srd(sXD, sX, 1835008)
    o += [f"v_lshrrev_b32 v{t0}, 3, v0", f"s_lshl_b32 s{sT0}, s{sRB}, 4", f"s_add_u32 s{sT0}, s{sT0}, s{sHW}",
          f"s_lshl_b32 s{sT0}, s{sT0}, 3", f"v_add_u32 v{t1}, s{sT0}, v{t0}", f"v_mul_u32_u24 v{vX}, 896, v{t1}",
          f"v_lshrrev_b32 v{t1}, 4, v0", f"s_lshl_b32 s{sT0}, s{sHW}, 2", f"v_add_u32 v{t1}, s{sT0}, v{t1}",
          f"v_and_b32 v{t2}, 7, v0", f"v_xor_b32 v{t1}, v{t1}, v{t2}", f"v_lshl_add_u32 v{vX}, v{t1}, 4, v{vX}"]
    o += [f"s_cmp_eq_u32 s{sPar}, 0",
          f"s_cselect_b32 s{sWD}, s{sBW}, s{sAW}", f"s_cselect_b32 s{sWD+1}, s{sBW+1}, s{sAW+1}",
          f"s_lshl_b32 s{sT2}, s{sPar}, 4", f"s_add_u32 s{sT1}, s{sT2}, 112", f"s_add_u32 s{sT2}, s{sT2}, 48",
          f"s_mov_b32 s{sWD+2}, 1204224", f"s_mov_b32 s{sWD+3}, 0x20000",
          f"s_cmp_eq_u32 s{sH}, 15", f"s_cselect_b32 s{sWD+2}, 0, s{sWD+2}",
          f"s_mul_i32 s{sT1}, s{sT1}, s{sHH}", f"s_add_u32 s{sT1}, s{sT1}, 896",
          f"s_lshl_b32 s{sT0}, s{sHW}, 3", f"v_add_u32 v{t1}, s{sT0}, v{t0}", f"v_mul_u32_u24 v{vW}, 2688, v{t1}",
          f"v_bfe_u32 v{t1}, v0, 2, 1", f"v_bfe_u32 v{t2}, v0, 4, 1", f"v_xor_b32 v{t1}, v{t1}, v{t2}",
          f"v_mul_u32_u24 v{t2}, s{sT2}, v{t1}", f"v_add3_u32 v{vW}, v{vW}, v{t2}, s{sT1}",
          f"v_and_b32 v{t2}, 3, v0", f"v_lshl_add_u32 v{vW}, v{t2}, 4, v{vW}"]
    first = []
    ops = []
    for c in range(7):
        for ii in range(8):
            ops.append((dma(vX, sXD, 16 * ii * 896 + 128 * c, p1x(c) + 2048 * ii), c))
        for ii in range(4):
            ops.append((dma(vW, sWD, (64 * c + 16 * ii) * 2688, p1w(c) + 2048 * ii), c))
    for c in range(7):
        for ii in range(4):
            ops.append((dma(vW, sWD, (64 * c + 16 * ii) * 2688 + 896, P2 + 8192 * c + 2048 * ii), 7 + c))
    for q, (sd, base) in enumerate(((sQBD, QB), (sQAD, QA))):
        for c in range(7):
            for ii in range(2):
                ops.append((dma(vQ, sd, (64 * c + 32 * ii) * 2688, base + 4096 * c + 2048 * ii), 14 + 7 * q + c))
    late = srd(sQBD, sBW, 1204224) + srd(sQAD, sAW, 1204224) + srd(sGD, sGW, 896)
    late += [f"v_lshrrev_b32 v{t0}, 2, v0", f"s_lshl_b32 s{sT0}, s{sHW}, 4", f"v_add_u32 v{t0}, s{sT0}, v{t0}",
             f"v_mul_u32_u24 v{vQ}, 2688, v{t0}", f"v_and_b32 v{t1}, 3, v0", f"v_lshl_add_u32 v{vQ}, v{t1}, 4, v{vQ}",
             f"s_mul_i32 s{sT0}, s{sH}, 56", f"s_lshl_b32 s{sT1}, s{sPar}, 3", f"s_sub_u32 s{sT0}, s{sT0}, s{sT1}",
             f"v_add_u32 v{vQ}, s{sT0}, v{vQ}",
             f"v_bfe_u32 v{t0}, v0, 4, 1", f"v_lshlrev_b32 v{t0}, 5, v{t0}", f"v_and_b32 v{t1}, 15, v0",
             f"s_lshl_b32 s{sT0}, s{sHW}, 4", f"v_add3_u32 v{t0}, v{t0}, v{t1}, s{sT0}",
             f"v_lshlrev_b32 v{t1}, 1, v{t0}",
             f"s_xor_b32 s{sT0}, s{sPar}, 1", f"s_mul_i32 s{sT0}, s{sT0}, 56", f"s_add_u32 s{sT0}, s{sT0}, {QB}",
             f"v_lshl_add_u32 v{vPat}, v{t0}, 6, s{sT0}"]
    late += [f"buffer_load_ushort v{GV+c}, v{t1}, s[{sGD}:{sGD+3}], 0 offen offset:{128*c}" for c in range(7)]
    late += srd(sKGD, sWS, 1835008) + srd(sVGD, sWS, 1835008, add=VG)
    late += [f"s_lshl_b32 s{sT0}, s{sRB}, 2", f"s_sub_u32 s{sT0}, s{sT0}, 8", f"s_mul_i32 s{sT0}, s{sT0}, 28672",
             f"s_mul_i32 s{sT1}, s{sH}, 7", f"s_lshr_b32 s{sT1}, s{sT1}, 1", f"s_lshl_b32 s{sT1}, s{sT1}, 9",
             f"s_add_u32 s{sT1}, s{sT1}, s{sT0}", f"s_add_u32 s{sT1}, s{sT1}, s{sLi}",
             f"v_add_u32 v{vK}, s{sT1}, v{vL16}",
             f"s_mul_i32 s{sT1}, s{sH}, 448", f"s_mul_i32 s{sT2}, s{sHW}, 14336",
             f"s_add_u32 s{sT1}, s{sT1}, s{sT2}", f"s_add_u32 s{sT1}, s{sT1}, s{sT0}",
             f"v_lshrrev_b32 v{t0}, 5, v0", f"v_mul_u32_u24 v{t0}, {7168-512}, v{t0}",
             f"v_add3_u32 v{vV}, v{t0}, v{vL16}, s{sT1}"]
    LEAD = OPT['lead']
    assert LEAD <= 35
    last_of = {}
    for n, (_, st) in enumerate(ops):
        last_of[st] = n
    sig_next = 0

    def do_signal(st):
        r = [f"@wait_vm s{st}"]
        if 14 <= st <= 20:
            r.append(f"ds_write_b16 v{vPat}, v{GV+st-14} offset:{4096*(st-14)}")
        return r + signal(st, vM, vOne)

    for n, (ins, st) in enumerate(ops):
        if n == 72:
            o += spin_lds_nodrain(E_P1A, 4, vF, vM)
        if n == 108:
            o += spin_lds_nodrain(E_P1B, 4, vF, vM)
        if last_of[st] == n:
            ins = ins[:-1] + [ins[-1] + f" ;@tag=s{st}"]
        o += ins
        if n == 11:
            o += late
        while sig_next < 28 and last_of[sig_next] + LEAD <= n:
            o += do_signal(sig_next)
            sig_next += 1
    o += stamp(1)
    kops = []
    for j in range(12):
        kops.append(dma(vK, sKGD, 0, KL + 2048 * j, "sc1", tag=("s28" if j == 11 else None)) + [f"v_add_u32 v{vK}, 28672, v{vK}"])
    vops = []
    for j in range(12):
        vops.append(dma(vV, sVGD, 0, VL + 2048 * j, "sc1", tag=("s29" if j == 11 else None)) + [f"v_add_u32 v{vV}, 28672, v{vV}"])
    Lk, Lb = lab('knr'), lab('kb')
    rest = []
    for st in range(sig_next, 28):
        rest += do_signal(st)
    o += check_early(C_KOK, vF, vM)
    o += [f"v_cmp_eq_u32 vcc, 0, v{vF}", f"!s_cbranch_vccnz {Lk}"]
    fast = []
    sn = sig_next
    base_n = len(ops)
    for j, k in enumerate(kops):
        fast += k
        while sn < 28 and last_of[sn] + LEAD <= base_n + j:
            fast += do_signal(sn)
            sn += 1
    for st in range(sn, 28):
        fast += do_signal(st)
    o += fast
    o += [f"s_branch {Lb}", "@reset", f"{Lk}:"]
    nout = len(ops) - (last_of[sig_next - 1] + 1) if sig_next else len(ops)
    for st in range(sig_next, 28):
        rem = len(ops) - 1 - last_of[st]
        o += [f"s_waitcnt vmcnt({rem})"]
        if 14 <= st <= 20:
            o.append(f"ds_write_b16 v{vPat}, v{GV+st-14} offset:{4096*(st-14)}")
        o += signal(st, vM, vOne)
    o += spin_lds_nodrain(C_KOK, 0, vF, vM, ne0=True)
    for k in kops:
        o += k
    o += ["@reset", f"{Lb}:"]
    o += stamp(2)
    Lv, Lb2 = lab('vnr'), lab('vb')
    o += check_early(C_VOK, vF, vM)
    o += [f"v_cmp_eq_u32 vcc, 0, v{vF}", f"!s_cbranch_vccz {Lv}",
          "s_waitcnt vmcnt(0)"] + signal(ST_K, vM, vOne) + spin_lds_nodrain(C_VOK, 0, vF, vM, ne0=True)
    o += ["s_mov_b32 exec_lo, 0x0fffffff", "s_mov_b32 exec_hi, 0x0fffffff"]
    for v in vops:
        o += v
    o += ["s_mov_b64 exec, -1", f"s_branch {Lb2}", "@reset", f"{Lv}:"]
    o += ["s_mov_b32 exec_lo, 0x0fffffff", "s_mov_b32 exec_hi, 0x0fffffff"]
    for v in vops:
        o += v
    o += ["s_mov_b64 exec, -1", "s_waitcnt vmcnt(12)"] + signal(ST_K, vM, vOne)
    o += ["@reset", f"{Lb2}:"]
    o += stamp(3)
    o += [f"s_cmp_ge_u32 s{sH}, 14", "!s_cbranch_scc0 L_lwo",
          "s_waitcnt vmcnt(0)"] + signal(ST_V, vM, vOne) + ["s_waitcnt lgkmcnt(0)"] + stamp_flush(20, 0) + ["s_endpgm", "@reset", "L_lwo:"]
    o += srd(sXD, sAO, 401408) + srd(sWD, sBO, 401408)
    o += [f"v_lshrrev_b32 v{t0}, 3, v0", f"s_lshl_b32 s{sT0}, s{sHW}, 3", f"v_add_u32 v{t1}, s{sT0}, v{t0}",
          f"v_mul_u32_u24 v{vWO}, 896, v{t1}",
          f"v_bfe_u32 v{t1}, v0, 2, 1", f"v_bfe_u32 v{t2}, v0, 4, 1", f"v_xor_b32 v{t1}, v{t1}, v{t2}",
          f"v_lshl_add_u32 v{vWO}, v{t1}, 6, v{vWO}", f"v_and_b32 v{t2}, 3, v0", f"v_lshl_add_u32 v{vWO}, v{t2}, 4, v{vWO}",
          f"s_lshl_b32 s{sT0}, s{sHH}, 7", f"v_add_u32 v{vWO}, s{sT0}, v{vWO}"]
    o += ["s_waitcnt vmcnt(0)"] + signal(ST_V, vM, vOne)
    o += stamp(4)
    o += spin_lds_nodrain(E_P3, 4, vF, vM)

    def woa(rho):
        r = []
        for kh in range(2):
            for ii in range(7):
                r += dma(vWO, sXD, (224 * kh + 112 * rho + 16 * ii) * 896, STG + 14336 * kh + 2048 * ii,
                         tag=(f"wa{rho}" if kh == 1 and ii == 6 else None))
        return r
    o += woa(0)
    for ii in range(28):
        o += dma(vWO, sWD, 16 * ii * 896, WOB + 2048 * ii, tag=("wb" if ii == 27 else None))
        if ii == 20:
            o += ["@wait_vm wa0"] + signal(ST_WA1, vM, vOne)
    o += p3_setup()
    o += spin_lds_nodrain(ST_WA1, 2, vF, vM)
    o += woa_read(0) + signal(C_R1, vM, vOne)
    o += ["@wait_vm wb"] + signal(ST_WB, vM, vOne)
    o += spin_lds_nodrain(C_R1, 4, vF, vM)
    o += woa(1)
    o += ["@wait_vm wa1"] + signal(ST_WA2, vM, vOne)
    o += stamp(5)
    o += get_epoch_h()
    o += ["@drain", "s_branch L_p3", "@reset"]
    return o


def get_epoch_h():
    return spin_lds_nodrain(C_EPOCH, 0, vEp, vM, ne0=True)


WA = 128
OF = 64
ACC = 32
BB = 16
vA0, vA1, vA0s, vA1s = 2, 3, 4, 5
vOG, vFl = 6, 7
sKh, sRt, sTT = 75, 64, 65


def p3_setup():
    t0, t1, t2, r, cg = 20, 21, 22, 23, 24
    return [f"s_lshr_b32 s{sKh}, s{sHW}, 1", f"s_and_b32 s{sRt}, s{sHW}, 1",
            f"s_lshl_b32 s{sTT}, s{sRB}, 1", f"s_add_u32 s{sTT}, s{sTT}, s{sPar}", f"s_lshl_b32 s{sTT}, s{sTT}, 1",
            f"s_add_u32 s{sTT}, s{sTT}, s{sRt}",
            f"v_bfe_u32 v{r}, v0, 2, 2", f"v_bfe_u32 v{t0}, v0, 4, 1", f"v_and_b32 v{cg}, 3, v0",
            f"v_lshl_add_u32 v{cg}, v{t0}, 2, v{cg}",
            f"v_lshrrev_b32 v{t0}, 1, v{r}", f"v_xor_b32 v{t0}, s{sKh}, v{t0}",
            f"v_lshlrev_b32 v{t1}, 7, v{r}", f"v_lshl_add_u32 v{t1}, v{t0}, 6, v{t1}",
            f"v_lshl_add_u32 v{vA0s}, v{cg}, 3, v{t1}", f"v_xor_b32 v{vA1s}, 64, v{vA0s}",
            f"v_lshrrev_b32 v{t0}, 5, v0", f"v_lshlrev_b32 v{t0}, 9, v{t0}",
            f"v_add_u32 v{vA0}, v{vA0s}, v{t0}", f"v_add_u32 v{vA1}, v{vA1s}, v{t0}",
            f"s_mul_i32 s{sT0}, s{sKh}, 14336"] + \
           [f"v_add_u32 v{a}, s{sT0}, v{a}" for a in (vA0, vA1, vA0s, vA1s)]


def wo_frag(dst, j, hl, s, base):
    a, asp = (vA0, vA0s) if j == 0 else (vA1, vA1s)
    off = base + (28 * hl + 16 * s) * 128
    return [tr(dst, a, off), tr(dst + 2, asp if s == 1 else a, off + 1024)]


def woa_read(rho):
    o = []
    for hl in range(4):
        for s in range(2):
            for j in range(2):
                o += wo_frag(WA + 64 * j + 8 * (4 * rho + hl) + 4 * s, j, hl, s, STG)
    return o


def poll_flags(fbase, vtmp):
    L = lab('pf')
    return [f"s_mov_b32 s{sT1}, {fbase}", f"!s_mov_b32 s{sTO}, 0", "!s_mov_b64 exec, 0xff", f"!{L}:",
            f"!buffer_load_dword v{vtmp}, v{vFl}, s[{sWSD}:{sWSD+3}], s{sT1} offen sc1",
            f"!s_add_u32 s{sTO}, s{sTO}, 1", f"!s_cmp_gt_u32 s{sTO}, {SPIN}", "!s_cbranch_scc1 L_abort",
            "!s_waitcnt vmcnt(0)", f"!v_cmp_ne_u32 vcc, v{vtmp}, v{vEp}", f"!s_cbranch_vccnz {L}",
            "!s_mov_b64 exec, -1"]


def phase3():
    o = ["@reset", "L_p3:"]
    t0 = 20
    o += [f"s_lshl_b32 s{sT0}, s{sTT}, 1", f"s_add_u32 s{sT0}, s{sT0}, s{sKh}", f"s_lshl_b32 s{sT0}, s{sT0}, 3",
          f"v_add_u32 v{vFl}, s{sT0}, v0", f"v_lshlrev_b32 v{vFl}, 6, v{vFl}",
          f"s_lshl_b32 s{sT0}, s{sT0}, 11", f"v_add_u32 v{vOG}, s{sT0}, v{vL16}"]
    o += spin_lds_nodrain(ST_WA2, 2, vF, vM)
    o += woa_read(1)
    o += spin_lds_nodrain(ST_WB, 2, vF, vM)
    o += stamp(6)
    o += [f"s_mul_i32 s{sT0}, s{sKh}, 14336", f"s_add_u32 s{sT0}, s{sT0}, {WOB}"]
    o += [f"v_add_u32 v{a}, s{sT0}, v{a}" for a in (vA0, vA1, vA0s, vA1s)]

    def oloads(base):
        r = []
        for g in range(4):
            r.append(f"s_mov_b32 s{sT2}, {base + 4096*g}")
            for e in range(4):
                n = 4 * g + e
                r.append(f"buffer_load_dwordx4 v[{OF+4*n}:{OF+4*n+3}], v{vOG}, s[{sWSD}:{sWSD+3}], s{sT2} offen offset:{1024*e} sc1")
        return r
    o += poll_flags(FOB, t0)
    o += stamp(7)
    o += oloads(OB)
    fr = [(n, j) for n in range(16) for j in range(2)]
    rd = lambda i: wo_frag(BB + 4 * (i % 4), fr[i][1], fr[i][0] // 2, fr[i][0] % 2, 0)
    o += rd(0) + rd(1) + rd(2)
    for i, (n, j) in enumerate(fr):
        if i + 3 < len(fr):
            o += rd(i + 3)
        o.append(mfma(ACC + 16 * j, BB + 4 * (i % 4), OF + 4 * n, ACC + 16 * j if n else None))
    o += stamp(8)
    o += poll_flags(FOA, t0)
    o += stamp(9)
    o += oloads(OA)
    for n in range(16):
        for j in range(2):
            o.append(mfma(ACC + 16 * j, WA + 64 * j + 4 * n, OF + 4 * n, ACC + 16 * j))
    def redaddr(dst, sidx):
        return [f"s_mov_b32 s{sT0}, {RED[0]}", f"s_cmp_eq_u32 s{sidx}, 1", f"s_cselect_b32 s{sT0}, {RED[1]}, s{sT0}",
                f"s_cmp_eq_u32 s{sidx}, 2", f"s_cselect_b32 s{sT0}, {RED[2]}, s{sT0}",
                f"s_cmp_eq_u32 s{sidx}, 3", f"s_cselect_b32 s{sT0}, {RED[3]}, s{sT0}",
                f"v_add_u32 v{dst}, s{sT0}, v{vL16}"]
    o += redaddr(vA0, sHW) + [f"s_xor_b32 s{sT1}, s{sHW}, 2"] + redaddr(vA1, sT1)
    o += srd(sXD + 4, sOUT, 1835008)
    sO = sXD + 4
    o += [f"v_and_b32 v8, 31, v0", f"s_lshl_b32 s{sT0}, s{sTT}, 5", f"v_add_u32 v8, s{sT0}, v8",
          f"v_mul_u32_u24 v8, 896, v8", f"v_lshrrev_b32 v9, 5, v0",
          f"v_lshl_add_u32 v8, v9, 4, v8",
          f"s_lshl_b32 s{sT0}, s{sHH}, 1", f"s_add_u32 s{sT0}, s{sT0}, s{sKh}", f"s_lshl_b32 s{sT0}, s{sT0}, 6",
          f"v_add_u32 v8, s{sT0}, v8"]
    o += [f"ds_write_b128 v{vA0}, v[{ACC+16+4*i}:{ACC+16+4*i+3}] offset:{1024*i}" for i in range(4)]
    o += ["s_waitcnt lgkmcnt(0)", "s_barrier"]
    o += [f"ds_read_b128 v[{OF+4*i}:{OF+4*i+3}], v{vA1} offset:{1024*i}" for i in range(4)]
    for p in range(8):
        o += [f"v_add_f32 v{ACC+2*p}, v{ACC+2*p}, v{OF+2*p}", f"v_add_f32 v{ACC+2*p+1}, v{ACC+2*p+1}, v{OF+2*p+1}",
              f"v_cvt_pk_bf16_f32 v{BB+p}, v{ACC+2*p}, v{ACC+2*p+1}"]
    o += [f"v_permlane32_swap_b32 v{BB+x}, v{BB+x+2}" for x in (0, 1, 4, 5)]
    o += [f"buffer_store_dwordx4 v[{BB+4*e}:{BB+4*e+3}], v8, s[{sO}:{sO+3}], 0 offen offset:{32*e}" for e in range(2)]
    if OPT.get('delay'):
        ins = 's_memrealtime' if OPT.get('rt') else 's_memtime'
        o += [f"!{ins} s[44:45]", "!s_waitcnt lgkmcnt(0)", "!L_dly:", f"!{ins} s[46:47]", "!s_waitcnt lgkmcnt(0)",
              "!s_sub_u32 s46, s46, s44", f"!s_cmp_lt_u32 s46, {OPT['delay']}", "!s_cbranch_scc1 L_dly"]
    o += stamp(10)
    if OPT['stamps']:
        o += ["s_waitcnt vmcnt(0)"] + stamp(11)
    o += stamp_flush(20, 0)
    o += ["s_endpgm"]
    return o


def spin_vm(body, cond):
    L = lab('pv')
    o = ["@drain", f"!s_mov_b32 s{sTO}, 0", f"!{L}:"]
    o += ["!" + b for b in body]
    o += [f"!s_add_u32 s{sTO}, s{sTO}, 1", f"!s_cmp_gt_u32 s{sTO}, {SPIN}", "!s_cbranch_scc1 L_abort",
          "!s_waitcnt vmcnt(0)"]
    o += ["!" + c for c in cond]
    o += [f"!s_cbranch_vccnz {L}"]
    return o


def ob_tiles():
    KVr = 16
    o = spin_lds(E_PQ, 4, vF, vM)
    t0, t1 = 24, 25
    o += [f"s_sub_u32 s{sT2}, s{sHW}, 2",
          f"s_lshl_b32 s{sT0}, s{sT2}, 12", f"s_add_u32 s{sT0}, s{sT0}, {PQ}", f"v_add_u32 v{t0}, s{sT0}, v{vL16}",
          f"s_lshl_b32 s{sT0}, s{sT2}, 9", f"s_add_u32 s{sT0}, s{sT0}, {G1}", f"v_lshl_add_u32 v{t1}, v0, 2, s{sT0}"]
    for b in range(2):
        o += [f"ds_read_b128 v[{64+8*b+4*s}:{64+8*b+4*s+3}], v{t0} offset:{2048*b+1024*s}" for s in range(2)]
        o += [f"ds_read_b32 v{26+b}, v{t1} offset:{256*b}"]
    for b in range(2):
        o += [mfma(96 + 16 * b, KVr, 64 + 8 * b, None)]
    for b in range(2):
        o += [mfma(96 + 16 * b, KVr + 4, 64 + 8 * b + 4, 96 + 16 * b)]
    o += [f"s_lshl_b32 s{sT0}, s{sRB}, 1", f"s_add_u32 s{sT0}, s{sT0}, s{sT2}", f"s_lshl_b32 s{sT0}, s{sT0}, 5",
          f"s_add_u32 s{sT0}, s{sT0}, s{sH}",
          f"s_lshl_b32 s40, s{sT0}, 6", f"s_add_u32 s40, s40, {FOB}",
          f"s_lshl_b32 s41, s{sT0}, 11", f"s_add_u32 s41, s41, {OB}",
          f"s_add_u32 s42, s41, {16*2048}",
          f"v_lshrrev_b32 v{vLow}, 5, v0", f"v_add_u32 v{vLow}, -1, v{vLow}",
          f"s_mov_b32 s43, {fhex(1e-6)}"]
    for b in range(2):
        A = 96 + 16 * b
        t, u = 28, 29
        o += [f"v_mov_b32 v{t}, v{A+12}", f"v_mov_b32 v{u}, v{A+12}", f"v_permlane32_swap_b32 v{t}, v{u}",
              f"v_add_f32 v{u}, s43, v{u}", f"v_rcp_f32 v{u}, v{u}", f"v_mul_f32 v{u}, v{u}, v{26+b}",
              f"v_and_b32 v{t}, v{u}, v{vLow}"]
        D = 80 + 8 * b
        for p in range(8):
            sc = u if p < 6 else t
            o += [f"v_mul_f32 v{A+2*p}, v{A+2*p}, v{sc}", f"v_mul_f32 v{A+2*p+1}, v{A+2*p+1}, v{sc}",
                  f"v_cvt_pk_bf16_f32 v{D+p}, v{A+2*p}, v{A+2*p+1}"]
        o += [f"buffer_store_dwordx4 v[{D+4*e}:{D+4*e+3}], v{vL16}, s[{sWSD}:{sWSD+3}], s{41+b} offen offset:{1024*e} sc1" for e in range(2)]
    o += ["s_waitcnt vmcnt(0)", f"v_lshlrev_b32 v{t0}, 10, v0", "s_mov_b64 exec, 3",
          f"buffer_store_dword v{vEp}, v{t0}, s[{sWSD}:{sWSD+3}], s40 offen sc1", "s_mov_b64 exec, -1"]
    return o


def x_wave():
    o = ["@reset", "L_xwave:"]
    o += h_common()
    o += [f"s_cmp_eq_u32 s{sWave}, 7", "!s_cbranch_scc1 L_x1"]
    sDD = 36
    t0, t1, t2 = 20, 21, 22
    o += srd(sDD, sDBG, 256)
    o += [f"v_mov_b32 v{t0}, 0", "s_cmp_eq_u32 s2, 0", "!s_cbranch_scc0 L_x0poll",
          f"s_mov_b32 s{sT0}, {EPW}",
          f"buffer_load_dword v{vEp}, v{t0}, s[{sWSD}:{sWSD+3}], s{sT0} offen sc1",
          f"v_add_u32 v{vEp}, 1, v{vEp}", f"v_max_u32 v{vEp}, 1, v{vEp}",
          "s_mov_b64 exec, 1",
          f"buffer_store_dword v{vEp}, v{t0}, s[{sDD}:{sDD+3}], 0 offen sc1",
          f"buffer_store_dword v{vEp}, v{t0}, s[{sWSD}:{sWSD+3}], s{sT0} offen sc1",
          "s_mov_b64 exec, -1", "s_branch L_x0have", "@reset", "L_x0poll:"]
    o += spin_lds(3, 2, vF, vM)
    o += spin_vm([f"buffer_load_dword v{vEp}, v{t0}, s[{sDD}:{sDD+3}], 0 offen sc1"], [f"v_cmp_eq_u32 vcc, 0, v{vEp}"])
    o += ["@reset", "L_x0have:", f"ds_write_b32 v{vM}, v{vEp} offset:{4*C_EPOCH}"]
    o += stamp(1)
    o += [f"s_mul_i32 s{sT0}, s{sH}, 28", f"s_add_u32 s{sT1}, s{sT0}, 27",
          f"s_lshr_b32 s{sT0}, s{sT0}, 6", f"s_lshr_b32 s{sT1}, s{sT1}, 6", f"s_sub_u32 s{sT1}, s{sT1}, s{sT0}",
          f"v_and_b32 v{t1}, s{sT1}, v0", f"v_add_u32 v{t1}, s{sT0}, v{t1}",
          f"v_lshrrev_b32 v{t2}, 1, v0", f"s_lshl_b32 s{sT0}, s{sRB}, 2", f"s_sub_u32 s{sT0}, s{sT0}, 8",
          f"v_add_u32 v{t2}, s{sT0}, v{t2}",
          f"v_lshl_add_u32 v{t1}, v{t2}, 3, v{t1}", f"v_lshlrev_b32 v{vFl}, 6, v{t1}",
          f"v_cmp_le_i32 s[40:41], 0, v{t2}", f"s_and_b32 s40, s40, 0xffffff", "s_mov_b32 s41, 0"]
    o += spin_lds(E_P2, 4, vF, vM)
    o += [f"v_and_b32 v{t0}, 7, v0", f"v_lshrrev_b32 v{t1}, 3, v0",
          f"v_and_b32 v{t2}, 3, v{t0}", f"v_cmp_eq_u32 vcc, 0, v{t2}",
          f"v_mov_b32 v24, 0x3f803f80", f"v_cndmask_b32 v24, 0, v24, vcc",
          "v_mov_b32 v25, v24", "v_mov_b32 v26, v24", "v_mov_b32 v27, v24",
          f"v_lshrrev_b32 v{t0}, 2, v{t0}", f"v_lshlrev_b32 v{t0}, 9, v{t0}",
          f"v_lshl_add_u32 v{t0}, v{t2}, 4, v{t0}", f"v_lshl_add_u32 v{t0}, v{t1}, 10, v{t0}",
          f"v_add_u32 v{t0}, {VL+448}, v{t0}"]
    o += [f"ds_write_b128 v{t0}, v[24:27] offset:{8192*i}" for i in range(3)]
    o += stamp(2)
    for base, c in ((FK, C_KOK), (FV, C_VOK)):
        o += [f"s_mov_b32 s{sT1}, {base}", "s_mov_b64 exec, s[40:41]"]
        o += spin_vm([f"buffer_load_dword v{t1}, v{vFl}, s[{sWSD}:{sWSD+3}], s{sT1} offen sc1"],
                     [f"v_cmp_ne_u32 vcc, v{t1}, v{vEp}"])
        o += ["s_mov_b64 exec, -1", f"ds_write_b32 v{vM}, v{vOne} offset:{4*c}"]
        o += stamp(3 if c == C_KOK else 4)
    o += spin_lds(C_KVRDY, 0, vF, vM, ne0=True)
    o += [f"v_add_u32 v{t0}, {KVF}, v{vL16}",
          f"ds_read_b128 v[16:19], v{t0}", f"ds_read_b128 v[20:23], v{t0} offset:1024",
          "@drain", "s_branch L_xob", "@reset"]
    o += ["L_x1:"]
    o += spin_lds(C_EPOCH, 0, vEp, vM, ne0=True)
    t0 = 24
    o += [f"v_lshlrev_b32 v{t0}, 3, v0",
          f"s_lshl_b32 s40, s{sH}, 17", f"s_lshl_b32 s{sT0}, s{sRB}, 9", f"s_add_u32 s40, s40, s{sT0}", f"s_add_u32 s40, s40, {KVP}",
          f"s_lshl_b32 s41, s{sH}, 13", f"s_add_u32 s41, s41, {KVT}", f"s_add_u32 s42, s41, s{sT0}"]
    o += spin_lds(OPT.get('kvgate', 17), 2, vF, vM)
    o += stamp(1)

    def tagcheck():
        c = [f"v_xor_b32 v25, v65, v{vEp}"]
        for j in range(1, 16):
            c += [f"v_xor_b32 v26, v{65+2*j}, v{vEp}", "v_or_b32 v25, v25, v26"]
        c += ["v_cmp_ne_u32 vcc, 0, v25"]
        return c
    body = [f"s_mov_b32 s{sT1}, s40"]
    for j in range(16):
        body += [f"buffer_load_dwordx2 v[{64+2*j}:{65+2*j}], v{t0}, s[{sWSD}:{sWSD+3}], s{sT1} offen sc1",
                 f"s_add_u32 s{sT1}, s{sT1}, 8192"]
    o += spin_vm(body, tagcheck())
    o += stamp(2)
    for st in (1, 2, 4, 8):
        for j in range(0, 16, 2 * st):
            o.append(f"v_add_f32 v{64+2*j}, v{64+2*j}, v{64+2*(j+st)}")
    o += [f"buffer_store_dwordx2 v[64:65], v{t0}, s[{sWSD}:{sWSD+3}], s42 offen sc1"]
    body = [f"s_add_u32 s{sT1}, s41, 4096"]
    for j in range(16):
        so = "s41" if j < 8 else f"s{sT1}"
        body += [f"buffer_load_dwordx2 v[{64+2*j}:{65+2*j}], v{t0}, s[{sWSD}:{sWSD+3}], {so} offen offset:{512*(j%8)} sc1"]
    o += ["s_nop 1"] + spin_vm(body, tagcheck())
    o += stamp(3)
    o += [f"v_cvt_pk_bf16_f32 v{16+p}, v{64+4*p}, v{66+4*p}" for p in range(8)]
    o += [f"v_add_u32 v{t0}, {KVF}, v{vL16}",
          f"ds_write_b128 v{t0}, v[16:19]", f"ds_write_b128 v{t0}, v[20:23] offset:1024",
          f"ds_write_b32 v{vM}, v{vOne} offset:{4*C_KVRDY}", "@drain", "@reset"]
    o += ["L_xob:"]
    o += ob_tiles()
    o += stamp(5)
    o += [f"s_cmp_ge_u32 s{sH}, 14", "!s_cbranch_scc0 L_xp3"] + stamp_flush(20, 0) + ["s_endpgm", "@reset", "L_xp3:"]
    o += p3_setup()
    o += spin_lds_nodrain(ST_WA1, 2, vF, vM)
    o += woa_read(0) + signal(C_R1, vM, vOne)
    o += ["@drain"]
    return o


HEADER = f"""; Fused sliding-window attention + linear attention + gated output projection (gfx950).
; @launch grid=(256,1,1) block=(512,1,1) lds=163840
.amdgcn_target "amdgcn-amd-amdhsa--gfx950"
.text
.globl {NAME}_kernel
.p2align 8
.type {NAME}_kernel,@function
{NAME}_kernel:
"""
FOOTER = f"""
.section .rodata,"a"
.p2align 6
.amdhsa_kernel {NAME}_kernel
  .amdhsa_next_free_vgpr 256
  .amdhsa_next_free_sgpr 102
  .amdhsa_accum_offset 256
  .amdhsa_group_segment_fixed_size 0
  .amdhsa_kernarg_size 80
  .amdhsa_user_sgpr_count 2
  .amdhsa_user_sgpr_kernarg_segment_ptr 1
  .amdhsa_system_sgpr_workgroup_id_x 1
.end_amdhsa_kernel
"""


def main():
    global sKD
    sKD = 8
    body = prologue()
    c = c_wave()
    SLEEP[0] = OPT.get('sleep', 0)
    l = l_wave()
    x = x_wave()
    p3 = phase3()
    rep = []
    lines = finalize(body + c + l + x + p3, rep)
    lines += ['    ' + s if not s.endswith(':') else s for s in slow]
    lines += ["L_abort:", "L_exit:", "    s_endpgm", "L_end:"]
    open(sys.argv[1], 'w').write(HEADER + "\n".join(lines) + FOOTER)
    big = [r for r in rep if r[0] >= 3]
    print("nops inserted:", len(rep), "total states", sum(r[0] for r in rep))
    for r in big:
        print("   ", r)


main()
```

```python
import sys, math, struct
from asmlib import finalize, merge

NAME = "gated_mix__sliding_block__linear_attn_block__prompt"
OPT = dict(stamps=False, lead=22, dump=False, prefetch=True)
for a in sys.argv[2:]:
    k, v = a.split('=')
    OPT[k] = int(v)


def fhex(x):
    return '0x%08x' % struct.unpack('<I', struct.pack('<f', x))[0]


LOG2E = math.log2(math.e)
KSCALE = LOG2E * 28 ** -0.5
SPIN = 60000

SLOT = 8192
def p1x(c): return 24576 * (c % 6)
def p1w(c): return 24576 * (c % 6) + 16384
P2 = 3 * SLOT
QB = 10 * SLOT
QA = QB + 28672
KL = 4 * SLOT
VL = 7 * SLOT
KVRED = 0
STG = 0
WOB = 10 * SLOT
PQ = 18 * SLOT
MISC = 19 * SLOT
G1 = MISC + 1024
KVF = MISC + 2048
RED = [17 * SLOT, 17 * SLOT + 4096, 3 * SLOT + 4096, MISC + 4096]
ST_K, ST_V, ST_WA1, ST_WB, ST_WA2 = 28, 29, 30, 31, 32
E_P1A, E_P1B, E_P2A, E_P2, E_KVW, E_PQ, E_P3 = 33, 34, 35, 36, 37, 38, 39
C_EPOCH, C_KOK, C_VOK, C_KVRDY, C_R1 = 40, 41, 42, 43, 44

KG, VG, OA, OB, KVP, KVT = 0x000000, 0x200000, 0x400000, 0x600000, 0x800000, 0xA00000
FK, FV, FOA, FOB, EPW = 0xA40000, 0xA48000, 0xA50000, 0xA60000, 0xA70000
STAMPS = 0xB00000
DUMP = 0xC00000
WS_SIZE = 0x1000000

sX, sAW, sAO, sBW, sBO, sGW, sOUT, sDBG, sWS = 4, 6, 8, 12, 14, 16, 18, 20, 22
sWave, sH, sRB, sPar, sHH = 24, 25, 26, 27, 28
sT0, sT1, sT2, sTO = 29, 30, 31, 3
sWSD = 32
sStamp = 76

_lab = [0]
slow = []


def lab(p):
    _lab[0] += 1
    return f"L_{p}_{_lab[0]}"


def srd(d, ptr, size, add=0):
    o = []
    if add:
        o += [f"s_add_u32 s{d}, s{ptr}, {add}", f"s_addc_u32 s{d+1}, s{ptr+1}, 0"]
    else:
        o += [f"s_mov_b32 s{d}, s{ptr}", f"s_mov_b32 s{d+1}, s{ptr+1}"]
    o += [f"s_mov_b32 s{d+2}, {size}", f"s_mov_b32 s{d+3}, 0x20000"]
    return o


def stamp(i):
    if not OPT['stamps']:
        return []
    return [f"!s_memtime s[{sStamp+2*i}:{sStamp+2*i+1}]"]


def stamp_flush(vt, vlane):
    if not OPT['stamps']:
        return []
    o = ["s_mov_b64 exec, -1", "s_waitcnt lgkmcnt(0)", f"v_mov_b32 v{vt}, 0"]
    for i in range(12):
        o.append(f"v_writelane_b32 v{vt}, s{sStamp+2*i}, {i}")
    o += [f"s_lshl_b32 s{sT0}, s2, 3", f"s_add_u32 s{sT0}, s{sT0}, s{sWave}", f"s_lshl_b32 s{sT0}, s{sT0}, 8",
          f"s_add_u32 s{sT0}, s{sT0}, {STAMPS}",
          f"v_lshlrev_b32 v{vt+1}, 2, v{vlane}",
          f"buffer_store_dword v{vt}, v{vt+1}, s[{sWSD}:{sWSD+3}], s{sT0} offen"]
    return o


SLEEP = [0]


def spin_lds(idx, target, vF, vM, ne0=False):
    L = lab('sp')
    if SLEEP[0]:
        L2 = lab('spx')
        cmp_ = f"v_cmp_ne_u32 vcc, 0, v{vF}" if ne0 else f"v_cmp_eq_u32 vcc, {target}, v{vF}"
        return ["@drain", f"!s_mov_b32 s{sTO}, 0", f"!{L}:",
                f"!ds_read_b32 v{vF}, v{vM} offset:{4*idx}",
                f"!s_add_u32 s{sTO}, s{sTO}, 1", f"!s_cmp_gt_u32 s{sTO}, {SPIN}", "!s_cbranch_scc1 L_abort",
                "!s_waitcnt lgkmcnt(0)", f"!{cmp_}", f"!s_cbranch_vccnz {L2}",
                f"!!s_sleep {SLEEP[0]}", f"!!s_branch {L}", f"!{L2}:"]
    cmp_ = f"v_cmp_eq_u32 vcc, 0, v{vF}" if ne0 else f"v_cmp_ne_u32 vcc, {target}, v{vF}"
    return ["@drain", f"!s_mov_b32 s{sTO}, 0", f"!{L}:",
            f"!ds_read_b32 v{vF}, v{vM} offset:{4*idx}",
            f"!s_add_u32 s{sTO}, s{sTO}, 1", f"!s_cmp_gt_u32 s{sTO}, {SPIN}", "!s_cbranch_scc1 L_abort",
            "!s_waitcnt lgkmcnt(0)", f"!{cmp_}", f"!s_cbranch_vccnz {L}"]


def spin_lds_nodrain(idx, target, vF, vM, ne0=False):
    o = spin_lds(idx, target, vF, vM, ne0)
    return ["s_waitcnt lgkmcnt(0)"] + o[1:]


def check_early(idx, vF, vM):
    return [f"ds_read_b32 v{vF}, v{vM} offset:{4*idx}"]


def check_late(idx, target, vF, vM, ne0=False):
    Ls, Lb = lab('slow'), lab('back')
    cmp_ = f"v_cmp_eq_u32 vcc, 0, v{vF}" if ne0 else f"v_cmp_ne_u32 vcc, {target}, v{vF}"
    slow.extend([f"{Ls}:", f"s_mov_b32 s{sTO}, 0", f"{Ls}_s:",
                 f"ds_read_b32 v{vF}, v{vM} offset:{4*idx}",
                 f"s_add_u32 s{sTO}, s{sTO}, 1", f"s_cmp_gt_u32 s{sTO}, {SPIN}", "s_cbranch_scc1 L_abort",
                 "s_waitcnt lgkmcnt(0)", cmp_, f"s_cbranch_vccnz {Ls}_s", f"s_branch {Lb}"])
    return [cmp_, f"!s_cbranch_vccnz {Ls}", f"!{Lb}:"]


def signal(idx, vM, vOne):
    return ["s_mov_b64 exec, 1", f"ds_add_u32 v{vM}, v{vOne} offset:{4*idx}", "s_mov_b64 exec, -1"]


def mfma(d, a, b, c):
    cs = f"v[{c}:{c+15}]" if isinstance(c, int) and c >= 0 else "0"
    return f"v_mfma_f32_32x32x16_bf16 v[{d}:{d+15}], v[{a}:{a+3}], v[{b}:{b+3}], {cs}"


def prologue():
    o = []
    o += [f"s_load_dwordx16 s[4:19], s[0:1], 0", f"s_load_dwordx4 s[20:23], s[0:1], 64"]
    o += stamp(0)
    if OPT.get('until'):
        o += ["!s_memtime s[100:101]"]
    o += ["s_cmp_ge_u32 s2, 256", "!s_cbranch_scc1 L_exit",
          "v_lshrrev_b32 v1, 6, v0", "v_and_b32 v0, 63, v0",
          f"v_readfirstlane_b32 s{sWave}, v1",
          f"s_and_b32 s{sT0}, s2, 7", f"s_lshr_b32 s{sT1}, s2, 3",
          f"s_and_b32 s{sH}, s{sT0}, 1", f"s_lshl_b32 s{sH}, s{sH}, 3",
          f"s_and_b32 s{sT2}, s{sT1}, 7", f"s_add_u32 s{sH}, s{sH}, s{sT2}",
          f"s_lshr_b32 s{sRB}, s{sT0}, 1", f"s_lshl_b32 s{sRB}, s{sRB}, 2",
          f"s_lshr_b32 s{sT2}, s{sT1}, 3", f"s_add_u32 s{sRB}, s{sRB}, s{sT2}",
          f"s_and_b32 s{sPar}, s{sH}, 1", f"s_lshr_b32 s{sHH}, s{sH}, 1",
          "v_lshlrev_b32 v1, 2, v0", "v_mov_b32 v2, 0",
          f"v_add_u32 v1, {MISC}, v1",
          "ds_write_b32 v1, v2",
          "s_waitcnt lgkmcnt(0)", "s_barrier"]
    o += srd(sWSD, sWS, WS_SIZE)
    o += [f"s_cmp_ge_u32 s{sWave}, 6", "!s_cbranch_scc1 L_xwave",
          f"s_cmp_ge_u32 s{sWave}, 4", "!s_cbranch_scc1 L_lwave"]
    return o


vL16, vXA, vW0, vW1, vQB, vQA, vM, vOne, vF, vEp, vLow, vG = 1, 2, 6, 7, 8, 9, 10, 11, 12, 13, 14, 15
PK = 16
WB = 32
MK = 56
accA, accB = 64, 96
XF = 128
QF = 240
vMA, vMB = 248, 249
TMP = 250
sMask = 40
sL2E, sEps, sKS, sTile, sSt = 72, 73, 74, 75, 36


def c_setup():
    o = []
    lo, hh, t0, t1, t2 = 20, 21, 22, 23, 24
    o += [f"v_lshlrev_b32 v{vL16}, 4, v0",
          f"v_and_b32 v{lo}, 31, v0", f"v_lshrrev_b32 v{hh}, 5, v0",
          f"v_mov_b32 v{vM}, {MISC}", f"v_mov_b32 v{vOne}, 1",
          f"s_lshl_b32 s{sTile}, s{sRB}, 2", f"s_add_u32 s{sTile}, s{sTile}, s{sWave}",
          f"s_mov_b32 s{sL2E}, {fhex(LOG2E)}", f"s_mov_b32 s{sEps}, {fhex(1e-6)}", f"s_mov_b32 s{sKS}, {fhex(KSCALE)}"]
    o += [f"v_bfe_u32 v{t0}, v0, 1, 3", f"v_xor_b32 v{t0}, v{t0}, v{hh}",
          f"s_lshl_b32 s{sT0}, s{sWave}, 12",
          f"v_lshlrev_b32 v{t1}, 7, v{lo}", f"v_add_u32 v{t1}, s{sT0}, v{t1}"]
    for s in range(4):
        o += [f"v_xor_b32 v{t2}, {2*s}, v{t0}", f"v_lshl_add_u32 v{vXA+s}, v{t2}, 4, v{t1}"]
    r, cg, row = 25, 26, 27
    o += [f"v_bfe_u32 v{r}, v0, 2, 2", f"v_bfe_u32 v{t0}, v0, 4, 1", f"v_and_b32 v{cg}, 3, v0",
          f"v_lshl_add_u32 v{cg}, v{t0}, 2, v{cg}",
          f"v_lshl_add_u32 v{row}, v{hh}, 3, v{r}"]
    o += [f"v_lshrrev_b32 v{t0}, 1, v{r}",
          f"v_lshlrev_b32 v{t1}, 7, v{row}", f"v_add_u32 v{t1}, 16384, v{t1}",
          f"v_lshl_add_u32 v{vW0}, v{t0}, 6, v{t1}",
          f"v_xor_b32 v{vW1}, 64, v{vW0}",
          f"v_lshl_add_u32 v{vW0}, v{cg}, 3, v{vW0}",
          f"s_xor_b32 s{sT0}, s{sPar}, 1",
          f"v_add_u32 v{t2}, s{sT0}, v{cg}", f"v_and_b32 v{t2}, 7, v{t2}",
          f"v_lshl_add_u32 v{vW1}, v{t2}, 3, v{vW1}"]
    o += [f"v_lshlrev_b32 v{t1}, 6, v{row}",
          f"v_add_u32 v{t2}, s{sPar}, v{cg}", f"v_and_b32 v{t2}, 7, v{t2}",
          f"v_lshl_add_u32 v{vQB}, v{t2}, 3, v{t1}", f"v_add_u32 v{vQB}, {QB}, v{vQB}",
          f"v_and_b32 v{t0}, 1, v{cg}", f"v_lshlrev_b32 v{t0}, 1, v{t0}",
          f"v_bfe_u32 v{t2}, v{cg}, 1, 1", f"v_or_b32 v{t0}, v{t0}, v{t2}",
          f"v_and_b32 v{t2}, 4, v{cg}", f"v_or_b32 v{t0}, v{t0}, v{t2}",
          f"v_lshl_add_u32 v{vQA}, v{t0}, 3, v{t1}", f"v_add_u32 v{vQA}, {QA}, v{vQA}"]
    o += [f"v_add_u32 v{vLow}, -1, v{hh}",
          f"s_sub_u32 s{sT0}, s{sPar}, 1",
          f"v_not_b32 v{t0}, v{vLow}",
          f"v_or_b32 v{vMA}, s{sT0}, v{t0}",
          f"s_not_b32 s{sT0}, s{sT0}",
          f"v_or_b32 v{vMB}, s{sT0}, v{vLow}"]
    o += [f"v_lshlrev_b32 v{t0}, 2, v{hh}", f"v_sub_u32 v{t0}, v{lo}, v{t0}"]
    for rr in range(16):
        b = 8 * (rr >> 2) + (rr & 3)
        o.append(f"v_cmp_le_i32 s[{sMask+2*rr}:{sMask+2*rr+1}], {b}, v{t0}")
    o += [f"v_mov_b32 v{t1}, 0xffff", f"v_mov_b32 v{t2}, 0xffff0000"]
    for p in range(8):
        o += [f"v_cndmask_b32 v{MK+p}, 0, v{t1}, s[{sMask+4*p}:{sMask+4*p+1}]",
              f"v_cndmask_b32 v{t0}, 0, v{t2}, s[{sMask+4*p+2}:{sMask+4*p+3}]",
              f"v_or_b32 v{MK+p}, v{MK+p}, v{t0}"]
    return o


def tr(d, a, off):
    return f"ds_read_b64_tr_b16 v[{d}:{d+1}], v{a} offset:{off}"


def gemm_frags(isY):
    fr = []
    for k in range(28):
        c, s = divmod(k, 4)
        for j in range(2):
            base = p1x(c) - (73728 if 3 <= c <= 5 else 0)
            xo = p1x(c) - (73728 if 3 <= c <= 5 else 0)
            fr.append(dict(step=c, addr=(vW0, vW1)[j], off=base + s * 2048, du=512, k=k,
                           acc=accA + 16 * j, wfirst=not isY, p=1,
                           xread=(f"ds_read_b128 v[{XF+4*k}:{XF+4*k+3}], v{vXA+s} offset:{xo}" if j == 0 else None)))
    for k in range(28):
        c, s = divmod(k, 4)
        for j in range(2):
            fr.append(dict(step=7 + c, addr=(vW0, vW1)[j], off=c * 8192 + s * 2048, du=512, k=k,
                           acc=accB + 16 * j, wfirst=False, p=2, xread=None))
    for q, (a, st) in enumerate(((vQB, 14), (vQA, 21))):
        for k in range(28):
            c, s = divmod(k, 4)
            fr.append(dict(step=st + c, addr=a, off=c * 4096 + s * 1024, du=256, k=k,
                           acc=accA + 16 * q, wfirst=True, p=3 + q, xread=None))
    return fr


def gemm_slots(isY):
    fr = gemm_frags(isY)
    N = len(fr)
    D = 5
    slots = []
    issued = 0
    early_done = set()
    checked = set()
    for n in range(N):
        cur = []
        f = fr[n]
        if f['p'] == 1 and f['step'] < 6:
            lim = min(n + D, 8 * f['step'] + 7)
        else:
            lim = min(n + D, N - 1)
        while issued <= lim:
            g = fr[issued]
            st = g['step']
            if st not in checked:
                checked.add(st)
                if st <= 6:
                    if st == 3:
                        cur += [f"v_add_u32 v{r}, 73728, v{r}" for r in (vXA, vXA+1, vXA+2, vXA+3, vW0, vW1)]
                    if st == 6:
                        cur += [f"v_subrev_u32 v{r}, 73728, v{r}" for r in (vXA, vXA+1, vXA+2, vXA+3, vW0, vW1)]
                    cur += spin_lds(st, 2, vF, vM)
                    if st == 0:
                        cur += stamp(1)
                else:
                    if st == 7:
                        cur += [f"v_add_u32 v{r}, {P2-16384}, v{r}" for r in (vW0, vW1)]
                    if st not in early_done:
                        cur += check_early(st, vF, vM)
                    cur += check_late(st, 2, vF, vM)
            b = WB + 4 * (issued % 6)
            if g['xread']:
                cur.append(g['xread'])
            cur += [tr(b, g['addr'], g['off']), tr(b + 2, g['addr'], g['off'] + g['du'])]
            issued += 1
            last_of_step = issued == N or fr[issued]['step'] != st
            if last_of_step:
                ev = {2: E_P1A, 5: E_P1B, 7: E_P2A, 13: E_P2, 27: E_P3}.get(st)
                if ev is not None:
                    cur += signal(ev, vM, vOne)
        if issued + 2 < N:
            st = fr[issued + 2]['step']
            if st > 6 and st not in checked and st not in early_done and n >= 48:
                early_done.add(st)
                cur += check_early(st, vF, vM)
        b = WB + 4 * (n % 6)
        x = XF + 4 * f['k']
        A, B = (b, x) if f['wfirst'] else (x, b)
        cur.append(mfma(f['acc'], A, B, f['acc'] if f['k'] else None))
        slots.append(cur)
    return slots


def phi_pairs(acc, n, dst):
    o = []
    for p in range(n):
        a, b = acc + 2 * p, acc + 2 * p + 1
        ta, tb = TMP + 2 * (p % 2), TMP + 2 * (p % 2) + 1
        o += [f"v_mul_f32 v{ta}, s{sL2E}, v{a}", f"v_mul_f32 v{tb}, s{sL2E}, v{b}",
              f"v_exp_f32_e64 v{ta}, v{ta} clamp", f"v_exp_f32_e64 v{tb}, v{tb} clamp",
              f"v_max_f32 v{a}, 0, v{a}", f"v_max_f32 v{b}, 0, v{b}",
              f"v_add_f32 v{a}, v{a}, v{ta}", f"v_add_f32 v{b}, v{b}, v{tb}",
              f"v_add_f32 v{a}, s{sEps}, v{a}", f"v_add_f32 v{b}, s{sEps}, v{b}",
              f"v_cvt_pk_bf16_f32 v{dst+p}, v{a}, v{b}"]
    return o


def flag_store(vtmp, soff):
    return [f"v_mov_b32 v{vtmp}, 0", "s_mov_b64 exec, 1",
            f"buffer_store_dword v{vEp}, v{vtmp}, s[{sWSD}:{sWSD+3}], s{soff} offen sc1",
            "s_mov_b64 exec, -1"]


def get_epoch():
    return [check_early(C_EPOCH, vEp, vM), [], [], check_late(C_EPOCH, 0, vEp, vM, ne0=True)]


def qb_epilogue():
    a = accA
    t, u = TMP + 4, TMP + 5
    o = [f"v_mov_b32 v{t}, v{a+12}", f"v_mov_b32 v{u}, v{a+12}"]
    ph = phi_pairs(a, 8, PK)
    o += ph[:4]
    o += [f"v_permlane32_swap_b32 v{t}, v{u}",
          f"v_mul_f32 v{u}, s{sL2E}, v{u}", f"v_exp_f32_e64 v{u}, -v{u}"]
    o += ph[4:8]
    o += [f"v_add_f32 v{u}, 1.0, v{u}", f"v_rcp_f32 v{vG}, v{u}"]
    o += ph[8:]
    o += [f"v_sub_f32 v{u}, 1.0, v{vG}",
          f"v_and_b32 v{PK+6}, v{PK+6}, v{vLow}", f"v_and_b32 v{PK+7}, v{PK+7}, v{vLow}",
          f"s_lshl_b32 s{sT0}, s{sWave}, 11", f"s_add_u32 s{sT0}, s{sT0}, {PQ}",
          f"v_add_u32 v{t}, s{sT0}, v{vL16}",
          f"ds_write_b128 v{t}, v[{PK}:{PK+3}]", f"ds_write_b128 v{t}, v[{PK+4}:{PK+7}] offset:1024",
          f"s_lshl_b32 s{sT0}, s{sWave}, 8", f"s_add_u32 s{sT0}, s{sT0}, {G1}",
          f"v_lshl_add_u32 v{t}, v0, 2, s{sT0}",
          f"ds_write_b32 v{t}, v{u}"]
    o += [signal(E_PQ, vM, vOne)]
    return o


def c_gemm(isY):
    slots = gemm_slots(isY)
    p1, p2, p3a, p3b = slots[:56], slots[56:112], slots[112:140], slots[140:168]
    o = []
    for s in p1:
        o += s
    o += stamp(2)
    if not isY:
        f = [f"s_mul_i32 s{sSt}, s{sTile}, 28672", f"s_lshl_b32 s{sT0}, s{sHH}, 12",
             f"s_add_u32 s{sSt}, s{sSt}, s{sT0}",
             f"s_lshl_b32 s{sSt+1}, s{sTile}, 3", f"s_add_u32 s{sSt+1}, s{sSt+1}, s{sHH}",
             f"s_lshl_b32 s{sSt+1}, s{sSt+1}, 6", f"s_add_u32 s{sSt+1}, s{sSt+1}, {FK}"]
        for j in range(2):
            a = accA + 16 * j
            d = PK + 8 * j
            f += [f"v_mul_f32 v{a+i}, s{sKS}, v{a+i}" for i in range(16)]
            f += [f"v_cvt_pk_bf16_f32 v{d+i}, v{a+2*i}, v{a+2*i+1}" for i in range(8)]
            f += [f"v_permlane32_swap_b32 v{d+x}, v{d+x+2}" for x in (0, 1, 4, 5)]
            f += [f"buffer_store_dwordx4 v[{d+4*e}:{d+4*e+3}], v{vL16}, s[{sKD}:{sKD+3}], s{sSt} offen offset:{(4*j+2*e)*512} sc1 ;@tag=kst" for e in range(2)]
        g = get_epoch() + [["@wait_vm kst"] + flag_store(TMP, sSt + 1)]
        o += merge(p2[:30], f, start=3) + merge(p2[30:], g, start=OPT.get('kflag', 16))
        o += stamp(3)
        f = [f"s_mul_i32 s{sSt}, s{sTile}, 28672", f"s_lshl_b32 s{sT0}, s{sHH}, 10",
             f"s_add_u32 s{sSt}, s{sSt}, s{sT0}", f"s_add_u32 s{sSt}, s{sSt}, {VG}",
             f"s_add_u32 s{sSt+2}, s{sSt}, 14336",
             f"s_add_u32 s{sSt+1}, s{sSt+1}, {FV-FK}",
             f"v_lshrrev_b32 v{TMP+1}, 5, v0", f"v_mul_u32_u24 v{TMP+1}, {7168-512}, v{TMP+1}",
             f"v_add_u32 v{TMP+1}, v{TMP+1}, v{vL16}"]
        for j in range(2):
            a = accB + 16 * j
            d = PK + 8 * j
            f += [f"v_cvt_pk_bf16_f32 v{d+i}, v{a+2*i}, v{a+2*i+1}" for i in range(8)]
            f += [f"buffer_store_dwordx4 v[{d+4*e}:{d+4*e+3}], v{TMP+1}, s[{sKD}:{sKD+3}], s{sSt+2*e} offen offset:{512*j} sc1 ;@tag=vst" for e in range(2)]
        o += merge(p3a, f, start=5, per=3)
        o += stamp(4)
        q = qb_epilogue()
        g = [["@wait_vm vst"] + flag_store(TMP + 4, sSt + 1)]
        o += merge(p3b[:5], g, start=4) + merge(p3b[5:], q, start=0)
    else:
        f = phi_pairs(accA, 16, PK)
        o += merge(p2, f + get_epoch(), start=3)
        o += stamp(3)
        PV = accA + 16
        f = []
        for j in range(2):
            a = accB + 16 * j
            f += [f"v_cvt_pk_bf16_f32 v{PV+8*j+i}, v{a+2*i}, v{a+2*i+1}" for i in range(8)]
        f += [f"s_mov_b32 vcc_lo, 0x10000000", f"s_mov_b32 vcc_hi, 0x10000000", f"v_mov_b32 v{TMP}, 0x3f803f80"]
        f = f[:-3] + [f"s_mov_b32 s{sSt+2}, 0x10000000", f"s_mov_b32 s{sSt+3}, 0x10000000", f"v_mov_b32 v{TMP}, 0x3f803f80"]
        f += [f"v_cndmask_b32 v{PV+i}, v{PV+i}, v{TMP}, s[{sSt+2}:{sSt+3}]" for i in range(16)]
        f += [mfma(accB, PK, PV, None), mfma(accB + 16, PK + 8, PV + 8, None),
              mfma(accB, PK + 4, PV + 4, accB), mfma(accB + 16, PK + 12, PV + 12, accB + 16)]
        f += [f"s_lshl_b32 s{sT0}, s{sWave}, 13", f"v_add_u32 v{TMP}, s{sT0}, v{vL16}",
              f"s_lshl_b32 s{sT0}, s{sWave}, 11", f"v_add_u32 v{TMP+1}, s{sT0}, v{vL16}"]
        f += [check_early(E_P2A, TMP + 2, vM), [], check_late(E_P2A, 4, TMP + 2, vM), []]
        f += [[], [], [], []]
        f1 = f
        f2 = [f"ds_write_b128 v{TMP}, v[{accB+4*i}:{accB+4*i+3}] offset:{KVRED+1024*i}" for i in range(8)]
        f2 += [signal(E_KVW, vM, vOne)]
        f2 += [f"v_mov_b32 v{PK+2*i+1}, v{vEp}" for i in range(8)]
        f2 += [f"s_lshr_b32 s{sT0}, s{sWave}, 1", f"s_add_u32 s{sT0}, s{sT0}, s{sH}", f"s_lshl_b32 s{sT0}, s{sT0}, 4",
               f"s_add_u32 s{sT0}, s{sT0}, s{sRB}", f"s_lshl_b32 s{sT0}, s{sT0}, 1",
               f"s_and_b32 s{sT1}, s{sWave}, 1", f"s_add_u32 s{sT0}, s{sT0}, s{sT1}", f"s_lshl_b32 s{sSt}, s{sT0}, 12",
               f"s_add_u32 s{sSt}, s{sSt}, {KVP}"]
        f2 += [check_early(E_KVW, TMP + 2, vM), [], check_late(E_KVW, 4, TMP + 2, vM)]
        f2 += [f"ds_read_b128 v[{accB+8*w+4*e}:{accB+8*w+4*e+3}], v{TMP+1} offset:{KVRED+8192*w+1024*e}" for w in range(4) for e in range(2)]
        f3 = [f"v_lshlrev_b32 v{TMP}, 3, v0"]
        for i in range(8):
            f3 += [f"v_add_f32 v{accB+i}, v{accB+i}, v{accB+8+i}", f"v_add_f32 v{accB+16+i}, v{accB+16+i}, v{accB+24+i}"]
        for i in range(8):
            f3 += [f"v_add_f32 v{PK+2*i}, v{accB+i}, v{accB+16+i}",
                   f"buffer_store_dwordx2 v[{PK+2*i}:{PK+2*i+1}], v{TMP}, s[{sWSD}:{sWSD+3}], s{sSt} offen offset:{512*i} sc1"]
        o += merge(p3a[:16], f1, start=4) + merge(p3a[16:], f2, start=0)
        o += stamp(4)
        o += merge(p3b[:7], f3, start=0) + merge(p3b[7:], qb_epilogue(), start=0)
    o += stamp(5)
    a = accA + 16
    o += [f"v_cvt_pk_bf16_f32 v{QF+i}, v{a+2*i}, v{a+2*i+1}" for i in range(8)]
    o += [f"v_and_b32 v{QF}, v{QF}, v{vMA}", f"v_and_b32 v{QF+1}, v{QF+1}, v{vMA}",
          f"v_and_b32 v{QF+6}, v{QF+6}, v{vMB}", f"v_and_b32 v{QF+7}, v{QF+7}, v{vMB}"]
    return o


sKD = 100 - 4 - 0
sKD = 96

CM, SA, SB, SC, SF, SX = 128, 144, 160, 176, 192, 64
PA, PB, PF = 208, 216, 224
OACC = 96
KF = (32, 40)
VF = (48, 16)
vKA, vVA, vMx = 2, 3, 4
NEG = '0xf149f2ca'


def attention(guard):
    sI0 = sSt
    o = []

    def kread(i, buf):
        return [f"ds_read_b128 v[{buf+4*s}:{buf+4*s+3}], v{vKA} offset:{2048*i+1024*s}" for s in range(2)]

    def vread(i, buf):
        return [f"ds_read_b128 v[{buf+4*s}:{buf+4*s+3}], v{vVA} offset:{2048*i+1024*s}" for s in range(2)]

    def qk(d, buf, c):
        return [mfma(d, buf, QF, c), mfma(d, buf + 4, QF + 4, d)]

    def setc(i, src):
        L = lab('g')
        return [f"s_cmp_lg_u32 s{sI0}, {i}", f"!s_cbranch_scc1 {L}", "!!s_nop 7"] + \
               [f"!!v_mov_b32 v{CM+r}, {src}" for r in range(16)] + ["!!s_nop 1", f"!{L}:"]

    def maxes(s, first):
        m = []
        if first:
            m.append(f"v_max3_f32 v{vMx}, v{s}, v{s+1}, v{s+2}")
            rest = list(range(3, 16))
        else:
            rest = list(range(16))
        while rest:
            if len(rest) >= 2:
                m.append(f"v_max3_f32 v{vMx}, v{vMx}, v{s+rest[0]}, v{s+rest[1]}")
                rest = rest[2:]
            else:
                m.append(f"v_max_f32 v{vMx}, v{vMx}, v{s+rest[0]}")
                rest = []
        return m

    C1 = CM if guard else None
    if guard:
        o += [f"v_mov_b32 v{CM+r}, {NEG}" for r in range(16)]
    o += spin_lds(ST_K, 2, vF, vM)
    o += stamp(6)
    o += kread(0, KF[0]) + kread(1, KF[1])
    b1 = {0: SF, 8: SC}
    bufs = {}
    for i in range(1, 8):
        b1[i] = (SA, SB, SX)[i % 3]
        bufs[i] = (SA, SB)[i % 2]
    mx = {i: maxes(b1[i], first=(i == 1)) for i in range(1, 8)}
    for i in range(9):
        if guard:
            o += setc(i, "0")
        m = qk(b1[i], KF[i % 2], C1)
        nxt = kread(i + 2, KF[i % 2]) if i + 2 <= 8 else []
        o += [m[0]] + mx.get(i - 2, [])[4:] + [m[1]] + nxt + mx.get(i - 1, [])[:4]
    o += mx[7][4:]
    o += check_early(ST_V, vF, vM)
    o += kread(1, KF[1]) + kread(2, KF[0])
    o += [f"v_cndmask_b32 v{SC+r}, v{SF+r}, v{SC+r}, s[{sMask+2*r}:{sMask+2*r+1}]" for r in range(16)]
    o += maxes(SC, first=False)
    t = TMP
    o += [f"v_mov_b32 v{t}, v{vMx}", f"v_permlane32_swap_b32 v{t}, v{vMx}",
          f"v_max_f32 v{vMx}, v{vMx}, v{t}", f"v_sub_f32 v{vMx}, 0, v{vMx}"]
    o += check_late(ST_V, 2, vF, vM)
    o += stamp(7)
    o += vread(0, VF[0]) + vread(8, VF[1])
    if guard:
        o += [f"v_mov_b32 v{CM+r}, {NEG}" for r in range(16)]
        o += [f"s_max_u32 s{sI0}, s{sI0}, 1"]
        o += setc(1, f"v{vMx}")
    else:
        o += [f"v_mov_b32 v{CM+r}, v{vMx}" for r in range(16)]
    def expcvt(s, p, sub):
        e = []
        for r in range(16):
            if sub:
                e.append(f"v_add_f32 v{s+r}, v{s+r}, v{vMx}")
        for r in range(16):
            e.append(f"v_exp_f32 v{s+r}, v{s+r}")
            if r % 2 == 1 and r >= 3:
                e.append(f"v_cvt_pk_bf16_f32 v{p+(r-3)//2}, v{s+r-3}, v{s+r-2}")
        e.append(f"v_cvt_pk_bf16_f32 v{p+7}, v{s+14}, v{s+15}")
        return e

    def spread(mf, va):
        r = []
        n = len(mf)
        k = 0
        for idx, g in enumerate(mf):
            r += g
            want = (len(va) * (idx + 1)) // n - k
            r += va[k:k + want]
            k += want
        return r

    ev = expcvt(SC, PA, True)
    ev += [x for p in range(8) for x in (f"v_and_b32 v{PB+p}, v{PA+p}, v{MK+p}", f"v_xor_b32 v{PF+p}, v{PA+p}, v{PB+p}")]
    q1 = qk(bufs[1], KF[1], CM)
    o += spread([[q1[0]], [q1[1]] + kread(3, KF[1])], ev)
    prev_pv = [mfma(OACC, VF[0], PF, None), mfma(OACC, VF[0] + 4, PF + 4, OACC),
               mfma(OACC, VF[1], PB, OACC), mfma(OACC, VF[1] + 4, PB + 4, OACC)]
    prev_after = {1: vread(1, VF[0]), 3: vread(2, VF[1])}
    for i in range(1, 8):
        P = (PB, PA)[i % 2]
        groups = []
        nq = []
        pre = []
        if i + 1 <= 7:
            if guard:
                pre = setc(i + 1, f"v{vMx}")
            nq = qk(bufs[i + 1], KF[(i + 1) % 2], CM)
        seq = []
        if nq:
            seq.append([nq[0]])
            seq.append([nq[1]] + (kread(i + 3, KF[(i + 1) % 2]) if i + 3 <= 7 else []))
        for idx, m_ in enumerate(prev_pv):
            seq.append([m_] + prev_after.get(idx, []))
        o += pre
        o += spread(seq, expcvt(bufs[i], P, False))
        vb = VF[(i + 1) % 2]
        prev_pv = [mfma(OACC, vb, P, OACC), mfma(OACC, vb + 4, P + 4, OACC)]
        prev_after = {1: vread(i + 2, vb)} if i + 2 <= 7 else {}
    o += prev_pv
    return o


def c_tail():
    t, u = TMP, TMP + 1
    o = [f"s_lshl_b32 s{sSt}, s{sTile}, 4", f"s_add_u32 s{sSt}, s{sSt}, s{sH}",
         f"s_lshl_b32 s{sSt+1}, s{sSt}, 6", f"s_add_u32 s{sSt+1}, s{sSt+1}, {FOA}",
         f"s_lshl_b32 s{sSt}, s{sSt}, 11", f"s_add_u32 s{sSt}, s{sSt}, {OA}"]
    o += [f"v_mov_b32 v{t}, v{OACC+12}", f"v_mov_b32 v{u}, v{OACC+12}", f"v_permlane32_swap_b32 v{t}, v{u}",
          f"v_rcp_f32 v{u}, v{u}", f"v_mul_f32 v{u}, v{u}, v{vG}", f"v_and_b32 v{t}, v{u}, v{vLow}"]
    for p in range(8):
        sc = u if p < 6 else t
        o += [f"v_mul_f32 v{OACC+2*p}, v{OACC+2*p}, v{sc}", f"v_mul_f32 v{OACC+2*p+1}, v{OACC+2*p+1}, v{sc}",
              f"v_cvt_pk_bf16_f32 v{PA+p}, v{OACC+2*p}, v{OACC+2*p+1}"]
        if p in (3, 7):
            e = p // 4
            o.append(f"buffer_store_dwordx4 v[{PA+4*e}:{PA+4*e+3}], v{vL16}, s[{sWSD}:{sWSD+3}], s{sSt} offen offset:{1024*e} sc1")
    o += stamp(8)
    o += ["s_waitcnt vmcnt(0)"] + flag_store(t, sSt + 1)
    o += stamp(9)
    o += stamp_flush(TMP, 0)
    o += ["s_endpgm"]
    return o


def c_wave():
    o = []
    o += c_setup()
    o += srd(sKD, sWS, WS_SIZE)
    o += [f"s_cmp_eq_u32 s{sH}, 15", f"s_cselect_b32 s{sKD+2}, 0, s{sKD+2}"]
    o += code_prefetch()
    o += [f"s_cmp_eq_u32 s{sPar}, 0", "!s_cbranch_scc1 L_cY"]
    o += c_gemm(False)
    o += ["@drain", "s_nop 7", "s_branch L_attn", "@reset", "L_cY:"]
    o += c_gemm(True)
    o += ["@drain", "s_nop 7", "@reset", "L_attn:"]
    o += [f"s_lshl_b32 s{sT0}, s{sWave}, 11",
          f"s_add_u32 s{sT1}, s{sT0}, {KL}", f"v_add_u32 v{vKA}, s{sT1}, v{vL16}",
          f"s_add_u32 s{sT1}, s{sT0}, {VL}", f"v_add_u32 v{vVA}, s{sT1}, v{vL16}",
          f"s_cmp_lt_u32 s{sTile}, 8", "!s_cbranch_scc1 L_attn_g"]
    o += attention(False)
    o += ["L_ctail:"]
    o += c_tail()
    o += ["@reset", "L_attn_g:", f"s_sub_u32 s{sSt}, 8, s{sTile}"]
    o += attention(True)
    o += ["s_nop 15", "s_branch L_ctail", "@reset"]
    return o


def code_prefetch():
    if not OPT['prefetch']:
        return []
    o = ["s_getpc_b64 s[38:39]", "L_pc:",
         f"s_sub_u32 s38, s38, L_pc-{NAME}_kernel", "s_subb_u32 s39, s39, 0",
         f"s_lshl_b32 s{sT0}, s{sWave}, 13",
         f"v_lshl_add_u32 v20, v0, 7, s{sT0}",
         f"v_min_u32 v20, L_end-{NAME}_kernel-4, v20",
         "global_load_dword v21, v20, s[38:39]"]
    return o


sXD, sWD, sQBD, sQAD, sGD = 36, 40, 44, 48, 52
sKGD, sVGD, sOAD, sOBD = 56, 60, 64, 68
sOff, sLi, sHW = 72, 73, 74
vX, vW, vQ, vPat, vK, vV, vWO = 2, 3, 4, 5, 6, 7, 8
GV = 16


def dma(vaddr, sd, soff, lds, extra="", tag=None):
    o = [f"s_add_u32 m0, s{sLi}, {lds}"]
    if isinstance(soff, int):
        if soff:
            o.append(f"s_mov_b32 s{sOff}, {soff}")
            so = f"s{sOff}"
        else:
            so = "0"
    else:
        so = soff
    o.append(f"buffer_load_dwordx4 v{vaddr}, s[{sd}:{sd+3}], {so} offen {extra} lds" + (f" ;@tag={tag}" if tag else ""))
    return o


def h_common():
    return [f"v_lshlrev_b32 v{vL16}, 4, v0", f"v_mov_b32 v{vM}, {MISC}", f"v_mov_b32 v{vOne}, 1",
            f"s_sub_u32 s{sHW}, s{sWave}, 4"]


def l_wave():
    o = ["@reset", "L_lwave:"]
    o += ["s_setprio 2"]
    o += h_common()
    t0, t1, t2 = 24, 25, 26
    o += [f"s_lshl_b32 s{sLi}, s{sHW}, 10"]
    o += srd(sXD, sX, 1835008)
    o += [f"v_lshrrev_b32 v{t0}, 3, v0", f"s_lshl_b32 s{sT0}, s{sRB}, 4", f"s_add_u32 s{sT0}, s{sT0}, s{sHW}",
          f"s_lshl_b32 s{sT0}, s{sT0}, 3", f"v_add_u32 v{t1}, s{sT0}, v{t0}", f"v_mul_u32_u24 v{vX}, 896, v{t1}",
          f"v_lshrrev_b32 v{t1}, 4, v0", f"s_lshl_b32 s{sT0}, s{sHW}, 2", f"v_add_u32 v{t1}, s{sT0}, v{t1}",
          f"v_and_b32 v{t2}, 7, v0", f"v_xor_b32 v{t1}, v{t1}, v{t2}", f"v_lshl_add_u32 v{vX}, v{t1}, 4, v{vX}"]
    o += [f"s_cmp_eq_u32 s{sPar}, 0",
          f"s_cselect_b32 s{sWD}, s{sBW}, s{sAW}", f"s_cselect_b32 s{sWD+1}, s{sBW+1}, s{sAW+1}",
          f"s_lshl_b32 s{sT2}, s{sPar}, 4", f"s_add_u32 s{sT1}, s{sT2}, 112", f"s_add_u32 s{sT2}, s{sT2}, 48",
          f"s_mov_b32 s{sWD+2}, 1204224", f"s_mov_b32 s{sWD+3}, 0x20000",
          f"s_cmp_eq_u32 s{sH}, 15", f"s_cselect_b32 s{sWD+2}, 0, s{sWD+2}",
          f"s_mul_i32 s{sT1}, s{sT1}, s{sHH}", f"s_add_u32 s{sT1}, s{sT1}, 896",
          f"s_lshl_b32 s{sT0}, s{sHW}, 3", f"v_add_u32 v{t1}, s{sT0}, v{t0}", f"v_mul_u32_u24 v{vW}, 2688, v{t1}",
          f"v_bfe_u32 v{t1}, v0, 2, 1", f"v_bfe_u32 v{t2}, v0, 4, 1", f"v_xor_b32 v{t1}, v{t1}, v{t2}",
          f"v_mul_u32_u24 v{t2}, s{sT2}, v{t1}", f"v_add3_u32 v{vW}, v{vW}, v{t2}, s{sT1}",
          f"v_and_b32 v{t2}, 3, v0", f"v_lshl_add_u32 v{vW}, v{t2}, 4, v{vW}"]
    first = []
    ops = []
    for c in range(7):
        for ii in range(8):
            ops.append((dma(vX, sXD, 16 * ii * 896 + 128 * c, p1x(c) + 2048 * ii), c))
        for ii in range(4):
            ops.append((dma(vW, sWD, (64 * c + 16 * ii) * 2688, p1w(c) + 2048 * ii), c))
    for c in range(7):
        for ii in range(4):
            ops.append((dma(vW, sWD, (64 * c + 16 * ii) * 2688 + 896, P2 + 8192 * c + 2048 * ii), 7 + c))
    for q, (sd, base) in enumerate(((sQBD, QB), (sQAD, QA))):
        for c in range(7):
            for ii in range(2):
                ops.append((dma(vQ, sd, (64 * c + 32 * ii) * 2688, base + 4096 * c + 2048 * ii), 14 + 7 * q + c))
    late = srd(sQBD, sBW, 1204224) + srd(sQAD, sAW, 1204224) + srd(sGD, sGW, 896)
    late += [f"v_lshrrev_b32 v{t0}, 2, v0", f"s_lshl_b32 s{sT0}, s{sHW}, 4", f"v_add_u32 v{t0}, s{sT0}, v{t0}",
             f"v_mul_u32_u24 v{vQ}, 2688, v{t0}", f"v_and_b32 v{t1}, 3, v0", f"v_lshl_add_u32 v{vQ}, v{t1}, 4, v{vQ}",
             f"s_mul_i32 s{sT0}, s{sH}, 56", f"s_lshl_b32 s{sT1}, s{sPar}, 3", f"s_sub_u32 s{sT0}, s{sT0}, s{sT1}",
             f"v_add_u32 v{vQ}, s{sT0}, v{vQ}",
             f"v_bfe_u32 v{t0}, v0, 4, 1", f"v_lshlrev_b32 v{t0}, 5, v{t0}", f"v_and_b32 v{t1}, 15, v0",
             f"s_lshl_b32 s{sT0}, s{sHW}, 4", f"v_add3_u32 v{t0}, v{t0}, v{t1}, s{sT0}",
             f"v_lshlrev_b32 v{t1}, 1, v{t0}",
             f"s_xor_b32 s{sT0}, s{sPar}, 1", f"s_mul_i32 s{sT0}, s{sT0}, 56", f"s_add_u32 s{sT0}, s{sT0}, {QB}",
             f"v_lshl_add_u32 v{vPat}, v{t0}, 6, s{sT0}"]
    late += [f"buffer_load_ushort v{GV+c}, v{t1}, s[{sGD}:{sGD+3}], 0 offen offset:{128*c}" for c in range(7)]
    late += srd(sKGD, sWS, 1835008) + srd(sVGD, sWS, 1835008, add=VG)
    late += [f"s_lshl_b32 s{sT0}, s{sRB}, 2", f"s_sub_u32 s{sT0}, s{sT0}, 8", f"s_mul_i32 s{sT0}, s{sT0}, 28672",
             f"s_mul_i32 s{sT1}, s{sH}, 7", f"s_lshr_b32 s{sT1}, s{sT1}, 1", f"s_lshl_b32 s{sT1}, s{sT1}, 9",
             f"s_add_u32 s{sT1}, s{sT1}, s{sT0}", f"s_add_u32 s{sT1}, s{sT1}, s{sLi}",
             f"v_add_u32 v{vK}, s{sT1}, v{vL16}",
             f"s_mul_i32 s{sT1}, s{sH}, 448", f"s_mul_i32 s{sT2}, s{sHW}, 14336",
             f"s_add_u32 s{sT1}, s{sT1}, s{sT2}", f"s_add_u32 s{sT1}, s{sT1}, s{sT0}",
             f"v_lshrrev_b32 v{t0}, 5, v0", f"v_mul_u32_u24 v{t0}, {7168-512}, v{t0}",
             f"v_add3_u32 v{vV}, v{t0}, v{vL16}, s{sT1}"]
    LEAD = OPT['lead']
    assert LEAD <= 35
    last_of = {}
    for n, (_, st) in enumerate(ops):
        last_of[st] = n
    sig_next = 0

    def do_signal(st):
        r = [f"@wait_vm s{st}"]
        if 14 <= st <= 20:
            r.append(f"ds_write_b16 v{vPat}, v{GV+st-14} offset:{4096*(st-14)}")
        return r + signal(st, vM, vOne)

    for n, (ins, st) in enumerate(ops):
        if n == 72:
            o += spin_lds_nodrain(E_P1A, 4, vF, vM)
        if n == 108:
            o += spin_lds_nodrain(E_P1B, 4, vF, vM)
        if last_of[st] == n:
            ins = ins[:-1] + [ins[-1] + f" ;@tag=s{st}"]
        o += ins
        if n == 11:
            o += late
        while sig_next < 28 and last_of[sig_next] + LEAD <= n:
            o += do_signal(sig_next)
            sig_next += 1
    o += stamp(1)
    kops = []
    for j in range(12):
        kops.append(dma(vK, sKGD, 0, KL + 2048 * j, "sc1", tag=("s28" if j == 11 else None)) + [f"v_add_u32 v{vK}, 28672, v{vK}"])
    vops = []
    for j in range(12):
        vops.append(dma(vV, sVGD, 0, VL + 2048 * j, "sc1", tag=("s29" if j == 11 else None)) + [f"v_add_u32 v{vV}, 28672, v{vV}"])
    Lk, Lb = lab('knr'), lab('kb')
    rest = []
    for st in range(sig_next, 28):
        rest += do_signal(st)
    o += check_early(C_KOK, vF, vM)
    o += [f"v_cmp_eq_u32 vcc, 0, v{vF}", f"!s_cbranch_vccnz {Lk}"]
    fast = []
    sn = sig_next
    base_n = len(ops)
    for j, k in enumerate(kops):
        fast += k
        while sn < 28 and last_of[sn] + LEAD <= base_n + j:
            fast += do_signal(sn)
            sn += 1
    for st in range(sn, 28):
        fast += do_signal(st)
    o += fast
    o += [f"s_branch {Lb}", "@reset", f"{Lk}:"]
    nout = len(ops) - (last_of[sig_next - 1] + 1) if sig_next else len(ops)
    for st in range(sig_next, 28):
        rem = len(ops) - 1 - last_of[st]
        o += [f"s_waitcnt vmcnt({rem})"]
        if 14 <= st <= 20:
            o.append(f"ds_write_b16 v{vPat}, v{GV+st-14} offset:{4096*(st-14)}")
        o += signal(st, vM, vOne)
    o += spin_lds_nodrain(C_KOK, 0, vF, vM, ne0=True)
    for k in kops:
        o += k
    o += ["@reset", f"{Lb}:"]
    o += stamp(2)
    Lv, Lb2 = lab('vnr'), lab('vb')
    o += check_early(C_VOK, vF, vM)
    o += [f"v_cmp_eq_u32 vcc, 0, v{vF}", f"!s_cbranch_vccz {Lv}",
          "s_waitcnt vmcnt(0)"] + signal(ST_K, vM, vOne) + spin_lds_nodrain(C_VOK, 0, vF, vM, ne0=True)
    o += ["s_mov_b32 exec_lo, 0x0fffffff", "s_mov_b32 exec_hi, 0x0fffffff"]
    for v in vops:
        o += v
    o += ["s_mov_b64 exec, -1", f"s_branch {Lb2}", "@reset", f"{Lv}:"]
    o += ["s_mov_b32 exec_lo, 0x0fffffff", "s_mov_b32 exec_hi, 0x0fffffff"]
    for v in vops:
        o += v
    o += ["s_mov_b64 exec, -1", "s_waitcnt vmcnt(12)"] + signal(ST_K, vM, vOne)
    o += ["@reset", f"{Lb2}:"]
    o += stamp(3)
    o += [f"s_cmp_ge_u32 s{sH}, 14", "!s_cbranch_scc0 L_lwo",
          "s_waitcnt vmcnt(0)"] + signal(ST_V, vM, vOne) + ["s_waitcnt lgkmcnt(0)"] + stamp_flush(20, 0) + ["s_endpgm", "@reset", "L_lwo:"]
    o += srd(sXD, sAO, 401408) + srd(sWD, sBO, 401408)
    o += [f"v_lshrrev_b32 v{t0}, 3, v0", f"s_lshl_b32 s{sT0}, s{sHW}, 3", f"v_add_u32 v{t1}, s{sT0}, v{t0}",
          f"v_mul_u32_u24 v{vWO}, 896, v{t1}",
          f"v_bfe_u32 v{t1}, v0, 2, 1", f"v_bfe_u32 v{t2}, v0, 4, 1", f"v_xor_b32 v{t1}, v{t1}, v{t2}",
          f"v_lshl_add_u32 v{vWO}, v{t1}, 6, v{vWO}", f"v_and_b32 v{t2}, 3, v0", f"v_lshl_add_u32 v{vWO}, v{t2}, 4, v{vWO}",
          f"s_lshl_b32 s{sT0}, s{sHH}, 7", f"v_add_u32 v{vWO}, s{sT0}, v{vWO}"]
    o += ["s_waitcnt vmcnt(0)"] + signal(ST_V, vM, vOne)
    o += stamp(4)
    o += spin_lds_nodrain(E_P3, 4, vF, vM)

    def woa(rho):
        r = []
        for kh in range(2):
            for ii in range(7):
                r += dma(vWO, sXD, (224 * kh + 112 * rho + 16 * ii) * 896, STG + 14336 * kh + 2048 * ii,
                         tag=(f"wa{rho}" if kh == 1 and ii == 6 else None))
        return r
    o += woa(0)
    for ii in range(28):
        o += dma(vWO, sWD, 16 * ii * 896, WOB + 2048 * ii, tag=("wb" if ii == 27 else None))
        if ii == 20:
            o += ["@wait_vm wa0"] + signal(ST_WA1, vM, vOne)
    o += p3_setup()
    o += spin_lds_nodrain(ST_WA1, 2, vF, vM)
    o += woa_read(0) + signal(C_R1, vM, vOne)
    o += ["@wait_vm wb"] + signal(ST_WB, vM, vOne)
    o += spin_lds_nodrain(C_R1, 4, vF, vM)
    o += woa(1)
    o += ["@wait_vm wa1"] + signal(ST_WA2, vM, vOne)
    o += stamp(5)
    o += get_epoch_h()
    o += ["@drain", "s_branch L_p3", "@reset"]
    return o


def get_epoch_h():
    return spin_lds_nodrain(C_EPOCH, 0, vEp, vM, ne0=True)


WA = 128
OF = 64
ACC = 32
BB = 16
vA0, vA1, vA0s, vA1s = 2, 3, 4, 5
vOG, vFl = 6, 7
sKh, sRt, sTT = 75, 64, 65


def p3_setup():
    t0, t1, t2, r, cg = 20, 21, 22, 23, 24
    return [f"s_lshr_b32 s{sKh}, s{sHW}, 1", f"s_and_b32 s{sRt}, s{sHW}, 1",
            f"s_lshl_b32 s{sTT}, s{sRB}, 1", f"s_add_u32 s{sTT}, s{sTT}, s{sPar}", f"s_lshl_b32 s{sTT}, s{sTT}, 1",
            f"s_add_u32 s{sTT}, s{sTT}, s{sRt}",
            f"v_bfe_u32 v{r}, v0, 2, 2", f"v_bfe_u32 v{t0}, v0, 4, 1", f"v_and_b32 v{cg}, 3, v0",
            f"v_lshl_add_u32 v{cg}, v{t0}, 2, v{cg}",
            f"v_lshrrev_b32 v{t0}, 1, v{r}", f"v_xor_b32 v{t0}, s{sKh}, v{t0}",
            f"v_lshlrev_b32 v{t1}, 7, v{r}", f"v_lshl_add_u32 v{t1}, v{t0}, 6, v{t1}",
            f"v_lshl_add_u32 v{vA0s}, v{cg}, 3, v{t1}", f"v_xor_b32 v{vA1s}, 64, v{vA0s}",
            f"v_lshrrev_b32 v{t0}, 5, v0", f"v_lshlrev_b32 v{t0}, 9, v{t0}",
            f"v_add_u32 v{vA0}, v{vA0s}, v{t0}", f"v_add_u32 v{vA1}, v{vA1s}, v{t0}",
            f"s_mul_i32 s{sT0}, s{sKh}, 14336"] + \
           [f"v_add_u32 v{a}, s{sT0}, v{a}" for a in (vA0, vA1, vA0s, vA1s)]


def wo_frag(dst, j, hl, s, base):
    a, asp = (vA0, vA0s) if j == 0 else (vA1, vA1s)
    off = base + (28 * hl + 16 * s) * 128
    return [tr(dst, a, off), tr(dst + 2, asp if s == 1 else a, off + 1024)]


def woa_read(rho):
    o = []
    for hl in range(4):
        for s in range(2):
            for j in range(2):
                o += wo_frag(WA + 64 * j + 8 * (4 * rho + hl) + 4 * s, j, hl, s, STG)
    return o


def poll_flags(fbase, vtmp):
    L = lab('pf')
    return [f"s_mov_b32 s{sT1}, {fbase}", f"!s_mov_b32 s{sTO}, 0", "!s_mov_b64 exec, 0xff", f"!{L}:",
            f"!buffer_load_dword v{vtmp}, v{vFl}, s[{sWSD}:{sWSD+3}], s{sT1} offen sc1",
            f"!s_add_u32 s{sTO}, s{sTO}, 1", f"!s_cmp_gt_u32 s{sTO}, {SPIN}", "!s_cbranch_scc1 L_abort",
            "!s_waitcnt vmcnt(0)", f"!v_cmp_ne_u32 vcc, v{vtmp}, v{vEp}", f"!s_cbranch_vccnz {L}",
            "!s_mov_b64 exec, -1"]


def phase3():
    o = ["@reset", "L_p3:"]
    t0 = 20
    o += [f"s_lshl_b32 s{sT0}, s{sTT}, 1", f"s_add_u32 s{sT0}, s{sT0}, s{sKh}", f"s_lshl_b32 s{sT0}, s{sT0}, 3",
          f"v_add_u32 v{vFl}, s{sT0}, v0", f"v_lshlrev_b32 v{vFl}, 6, v{vFl}",
          f"s_lshl_b32 s{sT0}, s{sT0}, 11", f"v_add_u32 v{vOG}, s{sT0}, v{vL16}"]
    o += spin_lds_nodrain(ST_WA2, 2, vF, vM)
    o += woa_read(1)
    o += spin_lds_nodrain(ST_WB, 2, vF, vM)
    o += stamp(6)
    o += [f"s_mul_i32 s{sT0}, s{sKh}, 14336", f"s_add_u32 s{sT0}, s{sT0}, {WOB}"]
    o += [f"v_add_u32 v{a}, s{sT0}, v{a}" for a in (vA0, vA1, vA0s, vA1s)]

    def oloads(base):
        r = []
        for g in range(4):
            r.append(f"s_mov_b32 s{sT2}, {base + 4096*g}")
            for e in range(4):
                n = 4 * g + e
                r.append(f"buffer_load_dwordx4 v[{OF+4*n}:{OF+4*n+3}], v{vOG}, s[{sWSD}:{sWSD+3}], s{sT2} offen offset:{1024*e} sc1")
        return r
    o += poll_flags(FOB, t0)
    o += stamp(7)
    o += oloads(OB)
    fr = [(n, j) for n in range(16) for j in range(2)]
    rd = lambda i: wo_frag(BB + 4 * (i % 4), fr[i][1], fr[i][0] // 2, fr[i][0] % 2, 0)
    o += rd(0) + rd(1) + rd(2)
    for i, (n, j) in enumerate(fr):
        if i + 3 < len(fr):
            o += rd(i + 3)
        o.append(mfma(ACC + 16 * j, BB + 4 * (i % 4), OF + 4 * n, ACC + 16 * j if n else None))
    o += stamp(8)
    o += poll_flags(FOA, t0)
    o += stamp(9)
    o += oloads(OA)
    for n in range(16):
        for j in range(2):
            o.append(mfma(ACC + 16 * j, WA + 64 * j + 4 * n, OF + 4 * n, ACC + 16 * j))
    def redaddr(dst, sidx):
        return [f"s_mov_b32 s{sT0}, {RED[0]}", f"s_cmp_eq_u32 s{sidx}, 1", f"s_cselect_b32 s{sT0}, {RED[1]}, s{sT0}",
                f"s_cmp_eq_u32 s{sidx}, 2", f"s_cselect_b32 s{sT0}, {RED[2]}, s{sT0}",
                f"s_cmp_eq_u32 s{sidx}, 3", f"s_cselect_b32 s{sT0}, {RED[3]}, s{sT0}",
                f"v_add_u32 v{dst}, s{sT0}, v{vL16}"]
    o += redaddr(vA0, sHW) + [f"s_xor_b32 s{sT1}, s{sHW}, 2"] + redaddr(vA1, sT1)
    o += srd(sXD + 4, sOUT, 1835008)
    sO = sXD + 4
    o += [f"v_and_b32 v8, 31, v0", f"s_lshl_b32 s{sT0}, s{sTT}, 5", f"v_add_u32 v8, s{sT0}, v8",
          f"v_mul_u32_u24 v8, 896, v8", f"v_lshrrev_b32 v9, 5, v0",
          f"v_lshl_add_u32 v8, v9, 4, v8",
          f"s_lshl_b32 s{sT0}, s{sHH}, 1", f"s_add_u32 s{sT0}, s{sT0}, s{sKh}", f"s_lshl_b32 s{sT0}, s{sT0}, 6",
          f"v_add_u32 v8, s{sT0}, v8"]
    o += [f"ds_write_b128 v{vA0}, v[{ACC+16+4*i}:{ACC+16+4*i+3}] offset:{1024*i}" for i in range(4)]
    o += ["s_waitcnt lgkmcnt(0)", "s_barrier"]
    o += [f"ds_read_b128 v[{OF+4*i}:{OF+4*i+3}], v{vA1} offset:{1024*i}" for i in range(4)]
    for p in range(8):
        o += [f"v_add_f32 v{ACC+2*p}, v{ACC+2*p}, v{OF+2*p}", f"v_add_f32 v{ACC+2*p+1}, v{ACC+2*p+1}, v{OF+2*p+1}",
              f"v_cvt_pk_bf16_f32 v{BB+p}, v{ACC+2*p}, v{ACC+2*p+1}"]
    o += [f"v_permlane32_swap_b32 v{BB+x}, v{BB+x+2}" for x in (0, 1, 4, 5)]
    o += [f"buffer_store_dwordx4 v[{BB+4*e}:{BB+4*e+3}], v8, s[{sO}:{sO+3}], 0 offen offset:{32*e}" for e in range(2)]
    if OPT.get('delay'):
        ins = 's_memrealtime' if OPT.get('rt') else 's_memtime'
        o += [f"!{ins} s[44:45]", "!s_waitcnt lgkmcnt(0)", "!L_dly:", f"!{ins} s[46:47]", "!s_waitcnt lgkmcnt(0)",
              "!s_sub_u32 s46, s46, s44", f"!s_cmp_lt_u32 s46, {OPT['delay']}", "!s_cbranch_scc1 L_dly"]
    if OPT.get('until'):
        o += ["!L_dly2:", f"!s_memtime s[46:47]", "!s_waitcnt lgkmcnt(0)",
              "!s_sub_u32 s46, s46, s100", f"!s_cmp_lt_u32 s46, {OPT['until']}", "!s_cbranch_scc1 L_dly2"]
    o += stamp(10)
    if OPT['stamps']:
        o += ["s_waitcnt vmcnt(0)"] + stamp(11)
    o += stamp_flush(20, 0)
    o += ["s_endpgm"]
    return o


def spin_vm(body, cond):
    L = lab('pv')
    o = ["@drain", f"!s_mov_b32 s{sTO}, 0", f"!{L}:"]
    o += ["!" + b for b in body]
    o += [f"!s_add_u32 s{sTO}, s{sTO}, 1", f"!s_cmp_gt_u32 s{sTO}, {SPIN}", "!s_cbranch_scc1 L_abort",
          "!s_waitcnt vmcnt(0)"]
    o += ["!" + c for c in cond]
    o += [f"!s_cbranch_vccnz {L}"]
    return o


def ob_tiles():
    KVr = 16
    o = spin_lds(E_PQ, 4, vF, vM)
    t0, t1 = 24, 25
    o += [f"s_sub_u32 s{sT2}, s{sHW}, 2",
          f"s_lshl_b32 s{sT0}, s{sT2}, 12", f"s_add_u32 s{sT0}, s{sT0}, {PQ}", f"v_add_u32 v{t0}, s{sT0}, v{vL16}",
          f"s_lshl_b32 s{sT0}, s{sT2}, 9", f"s_add_u32 s{sT0}, s{sT0}, {G1}", f"v_lshl_add_u32 v{t1}, v0, 2, s{sT0}"]
    for b in range(2):
        o += [f"ds_read_b128 v[{64+8*b+4*s}:{64+8*b+4*s+3}], v{t0} offset:{2048*b+1024*s}" for s in range(2)]
        o += [f"ds_read_b32 v{26+b}, v{t1} offset:{256*b}"]
    for b in range(2):
        o += [mfma(96 + 16 * b, KVr, 64 + 8 * b, None)]
    for b in range(2):
        o += [mfma(96 + 16 * b, KVr + 4, 64 + 8 * b + 4, 96 + 16 * b)]
    o += [f"s_lshl_b32 s{sT0}, s{sRB}, 1", f"s_add_u32 s{sT0}, s{sT0}, s{sT2}", f"s_lshl_b32 s{sT0}, s{sT0}, 5",
          f"s_add_u32 s{sT0}, s{sT0}, s{sH}",
          f"s_lshl_b32 s40, s{sT0}, 6", f"s_add_u32 s40, s40, {FOB}",
          f"s_lshl_b32 s41, s{sT0}, 11", f"s_add_u32 s41, s41, {OB}",
          f"s_add_u32 s42, s41, {16*2048}",
          f"v_lshrrev_b32 v{vLow}, 5, v0", f"v_add_u32 v{vLow}, -1, v{vLow}",
          f"s_mov_b32 s43, {fhex(1e-6)}"]
    for b in range(2):
        A = 96 + 16 * b
        t, u = 28, 29
        o += [f"v_mov_b32 v{t}, v{A+12}", f"v_mov_b32 v{u}, v{A+12}", f"v_permlane32_swap_b32 v{t}, v{u}",
              f"v_add_f32 v{u}, s43, v{u}", f"v_rcp_f32 v{u}, v{u}", f"v_mul_f32 v{u}, v{u}, v{26+b}",
              f"v_and_b32 v{t}, v{u}, v{vLow}"]
        D = 80 + 8 * b
        for p in range(8):
            sc = u if p < 6 else t
            o += [f"v_mul_f32 v{A+2*p}, v{A+2*p}, v{sc}", f"v_mul_f32 v{A+2*p+1}, v{A+2*p+1}, v{sc}",
                  f"v_cvt_pk_bf16_f32 v{D+p}, v{A+2*p}, v{A+2*p+1}"]
        o += [f"buffer_store_dwordx4 v[{D+4*e}:{D+4*e+3}], v{vL16}, s[{sWSD}:{sWSD+3}], s{41+b} offen offset:{1024*e} sc1" for e in range(2)]
    o += ["s_waitcnt vmcnt(0)", f"v_lshlrev_b32 v{t0}, 10, v0", "s_mov_b64 exec, 3",
          f"buffer_store_dword v{vEp}, v{t0}, s[{sWSD}:{sWSD+3}], s40 offen sc1", "s_mov_b64 exec, -1"]
    return o


def x_wave():
    o = ["@reset", "L_xwave:"]
    o += h_common()
    o += [f"s_cmp_eq_u32 s{sWave}, 7", "!s_cbranch_scc1 L_x1"]
    sDD = 36
    t0, t1, t2 = 20, 21, 22
    o += srd(sDD, sDBG, 256)
    o += [f"v_mov_b32 v{t0}, 0", "s_cmp_eq_u32 s2, 0", "!s_cbranch_scc0 L_x0poll",
          f"s_mov_b32 s{sT0}, {EPW}",
          f"buffer_load_dword v{vEp}, v{t0}, s[{sWSD}:{sWSD+3}], s{sT0} offen sc1",
          f"v_add_u32 v{vEp}, 1, v{vEp}", f"v_max_u32 v{vEp}, 1, v{vEp}",
          "s_mov_b64 exec, 1",
          f"buffer_store_dword v{vEp}, v{t0}, s[{sDD}:{sDD+3}], 0 offen sc1",
          f"buffer_store_dword v{vEp}, v{t0}, s[{sWSD}:{sWSD+3}], s{sT0} offen sc1",
          "s_mov_b64 exec, -1", "s_branch L_x0have", "@reset", "L_x0poll:"]
    o += spin_lds(3, 2, vF, vM)
    o += spin_vm([f"buffer_load_dword v{vEp}, v{t0}, s[{sDD}:{sDD+3}], 0 offen sc1"], [f"v_cmp_eq_u32 vcc, 0, v{vEp}"])
    o += ["@reset", "L_x0have:", f"ds_write_b32 v{vM}, v{vEp} offset:{4*C_EPOCH}"]
    o += stamp(1)
    o += [f"s_mul_i32 s{sT0}, s{sH}, 28", f"s_add_u32 s{sT1}, s{sT0}, 27",
          f"s_lshr_b32 s{sT0}, s{sT0}, 6", f"s_lshr_b32 s{sT1}, s{sT1}, 6", f"s_sub_u32 s{sT1}, s{sT1}, s{sT0}",
          f"v_and_b32 v{t1}, s{sT1}, v0", f"v_add_u32 v{t1}, s{sT0}, v{t1}",
          f"v_lshrrev_b32 v{t2}, 1, v0", f"s_lshl_b32 s{sT0}, s{sRB}, 2", f"s_sub_u32 s{sT0}, s{sT0}, 8",
          f"v_add_u32 v{t2}, s{sT0}, v{t2}",
          f"v_lshl_add_u32 v{t1}, v{t2}, 3, v{t1}", f"v_lshlrev_b32 v{vFl}, 6, v{t1}",
          f"v_cmp_le_i32 s[40:41], 0, v{t2}", f"s_and_b32 s40, s40, 0xffffff", "s_mov_b32 s41, 0"]
    o += spin_lds(E_P2, 4, vF, vM)
    o += [f"v_and_b32 v{t0}, 7, v0", f"v_lshrrev_b32 v{t1}, 3, v0",
          f"v_and_b32 v{t2}, 3, v{t0}", f"v_cmp_eq_u32 vcc, 0, v{t2}",
          f"v_mov_b32 v24, 0x3f803f80", f"v_cndmask_b32 v24, 0, v24, vcc",
          "v_mov_b32 v25, v24", "v_mov_b32 v26, v24", "v_mov_b32 v27, v24",
          f"v_lshrrev_b32 v{t0}, 2, v{t0}", f"v_lshlrev_b32 v{t0}, 9, v{t0}",
          f"v_lshl_add_u32 v{t0}, v{t2}, 4, v{t0}", f"v_lshl_add_u32 v{t0}, v{t1}, 10, v{t0}",
          f"v_add_u32 v{t0}, {VL+448}, v{t0}"]
    o += [f"ds_write_b128 v{t0}, v[24:27] offset:{8192*i}" for i in range(3)]
    o += stamp(2)
    for base, c in ((FK, C_KOK), (FV, C_VOK)):
        o += [f"s_mov_b32 s{sT1}, {base}", "s_mov_b64 exec, s[40:41]"]
        o += spin_vm([f"buffer_load_dword v{t1}, v{vFl}, s[{sWSD}:{sWSD+3}], s{sT1} offen sc1"],
                     [f"v_cmp_ne_u32 vcc, v{t1}, v{vEp}"])
        o += ["s_mov_b64 exec, -1", f"ds_write_b32 v{vM}, v{vOne} offset:{4*c}"]
        o += stamp(3 if c == C_KOK else 4)
    o += spin_lds(C_KVRDY, 0, vF, vM, ne0=True)
    o += [f"v_add_u32 v{t0}, {KVF}, v{vL16}",
          f"ds_read_b128 v[16:19], v{t0}", f"ds_read_b128 v[20:23], v{t0} offset:1024",
          "@drain", "s_branch L_xob", "@reset"]
    o += ["L_x1:"]
    o += spin_lds(C_EPOCH, 0, vEp, vM, ne0=True)
    t0 = 24
    o += [f"v_lshlrev_b32 v{t0}, 3, v0",
          f"s_lshl_b32 s40, s{sH}, 17", f"s_lshl_b32 s{sT0}, s{sRB}, 9", f"s_add_u32 s40, s40, s{sT0}", f"s_add_u32 s40, s40, {KVP}",
          f"s_lshl_b32 s41, s{sH}, 13", f"s_add_u32 s41, s41, {KVT}", f"s_add_u32 s42, s41, s{sT0}"]
    o += spin_lds(OPT.get('kvgate', 17), 2, vF, vM)
    o += stamp(1)

    def tagcheck():
        c = [f"v_xor_b32 v25, v65, v{vEp}"]
        for j in range(1, 16):
            c += [f"v_xor_b32 v26, v{65+2*j}, v{vEp}", "v_or_b32 v25, v25, v26"]
        c += ["v_cmp_ne_u32 vcc, 0, v25"]
        return c
    body = [f"s_mov_b32 s{sT1}, s40"]
    for j in range(16):
        body += [f"buffer_load_dwordx2 v[{64+2*j}:{65+2*j}], v{t0}, s[{sWSD}:{sWSD+3}], s{sT1} offen sc1",
                 f"s_add_u32 s{sT1}, s{sT1}, 8192"]
    o += spin_vm(body, tagcheck())
    o += stamp(2)
    for st in (1, 2, 4, 8):
        for j in range(0, 16, 2 * st):
            o.append(f"v_add_f32 v{64+2*j}, v{64+2*j}, v{64+2*(j+st)}")
    o += [f"buffer_store_dwordx2 v[64:65], v{t0}, s[{sWSD}:{sWSD+3}], s42 offen sc1"]
    body = [f"s_add_u32 s{sT1}, s41, 4096"]
    for j in range(16):
        so = "s41" if j < 8 else f"s{sT1}"
        body += [f"buffer_load_dwordx2 v[{64+2*j}:{65+2*j}], v{t0}, s[{sWSD}:{sWSD+3}], {so} offen offset:{512*(j%8)} sc1"]
    o += ["s_nop 1"] + spin_vm(body, tagcheck())
    o += stamp(3)
    o += [f"v_cvt_pk_bf16_f32 v{16+p}, v{64+4*p}, v{66+4*p}" for p in range(8)]
    o += [f"v_add_u32 v{t0}, {KVF}, v{vL16}",
          f"ds_write_b128 v{t0}, v[16:19]", f"ds_write_b128 v{t0}, v[20:23] offset:1024",
          f"ds_write_b32 v{vM}, v{vOne} offset:{4*C_KVRDY}", "@drain", "@reset"]
    o += ["L_xob:"]
    o += ob_tiles()
    o += stamp(5)
    o += [f"s_cmp_ge_u32 s{sH}, 14", "!s_cbranch_scc0 L_xp3"] + stamp_flush(20, 0) + ["s_endpgm", "@reset", "L_xp3:"]
    o += p3_setup()
    o += spin_lds_nodrain(ST_WA1, 2, vF, vM)
    o += woa_read(0) + signal(C_R1, vM, vOne)
    o += ["@drain"]
    return o


HEADER = f"""; Fused sliding-window attention + linear attention + gated output projection (gfx950).
; @launch grid=(256,1,1) block=(512,1,1) lds=163840
.amdgcn_target "amdgcn-amd-amdhsa--gfx950"
.text
.globl {NAME}_kernel
.p2align 8
.type {NAME}_kernel,@function
{NAME}_kernel:
"""
FOOTER = f"""
.section .rodata,"a"
.p2align 6
.amdhsa_kernel {NAME}_kernel
  .amdhsa_next_free_vgpr 256
  .amdhsa_next_free_sgpr 102
  .amdhsa_accum_offset 256
  .amdhsa_group_segment_fixed_size 0
  .amdhsa_kernarg_size 80
  .amdhsa_user_sgpr_count 2
  .amdhsa_user_sgpr_kernarg_segment_ptr 1
  .amdhsa_system_sgpr_workgroup_id_x 1
.end_amdhsa_kernel
"""


def main():
    global sKD
    sKD = 8
    body = prologue()
    c = c_wave()
    SLEEP[0] = OPT.get('sleep', 0)
    l = l_wave()
    x = x_wave()
    p3 = phase3()
    rep = []
    lines = finalize(body + c + l + x + p3, rep)
    lines += ['    ' + s if not s.endswith(':') else s for s in slow]
    lines += ["L_abort:", "L_exit:", "    s_endpgm", "L_end:"]
    open(sys.argv[1], 'w').write(HEADER + "\n".join(lines) + FOOTER)
    big = [r for r in rep if r[0] >= 3]
    print("nops inserted:", len(rep), "total states", sum(r[0] for r in rep))
    for r in big:
        print("   ", r)


main()
```

```python
import sys, math, struct
from asmlib import finalize, merge

NAME = "gated_mix__sliding_block__linear_attn_block__prompt"
OPT = dict(stamps=0, l1=14, l3=10, prefetch=3, touch=0, refetch=0, wopf=0)
for a in sys.argv[2:]:
    k, v = a.split('=')
    OPT[k] = int(v)


def fhex(x):
    return '0x%08x' % struct.unpack('<I', struct.pack('<f', x))[0]


LOG2E = math.log2(math.e)
KSCALE = LOG2E * 28 ** -0.5
SPIN = 60000

def XR(c): return 16384 * (c % 4)
def WR(c): return 65536 + 16384 * (c % 4)
QLOC = [131072 + 4096 * c for c in range(6)] + [114688] + [114688 + 4096 * c for c in (1, 2, 3)] + [49152 + 4096 * c for c in range(4)]
QBB = 114688
KL = 65536
VL = KL + 24576
STQ, STV, STK = 0, 16384, 32768
STG, STGS = 16384, 14336
WBA, WBAS = 114688, 21504
WBB, WBBS = 45056, 7168
MISC = 158720
LANDC = MISC + 256
JUNK = MISC + 512
GL = MISC + 1536
KVF = MISC + 2560
E_PA, X_PUB, E_P2, E_P3, R_K, R_V, R_Q, E_OA, F_K, F_V, R1, GRDY, KVRDY, EPOCH = range(14)
ST_K, ST_V, ST_WA1, ST_WB, ST_WA2 = 21, 22, 23, 24, 25

KG, VG, OA, OB, KVP, KVT = 0x000000, 0x200000, 0x400000, 0x600000, 0x800000, 0xA00000
FK, FV, N1, N2, NA, NB, EPW = 0xA40000, 0xA48000, 0xA50000, 0xA52000, 0xA54000, 0xA58000, 0xA70000
STAMPS = 0xB00000
WS_SIZE = 0x1000000

sX, sAW, sAO, sBW, sBO, sGW, sOUT, sDBG, sWS = 4, 6, 8, 12, 14, 16, 18, 20, 22
sWave, sH, sRB, sPar, sHH = 24, 25, 26, 27, 28
sT0, sT1, sT2, sTO = 29, 30, 31, 3
sZ = 74
sWSD = 32
sStamp = 76
sJ3, sCT, sTB = 100, 10, 11
sW4 = 101

_lab = [0]
slow = []
ROLE = ['P']
SLEEP = [0]
vL16, vM, vOne, vF, vMs = 1, 10, 11, 12, 13
vFq = 252


def lab(p):
    _lab[0] += 1
    return f"L_{p}_{_lab[0]}"


def srd(d, ptr, size, add=0):
    o = []
    if add:
        o += [f"s_add_u32 s{d}, s{ptr}, {add}", f"s_addc_u32 s{d+1}, s{ptr+1}, 0"]
    else:
        o += [f"s_mov_b32 s{d}, s{ptr}", f"s_mov_b32 s{d+1}, s{ptr+1}"]
    o += [f"s_mov_b32 s{d+2}, {size}", f"s_mov_b32 s{d+3}, 0x20000"]
    return o


def stamp(i, kind=''):
    if not OPT['stamps']:
        return []
    alt = OPT.get('alt', 0)
    if kind == 'z':
        return [f"!s_memtime s[{sStamp+2*i}:{sStamp+2*i+1}]"] if alt == 5 else []
    if ROLE[0] == 'L' and (alt == 1) != (kind == 'f'):
        return []
    if kind == 'z':
        return [f"!s_memtime s[{sStamp+2*i}:{sStamp+2*i+1}]"] if alt == 5 else []
    if ROLE[0] == 'H' and alt in (1, 3, 4, 5):
        return []
    if kind == 'y' and alt != 4:
        return []
    if kind == 'x' and alt != 3:
        return []
    if ROLE[0] == 'C' and (alt == 2) != (kind == 'f'):
        return []
    return [f"!s_memtime s[{sStamp+2*i}:{sStamp+2*i+1}]"]


def stamp_flush(vt, vlane):
    if not OPT['stamps']:
        return []
    o = ["s_mov_b64 exec, -1", "s_waitcnt lgkmcnt(0)", f"v_mov_b32 v{vt}, 0"]
    for i in range(12):
        o.append(f"v_writelane_b32 v{vt}, s{sStamp+2*i}, {i}")
    o += [f"s_lshl_b32 s{sT0}, s2, 3", f"s_add_u32 s{sT0}, s{sT0}, s{sWave}", f"s_lshl_b32 s{sT0}, s{sT0}, 8",
          f"s_add_u32 s{sT0}, s{sT0}, {STAMPS}",
          f"v_lshlrev_b32 v{vt+1}, 2, v{vlane}",
          f"buffer_store_dword v{vt}, v{vt+1}, s[{sWSD}:{sWSD+3}], s{sT0} offen"]
    return o


def _tmo():
    return [f"s_add_u32 s{sTO}, s{sTO}, 1", f"s_cmp_gt_u32 s{sTO}, {SPIN}", "s_cbranch_scc1 L_abort"]


def _ev_read(ev, which, q):
    if which == 'all':
        return [f"ds_read_b128 v[{q}:{q+3}], v{vM} offset:{16*ev}"], \
               [f"v_min3_u32 v{q}, v{q}, v{q+1}, v{q+2}", f"v_min_u32 v{q}, v{q}, v{q+3}"]
    if which in ('hi', 'lo'):
        return [f"ds_read_b64 v[{q}:{q+1}], v{vM} offset:{16*ev + (8 if which == 'hi' else 0)}"], \
               [f"v_min_u32 v{q}, v{q}, v{q+1}"]
    if which == 'own':
        return [f"ds_read_b32 v{q}, v{vOwn} offset:{16*ev}"], []
    return [f"ds_read_b32 v{q}, v{vM} offset:{16*ev + 4*which}"], []


def spin_ev(ev, which, q=None, ge=1):
    q = vFq if q is None else q
    L, L2 = lab('sp'), lab('spx')
    rd, red = _ev_read(ev, which, q)
    o = ["s_waitcnt lgkmcnt(0)", f"!s_mov_b32 s{sTO}, 0", f"!{L}:"]
    o += ["!" + x for x in rd + _tmo() + ["s_waitcnt lgkmcnt(0)"] + red]
    if SLEEP[0]:
        o += [f"!v_cmp_le_u32 vcc, {ge}, v{q}", f"!s_cbranch_vccnz {L2}", f"!!s_sleep {SLEEP[0]}", f"!!s_branch {L}", f"!{L2}:"]
    else:
        o += [f"!v_cmp_gt_u32 vcc, {ge}, v{q}", f"!s_cbranch_vccnz {L}"]
    return o


def check_ev(ev, which, q):
    Ls, Lb = lab('slow'), lab('back')
    rd, red = _ev_read(ev, which, q)
    slow.extend([f"{Ls}:", f"s_mov_b32 s{sTO}, 0", f"{Ls}_s:"] + rd + _tmo() + ["s_waitcnt lgkmcnt(0)"] + red +
                [f"v_cmp_eq_u32 vcc, 0, v{q}", f"s_cbranch_vccnz {Ls}_s", f"s_branch {Lb}"])
    return rd, red + [f"v_cmp_eq_u32 vcc, 0, v{q}", f"!s_cbranch_vccnz {Ls}", f"!{Lb}:"]


def wait_land(st, q=None, inline=False):
    q = vFq if q is None else q
    rd = f"ds_read_b32 v{q}, v{vM} offset:{256 + 4*st}"
    if inline:
        L, L2 = lab('wl'), lab('wlx')
        o = ["s_waitcnt lgkmcnt(0)", f"!s_mov_b32 s{sTO}, 0", f"!{L}:"] + ["!" + x for x in [rd] + _tmo() + ["s_waitcnt lgkmcnt(0)"]]
        if SLEEP[0]:
            return o + [f"!v_cmp_eq_u32 vcc, 2, v{q}", f"!s_cbranch_vccnz {L2}", f"!!s_sleep {SLEEP[0]}", f"!!s_branch {L}", f"!{L2}:"]
        return o + [f"!v_cmp_ne_u32 vcc, 2, v{q}", f"!s_cbranch_vccnz {L}"]
    Ls, Lb = lab('slow'), lab('back')
    slow.extend([f"{Ls}:", f"s_mov_b32 s{sTO}, 0", f"{Ls}_s:", rd] + _tmo() +
                ["s_waitcnt lgkmcnt(0)", f"v_cmp_ne_u32 vcc, 2, v{q}", f"s_cbranch_vccnz {Ls}_s", f"s_branch {Lb}"])
    return [rd], [f"v_cmp_ne_u32 vcc, 2, v{q}", f"!s_cbranch_vccnz {Ls}", f"!{Lb}:"]


vMl = 12


def land(st):
    return [f"ds_add_u32 v{vMl}, v{vOne} offset:{4*st}"]


def signal(ev):
    return [f"ds_add_u32 v{vMs}, v{vOne} offset:{16*ev}"]


def mfma(d, a, b, c):
    cs = f"v[{c}:{c+15}]" if isinstance(c, int) and c >= 0 else "0"
    return f"v_mfma_f32_32x32x16_bf16 v[{d}:{d+15}], v[{a}:{a+3}], v[{b}:{b+3}], {cs}"


def tr(d, a, off, tag=None):
    return f"ds_read_b64_tr_b16 v[{d}:{d+1}], v{a} offset:{off}" + (f" ;@tag={tag}" if tag else "")


vOwn = 9


def common_setup():
    return [f"v_lshlrev_b32 v{vL16}, 4, v0", f"v_mov_b32 v{vM}, {MISC}", f"v_mov_b32 v{vOne}, 1",
            f"s_and_b32 s{sW4}, s{sWave}, 3",
            f"v_lshlrev_b32 v{vMs}, 2, v0", f"v_add_u32 v{vMs}, {JUNK}, v{vMs}",
            f"s_lshl_b32 s{sT0}, s{sW4}, 2", f"s_add_u32 s{sT0}, s{sT0}, {MISC}",
            f"v_writelane_b32 v{vMs}, s{sT0}, 0"]


def prologue():
    o = []
    o += ["s_load_dwordx4 s[4:7], s[0:1], 0", "s_load_dwordx8 s[12:19], s[0:1], 32",
          "s_load_dwordx4 s[20:23], s[0:1], 64", "s_load_dwordx2 s[8:9], s[0:1], 16"]
    o += stamp(0)
    if OPT.get('until'):
        o += ["!s_memtime s[98:99]"]
    o += ["s_cmp_ge_u32 s2, 256", "!s_cbranch_scc1 L_exit",
          "v_lshrrev_b32 v1, 6, v0", "v_and_b32 v0, 63, v0",
          f"v_readfirstlane_b32 s{sWave}, v1",
          f"s_and_b32 s{sT0}, s2, 7", f"s_lshr_b32 s{sT1}, s2, 3",
          f"s_and_b32 s{sH}, s{sT0}, 1", f"s_lshl_b32 s{sH}, s{sH}, 3",
          f"s_and_b32 s{sT2}, s{sT1}, 7", f"s_add_u32 s{sH}, s{sH}, s{sT2}",
          f"s_lshr_b32 s{sRB}, s{sT0}, 1", f"s_lshl_b32 s{sRB}, s{sRB}, 2",
          f"s_lshr_b32 s{sT2}, s{sT1}, 3", f"s_add_u32 s{sRB}, s{sRB}, s{sT2}",
          f"s_and_b32 s{sPar}, s{sH}, 1", f"s_lshr_b32 s{sHH}, s{sH}, 1",
          f"s_and_b32 s{sT0}, s2, 1", f"s_xor_b32 s{sZ}, s{sPar}, s{sT0}", f"s_xor_b32 s{sZ}, s{sZ}, 1"]
    o += common_setup()
    o += [f"s_cmp_lt_u32 s{sWave}, 4", "!s_cbranch_scc1 L_cwave",
          f"s_cmp_ge_u32 s{sWave}, 6", "!s_cbranch_scc1 L_xwave"]
    return o


vXA, vW0, vW1, vQB, vQA, vLow, vSt = 2, 6, 7, 8, 9, 14, 15
PK = 16
WB = 32
MK = 56
accA, accB = 64, 96
XF = 128
QF = 240
vMA, vMB = 248, 249
TMP = 250
sMask = 40
sL2E, sEps, sKS, sTile, sSt = 72, 73, 39, 75, 36


def c_setup():
    o = []
    lo, hh, t0, t1, t2 = 20, 21, 22, 23, 24
    o += [f"v_and_b32 v{lo}, 31, v0", f"v_lshrrev_b32 v{hh}, 5, v0",
          f"s_lshl_b32 s{sTile}, s{sRB}, 2", f"s_add_u32 s{sTile}, s{sTile}, s{sWave}",
          f"s_mov_b32 s{sL2E}, {fhex(LOG2E)}", f"s_mov_b32 s{sEps}, {fhex(1e-6)}", f"s_mov_b32 s{sKS}, {fhex(KSCALE)}"]
    o += [f"v_bfe_u32 v{t0}, v0, 1, 3", f"v_xor_b32 v{t0}, v{t0}, v{hh}",
          f"s_lshl_b32 s{sT0}, s{sWave}, 12",
          f"v_add_u32 v{vSt}, s{sT0}, v{vL16}",
          f"v_lshlrev_b32 v{t1}, 7, v{lo}", f"v_add_u32 v{t1}, s{sT0}, v{t1}"]
    for s in range(4):
        o += [f"v_xor_b32 v{t2}, {2*s}, v{t0}", f"v_lshl_add_u32 v{vXA+s}, v{t2}, 4, v{t1}"]
    r, cg, row = 25, 26, 27
    o += [f"v_bfe_u32 v{r}, v0, 2, 2", f"v_bfe_u32 v{t0}, v0, 4, 1", f"v_and_b32 v{cg}, 3, v0",
          f"v_lshl_add_u32 v{cg}, v{t0}, 2, v{cg}",
          f"v_lshl_add_u32 v{row}, v{hh}, 3, v{r}"]
    o += [f"v_lshrrev_b32 v{t0}, 1, v{r}",
          f"v_lshlrev_b32 v{t1}, 7, v{row}", f"v_add_u32 v{t1}, 65536, v{t1}",
          f"v_lshl_add_u32 v{vW0}, v{t0}, 6, v{t1}",
          f"v_xor_b32 v{vW1}, 64, v{vW0}",
          f"v_lshl_add_u32 v{vW0}, v{cg}, 3, v{vW0}",
          f"s_xor_b32 s{sT0}, s{sZ}, 1",
          f"v_add_u32 v{t2}, s{sT0}, v{cg}", f"v_and_b32 v{t2}, 7, v{t2}",
          f"v_lshl_add_u32 v{vW1}, v{t2}, 3, v{vW1}"]
    o += [f"v_lshlrev_b32 v{t1}, 6, v{row}",
          f"v_add_u32 v{t2}, s{sPar}, v{cg}", f"v_and_b32 v{t2}, 7, v{t2}",
          f"v_lshl_add_u32 v{vQB}, v{t2}, 3, v{t1}", f"v_add_u32 v{vQB}, {QBB}, v{vQB}",
          f"v_and_b32 v{t0}, 1, v{cg}", f"v_lshlrev_b32 v{t0}, 1, v{t0}",
          f"v_bfe_u32 v{t2}, v{cg}, 1, 1", f"v_or_b32 v{t0}, v{t0}, v{t2}",
          f"v_and_b32 v{t2}, 4, v{cg}", f"v_or_b32 v{t0}, v{t0}, v{t2}",
          f"v_lshl_add_u32 v{vQA}, v{t0}, 3, v{t1}", f"v_add_u32 v{vQA}, {QBB}, v{vQA}"]
    o += [f"v_add_u32 v{vLow}, -1, v{hh}",
          f"s_sub_u32 s{sT0}, s{sPar}, 1",
          f"v_not_b32 v{t0}, v{vLow}",
          f"v_or_b32 v{vMA}, s{sT0}, v{t0}",
          f"s_not_b32 s{sT0}, s{sT0}",
          f"v_or_b32 v{vMB}, s{sT0}, v{vLow}"]
    o += [f"v_lshlrev_b32 v{t0}, 2, v{hh}", f"v_sub_u32 v{t0}, v{lo}, v{t0}"]
    for rr in range(16):
        b = 8 * (rr >> 2) + (rr & 3)
        o.append(f"v_cmp_le_i32 s[{sMask+2*rr}:{sMask+2*rr+1}], {b}, v{t0}")
    o += [f"v_mov_b32 v{t1}, 0xffff", f"v_mov_b32 v{t2}, 0xffff0000"]
    for p in range(8):
        o += [f"v_cndmask_b32 v{MK+p}, 0, v{t1}, s[{sMask+4*p}:{sMask+4*p+1}]",
              f"v_cndmask_b32 v{t0}, 0, v{t2}, s[{sMask+4*p+2}:{sMask+4*p+3}]",
              f"v_or_b32 v{MK+p}, v{MK+p}, v{t0}"]
    return o


def gemm_frags(isY):
    fr = []
    for k in range(28):
        c, s = divmod(k, 4)
        order = [(0, 0), (0, 1), (1, 0), (1, 1)] if k < 27 else [(1, 0), (1, 1), (0, 0), (0, 1)]
        for i, (p, j) in enumerate(order):
            fr.append(dict(step=c, addr=(vW0, vW1)[j], off=XR(c) + 8192 * p + s * 2048, du=512, k=k,
                           acc=(accA, accB)[p] + 16 * j, wfirst=(p == 0 and not isY), pre=[],
                           xread=(f"ds_read_b128 v[{XF+4*k}:{XF+4*k+3}], v{vXA+s} offset:{XR(c)}" if i == 0 else None)))
    for q, a in enumerate((vQB, vQA)):
        for k in range(28):
            c, s = divmod(k, 4)
            loc = QLOC[7 * q + c]
            base = QBB if loc >= QBB else 49152
            pre = [f"v_subrev_u32 v{vQA}, {QBB-49152}, v{vQA}"] if (q, k) == (1, 12) else []
            fr.append(dict(step=7 + 7 * q + c, addr=a, off=loc - base + s * 1024, du=256, k=k,
                           acc=accB + 16 * q, wfirst=True, pre=pre, xread=None))
    return fr


def need_step(st):
    if st < 7:
        return st
    base = 7 if st < 14 else 14
    return base + {0: 0, 1: 2, 2: 2, 3: 4, 4: 4, 5: 6, 6: 6}[st - base]


def gemm_slots(isY):
    fr = gemm_frags(isY)
    N = len(fr)
    D = 5
    slots = []
    issued = 0
    checked = set()
    early = {}
    for n in range(N):
        cur = []
        f = fr[n]
        lim = 3 if n == 0 else min(n + D, N - 1)
        while issued <= lim:
            g = fr[issued]
            st = need_step(g['step'])
            if st not in checked:
                checked.add(st)
                if st == 0:
                    cur += wait_land(st, inline=True) + stamp(1)
                else:
                    cur += early[st]
            b = WB + 4 * (issued % 6)
            cur += g['pre']
            if g['xread']:
                cur.append(g['xread'])
            cur += [tr(b, g['addr'], g['off']), tr(b + 2, g['addr'], g['off'] + g['du'], tag=f"f{issued}")]
            issued += 1
            last_of_step = issued == N or fr[issued]['step'] != g['step']
            if last_of_step:
                ev = {0: E_PA, 1: E_PA, 2: E_PA, 3: E_PA, 6: E_P2, 20: E_P3}.get(g['step'])
                if ev is not None:
                    cur += signal(ev)
        if issued + 1 < N:
            st = need_step(fr[issued + 1]['step'])
            if st > 0 and st not in early:
                rd, early[st] = wait_land(st, q=vFq + 2)
                cur += rd
        if n % 2 == 0:
            cur.append(f"@wait_ds f{n+1}")
        b = WB + 4 * (n % 6)
        x = XF + 4 * f['k']
        A, B = (b, x) if f['wfirst'] else (x, b)
        cur.append(mfma(f['acc'], A, B, f['acc'] if f['k'] else None))
        slots.append(cur)
    if OPT.get('alt') == 2:
        for i in range(11):
            n = OPT['cst'] + i * OPT.get('cstep', 4)
            if n < len(slots):
                slots[n] = stamp(i + 1, 'f') + slots[n]
    return slots


def phi_pair(a, b, ta, tb, dst, l2e, eps):
    return [f"v_mul_f32 v{ta}, s{l2e}, v{a}", f"v_mul_f32 v{tb}, s{l2e}, v{b}",
            f"v_exp_f32_e64 v{ta}, v{ta} clamp", f"v_exp_f32_e64 v{tb}, v{tb} clamp",
            f"v_max_f32 v{a}, 0, v{a}", f"v_max_f32 v{b}, 0, v{b}",
            f"v_add_f32 v{a}, v{a}, v{ta}", f"v_add_f32 v{b}, v{b}, v{tb}",
            f"v_add_f32 v{a}, s{eps}, v{a}", f"v_add_f32 v{b}, s{eps}, v{b}",
            f"v_cvt_pk_bf16_f32 v{dst}, v{a}, v{b}"]


def c_gemm(isY):
    slots = gemm_slots(isY)
    pa, p3a, p3b = slots[:112], slots[112:140], slots[140:168]
    o = []
    for s in pa:
        o += s
    o += stamp(2)
    wr = lambda d, i, base: f"ds_write_b128 v{vSt}, v[{d}:{d+3}] offset:{base + 1024*i}"
    vc = lambda j: [f"v_cvt_pk_bf16_f32 v{PK+8*j+i}, v{accB+16*j+2*i}, v{accB+16*j+2*i+1}" for i in range(8)]
    vw = [wr(PK + 4 * i, i, STV) for i in range(4)]
    o += vc(0)
    if not isY:
        f = []
        for j in range(2):
            a = accA + 16 * j
            for i in range(8):
                f += [f"v_mul_f32 v{a+2*i}, s{sKS}, v{a+2*i}", f"v_mul_f32 v{a+2*i+1}, s{sKS}, v{a+2*i+1}",
                      f"v_cvt_pk_bf16_f32 v{a+i}, v{a+2*i}, v{a+2*i+1}"]
            f += [f"v_permlane32_swap_b32 v{a+x}, v{a+x+2}" for x in (0, 1, 4, 5)]
            f += [wr(a + 4 * e, 2 * j + e, STK) for e in range(2)]
        f += signal(R_K) + vc(1) + vw + signal(R_V)
        per = OPT.get('kper', 40)
    else:
        f = vc(1) + vw + signal(R_V)
        for p in range(16):
            a = accA + 16 * (p // 8)
            i = p % 8
            f += phi_pair(a + 2 * i, a + 2 * i + 1, TMP, TMP + 1, a + i, sL2E, sEps)
            if p % 4 == 3:
                f.append(wr(a + i - 3, p // 4, STK))
        f += signal(R_K)
        per = OPT.get('yper', 40)
    o += merge(p3a, f, start=0, per=per)
    o += stamp(4)
    f = [f"v_cvt_pk_bf16_f32 v{PK+i}, v{accB+2*i}, v{accB+2*i+1}" for i in range(8)]
    f += [wr(PK, 0, STQ), wr(PK + 4, 1, STQ)] + signal(R_Q)
    o += merge(p3b, f, start=4, per=2)
    o += stamp(5)
    a = accB + 16
    o += [f"v_cvt_pk_bf16_f32 v{QF+i}, v{a+2*i}, v{a+2*i+1}" for i in range(8)]
    o += [f"v_and_b32 v{QF}, v{QF}, v{vMA}", f"v_and_b32 v{QF+1}, v{QF+1}, v{vMA}",
          f"v_and_b32 v{QF+6}, v{QF+6}, v{vMB}", f"v_and_b32 v{QF+7}, v{QF+7}, v{vMB}"]
    return o


CM, SA, SB, SC, SF, SX = 16, 32, 64, 80, 96, 112
KFR = 128
PA, PB, PF = 200, 208, 216
OACC = 96
VF = (224, 232)
vKA, vVA, vMx, vG = 2, 3, 4, 5
NEG = '0xf149f2ca'


def attention(guard):
    sI0 = sSt
    o = []

    def kread(i):
        b = KFR + 8 * i
        return [f"ds_read_b128 v[{b+4*s}:{b+4*s+3}], v{vKA} offset:{2048*i+1024*s} ;@tag=k{i}" for s in range(2)]

    def vread(i, buf):
        return [f"ds_read_b128 v[{buf+4*s}:{buf+4*s+3}], v{vVA} offset:{2048*i+1024*s} ;@tag=v{i}" for s in range(2)]

    def qk(d, i, c):
        b = KFR + 8 * i
        return [mfma(d, b, QF, c), mfma(d, b + 4, QF + 4, d)]

    def setc(i, src):
        L = lab('g')
        return [f"s_cmp_lg_u32 s{sI0}, {i}", f"!s_cbranch_scc1 {L}", "!!s_nop 7"] + \
               [f"!!v_mov_b32 v{CM+r}, {src}" for r in range(16)] + ["!!s_nop 1", f"!{L}:"]

    def maxes(s, first):
        m = []
        if first:
            m.append(f"v_max3_f32 v{vMx}, v{s}, v{s+1}, v{s+2}")
            rest = list(range(3, 16))
        else:
            rest = list(range(16))
        while rest:
            if len(rest) >= 2:
                m.append(f"v_max3_f32 v{vMx}, v{vMx}, v{s+rest[0]}, v{s+rest[1]}")
                rest = rest[2:]
            else:
                m.append(f"v_max_f32 v{vMx}, v{vMx}, v{s+rest[0]}")
                rest = []
        return m

    C1 = CM if guard else None
    if guard:
        o += [f"v_mov_b32 v{CM+r}, {NEG}" for r in range(16)]
    o += wait_land(ST_K, inline=True)
    o += stamp(6)
    order = [0, 1, 2, 3, 4, 5, 6, 7, 8] if guard else [0, 8, 1, 2, 3, 4, 5, 6, 7]
    b1 = {0: SF, 8: SC}
    bufs = {}
    for i in range(1, 8):
        b1[i] = (SA, SB, SX)[i % 3]
        bufs[i] = (SA, SB)[i % 2]
    mrg = [f"v_cndmask_b32 v{SC+r}, v{SF+r}, v{SC+r}, s[{sMask+2*r}:{sMask+2*r+1}]" for r in range(16)]
    work = {}
    for i in range(1, 8):
        work[i] = maxes(b1[i], first=(guard and i == 1))
    work[8] = mrg + maxes(SC, first=not guard)
    work[0] = []
    o += kread(order[0]) + kread(order[1]) + kread(order[2])
    q = []
    for n, i in enumerate(order):
        if guard:
            o += setc(i, "0")
        m = qk(b1[i], i, C1)
        nxt = kread(order[n + 3]) if n + 3 < 9 else []
        take = 4 if len(q) <= 12 else 6
        o += [f"@wait_ds k{i}", m[0]] + q[:take] + [m[1]] + nxt
        q = q[take:]
        if n >= 1:
            q = q + work[order[n - 1]]
        must = len(q) - len(work[order[n - 1]]) if n >= 1 else 0
        take = max(must, 4 if len(q) <= 12 else 6)
        o += q[:take]
        q = q[take:]
    vrd, vchk = wait_land(ST_V)
    o += vrd + q + work[order[-1]][:4] + vchk
    o += vread(0, VF[0]) + vread(8, VF[1])
    o += work[order[-1]][4:]
    t = TMP
    o += [f"v_mov_b32 v{t}, v{vMx}", f"v_permlane32_swap_b32 v{t}, v{vMx}",
          f"v_max_f32 v{vMx}, v{vMx}, v{t}", f"v_sub_f32 v{vMx}, 0, v{vMx}"]
    o += stamp(7)
    if guard:
        o += [f"v_mov_b32 v{CM+r}, {NEG}" for r in range(16)]
        o += setc(1, f"v{vMx}")
    else:
        o += [f"v_mov_b32 v{CM+r}, v{vMx}" for r in range(16)]

    def expcvt(s, p, sub):
        e = []
        for r in range(16):
            if sub:
                e.append(f"v_add_f32 v{s+r}, v{s+r}, v{vMx}")
        for r in range(16):
            e.append(f"v_exp_f32 v{s+r}, v{s+r}")
            if r % 2 == 1 and r >= 3:
                e.append(f"v_cvt_pk_bf16_f32 v{p+(r-3)//2}, v{s+r-3}, v{s+r-2}")
        e.append(f"v_cvt_pk_bf16_f32 v{p+7}, v{s+14}, v{s+15}")
        return e

    def spread(mf, va):
        r = []
        n = len(mf)
        k = 0
        for idx, g in enumerate(mf):
            r += g
            want = (len(va) * (idx + 1)) // n - k
            r += va[k:k + want]
            k += want
        return r

    ev = expcvt(SC, PA, True)
    ev += [x for p in range(8) for x in (f"v_and_b32 v{PB+p}, v{PA+p}, v{MK+p}", f"v_xor_b32 v{PF+p}, v{PA+p}, v{PB+p}")]
    q1 = qk(bufs[1], 1, CM)
    o += spread([[q1[0]], [q1[1]]], ev)
    prev_pv = [["@wait_ds v8", mfma(OACC, VF[0], PF, None)], [mfma(OACC, VF[0] + 4, PF + 4, OACC)] + vread(1, VF[0]),
               [mfma(OACC, VF[1], PB, OACC)], [mfma(OACC, VF[1] + 4, PB + 4, OACC)] + vread(2, VF[1])]
    gearly, glate = check_ev(GRDY, 'own', vG)
    for i in range(1, 8):
        P = (PB, PA)[i % 2]
        seq = []
        if i + 1 <= 7:
            if guard:
                o += setc(i + 1, f"v{vMx}")
            nq = qk(bufs[i + 1], i + 1, CM)
            seq += [[nq[0]], [nq[1]]]
        seq += prev_pv
        if i == 6:
            seq[-1] = seq[-1] + gearly
        if i == 7:
            seq[0] = glate + [f"ds_read_b32 v{vG}, v{vGA}", f"ds_read_b32 v{vEc}, v{vM} offset:{16*EPOCH}"] + seq[0]
        o += spread(seq, expcvt(bufs[i], P, False))
        vb = VF[(i + 1) % 2]
        prev_pv = [[f"@wait_ds v{i}", mfma(OACC, vb, P, OACC)],
                   [mfma(OACC, vb + 4, P + 4, OACC)] + (vread(i + 2, vb) if i + 2 <= 7 else [])]
    o += prev_pv[0] + prev_pv[1]
    return o


vGA, vEc = 8, 6


def finish_o(A, D, vscale, t, u, soff, vtag, snot, eps=None):
    o = [f"v_mov_b32 v{t}, v{A+15}", f"v_mov_b32 v{u}, v{A+15}", f"v_permlane32_swap_b32 v{t}, v{u}"]
    if eps is not None:
        o += [f"v_add_f32 v{u}, s{eps}, v{u}"]
    o += [f"v_rcp_f32 v{u}, v{u}", f"v_mov_b32 v{t}, 0xffff", f"v_mul_f32 v{u}, v{u}, v{vscale}"]
    for p in range(8):
        o += [f"v_mul_f32 v{A+2*p}, v{A+2*p}, v{u}"]
        if p % 4 != 3:
            o += [f"v_mul_f32 v{A+2*p+1}, v{A+2*p+1}, v{u}"]
        o += [f"v_cvt_pk_bf16_f32 v{D+p}, v{A+2*p}, v{A+2*p+1}"]
        if p % 4 == 3:
            e = p // 4
            o += [f"v_bfi_b32 v{D+p}, v{t}, v{D+p}, v{vtag}",
                  f"buffer_store_dwordx4 v[{D+4*e}:{D+4*e+3}], v{vL16}, s[{sWSD}:{sWSD+3}], s{soff} offen offset:{1024*e} sc1"]
    return o + notify(snot, t, vtag)


def c_tail():
    o = finish_o(OACC, PA, vG, TMP, TMP + 1, sSt + 1, vEc, sSt + 2)
    o += signal(E_OA)
    o += stamp(8)
    o += stamp_flush(TMP, 0)
    o += ["s_endpgm"]
    return o


def c_wave():
    ROLE[0] = 'C'
    o = ["@reset", "L_cwave:"]
    o += ["v_lshlrev_b32 v20, 3, v0", "v_mov_b32 v22, 0", "v_mov_b32 v23, 0", f"v_add_u32 v20, {MISC}, v20", "ds_write_b64 v20, v[22:23]",
          ]
    o += code_prefetch()
    o += c_setup()
    o += ["s_waitcnt lgkmcnt(0)", "s_barrier"]
    o += srd(sWSD, sWS, WS_SIZE)
    o += [f"s_cmp_eq_u32 s{sZ}, 0", "!s_cbranch_scc1 L_cY"]
    o += c_gemm(False)
    o += ["s_branch L_attn", "@reset", "L_cY:"]
    o += c_gemm(True)
    o += ["L_attn:", f"s_setprio {OPT.get('cprio', 0)}"]
    o += [f"s_lshl_b32 s{sT0}, s{sWave}, 11",
          f"s_add_u32 s{sT1}, s{sT0}, {KL}", f"v_add_u32 v{vKA}, s{sT1}, v{vL16}",
          f"s_add_u32 s{sT1}, s{sT0}, {VL}", f"v_add_u32 v{vVA}, s{sT1}, v{vL16}",
          f"s_lshl_b32 s{sT0}, s{sWave}, 8", f"s_add_u32 s{sT0}, s{sT0}, {GL}", f"v_lshl_add_u32 v{vGA}, v0, 2, s{sT0}",
          f"s_lshl_b32 s{sT0}, s{sWave}, 2", f"s_add_u32 s{sT0}, s{sT0}, {MISC}", f"v_mov_b32 v{vOwn}, s{sT0}",
          f"s_lshl_b32 s{sT0}, s{sTile}, 4", f"s_add_u32 s{sT0}, s{sT0}, s{sH}",
          f"s_lshr_b32 s{sT1}, s{sT0}, 3", f"s_lshl_b32 s{sT1}, s{sT1}, 5", f"s_and_b32 s{sT2}, s{sH}, 7",
          f"s_add_u32 s{sT1}, s{sT1}, s{sT2}", f"s_lshl_b32 s{sT1}, s{sT1}, 2", f"s_add_u32 s{sSt+2}, s{sT1}, {NA}",
          f"s_lshl_b32 s{sT0}, s{sT0}, 11", f"s_add_u32 s{sSt+1}, s{sT0}, {OA}",
          f"s_cmp_lt_u32 s{sTile}, 8", "!s_cbranch_scc1 L_attn_g"]
    o += attention(False)
    o += ["L_ctail:"]
    o += c_tail()
    o += ["@reset", "L_attn_g:", f"s_sub_u32 s{sSt}, 8, s{sTile}"]
    o += attention(True)
    o += ["s_waitcnt lgkmcnt(0)", "s_nop 15", "s_branch L_ctail", "@reset"]
    return o


def code_prefetch():
    n = OPT['prefetch']
    if not n:
        return []
    o = ["s_getpc_b64 s[38:39]", "L_pc:",
         f"s_sub_u32 s38, s38, L_pc-{NAME}_kernel", "s_subb_u32 s39, s39, 0",
         f"s_lshr_b32 s{sT0}, s2, 3", f"s_lshl_b32 s{sT0}, s{sT0}, 2", f"s_add_u32 s{sT0}, s{sT0}, s{sWave}",
         f"s_mul_i32 s{sT0}, s{sT0}, {128*n}",
         f"v_lshl_add_u32 v20, v0, 7, s{sT0}",
         f"v_min_u32 v20, L_end-{NAME}_kernel-4, v20",
         f"s_mov_b64 exec, {(1 << n) - 1}",
         "global_load_dword v239, v20, s[38:39]", "s_mov_b64 exec, -1"]
    return o


sXD, sWD, sQBD, sQAD, sGD = 36, 40, 44, 48, 52
sKGD, sVGD = 56, 60
sRt, sTT, sE2, sL2 = 64, 65, 66, 67
sOBo, sA, sB, sC = 68, 69, 70, 71
sOff, sLi, sKh = 72, 73, 75
sEarly = 61
sOBn = 62
sNo = 63
sOBd = 60
vX, vW, vQ, vPat, vK, vV, vWO = 2, 3, 4, 5, 6, 7, 8
vEp = 15
GV = 16
HQ = 28
PQR = 16
vG1 = 27
KVr = 88
sRet = 54


def h_setup():
    return [f"s_and_b32 s{sT0}, s{sRB}, 3", f"s_lshl_b32 s{sT0}, s{sT0}, 3", f"s_and_b32 s{sT1}, s{sH}, 7",
            f"s_add_u32 s{sJ3}, s{sT0}, s{sT1}",
            f"s_cmp_ge_u32 s{sJ3}, 14", f"s_cselect_b32 s{sT0}, 14, 0", f"s_cselect_b32 s{sT1}, 1, 0",
            f"s_sub_u32 s{sT0}, s{sJ3}, s{sT0}", f"s_lshr_b32 s{sCT}, s{sT0}, 1", f"s_and_b32 s{sT0}, s{sT0}, 1",
            f"s_lshr_b32 s{sT2}, s{sH}, 3", f"s_lshl_b32 s{sT2}, s{sT2}, 1", f"s_add_u32 s{sT1}, s{sT1}, s{sT2}",
            f"s_and_b32 s{sT2}, s{sRB}, 12", f"s_add_u32 s{sT1}, s{sT1}, s{sT2}",
            f"s_lshl_b32 s{sT1}, s{sT1}, 1", f"s_add_u32 s{sT1}, s{sT1}, s{sT0}", f"s_lshl_b32 s{sTB}, s{sT1}, 1",
            f"s_lshl_b32 s{sT0}, s{sW4}, 2", f"s_add_u32 s{sT0}, s{sT0}, {MISC}", f"v_mov_b32 v{vOwn}, s{sT0}",
            f"v_lshrrev_b32 v{vLow}, 5, v0", f"v_add_u32 v{vLow}, -1, v{vLow}",
            f"s_mov_b32 s{sE2}, {fhex(1e-6)}", f"s_mov_b32 s{sL2}, {fhex(LOG2E)}",
            f"s_lshl_b32 s{sT0}, s{sRB}, 2", f"s_add_u32 s{sT0}, s{sT0}, s{sW4}", f"s_lshl_b32 s{sT0}, s{sT0}, 4",
            f"s_add_u32 s{sT0}, s{sT0}, s{sH}",
            f"s_lshr_b32 s{sT1}, s{sT0}, 3", f"s_lshl_b32 s{sT1}, s{sT1}, 5", f"s_and_b32 s{sT2}, s{sH}, 7",
            f"s_add_u32 s{sT1}, s{sT1}, s{sT2}", f"s_lshl_b32 s{sT1}, s{sT1}, 2", f"s_add_u32 s{sOBn}, s{sT1}, {NB}",
            f"s_lshl_b32 s{sT0}, s{sT0}, 11", f"s_add_u32 s{sOBo}, s{sT0}, {OB}"]


def qb_phi():
    R, A = 96, 64
    t, u = 24, 25
    o = spin_ev(R_Q, 'own', HQ)
    o += [f"s_lshl_b32 s{sT0}, s{sW4}, 12", f"v_add_u32 v{t}, s{sT0}, v{vL16}",
          f"ds_read_b128 v[{R}:{R+3}], v{t}", f"ds_read_b128 v[{R+4}:{R+7}], v{t} offset:1024",
          f"s_lshl_b32 s{sT0}, s{sW4}, 8", f"s_add_u32 s{sT0}, s{sT0}, {GL}", f"v_lshl_add_u32 v{26}, v0, 2, s{sT0}",
          f"v_lshlrev_b32 v{t}, 16, v{R+6}", f"v_lshlrev_b32 v{u}, 16, v{R+6}",
          f"v_permlane32_swap_b32 v{t}, v{u}",
          f"v_mul_f32 v{u}, s{sL2}, v{u}", f"v_exp_f32_e64 v{u}, -v{u}", f"v_add_f32 v{u}, 1.0, v{u}",
          f"v_rcp_f32 v{u}, v{u}", f"ds_write_b32 v26, v{u}"] + signal(GRDY) + [f"v_sub_f32 v{vG1}, 1.0, v{u}"]
    for p in range(8):
        o += [f"v_lshlrev_b32 v{A+2*p}, 16, v{R+p}", f"v_and_b32 v{A+2*p+1}, 0xffff0000, v{R+p}"]
        o += phi_pair(A + 2 * p, A + 2 * p + 1, t, u, PQR + p, sL2, sE2)
    o += [f"v_and_b32 v{PQR+6}, v{PQR+6}, v{vLow}", f"v_and_b32 v{PQR+7}, v{PQR+7}, v{vLow}"]
    return o


def ob_tile(read_kv=True):
    o = []
    if read_kv:
        o += spin_ev(KVRDY, 3, HQ)
        o += [f"v_add_u32 v24, {KVF}, v{vL16}",
              f"ds_read_b128 v[{KVr}:{KVr+3}], v24", f"ds_read_b128 v[{KVr+4}:{KVr+7}], v24 offset:1024"]
    o += [mfma(64, KVr, PQR, None), mfma(64, KVr + 4, PQR + 4, 64)]
    o += finish_o(64, 80, vG1, 24, 25, sOBo, vEp, sOBn, eps=sE2)
    return o


def call(name):
    return ["@drain", f"!s_call_b64 s[{sRet}:{sRet+1}], L_sub_{name}", "@reset"]


def subroutines():
    o = []
    for name, body in (("phi", qb_phi()), ("ob", ob_tile()), ("r0", woa_read(0) + signal(R1)), ("r1", woa_read(1))):
        o += ["@reset", f"L_sub_{name}:"] + body + ["s_waitcnt lgkmcnt(0)", f"!s_setpc_b64 s[{sRet}:{sRet+1}]"]
    return o


def wait_serving(rd, red, cmp_ok, early=None):
    L, L1, L2 = lab('ws'), lab('ws1'), lab('ws2')
    o = ["@drain", f"s_mov_b32 s{sTO}, 0", f"!{L}:", "!" + rd, f"!ds_read_b32 v24, v{vM} offset:{16*KVRDY+12}"]
    o += ["!" + x for x in _tmo()]
    o += ["!s_waitcnt lgkmcnt(0)", f"!v_cmp_lt_u32 vcc, s{sOBd}, v24", f"!s_cbranch_vccz {L1}",
          f"!s_call_b64 s[{sRet}:{sRet+1}], L_sub_ob", f"!s_mov_b32 s{sOBd}, 1", f"!s_mov_b32 s{sTO}, 0", f"!s_branch {L}", f"!{L1}:"]
    o += ["!" + x for x in red + [cmp_ok, f"s_cbranch_vccnz {L2}"]]
    if early is not None:
        o += [f"!s_mov_b32 s{early}, 1"]
    o += ["!s_sleep 1", f"!s_branch {L}", "@reset", f"!{L2}:"]
    return o


def serve_ev(ev, early=None):
    return wait_serving(f"ds_read_b128 v[{HQ}:{HQ+3}], v{vM} offset:{16*ev}",
                        [f"v_min3_u32 v{HQ}, v{HQ}, v{HQ+1}, v{HQ+2}", f"v_min_u32 v{HQ}, v{HQ}, v{HQ+3}"],
                        f"v_cmp_ne_u32 vcc, 0, v{HQ}", early)


def serve_land(st):
    return wait_serving(f"ds_read_b32 v{HQ}, v{vM} offset:{256+4*st}", [], f"v_cmp_eq_u32 vcc, 2, v{HQ}")


def dma(vaddr, sd, soff, lds, extra="", tag=None):
    o = [f"s_add_u32 m0, s{sLi}, {lds}"]
    if soff:
        o.append(f"s_mov_b32 s{sOff}, {soff}")
        so = f"s{sOff}"
    else:
        so = "0"
    o.append(f"buffer_load_dwordx4 v{vaddr}, s[{sd}:{sd+3}], {so} offen {extra} lds" + (f" ;@tag={tag}" if tag else ""))
    return o


def spin_vm(body, cond, sleep=0):
    L = lab('pv')
    o = [f"!s_mov_b32 s{sTO}, 0", f"!{L}:"]
    o += ["!" + b for b in body + _tmo()]
    o += ["s_waitcnt vmcnt(0)"]
    o += ["!" + c for c in cond]
    o += [f"!s_cbranch_vccnz {L}"]
    return o


def flag_ld(vdst, vaddr, soff):
    if 1:
        return [f"v_mov_b32 v{vdst}, 0", f"buffer_atomic_or v{vdst}, v{vaddr}, s[{sWSD}:{sWSD+3}], {soff} offen sc0 sc1"]
    return [f"buffer_load_dword v{vdst}, v{vaddr}, s[{sWSD}:{sWSD+3}], {soff} offen sc1"]


def light_poll(vdst, vaddr, soff, mask, cmp_bad, first_issued=False, sleep=None, flag=False, hook=None):
    sleep = OPT.get('psleep', 1) if sleep is None else sleep
    L, L2, L0 = lab('lp'), lab('lpx'), lab('lp0')
    ld = f"buffer_load_dword v{vdst}, v{vaddr}, s[{sWSD}:{sWSD+3}], {soff} offen sc1"
    o = [f"s_mov_b64 exec, {mask}", f"s_mov_b32 s{sTO}, 0"]
    if first_issued:
        o += [f"!s_branch {L0}"]
    o += [f"!{L}:"] + ["!!" + x for x in (flag_ld(vdst, vaddr, soff) if flag else [ld])] + [f"!{L0}:"] + ["!" + x for x in _tmo()] + ["s_waitcnt vmcnt(0)"]
    o += ["!" + c for c in cmp_bad]
    o += [f"!s_cbranch_vccz {L2}"]
    if hook:
        o += ["!!s_mov_b64 s[50:51], vcc", "!!s_mov_b64 exec, -1"] + ["!!" + x.lstrip('!') for x in hook if not x.startswith('@')] + ["!!s_mov_b64 vcc, s[50:51]"]
    o += ["!!s_mov_b64 exec, vcc"] + ([f"!!s_sleep {sleep}"] if sleep else []) + \
         [f"!!s_branch {L}", f"!{L2}:", "s_mov_b64 exec, -1"]
    return o


def notify(soff, vt, vep, fan=1):
    return [f"v_lshlrev_b32 v{vt}, 7, v0", f"s_mov_b64 exec, {(1 << fan) - 1}",
            f"buffer_store_dword v{vep}, v{vt}, s[{sWSD}:{sWSD+3}], s{soff} offen sc1", "s_mov_b64 exec, -1"]


def fmap(d, t):
    return [f"v_bfe_u32 v{d}, v0, 4, 1", f"v_bfe_u32 v{t}, v0, 2, 1", f"v_lshl_add_u32 v{d}, v{d}, 1, v{t}",
            f"v_mul_u32_u24 v{d}, 7, v{d}", f"v_bfe_u32 v{t}, v0, 3, 1", f"v_lshl_add_u32 v{d}, v{t}, 2, v{d}",
            f"v_and_b32 v{t}, 3, v0", f"v_add_u32 v{d}, v{d}, v{t}"]


def l_wave():
    ROLE[0] = 'L'
    o = [f"s_setprio {OPT.get('lprio', 2)}"]
    t0, t1, t2 = 24, 25, 26
    sHW = sW4
    o += [f"s_lshl_b32 s{sLi}, s{sHW}, 10",
          f"v_mov_b32 v{vMl}, v{vMs}", f"s_mov_b32 s{sT0}, {LANDC}", f"v_writelane_b32 v{vMl}, s{sT0}, 0"]
    o += [f"v_lshrrev_b32 v{t0}, 3, v0", f"s_lshl_b32 s{sT0}, s{sRB}, 4", f"s_add_u32 s{sT0}, s{sT0}, s{sHW}",
          f"s_lshl_b32 s{sT0}, s{sT0}, 3", f"v_add_u32 v{t1}, s{sT0}, v{t0}", f"v_mul_u32_u24 v{vX}, 896, v{t1}",
          f"v_lshrrev_b32 v{t1}, 4, v0", f"s_lshl_b32 s{sT0}, s{sHW}, 2", f"v_add_u32 v{t1}, s{sT0}, v{t1}",
          f"v_and_b32 v{t2}, 7, v0", f"v_xor_b32 v{t1}, v{t1}, v{t2}", f"v_lshl_add_u32 v{vX}, v{t1}, 4, v{vX}"]
    o += [f"s_lshl_b32 s{sT2}, s{sZ}, 4", f"s_add_u32 s{sT1}, s{sT2}, 112", f"s_add_u32 s{sT2}, s{sT2}, 48",
          f"s_mul_i32 s{sT1}, s{sT1}, s{sHH}", f"s_add_u32 s{sT1}, s{sT1}, 896",
          f"s_lshl_b32 s{sT0}, s{sHW}, 3", f"v_add_u32 v{t1}, s{sT0}, v{t0}", f"v_mul_u32_u24 v{vW}, 2688, v{t1}",
          f"v_bfe_u32 v{t1}, v0, 2, 1", f"v_bfe_u32 v{t2}, v0, 4, 1", f"v_xor_b32 v{t1}, v{t1}, v{t2}",
          f"v_mul_u32_u24 v{t2}, s{sT2}, v{t1}", f"v_add3_u32 v{vW}, v{vW}, v{t2}, s{sT1}",
          f"v_and_b32 v{t2}, 3, v0", f"v_lshl_add_u32 v{vW}, v{t2}, 4, v{vW}"]
    o += [f"s_mov_b32 s{sXD+2}, 1835008", f"s_mov_b32 s{sXD+3}, 0x20000",
          f"s_mov_b32 s{sWD+2}, 1204224", f"s_mov_b32 s{sWD+3}, 0x20000",
          f"s_cmp_eq_u32 s{sH}, 15", f"s_cselect_b32 s{sWD+2}, 0, s{sWD+2}",
          f"s_cmp_eq_u32 s{sZ}, 0"]
    o += stamp(1, 'f')
    o += ["s_waitcnt lgkmcnt(0)",
          f"s_mov_b32 s{sXD}, s{sX}", f"s_mov_b32 s{sXD+1}, s{sX+1}",
          f"s_cselect_b32 s{sWD}, s{sBW}, s{sAW}", f"s_cselect_b32 s{sWD+1}, s{sBW+1}, s{sAW+1}"]
    ops = []
    for c in range(7):
        for ii in range(8):
            ops.append((dma(vX, sXD, 16 * ii * 896 + 128 * c, XR(c) + 2048 * ii), c))
        for p in range(2):
            for ii in range(4):
                ops.append((dma(vW, sWD, (64 * c + 16 * ii) * 2688 + 896 * p, WR(c) + 8192 * p + 2048 * ii), c))
    for q, sd in enumerate((sQBD, sQAD)):
        for c in range(7):
            for ii in range(2):
                ops.append((dma(vQ, sd, (64 * c + 32 * ii) * 2688, QLOC[7 * q + c] + 2048 * ii), 7 + 7 * q + c))
    late = srd(sWSD, sWS, WS_SIZE) + srd(sQBD, sBW, 1204224) + srd(sQAD, sAW, 1204224) + srd(sGD, sGW, 896)
    late += [f"v_lshrrev_b32 v{t0}, 2, v0", f"s_lshl_b32 s{sT0}, s{sHW}, 4", f"v_add_u32 v{t0}, s{sT0}, v{t0}",
             f"v_mul_u32_u24 v{vQ}, 2688, v{t0}", f"v_and_b32 v{t1}, 3, v0", f"v_lshl_add_u32 v{vQ}, v{t1}, 4, v{vQ}",
             f"s_mul_i32 s{sT0}, s{sH}, 56", f"s_lshl_b32 s{sT1}, s{sPar}, 3", f"s_sub_u32 s{sT0}, s{sT0}, s{sT1}",
             f"v_add_u32 v{vQ}, s{sT0}, v{vQ}",
             f"v_bfe_u32 v{t0}, v0, 4, 1", f"v_lshlrev_b32 v{t0}, 5, v{t0}", f"v_and_b32 v{t1}, 15, v0",
             f"s_lshl_b32 s{sT0}, s{sHW}, 4", f"v_add3_u32 v{t0}, v{t0}, v{t1}, s{sT0}",
             f"v_lshlrev_b32 v27, 1, v{t0}",
             f"s_xor_b32 s{sT0}, s{sPar}, 1", f"s_mul_i32 s{sT0}, s{sT0}, 56", f"s_add_u32 s{sT0}, s{sT0}, {QBB}",
             f"v_lshl_add_u32 v{vPat}, v{t0}, 6, s{sT0}"]
    late += [f"buffer_load_ushort v{GV+c}, v27, s[{sGD}:{sGD+3}], 0 offen offset:{128*c}" for c in range(7)]
    late += [f"s_mul_i32 s{sT0}, s{sHW}, {VG}", [f"s_add_u32 s{sKGD}, s{sWS}, s{sT0}", f"s_addc_u32 s{sKGD+1}, s{sWS+1}, 0"],
             f"s_mov_b32 s{sKGD+2}, 1835008", f"s_mov_b32 s{sKGD+3}, 0x20000"]
    late += [f"s_lshl_b32 s{sT0}, s{sRB}, 2", f"s_sub_u32 s{sT0}, s{sT0}, 8", f"s_mul_i32 s{sA}, s{sT0}, 28672",
             f"s_mul_i32 s{sT1}, s{sH}, 7", f"s_lshr_b32 s{sT1}, s{sT1}, 1", f"s_lshl_b32 s{sT1}, s{sT1}, 9",
             f"s_add_u32 s{sT1}, s{sT1}, s{sA}",
             f"v_add_u32 v{vK}, s{sT1}, v{vL16}",
             f"s_mul_i32 s{sT1}, s{sH}, 448", f"s_add_u32 s{sT1}, s{sT1}, s{sA}",
             f"v_lshrrev_b32 v{t0}, 5, v0", f"v_mul_u32_u24 v{t0}, 7168, v{t0}"] + fmap(t1, t2) + [
             f"v_lshl_add_u32 v{t0}, v{t1}, 4, v{t0}", f"v_add_u32 v{vV}, s{sT1}, v{t0}"]
    vFl = 32
    late += [f"s_mul_i32 s{sT0}, s{sH}, 28", f"s_add_u32 s{sT1}, s{sT0}, 27",
             f"s_lshr_b32 s{sT0}, s{sT0}, 6", [f"s_lshr_b32 s{sT1}, s{sT1}, 6", f"s_cmp_eq_u32 s{sT0}, s{sT1}",
             f"s_mov_b32 s{sT1}, 0xfff", f"s_cselect_b32 s{sB}, 0x555, s{sT1}"],
             f"s_min_u32 s{sT0}, s{sRB}, 2", f"s_lshl_b32 s{sT0}, s{sT0}, 2", f"s_sub_u32 s{sT0}, 8, s{sT0}",
             f"s_lshl_b32 s{sT1}, -1, s{sT0}", f"s_and_b32 s{sB}, s{sB}, s{sT1}", f"s_mov_b32 s{sB+1}, 0",
             f"s_lshl_b32 s{sT0}, s{sRB}, 4", f"s_add_u32 s{sT0}, s{sT0}, s{sH}", f"s_lshl_b32 s{sT0}, s{sT0}, 7",
             f"v_lshl_add_u32 v{vFl}, v0, 2, s{sT0}"]
    late += [h_setup()] + p3_early()
    late += [f"v_lshrrev_b32 v{t0}, 3, v0", f"s_mul_i32 s{sT0}, s{sHW}, 224", f"v_add_u32 v{t1}, s{sT0}, v{t0}",
             f"v_mul_u32_u24 v{vWO}, 896, v{t1}",
             f"v_bfe_u32 v{t1}, v0, 2, 1", f"v_bfe_u32 v{t2}, v0, 4, 1", f"v_xor_b32 v{t1}, v{t1}, v{t2}",
             f"v_lshl_add_u32 v{vWO}, v{t1}, 6, v{vWO}", f"v_and_b32 v{t2}, 3, v0", f"v_lshl_add_u32 v{vWO}, v{t2}, 4, v{vWO}",
             f"s_lshl_b32 s{sT0}, s{sCT}, 7", f"v_add_u32 v{vWO}, s{sT0}, v{vWO}"]
    pieces = [late[i:i + 6] for i in range(0, len(late), 6)]
    last_of = {}
    for n, (_, st) in enumerate(ops):
        last_of[st] = n
    def lead_at(n):
        return OPT['l1'] if ops[n][1] < 7 else OPT['l3']
    sig_next = 0

    def do_signal(st):
        r = [f"@wait_vm o{last_of[st]}"]
        if 7 <= st <= 13:
            r.append(f"ds_write_b16 v{vPat}, v{GV+st-7} offset:{QLOC[st-7]-QBB}")
        return r + land(st)

    WL = OPT.get('wlead', 14)

    def woa(rho):
        r = [f"s_mul_i32 s{sLi}, s{sHW}, {STGS}"]
        for m in range(14):
            r += dma(vWO, sXD, (112 * rho + 8 * m) * 896, STG + 1024 * m, tag=f"wa{rho}_{m}")
            if m >= WL:
                r += [f"@wait_vm wa{rho}_{m - WL}"]
        return r

    def emit_ops(n0, n1, sig, fine):
        r = []
        for n in range(n0, n1):
            ins, st = ops[n]
            need = {64: 1, 80: 2, 96: 3, 124: 4}.get(n)
            if need:
                assert sig >= need
                r += spin_ev(E_PA, 'all', HQ, ge=need)
            ins = ins[:-1] + [ins[-1] + f" ;@tag=o{n}"]
            if n == 0:
                r += stamp(2, 'f')
            r += ins
            if n == 15:
                r += stamp(3, 'f') + ["s_barrier"] + stamp(4, 'f')
            if n >= 16 and pieces:
                r += sum([x if isinstance(x, list) else [x] for x in pieces.pop(0)], [])
            done = n - lead_at(n)
            if done >= 0 and n >= 15:
                r += [f"@wait_vm o{done}"]
            while sig < 21 and last_of[sig] <= done and n >= 15:
                r += do_signal(sig)
                r += {0: stamp(5, 'f'), 1: stamp(6, 'f'), 2: stamp(7, 'f'), 4: stamp(8, 'f'), 6: stamp(9, 'f'), 10: stamp(10, 'f')}.get(sig, [])
                sig += 1
        return r, sig

    def tail(sig, pf=False):
        r, sig = emit_ops(HOLD, len(ops), sig, False)
        r += stamp(1) + stamp(11, 'f')
        if pf and OPT.get('ypf', 0):
            r += [f"s_cmp_eq_u32 s{sHW}, 0", f"s_cselect_b32 s48, s{sAO}, s{sBO}", f"s_cselect_b32 s49, s{sAO+1}, s{sBO+1}",
                  f"s_and_b32 s{sT0}, s{sRB}, 3", f"s_lshl_b32 s{sT0}, s{sT0}, 2", f"s_and_b32 s{sT1}, s{sHH}, 3",
                  f"s_add_u32 s{sT0}, s{sT0}, s{sT1}", f"s_mul_i32 s{sT0}, s{sT0}, {196*128}",
                  f"v_lshl_add_u32 v33, v0, 7, s{sT0}", "s_mov_b32 exec_hi, 0x1ffff"]
            for i in range(4):
                r += [f"global_load_dword v{40+i}, v33, s[48:49]"] + ([f"v_add_u32 v33, {49*128}, v33"] if i < 3 else [])
            r += ["s_mov_b64 exec, -1"]
        for st in range(sig, 21):
            r += do_signal(st)
        return r
    HOLD = OPT.get('hold', 126)
    r, sig = emit_ops(0, HOLD, 0, True)
    assert not pieces
    o += r
    if HOLD < len(ops):
        o += [f"s_cmp_eq_u32 s{sZ}, 0", "!s_cbranch_scc0 L_lhold"]
    o += tail(sig, True)
    if HOLD < len(ops):
        o += ["s_branch L_ljoin", "@reset", "L_lhold:"]
        while last_of[sig] < HOLD:
            o += [f"s_waitcnt vmcnt({HOLD - 1 - last_of[sig]})"] + do_signal(sig)
            sig += 1
        o += spin_ev(X_PUB, 'hi', HQ)
        o += tail(sig)
        o += ["@reset", "L_ljoin:"]
    o += spin_ev(EPOCH, 0, vEp)
    o += spin_ev(OPT.get('kgate', R_K), 'own', HQ)
    o += spin_ev(E_P2, 'all', HQ)
    o += stamp(6, 'z')
    o += [f"s_mul_i32 s{sT1}, s{sHW}, {FV-FK}", f"s_add_u32 s{sT1}, s{sT1}, {FK}"]
    o += light_poll(t1, 32, f"s{sT1}", f"s[{sB}:{sB+1}]", [f"v_cmp_ne_u32 vcc, v{t1}, v{vEp}"], flag=OPT.get('apoll', 1), sleep=OPT.get('fsleep', 2))
    o += stamp(2)
    if OPT.get('alt') == 5:
        o += [f"s_add_u32 s{sStamp+14}, s{sStamp}, s{sTO}"]
    o += [f"s_cmp_eq_u32 s{sHW}, 0", "!s_cbranch_scc0 L_lV"]
    for j in range(12):
        for e in range(2):
            o += [f"s_mov_b32 m0, {KL + 2048*j + 1024*e - 1024*e}",
                  f"buffer_load_dwordx4 v{vK}, s[{sKGD}:{sKGD+3}], 0 offen offset:{1024*e} sc1 lds"]
        o += [f"v_add_u32 v{vK}, 28672, v{vK}"]
    o += [f"s_mov_b32 s{sA}, {4*ST_K}", "s_branch L_lKV", "@reset", "L_lV:"]
    o += [f"v_mov_b32 v{36+i}, 0x3f803f80" for i in range(4)]
    o += [f"v_lshlrev_b32 v{t0}, 9, v0", f"v_add_u32 v{t0}, {VL+496}, v{t0}",
          "s_mov_b32 exec_hi, 0xffff", f"ds_write_b128 v{t0}, v[36:39]",
          "s_mov_b32 exec_lo, 0x7fffffff", "s_mov_b32 exec_hi, 0x7fffffff", f"s_mov_b32 s{sOff}, 14336"]
    for j in range(12):
        for e in range(2):
            pre = [f"v_add_u32 v{t2}, s{sOff}, v{vV}"] if e else []
            o += pre + [f"s_mov_b32 m0, {VL + 2048*j + 1024*e}",
                        f"buffer_load_dwordx4 v{t2 if e else vV}, s[{sKGD}:{sKGD+3}], 0 offen sc1 lds"]
        o += [f"v_add_u32 v{vV}, 28672, v{vV}"]
    o += ["s_mov_b64 exec, -1", f"s_mov_b32 s{sA}, {4*ST_V}", "@reset", "L_lKV:"]
    o += stamp(3)
    kvland = [f"v_add_u32 v{t2}, s{sA}, v{vMl}", f"v_mov_b32 v{t0}, 2", f"ds_add_u32 v{t2}, v{t0}"]
    o += call("phi") + stamp(8, 'z')
    o += [f"s_cmp_ge_u32 s{sJ3}, 28", "!s_cbranch_scc0 L_lwo",
          "s_waitcnt vmcnt(0)"] + kvland + call("ob") + stamp_flush(20, 0) + ["s_endpgm", "@reset", "L_lwo:"]
    o += srd(sXD, sAO, 401408) + srd(sWD, sBO, 401408)
    o += ["s_waitcnt vmcnt(0)"] + kvland
    o += stamp(4)
    o += spin_ev(F_V, 'hi', HQ) + spin_ev(F_K, 'hi', HQ)
    o += woa(0)
    o += stamp(9, 'z')
    o += spin_ev(E_P3, 'all', HQ)
    for m in range(28):
        if m in (0, 21):
            o += [f"s_mul_i32 s{sLi}, s{sHW}, {WBAS if m == 0 else WBBS}"]
        o += dma(vWO, sWD, 8 * m * 896, WBA + 1024 * m if m < 21 else WBB + 1024 * (m - 21), tag=f"wb{m}")
        o += [f"@wait_vm wb{m - WL}"] if m >= WL else [f"@wait_vm wa0_{14 - WL + m}"]
        if m == WL - 1:
            o += land(ST_WA1)
    o += p3_setup() + wait_land(ST_WA1, HQ, inline=True) + call("r0")
    o += stamp(10, 'z')
    o += [f"s_mov_b32 s{sOBd}, 0"] + serve_ev(R1) + stamp(11, 'z')
    o += woa(1)
    o += land(ST_WB)
    o += ["s_waitcnt vmcnt(0)"] + land(ST_WA2)
    o += stamp(5)
    o += ["s_branch L_p3", "@reset"]
    return o


def opoll(base, mask=0xff):
    return [f"v_lshlrev_b32 v7, 2, v0", f"s_add_u32 s{sT2}, s{sNo}, {NA if base == OA else NB}"] + \
        light_poll(HQ, 7, f"s{sT2}", str(mask), [f"v_cmp_ne_u32 vcc, v{HQ}, v{vEp}"], sleep=OPT.get('osleep', 1))


def gload(base, g):
    r = [f"s_mov_b32 s{sT2}, {base + 4096*g}"]
    for e in range(4):
        n = 4 * g + e
        r.append(f"buffer_load_dwordx4 v[{OF+4*n}:{OF+4*n+3}], v{vOG}, s[{sWSD}:{sWSD+3}], s{sT2} offen offset:{1024*e} sc1")
    return r


WA = 128
OF = 64
ACC = 32
BB = 16
vA = 2
vOG = 6
vTg = 9


PARK = 248


def p3_early():
    t0, t1, t2, r, cg = 240, 241, 242, 243, 244
    o = [f"s_lshr_b32 s{sKh}, s{sW4}, 1", f"s_and_b32 s{sRt}, s{sW4}, 1",
         f"s_add_u32 s{sTT}, s{sTB}, s{sRt}",
         f"v_bfe_u32 v{r}, v0, 2, 2", f"v_bfe_u32 v{t0}, v0, 4, 1", f"v_and_b32 v{cg}, 3, v0",
         f"v_lshl_add_u32 v{cg}, v{t0}, 2, v{cg}", f"v_lshlrev_b32 v{cg}, 3, v{cg}",
         f"s_mul_i32 s{sT0}, s{sKh}, {STGS}", f"s_add_u32 s{sT0}, s{sT0}, {STG}",
         f"v_add_u32 v{cg}, s{sT0}, v{cg}",
         f"v_lshrrev_b32 v{t2}, 5, v0", f"v_mul_u32_u24 v{t2}, 7, v{t2}"]
    for s_ in range(2):
        for u in range(2):
            d = PARK + 2 * s_ + u
            o += [f"v_min_u32 v{t0}, {2 if u else 3}, v{r}", f"v_add3_u32 v{t0}, v{t0}, v{t2}, {14*s_+4*u}",
                  f"v_bfe_u32 v{t1}, v{t0}, 1, 1", f"v_xor_b32 v{t1}, s{sKh}, v{t1}",
                  f"v_lshl_add_u32 v{d}, v{t0}, 7, v{cg}", f"v_lshl_add_u32 v{d}, v{t1}, 6, v{d}"]
    o += [f"s_lshl_b32 s{sT0}, s{sTT}, 1", f"s_add_u32 s{sT0}, s{sT0}, s{sKh}", f"s_lshl_b32 s{sNo}, s{sT0}, 7", f"s_lshl_b32 s{sT0}, s{sT0}, 14",
          f"v_add_u32 v{PARK+4}, s{sT0}, v{vL16}"]
    return o


def p3_setup():
    return [f"v_mov_b32 v{vA+i}, v{PARK+i}" for i in range(5)] + [f"v_and_b32 v{vTg}, 0xffff0000, v{vEp}"]


FLIP = [f"v_xor_b32 v{vA+i}, 64, v{vA+i}" for i in range(4)]


def wo_frag(dst, hl, s, tag=None):
    return [tr(dst, vA + 2 * s, 28 * hl * 128), tr(dst + 2, vA + 2 * s + 1, 28 * hl * 128, tag)]


def woa_read(rho):
    o = []
    for j in range(2):
        for hl in range(4):
            for s in range(2):
                o += wo_frag(WA + 64 * j + 8 * (4 * rho + hl) + 4 * s, hl, s)
        o += FLIP
    return o


def phase3():
    ROLE[0] = 'H'
    o = ["@reset", "L_p3:"]
    vC = 7

    def gcheck(base, g):
        b = OF + 16 * g
        ch = [f"v_xor_b32 v{b+4*e+3}, v{b+4*e+3}, v{vTg}" for e in range(4)]
        ch += [f"v_or3_b32 v{vC}, v{b+3}, v{b+7}, v{b+11}", f"v_or_b32 v{vC}, v{vC}, v{b+15}",
               f"v_cmp_lt_u32 vcc, 0xffff, v{vC}"]
        Ls, Lb = lab('slow'), lab('back')
        pl = []
        slow.extend([f"{Ls}:"] + pl + [f"s_mov_b32 s{sTO}, 0", f"{Ls}_s:"] + gload(base, g) + _tmo() + ["s_waitcnt vmcnt(0)"] + ch +
                    [f"s_cbranch_vccnz {Ls}_s", f"s_branch {Lb}"])
        return ch + [f"!s_cbranch_vccnz {Ls}", f"!{Lb}:"]

    o += serve_land(ST_WA2) + call("r1")
    o += stamp(6)
    o += [f"s_mul_i32 s{sT0}, s{sKh}, {WBAS - STGS}", f"s_add_u32 s{sT0}, s{sT0}, {WBA - STG}",
          f"s_mul_i32 s{sB}, s{sKh}, {WBAS - WBBS}", f"s_add_u32 s{sB}, s{sB}, {WBA - WBB}"]
    o += [f"v_add_u32 v{vA+i}, s{sT0}, v{vA+i}" for i in range(4)]
    o += [f"s_mov_b32 s{sEarly}, 0"] + serve_ev(E_OA, sEarly)
    o += stamp(7)
    o += opoll(OA)
    for g in range(4):
        o += gload(OA, g)
    for n in range(16):
        if n % 4 == 0:
            o += gcheck(OA, n // 4)
        for j in (0, 1):
            o.append(mfma(ACC + 16 * j, WA + 64 * j + 4 * n, OF + 4 * n, ACC + 16 * j if n else None))
    o += stamp(8)
    o += [f"s_cmp_lg_u32 s{sOBd}, 0", "!s_cbranch_scc1 L_pB"] + call("ob") + ["L_pB:"]
    fr = []
    for g in range(4):
        for j in ((0, 1) if g % 2 == 0 else (1, 0)):
            fr += [(4 * g + e, j) for e in range(4)]
    fr[-8:] = [(12 + e, 1) for e in range(4)] + [(12 + e, 0) for e in range(4)]

    def rd(i):
        pre = FLIP if i and fr[i][1] != fr[i - 1][1] else []
        if i == 24:
            pre = pre + [f"v_subrev_u32 v{vA+x}, s{sB}, v{vA+x}" for x in range(4)]
        hl = fr[i][0] // 2
        return pre + wo_frag(WA + 4 * i, hl if hl < 6 else hl - 6, fr[i][0] % 2)
    for i in range(32):
        o += rd(i)
    sO = sXD + 4
    vA0, vA1 = 2, 3
    o += srd(sO, sOUT, 1835008)
    o += [f"s_lshl_b32 s{sT0}, s{sW4}, 12", f"v_add_u32 v{vA0}, s{sT0}, v{vL16}",
          f"s_xor_b32 s{sT0}, s{sT0}, 8192", f"v_add_u32 v{vA1}, s{sT0}, v{vL16}",
          f"v_and_b32 v8, 31, v0", f"s_lshl_b32 s{sT0}, s{sTT}, 5", f"v_add_u32 v8, s{sT0}, v8",
          f"v_mul_u32_u24 v8, 896, v8", f"v_lshrrev_b32 v4, 5, v0",
          f"v_lshl_add_u32 v8, v4, 4, v8",
          f"s_lshl_b32 s{sT0}, s{sCT}, 1", f"s_add_u32 s{sT0}, s{sT0}, s{sKh}", f"s_lshl_b32 s{sT0}, s{sT0}, 6",
          f"v_add_u32 v8, s{sT0}, v8"]
    o += opoll(OB)
    o += stamp(9)
    for g in range(4):
        o += gload(OB, g)
    for i, (n, j) in enumerate(fr):
        if i % 8 == 0:
            o += gcheck(OB, i // 8)
        o.append(mfma(ACC + 16 * j, WA + 4 * i, OF + 4 * n, ACC + 16 * j))
    o += [f"ds_write_b128 v{vA0}, v[{ACC+16+4*i}:{ACC+16+4*i+3}] offset:{1024*i}" for i in range(4)]
    o += ["s_waitcnt lgkmcnt(0)", "s_barrier"]
    o += [f"ds_read_b128 v[{OF+4*i}:{OF+4*i+3}], v{vA1} offset:{1024*i}" for i in range(4)]
    for p in range(8):
        o += [f"v_add_f32 v{ACC+2*p}, v{ACC+2*p}, v{OF+2*p}", f"v_add_f32 v{ACC+2*p+1}, v{ACC+2*p+1}, v{OF+2*p+1}",
              f"v_cvt_pk_bf16_f32 v{BB+p}, v{ACC+2*p}, v{ACC+2*p+1}"]
    o += [f"v_permlane32_swap_b32 v{BB+x}, v{BB+x+2}" for x in (0, 1, 4, 5)]
    fl = {0: "", 1: " sc1", 2: " nt", 3: " sc0 sc1"}[OPT.get('outfl', 0)]
    o += [f"buffer_store_dwordx4 v[{BB+4*e}:{BB+4*e+3}], v8, s[{sO}:{sO+3}], 0 offen offset:{32*e}{fl}" for e in range(2)]
    if OPT.get('until'):
        o += ["!L_dly2:", f"!s_memtime s[46:47]", "!s_waitcnt lgkmcnt(0)",
              "!s_sub_u32 s46, s46, s98", f"!s_cmp_lt_u32 s46, {OPT['until']}", "!s_cbranch_scc1 L_dly2"]
    o += stamp(10)
    if OPT['stamps']:
        o += ["s_waitcnt vmcnt(0)"] + stamp(11)
    o += stamp_flush(20, 0)
    o += ["s_endpgm"]
    return o


def pretouch():
    if not OPT.get('touch', 1):
        return []
    o = ["v_lshlrev_b32 v32, 21, v0", "s_mov_b64 exec, 63",
         f"buffer_load_dword v33, v32, s[{sWSD}:{sWSD+3}], 0 offen", "s_mov_b64 exec, 1", "v_mov_b32 v32, 0"]
    for i, p in enumerate((sAW, sBW, sAO, sBO, sOUT)):
        o.append(f"global_load_dword v{34+i}, v32, s[{p}:{p+1}]")
    o += ["s_mov_b64 exec, -1"]
    return o


def x_wave():
    ROLE[0] = 'X'
    o = ["@reset", "L_xwave:", "s_waitcnt lgkmcnt(0)", "s_barrier"]
    o += srd(sWSD, sWS, WS_SIZE)
    o += h_setup() + p3_early()
    sDD, sKD = 36, 40
    sJ = sLi
    t0, t1, t2 = 24, 25, 26
    o += [f"s_sub_u32 s{sJ}, s{sWave}, 6"]
    o += srd(sDD, sDBG, 256) + srd(sKD, sWS, WS_SIZE)
    o += [f"s_cmp_eq_u32 s{sH}, 15", f"s_cselect_b32 s{sKD+2}, 0, s{sKD+2}"]
    o += [f"v_mov_b32 v{t0}, 0", f"s_lshl_b32 s{sT0}, s2, 1", f"s_add_u32 s{sT0}, s{sT0}, s{sJ}",
          f"s_cmp_eq_u32 s{sT0}, 0", "!s_cbranch_scc0 L_xnoep",
          f"s_mov_b32 s{sT0}, {EPW}",
          f"buffer_load_dword v{vEp}, v{t0}, s[{sWSD}:{sWSD+3}], s{sT0} offen sc1",
          f"v_lshrrev_b32 v{t1}, 16, v{vEp}", f"v_add_u32 v{vEp}, 1, v{vEp}", f"v_and_b32 v{vEp}, 0xffff, v{vEp}",
          f"v_max_u32 v{vEp}, 1, v{vEp}", f"v_cmp_eq_u32 vcc, v{vEp}, v{t1}", f"v_addc_co_u32 v{vEp}, vcc, 0, v{vEp}, vcc",
          f"v_and_b32 v{vEp}, 0xffff, v{vEp}", f"v_max_u32 v{vEp}, 1, v{vEp}", f"v_lshl_or_b32 v{vEp}, v{vEp}, 16, v{vEp}",
          "s_mov_b64 exec, 1",
          f"buffer_store_dword v{vEp}, v{t0}, s[{sDD}:{sDD+3}], 0 offen sc1",
          f"buffer_store_dword v{vEp}, v{t0}, s[{sWSD}:{sWSD+3}], s{sT0} offen sc1",
          "s_mov_b64 exec, -1", "@reset", "L_xnoep:"]
    o += pretouch()
    o += wait_land(OPT.get('epgate', 2), HQ, inline=True)
    o += spin_vm([f"buffer_load_dword v{vEp}, v{t0}, s[{sDD}:{sDD+3}], 0 offen sc1"], [f"v_cmp_eq_u32 vcc, 0, v{vEp}"])
    o += [f"ds_write_b32 v{vM}, v{vEp} offset:{16*EPOCH}"]
    o += stamp(1)
    o += [f"s_setprio {OPT.get('xprio', 3)}", f"s_cmp_eq_u32 s{sZ}, 0", "!s_cbranch_scc1 L_xY"]
    o += [f"s_lshl_b32 s{sT0}, s{sJ}, 13", f"v_add_u32 v{t1}, s{sT0}, v{vL16}",
          f"s_lshl_b32 s{sT0}, s{sJ}, 3", f"s_add_u32 s{sT0}, s{sT0}, {MISC}", f"v_mov_b32 v27, s{sT0}",
          f"s_lshl_b32 s{sT0}, s{sRB}, 1", f"s_add_u32 s{sT0}, s{sT0}, s{sJ}", f"s_lshl_b32 s{sT0}, s{sT0}, 1",
          f"s_mul_i32 s44, s{sT0}, 28672",
          f"s_lshl_b32 s{sT0}, s{sHH}, 10", f"s_add_u32 s46, s44, s{sT0}", f"s_add_u32 s46, s46, {VG}",
          f"s_lshl_b32 s{sT0}, s{sHH}, 12", f"s_add_u32 s44, s44, s{sT0}",
          f"v_lshrrev_b32 v2, 5, v0", f"v_mul_u32_u24 v2, {7168-512}, v2", f"v_add_u32 v2, v2, v{vL16}",
          ]
    o += [f"s_lshl_b32 s{sT0}, s{sHH}, 6", f"s_mul_i32 s{sT1}, s{sT0}, 2341", f"s_lshr_b32 s{sT1}, s{sT1}, 16",
          f"s_add_u32 s{sT0}, s{sT0}, 63", f"s_mul_i32 s{sT2}, s{sT0}, 2341", f"s_lshr_b32 s{sT2}, s{sT2}, 16",
          f"v_and_b32 v4, 3, v0", f"v_add_u32 v4, s{sT1}, v4", f"v_lshrrev_b32 v5, 2, v0",
          f"v_cmp_ge_u32 s[48:49], s{sT2}, v4", f"v_add_u32 v6, s{sRB}, v5", f"v_cmp_gt_u32 vcc, 16, v6",
          "s_and_b64 s[48:49], s[48:49], vcc", "s_and_b32 s48, s48, 0xfff", "s_mov_b32 s49, 0",
          f"s_cmp_eq_u32 s{sH}, 15", "s_cselect_b32 s48, 0, s48",
          "v_lshl_add_u32 v3, v6, 4, v4", "v_lshlrev_b32 v3, 5, v3",
          "v_mul_u32_u24 v4, 28, v4", "v_lshrrev_b32 v4, 6, v4", f"v_sub_u32 v4, s{sHH}, v4",
          f"s_lshl_b32 s{sT0}, s{sJ}, 1", f"s_add_u32 s{sT0}, s{sT0}, 8",
          "v_lshlrev_b32 v5, 2, v5", f"v_sub_u32 v5, s{sT0}, v5", "v_add3_u32 v3, v3, v4, v5", "v_lshlrev_b32 v3, 2, v3",
          f"s_mov_b32 s50, {FK}", f"s_mov_b32 s51, {FV}"]

    def pair_wait(ev):
        L = lab('pw')
        return ["s_waitcnt lgkmcnt(0)", f"!s_mov_b32 s{sTO}, 0", f"!{L}:", f"!ds_read_b64 v[{HQ}:{HQ+1}], v27 offset:{16*ev}"] + \
               ["!" + x for x in _tmo()] + ["!s_waitcnt lgkmcnt(0)", f"!v_min_u32 v{HQ}, v{HQ}, v{HQ+1}",
                                            f"!v_cmp_eq_u32 vcc, 0, v{HQ}", f"!s_cbranch_vccnz {L}"]
    o += pair_wait(R_K)
    o += [f"ds_read_b128 v[{64+4*i}:{64+4*i+3}], v{t1} offset:{STK+1024*i}" for i in range(8)] + signal(F_K)
    o += [f"s_add_u32 s45, s44, 28672"]
    o += [f"buffer_store_dwordx4 v[{64+4*i}:{64+4*i+3}], v{vL16}, s[{sKD}:{sKD+3}], s{44+i//4} offen offset:{1024*(i%4)} sc1 ;@tag=kst" for i in range(8)]
    o += stamp(2)
    o += pair_wait(R_V) + stamp(6, 'x')
    o += [f"ds_read_b128 v[{96+4*i}:{96+4*i+3}], v{t1} offset:{STV+1024*i}" for i in range(8)] + signal(F_V)
    o += ["s_add_u32 s47, s46, 14336", "s_add_u32 s44, s46, 28672", "s_add_u32 s45, s47, 28672"]
    for i in range(8):
        b_, j, s_ = i // 4, (i % 4) // 2, i % 2
        so = (46, 47, 44, 45)[2 * b_ + s_]
        o.append(f"buffer_store_dwordx4 v[{96+4*i}:{96+4*i+3}], v2, s[{sKD}:{sKD+3}], s{so} offen offset:{512*j} sc1 ;@tag=vst")
    o += signal(X_PUB) + stamp(7, 'x')
    Ln = lab('nn')
    o += ["s_cmp_eq_u32 s48, 0", f"!s_cbranch_scc1 {Ln}"]
    o += ["@wait_vm kst", "s_mov_b64 exec, s[48:49]",
          f"buffer_store_dword v{vEp}, v3, s[{sWSD}:{sWSD+3}], s50 offen sc1"] + stamp(3)
    o += ["@wait_vm vst"] + stamp(8, 'x') + [
          f"buffer_store_dword v{vEp}, v3, s[{sWSD}:{sWSD+3}], s51 offen sc1", "s_mov_b64 exec, -1", f"!{Ln}:"]
    o += ["s_branch L_xjoin", "@reset", "L_xY:"]
    o += fmap(t2, t1) + [f"v_lshrrev_b32 v{t1}, 5, v0", f"v_lshlrev_b32 v{t1}, 9, v{t1}", f"v_lshl_add_u32 v{t2}, v{t2}, 4, v{t1}"]
    o += [f"s_lshl_b32 s{sT0}, s{sJ}, 11", f"v_add_u32 v{t1}, s{sT0}, v{vL16}",
          f"s_add_u32 s{sT1}, s{sT0}, {STV}", f"v_add_u32 v{t2}, s{sT1}, v{t2}",
          f"v_lshrrev_b32 v2, 2, v0", f"v_lshlrev_b32 v2, 12, v2", f"v_and_b32 v3, 3, v0", f"v_lshl_add_u32 v2, v3, 9, v2",
          f"s_add_u32 s{sT0}, s{sT0}, {STV+448}", f"v_add_u32 v2, s{sT0}, v2"]
    o += [f"v_mov_b32 v{32+i}, 0x3f803f80" for i in range(4)]
    o += [f"s_lshl_b32 s{sT0}, s{sHH}, 1", f"s_add_u32 s{sT0}, s{sT0}, s{sJ}", f"s_lshl_b32 s{sT0}, s{sT0}, 4", f"s_add_u32 s{sT0}, s{sT0}, s{sRB}",
          f"s_lshl_b32 s44, s{sT0}, 13", f"s_add_u32 s44, s44, {KVP}", "s_add_u32 s45, s44, 4096",
          f"s_lshr_b32 s{sT1}, s{sT0}, 4", f"s_lshl_b32 s{sT1}, s{sT1}, 7", f"s_add_u32 s{sT1}, s{sT1}, s{sRB}",
          f"s_lshl_b32 s46, s{sT1}, 2", f"s_add_u32 s46, s46, {N1}"]
    o += spin_ev(R_V, 'all', HQ)
    o += ["s_mov_b64 exec, 0xffff", "ds_write_b128 v2, v[32:35]", "s_mov_b64 exec, -1"]
    o += [f"ds_read_b128 v[{96+4*i}:{96+4*i+3}], v{t2} offset:{4096*(i//2)+1024*(i%2)}" for i in range(8)] + signal(F_V)
    o += [f"v_mov_b32 v{33+2*i}, v{vEp}" for i in range(16)]
    o += spin_ev(R_K, 'all', HQ)
    o += [f"ds_read_b128 v[{64+4*i}:{64+4*i+3}], v{t1} offset:{STK+4096*(i//2)+1024*(i%2)}" for i in range(8)] + signal(F_K)
    o += stamp(2)
    o += [mfma(128, 64 + 4 * i, 96 + 4 * i, 128 if i else None) for i in range(8)]
    for i in range(8):
        o += [f"v_mov_b32 v{32+4*i}, v{128+2*i}", f"v_mov_b32 v{34+4*i}, v{129+2*i}",
              f"buffer_store_dwordx4 v[{32+4*i}:{35+4*i}], v{vL16}, s[{sWSD}:{sWSD+3}], s{44+i//4} offen offset:{1024*(i%4)} sc1"]
    o += notify(46, 24, vEp, 4)
    o += stamp(3)
    o += ["s_nop 1", "@reset", "L_xjoin:", f"s_setprio {OPT.get('hprio', 2)}"]
    if OPT.get('wopf', 1):
        Lp = lab('wopf')
        o += [f"s_cmp_eq_u32 s{sJ}, 0", f"!s_cbranch_scc0 {Lp}",
              f"s_lshr_b32 s{sT0}, s2, 3", f"s_mul_i32 s{sT0}, s{sT0}, {98*128}", f"v_lshl_add_u32 v24, v0, 7, s{sT0}",
              f"v_add_u32 v25, {49*128}, v24",
              "s_mov_b32 exec_hi, 0x1ffff"]
        for p in (sAO, sBO):
            o += [f"!global_load_dword v12, v24, s[{p}:{p+1}]", f"!global_load_dword v12, v25, s[{p}:{p+1}]"]
        o += ["s_mov_b64 exec, -1", f"!{Lp}:"]
    o += call("phi") + p3_setup() + [f"s_mov_b32 s{sOBd}, 0"]
    o += [f"s_cmp_eq_u32 s{sJ}, 1", "!s_cbranch_scc1 L_x1"]
    o += stamp(4)
    o += [f"s_cmp_ge_u32 s{sJ3}, 28", "!s_cbranch_scc1 L_xfin"]
    o += wait_land(ST_WA1, HQ, inline=True) + call("r0")
    o += ["s_branch L_p3", "@reset", "L_x1:"]
    o += [f"v_lshlrev_b32 v{t0}, 3, v0",
          f"s_lshl_b32 s44, s{sH}, 17", f"s_lshl_b32 s{sT0}, s{sRB}, 9", f"s_add_u32 s44, s44, s{sT0}", f"s_add_u32 s44, s44, {KVP}",
          f"s_lshl_b32 s45, s{sH}, 13", f"s_add_u32 s45, s45, {KVT}", f"s_add_u32 s46, s45, s{sT0}", "s_add_u32 s47, s45, 4096"]

    def tagcheck():
        c = ["v_min3_u32 v25, v65, v67, v69", "v_max3_u32 v26, v65, v67, v69"]
        for j in range(3, 15, 2):
            c += [f"v_min3_u32 v25, v25, v{65+2*j}, v{67+2*j}", f"v_max3_u32 v26, v26, v{65+2*j}, v{67+2*j}"]
        c += [f"v_min3_u32 v25, v25, v95, v{vEp}", f"v_max3_u32 v26, v26, v95, v{vEp}", "v_cmp_ne_u32 vcc, v25, v26"]
        return c
    body = [f"s_mov_b32 s{sT1}, s44"]
    for j in range(16):
        body += [f"buffer_load_dwordx2 v[{64+2*j}:{65+2*j}], v{t0}, s[{sWSD}:{sWSD+3}], s{sT1} offen sc1",
                 f"s_add_u32 s{sT1}, s{sT1}, 8192"]
    o += [f"v_lshlrev_b32 v26, 2, v0", f"s_lshl_b32 s49, s{sH}, 2", f"s_lshr_b32 s{sT0}, s{sRB}, 2",
          f"s_add_u32 s49, s49, s{sT0}", "s_lshl_b32 s49, s49, 7", f"s_add_u32 s49, s49, {N1}"]
    o += light_poll(25, 26, "s49", "0xffff", [f"v_cmp_ne_u32 vcc, v25, v{vEp}"])
    o += stamp(6, 'y')
    o += spin_vm(body, tagcheck())
    for st in (1, 2, 4, 8):
        for j in range(0, 16, 2 * st):
            o.append(f"v_add_f32 v{64+2*j}, v{64+2*j}, v{64+2*(j+st)}")
    o += [f"buffer_store_dwordx2 v[64:65], v{t0}, s[{sWSD}:{sWSD+3}], s46 offen sc1",
          f"s_add_u32 s49, s49, {N2-N1}", f"s_lshl_b32 s46, s{sH}, 7", f"s_add_u32 s46, s46, s{sRB}",
          "s_lshl_b32 s46, s46, 2", f"s_add_u32 s46, s46, {N2}"] + notify(46, 25, vEp, 4)
    o += stamp(4)
    o += [f"s_mov_b32 s48, 1"]
    r0hook = [f"ds_read_b32 v{HQ}, v{vM} offset:{256+4*ST_WA1}", "s_waitcnt lgkmcnt(0)", f"v_cmp_lt_u32 vcc, s48, v{HQ}",
              "s_cbranch_vccz L_x1a"] + call("r0") + ["s_mov_b32 s48, 2", "L_x1a:"]
    body = [f"buffer_load_dwordx4 v[{64+4*j}:{67+4*j}], v{vL16}, s[{sWSD}:{sWSD+3}], s{45+2*(j//4)} offen offset:{1024*(j%4)} sc1" for j in range(8)]
    o += [x.replace("L_x1a", "L_x1b") if not x.startswith("s_cbranch") else "!" + x.replace("L_x1a", "L_x1b") for x in r0hook]
    o += stamp(7, 'y')
    o += ["v_lshlrev_b32 v26, 2, v0"]
    o += light_poll(25, 26, "s49", "0xffff", [f"v_cmp_ne_u32 vcc, v25, v{vEp}"], hook=r0hook)
    o += stamp(8, 'y')
    o += spin_vm(body, tagcheck())
    o += stamp(9, 'y')
    o += [f"v_cvt_pk_bf16_f32 v{96+p}, v{64+4*p}, v{66+4*p}" for p in range(8)]
    o += [f"v_add_u32 v24, {KVF}, v{vL16}",
          f"ds_write_b128 v24, v[96:99]", f"ds_write_b128 v24, v[100:103] offset:1024"] + signal(KVRDY)
    o += call("ob") + [f"s_mov_b32 s{sOBd}, 1"]
    o += stamp(5)
    o += [f"s_cmp_ge_u32 s{sJ3}, 28", "!s_cbranch_scc1 L_xend", "s_cmp_eq_u32 s48, 2", "!s_cbranch_scc1 L_p3"]
    o += wait_land(ST_WA1, HQ, inline=True) + call("r0")
    o += ["s_branch L_p3", "@reset", "L_xfin:"] + call("ob") + ["L_xend:"] + stamp_flush(20, 0) + ["s_endpgm"]
    return o


HEADER = f"""; Fused sliding-window attention + linear attention + gated output projection (gfx950).
; One persistent launch: 256 workgroups x 8 waves (4 compute, 2 loader, 2 auxiliary).
; @launch grid=(256,1,1) block=(512,1,1) lds=163840
.amdgcn_target "amdgcn-amd-amdhsa--gfx950"
.text
.globl {NAME}_kernel
.p2align 8
.type {NAME}_kernel,@function
{NAME}_kernel:
"""
FOOTER = f"""
.section .rodata,"a"
.p2align 6
.amdhsa_kernel {NAME}_kernel
  .amdhsa_next_free_vgpr 256
  .amdhsa_next_free_sgpr 102
  .amdhsa_accum_offset 256
  .amdhsa_group_segment_fixed_size 0
  .amdhsa_kernarg_size 80
  .amdhsa_user_sgpr_count 2
  .amdhsa_user_sgpr_kernarg_segment_ptr 1
  .amdhsa_system_sgpr_workgroup_id_x 1
.end_amdhsa_kernel
"""


def main():
    body = prologue()
    SLEEP[0] = OPT.get('sleep', 1)
    l = l_wave()
    x = x_wave()
    p3 = phase3()
    sub = subroutines()
    SLEEP[0] = 0
    c = c_wave()
    rep = []
    lines = finalize(body + l + x + p3 + sub + c, rep)
    lines += ['    ' + s if not s.endswith(':') else s for s in slow]
    lines += ["L_abort:", "L_exit:", "    s_endpgm", "L_end:"]
    open(sys.argv[1], 'w').write(HEADER + "\n".join(lines) + FOOTER)
    big = [r for r in rep if r[0] >= 3]
    print("nops inserted:", len(rep), "total states", sum(r[0] for r in rep))
    for r in big:
        print("   ", r)


main()
```

```python
import sys, math, struct
from asmlib import finalize, merge

NAME = "gated_mix__sliding_block__linear_attn_block__prompt"
OPT = dict(stamps=0, l1=14, l3=8, prefetch=2, touch=0, refetch=0, wopf=0)
for a in sys.argv[2:]:
    k, v = a.split('=')
    OPT[k] = int(v)


def fhex(x):
    return '0x%08x' % struct.unpack('<I', struct.pack('<f', x))[0]


LOG2E = math.log2(math.e)
KSCALE = LOG2E * 28 ** -0.5
SPIN = 60000

def XR(c): return 16384 * (c % 4)
def WR(c): return 65536 + 16384 * (c % 4)
QLOC = [131072 + 4096 * c for c in range(6)] + [114688] + [114688 + 4096 * c for c in (1, 2, 3)] + [49152 + 4096 * c for c in range(4)]
QBB = 114688
KL = 16384
VL = 131072
STQ, STV, STK = 0, 16384, 32768
STG, STGS = 40960, 67584
WBA, WBAS = 65536, 21504
WBB, WBBS = 55296, 67584
MISC = 158720
LANDC = MISC + 256
JUNK = MISC + 512
GL = MISC + 1536
KVF = MISC + 2560
E_PA, X_PUB, E_P2, E_P3, R_K, R_V, R_Q, E_OA, F_K, E_P3A, R1, GRDY, KVRDY, EPOCH, KVISS = range(15)
ST_K, ST_V, ST_WA1, ST_WB, ST_WA2 = 21, 22, 23, 24, 25

KG, VG, OA, OB, KVP, KVT = 0x000000, 0x200000, 0x400000, 0x600000, 0x800000, 0xA00000
FK, FV, N1, N2, NA, NB, EPW = 0xA40000, 0xA48000, 0xA60000, 0xA80000, 0xAA0000, 0xAC0000, 0xA50000
STAMPS = 0xB00000
WS_SIZE = 0x1000000

sX, sAW, sAO, sBW, sBO, sGW, sOUT, sDBG, sWS = 4, 6, 8, 12, 14, 16, 18, 20, 22
sWave, sH, sRB, sPar, sHH = 24, 25, 26, 27, 28
sT0, sT1, sT2, sTO = 29, 30, 31, 3
sZ = 74
sWSD = 32
sStamp = 76
sJ3, sCT, sTB = 100, 10, 11
sW4 = 101

_lab = [0]
slow = []
ROLE = ['P']
SLEEP = [0]
vL16, vM, vOne, vF, vMs = 1, 10, 11, 12, 13
vFq = 252


def lab(p):
    _lab[0] += 1
    return f"L_{p}_{_lab[0]}"


def srd(d, ptr, size, add=0):
    o = []
    if add:
        o += [f"s_add_u32 s{d}, s{ptr}, {add}", f"s_addc_u32 s{d+1}, s{ptr+1}, 0"]
    else:
        o += [f"s_mov_b32 s{d}, s{ptr}", f"s_mov_b32 s{d+1}, s{ptr+1}"]
    o += [f"s_mov_b32 s{d+2}, {size}", f"s_mov_b32 s{d+3}, 0x20000"]
    return o


def stamp(i, kind=''):
    if not OPT['stamps']:
        return []
    alt = OPT.get('alt', 0)
    if kind == 'z':
        return [f"!s_memtime s[{sStamp+2*i}:{sStamp+2*i+1}]"] if alt == 5 else []
    if ROLE[0] == 'L' and (alt == 1) != (kind == 'f'):
        return []
    if kind == 'z':
        return [f"!s_memtime s[{sStamp+2*i}:{sStamp+2*i+1}]"] if alt == 5 else []
    if ROLE[0] == 'H' and alt in (1, 3, 4, 5):
        return []
    if kind == 'y' and alt != 4:
        return []
    if kind == 'x' and alt != 3:
        return []
    if ROLE[0] == 'C' and (alt == 2) != (kind == 'f'):
        return []
    return [f"!s_memtime s[{sStamp+2*i}:{sStamp+2*i+1}]"]


def stamp_flush(vt, vlane):
    if not OPT['stamps']:
        return []
    o = ["s_mov_b64 exec, -1", "s_waitcnt lgkmcnt(0)", f"v_mov_b32 v{vt}, 0"]
    for i in range(12):
        o.append(f"v_writelane_b32 v{vt}, s{sStamp+2*i}, {i}")
    o += [f"s_lshl_b32 s{sT0}, s2, 3", f"s_add_u32 s{sT0}, s{sT0}, s{sWave}", f"s_lshl_b32 s{sT0}, s{sT0}, 8",
          f"s_add_u32 s{sT0}, s{sT0}, {STAMPS}",
          f"v_lshlrev_b32 v{vt+1}, 2, v{vlane}",
          f"buffer_store_dword v{vt}, v{vt+1}, s[{sWSD}:{sWSD+3}], s{sT0} offen"]
    return o


def _tmo():
    return [f"s_add_u32 s{sTO}, s{sTO}, 1", f"s_cmp_gt_u32 s{sTO}, {SPIN}", "s_cbranch_scc1 L_abort"]


def _ev_read(ev, which, q):
    if which == 'all':
        return [f"ds_read_b128 v[{q}:{q+3}], v{vM} offset:{16*ev}"], \
               [f"v_min3_u32 v{q}, v{q}, v{q+1}, v{q+2}", f"v_min_u32 v{q}, v{q}, v{q+3}"]
    if which in ('hi', 'lo'):
        return [f"ds_read_b64 v[{q}:{q+1}], v{vM} offset:{16*ev + (8 if which == 'hi' else 0)}"], \
               [f"v_min_u32 v{q}, v{q}, v{q+1}"]
    if which == 'own':
        return [f"ds_read_b32 v{q}, v{vOwn} offset:{16*ev}"], []
    return [f"ds_read_b32 v{q}, v{vM} offset:{16*ev + 4*which}"], []


def spin_ev(ev, which, q=None, ge=1):
    q = vFq if q is None else q
    L, L2 = lab('sp'), lab('spx')
    rd, red = _ev_read(ev, which, q)
    o = ["s_waitcnt lgkmcnt(0)", f"!s_mov_b32 s{sTO}, 0", f"!{L}:"]
    o += ["!" + x for x in rd + _tmo() + ["s_waitcnt lgkmcnt(0)"] + red]
    if SLEEP[0]:
        o += [f"!v_cmp_le_u32 vcc, {ge}, v{q}", f"!s_cbranch_vccnz {L2}", f"!!s_sleep {SLEEP[0]}", f"!!s_branch {L}", f"!{L2}:"]
    else:
        o += [f"!v_cmp_gt_u32 vcc, {ge}, v{q}", f"!s_cbranch_vccnz {L}"]
    return o


def check_ev(ev, which, q):
    Ls, Lb = lab('slow'), lab('back')
    rd, red = _ev_read(ev, which, q)
    slow.extend([f"{Ls}:", f"s_mov_b32 s{sTO}, 0", f"{Ls}_s:"] + rd + _tmo() + ["s_waitcnt lgkmcnt(0)"] + red +
                [f"v_cmp_eq_u32 vcc, 0, v{q}", f"s_cbranch_vccnz {Ls}_s", f"s_branch {Lb}"])
    return rd, red + [f"v_cmp_eq_u32 vcc, 0, v{q}", f"!s_cbranch_vccnz {Ls}", f"!{Lb}:"]


def wait_land(st, q=None, inline=False, n=2):
    q = vFq if q is None else q
    rd = f"ds_read_b32 v{q}, v{vM} offset:{256 + 4*st}"
    if inline:
        L, L2 = lab('wl'), lab('wlx')
        o = ["s_waitcnt lgkmcnt(0)", f"!s_mov_b32 s{sTO}, 0", f"!{L}:"] + ["!" + x for x in [rd] + _tmo() + ["s_waitcnt lgkmcnt(0)"]]
        if SLEEP[0]:
            return o + [f"!v_cmp_eq_u32 vcc, {n}, v{q}", f"!s_cbranch_vccnz {L2}", f"!!s_sleep {SLEEP[0]}", f"!!s_branch {L}", f"!{L2}:"]
        return o + [f"!v_cmp_ne_u32 vcc, {n}, v{q}", f"!s_cbranch_vccnz {L}"]
    Ls, Lb = lab('slow'), lab('back')
    slow.extend([f"{Ls}:", f"s_mov_b32 s{sTO}, 0", f"{Ls}_s:", rd] + _tmo() +
                ["s_waitcnt lgkmcnt(0)", f"v_cmp_ne_u32 vcc, {n}, v{q}", f"s_cbranch_vccnz {Ls}_s", f"s_branch {Lb}"])
    return [rd], [f"v_cmp_ne_u32 vcc, {n}, v{q}", f"!s_cbranch_vccnz {Ls}", f"!{Lb}:"]


vMl = 12


def land(st):
    return [f"ds_add_u32 v{vMl}, v{vOne} offset:{4*st}"]


def signal(ev):
    return [f"ds_add_u32 v{vMs}, v{vOne} offset:{16*ev}"]


def mfma(d, a, b, c):
    cs = f"v[{c}:{c+15}]" if isinstance(c, int) and c >= 0 else "0"
    return f"v_mfma_f32_32x32x16_bf16 v[{d}:{d+15}], v[{a}:{a+3}], v[{b}:{b+3}], {cs}"


def tr(d, a, off, tag=None):
    return f"ds_read_b64_tr_b16 v[{d}:{d+1}], v{a} offset:{off}" + (f" ;@tag={tag}" if tag else "")


vOwn = 9


def common_setup():
    return [f"v_lshlrev_b32 v{vL16}, 4, v0", f"v_mov_b32 v{vM}, {MISC}", f"v_mov_b32 v{vOne}, 1",
            f"s_and_b32 s{sW4}, s{sWave}, 3",
            f"v_lshlrev_b32 v{vMs}, 2, v0", f"v_add_u32 v{vMs}, {JUNK}, v{vMs}",
            f"s_lshl_b32 s{sT0}, s{sW4}, 2", f"s_add_u32 s{sT0}, s{sT0}, {MISC}",
            f"v_writelane_b32 v{vMs}, s{sT0}, 0"]


def prologue():
    o = []
    o += ["s_load_dwordx4 s[4:7], s[0:1], 0", "s_load_dwordx8 s[12:19], s[0:1], 32",
          "s_load_dwordx4 s[20:23], s[0:1], 64", "s_load_dwordx2 s[8:9], s[0:1], 16"]
    o += stamp(0)
    if OPT.get('until'):
        o += ["!s_memtime s[98:99]"]
    o += ["s_cmp_ge_u32 s2, 256", "!s_cbranch_scc1 L_exit",
          "v_lshrrev_b32 v1, 6, v0", "v_and_b32 v0, 63, v0",
          f"v_readfirstlane_b32 s{sWave}, v1"] + code_prefetch() + [
          f"s_and_b32 s{sT0}, s2, 7", f"s_lshr_b32 s{sT1}, s2, 3",
          f"s_and_b32 s{sH}, s{sT0}, 1", f"s_lshl_b32 s{sH}, s{sH}, 3",
          f"s_and_b32 s{sT2}, s{sT1}, 7", f"s_add_u32 s{sH}, s{sH}, s{sT2}",
          f"s_lshr_b32 s{sRB}, s{sT0}, 1", f"s_lshl_b32 s{sRB}, s{sRB}, 2",
          f"s_lshr_b32 s{sT2}, s{sT1}, 3", f"s_add_u32 s{sRB}, s{sRB}, s{sT2}",
          f"s_and_b32 s{sPar}, s{sH}, 1", f"s_lshr_b32 s{sHH}, s{sH}, 1",
          f"s_and_b32 s{sT0}, s2, 1", f"s_xor_b32 s{sZ}, s{sPar}, s{sT0}", f"s_xor_b32 s{sZ}, s{sZ}, 1"]
    o += common_setup()
    o += [f"s_cmp_lt_u32 s{sWave}, 4", "!s_cbranch_scc1 L_cwave",
          f"s_cmp_ge_u32 s{sWave}, 6", "!s_cbranch_scc1 L_xwave"]
    return o


vXA, vW0, vW1, vQB, vQA, vLow, vSt = 2, 6, 7, 8, 9, 14, 15
PK = 16
WB = 32
MK = 56
accA, accB = 64, 96
XF = 128
QF = 240
vMA, vMB = 248, 249
TMP = 250
sMask = 40
sL2E, sEps, sKS, sTile, sSt = 72, 73, 39, 75, 36


def c_setup():
    o = []
    lo, hh, t0, t1, t2 = 20, 21, 22, 23, 24
    o += [f"v_and_b32 v{lo}, 31, v0", f"v_lshrrev_b32 v{hh}, 5, v0",
          f"s_lshl_b32 s{sTile}, s{sRB}, 2", f"s_add_u32 s{sTile}, s{sTile}, s{sWave}",
          f"s_mov_b32 s{sL2E}, {fhex(LOG2E)}", f"s_mov_b32 s{sEps}, {fhex(1e-6)}", f"s_mov_b32 s{sKS}, {fhex(KSCALE)}"]
    o += [f"v_bfe_u32 v{t0}, v0, 1, 3", f"v_xor_b32 v{t0}, v{t0}, v{hh}",
          f"s_lshl_b32 s{sT0}, s{sWave}, 12",
          f"v_add_u32 v{vSt}, s{sT0}, v{vL16}",
          f"v_lshlrev_b32 v{t1}, 7, v{lo}", f"v_add_u32 v{t1}, s{sT0}, v{t1}"]
    for s in range(4):
        o += [f"v_xor_b32 v{t2}, {2*s}, v{t0}", f"v_lshl_add_u32 v{vXA+s}, v{t2}, 4, v{t1}"]
    r, cg, row = 25, 26, 27
    o += [f"v_bfe_u32 v{r}, v0, 2, 2", f"v_bfe_u32 v{t0}, v0, 4, 1", f"v_and_b32 v{cg}, 3, v0",
          f"v_lshl_add_u32 v{cg}, v{t0}, 2, v{cg}",
          f"v_lshl_add_u32 v{row}, v{hh}, 3, v{r}"]
    o += [f"v_lshrrev_b32 v{t0}, 1, v{r}",
          f"v_lshlrev_b32 v{t1}, 7, v{row}", f"v_add_u32 v{t1}, 65536, v{t1}",
          f"v_lshl_add_u32 v{vW0}, v{t0}, 6, v{t1}",
          f"v_xor_b32 v{vW1}, 64, v{vW0}",
          f"v_lshl_add_u32 v{vW0}, v{cg}, 3, v{vW0}",
          f"s_xor_b32 s{sT0}, s{sZ}, 1",
          f"v_add_u32 v{t2}, s{sT0}, v{cg}", f"v_and_b32 v{t2}, 7, v{t2}",
          f"v_lshl_add_u32 v{vW1}, v{t2}, 3, v{vW1}"]
    o += [f"v_lshlrev_b32 v{t1}, 6, v{row}",
          f"v_add_u32 v{t2}, s{sPar}, v{cg}", f"v_and_b32 v{t2}, 7, v{t2}",
          f"v_lshl_add_u32 v{vQB}, v{t2}, 3, v{t1}", f"v_add_u32 v{vQB}, {QBB}, v{vQB}",
          f"v_and_b32 v{t0}, 1, v{cg}", f"v_lshlrev_b32 v{t0}, 1, v{t0}",
          f"v_bfe_u32 v{t2}, v{cg}, 1, 1", f"v_or_b32 v{t0}, v{t0}, v{t2}",
          f"v_and_b32 v{t2}, 4, v{cg}", f"v_or_b32 v{t0}, v{t0}, v{t2}",
          f"v_lshl_add_u32 v{vQA}, v{t0}, 3, v{t1}", f"v_add_u32 v{vQA}, {QBB}, v{vQA}"]
    o += [f"v_add_u32 v{vLow}, -1, v{hh}",
          f"s_sub_u32 s{sT0}, s{sPar}, 1",
          f"v_not_b32 v{t0}, v{vLow}",
          f"v_or_b32 v{vMA}, s{sT0}, v{t0}",
          f"s_not_b32 s{sT0}, s{sT0}",
          f"v_or_b32 v{vMB}, s{sT0}, v{vLow}"]
    o += [f"v_lshlrev_b32 v{t0}, 2, v{hh}", f"v_sub_u32 v{t0}, v{lo}, v{t0}"]
    for rr in range(16):
        b = 8 * (rr >> 2) + (rr & 3)
        o.append(f"v_cmp_le_i32 s[{sMask+2*rr}:{sMask+2*rr+1}], {b}, v{t0}")
    o += [f"v_mov_b32 v{t1}, 0xffff", f"v_mov_b32 v{t2}, 0xffff0000"]
    for p in range(8):
        o += [f"v_cndmask_b32 v{MK+p}, 0, v{t1}, s[{sMask+4*p}:{sMask+4*p+1}]",
              f"v_cndmask_b32 v{t0}, 0, v{t2}, s[{sMask+4*p+2}:{sMask+4*p+3}]",
              f"v_or_b32 v{MK+p}, v{MK+p}, v{t0}"]
    return o


def gemm_frags(isY):
    fr = []
    for k in range(28):
        c, s = divmod(k, 4)
        order = [(0, 0), (0, 1), (1, 0), (1, 1)] if k < 27 else [(1, 0), (1, 1), (0, 0), (0, 1)]
        for i, (p, j) in enumerate(order):
            fr.append(dict(step=c, addr=(vW0, vW1)[j], off=XR(c) + 8192 * p + s * 2048, du=512, k=k,
                           acc=(accA, accB)[p] + 16 * j, wfirst=(p == 0 and not isY), pre=[],
                           xread=(f"ds_read_b128 v[{XF+4*k}:{XF+4*k+3}], v{vXA+s} offset:{XR(c)}" if i == 0 else None)))
    for q, a in enumerate((vQB, vQA)):
        for k in range(28):
            c, s = divmod(k, 4)
            loc = QLOC[7 * q + c]
            base = QBB if loc >= QBB else 49152
            pre = [f"v_subrev_u32 v{vQA}, {QBB-49152}, v{vQA}"] if (q, k) == (1, 12) else []
            fr.append(dict(step=7 + 7 * q + c, addr=a, off=loc - base + s * 1024, du=256, k=k,
                           acc=accB + 16 * q, wfirst=True, pre=pre, xread=None))
    return fr


def need_step(st):
    if st < 7:
        return st
    base = 7 if st < 14 else 14
    return base + {0: 0, 1: 2, 2: 2, 3: 4, 4: 4, 5: 6, 6: 6}[st - base]


def gemm_slots(isY):
    fr = gemm_frags(isY)
    N = len(fr)
    D = 5
    slots = []
    issued = 0
    checked = set()
    early = {}
    for n in range(N):
        cur = []
        f = fr[n]
        lim = 3 if n == 0 else min(n + D, N - 1)
        while issued <= lim:
            g = fr[issued]
            st = need_step(g['step'])
            if st not in checked:
                checked.add(st)
                if st == 0:
                    cur += wait_land(st, inline=True) + stamp(1)
                else:
                    cur += early[st]
                if st == 5:
                    cur += ["s_waitcnt vmcnt(0)"]
            b = WB + 4 * (issued % 6)
            cur += g['pre']
            if g['xread']:
                cur.append(g['xread'])
            cur += [tr(b, g['addr'], g['off']), tr(b + 2, g['addr'], g['off'] + g['du'], tag=f"f{issued}")]
            issued += 1
            last_of_step = issued == N or fr[issued]['step'] != g['step']
            if last_of_step:
                ev = {0: E_PA, 1: E_PA, 2: E_PA, 3: E_PA, 6: E_P2, 13: E_P3A, 20: E_P3}.get(g['step'])
                if ev is not None:
                    cur += signal(ev)
        if issued + 1 < N:
            st = need_step(fr[issued + 1]['step'])
            if st > 0 and st not in early:
                rd, early[st] = wait_land(st, q=vFq + 2)
                cur += rd
        if n % 2 == 0:
            cur.append(f"@wait_ds f{n+1}")
        b = WB + 4 * (n % 6)
        x = XF + 4 * f['k']
        A, B = (b, x) if f['wfirst'] else (x, b)
        cur.append(mfma(f['acc'], A, B, f['acc'] if f['k'] else None))
        slots.append(cur)
    if OPT.get('alt') == 2:
        for i in range(11):
            n = OPT['cst'] + i * OPT.get('cstep', 4)
            if n < len(slots):
                slots[n] = stamp(i + 1, 'f') + slots[n]
    return slots


def phi_pair(a, b, ta, tb, dst, l2e, eps):
    return [f"v_mul_f32 v{ta}, s{l2e}, v{a}", f"v_mul_f32 v{tb}, s{l2e}, v{b}",
            f"v_exp_f32_e64 v{ta}, v{ta} clamp", f"v_exp_f32_e64 v{tb}, v{tb} clamp",
            f"v_max_f32 v{a}, 0, v{a}", f"v_max_f32 v{b}, 0, v{b}",
            f"v_add_f32 v{a}, v{a}, v{ta}", f"v_add_f32 v{b}, v{b}, v{tb}",
            f"v_add_f32 v{a}, s{eps}, v{a}", f"v_add_f32 v{b}, s{eps}, v{b}",
            f"v_cvt_pk_bf16_f32 v{dst}, v{a}, v{b}"]


def c_gemm(isY):
    slots = gemm_slots(isY)
    pa, p3a, p3b = slots[:112], slots[112:140], slots[140:168]
    o = []
    for s in pa:
        o += s
    o += stamp(2)
    wr = lambda d, i, base: f"ds_write_b128 v{vSt}, v[{d}:{d+3}] offset:{base + 1024*i}"
    vc = lambda j: [f"v_cvt_pk_bf16_f32 v{PK+8*j+i}, v{accB+16*j+2*i}, v{accB+16*j+2*i+1}" for i in range(8)]
    vw = [wr(PK + 4 * i, i, STV) for i in range(4)]
    o += vc(0)
    if not isY:
        f = []
        for j in range(2):
            a = accA + 16 * j
            for i in range(8):
                f += [f"v_mul_f32 v{a+2*i}, s{sKS}, v{a+2*i}", f"v_mul_f32 v{a+2*i+1}, s{sKS}, v{a+2*i+1}",
                      f"v_cvt_pk_bf16_f32 v{a+i}, v{a+2*i}, v{a+2*i+1}"]
            f += [f"v_permlane32_swap_b32 v{a+x}, v{a+x+2}" for x in (0, 1, 4, 5)]
            f += [wr(a + 4 * e, 2 * j + e, STK) for e in range(2)]
        f += signal(R_K) + vc(1) + vw + signal(R_V)
        per = OPT.get('kper', 40)
    else:
        f = vc(1) + vw + signal(R_V)
        for p in range(16):
            a = accA + 16 * (p // 8)
            i = p % 8
            f += phi_pair(a + 2 * i, a + 2 * i + 1, TMP, TMP + 1, a + i, sL2E, sEps)
            if p % 4 == 3:
                f.append(wr(a + i - 3, p // 4, STK))
        f += signal(R_K)
        per = OPT.get('yper', 40)
    o += merge(p3a, f, start=0, per=per)
    o += stamp(4)
    f = [f"v_cvt_pk_bf16_f32 v{PK+i}, v{accB+2*i}, v{accB+2*i+1}" for i in range(8)]
    f += [wr(PK, 0, STQ), wr(PK + 4, 1, STQ)] + signal(R_Q)
    o += merge(p3b, f, start=4, per=2)
    o += stamp(5)
    a = accB + 16
    o += [f"v_cvt_pk_bf16_f32 v{QF+i}, v{a+2*i}, v{a+2*i+1}" for i in range(8)]
    o += [f"v_and_b32 v{QF}, v{QF}, v{vMA}", f"v_and_b32 v{QF+1}, v{QF+1}, v{vMA}",
          f"v_and_b32 v{QF+6}, v{QF+6}, v{vMB}", f"v_and_b32 v{QF+7}, v{QF+7}, v{vMB}"]
    return o


CM, SA, SB, SC, SF, SX = 16, 32, 64, 80, 96, 112
KFR = 128
PA, PB, PF = 200, 208, 216
OACC = 96
VF = (224, 232)
vKA, vVA, vMx, vG = 2, 3, 4, 5
NEG = '0xf149f2ca'


def attention(guard):
    sI0 = sSt
    o = []

    def kread(i):
        b = KFR + 8 * i
        return [f"ds_read_b128 v[{b+4*s}:{b+4*s+3}], v{vKA} offset:{2048*i+1024*s} ;@tag=k{i}" for s in range(2)]

    def vread(i, buf):
        return [f"ds_read_b128 v[{buf+4*s}:{buf+4*s+3}], v{vVA} offset:{2048*i+1024*s} ;@tag=v{i}" for s in range(2)]

    def qk(d, i, c):
        b = KFR + 8 * i
        return [mfma(d, b, QF, c), mfma(d, b + 4, QF + 4, d)]

    def setc(i, src):
        L, Lb = lab('g'), lab('gb')
        slow.extend([f"{L}:", "s_nop 7"] + [f"v_mov_b32 v{CM+r}, {src}" for r in range(16)] + [f"s_branch {Lb}"])
        return [f"s_cmp_eq_u32 s{sI0}, {i}", f"!s_cbranch_scc1 {L}", f"!{Lb}:"]

    def maxes(s, first):
        m = []
        if first:
            m.append(f"v_max3_f32 v{vMx}, v{s}, v{s+1}, v{s+2}")
            rest = list(range(3, 16))
        else:
            rest = list(range(16))
        while rest:
            if len(rest) >= 2:
                m.append(f"v_max3_f32 v{vMx}, v{vMx}, v{s+rest[0]}, v{s+rest[1]}")
                rest = rest[2:]
            else:
                m.append(f"v_max_f32 v{vMx}, v{vMx}, v{s+rest[0]}")
                rest = []
        return m

    C1 = CM if guard else None
    if guard:
        o += [f"v_mov_b32 v{CM+r}, {NEG}" for r in range(16)]
    o += wait_land(ST_K, inline=True)
    o += stamp(6)
    order = [0, 1, 2, 3, 4, 5, 6, 7, 8] if guard else [0, 8, 1, 2, 3, 4, 5, 6, 7]
    b1 = {0: SF, 8: SC}
    bufs = {}
    for i in range(1, 8):
        b1[i] = (SA, SB, SX)[i % 3]
        bufs[i] = (SA, SB)[i % 2]
    mrg = [f"v_cndmask_b32 v{SC+r}, v{SF+r}, v{SC+r}, s[{sMask+2*r}:{sMask+2*r+1}]" for r in range(16)]
    work = {}
    for i in range(1, 8):
        work[i] = maxes(b1[i], first=(guard and i == 1))
    work[8] = mrg + maxes(SC, first=not guard)
    work[0] = []
    o += kread(order[0]) + kread(order[1]) + kread(order[2])
    q = []
    for n, i in enumerate(order):
        if guard:
            o += setc(i, "0")
        m = qk(b1[i], i, C1)
        nxt = kread(order[n + 3]) if n + 3 < 9 else []
        take = 4 if len(q) <= 12 else 6
        o += [f"@wait_ds k{i}", m[0]] + q[:take] + [m[1]] + nxt
        q = q[take:]
        if n >= 1:
            q = q + work[order[n - 1]]
        must = len(q) - len(work[order[n - 1]]) if n >= 1 else 0
        take = max(must, 4 if len(q) <= 12 else 6)
        o += q[:take]
        q = q[take:]
    vrd, vchk = wait_land(ST_V)
    o += vrd + q + work[order[-1]][:4] + vchk
    o += vread(0, VF[0]) + vread(8, VF[1])
    o += work[order[-1]][4:]
    t = TMP
    o += [f"v_mov_b32 v{t}, v{vMx}", f"v_permlane32_swap_b32 v{t}, v{vMx}",
          f"v_max_f32 v{vMx}, v{vMx}, v{t}", f"v_sub_f32 v{vMx}, 0, v{vMx}"]
    o += stamp(7)
    if guard:
        o += [f"v_mov_b32 v{CM+r}, {NEG}" for r in range(16)]
        o += setc(1, f"v{vMx}")
    else:
        o += [f"v_mov_b32 v{CM+r}, v{vMx}" for r in range(16)]

    def expcvt(s, p, sub):
        e = []
        for r in range(16):
            if sub:
                e.append(f"v_add_f32 v{s+r}, v{s+r}, v{vMx}")
        for r in range(16):
            e.append(f"v_exp_f32 v{s+r}, v{s+r}")
            if r % 2 == 1 and r >= 3:
                e.append(f"v_cvt_pk_bf16_f32 v{p+(r-3)//2}, v{s+r-3}, v{s+r-2}")
        e.append(f"v_cvt_pk_bf16_f32 v{p+7}, v{s+14}, v{s+15}")
        return e

    def spread(mf, va):
        r = []
        n = len(mf)
        k = 0
        for idx, g in enumerate(mf):
            r += g
            want = (len(va) * (idx + 1)) // n - k
            r += va[k:k + want]
            k += want
        return r

    ev = expcvt(SC, PA, True)
    ev += [x for p in range(8) for x in (f"v_and_b32 v{PB+p}, v{PA+p}, v{MK+p}", f"v_xor_b32 v{PF+p}, v{PA+p}, v{PB+p}")]
    q1 = qk(bufs[1], 1, CM)
    o += spread([[q1[0]], [q1[1]]], ev)
    prev_pv = [["@wait_ds v8", mfma(OACC, VF[0], PF, None)], [mfma(OACC, VF[0] + 4, PF + 4, OACC)] + vread(1, VF[0]),
               [mfma(OACC, VF[1], PB, OACC)], [mfma(OACC, VF[1] + 4, PB + 4, OACC)] + vread(2, VF[1])]
    gearly, glate = check_ev(GRDY, 'own', vG)
    for i in range(1, 8):
        P = (PB, PA)[i % 2]
        seq = []
        if i + 1 <= 7:
            if guard:
                o += setc(i + 1, f"v{vMx}")
            nq = qk(bufs[i + 1], i + 1, CM)
            seq += [[nq[0]], [nq[1]]]
        seq += prev_pv
        if i == 6:
            seq[-1] = seq[-1] + gearly
        if i == 7:
            seq[0] = glate + [f"ds_read_b32 v{vG}, v{vGA}", f"ds_read_b32 v{vEc}, v{vM} offset:{16*EPOCH}"] + seq[0]
        o += spread(seq, expcvt(bufs[i], P, False))
        vb = VF[(i + 1) % 2]
        prev_pv = [[f"@wait_ds v{i}", mfma(OACC, vb, P, OACC)],
                   [mfma(OACC, vb + 4, P + 4, OACC)] + (vread(i + 2, vb) if i + 2 <= 7 else [])]
    o += prev_pv[0] + prev_pv[1]
    return o


vGA, vEc = 8, 6


def finish_o(A, D, vscale, t, u, soff, vtag, snot, eps=None):
    o = [f"v_mov_b32 v{t}, v{A+15}", f"v_mov_b32 v{u}, v{A+15}", f"v_permlane32_swap_b32 v{t}, v{u}"]
    if eps is not None:
        o += [f"v_add_f32 v{u}, s{eps}, v{u}"]
    o += [f"v_rcp_f32 v{u}, v{u}", f"v_mov_b32 v{t}, 0xffff", f"v_mul_f32 v{u}, v{u}, v{vscale}"]
    for p in range(8):
        o += [f"v_mul_f32 v{A+2*p}, v{A+2*p}, v{u}"]
        if p % 4 != 3:
            o += [f"v_mul_f32 v{A+2*p+1}, v{A+2*p+1}, v{u}"]
        o += [f"v_cvt_pk_bf16_f32 v{D+p}, v{A+2*p}, v{A+2*p+1}"]
        if p % 4 == 3:
            e = p // 4
            o += [f"v_bfi_b32 v{D+p}, v{t}, v{D+p}, v{vtag}",
                  f"buffer_store_dwordx4 v[{D+4*e}:{D+4*e+3}], v{vL16}, s[{sWSD}:{sWSD+3}], s{soff} offen offset:{1024*e} sc1"]
    return o + notify(snot, t, vtag)


def c_tail():
    o = finish_o(OACC, PA, vG, TMP, TMP + 1, sSt + 1, vEc, sSt + 2)
    o += signal(E_OA)
    o += stamp(3)
    if OPT.get('alt') == 8:
        o += ["s_waitcnt vmcnt(1)", f"!s_memtime s[{sStamp+8}:{sStamp+9}]", "s_waitcnt vmcnt(0)", f"!s_memtime s[{sStamp+10}:{sStamp+11}]"]
    o += c_phase3()
    o += stamp_flush(TMP, 0)
    o += ["s_endpgm"]
    return o


def c_wave():
    ROLE[0] = 'C'
    o = ["@reset", "L_cwave:"]
    o += ["v_lshlrev_b32 v20, 3, v0", "v_mov_b32 v22, 0", "v_mov_b32 v23, 0", f"v_add_u32 v20, {MISC}, v20", "ds_write_b64 v20, v[22:23]",
          ]
    o += c_setup()
    o += ["s_waitcnt lgkmcnt(0)", "s_barrier"]
    o += srd(sWSD, sWS, WS_SIZE)
    o += [f"s_cmp_eq_u32 s{sZ}, 0", "!s_cbranch_scc1 L_cY"]
    o += c_gemm(False)
    o += ["s_branch L_attn", "@reset", "L_cY:"]
    o += c_gemm(True)
    o += ["L_attn:", f"s_setprio {OPT.get('cprio', 0)}"]
    o += [f"s_lshl_b32 s{sT0}, s{sWave}, 11",
          f"s_add_u32 s{sT1}, s{sT0}, {KL}", f"v_add_u32 v{vKA}, s{sT1}, v{vL16}",
          f"s_add_u32 s{sT1}, s{sT0}, {VL}", f"v_add_u32 v{vVA}, s{sT1}, v{vL16}",
          f"s_lshl_b32 s{sT0}, s{sWave}, 8", f"s_add_u32 s{sT0}, s{sT0}, {GL}", f"v_lshl_add_u32 v{vGA}, v0, 2, s{sT0}",
          f"s_lshl_b32 s{sT0}, s{sWave}, 2", f"s_add_u32 s{sT0}, s{sT0}, {MISC}", f"v_mov_b32 v{vOwn}, s{sT0}",
          f"s_lshl_b32 s{sT0}, s{sTile}, 4", f"s_add_u32 s{sT0}, s{sT0}, s{sH}",
          f"s_lshl_b32 s{sT1}, s{sT0}, 7", f"s_add_u32 s{sSt+2}, s{sT1}, {NA}",
          f"s_lshl_b32 s{sT0}, s{sT0}, 11", f"s_add_u32 s{sSt+1}, s{sT0}, {OA}",
          f"s_cmp_lt_u32 s{sTile}, 8", "!s_cbranch_scc1 L_attn_g"]
    o += attention(False)
    o += ["L_ctail:"]
    o += c_tail()
    o += ["@reset", "L_attn_g:", f"s_sub_u32 s{sSt}, 8, s{sTile}"]
    o += attention(True)
    o += ["s_waitcnt lgkmcnt(0)", "s_nop 15", "s_branch L_ctail", "@reset"]
    return o


def code_prefetch():
    n = OPT['prefetch']
    if not n:
        return []
    o = ["s_getpc_b64 s[38:39]", "L_pc:",
         f"s_sub_u32 s38, s38, L_pc-{NAME}_kernel", "s_subb_u32 s39, s39, 0",
         f"s_lshr_b32 s{sT0}, s2, 3", f"s_lshl_b32 s{sT1}, s{sWave}, 5", f"s_add_u32 s{sT0}, s{sT0}, s{sT1}",
         f"s_mul_i32 s{sT0}, s{sT0}, {128*n}",
         f"v_lshl_add_u32 v20, v0, 7, s{sT0}",
         f"v_min_u32 v20, L_end-{NAME}_kernel-4, v20",
         f"s_mov_b64 exec, {(1 << n) - 1}",
         "!global_load_dword v239, v20, s[38:39]", "s_mov_b64 exec, -1"]
    return o


sXD, sWD, sQBD, sQAD, sGD = 36, 40, 44, 48, 52
sKGD, sVGD = 56, 60
sRt, sTT, sE2, sL2 = 64, 65, 66, 67
sOBo, sA, sB, sC = 68, 69, 70, 71
sOff, sLi, sKh = 72, 73, 75
sEarly = 61
sOBn = 62
sNo = 63
sC7 = 53
sOBd = 60
vX, vW, vQ, vPat, vK, vV, vWO = 2, 3, 4, 5, 6, 7, 8
vEp = 15
GV = 16
HQ = 28
PQR = 16
vG1 = 27
KVr = 88
sRet = 54


def p3_slot():
    return [f"s_and_b32 s{sT0}, s{sRB}, 3", f"s_lshl_b32 s{sT0}, s{sT0}, 3", f"s_and_b32 s{sT1}, s{sH}, 7",
            f"s_add_u32 s{sJ3}, s{sT0}, s{sT1}",
            f"s_cmp_ge_u32 s{sJ3}, 14", f"s_cselect_b32 s{sT0}, 14, 0", f"s_cselect_b32 s{sT1}, 1, 0",
            f"s_sub_u32 s{sT0}, s{sJ3}, s{sT0}", f"s_lshr_b32 s{sCT}, s{sT0}, 1", f"s_and_b32 s{sT0}, s{sT0}, 1",
            f"s_lshr_b32 s{sT2}, s{sH}, 3", f"s_lshl_b32 s{sT2}, s{sT2}, 1", f"s_add_u32 s{sT1}, s{sT1}, s{sT2}",
            f"s_and_b32 s{sT2}, s{sRB}, 12", f"s_add_u32 s{sT1}, s{sT1}, s{sT2}",
            f"s_lshl_b32 s{sT1}, s{sT1}, 1", f"s_add_u32 s{sT1}, s{sT1}, s{sT0}", f"s_lshl_b32 s{sTB}, s{sT1}, 1"]


def h_setup():
    return p3_slot() + [
            f"s_lshl_b32 s{sT0}, s{sW4}, 2", f"s_add_u32 s{sT0}, s{sT0}, {MISC}", f"v_mov_b32 v{vOwn}, s{sT0}",
            f"v_lshrrev_b32 v{vLow}, 5, v0", f"v_add_u32 v{vLow}, -1, v{vLow}",
            f"s_mov_b32 s{sE2}, {fhex(1e-6)}", f"s_mov_b32 s{sL2}, {fhex(LOG2E)}",
            f"s_lshl_b32 s{sT0}, s{sRB}, 2", f"s_add_u32 s{sT0}, s{sT0}, s{sW4}", f"s_lshl_b32 s{sT0}, s{sT0}, 4",
            f"s_add_u32 s{sT0}, s{sT0}, s{sH}",
            f"s_lshl_b32 s{sT1}, s{sT0}, 7", f"s_add_u32 s{sOBn}, s{sT1}, {NB}",
            f"s_lshl_b32 s{sT0}, s{sT0}, 11", f"s_add_u32 s{sOBo}, s{sT0}, {OB}"]


def qb_phi():
    R, A = 96, 64
    t, u = 24, 25
    o = spin_ev(R_Q, 'own', HQ)
    o += [f"s_lshl_b32 s{sT0}, s{sW4}, 12", f"v_add_u32 v{t}, s{sT0}, v{vL16}",
          f"ds_read_b128 v[{R}:{R+3}], v{t}", f"ds_read_b128 v[{R+4}:{R+7}], v{t} offset:1024",
          f"s_lshl_b32 s{sT0}, s{sW4}, 8", f"s_add_u32 s{sT0}, s{sT0}, {GL}", f"v_lshl_add_u32 v{26}, v0, 2, s{sT0}",
          f"v_lshlrev_b32 v{t}, 16, v{R+6}", f"v_lshlrev_b32 v{u}, 16, v{R+6}",
          f"v_permlane32_swap_b32 v{t}, v{u}",
          f"v_mul_f32 v{u}, s{sL2}, v{u}", f"v_exp_f32_e64 v{u}, -v{u}", f"v_add_f32 v{u}, 1.0, v{u}",
          f"v_rcp_f32 v{u}, v{u}", f"ds_write_b32 v26, v{u}"] + signal(GRDY) + [f"v_sub_f32 v{vG1}, 1.0, v{u}"]
    for p in range(8):
        o += [f"v_lshlrev_b32 v{A+2*p}, 16, v{R+p}", f"v_and_b32 v{A+2*p+1}, 0xffff0000, v{R+p}"]
        o += phi_pair(A + 2 * p, A + 2 * p + 1, t, u, PQR + p, sL2, sE2)
    o += [f"v_and_b32 v{PQR+6}, v{PQR+6}, v{vLow}", f"v_and_b32 v{PQR+7}, v{PQR+7}, v{vLow}"]
    return o


def ob_tile(read_kv=True):
    o = []
    if read_kv:
        o += spin_ev(KVRDY, 3, HQ)
        o += [f"v_add_u32 v24, {KVF}, v{vL16}",
              f"ds_read_b128 v[{KVr}:{KVr+3}], v24", f"ds_read_b128 v[{KVr+4}:{KVr+7}], v24 offset:1024"]
    o += [mfma(64, KVr, PQR, None), mfma(64, KVr + 4, PQR + 4, 64)]
    o += finish_o(64, 80, vG1, 24, 25, sOBo, vEp, sOBn, eps=sE2)
    return o


def call(name):
    return ["@drain", f"!s_call_b64 s[{sRet}:{sRet+1}], L_sub_{name}", "@reset"]


def subroutines():
    o = []
    for name, body in (("phi", qb_phi()), ("ob", ob_tile()), ("r0", woa_read(0) + signal(R1)), ("r1", woa_read(1))):
        o += ["@reset", f"L_sub_{name}:"] + body + ["s_waitcnt lgkmcnt(0)", f"!s_setpc_b64 s[{sRet}:{sRet+1}]"]
    for name, w in (("d7", f"!s_waitcnt vmcnt({OPT.get('wlead', 20) - 1})"), ("d7e", f"!s_waitcnt vmcnt({OPT.get('elead', 14) - 1})")):
        o += ["@reset", f"L_sub_{name}:"]
        for m in range(7):
            o += [w, f"!buffer_load_dwordx4 v{vWO}, s[{sXD}:{sXD+3}], s{sOff} offen lds",
                  f"!s_add_u32 s{sOff}, s{sOff}, s{sC7}", "!s_addk_i32 m0, 1024"]
        o += [f"!s_setpc_b64 s[{sRet}:{sRet+1}]"]
    return o


def wait_serving(rd, red, cmp_ok, early=None):
    L, L1, L2 = lab('ws'), lab('ws1'), lab('ws2')
    o = ["@drain", f"s_mov_b32 s{sTO}, 0", f"!{L}:", "!" + rd, f"!ds_read_b32 v24, v{vM} offset:{16*KVRDY+12}"]
    o += ["!" + x for x in _tmo()]
    o += ["!s_waitcnt lgkmcnt(0)", f"!v_cmp_lt_u32 vcc, s{sOBd}, v24", f"!s_cbranch_vccz {L1}",
          f"!s_call_b64 s[{sRet}:{sRet+1}], L_sub_ob", f"!s_mov_b32 s{sOBd}, 1", f"!s_mov_b32 s{sTO}, 0", f"!s_branch {L}", f"!{L1}:"]
    o += ["!" + x for x in red + [cmp_ok, f"s_cbranch_vccnz {L2}"]]
    if early is not None:
        o += [f"!s_mov_b32 s{early}, 1"]
    o += [f"!s_sleep {OPT.get('ssleep', 2)}", f"!s_branch {L}", "@reset", f"!{L2}:"]
    return o


def serve_ev(ev, early=None):
    return wait_serving(f"ds_read_b128 v[{HQ}:{HQ+3}], v{vM} offset:{16*ev}",
                        [f"v_min3_u32 v{HQ}, v{HQ}, v{HQ+1}, v{HQ+2}", f"v_min_u32 v{HQ}, v{HQ}, v{HQ+3}"],
                        f"v_cmp_ne_u32 vcc, 0, v{HQ}", early)


def serve_land(st):
    return wait_serving(f"ds_read_b32 v{HQ}, v{vM} offset:{256+4*st}", [], f"v_cmp_eq_u32 vcc, 2, v{HQ}")


def dma(vaddr, sd, soff, lds, extra="", tag=None):
    o = [f"s_add_u32 m0, s{sLi}, {lds}"]
    if soff:
        o.append(f"s_mov_b32 s{sOff}, {soff}")
        so = f"s{sOff}"
    else:
        so = "0"
    o.append(f"buffer_load_dwordx4 v{vaddr}, s[{sd}:{sd+3}], {so} offen {extra} lds" + (f" ;@tag={tag}" if tag else ""))
    return o


def spin_vm(body, cond, sleep=0):
    L = lab('pv')
    o = [f"!s_mov_b32 s{sTO}, 0", f"!{L}:"]
    o += ["!" + b for b in body + _tmo()]
    o += ["s_waitcnt vmcnt(0)"]
    o += ["!" + c for c in cond]
    o += [f"!s_cbranch_vccnz {L}"]
    return o


def flag_ld(vdst, vaddr, soff):
    if 1:
        return [f"v_mov_b32 v{vdst}, 0", f"buffer_atomic_or v{vdst}, v{vaddr}, s[{sWSD}:{sWSD+3}], {soff} offen sc0 sc1"]
    return [f"buffer_load_dword v{vdst}, v{vaddr}, s[{sWSD}:{sWSD+3}], {soff} offen sc1"]


def light_poll(vdst, vaddr, soff, mask, cmp_bad, first_issued=False, sleep=None, flag=False, hook=None):
    sleep = OPT.get('psleep', 1) if sleep is None else sleep
    L, L2, L0 = lab('lp'), lab('lpx'), lab('lp0')
    ld = f"buffer_load_dword v{vdst}, v{vaddr}, s[{sWSD}:{sWSD+3}], {soff} offen sc1"
    o = [f"s_mov_b64 exec, {mask}", f"s_mov_b32 s{sTO}, 0"]
    if first_issued:
        o += [f"!s_branch {L0}"]
    o += [f"!{L}:"] + ["!!" + x for x in (flag_ld(vdst, vaddr, soff) if flag else [ld])] + [f"!{L0}:"] + ["!" + x for x in _tmo()] + ["s_waitcnt vmcnt(0)"]
    o += ["!" + c for c in cmp_bad]
    o += [f"!s_cbranch_vccz {L2}"]
    if hook:
        o += ["!!s_mov_b64 s[50:51], vcc", "!!s_mov_b64 exec, -1"] + ["!!" + x.lstrip('!') for x in hook if not x.startswith('@')] + ["!!s_mov_b64 vcc, s[50:51]"]
    o += ["!!s_mov_b64 exec, vcc"] + ([f"!!s_sleep {sleep}"] if sleep else []) + \
         [f"!!s_branch {L}", f"!{L2}:", "s_mov_b64 exec, -1"]
    return o


def notify(soff, vt, vep, fan=1):
    return [f"v_lshlrev_b32 v{vt}, 7, v0", f"s_mov_b64 exec, {(1 << fan) - 1}",
            f"buffer_store_dword v{vep}, v{vt}, s[{sWSD}:{sWSD+3}], s{soff} offen sc1", "s_mov_b64 exec, -1"]


def fmap(d, t):
    return [f"v_bfe_u32 v{d}, v0, 4, 1", f"v_bfe_u32 v{t}, v0, 2, 1", f"v_lshl_add_u32 v{d}, v{d}, 1, v{t}",
            f"v_mul_u32_u24 v{d}, 7, v{d}", f"v_bfe_u32 v{t}, v0, 3, 1", f"v_lshl_add_u32 v{d}, v{t}, 2, v{d}",
            f"v_and_b32 v{t}, 3, v0", f"v_add_u32 v{d}, v{d}, v{t}"]


def l_wave():
    ROLE[0] = 'L'
    o = [f"s_setprio {OPT.get('lprio', 2)}"]
    t0, t1, t2 = 24, 25, 26
    sHW = sW4
    o += [f"s_lshl_b32 s{sLi}, s{sHW}, 10",
          f"v_mov_b32 v{vMl}, v{vMs}", f"s_mov_b32 s{sT0}, {LANDC}", f"v_writelane_b32 v{vMl}, s{sT0}, 0"]
    o += [f"v_lshrrev_b32 v{t0}, 3, v0", f"s_lshl_b32 s{sT0}, s{sRB}, 4", f"s_add_u32 s{sT0}, s{sT0}, s{sHW}",
          f"s_lshl_b32 s{sT0}, s{sT0}, 3", f"v_add_u32 v{t1}, s{sT0}, v{t0}", f"v_mul_u32_u24 v{vX}, 896, v{t1}",
          f"v_lshrrev_b32 v{t1}, 4, v0", f"s_lshl_b32 s{sT0}, s{sHW}, 2", f"v_add_u32 v{t1}, s{sT0}, v{t1}",
          f"v_and_b32 v{t2}, 7, v0", f"v_xor_b32 v{t1}, v{t1}, v{t2}", f"v_lshl_add_u32 v{vX}, v{t1}, 4, v{vX}"]
    o += [f"s_lshl_b32 s{sT2}, s{sZ}, 4", f"s_add_u32 s{sT1}, s{sT2}, 112", f"s_add_u32 s{sT2}, s{sT2}, 48",
          f"s_mul_i32 s{sT1}, s{sT1}, s{sHH}", f"s_add_u32 s{sT1}, s{sT1}, 896",
          f"s_lshl_b32 s{sT0}, s{sHW}, 3", f"v_add_u32 v{t1}, s{sT0}, v{t0}", f"v_mul_u32_u24 v{vW}, 2688, v{t1}",
          f"v_bfe_u32 v{t1}, v0, 2, 1", f"v_bfe_u32 v{t2}, v0, 4, 1", f"v_xor_b32 v{t1}, v{t1}, v{t2}",
          f"v_mul_u32_u24 v{t2}, s{sT2}, v{t1}", f"v_add3_u32 v{vW}, v{vW}, v{t2}, s{sT1}",
          f"v_and_b32 v{t2}, 3, v0", f"v_lshl_add_u32 v{vW}, v{t2}, 4, v{vW}"]
    o += [f"s_mov_b32 s{sXD+2}, 1835008", f"s_mov_b32 s{sXD+3}, 0x20000",
          f"s_mov_b32 s{sWD+2}, 1204224", f"s_mov_b32 s{sWD+3}, 0x20000",
          f"s_cmp_eq_u32 s{sH}, 15", f"s_cselect_b32 s{sWD+2}, 0, s{sWD+2}",
          f"s_cmp_eq_u32 s{sZ}, 0"]
    o += stamp(1, 'f')
    o += ["s_waitcnt lgkmcnt(0)",
          f"s_mov_b32 s{sXD}, s{sX}", f"s_mov_b32 s{sXD+1}, s{sX+1}",
          f"s_cselect_b32 s{sWD}, s{sBW}, s{sAW}", f"s_cselect_b32 s{sWD+1}, s{sBW+1}, s{sAW+1}"]
    ops = []
    for c in range(7):
        for ii in range(8):
            ops.append((dma(vX, sXD, 16 * ii * 896 + 128 * c, XR(c) + 2048 * ii), c))
        for p in range(2):
            for ii in range(4):
                ops.append((dma(vW, sWD, (64 * c + 16 * ii) * 2688 + 896 * p, WR(c) + 8192 * p + 2048 * ii), c))
    for q, sd in enumerate((sQBD, sQAD)):
        for c in range(7):
            for ii in range(2):
                ops.append((dma(vQ, sd, (64 * c + 32 * ii) * 2688, QLOC[7 * q + c] + 2048 * ii), 7 + 7 * q + c))
    late = srd(sWSD, sWS, WS_SIZE) + srd(sQBD, sBW, 1204224) + srd(sQAD, sAW, 1204224) + srd(sGD, sGW, 896)
    late += [f"v_lshrrev_b32 v{t0}, 2, v0", f"s_lshl_b32 s{sT0}, s{sHW}, 4", f"v_add_u32 v{t0}, s{sT0}, v{t0}",
             f"v_mul_u32_u24 v{vQ}, 2688, v{t0}", f"v_and_b32 v{t1}, 3, v0", f"v_lshl_add_u32 v{vQ}, v{t1}, 4, v{vQ}",
             f"s_mul_i32 s{sT0}, s{sH}, 56", f"s_lshl_b32 s{sT1}, s{sPar}, 3", f"s_sub_u32 s{sT0}, s{sT0}, s{sT1}",
             f"v_add_u32 v{vQ}, s{sT0}, v{vQ}",
             f"v_bfe_u32 v{t0}, v0, 4, 1", f"v_lshlrev_b32 v{t0}, 5, v{t0}", f"v_and_b32 v{t1}, 15, v0",
             f"s_lshl_b32 s{sT0}, s{sHW}, 4", f"v_add3_u32 v{t0}, v{t0}, v{t1}, s{sT0}",
             f"v_lshlrev_b32 v27, 1, v{t0}",
             f"s_xor_b32 s{sT0}, s{sPar}, 1", f"s_mul_i32 s{sT0}, s{sT0}, 56", f"s_add_u32 s{sT0}, s{sT0}, {QBB}",
             f"v_lshl_add_u32 v{vPat}, v{t0}, 6, s{sT0}"]
    late += [f"buffer_load_ushort v{GV+c}, v27, s[{sGD}:{sGD+3}], 0 offen offset:{128*c}" for c in range(7)]
    late += [f"s_mul_i32 s{sT0}, s{sHW}, {VG}", [f"s_add_u32 s{sKGD}, s{sWS}, s{sT0}", f"s_addc_u32 s{sKGD+1}, s{sWS+1}, 0"],
             f"s_mov_b32 s{sKGD+2}, 1835008", f"s_mov_b32 s{sKGD+3}, 0x20000"]
    late += [f"s_lshl_b32 s{sT0}, s{sRB}, 2", f"s_sub_u32 s{sT0}, s{sT0}, 8", f"s_mul_i32 s{sA}, s{sT0}, 28672",
             f"s_mul_i32 s{sT1}, s{sH}, 7", f"s_lshr_b32 s{sT1}, s{sT1}, 1", f"s_lshl_b32 s{sT1}, s{sT1}, 9",
             f"s_add_u32 s{sT1}, s{sT1}, s{sA}",
             f"v_add_u32 v{vK}, s{sT1}, v{vL16}",
             f"s_mul_i32 s{sT1}, s{sH}, 448", f"s_add_u32 s{sT1}, s{sT1}, s{sA}",
             f"v_lshrrev_b32 v{t0}, 5, v0", f"v_mul_u32_u24 v{t0}, 7168, v{t0}"] + fmap(t1, t2) + [
             f"v_lshl_add_u32 v{t0}, v{t1}, 4, v{t0}", f"v_add_u32 v{vV}, s{sT1}, v{t0}"]
    vFl = 32
    late += [f"s_mul_i32 s{sT0}, s{sH}, 28", f"s_add_u32 s{sT1}, s{sT0}, 27",
             f"s_lshr_b32 s{sT0}, s{sT0}, 6", [f"s_lshr_b32 s{sT1}, s{sT1}, 6", f"s_cmp_eq_u32 s{sT0}, s{sT1}",
             f"s_cselect_b32 s{sB}, 0x15, 63"],
             f"s_min_u32 s{sT0}, s{sRB}, 2", f"s_lshl_b32 s{sT0}, s{sT0}, 1", f"s_sub_u32 s{sT0}, 4, s{sT0}",
             f"s_lshl_b32 s{sT1}, -1, s{sT0}", f"s_and_b32 s{sB}, s{sB}, s{sT1}", f"s_mov_b32 s{sB+1}, 0",
             f"s_lshl_b32 s{sT0}, s{sRB}, 4", f"s_add_u32 s{sT0}, s{sT0}, s{sH}", f"s_lshl_b32 s{sT0}, s{sT0}, 7",
             f"v_lshl_add_u32 v{vFl}, v0, 2, s{sT0}"]
    late += [h_setup()] + p3_early()
    late += [f"v_lshrrev_b32 v{t0}, 3, v0", f"s_mul_i32 s{sT0}, s{sHW}, 224", f"v_add_u32 v{t1}, s{sT0}, v{t0}",
             f"v_mul_u32_u24 v{vWO}, 896, v{t1}",
             f"v_bfe_u32 v{t1}, v0, 2, 1", f"v_bfe_u32 v{t2}, v0, 4, 1", f"v_xor_b32 v{t1}, v{t1}, v{t2}",
             f"v_lshl_add_u32 v{vWO}, v{t1}, 6, v{vWO}", f"v_and_b32 v{t2}, 3, v0", f"v_lshl_add_u32 v{vWO}, v{t2}, 4, v{vWO}",
             f"s_lshl_b32 s{sT0}, s{sCT}, 7", f"v_add_u32 v{vWO}, s{sT0}, v{vWO}"]
    pieces = [late[i:i + 6] for i in range(0, len(late), 6)]
    last_of = {}
    for n, (_, st) in enumerate(ops):
        last_of[st] = n
    def lead_at(n):
        return OPT['l1'] if ops[n][1] < 7 else OPT['l3']
    sig_next = 0

    def do_signal(st):
        r = [f"@wait_vm o{last_of[st]}"]
        if 7 <= st <= 13:
            r.append(f"ds_write_b16 v{vPat}, v{GV+st-7} offset:{QLOC[st-7]-QBB}")
        return r + land(st)

    def emit_ops(n0, n1, sig, fine):
        r = []
        for n in range(n0, n1):
            ins, st = ops[n]
            need = {64: 1, 80: 2, 96: 3, 124: 4}.get(n)
            if need:
                assert sig >= need
                r += spin_ev(E_PA, 'all', HQ, ge=need)
            ins = ins[:-1] + [ins[-1] + f" ;@tag=o{n}"]
            if n == 0:
                r += stamp(2, 'f')
            r += ins
            if n == 15:
                r += stamp(3, 'f') + ["s_barrier"] + stamp(4, 'f')
            if n >= 16 and pieces:
                r += sum([x if isinstance(x, list) else [x] for x in pieces.pop(0)], [])
            done = n - lead_at(n)
            if done >= 0 and n >= 15:
                r += [f"@wait_vm o{done}"]
            while sig < 21 and last_of[sig] <= done and n >= 15:
                r += do_signal(sig)
                r += {0: stamp(5, 'f'), 1: stamp(6, 'f'), 2: stamp(7, 'f'), 4: stamp(8, 'f'), 6: stamp(9, 'f'), 10: stamp(10, 'f')}.get(sig, [])
                sig += 1
        return r, sig

    def tail(sig, pf=False):
        r, sig = emit_ops(HOLD, len(ops), sig, False)
        r += stamp(1) + stamp(11, 'f')
        if pf and OPT.get('ypf', 0):
            r += [f"s_cmp_eq_u32 s{sHW}, 0", f"s_cselect_b32 s48, s{sAO}, s{sBO}", f"s_cselect_b32 s49, s{sAO+1}, s{sBO+1}",
                  f"s_and_b32 s{sT0}, s{sRB}, 3", f"s_lshl_b32 s{sT0}, s{sT0}, 2", f"s_and_b32 s{sT1}, s{sHH}, 3",
                  f"s_add_u32 s{sT0}, s{sT0}, s{sT1}", f"s_mul_i32 s{sT0}, s{sT0}, {196*128}",
                  f"v_lshl_add_u32 v33, v0, 7, s{sT0}", "s_mov_b32 exec_hi, 0x1ffff"]
            for i in range(4):
                r += [f"global_load_dword v{40+i}, v33, s[48:49]"] + ([f"v_add_u32 v33, {49*128}, v33"] if i < 3 else [])
            r += ["s_mov_b64 exec, -1"]
        for st in range(sig, 21):
            r += do_signal(st)
        return r
    HOLD = OPT.get('hold', 140)
    r, sig = emit_ops(0, HOLD, 0, True)
    assert not pieces
    o += r
    if HOLD < len(ops):
        o += [f"s_cmp_eq_u32 s{sZ}, 0", "!s_cbranch_scc0 L_lhold"]
    o += tail(sig, True)
    if HOLD < len(ops):
        o += ["s_branch L_ljoin", "@reset", "L_lhold:"]
        while last_of[sig] < HOLD:
            o += [f"s_waitcnt vmcnt({HOLD - 1 - last_of[sig]})"] + do_signal(sig)
            sig += 1
        o += spin_ev(X_PUB, 'hi', HQ)
        o += tail(sig)
        o += ["@reset", "L_ljoin:"]
    o += spin_ev(EPOCH, 0, vEp)
    d7 = [f"!s_call_b64 s[{sRet}:{sRet+1}], L_sub_d7e"]

    def batch(ptr, row0, lds, stride, n, sub=d7):
        return [f"s_mov_b32 s{sXD}, s{ptr}", f"s_mov_b32 s{sXD+1}, s{ptr+1}", f"s_mov_b32 s{sOff}, {row0*896}",
                f"s_mul_i32 s{sLi}, s{sHW}, {stride}", f"s_add_u32 m0, s{sLi}, {lds}"] + sub * n
    o += [f"s_mov_b32 s{sXD+2}, 401408", f"s_mov_b32 s{sC7}, 7168",
          f"s_cmp_ge_u32 s{sJ3}, 28", "!s_cbranch_scc1 L_lnoA"]
    if OPT.get('e1', 1):
        o += [f"s_cmp_eq_u32 s{sHW}, 0", "!s_cbranch_scc1 L_lnoA"]
    o += spin_ev(E_P2, 'all', HQ)
    if OPT.get('zgate', 1):
        o += [f"s_cmp_eq_u32 s{sZ}, 0", "!s_cbranch_scc1 L_lgoA"] + spin_ev(X_PUB, 'hi', HQ) + ["L_lgoA:"]
    o += batch(sAO, 0, WBA, WBAS, 3)
    if OPT.get('e1', 1):
        o += [f"v_subrev_u32 v{vWO}, {224*896}, v{vWO}", f"s_mov_b32 s{sOff}, 0", f"s_mov_b32 m0, {WBA}"] + d7 * 3
    o += ["L_lnoA:"]
    o += [f"s_cmp_eq_u32 s{sHW}, 0", "!s_cbranch_scc0 L_lgV"] + spin_ev(F_K, 'hi', HQ, ge=2) + ["s_branch L_lg", "L_lgV:"]
    o += spin_ev(E_P3A, 'all', HQ) + ["L_lg:"]
    o += stamp(6, 'z')
    o += [f"s_mul_i32 s{sT1}, s{sHW}, {FV-FK}", f"s_add_u32 s{sT1}, s{sT1}, {FK}"]
    o += light_poll(t1, 32, f"s{sT1}", f"s[{sB}:{sB+1}]", [f"v_cmp_ne_u32 vcc, v{t1}, v{vEp}"], flag=OPT.get('apoll', 1), sleep=OPT.get('fsleep', 2))
    o += stamp(2)
    if OPT.get('alt') == 5:
        o += [f"s_add_u32 s{sStamp+14}, s{sStamp}, s{sTO}"]
    o += [f"s_cmp_eq_u32 s{sHW}, 0", "!s_cbranch_scc0 L_lV"]
    for j in range(12):
        for e in range(2):
            o += [f"s_mov_b32 m0, {KL + 2048*j + 1024*e - 1024*e}",
                  f"buffer_load_dwordx4 v{vK}, s[{sKGD}:{sKGD+3}], 0 offen offset:{1024*e} sc1 lds"]
        o += [f"v_add_u32 v{vK}, 28672, v{vK}"]
    o += [f"s_mov_b32 s{sA}, {4*ST_K}", "s_branch L_lKV", "@reset", "L_lV:"]
    o += [f"v_mov_b32 v{36+i}, 0x3f803f80" for i in range(4)]
    o += [f"v_lshlrev_b32 v{t0}, 9, v0", f"v_add_u32 v{t0}, {VL+496}, v{t0}",
          "s_mov_b32 exec_hi, 0xffff", f"ds_write_b128 v{t0}, v[36:39]",
          "s_mov_b32 exec_lo, 0x7fffffff", "s_mov_b32 exec_hi, 0x7fffffff", f"s_mov_b32 s{sOff}, 14336"]
    for j in range(12):
        for e in range(2):
            pre = [f"v_add_u32 v{t2}, s{sOff}, v{vV}"] if e else []
            o += pre + [f"s_mov_b32 m0, {VL + 2048*j + 1024*e}",
                        f"buffer_load_dwordx4 v{t2 if e else vV}, s[{sKGD}:{sKGD+3}], 0 offen sc1 lds"]
        o += [f"v_add_u32 v{vV}, 28672, v{vV}"]
    o += ["s_mov_b64 exec, -1", f"s_mov_b32 s{sA}, {4*ST_V}", "@reset", "L_lKV:"]
    o += stamp(3) + signal(KVISS)
    kvland = [f"v_add_u32 v{t2}, s{sA}, v{vMl}", f"v_mov_b32 v{t0}, 2", f"ds_add_u32 v{t2}, v{t0}"]
    o += [f"s_cmp_ge_u32 s{sJ3}, 28", "!s_cbranch_scc0 L_lwo"] + call("phi") + \
        ["s_waitcnt vmcnt(0)"] + kvland + call("ob") + stamp_flush(20, 0) + ["s_endpgm", "@reset", "L_lwo:"]
    o += call("phi") + stamp(8, 'z')
    o += ["s_waitcnt vmcnt(0)"] + kvland
    o += stamp(4)
    o += land(ST_WB)
    o += p3_setup() + [f"s_mov_b32 s{sOBd}, 0"] + serve_land(ST_WA1) + call("r0")
    o += stamp(5)
    o += ["s_branch L_p3", "@reset"]
    return o


sOb, sNb = 58, 59


def gload(g):
    r = [f"s_add_u32 s{sT2}, s{sOb}, {4096*g}"]
    for e in range(4):
        n = 4 * g + e
        r.append(f"buffer_load_dwordx4 v[{OF+4*n}:{OF+4*n+3}], v{vOG}, s[{sWSD}:{sWSD+3}], s{sT2} offen offset:{1024*e} sc1")
    return r


WA = 128
OF = 64
ACC = 32
BB = 16
vA = 2
vOG = 6
vTg = 9


def p3_early(PARK=248, base=STG, stride=STGS):
    t0, t1, t2, r, cg = 240, 241, 242, 243, 244
    o = [f"s_lshr_b32 s{sKh}, s{sW4}, 1", f"s_and_b32 s{sRt}, s{sW4}, 1",
         f"s_add_u32 s{sTT}, s{sTB}, s{sRt}",
         f"v_bfe_u32 v{r}, v0, 2, 2", f"v_bfe_u32 v{t0}, v0, 4, 1", f"v_and_b32 v{cg}, 3, v0",
         f"v_lshl_add_u32 v{cg}, v{t0}, 2, v{cg}", f"v_lshlrev_b32 v{cg}, 3, v{cg}",
         f"s_mul_i32 s{sT0}, s{sKh}, {stride}", f"s_add_u32 s{sT0}, s{sT0}, {base}",
         f"v_add_u32 v{cg}, s{sT0}, v{cg}",
         f"v_lshrrev_b32 v{t2}, 5, v0", f"v_mul_u32_u24 v{t2}, 7, v{t2}"]
    for s_ in range(2):
        for u in range(2):
            d = PARK + 2 * s_ + u
            o += [f"v_min_u32 v{t0}, {2 if u else 3}, v{r}", f"v_add3_u32 v{t0}, v{t0}, v{t2}, {14*s_+4*u}",
                  f"v_bfe_u32 v{t1}, v{t0}, 1, 1", f"v_xor_b32 v{t1}, s{sKh}, v{t1}",
                  f"v_lshl_add_u32 v{d}, v{t0}, 7, v{cg}", f"v_lshl_add_u32 v{d}, v{t1}, 6, v{d}"]
    o += [f"s_lshl_b32 s{sT0}, s{sTT}, 1", f"s_add_u32 s{sT0}, s{sT0}, s{sKh}", f"s_lshl_b32 s{sNo}, s{sT0}, 10", f"s_lshl_b32 s{sT0}, s{sT0}, 14",
          f"v_add_u32 v{PARK+4}, s{sT0}, v{vL16}"]
    return o


def p3_setup():
    return [f"v_mov_b32 v{vA+i}, v{248+i}" for i in range(5)] + [f"v_and_b32 v{vTg}, 0xffff0000, v{vEp}"]


FLIP = [f"v_xor_b32 v{vA+i}, 64, v{vA+i}" for i in range(4)]


def wo_frag(dst, hl, s, tag=None):
    return [tr(dst, vA + 2 * s, 28 * hl * 128), tr(dst + 2, vA + 2 * s + 1, 28 * hl * 128, tag)]


def woa_read(rho):
    o = []
    for j in range(2):
        for hl in range(4):
            for s in range(2):
                o += wo_frag(WA + 64 * j + 8 * (4 * rho + hl) + 4 * s, hl, s)
        o += FLIP
    return o


RSTR = VL - KL


def half_sub():
    vC = 7
    o = ["@reset", "L_sub_half:"]

    def gcheck(g):
        b = OF + 16 * g
        ch = [f"v_xor_b32 v{b+4*e+3}, v{b+4*e+3}, v{vTg}" for e in range(4)]
        ch += [f"v_or3_b32 v{vC}, v{b+3}, v{b+7}, v{b+11}", f"v_or_b32 v{vC}, v{vC}, v{b+15}",
               f"v_cmp_lt_u32 vcc, 0xffff, v{vC}"]
        Ls, Lb = lab('slow'), lab('back')
        slow.extend([f"{Ls}:"] + ([f"s_add_u32 s{sStamp+14}, s{sStamp+14}, 1"] if OPT.get('alt') == 6 else []) + [f"s_mov_b32 s{sTO}, 0", f"{Ls}_s:", "s_sleep 4"] + gload(g) + _tmo() + ["s_waitcnt vmcnt(0)"] + ch +
                    [f"s_cbranch_vccnz {Ls}_s", f"s_branch {Lb}"])
        return ch + [f"!s_cbranch_vccnz {Ls}", f"!{Lb}:"]
    if OPT.get('alt') == 6:
        o += ["s_waitcnt lgkmcnt(0)", f"s_mov_b32 s{sStamp+14}, s{sStamp}"]
    if OPT.get('alt') in (7, 8):
        o += [f"!s_memtime s[{sStamp+12}:{sStamp+13}]"]
    o += [f"v_lshlrev_b32 v7, 7, v0"]
    o += light_poll(HQ, 7, f"s{sNb}", "0xff", [f"v_cmp_ne_u32 vcc, v{HQ}, v{vEp}"], sleep=OPT.get('osleep', 1))
    o += stamp(9)
    if OPT.get('alt') in (7, 8):
        o += [f"s_add_u32 s{sStamp+14}, s{sStamp}, s{sTO}"]
    for g in range(4):
        o += gload(g)
    sO = 40
    o += srd(sO, sOUT, 1835008)
    o += [f"s_lshr_b32 s{sT2}, s{sWave}, 2", f"s_mul_i32 s{sT1}, s{sT2}, {RSTR}",
          f"s_mul_i32 s{sT0}, s{sW4}, 6144", f"s_add_u32 s{sT0}, s{sT0}, {KL}",
          f"s_add_u32 s44, s{sT0}, s{sT1}", f"v_add_u32 v2, s44, v{vL16}",
          f"s_sub_u32 s44, s{sT0}, s{sT1}", f"s_add_u32 s44, s44, {RSTR+4096}", f"v_add_u32 v3, s44, v{vL16}",
          f"s_lshl_b32 s{sT2}, s{sT2}, 11",
          f"s_xor_b32 s{sT1}, s{sW4}, 2", f"s_mul_i32 s{sT0}, s{sT1}, 6144", f"s_add_u32 s{sT0}, s{sT0}, s{sT2}",
          f"s_add_u32 s{sT0}, s{sT0}, {KL}", f"v_add_u32 v4, s{sT0}, v{vL16}", f"v_add_u32 v24, {RSTR}, v4",
          f"v_and_b32 v8, 31, v0", f"s_lshl_b32 s{sT0}, s{sTT}, 5", f"v_add_u32 v8, s{sT0}, v8",
          f"v_mul_u32_u24 v8, 896, v8", f"v_lshrrev_b32 v5, 5, v0",
          f"v_lshl_add_u32 v8, v5, 4, v8",
          f"s_lshl_b32 s{sT0}, s{sCT}, 1", f"s_add_u32 s{sT0}, s{sT0}, s{sKh}", f"s_lshl_b32 s{sT0}, s{sT0}, 6",
          f"s_lshr_b32 s{sT2}, s{sT2}, 6", f"s_add_u32 s{sT0}, s{sT0}, s{sT2}",
          f"v_add_u32 v8, s{sT0}, v8"]
    early, late = check_ev(E_OA, 'all', HQ)
    for n in range(16):
        if n % 4 == 0:
            o += gcheck(n // 4)
        if n == 12:
            o += early
        for j in ((0, 1) if n < 12 else ()):
            o.append(mfma(ACC + 16 * j, WA + 64 * j + 4 * n, OF + 4 * n, ACC + 16 * j if n else None))
    for j in (1, 0):
        for n in range(12, 16):
            o.append(mfma(ACC + 16 * j, WA + 64 * j + 4 * n, OF + 4 * n, ACC + 16 * j))
        if j == 1:
            o += late
    o += [f"ds_write_b128 v2, v[{ACC+16+4*i}:{ACC+16+4*i+3}] offset:{1024*i}" for i in range(4)]
    o += stamp(8)
    o += [f"s_cmp_lt_u32 s{sWave}, 4", "!s_cbranch_scc1 L_finC"]

    def fin(role):
        mine, spare = ACC + 8 * role, ACC + 8 * (1 - role)
        r = [f"ds_write_b128 v2, v[{spare+4*i}:{spare+4*i+3}] offset:{4096+1024*i}" for i in range(2)]
        r += ["s_waitcnt lgkmcnt(0)", "s_barrier"]
        r += [f"ds_read_b128 v[{OF+4*i}:{OF+4*i+3}], v3 offset:{1024*i}" for i in range(2)]
        r += [f"ds_read_b128 v[{OF+8+4*i}:{OF+8+4*i+3}], v4 offset:{1024*i}" for i in range(2)]
        r += [f"ds_read_b128 v[{OF+16+4*i}:{OF+16+4*i+3}], v24 offset:{1024*i}" for i in range(2)]
        for i in range(8):
            r += [f"v_add_f32 v{mine+i}, v{mine+i}, v{OF+i}"]
        for i in range(8):
            r += [f"v_add_f32 v{OF+8+i}, v{OF+8+i}, v{OF+16+i}"]
        for p in range(4):
            r += [f"v_add_f32 v{mine+2*p}, v{mine+2*p}, v{OF+8+2*p}", f"v_add_f32 v{mine+2*p+1}, v{mine+2*p+1}, v{OF+8+2*p+1}",
                  f"v_cvt_pk_bf16_f32 v{16+p}, v{mine+2*p}, v{mine+2*p+1}"]
        r += ["s_branch L_fin"] if role == 1 else []
        return r
    st = [x for x in o if 0]
    o += fin(1) + ["@reset", "L_finC:", "s_nop 7"] + fin(0) + ["L_fin:"]
    o += [f"v_permlane32_swap_b32 v16, v18", f"v_permlane32_swap_b32 v17, v19"]
    fl = {0: "", 1: " sc1", 2: " nt", 3: " sc0 sc1"}[OPT.get('outfl', 0)]
    o += [f"buffer_store_dwordx4 v[16:19], v8, s[{sO}:{sO+3}], 0 offen{fl}"]
    if OPT.get('until'):
        o += ["!L_dly2:", f"!s_memtime s[46:47]", "!s_waitcnt lgkmcnt(0)",
              "!s_sub_u32 s46, s46, s98", f"!s_cmp_lt_u32 s46, {OPT['until']}", "!s_cbranch_scc1 L_dly2"]
    o += stamp(10)
    if OPT['stamps']:
        o += ["s_waitcnt vmcnt(0)"] + stamp(11)
    o += stamp_flush(20, 0)
    o += ["s_endpgm"]
    return o


def phase3():
    ROLE[0] = 'H'
    o = ["@reset", "L_p3:"]
    o += serve_land(ST_WA2) + call("r1")
    o += stamp(6)
    o += [f"s_cmp_lg_u32 s{sOBd}, 0", "!s_cbranch_scc1 L_pB"] + call("ob") + ["L_pB:"]
    o += stamp(7)
    o += [f"s_mov_b32 s{sOb}, {OB}", f"s_add_u32 s{sNb}, s{sNo}, {NB}"]
    return o + half_sub()


def c_phase3():
    o = p3_slot() + [f"s_cmp_ge_u32 s{sJ3}, 28", "!s_cbranch_scc1 L_cend"]
    o += [f"v_mov_b32 v{vEp}, v{vEc}"] + p3_early(vA, WBA, WBAS) + [f"v_and_b32 v{vTg}, 0xffff0000, v{vEp}"]
    o += [f"s_mul_i32 s{sB}, s{sKh}, {(WBAS - WBBS) & 0xffffffff}", f"s_add_u32 s{sB}, s{sB}, {WBA - WBB}",
          f"s_mov_b32 s{sOb}, {OA}", f"s_add_u32 s{sNb}, s{sNo}, {NA}"]
    o += wait_land(ST_WB, HQ, inline=True, n=3)
    rd = lambda j, hl: sum([wo_frag(WA + 64 * j + 8 * hl + 4 * s_, hl if hl < 6 else hl - 6, s_) for s_ in range(2)], [])
    for hl in range(6):
        o += rd(0, hl)
    o += [f"v_subrev_u32 v{vA+x}, s{sB}, v{vA+x}" for x in range(4)] + rd(0, 6) + rd(0, 7) + FLIP + rd(1, 6) + rd(1, 7)
    o += [f"v_add_u32 v{vA+x}, s{sB}, v{vA+x}" for x in range(4)]
    for hl in range(6):
        o += rd(1, hl)
    o += [] + ["s_waitcnt lgkmcnt(0)", "s_branch L_sub_half", "@reset", "L_cend:"]
    return o


def pretouch():
    if not OPT.get('touch', 1):
        return []
    o = ["v_lshlrev_b32 v32, 21, v0", "s_mov_b64 exec, 63",
         f"buffer_load_dword v33, v32, s[{sWSD}:{sWSD+3}], 0 offen", "s_mov_b64 exec, 1", "v_mov_b32 v32, 0"]
    for i, p in enumerate((sAW, sBW, sAO, sBO, sOUT)):
        o.append(f"global_load_dword v{34+i}, v32, s[{p}:{p+1}]")
    o += ["s_mov_b64 exec, -1"]
    return o


def x_wave():
    ROLE[0] = 'X'
    o = ["@reset", "L_xwave:", "s_waitcnt lgkmcnt(0)", "s_barrier"]
    o += srd(sWSD, sWS, WS_SIZE)
    o += h_setup() + p3_early()
    sDD, sKD = 36, 40
    sJ = sLi
    t0, t1, t2 = 24, 25, 26
    o += [f"s_sub_u32 s{sJ}, s{sWave}, 6"]
    o += srd(sDD, sDBG, 256) + srd(sKD, sWS, WS_SIZE)
    o += [f"s_cmp_eq_u32 s{sH}, 15", f"s_cselect_b32 s{sKD+2}, 0, s{sKD+2}"]
    o += [f"v_mov_b32 v{t0}, 0", f"s_lshl_b32 s{sT0}, s2, 1", f"s_add_u32 s{sT0}, s{sT0}, s{sJ}",
          f"s_cmp_eq_u32 s{sT0}, 0", "!s_cbranch_scc0 L_xnoep",
          f"s_mov_b32 s{sT0}, {EPW}",
          f"buffer_load_dword v{vEp}, v{t0}, s[{sWSD}:{sWSD+3}], s{sT0} offen sc1",
          f"v_lshrrev_b32 v{t1}, 16, v{vEp}", f"v_add_u32 v{vEp}, 1, v{vEp}", f"v_and_b32 v{vEp}, 0xffff, v{vEp}",
          f"v_max_u32 v{vEp}, 1, v{vEp}", f"v_cmp_eq_u32 vcc, v{vEp}, v{t1}", f"v_addc_co_u32 v{vEp}, vcc, 0, v{vEp}, vcc",
          f"v_and_b32 v{vEp}, 0xffff, v{vEp}", f"v_max_u32 v{vEp}, 1, v{vEp}", f"v_lshl_or_b32 v{vEp}, v{vEp}, 16, v{vEp}",
          "s_mov_b64 exec, 1",
          f"buffer_store_dword v{vEp}, v{t0}, s[{sDD}:{sDD+3}], 0 offen sc1",
          f"buffer_store_dword v{vEp}, v{t0}, s[{sWSD}:{sWSD+3}], s{sT0} offen sc1",
          "s_mov_b64 exec, -1", "@reset", "L_xnoep:"]
    o += pretouch()
    o += wait_land(OPT.get('epgate', 2), HQ, inline=True)
    o += spin_vm([f"buffer_load_dword v{vEp}, v{t0}, s[{sDD}:{sDD+3}], 0 offen sc1"], [f"v_cmp_eq_u32 vcc, 0, v{vEp}"])
    o += [f"ds_write_b32 v{vM}, v{vEp} offset:{16*EPOCH}"]
    o += stamp(1)
    o += [f"s_setprio {OPT.get('xprio', 3)}", f"s_cmp_eq_u32 s{sZ}, 0", "!s_cbranch_scc1 L_xY"]
    o += [f"s_lshl_b32 s{sT0}, s{sHH}, 6", f"s_mul_i32 s{sT1}, s{sT0}, 2341", f"s_lshr_b32 s{sT1}, s{sT1}, 16",
          f"s_add_u32 s{sT0}, s{sT0}, 63", f"s_mul_i32 s{sT2}, s{sT0}, 2341", f"s_lshr_b32 s{sT2}, s{sT2}, 16",
          f"v_and_b32 v4, 3, v0", f"v_add_u32 v4, s{sT1}, v4", f"v_lshrrev_b32 v5, 2, v0",
          f"v_cmp_ge_u32 s[48:49], s{sT2}, v4", f"v_add_u32 v6, s{sRB}, v5", f"v_cmp_gt_u32 vcc, 16, v6",
          "s_and_b64 s[48:49], s[48:49], vcc", "s_and_b32 s48, s48, 0xfff", "s_mov_b32 s49, 0",
          f"s_cmp_eq_u32 s{sH}, 15", "s_cselect_b32 s48, 0, s48",
          "v_lshl_add_u32 v3, v6, 4, v4", "v_lshlrev_b32 v3, 5, v3",
          "v_mul_u32_u24 v4, 28, v4", "v_lshrrev_b32 v4, 6, v4", f"v_sub_u32 v4, s{sHH}, v4",
          "v_lshlrev_b32 v5, 1, v5", "v_sub_u32 v5, 4, v5", "v_add3_u32 v3, v3, v4, v5", "v_lshlrev_b32 v3, 2, v3",
          f"s_mul_i32 s50, s{sJ}, {FV-FK}", f"s_add_u32 s50, s50, {FK}",
          f"s_mul_i32 s44, s{sRB}, {4*28672}",
          f"s_cmp_eq_u32 s{sJ}, 0", "!s_cbranch_scc0 L_xZV"]
    o += [f"s_lshl_b32 s{sT0}, s{sHH}, 12", f"s_add_u32 s44, s44, s{sT0}"]
    o += spin_ev(R_K, 'all', HQ)
    o += [f"ds_read_b128 v[{64+4*i}:{64+4*i+3}], v{vL16} offset:{STK+1024*i}" for i in range(16)] + signal(F_K) + signal(F_K)
    for i in range(16):
        o += [f"buffer_store_dwordx4 v[{64+4*i}:{64+4*i+3}], v{vL16}, s[{sKD}:{sKD+3}], s44 offen offset:{1024*(i%4)} sc1"]
        if i % 4 == 3:
            o += ["s_add_u32 s44, s44, 28672"]
    o += ["s_branch L_xZn", "@reset", "L_xZV:"]
    o += [f"s_lshl_b32 s{sT0}, s{sHH}, 10", f"s_add_u32 s44, s44, s{sT0}", f"s_add_u32 s44, s44, {VG}", "s_add_u32 s45, s44, 14336",
          f"v_lshrrev_b32 v2, 5, v0", f"v_mul_u32_u24 v2, {7168-512}, v2", f"v_add_u32 v2, v2, v{vL16}"]
    o += spin_ev(R_V, 'all', HQ)
    o += [f"ds_read_b128 v[{64+4*i}:{64+4*i+3}], v{vL16} offset:{STV+1024*i}" for i in range(16)] + signal(F_K) + signal(F_K)
    if OPT.get('vafter', 1):
        o += spin_ev(X_PUB, 2, HQ)
    for i in range(16):
        j, s_ = (i % 4) // 2, i % 2
        o += [f"buffer_store_dwordx4 v[{64+4*i}:{64+4*i+3}], v2, s[{sKD}:{sKD+3}], s{44+s_} offen offset:{512*j} sc1"]
        if i % 4 == 3:
            o += ["s_add_u32 s44, s44, 28672", "s_add_u32 s45, s45, 28672"]
    o += ["@reset", "L_xZn:"] + signal(X_PUB) + stamp(2)
    Ln = lab('nn')
    o += ["s_cmp_eq_u32 s48, 0", f"!s_cbranch_scc1 {Ln}"]
    o += ["s_waitcnt vmcnt(0)", "s_mov_b64 exec, s[48:49]",
          f"buffer_store_dword v{vEp}, v3, s[{sWSD}:{sWSD+3}], s50 offen sc1", "s_mov_b64 exec, -1", f"!{Ln}:"] + stamp(3)
    o += ["s_branch L_xjoin", "@reset", "L_xY:"]
    o += fmap(t2, t1) + [f"v_lshrrev_b32 v{t1}, 5, v0", f"v_lshlrev_b32 v{t1}, 9, v{t1}", f"v_lshl_add_u32 v{t2}, v{t2}, 4, v{t1}"]
    o += [f"s_lshl_b32 s{sT0}, s{sJ}, 11", f"v_add_u32 v{t1}, s{sT0}, v{vL16}",
          f"s_add_u32 s{sT1}, s{sT0}, {STV}", f"v_add_u32 v{t2}, s{sT1}, v{t2}",
          f"v_lshrrev_b32 v2, 2, v0", f"v_lshlrev_b32 v2, 12, v2", f"v_and_b32 v3, 3, v0", f"v_lshl_add_u32 v2, v3, 9, v2",
          f"s_add_u32 s{sT0}, s{sT0}, {STV+448}", f"v_add_u32 v2, s{sT0}, v2"]
    o += [f"v_mov_b32 v{32+i}, 0x3f803f80" for i in range(4)]
    o += [f"s_lshl_b32 s{sT0}, s{sHH}, 1", f"s_add_u32 s{sT0}, s{sT0}, s{sJ}", f"s_lshl_b32 s{sT0}, s{sT0}, 4", f"s_add_u32 s{sT0}, s{sT0}, s{sRB}",
          f"s_lshl_b32 s44, s{sT0}, 13", f"s_add_u32 s44, s44, {KVP}", "s_add_u32 s45, s44, 4096",
          f"s_lshl_b32 s46, s{sT0}, 9", f"s_add_u32 s46, s46, {N1}"]
    o += spin_ev(R_V, 'all', HQ)
    o += ["s_mov_b64 exec, 0xffff", "ds_write_b128 v2, v[32:35]", "s_mov_b64 exec, -1"]
    o += [f"ds_read_b128 v[{96+4*i}:{96+4*i+3}], v{t2} offset:{4096*(i//2)+1024*(i%2)}" for i in range(8)] + signal(F_K)
    o += [f"v_mov_b32 v{33+2*i}, v{vEp}" for i in range(16)]
    o += spin_ev(R_K, 'all', HQ)
    o += [f"ds_read_b128 v[{64+4*i}:{64+4*i+3}], v{t1} offset:{STK+4096*(i//2)+1024*(i%2)}" for i in range(8)] + signal(F_K)
    o += stamp(2)
    o += [mfma(128, 64 + 4 * i, 96 + 4 * i, 128 if i else None) for i in range(8)]
    for i in range(8):
        o += [f"v_mov_b32 v{32+4*i}, v{128+2*i}", f"v_mov_b32 v{34+4*i}, v{129+2*i}",
              f"buffer_store_dwordx4 v[{32+4*i}:{35+4*i}], v{vL16}, s[{sWSD}:{sWSD+3}], s{44+i//4} offen offset:{1024*(i%4)} sc1"]
    o += notify(46, 24, vEp, 4)
    o += stamp(3)
    o += ["s_nop 1", "@reset", "L_xjoin:", f"s_setprio {OPT.get('hprio', 2)}"]
    if OPT.get('wopf', 1):
        Lp = lab('wopf')
        o += [f"s_cmp_eq_u32 s{sJ}, 0", f"!s_cbranch_scc0 {Lp}",
              f"s_lshr_b32 s{sT0}, s2, 3", f"s_mul_i32 s{sT0}, s{sT0}, {98*128}", f"v_lshl_add_u32 v24, v0, 7, s{sT0}",
              f"v_add_u32 v25, {49*128}, v24",
              "s_mov_b32 exec_hi, 0x1ffff"]
        for p in (sAO, sBO):
            o += [f"!global_load_dword v12, v24, s[{p}:{p+1}]", f"!global_load_dword v12, v25, s[{p}:{p+1}]"]
        o += ["s_mov_b64 exec, -1", f"!{Lp}:"]
    o += call("phi") + p3_setup() + [f"s_mov_b32 s{sOBd}, 0"]
    o += [f"s_cmp_eq_u32 s{sJ}, 1", "!s_cbranch_scc1 L_x1"]
    o += stamp(4)
    o += [f"s_cmp_ge_u32 s{sJ3}, 28", "!s_cbranch_scc1 L_xfin"]
    t0, t1, t2 = 24, 25, 26
    o += srd(sXD, sBO, 401408) + [f"s_mov_b32 s{sC7}, 7168",
          f"v_lshrrev_b32 v{t0}, 3, v0", f"v_mul_u32_u24 v{vWO}, 896, v{t0}",
          f"v_bfe_u32 v{t1}, v0, 2, 1", f"v_bfe_u32 v{t2}, v0, 4, 1", f"v_xor_b32 v{t1}, v{t1}, v{t2}",
          f"v_lshl_add_u32 v{vWO}, v{t1}, 6, v{vWO}", f"v_and_b32 v{t2}, 3, v0", f"v_lshl_add_u32 v{vWO}, v{t2}, 4, v{vWO}",
          f"s_lshl_b32 s{sT0}, s{sCT}, 7", f"v_add_u32 v{vWO}, s{sT0}, v{vWO}",
          f"v_mov_b32 v{vMl}, v{vMs}", f"s_mov_b32 s{sT0}, {LANDC}", f"v_writelane_b32 v{vMl}, s{sT0}, 0"]
    d7 = [f"!s_call_b64 s[{sRet}:{sRet+1}], L_sub_d7"]

    def xb(ptr, row0, lds, n):
        return [f"s_mov_b32 s{sXD}, s{ptr}", f"s_mov_b32 s{sXD+1}, s{ptr+1}", f"s_mov_b32 s{sOff}, {row0*896}",
                f"s_mov_b32 m0, {lds}"] + d7 * n
    o += spin_ev(F_K, 'hi', HQ, ge=2) + spin_ev(E_P3, 'all', HQ) + spin_ev(KVISS, 'lo', HQ)
    o += xb(sBO, 0, STG, 2) + xb(sBO, 224, STG + STGS, 2)
    if OPT.get('tailfirst', 1):
        o += xb(sAO, 168, WBB, 1) + xb(sAO, 224 + 168, WBB + WBBS, 1)
        o += ["s_waitcnt vmcnt(14)"] + land(ST_WA1) + land(ST_WA1)
    else:
        o += ["s_waitcnt vmcnt(0)"] + land(ST_WA1) + land(ST_WA1)
        o += xb(sAO, 168, WBB, 1) + xb(sAO, 224 + 168, WBB + WBBS, 1)
    o += call("r0")
    o += ["s_waitcnt vmcnt(0)"] + land(ST_WB)
    o += serve_ev(R1)
    o += xb(sBO, 112, STG, 2) + xb(sBO, 224 + 112, STG + STGS, 2)
    o += ["s_waitcnt vmcnt(0)"] + land(ST_WA2) + land(ST_WA2) + stamp(5)
    o += ["s_branch L_p3", "@reset", "L_x1:"]
    o += [f"v_lshlrev_b32 v{t0}, 3, v0",
          f"s_lshl_b32 s44, s{sH}, 17", f"s_lshl_b32 s{sT0}, s{sRB}, 9", f"s_add_u32 s44, s44, s{sT0}", f"s_add_u32 s44, s44, {KVP}",
          f"s_lshl_b32 s45, s{sH}, 13", f"s_add_u32 s45, s45, {KVT}", f"s_add_u32 s46, s45, s{sT0}", "s_add_u32 s47, s45, 4096"]

    def tagcheck():
        c = ["v_min3_u32 v25, v65, v67, v69", "v_max3_u32 v26, v65, v67, v69"]
        for j in range(3, 15, 2):
            c += [f"v_min3_u32 v25, v25, v{65+2*j}, v{67+2*j}", f"v_max3_u32 v26, v26, v{65+2*j}, v{67+2*j}"]
        c += [f"v_min3_u32 v25, v25, v95, v{vEp}", f"v_max3_u32 v26, v26, v95, v{vEp}", "v_cmp_ne_u32 vcc, v25, v26"]
        return c
    body = [f"s_mov_b32 s{sT1}, s44"]
    for j in range(16):
        body += [f"buffer_load_dwordx2 v[{64+2*j}:{65+2*j}], v{t0}, s[{sWSD}:{sWSD+3}], s{sT1} offen sc1",
                 f"s_add_u32 s{sT1}, s{sT1}, 8192"]
    o += [f"v_lshlrev_b32 v26, 9, v0", f"s_lshl_b32 s49, s{sH}, 6", f"s_lshr_b32 s{sT0}, s{sRB}, 2",
          f"s_add_u32 s49, s49, s{sT0}", "s_lshl_b32 s49, s49, 7", f"s_add_u32 s49, s49, {N1}"]
    if OPT.get('h1direct', 1):
        o += ["!" + x for x in body] + ["s_waitcnt vmcnt(0)"] + ["!" + x for x in tagcheck()] + ["!s_cbranch_vccz L_h1ok", "!v_lshlrev_b32 v26, 9, v0"]
    o += light_poll(25, 26, "s49", "0xffff", [f"v_cmp_ne_u32 vcc, v25, v{vEp}"])
    o += stamp(6, 'y')
    o += spin_vm(body, tagcheck())
    o += ["L_h1ok:"]
    for st in (1, 2, 4, 8):
        for j in range(0, 16, 2 * st):
            o.append(f"v_add_f32 v{64+2*j}, v{64+2*j}, v{64+2*(j+st)}")
    o += [f"buffer_store_dwordx2 v[64:65], v{t0}, s[{sWSD}:{sWSD+3}], s46 offen sc1",
          f"s_add_u32 s49, s49, {N2-N1}", f"s_lshl_b32 s46, s{sH}, 4", f"s_add_u32 s46, s46, s{sRB}",
          "s_lshl_b32 s46, s46, 9", f"s_add_u32 s46, s46, {N2}"] + notify(46, 25, vEp, 4)
    o += stamp(4)
    o += [f"s_mov_b32 s48, 1"]
    r0hook = [f"ds_read_b32 v{HQ}, v{vM} offset:{256+4*ST_WA1}", "s_waitcnt lgkmcnt(0)", f"v_cmp_lt_u32 vcc, s48, v{HQ}",
              "s_cbranch_vccz L_x1a"] + call("r0") + ["s_mov_b32 s48, 2", "L_x1a:"]
    body = [f"buffer_load_dwordx4 v[{64+4*j}:{67+4*j}], v{vL16}, s[{sWSD}:{sWSD+3}], s{45+2*(j//4)} offen offset:{1024*(j%4)} sc1" for j in range(8)]
    if OPT.get('x1block', 1):
        o += [f"s_cmp_ge_u32 s{sJ3}, 28", "!s_cbranch_scc1 L_x1b"] + wait_land(ST_WA1, HQ, inline=True) + call("r0") + ["s_mov_b32 s48, 2", "L_x1b:"]
    o += stamp(7, 'y')
    o += ["v_lshlrev_b32 v26, 9, v0"]
    o += light_poll(25, 26, "s49", "0xffff", [f"v_cmp_ne_u32 vcc, v25, v{vEp}"], hook=r0hook)
    o += stamp(8, 'y')
    o += spin_vm(body, tagcheck())
    o += stamp(9, 'y')
    o += [f"v_cvt_pk_bf16_f32 v{96+p}, v{64+4*p}, v{66+4*p}" for p in range(8)]
    o += [f"v_add_u32 v24, {KVF}, v{vL16}",
          f"ds_write_b128 v24, v[96:99]", f"ds_write_b128 v24, v[100:103] offset:1024"] + signal(KVRDY)
    o += call("ob") + [f"s_mov_b32 s{sOBd}, 1"]
    o += stamp(5)
    o += [f"s_cmp_ge_u32 s{sJ3}, 28", "!s_cbranch_scc1 L_xend", "s_cmp_eq_u32 s48, 2", "!s_cbranch_scc1 L_p3"]
    o += wait_land(ST_WA1, HQ, inline=True) + call("r0")
    o += ["s_branch L_p3", "@reset", "L_xfin:"] + call("ob") + ["L_xend:"] + stamp_flush(20, 0) + ["s_endpgm"]
    return o


HEADER = f"""; Fused sliding-window attention + linear attention + gated output projection (gfx950).
; One persistent launch: 256 workgroups x 8 waves (4 compute, 2 loader, 2 auxiliary).
; @launch grid=(256,1,1) block=(512,1,1) lds=163840
.amdgcn_target "amdgcn-amd-amdhsa--gfx950"
.text
.globl {NAME}_kernel
.p2align 8
.type {NAME}_kernel,@function
{NAME}_kernel:
"""
FOOTER = f"""
.section .rodata,"a"
.p2align 6
.amdhsa_kernel {NAME}_kernel
  .amdhsa_next_free_vgpr 256
  .amdhsa_next_free_sgpr 102
  .amdhsa_accum_offset 256
  .amdhsa_group_segment_fixed_size 0
  .amdhsa_kernarg_size 80
  .amdhsa_user_sgpr_count 2
  .amdhsa_user_sgpr_kernarg_segment_ptr 1
  .amdhsa_system_sgpr_workgroup_id_x 1
.end_amdhsa_kernel
"""


def main():
    body = prologue()
    SLEEP[0] = OPT.get('sleep', 1)
    l = l_wave()
    x = x_wave()
    p3 = phase3()
    sub = subroutines()
    SLEEP[0] = 0
    c = c_wave()
    rep = []
    lines = finalize(body + l + x + p3 + sub + c, rep)
    lines += ['    ' + s if not s.endswith(':') else s for s in slow]
    lines += ["L_abort:", "L_exit:", "    s_endpgm", "L_end:"]
    open(sys.argv[1], 'w').write(HEADER + "\n".join(lines) + FOOTER)
    big = [r for r in rep if r[0] >= 3]
    print("nops inserted:", len(rep), "total states", sum(r[0] for r in rep))
    for r in big:
        print("   ", r)


main()
```

```python
import sys, math, struct
from asmlib import finalize, merge

NAME = "gated_mix__sliding_block__linear_attn_block__prompt"
OPT = dict(stamps=0, l1=14, l3=8, prefetch=2, touch=0, refetch=0, wopf=0)
for a in sys.argv[2:]:
    k, v = a.split('=')
    OPT[k] = int(v)


def fhex(x):
    return '0x%08x' % struct.unpack('<I', struct.pack('<f', x))[0]


LOG2E = math.log2(math.e)
KSCALE = LOG2E * 28 ** -0.5
SPIN = 60000

def XR(c): return 16384 * (c % 4)
def WR(c): return 65536 + 16384 * (c % 4)
QLOC = [131072 + 4096 * c for c in range(6)] + [114688] + [114688 + 4096 * c for c in (1, 2, 3)] + [49152 + 4096 * c for c in range(4)]
QBB = 114688
KL = 16384
VL = 131072
STQ, STV, STK = 0, 16384, 32768
STG, STGS = 40960, 67584
WBA, WBAS = 65536, 21504
WBB, WBBS = 55296, 67584
MISC = 158720
LANDC = MISC + 256
JUNK = MISC + 512
GL = MISC + 1536
KVF = MISC + 2560
E_PA, X_PUB, E_P2, E_P3, R_K, R_V, R_Q, E_OA, F_K, E_P3A, R1, GRDY, KVRDY, EPOCH, KVISS = range(15)
ST_K, ST_V, ST_WA1, ST_WB, ST_WA2 = 21, 22, 23, 24, 25

KG, VG, OA, OB, KVP, KVT = 0x000000, 0x200000, 0x400000, 0x600000, 0x800000, 0xA00000
FK, FV, N1, N2, NA, NB, EPW = 0xA40000, 0xA48000, 0xA60000, 0xA80000, 0xAA0000, 0xAC0000, 0xA50000
STAMPS = 0xB00000
WS_SIZE = 0x1000000

sX, sAW, sAO, sBW, sBO, sGW, sOUT, sDBG, sWS = 4, 6, 8, 12, 14, 16, 18, 20, 22
sWave, sH, sRB, sPar, sHH = 24, 25, 26, 27, 28
sT0, sT1, sT2, sTO = 29, 30, 31, 3
sZ = 74
sWSD = 32
sStamp = 76
sJ3, sCT, sTB = 100, 10, 11
sW4 = 101

_lab = [0]
slow = []
ROLE = ['P']
SLEEP = [0]
vL16, vM, vOne, vF, vMs = 1, 10, 11, 12, 13
vFq = 252


def lab(p):
    _lab[0] += 1
    return f"L_{p}_{_lab[0]}"


def srd(d, ptr, size, add=0):
    o = []
    if add:
        o += [f"s_add_u32 s{d}, s{ptr}, {add}", f"s_addc_u32 s{d+1}, s{ptr+1}, 0"]
    else:
        o += [f"s_mov_b32 s{d}, s{ptr}", f"s_mov_b32 s{d+1}, s{ptr+1}"]
    o += [f"s_mov_b32 s{d+2}, {size}", f"s_mov_b32 s{d+3}, 0x20000"]
    return o


def stamp(i, kind=''):
    if not OPT['stamps']:
        return []
    alt = OPT.get('alt', 0)
    if kind == 'z':
        return [f"!s_memtime s[{sStamp+2*i}:{sStamp+2*i+1}]"] if alt == 5 else []
    if ROLE[0] == 'L' and (alt == 1) != (kind == 'f'):
        return []
    if kind == 'z':
        return [f"!s_memtime s[{sStamp+2*i}:{sStamp+2*i+1}]"] if alt == 5 else []
    if ROLE[0] == 'H' and alt in (1, 3, 4, 5):
        return []
    if kind == 'y' and alt != 4:
        return []
    if kind == 'x' and alt != 3:
        return []
    if ROLE[0] == 'C' and (alt == 2) != (kind == 'f'):
        return []
    return [f"!s_memtime s[{sStamp+2*i}:{sStamp+2*i+1}]"]


def stamp_flush(vt, vlane):
    if not OPT['stamps'] or 'pw' in OPT:
        return []
    o = ["s_mov_b64 exec, -1", "s_waitcnt lgkmcnt(0)", f"v_mov_b32 v{vt}, 0"]
    for i in range(12):
        o.append(f"v_writelane_b32 v{vt}, s{sStamp+2*i}, {i}")
    o += [f"s_lshl_b32 s{sT0}, s2, 3", f"s_add_u32 s{sT0}, s{sT0}, s{sWave}", f"s_lshl_b32 s{sT0}, s{sT0}, 8",
          f"s_add_u32 s{sT0}, s{sT0}, {STAMPS}",
          f"v_lshlrev_b32 v{vt+1}, 2, v{vlane}",
          f"buffer_store_dword v{vt}, v{vt+1}, s[{sWSD}:{sWSD+3}], s{sT0} offen"]
    return o


def _tmo():
    return [f"s_add_u32 s{sTO}, s{sTO}, 1", f"s_cmp_gt_u32 s{sTO}, {SPIN}", "s_cbranch_scc1 L_abort"]


def _ev_read(ev, which, q):
    if which == 'all':
        return [f"ds_read_b128 v[{q}:{q+3}], v{vM} offset:{16*ev}"], \
               [f"v_min3_u32 v{q}, v{q}, v{q+1}, v{q+2}", f"v_min_u32 v{q}, v{q}, v{q+3}"]
    if which in ('hi', 'lo'):
        return [f"ds_read_b64 v[{q}:{q+1}], v{vM} offset:{16*ev + (8 if which == 'hi' else 0)}"], \
               [f"v_min_u32 v{q}, v{q}, v{q+1}"]
    if which == 'own':
        return [f"ds_read_b32 v{q}, v{vOwn} offset:{16*ev}"], []
    return [f"ds_read_b32 v{q}, v{vM} offset:{16*ev + 4*which}"], []


def spin_ev(ev, which, q=None, ge=1):
    q = vFq if q is None else q
    L, L2 = lab('sp'), lab('spx')
    rd, red = _ev_read(ev, which, q)
    o = ["s_waitcnt lgkmcnt(0)", f"!s_mov_b32 s{sTO}, 0", f"!{L}:"]
    o += ["!" + x for x in rd + _tmo() + ["s_waitcnt lgkmcnt(0)"] + red]
    if SLEEP[0]:
        o += [f"!v_cmp_le_u32 vcc, {ge}, v{q}", f"!s_cbranch_vccnz {L2}", f"!!s_sleep {SLEEP[0]}", f"!!s_branch {L}", f"!{L2}:"]
    else:
        o += [f"!v_cmp_gt_u32 vcc, {ge}, v{q}", f"!s_cbranch_vccnz {L}"]
    return o


def check_ev(ev, which, q):
    Ls, Lb = lab('slow'), lab('back')
    rd, red = _ev_read(ev, which, q)
    slow.extend([f"{Ls}:", f"s_mov_b32 s{sTO}, 0", f"{Ls}_s:"] + rd + _tmo() + ["s_waitcnt lgkmcnt(0)"] + red +
                [f"v_cmp_eq_u32 vcc, 0, v{q}", f"s_cbranch_vccnz {Ls}_s", f"s_branch {Lb}"])
    return rd, red + [f"v_cmp_eq_u32 vcc, 0, v{q}", f"!s_cbranch_vccnz {Ls}", f"!{Lb}:"]


def wait_land(st, q=None, inline=False, n=2):
    q = vFq if q is None else q
    rd = f"ds_read_b32 v{q}, v{vM} offset:{256 + 4*st}"
    if inline:
        L, L2 = lab('wl'), lab('wlx')
        o = ["s_waitcnt lgkmcnt(0)", f"!s_mov_b32 s{sTO}, 0", f"!{L}:"] + ["!" + x for x in [rd] + _tmo() + ["s_waitcnt lgkmcnt(0)"]]
        if SLEEP[0]:
            return o + [f"!v_cmp_eq_u32 vcc, {n}, v{q}", f"!s_cbranch_vccnz {L2}", f"!!s_sleep {SLEEP[0]}", f"!!s_branch {L}", f"!{L2}:"]
        return o + [f"!v_cmp_ne_u32 vcc, {n}, v{q}", f"!s_cbranch_vccnz {L}"]
    Ls, Lb = lab('slow'), lab('back')
    slow.extend([f"{Ls}:", f"s_mov_b32 s{sTO}, 0", f"{Ls}_s:", rd] + _tmo() +
                ["s_waitcnt lgkmcnt(0)", f"v_cmp_ne_u32 vcc, {n}, v{q}", f"s_cbranch_vccnz {Ls}_s", f"s_branch {Lb}"])
    return [rd], [f"v_cmp_ne_u32 vcc, {n}, v{q}", f"!s_cbranch_vccnz {Ls}", f"!{Lb}:"]


vMl = 12


def land(st):
    return [f"ds_add_u32 v{vMl}, v{vOne} offset:{4*st}"]


def signal(ev):
    return [f"ds_add_u32 v{vMs}, v{vOne} offset:{16*ev}"]


def mfma(d, a, b, c):
    cs = f"v[{c}:{c+15}]" if isinstance(c, int) and c >= 0 else "0"
    return f"v_mfma_f32_32x32x16_bf16 v[{d}:{d+15}], v[{a}:{a+3}], v[{b}:{b+3}], {cs}"


def tr(d, a, off, tag=None):
    return f"ds_read_b64_tr_b16 v[{d}:{d+1}], v{a} offset:{off}" + (f" ;@tag={tag}" if tag else "")


vOwn = 9


def common_setup():
    return [f"v_lshlrev_b32 v{vL16}, 4, v0", f"v_mov_b32 v{vM}, {MISC}", f"v_mov_b32 v{vOne}, 1",
            f"s_and_b32 s{sW4}, s{sWave}, 3",
            f"v_lshlrev_b32 v{vMs}, 2, v0", f"v_add_u32 v{vMs}, {JUNK}, v{vMs}",
            f"s_lshl_b32 s{sT0}, s{sW4}, 2", f"s_add_u32 s{sT0}, s{sT0}, {MISC}",
            f"v_writelane_b32 v{vMs}, s{sT0}, 0"]


def prologue():
    o = []
    o += ["s_load_dwordx4 s[4:7], s[0:1], 0", "s_load_dwordx8 s[12:19], s[0:1], 32",
          "s_load_dwordx4 s[20:23], s[0:1], 64", "s_load_dwordx2 s[8:9], s[0:1], 16"]
    o += stamp(0)
    if OPT.get('until'):
        o += ["!s_memtime s[98:99]"]
    o += ["s_cmp_ge_u32 s2, 256", "!s_cbranch_scc1 L_exit",
          "v_lshrrev_b32 v1, 6, v0", "v_and_b32 v0, 63, v0",
          f"v_readfirstlane_b32 s{sWave}, v1"] + code_prefetch() + [
          f"s_and_b32 s{sT0}, s2, 7", f"s_lshr_b32 s{sT1}, s2, 3",
          f"s_and_b32 s{sH}, s{sT0}, 1", f"s_lshl_b32 s{sH}, s{sH}, 3",
          f"s_and_b32 s{sT2}, s{sT1}, 7", f"s_add_u32 s{sH}, s{sH}, s{sT2}",
          f"s_lshr_b32 s{sRB}, s{sT0}, 1", f"s_lshl_b32 s{sRB}, s{sRB}, 2",
          f"s_lshr_b32 s{sT2}, s{sT1}, 3", f"s_add_u32 s{sRB}, s{sRB}, s{sT2}",
          f"s_and_b32 s{sPar}, s{sH}, 1", f"s_lshr_b32 s{sHH}, s{sH}, 1",
          f"s_and_b32 s{sT0}, s2, 1", f"s_xor_b32 s{sZ}, s{sPar}, s{sT0}", f"s_xor_b32 s{sZ}, s{sZ}, 1"]
    o += common_setup()
    o += [f"s_cmp_lt_u32 s{sWave}, 4", "!s_cbranch_scc1 L_cwave",
          f"s_cmp_ge_u32 s{sWave}, 6", "!s_cbranch_scc1 L_xwave"]
    return o


vXA, vW0, vW1, vQB, vQA, vLow, vSt = 2, 6, 7, 8, 9, 14, 15
PK = 16
WB = 32
MK = 56
accA, accB = 64, 96
XF = 128
QF = 240
vMA, vMB = 248, 249
TMP = 250
sMask = 40
sL2E, sEps, sKS, sTile, sSt = 72, 73, 39, 75, 36


def c_setup():
    o = []
    lo, hh, t0, t1, t2 = 20, 21, 22, 23, 24
    o += [f"v_and_b32 v{lo}, 31, v0", f"v_lshrrev_b32 v{hh}, 5, v0",
          f"s_lshl_b32 s{sTile}, s{sRB}, 2", f"s_add_u32 s{sTile}, s{sTile}, s{sWave}",
          f"s_mov_b32 s{sL2E}, {fhex(LOG2E)}", f"s_mov_b32 s{sEps}, {fhex(1e-6)}", f"s_mov_b32 s{sKS}, {fhex(KSCALE)}"]
    o += [f"v_bfe_u32 v{t0}, v0, 1, 3", f"v_xor_b32 v{t0}, v{t0}, v{hh}",
          f"s_lshl_b32 s{sT0}, s{sWave}, 12",
          f"v_add_u32 v{vSt}, s{sT0}, v{vL16}",
          f"v_lshlrev_b32 v{t1}, 7, v{lo}", f"v_add_u32 v{t1}, s{sT0}, v{t1}"]
    for s in range(4):
        o += [f"v_xor_b32 v{t2}, {2*s}, v{t0}", f"v_lshl_add_u32 v{vXA+s}, v{t2}, 4, v{t1}"]
    r, cg, row = 25, 26, 27
    o += [f"v_bfe_u32 v{r}, v0, 2, 2", f"v_bfe_u32 v{t0}, v0, 4, 1", f"v_and_b32 v{cg}, 3, v0",
          f"v_lshl_add_u32 v{cg}, v{t0}, 2, v{cg}",
          f"v_lshl_add_u32 v{row}, v{hh}, 3, v{r}"]
    o += [f"v_lshrrev_b32 v{t0}, 1, v{r}",
          f"v_lshlrev_b32 v{t1}, 7, v{row}", f"v_add_u32 v{t1}, 65536, v{t1}",
          f"v_lshl_add_u32 v{vW0}, v{t0}, 6, v{t1}",
          f"v_xor_b32 v{vW1}, 64, v{vW0}",
          f"v_lshl_add_u32 v{vW0}, v{cg}, 3, v{vW0}",
          f"s_xor_b32 s{sT0}, s{sZ}, 1",
          f"v_add_u32 v{t2}, s{sT0}, v{cg}", f"v_and_b32 v{t2}, 7, v{t2}",
          f"v_lshl_add_u32 v{vW1}, v{t2}, 3, v{vW1}"]
    o += [f"v_lshlrev_b32 v{t1}, 6, v{row}",
          f"v_add_u32 v{t2}, s{sPar}, v{cg}", f"v_and_b32 v{t2}, 7, v{t2}",
          f"v_lshl_add_u32 v{vQB}, v{t2}, 3, v{t1}", f"v_add_u32 v{vQB}, {QBB}, v{vQB}",
          f"v_and_b32 v{t0}, 1, v{cg}", f"v_lshlrev_b32 v{t0}, 1, v{t0}",
          f"v_bfe_u32 v{t2}, v{cg}, 1, 1", f"v_or_b32 v{t0}, v{t0}, v{t2}",
          f"v_and_b32 v{t2}, 4, v{cg}", f"v_or_b32 v{t0}, v{t0}, v{t2}",
          f"v_lshl_add_u32 v{vQA}, v{t0}, 3, v{t1}", f"v_add_u32 v{vQA}, {QBB}, v{vQA}"]
    o += [f"v_add_u32 v{vLow}, -1, v{hh}",
          f"s_sub_u32 s{sT0}, s{sPar}, 1",
          f"v_not_b32 v{t0}, v{vLow}",
          f"v_or_b32 v{vMA}, s{sT0}, v{t0}",
          f"s_not_b32 s{sT0}, s{sT0}",
          f"v_or_b32 v{vMB}, s{sT0}, v{vLow}"]
    o += [f"v_lshlrev_b32 v{t0}, 2, v{hh}", f"v_sub_u32 v{t0}, v{lo}, v{t0}"]
    for rr in range(16):
        b = 8 * (rr >> 2) + (rr & 3)
        o.append(f"v_cmp_le_i32 s[{sMask+2*rr}:{sMask+2*rr+1}], {b}, v{t0}")
    o += [f"v_mov_b32 v{t1}, 0xffff", f"v_mov_b32 v{t2}, 0xffff0000"]
    for p in range(8):
        o += [f"v_cndmask_b32 v{MK+p}, 0, v{t1}, s[{sMask+4*p}:{sMask+4*p+1}]",
              f"v_cndmask_b32 v{t0}, 0, v{t2}, s[{sMask+4*p+2}:{sMask+4*p+3}]",
              f"v_or_b32 v{MK+p}, v{MK+p}, v{t0}"]
    return o


def gemm_frags(isY):
    fr = []
    for k in range(28):
        c, s = divmod(k, 4)
        order = [(0, 0), (0, 1), (1, 0), (1, 1)] if k < 27 else [(1, 0), (1, 1), (0, 0), (0, 1)]
        for i, (p, j) in enumerate(order):
            fr.append(dict(step=c, addr=(vW0, vW1)[j], off=XR(c) + 8192 * p + s * 2048, du=512, k=k,
                           acc=(accA, accB)[p] + 16 * j, wfirst=(p == 0 and not isY), pre=[],
                           xread=(f"ds_read_b128 v[{XF+4*k}:{XF+4*k+3}], v{vXA+s} offset:{XR(c)}" if i == 0 else None)))
    for q, a in enumerate((vQB, vQA)):
        for k in range(28):
            c, s = divmod(k, 4)
            loc = QLOC[7 * q + c]
            base = QBB if loc >= QBB else 49152
            pre = [f"v_subrev_u32 v{vQA}, {QBB-49152}, v{vQA}"] if (q, k) == (1, 12) else []
            fr.append(dict(step=7 + 7 * q + c, addr=a, off=loc - base + s * 1024, du=256, k=k,
                           acc=accB + 16 * q, wfirst=True, pre=pre, xread=None))
    return fr


def need_step(st):
    if st < 7:
        return st
    base = 7 if st < 14 else 14
    return base + {0: 0, 1: 2, 2: 2, 3: 4, 4: 4, 5: 6, 6: 6}[st - base]


def gemm_slots(isY):
    fr = gemm_frags(isY)
    N = len(fr)
    D = 5
    slots = []
    issued = 0
    checked = set()
    early = {}
    for n in range(N):
        cur = []
        f = fr[n]
        lim = 3 if n == 0 else min(n + D, N - 1)
        while issued <= lim:
            g = fr[issued]
            st = need_step(g['step'])
            if st not in checked:
                checked.add(st)
                if st == 0:
                    cur += wait_land(st, inline=True) + stamp(1)
                else:
                    cur += early[st]
                if st == 5:
                    cur += ["s_waitcnt vmcnt(0)"]
            b = WB + 4 * (issued % 6)
            cur += g['pre']
            if g['xread']:
                cur.append(g['xread'])
            cur += [tr(b, g['addr'], g['off']), tr(b + 2, g['addr'], g['off'] + g['du'], tag=f"f{issued}")]
            issued += 1
            last_of_step = issued == N or fr[issued]['step'] != g['step']
            if last_of_step:
                ev = {0: E_PA, 1: E_PA, 2: E_PA, 3: E_PA, 6: E_P2, 13: E_P3A, 20: E_P3}.get(g['step'])
                if ev is not None:
                    cur += signal(ev)
        if issued + 1 < N:
            st = need_step(fr[issued + 1]['step'])
            if st > 0 and st not in early:
                rd, early[st] = wait_land(st, q=vFq + 2)
                cur += rd
        if n % 2 == 0:
            cur.append(f"@wait_ds f{n+1}")
        b = WB + 4 * (n % 6)
        x = XF + 4 * f['k']
        A, B = (b, x) if f['wfirst'] else (x, b)
        cur.append(mfma(f['acc'], A, B, f['acc'] if f['k'] else None))
        slots.append(cur)
    if OPT.get('alt') == 2:
        for i in range(11):
            n = OPT['cst'] + i * OPT.get('cstep', 4)
            if n < len(slots):
                slots[n] = stamp(i + 1, 'f') + slots[n]
    return slots


def phi_pair(a, b, ta, tb, dst, l2e, eps):
    return [f"v_mul_f32 v{ta}, s{l2e}, v{a}", f"v_mul_f32 v{tb}, s{l2e}, v{b}",
            f"v_exp_f32_e64 v{ta}, v{ta} clamp", f"v_exp_f32_e64 v{tb}, v{tb} clamp",
            f"v_max_f32 v{a}, 0, v{a}", f"v_max_f32 v{b}, 0, v{b}",
            f"v_add_f32 v{a}, v{a}, v{ta}", f"v_add_f32 v{b}, v{b}, v{tb}",
            f"v_add_f32 v{a}, s{eps}, v{a}", f"v_add_f32 v{b}, s{eps}, v{b}",
            f"v_cvt_pk_bf16_f32 v{dst}, v{a}, v{b}"]


def c_gemm(isY):
    slots = gemm_slots(isY)
    pa, p3a, p3b = slots[:112], slots[112:140], slots[140:168]
    o = []
    for s in pa:
        o += s
    o += stamp(2)
    wr = lambda d, i, base: f"ds_write_b128 v{vSt}, v[{d}:{d+3}] offset:{base + 1024*i}"
    vc = lambda j: [f"v_cvt_pk_bf16_f32 v{PK+8*j+i}, v{accB+16*j+2*i}, v{accB+16*j+2*i+1}" for i in range(8)]
    vw = [wr(PK + 4 * i, i, STV) for i in range(4)]
    o += vc(0)
    if not isY:
        f = []
        for j in range(2):
            a = accA + 16 * j
            for i in range(8):
                f += [f"v_mul_f32 v{a+2*i}, s{sKS}, v{a+2*i}", f"v_mul_f32 v{a+2*i+1}, s{sKS}, v{a+2*i+1}",
                      f"v_cvt_pk_bf16_f32 v{a+i}, v{a+2*i}, v{a+2*i+1}"]
            f += [f"v_permlane32_swap_b32 v{a+x}, v{a+x+2}" for x in (0, 1, 4, 5)]
            f += [wr(a + 4 * e, 2 * j + e, STK) for e in range(2)]
        f += signal(R_K) + vc(1) + vw + signal(R_V)
        per = OPT.get('kper', 40)
    else:
        f = vc(1) + vw + signal(R_V)
        for p in range(16):
            a = accA + 16 * (p // 8)
            i = p % 8
            f += phi_pair(a + 2 * i, a + 2 * i + 1, TMP, TMP + 1, a + i, sL2E, sEps)
            if p % 4 == 3:
                f.append(wr(a + i - 3, p // 4, STK))
        f += signal(R_K)
        per = OPT.get('yper', 40)
    o += merge(p3a, f, start=0, per=per)
    o += stamp(4)
    f = [f"v_cvt_pk_bf16_f32 v{PK+i}, v{accB+2*i}, v{accB+2*i+1}" for i in range(8)]
    f += [wr(PK, 0, STQ), wr(PK + 4, 1, STQ)] + signal(R_Q)
    o += merge(p3b, f, start=4, per=2)
    o += stamp(5)
    a = accB + 16
    o += [f"v_cvt_pk_bf16_f32 v{QF+i}, v{a+2*i}, v{a+2*i+1}" for i in range(8)]
    o += [f"v_and_b32 v{QF}, v{QF}, v{vMA}", f"v_and_b32 v{QF+1}, v{QF+1}, v{vMA}",
          f"v_and_b32 v{QF+6}, v{QF+6}, v{vMB}", f"v_and_b32 v{QF+7}, v{QF+7}, v{vMB}"]
    return o


CM, SA, SB, SC, SF, SX = 16, 32, 64, 80, 96, 112
KFR = 128
PA, PB, PF = 200, 208, 216
OACC = 96
VF = (224, 232)
vKA, vVA, vMx, vG = 2, 3, 4, 5
NEG = '0xf149f2ca'


def attention(guard):
    sI0 = sSt
    o = []

    def kread(i):
        b = KFR + 8 * i
        return [f"ds_read_b128 v[{b+4*s}:{b+4*s+3}], v{vKA} offset:{2048*i+1024*s} ;@tag=k{i}" for s in range(2)]

    def vread(i, buf):
        return [f"ds_read_b128 v[{buf+4*s}:{buf+4*s+3}], v{vVA} offset:{2048*i+1024*s} ;@tag=v{i}" for s in range(2)]

    def qk(d, i, c):
        b = KFR + 8 * i
        return [mfma(d, b, QF, c), mfma(d, b + 4, QF + 4, d)]

    def setc(i, src):
        L, Lb = lab('g'), lab('gb')
        slow.extend([f"{L}:", "s_nop 7"] + [f"v_mov_b32 v{CM+r}, {src}" for r in range(16)] + [f"s_branch {Lb}"])
        return [f"s_cmp_eq_u32 s{sI0}, {i}", f"!s_cbranch_scc1 {L}", f"!{Lb}:"]

    def maxes(s, first):
        m = []
        if first:
            m.append(f"v_max3_f32 v{vMx}, v{s}, v{s+1}, v{s+2}")
            rest = list(range(3, 16))
        else:
            rest = list(range(16))
        while rest:
            if len(rest) >= 2:
                m.append(f"v_max3_f32 v{vMx}, v{vMx}, v{s+rest[0]}, v{s+rest[1]}")
                rest = rest[2:]
            else:
                m.append(f"v_max_f32 v{vMx}, v{vMx}, v{s+rest[0]}")
                rest = []
        return m

    C1 = CM if guard else None
    if guard:
        o += [f"v_mov_b32 v{CM+r}, {NEG}" for r in range(16)]
    o += wait_land(ST_K, inline=True)
    o += stamp(6)
    order = [0, 1, 2, 3, 4, 5, 6, 7, 8] if guard else [0, 8, 1, 2, 3, 4, 5, 6, 7]
    b1 = {0: SF, 8: SC}
    bufs = {}
    for i in range(1, 8):
        b1[i] = (SA, SB, SX)[i % 3]
        bufs[i] = (SA, SB)[i % 2]
    mrg = [f"v_cndmask_b32 v{SC+r}, v{SF+r}, v{SC+r}, s[{sMask+2*r}:{sMask+2*r+1}]" for r in range(16)]
    work = {}
    for i in range(1, 8):
        work[i] = maxes(b1[i], first=(guard and i == 1))
    work[8] = mrg + maxes(SC, first=not guard)
    work[0] = []
    o += kread(order[0]) + kread(order[1]) + kread(order[2])
    q = []
    for n, i in enumerate(order):
        if guard:
            o += setc(i, "0")
        m = qk(b1[i], i, C1)
        nxt = kread(order[n + 3]) if n + 3 < 9 else []
        take = 4 if len(q) <= 12 else 6
        o += [f"@wait_ds k{i}", m[0]] + q[:take] + [m[1]] + nxt
        q = q[take:]
        if n >= 1:
            q = q + work[order[n - 1]]
        must = len(q) - len(work[order[n - 1]]) if n >= 1 else 0
        take = max(must, 4 if len(q) <= 12 else 6)
        o += q[:take]
        q = q[take:]
    vrd, vchk = wait_land(ST_V)
    o += vrd + q + work[order[-1]][:4] + vchk
    o += vread(0, VF[0]) + vread(8, VF[1])
    o += work[order[-1]][4:]
    t = TMP
    o += [f"v_mov_b32 v{t}, v{vMx}", f"v_permlane32_swap_b32 v{t}, v{vMx}",
          f"v_max_f32 v{vMx}, v{vMx}, v{t}", f"v_sub_f32 v{vMx}, 0, v{vMx}"]
    o += stamp(7)
    if guard:
        o += [f"v_mov_b32 v{CM+r}, {NEG}" for r in range(16)]
        o += setc(1, f"v{vMx}")
    else:
        o += [f"v_mov_b32 v{CM+r}, v{vMx}" for r in range(16)]

    def expcvt(s, p, sub):
        e = []
        for r in range(16):
            if sub:
                e.append(f"v_add_f32 v{s+r}, v{s+r}, v{vMx}")
        for r in range(16):
            e.append(f"v_exp_f32 v{s+r}, v{s+r}")
            if r % 2 == 1 and r >= 3:
                e.append(f"v_cvt_pk_bf16_f32 v{p+(r-3)//2}, v{s+r-3}, v{s+r-2}")
        e.append(f"v_cvt_pk_bf16_f32 v{p+7}, v{s+14}, v{s+15}")
        return e

    def spread(mf, va):
        r = []
        n = len(mf)
        k = 0
        for idx, g in enumerate(mf):
            r += g
            want = (len(va) * (idx + 1)) // n - k
            r += va[k:k + want]
            k += want
        return r

    ev = expcvt(SC, PA, True)
    ev += [x for p in range(8) for x in (f"v_and_b32 v{PB+p}, v{PA+p}, v{MK+p}", f"v_xor_b32 v{PF+p}, v{PA+p}, v{PB+p}")]
    q1 = qk(bufs[1], 1, CM)
    o += spread([[q1[0]], [q1[1]]], ev)
    prev_pv = [["@wait_ds v8", mfma(OACC, VF[0], PF, None)], [mfma(OACC, VF[0] + 4, PF + 4, OACC)] + vread(1, VF[0]),
               [mfma(OACC, VF[1], PB, OACC)], [mfma(OACC, VF[1] + 4, PB + 4, OACC)] + vread(2, VF[1])]
    gearly, glate = check_ev(GRDY, 'own', vG)
    for i in range(1, 8):
        P = (PB, PA)[i % 2]
        seq = []
        if i + 1 <= 7:
            if guard:
                o += setc(i + 1, f"v{vMx}")
            nq = qk(bufs[i + 1], i + 1, CM)
            seq += [[nq[0]], [nq[1]]]
        seq += prev_pv
        if i == 6:
            seq[-1] = seq[-1] + gearly
        if i == 7:
            seq[0] = glate + [f"ds_read_b32 v{vG}, v{vGA}", f"ds_read_b32 v{vEc}, v{vM} offset:{16*EPOCH}"] + seq[0]
        o += spread(seq, expcvt(bufs[i], P, False))
        vb = VF[(i + 1) % 2]
        prev_pv = [[f"@wait_ds v{i}", mfma(OACC, vb, P, OACC)],
                   [mfma(OACC, vb + 4, P + 4, OACC)] + (vread(i + 2, vb) if i + 2 <= 7 else [])]
    o += prev_pv[0] + prev_pv[1]
    return o


vGA, vEc = 8, 6


def finish_o(A, D, vscale, t, u, soff, vtag, snot, eps=None):
    o = [f"v_mov_b32 v{t}, v{A+15}", f"v_mov_b32 v{u}, v{A+15}", f"v_permlane32_swap_b32 v{t}, v{u}"]
    if eps is not None:
        o += [f"v_add_f32 v{u}, s{eps}, v{u}"]
    o += [f"v_rcp_f32 v{u}, v{u}", f"v_mov_b32 v{t}, 0xffff", f"v_mul_f32 v{u}, v{u}, v{vscale}"]
    for p in range(8):
        o += [f"v_mul_f32 v{A+2*p}, v{A+2*p}, v{u}"]
        if p % 4 != 3:
            o += [f"v_mul_f32 v{A+2*p+1}, v{A+2*p+1}, v{u}"]
        o += [f"v_cvt_pk_bf16_f32 v{D+p}, v{A+2*p}, v{A+2*p+1}"]
        if p % 4 == 3:
            e = p // 4
            o += [f"v_bfi_b32 v{D+p}, v{t}, v{D+p}, v{vtag}",
                  f"buffer_store_dwordx4 v[{D+4*e}:{D+4*e+3}], v{vL16}, s[{sWSD}:{sWSD+3}], s{soff} offen offset:{1024*e} sc1"]
    return o + notify(snot, t, vtag)


def c_tail():
    o = finish_o(OACC, PA, vG, TMP, TMP + 1, sSt + 1, vEc, sSt + 2)
    o += signal(E_OA)
    o += stamp(3)
    if OPT.get('alt') == 8:
        o += ["s_waitcnt vmcnt(1)", f"!s_memtime s[{sStamp+8}:{sStamp+9}]", "s_waitcnt vmcnt(0)", f"!s_memtime s[{sStamp+10}:{sStamp+11}]"]
    o += c_phase3()
    o += stamp_flush(TMP, 0)
    o += ["s_endpgm"]
    return o


def c_wave():
    ROLE[0] = 'C'
    o = ["@reset", "L_cwave:"]
    o += ["v_lshlrev_b32 v20, 3, v0", "v_mov_b32 v22, 0", "v_mov_b32 v23, 0", f"v_add_u32 v20, {MISC}, v20", "ds_write_b64 v20, v[22:23]",
          ]
    o += c_setup()
    o += ["s_waitcnt lgkmcnt(0)", "s_barrier"]
    o += srd(sWSD, sWS, WS_SIZE)
    o += [f"s_cmp_eq_u32 s{sZ}, 0", "!s_cbranch_scc1 L_cY"]
    o += c_gemm(False)
    o += ["s_branch L_attn", "@reset", "L_cY:"]
    o += c_gemm(True)
    o += ["L_attn:", f"s_setprio {OPT.get('cprio', 0)}"]
    o += [f"s_lshl_b32 s{sT0}, s{sWave}, 11",
          f"s_add_u32 s{sT1}, s{sT0}, {KL}", f"v_add_u32 v{vKA}, s{sT1}, v{vL16}",
          f"s_add_u32 s{sT1}, s{sT0}, {VL}", f"v_add_u32 v{vVA}, s{sT1}, v{vL16}",
          f"s_lshl_b32 s{sT0}, s{sWave}, 8", f"s_add_u32 s{sT0}, s{sT0}, {GL}", f"v_lshl_add_u32 v{vGA}, v0, 2, s{sT0}",
          f"s_lshl_b32 s{sT0}, s{sWave}, 2", f"s_add_u32 s{sT0}, s{sT0}, {MISC}", f"v_mov_b32 v{vOwn}, s{sT0}",
          f"s_lshl_b32 s{sT0}, s{sTile}, 4", f"s_add_u32 s{sT0}, s{sT0}, s{sH}",
          f"s_lshl_b32 s{sT1}, s{sT0}, 7", f"s_add_u32 s{sSt+2}, s{sT1}, {NA}",
          f"s_lshl_b32 s{sT0}, s{sT0}, 11", f"s_add_u32 s{sSt+1}, s{sT0}, {OA}",
          f"s_cmp_lt_u32 s{sTile}, 8", "!s_cbranch_scc1 L_attn_g"]
    o += attention(False)
    o += ["L_ctail:"]
    o += c_tail()
    o += ["@reset", "L_attn_g:", f"s_sub_u32 s{sSt}, 8, s{sTile}"]
    o += attention(True)
    o += ["s_waitcnt lgkmcnt(0)", "s_nop 15", "s_branch L_ctail", "@reset"]
    return o


def code_prefetch():
    n = OPT['prefetch']
    if not n:
        return []
    o = ["s_getpc_b64 s[38:39]", "L_pc:",
         f"s_sub_u32 s38, s38, L_pc-{NAME}_kernel", "s_subb_u32 s39, s39, 0",
         f"s_lshr_b32 s{sT0}, s2, 3", f"s_lshl_b32 s{sT1}, s{sWave}, 5", f"s_add_u32 s{sT0}, s{sT0}, s{sT1}",
         f"s_mul_i32 s{sT0}, s{sT0}, {128*n}",
         f"v_lshl_add_u32 v20, v0, 7, s{sT0}",
         f"v_min_u32 v20, L_end-{NAME}_kernel-4, v20",
         f"s_mov_b64 exec, {(1 << n) - 1}",
         "!global_load_dword v239, v20, s[38:39]", "s_mov_b64 exec, -1"]
    return o


sXD, sWD, sQBD, sQAD, sGD = 36, 40, 44, 48, 52
sKGD, sVGD = 56, 60
sRt, sTT, sE2, sL2 = 64, 65, 66, 67
sOBo, sA, sB, sC = 68, 69, 70, 71
sOff, sLi, sKh = 72, 73, 75
sEarly = 61
sOBn = 62
sNo = 63
sC7 = 53
sOBd = 60
vX, vW, vQ, vPat, vK, vV, vWO = 2, 3, 4, 5, 6, 7, 8
vEp = 15
GV = 16
HQ = 28
PQR = 16
vG1 = 27
KVr = 88
sRet = 54


def p3_slot():
    return [f"s_and_b32 s{sT0}, s{sRB}, 3", f"s_lshl_b32 s{sT0}, s{sT0}, 3", f"s_and_b32 s{sT1}, s{sH}, 7",
            f"s_add_u32 s{sJ3}, s{sT0}, s{sT1}",
            f"s_cmp_ge_u32 s{sJ3}, 14", f"s_cselect_b32 s{sT0}, 14, 0", f"s_cselect_b32 s{sT1}, 1, 0",
            f"s_sub_u32 s{sT0}, s{sJ3}, s{sT0}", f"s_lshr_b32 s{sCT}, s{sT0}, 1", f"s_and_b32 s{sT0}, s{sT0}, 1",
            f"s_lshr_b32 s{sT2}, s{sH}, 3", f"s_lshl_b32 s{sT2}, s{sT2}, 1", f"s_add_u32 s{sT1}, s{sT1}, s{sT2}",
            f"s_and_b32 s{sT2}, s{sRB}, 12", f"s_add_u32 s{sT1}, s{sT1}, s{sT2}",
            f"s_lshl_b32 s{sT1}, s{sT1}, 1", f"s_add_u32 s{sT1}, s{sT1}, s{sT0}", f"s_lshl_b32 s{sTB}, s{sT1}, 1"]


def h_setup():
    return p3_slot() + [
            f"s_lshl_b32 s{sT0}, s{sW4}, 2", f"s_add_u32 s{sT0}, s{sT0}, {MISC}", f"v_mov_b32 v{vOwn}, s{sT0}",
            f"v_lshrrev_b32 v{vLow}, 5, v0", f"v_add_u32 v{vLow}, -1, v{vLow}",
            f"s_mov_b32 s{sE2}, {fhex(1e-6)}", f"s_mov_b32 s{sL2}, {fhex(LOG2E)}",
            f"s_lshl_b32 s{sT0}, s{sRB}, 2", f"s_add_u32 s{sT0}, s{sT0}, s{sW4}", f"s_lshl_b32 s{sT0}, s{sT0}, 4",
            f"s_add_u32 s{sT0}, s{sT0}, s{sH}",
            f"s_lshl_b32 s{sT1}, s{sT0}, 7", f"s_add_u32 s{sOBn}, s{sT1}, {NB}",
            f"s_lshl_b32 s{sT0}, s{sT0}, 11", f"s_add_u32 s{sOBo}, s{sT0}, {OB}"]


def qb_phi():
    R, A = 96, 64
    t, u = 24, 25
    o = spin_ev(R_Q, 'own', HQ)
    o += [f"s_lshl_b32 s{sT0}, s{sW4}, 12", f"v_add_u32 v{t}, s{sT0}, v{vL16}",
          f"ds_read_b128 v[{R}:{R+3}], v{t}", f"ds_read_b128 v[{R+4}:{R+7}], v{t} offset:1024",
          f"s_lshl_b32 s{sT0}, s{sW4}, 8", f"s_add_u32 s{sT0}, s{sT0}, {GL}", f"v_lshl_add_u32 v{26}, v0, 2, s{sT0}",
          f"v_lshlrev_b32 v{t}, 16, v{R+6}", f"v_lshlrev_b32 v{u}, 16, v{R+6}",
          f"v_permlane32_swap_b32 v{t}, v{u}",
          f"v_mul_f32 v{u}, s{sL2}, v{u}", f"v_exp_f32_e64 v{u}, -v{u}", f"v_add_f32 v{u}, 1.0, v{u}",
          f"v_rcp_f32 v{u}, v{u}", f"ds_write_b32 v26, v{u}"] + signal(GRDY) + [f"v_sub_f32 v{vG1}, 1.0, v{u}"]
    for p in range(8):
        o += [f"v_lshlrev_b32 v{A+2*p}, 16, v{R+p}", f"v_and_b32 v{A+2*p+1}, 0xffff0000, v{R+p}"]
        o += phi_pair(A + 2 * p, A + 2 * p + 1, t, u, PQR + p, sL2, sE2)
    o += [f"v_and_b32 v{PQR+6}, v{PQR+6}, v{vLow}", f"v_and_b32 v{PQR+7}, v{PQR+7}, v{vLow}"]
    return o


def ob_tile(read_kv=True):
    o = []
    if read_kv:
        o += spin_ev(KVRDY, 3, HQ)
        o += [f"v_add_u32 v24, {KVF}, v{vL16}",
              f"ds_read_b128 v[{KVr}:{KVr+3}], v24", f"ds_read_b128 v[{KVr+4}:{KVr+7}], v24 offset:1024"]
    o += [mfma(64, KVr, PQR, None), mfma(64, KVr + 4, PQR + 4, 64)]
    o += finish_o(64, 80, vG1, 24, 25, sOBo, vEp, sOBn, eps=sE2)
    return o


def call(name):
    return ["@drain", f"!s_call_b64 s[{sRet}:{sRet+1}], L_sub_{name}", "@reset"]


def subroutines():
    o = []
    for name, body in (("phi", qb_phi()), ("ob", ob_tile()), ("r0", woa_read(0) + signal(R1)), ("r1", woa_read(1))):
        o += ["@reset", f"L_sub_{name}:"] + body + ["s_waitcnt lgkmcnt(0)", f"!s_setpc_b64 s[{sRet}:{sRet+1}]"]
    for name, w in (("d7", f"!s_waitcnt vmcnt({OPT.get('wlead', 20) - 1})"), ("d7e", f"!s_waitcnt vmcnt({OPT.get('elead', 14) - 1})")):
        o += ["@reset", f"L_sub_{name}:"]
        for m in range(7):
            o += [w, f"!buffer_load_dwordx4 v{vWO}, s[{sXD}:{sXD+3}], s{sOff} offen lds",
                  f"!s_add_u32 s{sOff}, s{sOff}, s{sC7}", "!s_addk_i32 m0, 1024"]
        o += [f"!s_setpc_b64 s[{sRet}:{sRet+1}]"]
    return o


def wait_serving(rd, red, cmp_ok, early=None):
    L, L1, L2 = lab('ws'), lab('ws1'), lab('ws2')
    o = ["@drain", f"s_mov_b32 s{sTO}, 0", f"!{L}:", "!" + rd, f"!ds_read_b32 v24, v{vM} offset:{16*KVRDY+12}"]
    o += ["!" + x for x in _tmo()]
    o += ["!s_waitcnt lgkmcnt(0)", f"!v_cmp_lt_u32 vcc, s{sOBd}, v24", f"!s_cbranch_vccz {L1}",
          f"!s_call_b64 s[{sRet}:{sRet+1}], L_sub_ob", f"!s_mov_b32 s{sOBd}, 1", f"!s_mov_b32 s{sTO}, 0", f"!s_branch {L}", f"!{L1}:"]
    o += ["!" + x for x in red + [cmp_ok, f"s_cbranch_vccnz {L2}"]]
    if early is not None:
        o += [f"!s_mov_b32 s{early}, 1"]
    o += [f"!s_sleep {OPT.get('ssleep', 2)}", f"!s_branch {L}", "@reset", f"!{L2}:"]
    return o


def serve_ev(ev, early=None):
    return wait_serving(f"ds_read_b128 v[{HQ}:{HQ+3}], v{vM} offset:{16*ev}",
                        [f"v_min3_u32 v{HQ}, v{HQ}, v{HQ+1}, v{HQ+2}", f"v_min_u32 v{HQ}, v{HQ}, v{HQ+3}"],
                        f"v_cmp_ne_u32 vcc, 0, v{HQ}", early)


def serve_land(st):
    return wait_serving(f"ds_read_b32 v{HQ}, v{vM} offset:{256+4*st}", [], f"v_cmp_eq_u32 vcc, 2, v{HQ}")


def dma(vaddr, sd, soff, lds, extra="", tag=None):
    o = [f"s_add_u32 m0, s{sLi}, {lds}"]
    if soff:
        o.append(f"s_mov_b32 s{sOff}, {soff}")
        so = f"s{sOff}"
    else:
        so = "0"
    o.append(f"buffer_load_dwordx4 v{vaddr}, s[{sd}:{sd+3}], {so} offen {extra} lds" + (f" ;@tag={tag}" if tag else ""))
    return o


def spin_vm(body, cond, sleep=0):
    L = lab('pv')
    o = [f"!s_mov_b32 s{sTO}, 0", f"!{L}:"]
    o += ["!" + b for b in body + _tmo()]
    o += ["s_waitcnt vmcnt(0)"]
    o += ["!" + c for c in cond]
    o += [f"!s_cbranch_vccnz {L}"]
    return o


def flag_ld(vdst, vaddr, soff):
    if 1:
        return [f"v_mov_b32 v{vdst}, 0", f"buffer_atomic_or v{vdst}, v{vaddr}, s[{sWSD}:{sWSD+3}], {soff} offen sc0 sc1"]
    return [f"buffer_load_dword v{vdst}, v{vaddr}, s[{sWSD}:{sWSD+3}], {soff} offen sc1"]


def light_poll(vdst, vaddr, soff, mask, cmp_bad, first_issued=False, sleep=None, flag=False, hook=None):
    sleep = OPT.get('psleep', 1) if sleep is None else sleep
    L, L2, L0 = lab('lp'), lab('lpx'), lab('lp0')
    ld = f"buffer_load_dword v{vdst}, v{vaddr}, s[{sWSD}:{sWSD+3}], {soff} offen sc1"
    o = [f"s_mov_b64 exec, {mask}", f"s_mov_b32 s{sTO}, 0"]
    if first_issued:
        o += [f"!s_branch {L0}"]
    o += [f"!{L}:"] + ["!!" + x for x in (flag_ld(vdst, vaddr, soff) if flag else [ld])] + [f"!{L0}:"] + ["!" + x for x in _tmo()] + ["s_waitcnt vmcnt(0)"]
    o += ["!" + c for c in cmp_bad]
    o += [f"!s_cbranch_vccz {L2}"]
    if hook:
        o += ["!!s_mov_b64 s[50:51], vcc", "!!s_mov_b64 exec, -1"] + ["!!" + x.lstrip('!') for x in hook if not x.startswith('@')] + ["!!s_mov_b64 vcc, s[50:51]"]
    o += ["!!s_mov_b64 exec, vcc"] + ([f"!!s_sleep {sleep}"] if sleep else []) + \
         [f"!!s_branch {L}", f"!{L2}:", "s_mov_b64 exec, -1"]
    return o


def notify(soff, vt, vep, fan=1):
    return [f"v_lshlrev_b32 v{vt}, 7, v0", f"s_mov_b64 exec, {(1 << fan) - 1}",
            f"buffer_store_dword v{vep}, v{vt}, s[{sWSD}:{sWSD+3}], s{soff} offen sc1", "s_mov_b64 exec, -1"]


def fmap(d, t):
    return [f"v_bfe_u32 v{d}, v0, 4, 1", f"v_bfe_u32 v{t}, v0, 2, 1", f"v_lshl_add_u32 v{d}, v{d}, 1, v{t}",
            f"v_mul_u32_u24 v{d}, 7, v{d}", f"v_bfe_u32 v{t}, v0, 3, 1", f"v_lshl_add_u32 v{d}, v{t}, 2, v{d}",
            f"v_and_b32 v{t}, 3, v0", f"v_add_u32 v{d}, v{d}, v{t}"]


def l_wave():
    ROLE[0] = 'L'
    o = [f"s_setprio {OPT.get('lprio', 2)}"]
    t0, t1, t2 = 24, 25, 26
    sHW = sW4
    o += [f"s_lshl_b32 s{sLi}, s{sHW}, 10",
          f"v_mov_b32 v{vMl}, v{vMs}", f"s_mov_b32 s{sT0}, {LANDC}", f"v_writelane_b32 v{vMl}, s{sT0}, 0"]
    o += [f"v_lshrrev_b32 v{t0}, 3, v0", f"s_lshl_b32 s{sT0}, s{sRB}, 4", f"s_add_u32 s{sT0}, s{sT0}, s{sHW}",
          f"s_lshl_b32 s{sT0}, s{sT0}, 3", f"v_add_u32 v{t1}, s{sT0}, v{t0}", f"v_mul_u32_u24 v{vX}, 896, v{t1}",
          f"v_lshrrev_b32 v{t1}, 4, v0", f"s_lshl_b32 s{sT0}, s{sHW}, 2", f"v_add_u32 v{t1}, s{sT0}, v{t1}",
          f"v_and_b32 v{t2}, 7, v0", f"v_xor_b32 v{t1}, v{t1}, v{t2}", f"v_lshl_add_u32 v{vX}, v{t1}, 4, v{vX}"]
    o += [f"s_lshl_b32 s{sT2}, s{sZ}, 4", f"s_add_u32 s{sT1}, s{sT2}, 112", f"s_add_u32 s{sT2}, s{sT2}, 48",
          f"s_mul_i32 s{sT1}, s{sT1}, s{sHH}", f"s_add_u32 s{sT1}, s{sT1}, 896",
          f"s_lshl_b32 s{sT0}, s{sHW}, 3", f"v_add_u32 v{t1}, s{sT0}, v{t0}", f"v_mul_u32_u24 v{vW}, 2688, v{t1}",
          f"v_bfe_u32 v{t1}, v0, 2, 1", f"v_bfe_u32 v{t2}, v0, 4, 1", f"v_xor_b32 v{t1}, v{t1}, v{t2}",
          f"v_mul_u32_u24 v{t2}, s{sT2}, v{t1}", f"v_add3_u32 v{vW}, v{vW}, v{t2}, s{sT1}",
          f"v_and_b32 v{t2}, 3, v0", f"v_lshl_add_u32 v{vW}, v{t2}, 4, v{vW}"]
    o += [f"s_mov_b32 s{sXD+2}, 1835008", f"s_mov_b32 s{sXD+3}, 0x20000",
          f"s_mov_b32 s{sWD+2}, 1204224", f"s_mov_b32 s{sWD+3}, 0x20000",
          f"s_cmp_eq_u32 s{sH}, 15", f"s_cselect_b32 s{sWD+2}, 0, s{sWD+2}",
          f"s_cmp_eq_u32 s{sZ}, 0"]
    o += stamp(1, 'f')
    o += ["s_waitcnt lgkmcnt(0)",
          f"s_mov_b32 s{sXD}, s{sX}", f"s_mov_b32 s{sXD+1}, s{sX+1}",
          f"s_cselect_b32 s{sWD}, s{sBW}, s{sAW}", f"s_cselect_b32 s{sWD+1}, s{sBW+1}, s{sAW+1}"]
    ops = []
    for c in range(7):
        for ii in range(8):
            ops.append((dma(vX, sXD, 16 * ii * 896 + 128 * c, XR(c) + 2048 * ii), c))
        for p in range(2):
            for ii in range(4):
                ops.append((dma(vW, sWD, (64 * c + 16 * ii) * 2688 + 896 * p, WR(c) + 8192 * p + 2048 * ii), c))
    for q, sd in enumerate((sQBD, sQAD)):
        for c in range(7):
            for ii in range(2):
                ops.append((dma(vQ, sd, (64 * c + 32 * ii) * 2688, QLOC[7 * q + c] + 2048 * ii), 7 + 7 * q + c))
    late = srd(sWSD, sWS, WS_SIZE) + srd(sQBD, sBW, 1204224) + srd(sQAD, sAW, 1204224) + srd(sGD, sGW, 896)
    late += [f"v_lshrrev_b32 v{t0}, 2, v0", f"s_lshl_b32 s{sT0}, s{sHW}, 4", f"v_add_u32 v{t0}, s{sT0}, v{t0}",
             f"v_mul_u32_u24 v{vQ}, 2688, v{t0}", f"v_and_b32 v{t1}, 3, v0", f"v_lshl_add_u32 v{vQ}, v{t1}, 4, v{vQ}",
             f"s_mul_i32 s{sT0}, s{sH}, 56", f"s_lshl_b32 s{sT1}, s{sPar}, 3", f"s_sub_u32 s{sT0}, s{sT0}, s{sT1}",
             f"v_add_u32 v{vQ}, s{sT0}, v{vQ}",
             f"v_bfe_u32 v{t0}, v0, 4, 1", f"v_lshlrev_b32 v{t0}, 5, v{t0}", f"v_and_b32 v{t1}, 15, v0",
             f"s_lshl_b32 s{sT0}, s{sHW}, 4", f"v_add3_u32 v{t0}, v{t0}, v{t1}, s{sT0}",
             f"v_lshlrev_b32 v27, 1, v{t0}",
             f"s_xor_b32 s{sT0}, s{sPar}, 1", f"s_mul_i32 s{sT0}, s{sT0}, 56", f"s_add_u32 s{sT0}, s{sT0}, {QBB}",
             f"v_lshl_add_u32 v{vPat}, v{t0}, 6, s{sT0}"]
    late += [f"buffer_load_ushort v{GV+c}, v27, s[{sGD}:{sGD+3}], 0 offen offset:{128*c}" for c in range(7)]
    late += [f"s_mul_i32 s{sT0}, s{sHW}, {VG}", [f"s_add_u32 s{sKGD}, s{sWS}, s{sT0}", f"s_addc_u32 s{sKGD+1}, s{sWS+1}, 0"],
             f"s_mov_b32 s{sKGD+2}, 1835008", f"s_mov_b32 s{sKGD+3}, 0x20000"]
    late += [f"s_lshl_b32 s{sT0}, s{sRB}, 2", f"s_sub_u32 s{sT0}, s{sT0}, 8", f"s_mul_i32 s{sA}, s{sT0}, 28672",
             f"s_mul_i32 s{sT1}, s{sH}, 7", f"s_lshr_b32 s{sT1}, s{sT1}, 1", f"s_lshl_b32 s{sT1}, s{sT1}, 9",
             f"s_add_u32 s{sT1}, s{sT1}, s{sA}",
             f"v_add_u32 v{vK}, s{sT1}, v{vL16}",
             f"s_mul_i32 s{sT1}, s{sH}, 448", f"s_add_u32 s{sT1}, s{sT1}, s{sA}",
             f"v_lshrrev_b32 v{t0}, 5, v0", f"v_mul_u32_u24 v{t0}, 7168, v{t0}"] + fmap(t1, t2) + [
             f"v_lshl_add_u32 v{t0}, v{t1}, 4, v{t0}", f"v_add_u32 v{vV}, s{sT1}, v{t0}"]
    vFl = 32
    late += [f"s_mul_i32 s{sT0}, s{sH}, 28", f"s_add_u32 s{sT1}, s{sT0}, 27",
             f"s_lshr_b32 s{sT0}, s{sT0}, 6", [f"s_lshr_b32 s{sT1}, s{sT1}, 6", f"s_cmp_eq_u32 s{sT0}, s{sT1}",
             f"s_cselect_b32 s{sB}, 0x15, 63"],
             f"s_min_u32 s{sT0}, s{sRB}, 2", f"s_lshl_b32 s{sT0}, s{sT0}, 1", f"s_sub_u32 s{sT0}, 4, s{sT0}",
             f"s_lshl_b32 s{sT1}, -1, s{sT0}", f"s_and_b32 s{sB}, s{sB}, s{sT1}", f"s_mov_b32 s{sB+1}, 0",
             f"s_lshl_b32 s{sT0}, s{sRB}, 4", f"s_add_u32 s{sT0}, s{sT0}, s{sH}", f"s_lshl_b32 s{sT0}, s{sT0}, 7",
             f"v_lshl_add_u32 v{vFl}, v0, 2, s{sT0}"]
    late += [h_setup()] + p3_early()
    late += [f"v_lshrrev_b32 v{t0}, 3, v0", f"s_mul_i32 s{sT0}, s{sHW}, 224", f"v_add_u32 v{t1}, s{sT0}, v{t0}",
             f"v_mul_u32_u24 v{vWO}, 896, v{t1}",
             f"v_bfe_u32 v{t1}, v0, 2, 1", f"v_bfe_u32 v{t2}, v0, 4, 1", f"v_xor_b32 v{t1}, v{t1}, v{t2}",
             f"v_lshl_add_u32 v{vWO}, v{t1}, 6, v{vWO}", f"v_and_b32 v{t2}, 3, v0", f"v_lshl_add_u32 v{vWO}, v{t2}, 4, v{vWO}",
             f"s_lshl_b32 s{sT0}, s{sCT}, 7", f"v_add_u32 v{vWO}, s{sT0}, v{vWO}"]
    pieces = [late[i:i + 6] for i in range(0, len(late), 6)]
    last_of = {}
    for n, (_, st) in enumerate(ops):
        last_of[st] = n
    def lead_at(n):
        return OPT['l1'] if ops[n][1] < 7 else OPT['l3']
    sig_next = 0

    def do_signal(st):
        r = [f"@wait_vm o{last_of[st]}"]
        if 7 <= st <= 13:
            r.append(f"ds_write_b16 v{vPat}, v{GV+st-7} offset:{QLOC[st-7]-QBB}")
        return r + land(st)

    def emit_ops(n0, n1, sig, fine):
        r = []
        for n in range(n0, n1):
            ins, st = ops[n]
            need = {64: 1, 80: 2, 96: 3, 124: 4}.get(n)
            if need:
                assert sig >= need
                r += spin_ev(E_PA, 'all', HQ, ge=need)
            ins = ins[:-1] + [ins[-1] + f" ;@tag=o{n}"]
            if n == 0:
                r += stamp(2, 'f')
            r += ins
            if n == 15:
                r += stamp(3, 'f') + ["s_barrier"] + stamp(4, 'f')
            if n >= 16 and pieces:
                r += sum([x if isinstance(x, list) else [x] for x in pieces.pop(0)], [])
            done = n - lead_at(n)
            if done >= 0 and n >= 15:
                r += [f"@wait_vm o{done}"]
            while sig < 21 and last_of[sig] <= done and n >= 15:
                r += do_signal(sig)
                r += {0: stamp(5, 'f'), 1: stamp(6, 'f'), 2: stamp(7, 'f'), 4: stamp(8, 'f'), 6: stamp(9, 'f'), 10: stamp(10, 'f')}.get(sig, [])
                sig += 1
        return r, sig

    def tail(sig, pf=False):
        r, sig = emit_ops(HOLD, len(ops), sig, False)
        r += stamp(1) + stamp(11, 'f')
        if pf and OPT.get('ypf', 0):
            r += [f"s_cmp_eq_u32 s{sHW}, 0", f"s_cselect_b32 s48, s{sAO}, s{sBO}", f"s_cselect_b32 s49, s{sAO+1}, s{sBO+1}",
                  f"s_and_b32 s{sT0}, s{sRB}, 3", f"s_lshl_b32 s{sT0}, s{sT0}, 2", f"s_and_b32 s{sT1}, s{sHH}, 3",
                  f"s_add_u32 s{sT0}, s{sT0}, s{sT1}", f"s_mul_i32 s{sT0}, s{sT0}, {196*128}",
                  f"v_lshl_add_u32 v33, v0, 7, s{sT0}", "s_mov_b32 exec_hi, 0x1ffff"]
            for i in range(4):
                r += [f"global_load_dword v{40+i}, v33, s[48:49]"] + ([f"v_add_u32 v33, {49*128}, v33"] if i < 3 else [])
            r += ["s_mov_b64 exec, -1"]
        for st in range(sig, 21):
            r += do_signal(st)
        return r
    HOLD = OPT.get('hold', 140)
    r, sig = emit_ops(0, HOLD, 0, True)
    assert not pieces
    o += r
    if HOLD < len(ops):
        o += [f"s_cmp_eq_u32 s{sZ}, 0", "!s_cbranch_scc0 L_lhold"]
    o += tail(sig, True)
    if HOLD < len(ops):
        o += ["s_branch L_ljoin", "@reset", "L_lhold:"]
        while last_of[sig] < HOLD:
            o += [f"s_waitcnt vmcnt({HOLD - 1 - last_of[sig]})"] + do_signal(sig)
            sig += 1
        o += spin_ev(X_PUB, 'hi', HQ)
        o += tail(sig)
        o += ["@reset", "L_ljoin:"]
    o += spin_ev(EPOCH, 0, vEp)
    d7 = [f"!s_call_b64 s[{sRet}:{sRet+1}], L_sub_d7e"]

    def batch(ptr, row0, lds, stride, n, sub=d7):
        return [f"s_mov_b32 s{sXD}, s{ptr}", f"s_mov_b32 s{sXD+1}, s{ptr+1}", f"s_mov_b32 s{sOff}, {row0*896}",
                f"s_mul_i32 s{sLi}, s{sHW}, {stride}", f"s_add_u32 m0, s{sLi}, {lds}"] + sub * n
    o += [f"s_mov_b32 s{sXD+2}, 401408", f"s_mov_b32 s{sC7}, 7168",
          f"s_cmp_ge_u32 s{sJ3}, 28", "!s_cbranch_scc1 L_lnoA"]
    if OPT.get('e1', 1):
        o += [f"s_cmp_eq_u32 s{sHW}, 0", "!s_cbranch_scc1 L_lnoA"]
    o += spin_ev(E_P2, 'all', HQ)
    if OPT.get('zgate', 1):
        o += [f"s_cmp_eq_u32 s{sZ}, 0", "!s_cbranch_scc1 L_lgoA"] + spin_ev(X_PUB, 'hi', HQ) + ["L_lgoA:"]
    o += batch(sAO, 0, WBA, WBAS, 3)
    if OPT.get('e1', 1):
        o += [f"v_subrev_u32 v{vWO}, {224*896}, v{vWO}", f"s_mov_b32 s{sOff}, 0", f"s_mov_b32 m0, {WBA}"] + d7 * 3
    o += ["L_lnoA:"]
    o += [f"s_cmp_eq_u32 s{sHW}, 0", "!s_cbranch_scc0 L_lgV"] + spin_ev(F_K, 'hi', HQ, ge=2) + ["s_branch L_lg", "L_lgV:"]
    o += spin_ev(E_P3A, 'all', HQ) + ["L_lg:"]
    o += stamp(6, 'z')
    o += [f"s_mul_i32 s{sT1}, s{sHW}, {FV-FK}", f"s_add_u32 s{sT1}, s{sT1}, {FK}"]
    o += light_poll(t1, 32, f"s{sT1}", f"s[{sB}:{sB+1}]", [f"v_cmp_ne_u32 vcc, v{t1}, v{vEp}"], flag=OPT.get('apoll', 1), sleep=OPT.get('fsleep', 2))
    o += stamp(2)
    if OPT.get('alt') == 5:
        o += [f"s_add_u32 s{sStamp+14}, s{sStamp}, s{sTO}"]
    o += [f"s_cmp_eq_u32 s{sHW}, 0", "!s_cbranch_scc0 L_lV"]
    for j in range(12):
        for e in range(2):
            o += [f"s_mov_b32 m0, {KL + 2048*j + 1024*e - 1024*e}",
                  f"buffer_load_dwordx4 v{vK}, s[{sKGD}:{sKGD+3}], 0 offen offset:{1024*e} sc1 lds"]
        o += [f"v_add_u32 v{vK}, 28672, v{vK}"]
    o += [f"s_mov_b32 s{sA}, {4*ST_K}", "s_branch L_lKV", "@reset", "L_lV:"]
    o += [f"v_mov_b32 v{36+i}, 0x3f803f80" for i in range(4)]
    o += [f"v_lshlrev_b32 v{t0}, 9, v0", f"v_add_u32 v{t0}, {VL+496}, v{t0}",
          "s_mov_b32 exec_hi, 0xffff", f"ds_write_b128 v{t0}, v[36:39]",
          "s_mov_b32 exec_lo, 0x7fffffff", "s_mov_b32 exec_hi, 0x7fffffff", f"s_mov_b32 s{sOff}, 14336"]
    for j in range(12):
        for e in range(2):
            pre = [f"v_add_u32 v{t2}, s{sOff}, v{vV}"] if e else []
            o += pre + [f"s_mov_b32 m0, {VL + 2048*j + 1024*e}",
                        f"buffer_load_dwordx4 v{t2 if e else vV}, s[{sKGD}:{sKGD+3}], 0 offen sc1 lds"]
        o += [f"v_add_u32 v{vV}, 28672, v{vV}"]
    o += ["s_mov_b64 exec, -1", f"s_mov_b32 s{sA}, {4*ST_V}", "@reset", "L_lKV:"]
    o += stamp(3) + signal(KVISS)
    kvland = [f"v_add_u32 v{t2}, s{sA}, v{vMl}", f"v_mov_b32 v{t0}, 2", f"ds_add_u32 v{t2}, v{t0}"]
    o += [f"s_cmp_ge_u32 s{sJ3}, 28", "!s_cbranch_scc0 L_lwo"] + call("phi") + \
        ["s_waitcnt vmcnt(0)"] + kvland + call("ob") + stamp_flush(20, 0) + ["s_endpgm", "@reset", "L_lwo:"]
    o += call("phi") + stamp(8, 'z')
    o += ["s_waitcnt vmcnt(0)"] + kvland
    o += stamp(4)
    o += land(ST_WB)
    o += p3_setup() + [f"s_mov_b32 s{sOBd}, 0"] + serve_land(ST_WA1) + call("r0")
    o += stamp(5)
    o += ["s_branch L_p3", "@reset"]
    return o


sOb, sNb = 58, 59


def gload(g):
    r = [f"s_add_u32 s{sT2}, s{sOb}, {4096*g}"]
    for e in range(4):
        n = 4 * g + e
        r.append(f"buffer_load_dwordx4 v[{OF+4*n}:{OF+4*n+3}], v{vOG}, s[{sWSD}:{sWSD+3}], s{sT2} offen offset:{1024*e} sc1")
    return r


WA = 128
OF = 64
ACC = 32
BB = 16
vA = 2
vOG = 6
vTg = 9


def p3_early(PARK=248, base=STG, stride=STGS):
    t0, t1, t2, r, cg = 240, 241, 242, 243, 244
    o = [f"s_lshr_b32 s{sKh}, s{sW4}, 1", f"s_and_b32 s{sRt}, s{sW4}, 1",
         f"s_add_u32 s{sTT}, s{sTB}, s{sRt}",
         f"v_bfe_u32 v{r}, v0, 2, 2", f"v_bfe_u32 v{t0}, v0, 4, 1", f"v_and_b32 v{cg}, 3, v0",
         f"v_lshl_add_u32 v{cg}, v{t0}, 2, v{cg}", f"v_lshlrev_b32 v{cg}, 3, v{cg}",
         f"s_mul_i32 s{sT0}, s{sKh}, {stride}", f"s_add_u32 s{sT0}, s{sT0}, {base}",
         f"v_add_u32 v{cg}, s{sT0}, v{cg}",
         f"v_lshrrev_b32 v{t2}, 5, v0", f"v_mul_u32_u24 v{t2}, 7, v{t2}"]
    for s_ in range(2):
        for u in range(2):
            d = PARK + 2 * s_ + u
            o += [f"v_min_u32 v{t0}, {2 if u else 3}, v{r}", f"v_add3_u32 v{t0}, v{t0}, v{t2}, {14*s_+4*u}",
                  f"v_bfe_u32 v{t1}, v{t0}, 1, 1", f"v_xor_b32 v{t1}, s{sKh}, v{t1}",
                  f"v_lshl_add_u32 v{d}, v{t0}, 7, v{cg}", f"v_lshl_add_u32 v{d}, v{t1}, 6, v{d}"]
    o += [f"s_lshl_b32 s{sT0}, s{sTT}, 1", f"s_add_u32 s{sT0}, s{sT0}, s{sKh}", f"s_lshl_b32 s{sNo}, s{sT0}, 10", f"s_lshl_b32 s{sT0}, s{sT0}, 14",
          f"v_add_u32 v{PARK+4}, s{sT0}, v{vL16}"]
    return o


def p3_setup():
    return [f"v_mov_b32 v{vA+i}, v{248+i}" for i in range(5)] + [f"v_and_b32 v{vTg}, 0xffff0000, v{vEp}"]


FLIP = [f"v_xor_b32 v{vA+i}, 64, v{vA+i}" for i in range(4)]


def wo_frag(dst, hl, s, tag=None):
    return [tr(dst, vA + 2 * s, 28 * hl * 128), tr(dst + 2, vA + 2 * s + 1, 28 * hl * 128, tag)]


def woa_read(rho):
    o = []
    for j in range(2):
        for hl in range(4):
            for s in range(2):
                o += wo_frag(WA + 64 * j + 8 * (4 * rho + hl) + 4 * s, hl, s)
        o += FLIP
    return o


RSTR = VL - KL


def half_sub():
    vC = 7
    o = ["@reset", "L_sub_half:"]

    def gcheck(g):
        b = OF + 16 * g
        ch = [f"v_xor_b32 v{b+4*e+3}, v{b+4*e+3}, v{vTg}" for e in range(4)]
        ch += [f"v_or3_b32 v{vC}, v{b+3}, v{b+7}, v{b+11}", f"v_or_b32 v{vC}, v{vC}, v{b+15}",
               f"v_cmp_lt_u32 vcc, 0xffff, v{vC}"]
        Ls, Lb = lab('slow'), lab('back')
        slow.extend([f"{Ls}:"] + ([f"s_add_u32 s{sStamp+14}, s{sStamp+14}, 1"] if OPT.get('alt') == 6 else []) + [f"s_mov_b32 s{sTO}, 0", f"{Ls}_s:", "s_sleep 4"] + gload(g) + _tmo() + ["s_waitcnt vmcnt(0)"] + ch +
                    [f"s_cbranch_vccnz {Ls}_s", f"s_branch {Lb}"])
        return ch + [f"!s_cbranch_vccnz {Ls}", f"!{Lb}:"]
    if OPT.get('alt') == 6:
        o += ["s_waitcnt lgkmcnt(0)", f"s_mov_b32 s{sStamp+14}, s{sStamp}"]
    if OPT.get('alt') in (7, 8):
        o += [f"!s_memtime s[{sStamp+12}:{sStamp+13}]"]
    o += [f"v_lshlrev_b32 v7, 7, v0"]
    o += light_poll(HQ, 7, f"s{sNb}", "0xff", [f"v_cmp_ne_u32 vcc, v{HQ}, v{vEp}"], sleep=OPT.get('osleep', 1))
    o += stamp(9)
    if OPT.get('alt') in (7, 8):
        o += [f"s_add_u32 s{sStamp+14}, s{sStamp}, s{sTO}"]
    for g in range(4):
        o += gload(g)
    sO = 40
    o += srd(sO, sOUT, 1835008)
    o += [f"s_lshr_b32 s{sT2}, s{sWave}, 2", f"s_mul_i32 s{sT1}, s{sT2}, {RSTR}",
          f"s_mul_i32 s{sT0}, s{sW4}, 6144", f"s_add_u32 s{sT0}, s{sT0}, {KL}",
          f"s_add_u32 s44, s{sT0}, s{sT1}", f"v_add_u32 v2, s44, v{vL16}",
          f"s_sub_u32 s44, s{sT0}, s{sT1}", f"s_add_u32 s44, s44, {RSTR+4096}", f"v_add_u32 v3, s44, v{vL16}",
          f"s_lshl_b32 s{sT2}, s{sT2}, 11",
          f"s_xor_b32 s{sT1}, s{sW4}, 2", f"s_mul_i32 s{sT0}, s{sT1}, 6144", f"s_add_u32 s{sT0}, s{sT0}, s{sT2}",
          f"s_add_u32 s{sT0}, s{sT0}, {KL}", f"v_add_u32 v4, s{sT0}, v{vL16}", f"v_add_u32 v24, {RSTR}, v4",
          f"v_and_b32 v8, 31, v0", f"s_lshl_b32 s{sT0}, s{sTT}, 5", f"v_add_u32 v8, s{sT0}, v8",
          f"v_mul_u32_u24 v8, 896, v8", f"v_lshrrev_b32 v5, 5, v0",
          f"v_lshl_add_u32 v8, v5, 4, v8",
          f"s_lshl_b32 s{sT0}, s{sCT}, 1", f"s_add_u32 s{sT0}, s{sT0}, s{sKh}", f"s_lshl_b32 s{sT0}, s{sT0}, 6",
          f"s_lshr_b32 s{sT2}, s{sT2}, 6", f"s_add_u32 s{sT0}, s{sT0}, s{sT2}",
          f"v_add_u32 v8, s{sT0}, v8"]
    early, late = check_ev(E_OA, 'all', HQ)
    for n in range(16):
        if n % 4 == 0:
            o += gcheck(n // 4)
        if n == 12:
            o += early
        for j in ((0, 1) if n < 12 else ()):
            o.append(mfma(ACC + 16 * j, WA + 64 * j + 4 * n, OF + 4 * n, ACC + 16 * j if n else None))
    for j in (1, 0):
        for n in range(12, 16):
            o.append(mfma(ACC + 16 * j, WA + 64 * j + 4 * n, OF + 4 * n, ACC + 16 * j))
        if j == 1:
            o += late
    o += [f"ds_write_b128 v2, v[{ACC+16+4*i}:{ACC+16+4*i+3}] offset:{1024*i}" for i in range(4)]
    o += stamp(8)
    o += [f"s_cmp_lt_u32 s{sWave}, 4", "!s_cbranch_scc1 L_finC"]

    def fin(role):
        mine, spare = ACC + 8 * role, ACC + 8 * (1 - role)
        r = [f"ds_write_b128 v2, v[{spare+4*i}:{spare+4*i+3}] offset:{4096+1024*i}" for i in range(2)]
        r += ["s_waitcnt lgkmcnt(0)", "s_barrier"]
        r += [f"ds_read_b128 v[{OF+4*i}:{OF+4*i+3}], v3 offset:{1024*i}" for i in range(2)]
        r += [f"ds_read_b128 v[{OF+8+4*i}:{OF+8+4*i+3}], v4 offset:{1024*i}" for i in range(2)]
        r += [f"ds_read_b128 v[{OF+16+4*i}:{OF+16+4*i+3}], v24 offset:{1024*i}" for i in range(2)]
        for i in range(8):
            r += [f"v_add_f32 v{mine+i}, v{mine+i}, v{OF+i}"]
        for i in range(8):
            r += [f"v_add_f32 v{OF+8+i}, v{OF+8+i}, v{OF+16+i}"]
        for p in range(4):
            r += [f"v_add_f32 v{mine+2*p}, v{mine+2*p}, v{OF+8+2*p}", f"v_add_f32 v{mine+2*p+1}, v{mine+2*p+1}, v{OF+8+2*p+1}",
                  f"v_cvt_pk_bf16_f32 v{16+p}, v{mine+2*p}, v{mine+2*p+1}"]
        r += ["s_branch L_fin"] if role == 1 else []
        return r
    st = [x for x in o if 0]
    o += fin(1) + ["@reset", "L_finC:", "s_nop 7"] + fin(0) + ["L_fin:"]
    o += [f"v_permlane32_swap_b32 v16, v18", f"v_permlane32_swap_b32 v17, v19"]
    fl = {0: "", 1: " sc1", 2: " nt", 3: " sc0 sc1"}[OPT.get('outfl', 0)]
    o += [f"buffer_store_dwordx4 v[16:19], v8, s[{sO}:{sO+3}], 0 offen{fl}"]
    if OPT.get('until'):
        o += [f"!s_mov_b32 s45, {OPT['until']}"]
        if 'pw' in OPT:
            st = sStamp + 2 * OPT['ps']
            o += ["!s_waitcnt lgkmcnt(0)", f"!s_sub_u32 s44, s{st}, s98", f"!s_cmp_ge_u32 s{sWave}, {OPT['pw']}", "!s_cselect_b32 s44, s44, 0",
                  f"!s_cmp_le_u32 s{sWave}, {OPT['pw2']}", "!s_cselect_b32 s44, s44, 0", "!s_add_u32 s45, s45, s44"]
        o += ["!L_dly2:", f"!s_memtime s[46:47]", "!s_waitcnt lgkmcnt(0)",
              "!s_sub_u32 s46, s46, s98", f"!s_cmp_lt_u32 s46, s45", "!s_cbranch_scc1 L_dly2"]
    o += stamp(10)
    if OPT['stamps'] and 'pw' not in OPT:
        o += ["s_waitcnt vmcnt(0)"] + stamp(11)
    o += stamp_flush(20, 0)
    o += ["s_endpgm"]
    return o


def phase3():
    ROLE[0] = 'H'
    o = ["@reset", "L_p3:"]
    o += serve_land(ST_WA2) + call("r1")
    o += stamp(6)
    o += [f"s_cmp_lg_u32 s{sOBd}, 0", "!s_cbranch_scc1 L_pB"] + call("ob") + ["L_pB:"]
    o += stamp(7)
    o += [f"s_mov_b32 s{sOb}, {OB}", f"s_add_u32 s{sNb}, s{sNo}, {NB}"]
    return o + half_sub()


def c_phase3():
    o = p3_slot() + [f"s_cmp_ge_u32 s{sJ3}, 28", "!s_cbranch_scc1 L_cend"]
    o += [f"v_mov_b32 v{vEp}, v{vEc}"] + p3_early(vA, WBA, WBAS) + [f"v_and_b32 v{vTg}, 0xffff0000, v{vEp}"]
    o += [f"s_mul_i32 s{sB}, s{sKh}, {(WBAS - WBBS) & 0xffffffff}", f"s_add_u32 s{sB}, s{sB}, {WBA - WBB}",
          f"s_mov_b32 s{sOb}, {OA}", f"s_add_u32 s{sNb}, s{sNo}, {NA}"]
    o += wait_land(ST_WB, HQ, inline=True, n=3)
    rd = lambda j, hl: sum([wo_frag(WA + 64 * j + 8 * hl + 4 * s_, hl if hl < 6 else hl - 6, s_) for s_ in range(2)], [])
    for hl in range(6):
        o += rd(0, hl)
    o += [f"v_subrev_u32 v{vA+x}, s{sB}, v{vA+x}" for x in range(4)] + rd(0, 6) + rd(0, 7) + FLIP + rd(1, 6) + rd(1, 7)
    o += [f"v_add_u32 v{vA+x}, s{sB}, v{vA+x}" for x in range(4)]
    for hl in range(6):
        o += rd(1, hl)
    o += [] + ["s_waitcnt lgkmcnt(0)", "s_branch L_sub_half", "@reset", "L_cend:"]
    return o


def pretouch():
    if not OPT.get('touch', 1):
        return []
    o = ["v_lshlrev_b32 v32, 21, v0", "s_mov_b64 exec, 63",
         f"buffer_load_dword v33, v32, s[{sWSD}:{sWSD+3}], 0 offen", "s_mov_b64 exec, 1", "v_mov_b32 v32, 0"]
    for i, p in enumerate((sAW, sBW, sAO, sBO, sOUT)):
        o.append(f"global_load_dword v{34+i}, v32, s[{p}:{p+1}]")
    o += ["s_mov_b64 exec, -1"]
    return o


def x_wave():
    ROLE[0] = 'X'
    o = ["@reset", "L_xwave:", "s_waitcnt lgkmcnt(0)", "s_barrier"]
    o += srd(sWSD, sWS, WS_SIZE)
    o += h_setup() + p3_early()
    sDD, sKD = 36, 40
    sJ = sLi
    t0, t1, t2 = 24, 25, 26
    o += [f"s_sub_u32 s{sJ}, s{sWave}, 6"]
    o += srd(sDD, sDBG, 256) + srd(sKD, sWS, WS_SIZE)
    o += [f"s_cmp_eq_u32 s{sH}, 15", f"s_cselect_b32 s{sKD+2}, 0, s{sKD+2}"]
    o += [f"v_mov_b32 v{t0}, 0", f"s_lshl_b32 s{sT0}, s2, 1", f"s_add_u32 s{sT0}, s{sT0}, s{sJ}",
          f"s_cmp_eq_u32 s{sT0}, 0", "!s_cbranch_scc0 L_xnoep",
          f"s_mov_b32 s{sT0}, {EPW}",
          f"buffer_load_dword v{vEp}, v{t0}, s[{sWSD}:{sWSD+3}], s{sT0} offen sc1",
          f"v_lshrrev_b32 v{t1}, 16, v{vEp}", f"v_add_u32 v{vEp}, 1, v{vEp}", f"v_and_b32 v{vEp}, 0xffff, v{vEp}",
          f"v_max_u32 v{vEp}, 1, v{vEp}", f"v_cmp_eq_u32 vcc, v{vEp}, v{t1}", f"v_addc_co_u32 v{vEp}, vcc, 0, v{vEp}, vcc",
          f"v_and_b32 v{vEp}, 0xffff, v{vEp}", f"v_max_u32 v{vEp}, 1, v{vEp}", f"v_lshl_or_b32 v{vEp}, v{vEp}, 16, v{vEp}",
          "s_mov_b64 exec, 1",
          f"buffer_store_dword v{vEp}, v{t0}, s[{sDD}:{sDD+3}], 0 offen sc1",
          f"buffer_store_dword v{vEp}, v{t0}, s[{sWSD}:{sWSD+3}], s{sT0} offen sc1",
          "s_mov_b64 exec, -1", "@reset", "L_xnoep:"]
    o += pretouch()
    o += wait_land(OPT.get('epgate', 2), HQ, inline=True)
    o += spin_vm([f"buffer_load_dword v{vEp}, v{t0}, s[{sDD}:{sDD+3}], 0 offen sc1"], [f"v_cmp_eq_u32 vcc, 0, v{vEp}"])
    o += [f"ds_write_b32 v{vM}, v{vEp} offset:{16*EPOCH}"]
    o += stamp(1)
    o += [f"s_setprio {OPT.get('xprio', 3)}", f"s_cmp_eq_u32 s{sZ}, 0", "!s_cbranch_scc1 L_xY"]
    o += [f"s_lshl_b32 s{sT0}, s{sHH}, 6", f"s_mul_i32 s{sT1}, s{sT0}, 2341", f"s_lshr_b32 s{sT1}, s{sT1}, 16",
          f"s_add_u32 s{sT0}, s{sT0}, 63", f"s_mul_i32 s{sT2}, s{sT0}, 2341", f"s_lshr_b32 s{sT2}, s{sT2}, 16",
          f"v_and_b32 v4, 3, v0", f"v_add_u32 v4, s{sT1}, v4", f"v_lshrrev_b32 v5, 2, v0",
          f"v_cmp_ge_u32 s[48:49], s{sT2}, v4", f"v_add_u32 v6, s{sRB}, v5", f"v_cmp_gt_u32 vcc, 16, v6",
          "s_and_b64 s[48:49], s[48:49], vcc", "s_and_b32 s48, s48, 0xfff", "s_mov_b32 s49, 0",
          f"s_cmp_eq_u32 s{sH}, 15", "s_cselect_b32 s48, 0, s48",
          "v_lshl_add_u32 v3, v6, 4, v4", "v_lshlrev_b32 v3, 5, v3",
          "v_mul_u32_u24 v4, 28, v4", "v_lshrrev_b32 v4, 6, v4", f"v_sub_u32 v4, s{sHH}, v4",
          "v_lshlrev_b32 v5, 1, v5", "v_sub_u32 v5, 4, v5", "v_add3_u32 v3, v3, v4, v5", "v_lshlrev_b32 v3, 2, v3",
          f"s_mul_i32 s50, s{sJ}, {FV-FK}", f"s_add_u32 s50, s50, {FK}",
          f"s_mul_i32 s44, s{sRB}, {4*28672}",
          f"s_cmp_eq_u32 s{sJ}, 0", "!s_cbranch_scc0 L_xZV"]
    o += [f"s_lshl_b32 s{sT0}, s{sHH}, 12", f"s_add_u32 s44, s44, s{sT0}"]
    o += spin_ev(R_K, 'all', HQ)
    o += [f"ds_read_b128 v[{64+4*i}:{64+4*i+3}], v{vL16} offset:{STK+1024*i}" for i in range(16)] + signal(F_K) + signal(F_K)
    for i in range(16):
        o += [f"buffer_store_dwordx4 v[{64+4*i}:{64+4*i+3}], v{vL16}, s[{sKD}:{sKD+3}], s44 offen offset:{1024*(i%4)} sc1"]
        if i % 4 == 3:
            o += ["s_add_u32 s44, s44, 28672"]
    o += ["s_branch L_xZn", "@reset", "L_xZV:"]
    o += [f"s_lshl_b32 s{sT0}, s{sHH}, 10", f"s_add_u32 s44, s44, s{sT0}", f"s_add_u32 s44, s44, {VG}", "s_add_u32 s45, s44, 14336",
          f"v_lshrrev_b32 v2, 5, v0", f"v_mul_u32_u24 v2, {7168-512}, v2", f"v_add_u32 v2, v2, v{vL16}"]
    o += spin_ev(R_V, 'all', HQ)
    o += [f"ds_read_b128 v[{64+4*i}:{64+4*i+3}], v{vL16} offset:{STV+1024*i}" for i in range(16)] + signal(F_K) + signal(F_K)
    if OPT.get('vafter', 1):
        o += spin_ev(X_PUB, 2, HQ)
    for i in range(16):
        j, s_ = (i % 4) // 2, i % 2
        o += [f"buffer_store_dwordx4 v[{64+4*i}:{64+4*i+3}], v2, s[{sKD}:{sKD+3}], s{44+s_} offen offset:{512*j} sc1"]
        if i % 4 == 3:
            o += ["s_add_u32 s44, s44, 28672", "s_add_u32 s45, s45, 28672"]
    o += ["@reset", "L_xZn:"] + signal(X_PUB) + stamp(2)
    Ln = lab('nn')
    o += ["s_cmp_eq_u32 s48, 0", f"!s_cbranch_scc1 {Ln}"]
    o += ["s_waitcnt vmcnt(0)", "s_mov_b64 exec, s[48:49]",
          f"buffer_store_dword v{vEp}, v3, s[{sWSD}:{sWSD+3}], s50 offen sc1", "s_mov_b64 exec, -1", f"!{Ln}:"] + stamp(3)
    o += ["s_branch L_xjoin", "@reset", "L_xY:"]
    o += fmap(t2, t1) + [f"v_lshrrev_b32 v{t1}, 5, v0", f"v_lshlrev_b32 v{t1}, 9, v{t1}", f"v_lshl_add_u32 v{t2}, v{t2}, 4, v{t1}"]
    o += [f"s_lshl_b32 s{sT0}, s{sJ}, 11", f"v_add_u32 v{t1}, s{sT0}, v{vL16}",
          f"s_add_u32 s{sT1}, s{sT0}, {STV}", f"v_add_u32 v{t2}, s{sT1}, v{t2}",
          f"v_lshrrev_b32 v2, 2, v0", f"v_lshlrev_b32 v2, 12, v2", f"v_and_b32 v3, 3, v0", f"v_lshl_add_u32 v2, v3, 9, v2",
          f"s_add_u32 s{sT0}, s{sT0}, {STV+448}", f"v_add_u32 v2, s{sT0}, v2"]
    o += [f"v_mov_b32 v{32+i}, 0x3f803f80" for i in range(4)]
    o += [f"s_lshl_b32 s{sT0}, s{sHH}, 1", f"s_add_u32 s{sT0}, s{sT0}, s{sJ}", f"s_lshl_b32 s{sT0}, s{sT0}, 4", f"s_add_u32 s{sT0}, s{sT0}, s{sRB}",
          f"s_lshl_b32 s44, s{sT0}, 13", f"s_add_u32 s44, s44, {KVP}", "s_add_u32 s45, s44, 4096",
          f"s_lshl_b32 s46, s{sT0}, 9", f"s_add_u32 s46, s46, {N1}"]
    o += spin_ev(R_V, 'all', HQ)
    o += ["s_mov_b64 exec, 0xffff", "ds_write_b128 v2, v[32:35]", "s_mov_b64 exec, -1"]
    o += [f"ds_read_b128 v[{96+4*i}:{96+4*i+3}], v{t2} offset:{4096*(i//2)+1024*(i%2)}" for i in range(8)] + signal(F_K)
    o += [f"v_mov_b32 v{33+2*i}, v{vEp}" for i in range(16)]
    o += spin_ev(R_K, 'all', HQ)
    o += [f"ds_read_b128 v[{64+4*i}:{64+4*i+3}], v{t1} offset:{STK+4096*(i//2)+1024*(i%2)}" for i in range(8)] + signal(F_K)
    o += stamp(2)
    o += [mfma(128, 64 + 4 * i, 96 + 4 * i, 128 if i else None) for i in range(8)]
    for i in range(8):
        o += [f"v_mov_b32 v{32+4*i}, v{128+2*i}", f"v_mov_b32 v{34+4*i}, v{129+2*i}",
              f"buffer_store_dwordx4 v[{32+4*i}:{35+4*i}], v{vL16}, s[{sWSD}:{sWSD+3}], s{44+i//4} offen offset:{1024*(i%4)} sc1"]
    o += notify(46, 24, vEp, 4)
    o += stamp(3)
    o += ["s_nop 1", "@reset", "L_xjoin:", f"s_setprio {OPT.get('hprio', 2)}"]
    if OPT.get('wopf', 1):
        Lp = lab('wopf')
        o += [f"s_cmp_eq_u32 s{sJ}, 0", f"!s_cbranch_scc0 {Lp}",
              f"s_lshr_b32 s{sT0}, s2, 3", f"s_mul_i32 s{sT0}, s{sT0}, {98*128}", f"v_lshl_add_u32 v24, v0, 7, s{sT0}",
              f"v_add_u32 v25, {49*128}, v24",
              "s_mov_b32 exec_hi, 0x1ffff"]
        for p in (sAO, sBO):
            o += [f"!global_load_dword v12, v24, s[{p}:{p+1}]", f"!global_load_dword v12, v25, s[{p}:{p+1}]"]
        o += ["s_mov_b64 exec, -1", f"!{Lp}:"]
    o += call("phi") + p3_setup() + [f"s_mov_b32 s{sOBd}, 0"]
    o += [f"s_cmp_eq_u32 s{sJ}, 1", "!s_cbranch_scc1 L_x1"]
    o += stamp(4)
    o += [f"s_cmp_ge_u32 s{sJ3}, 28", "!s_cbranch_scc1 L_xfin"]
    t0, t1, t2 = 24, 25, 26
    o += srd(sXD, sBO, 401408) + [f"s_mov_b32 s{sC7}, 7168",
          f"v_lshrrev_b32 v{t0}, 3, v0", f"v_mul_u32_u24 v{vWO}, 896, v{t0}",
          f"v_bfe_u32 v{t1}, v0, 2, 1", f"v_bfe_u32 v{t2}, v0, 4, 1", f"v_xor_b32 v{t1}, v{t1}, v{t2}",
          f"v_lshl_add_u32 v{vWO}, v{t1}, 6, v{vWO}", f"v_and_b32 v{t2}, 3, v0", f"v_lshl_add_u32 v{vWO}, v{t2}, 4, v{vWO}",
          f"s_lshl_b32 s{sT0}, s{sCT}, 7", f"v_add_u32 v{vWO}, s{sT0}, v{vWO}",
          f"v_mov_b32 v{vMl}, v{vMs}", f"s_mov_b32 s{sT0}, {LANDC}", f"v_writelane_b32 v{vMl}, s{sT0}, 0"]
    d7 = [f"!s_call_b64 s[{sRet}:{sRet+1}], L_sub_d7"]

    def xb(ptr, row0, lds, n):
        return [f"s_mov_b32 s{sXD}, s{ptr}", f"s_mov_b32 s{sXD+1}, s{ptr+1}", f"s_mov_b32 s{sOff}, {row0*896}",
                f"s_mov_b32 m0, {lds}"] + d7 * n
    o += spin_ev(F_K, 'hi', HQ, ge=2) + spin_ev(E_P3, 'all', HQ) + spin_ev(KVISS, 'lo', HQ)
    o += xb(sBO, 0, STG, 2) + xb(sBO, 224, STG + STGS, 2)
    if OPT.get('tailfirst', 1):
        o += xb(sAO, 168, WBB, 1) + xb(sAO, 224 + 168, WBB + WBBS, 1)
        o += ["s_waitcnt vmcnt(14)"] + land(ST_WA1) + land(ST_WA1)
    else:
        o += ["s_waitcnt vmcnt(0)"] + land(ST_WA1) + land(ST_WA1)
        o += xb(sAO, 168, WBB, 1) + xb(sAO, 224 + 168, WBB + WBBS, 1)
    o += call("r0")
    o += ["s_waitcnt vmcnt(0)"] + land(ST_WB)
    o += serve_ev(R1)
    o += xb(sBO, 112, STG, 2) + xb(sBO, 224 + 112, STG + STGS, 2)
    o += ["s_waitcnt vmcnt(0)"] + land(ST_WA2) + land(ST_WA2) + stamp(5)
    o += ["s_branch L_p3", "@reset", "L_x1:"]
    o += [f"v_lshlrev_b32 v{t0}, 3, v0",
          f"s_lshl_b32 s44, s{sH}, 17", f"s_lshl_b32 s{sT0}, s{sRB}, 9", f"s_add_u32 s44, s44, s{sT0}", f"s_add_u32 s44, s44, {KVP}",
          f"s_lshl_b32 s45, s{sH}, 13", f"s_add_u32 s45, s45, {KVT}", f"s_add_u32 s46, s45, s{sT0}", "s_add_u32 s47, s45, 4096"]

    def tagcheck():
        c = ["v_min3_u32 v25, v65, v67, v69", "v_max3_u32 v26, v65, v67, v69"]
        for j in range(3, 15, 2):
            c += [f"v_min3_u32 v25, v25, v{65+2*j}, v{67+2*j}", f"v_max3_u32 v26, v26, v{65+2*j}, v{67+2*j}"]
        c += [f"v_min3_u32 v25, v25, v95, v{vEp}", f"v_max3_u32 v26, v26, v95, v{vEp}", "v_cmp_ne_u32 vcc, v25, v26"]
        return c
    body = [f"s_mov_b32 s{sT1}, s44"]
    for j in range(16):
        body += [f"buffer_load_dwordx2 v[{64+2*j}:{65+2*j}], v{t0}, s[{sWSD}:{sWSD+3}], s{sT1} offen sc1",
                 f"s_add_u32 s{sT1}, s{sT1}, 8192"]
    o += [f"v_lshlrev_b32 v26, 9, v0", f"s_lshl_b32 s49, s{sH}, 6", f"s_lshr_b32 s{sT0}, s{sRB}, 2",
          f"s_add_u32 s49, s49, s{sT0}", "s_lshl_b32 s49, s49, 7", f"s_add_u32 s49, s49, {N1}"]
    if OPT.get('h1direct', 1):
        o += ["!" + x for x in body] + ["s_waitcnt vmcnt(0)"] + ["!" + x for x in tagcheck()] + ["!s_cbranch_vccz L_h1ok", "!v_lshlrev_b32 v26, 9, v0"]
    o += light_poll(25, 26, "s49", "0xffff", [f"v_cmp_ne_u32 vcc, v25, v{vEp}"])
    o += stamp(6, 'y')
    o += spin_vm(body, tagcheck())
    o += ["L_h1ok:"]
    for st in (1, 2, 4, 8):
        for j in range(0, 16, 2 * st):
            o.append(f"v_add_f32 v{64+2*j}, v{64+2*j}, v{64+2*(j+st)}")
    o += [f"buffer_store_dwordx2 v[64:65], v{t0}, s[{sWSD}:{sWSD+3}], s46 offen sc1",
          f"s_add_u32 s49, s49, {N2-N1}", f"s_lshl_b32 s46, s{sH}, 4", f"s_add_u32 s46, s46, s{sRB}",
          "s_lshl_b32 s46, s46, 9", f"s_add_u32 s46, s46, {N2}"] + notify(46, 25, vEp, 4)
    o += stamp(4)
    o += [f"s_mov_b32 s48, 1"]
    r0hook = [f"ds_read_b32 v{HQ}, v{vM} offset:{256+4*ST_WA1}", "s_waitcnt lgkmcnt(0)", f"v_cmp_lt_u32 vcc, s48, v{HQ}",
              "s_cbranch_vccz L_x1a"] + call("r0") + ["s_mov_b32 s48, 2", "L_x1a:"]
    body = [f"buffer_load_dwordx4 v[{64+4*j}:{67+4*j}], v{vL16}, s[{sWSD}:{sWSD+3}], s{45+2*(j//4)} offen offset:{1024*(j%4)} sc1" for j in range(8)]
    if OPT.get('x1block', 1):
        o += [f"s_cmp_ge_u32 s{sJ3}, 28", "!s_cbranch_scc1 L_x1b"] + wait_land(ST_WA1, HQ, inline=True) + call("r0") + ["s_mov_b32 s48, 2", "L_x1b:"]
    o += stamp(7, 'y')
    o += ["v_lshlrev_b32 v26, 9, v0"]
    o += light_poll(25, 26, "s49", "0xffff", [f"v_cmp_ne_u32 vcc, v25, v{vEp}"], hook=r0hook)
    o += stamp(8, 'y')
    o += spin_vm(body, tagcheck())
    o += stamp(9, 'y')
    o += [f"v_cvt_pk_bf16_f32 v{96+p}, v{64+4*p}, v{66+4*p}" for p in range(8)]
    o += [f"v_add_u32 v24, {KVF}, v{vL16}",
          f"ds_write_b128 v24, v[96:99]", f"ds_write_b128 v24, v[100:103] offset:1024"] + signal(KVRDY)
    o += call("ob") + [f"s_mov_b32 s{sOBd}, 1"]
    o += stamp(5)
    o += [f"s_cmp_ge_u32 s{sJ3}, 28", "!s_cbranch_scc1 L_xend", "s_cmp_eq_u32 s48, 2", "!s_cbranch_scc1 L_p3"]
    o += wait_land(ST_WA1, HQ, inline=True) + call("r0")
    o += ["s_branch L_p3", "@reset", "L_xfin:"] + call("ob") + ["L_xend:"] + stamp_flush(20, 0) + ["s_endpgm"]
    return o


HEADER = f"""; Fused sliding-window attention + linear attention + gated output projection (gfx950).
; One persistent launch: 256 workgroups x 8 waves (4 compute, 2 loader, 2 auxiliary).
; @launch grid=(256,1,1) block=(512,1,1) lds=163840
.amdgcn_target "amdgcn-amd-amdhsa--gfx950"
.text
.globl {NAME}_kernel
.p2align 8
.type {NAME}_kernel,@function
{NAME}_kernel:
"""
FOOTER = f"""
.section .rodata,"a"
.p2align 6
.amdhsa_kernel {NAME}_kernel
  .amdhsa_next_free_vgpr 256
  .amdhsa_next_free_sgpr 102
  .amdhsa_accum_offset 256
  .amdhsa_group_segment_fixed_size 0
  .amdhsa_kernarg_size 80
  .amdhsa_user_sgpr_count 2
  .amdhsa_user_sgpr_kernarg_segment_ptr 1
  .amdhsa_system_sgpr_workgroup_id_x 1
.end_amdhsa_kernel
"""


def main():
    body = prologue()
    SLEEP[0] = OPT.get('sleep', 1)
    l = l_wave()
    x = x_wave()
    p3 = phase3()
    sub = subroutines()
    SLEEP[0] = 0
    c = c_wave()
    rep = []
    lines = finalize(body + l + x + p3 + sub + c, rep)
    lines += ['    ' + s if not s.endswith(':') else s for s in slow]
    lines += ["L_abort:", "L_exit:", "    s_endpgm", "L_end:"]
    open(sys.argv[1], 'w').write(HEADER + "\n".join(lines) + FOOTER)
    big = [r for r in rep if r[0] >= 3]
    print("nops inserted:", len(rep), "total states", sum(r[0] for r in rep))
    for r in big:
        print("   ", r)


main()
```

```python
import sys, math, struct
from asmlib import finalize, merge

NAME = "gated_mix__sliding_block__linear_attn_block__prompt"
OPT = dict(stamps=0, l1=14, l3=8, prefetch=2, touch=0, refetch=0, wopf=0)
for a in sys.argv[2:]:
    k, v = a.split('=')
    OPT[k] = int(v)


def fhex(x):
    return '0x%08x' % struct.unpack('<I', struct.pack('<f', x))[0]


LOG2E = math.log2(math.e)
KSCALE = LOG2E * 28 ** -0.5
SPIN = 60000

def XR(c): return 16384 * (c % 4)
def WR(c): return 65536 + 16384 * (c % 4)
QLOC = [131072 + 4096 * c for c in range(6)] + [114688] + [114688 + 4096 * c for c in (1, 2, 3)] + [49152 + 4096 * c for c in range(4)]
QBB = 114688
KL = 16384
VL = 131072
STQ, STV, STK = 0, 16384, 32768
STG, STGS = 40960, 67584
WBA, WBAS = 65536, 21504
WBB, WBBS = 55296, 67584
MISC = 158720
LANDC = MISC + 256
JUNK = MISC + 512
GL = MISC + 1536
KVF = MISC + 2560
E_PA, X_PUB, E_P2, E_P3, R_K, R_V, R_Q, E_OA, F_K, E_P3A, R1, GRDY, KVRDY, EPOCH, KVISS = range(15)
ST_K, ST_V, ST_WA1, ST_WB, ST_WA2 = 21, 22, 23, 24, 25

KG, VG, OA, OB, KVP, KVT = 0x000000, 0x200000, 0x400000, 0x600000, 0x800000, 0xA00000
FK, FV, N1, N2, NA, NB, EPW = 0xA40000, 0xA48000, 0xA60000, 0xA80000, 0xAA0000, 0xAC0000, 0xA50000
STAMPS = 0xB00000
WS_SIZE = 0x1000000

sX, sAW, sAO, sBW, sBO, sGW, sOUT, sDBG, sWS = 4, 6, 8, 12, 14, 16, 18, 20, 22
sWave, sH, sRB, sPar, sHH = 24, 25, 26, 27, 28
sT0, sT1, sT2, sTO = 29, 30, 31, 3
sZ = 74
sWSD = 32
sStamp = 76
sJ3, sCT, sTB = 100, 10, 11
sW4 = 101

_lab = [0]
slow = []
ROLE = ['P']
SLEEP = [0]
vL16, vM, vOne, vF, vMs = 1, 10, 11, 12, 13
vFq = 252


def lab(p):
    _lab[0] += 1
    return f"L_{p}_{_lab[0]}"


def srd(d, ptr, size, add=0):
    o = []
    if add:
        o += [f"s_add_u32 s{d}, s{ptr}, {add}", f"s_addc_u32 s{d+1}, s{ptr+1}, 0"]
    else:
        o += [f"s_mov_b32 s{d}, s{ptr}", f"s_mov_b32 s{d+1}, s{ptr+1}"]
    o += [f"s_mov_b32 s{d+2}, {size}", f"s_mov_b32 s{d+3}, 0x20000"]
    return o


def stamp(i, kind=''):
    if not OPT['stamps']:
        return []
    alt = OPT.get('alt', 0)
    if kind == 'z':
        return [f"!s_memtime s[{sStamp+2*i}:{sStamp+2*i+1}]"] if alt == 5 else []
    if kind == 's':
        return [f"!s_memtime s[{sStamp+2*i}:{sStamp+2*i+1}]"] if alt == 9 else []
    if alt == 9 and 4 <= i <= 8:
        return []
    if ROLE[0] == 'L' and (alt == 1) != (kind == 'f'):
        return []
    if kind == 'z':
        return [f"!s_memtime s[{sStamp+2*i}:{sStamp+2*i+1}]"] if alt == 5 else []
    if ROLE[0] == 'H' and alt in (1, 3, 4, 5):
        return []
    if kind == 'y' and alt != 4:
        return []
    if kind == 'x' and alt != 3:
        return []
    if ROLE[0] == 'C' and (alt == 2) != (kind == 'f'):
        return []
    return [f"!s_memtime s[{sStamp+2*i}:{sStamp+2*i+1}]"]


def stamp_flush(vt, vlane):
    if not OPT['stamps'] or 'pw' in OPT:
        return []
    o = ["s_mov_b64 exec, -1", "s_waitcnt lgkmcnt(0)", f"v_mov_b32 v{vt}, 0"]
    for i in range(12):
        o.append(f"v_writelane_b32 v{vt}, s{sStamp+2*i}, {i}")
    o += [f"s_lshl_b32 s{sT0}, s2, 3", f"s_add_u32 s{sT0}, s{sT0}, s{sWave}", f"s_lshl_b32 s{sT0}, s{sT0}, 8",
          f"s_add_u32 s{sT0}, s{sT0}, {STAMPS}",
          f"v_lshlrev_b32 v{vt+1}, 2, v{vlane}",
          f"buffer_store_dword v{vt}, v{vt+1}, s[{sWSD}:{sWSD+3}], s{sT0} offen"]
    return o


def _tmo():
    return [f"s_add_u32 s{sTO}, s{sTO}, 1", f"s_cmp_gt_u32 s{sTO}, {SPIN}", "s_cbranch_scc1 L_abort"]


def _ev_read(ev, which, q):
    if which == 'all':
        return [f"ds_read_b128 v[{q}:{q+3}], v{vM} offset:{16*ev}"], \
               [f"v_min3_u32 v{q}, v{q}, v{q+1}, v{q+2}", f"v_min_u32 v{q}, v{q}, v{q+3}"]
    if which in ('hi', 'lo'):
        return [f"ds_read_b64 v[{q}:{q+1}], v{vM} offset:{16*ev + (8 if which == 'hi' else 0)}"], \
               [f"v_min_u32 v{q}, v{q}, v{q+1}"]
    if which == 'own':
        return [f"ds_read_b32 v{q}, v{vOwn} offset:{16*ev}"], []
    return [f"ds_read_b32 v{q}, v{vM} offset:{16*ev + 4*which}"], []


def spin_ev(ev, which, q=None, ge=1):
    q = vFq if q is None else q
    L, L2 = lab('sp'), lab('spx')
    rd, red = _ev_read(ev, which, q)
    o = ["s_waitcnt lgkmcnt(0)", f"!s_mov_b32 s{sTO}, 0", f"!{L}:"]
    o += ["!" + x for x in rd + _tmo() + ["s_waitcnt lgkmcnt(0)"] + red]
    if SLEEP[0]:
        o += [f"!v_cmp_le_u32 vcc, {ge}, v{q}", f"!s_cbranch_vccnz {L2}", f"!!s_sleep {SLEEP[0]}", f"!!s_branch {L}", f"!{L2}:"]
    else:
        o += [f"!v_cmp_gt_u32 vcc, {ge}, v{q}", f"!s_cbranch_vccnz {L}"]
    return o


def check_ev(ev, which, q):
    Ls, Lb = lab('slow'), lab('back')
    rd, red = _ev_read(ev, which, q)
    slow.extend([f"{Ls}:", f"s_mov_b32 s{sTO}, 0", f"{Ls}_s:"] + rd + _tmo() + ["s_waitcnt lgkmcnt(0)"] + red +
                [f"v_cmp_eq_u32 vcc, 0, v{q}", f"s_cbranch_vccnz {Ls}_s", f"s_branch {Lb}"])
    return rd, red + [f"v_cmp_eq_u32 vcc, 0, v{q}", f"!s_cbranch_vccnz {Ls}", f"!{Lb}:"]


def wait_land(st, q=None, inline=False, n=2):
    q = vFq if q is None else q
    rd = f"ds_read_b32 v{q}, v{vM} offset:{256 + 4*st}"
    if inline:
        L, L2 = lab('wl'), lab('wlx')
        o = ["s_waitcnt lgkmcnt(0)", f"!s_mov_b32 s{sTO}, 0", f"!{L}:"] + ["!" + x for x in [rd] + _tmo() + ["s_waitcnt lgkmcnt(0)"]]
        if SLEEP[0]:
            return o + [f"!v_cmp_eq_u32 vcc, {n}, v{q}", f"!s_cbranch_vccnz {L2}", f"!!s_sleep {SLEEP[0]}", f"!!s_branch {L}", f"!{L2}:"]
        return o + [f"!v_cmp_ne_u32 vcc, {n}, v{q}", f"!s_cbranch_vccnz {L}"]
    Ls, Lb = lab('slow'), lab('back')
    slow.extend([f"{Ls}:", f"s_mov_b32 s{sTO}, 0", f"{Ls}_s:", rd] + _tmo() +
                ["s_waitcnt lgkmcnt(0)", f"v_cmp_ne_u32 vcc, {n}, v{q}", f"s_cbranch_vccnz {Ls}_s", f"s_branch {Lb}"])
    return [rd], [f"v_cmp_ne_u32 vcc, {n}, v{q}", f"!s_cbranch_vccnz {Ls}", f"!{Lb}:"]


vMl = 12


def land(st):
    return [f"ds_add_u32 v{vMl}, v{vOne} offset:{4*st}"]


def signal(ev):
    return [f"ds_add_u32 v{vMs}, v{vOne} offset:{16*ev}"]


def mfma(d, a, b, c):
    cs = f"v[{c}:{c+15}]" if isinstance(c, int) and c >= 0 else "0"
    return f"v_mfma_f32_32x32x16_bf16 v[{d}:{d+15}], v[{a}:{a+3}], v[{b}:{b+3}], {cs}"


def tr(d, a, off, tag=None):
    return f"ds_read_b64_tr_b16 v[{d}:{d+1}], v{a} offset:{off}" + (f" ;@tag={tag}" if tag else "")


vOwn = 9


def common_setup():
    return [f"v_lshlrev_b32 v{vL16}, 4, v0", f"v_mov_b32 v{vM}, {MISC}", f"v_mov_b32 v{vOne}, 1",
            f"s_and_b32 s{sW4}, s{sWave}, 3",
            f"v_lshlrev_b32 v{vMs}, 2, v0", f"v_add_u32 v{vMs}, {JUNK}, v{vMs}",
            f"s_lshl_b32 s{sT0}, s{sW4}, 2", f"s_add_u32 s{sT0}, s{sT0}, {MISC}",
            f"v_writelane_b32 v{vMs}, s{sT0}, 0"]


def prologue():
    o = []
    o += ["s_load_dwordx4 s[4:7], s[0:1], 0", "s_load_dwordx8 s[12:19], s[0:1], 32",
          "s_load_dwordx4 s[20:23], s[0:1], 64", "s_load_dwordx2 s[8:9], s[0:1], 16"]
    o += stamp(0)
    if OPT.get('until'):
        o += ["!s_memtime s[98:99]"]
    o += ["s_cmp_ge_u32 s2, 256", "!s_cbranch_scc1 L_exit",
          "v_lshrrev_b32 v1, 6, v0", "v_and_b32 v0, 63, v0",
          f"v_readfirstlane_b32 s{sWave}, v1"] + code_prefetch() + [
          f"s_and_b32 s{sT0}, s2, 7", f"s_lshr_b32 s{sT1}, s2, 3",
          f"s_and_b32 s{sH}, s{sT0}, 1", f"s_lshl_b32 s{sH}, s{sH}, 3",
          f"s_and_b32 s{sT2}, s{sT1}, 7", f"s_add_u32 s{sH}, s{sH}, s{sT2}",
          f"s_lshr_b32 s{sRB}, s{sT0}, 1", f"s_lshl_b32 s{sRB}, s{sRB}, 2",
          f"s_lshr_b32 s{sT2}, s{sT1}, 3", f"s_add_u32 s{sRB}, s{sRB}, s{sT2}",
          f"s_and_b32 s{sPar}, s{sH}, 1", f"s_lshr_b32 s{sHH}, s{sH}, 1",
          f"s_and_b32 s{sT0}, s2, 1", f"s_xor_b32 s{sZ}, s{sPar}, s{sT0}", f"s_xor_b32 s{sZ}, s{sZ}, 1"]
    o += common_setup()
    o += [f"s_cmp_lt_u32 s{sWave}, 4", "!s_cbranch_scc1 L_cwave",
          f"s_cmp_ge_u32 s{sWave}, 6", "!s_cbranch_scc1 L_xwave"]
    return o


vXA, vW0, vW1, vQB, vQA, vLow, vSt = 2, 6, 7, 8, 9, 14, 15
PK = 16
WB = 32
MK = 56
accA, accB = 64, 96
XF = 128
QF = 240
vMA, vMB = 248, 249
TMP = 250
sMask = 40
sL2E, sEps, sKS, sTile, sSt = 72, 73, 39, 75, 36


def c_setup():
    o = []
    lo, hh, t0, t1, t2 = 20, 21, 22, 23, 24
    o += [f"v_and_b32 v{lo}, 31, v0", f"v_lshrrev_b32 v{hh}, 5, v0",
          f"s_lshl_b32 s{sTile}, s{sRB}, 2", f"s_add_u32 s{sTile}, s{sTile}, s{sWave}",
          f"s_mov_b32 s{sL2E}, {fhex(LOG2E)}", f"s_mov_b32 s{sEps}, {fhex(1e-6)}", f"s_mov_b32 s{sKS}, {fhex(KSCALE)}"]
    o += [f"v_bfe_u32 v{t0}, v0, 1, 3", f"v_xor_b32 v{t0}, v{t0}, v{hh}",
          f"s_lshl_b32 s{sT0}, s{sWave}, 12",
          f"v_add_u32 v{vSt}, s{sT0}, v{vL16}",
          f"v_lshlrev_b32 v{t1}, 7, v{lo}", f"v_add_u32 v{t1}, s{sT0}, v{t1}"]
    for s in range(4):
        o += [f"v_xor_b32 v{t2}, {2*s}, v{t0}", f"v_lshl_add_u32 v{vXA+s}, v{t2}, 4, v{t1}"]
    r, cg, row = 25, 26, 27
    o += [f"v_bfe_u32 v{r}, v0, 2, 2", f"v_bfe_u32 v{t0}, v0, 4, 1", f"v_and_b32 v{cg}, 3, v0",
          f"v_lshl_add_u32 v{cg}, v{t0}, 2, v{cg}",
          f"v_lshl_add_u32 v{row}, v{hh}, 3, v{r}"]
    o += [f"v_lshrrev_b32 v{t0}, 1, v{r}",
          f"v_lshlrev_b32 v{t1}, 7, v{row}", f"v_add_u32 v{t1}, 65536, v{t1}",
          f"v_lshl_add_u32 v{vW0}, v{t0}, 6, v{t1}",
          f"v_xor_b32 v{vW1}, 64, v{vW0}",
          f"v_lshl_add_u32 v{vW0}, v{cg}, 3, v{vW0}",
          f"s_xor_b32 s{sT0}, s{sZ}, 1",
          f"v_add_u32 v{t2}, s{sT0}, v{cg}", f"v_and_b32 v{t2}, 7, v{t2}",
          f"v_lshl_add_u32 v{vW1}, v{t2}, 3, v{vW1}"]
    o += [f"v_lshlrev_b32 v{t1}, 6, v{row}",
          f"v_add_u32 v{t2}, s{sPar}, v{cg}", f"v_and_b32 v{t2}, 7, v{t2}",
          f"v_lshl_add_u32 v{vQB}, v{t2}, 3, v{t1}", f"v_add_u32 v{vQB}, {QBB}, v{vQB}",
          f"v_and_b32 v{t0}, 1, v{cg}", f"v_lshlrev_b32 v{t0}, 1, v{t0}",
          f"v_bfe_u32 v{t2}, v{cg}, 1, 1", f"v_or_b32 v{t0}, v{t0}, v{t2}",
          f"v_and_b32 v{t2}, 4, v{cg}", f"v_or_b32 v{t0}, v{t0}, v{t2}",
          f"v_lshl_add_u32 v{vQA}, v{t0}, 3, v{t1}", f"v_add_u32 v{vQA}, {QBB}, v{vQA}"]
    o += [f"v_add_u32 v{vLow}, -1, v{hh}",
          f"s_sub_u32 s{sT0}, s{sPar}, 1",
          f"v_not_b32 v{t0}, v{vLow}",
          f"v_or_b32 v{vMA}, s{sT0}, v{t0}",
          f"s_not_b32 s{sT0}, s{sT0}",
          f"v_or_b32 v{vMB}, s{sT0}, v{vLow}"]
    o += [f"v_lshlrev_b32 v{t0}, 2, v{hh}", f"v_sub_u32 v{t0}, v{lo}, v{t0}"]
    for rr in range(16):
        b = 8 * (rr >> 2) + (rr & 3)
        o.append(f"v_cmp_le_i32 s[{sMask+2*rr}:{sMask+2*rr+1}], {b}, v{t0}")
    o += [f"v_mov_b32 v{t1}, 0xffff", f"v_mov_b32 v{t2}, 0xffff0000"]
    for p in range(8):
        o += [f"v_cndmask_b32 v{MK+p}, 0, v{t1}, s[{sMask+4*p}:{sMask+4*p+1}]",
              f"v_cndmask_b32 v{t0}, 0, v{t2}, s[{sMask+4*p+2}:{sMask+4*p+3}]",
              f"v_or_b32 v{MK+p}, v{MK+p}, v{t0}"]
    return o


def gemm_frags(isY):
    fr = []
    for k in range(28):
        c, s = divmod(k, 4)
        order = [(0, 0), (0, 1), (1, 0), (1, 1)] if k < 27 else [(1, 0), (1, 1), (0, 0), (0, 1)]
        for i, (p, j) in enumerate(order):
            fr.append(dict(step=c, addr=(vW0, vW1)[j], off=XR(c) + 8192 * p + s * 2048, du=512, k=k,
                           acc=(accA, accB)[p] + 16 * j, wfirst=(p == 0 and not isY), pre=[],
                           xread=(f"ds_read_b128 v[{XF+4*k}:{XF+4*k+3}], v{vXA+s} offset:{XR(c)}" if i == 0 else None)))
    for q, a in enumerate((vQB, vQA)):
        for k in range(28):
            c, s = divmod(k, 4)
            loc = QLOC[7 * q + c]
            base = QBB if loc >= QBB else 49152
            pre = [f"v_subrev_u32 v{vQA}, {QBB-49152}, v{vQA}"] if (q, k) == (1, 12) else []
            fr.append(dict(step=7 + 7 * q + c, addr=a, off=loc - base + s * 1024, du=256, k=k,
                           acc=accB + 16 * q, wfirst=True, pre=pre, xread=None))
    return fr


def need_step(st):
    if st < 7:
        return st
    base = 7 if st < 14 else 14
    return base + {0: 0, 1: 2, 2: 2, 3: 4, 4: 4, 5: 6, 6: 6}[st - base]


def gemm_slots(isY):
    fr = gemm_frags(isY)
    N = len(fr)
    D = 5
    slots = []
    issued = 0
    checked = set()
    early = {}
    for n in range(N):
        cur = []
        f = fr[n]
        lim = 3 if n == 0 else min(n + D, N - 1)
        while issued <= lim:
            g = fr[issued]
            st = need_step(g['step'])
            if st not in checked:
                checked.add(st)
                if st == 0:
                    cur += stamp(8, 's') + wait_land(st, inline=True) + stamp(1)
                else:
                    cur += early[st]
                if st == 5:
                    cur += ["s_waitcnt vmcnt(0)"]
            b = WB + 4 * (issued % 6)
            cur += g['pre']
            if g['xread']:
                cur.append(g['xread'])
            cur += [tr(b, g['addr'], g['off']), tr(b + 2, g['addr'], g['off'] + g['du'], tag=f"f{issued}")]
            issued += 1
            last_of_step = issued == N or fr[issued]['step'] != g['step']
            if last_of_step:
                ev = {0: E_PA, 1: E_PA, 2: E_PA, 3: E_PA, 6: E_P2, 13: E_P3A, 20: E_P3}.get(g['step'])
                if ev is not None:
                    cur += signal(ev)
        if issued + 1 < N:
            st = need_step(fr[issued + 1]['step'])
            if st > 0 and st not in early:
                rd, early[st] = wait_land(st, q=vFq + 2)
                cur += rd
        if n % 2 == 0:
            cur.append(f"@wait_ds f{n+1}")
        b = WB + 4 * (n % 6)
        x = XF + 4 * f['k']
        A, B = (b, x) if f['wfirst'] else (x, b)
        cur.append(mfma(f['acc'], A, B, f['acc'] if f['k'] else None))
        slots.append(cur)
    if OPT.get('alt') == 2:
        for i in range(11):
            n = OPT['cst'] + i * OPT.get('cstep', 4)
            if n < len(slots):
                slots[n] = stamp(i + 1, 'f') + slots[n]
    return slots


def phi_pair(a, b, ta, tb, dst, l2e, eps):
    return [f"v_mul_f32 v{ta}, s{l2e}, v{a}", f"v_mul_f32 v{tb}, s{l2e}, v{b}",
            f"v_exp_f32_e64 v{ta}, v{ta} clamp", f"v_exp_f32_e64 v{tb}, v{tb} clamp",
            f"v_max_f32 v{a}, 0, v{a}", f"v_max_f32 v{b}, 0, v{b}",
            f"v_add_f32 v{a}, v{a}, v{ta}", f"v_add_f32 v{b}, v{b}, v{tb}",
            f"v_add_f32 v{a}, s{eps}, v{a}", f"v_add_f32 v{b}, s{eps}, v{b}",
            f"v_cvt_pk_bf16_f32 v{dst}, v{a}, v{b}"]


def c_gemm(isY):
    slots = gemm_slots(isY)
    pa, p3a, p3b = slots[:112], slots[112:140], slots[140:168]
    o = []
    for s in pa:
        o += s
    o += stamp(2)
    wr = lambda d, i, base: f"ds_write_b128 v{vSt}, v[{d}:{d+3}] offset:{base + 1024*i}"
    vc = lambda j: [f"v_cvt_pk_bf16_f32 v{PK+8*j+i}, v{accB+16*j+2*i}, v{accB+16*j+2*i+1}" for i in range(8)]
    vw = [wr(PK + 4 * i, i, STV) for i in range(4)]
    o += vc(0)
    if not isY:
        f = []
        for j in range(2):
            a = accA + 16 * j
            for i in range(8):
                f += [f"v_mul_f32 v{a+2*i}, s{sKS}, v{a+2*i}", f"v_mul_f32 v{a+2*i+1}, s{sKS}, v{a+2*i+1}",
                      f"v_cvt_pk_bf16_f32 v{a+i}, v{a+2*i}, v{a+2*i+1}"]
            f += [f"v_permlane32_swap_b32 v{a+x}, v{a+x+2}" for x in (0, 1, 4, 5)]
            f += [wr(a + 4 * e, 2 * j + e, STK) for e in range(2)]
        f += signal(R_K) + vc(1) + vw + signal(R_V)
        per = OPT.get('kper', 40)
    else:
        f = vc(1) + vw + signal(R_V)
        for p in range(16):
            a = accA + 16 * (p // 8)
            i = p % 8
            f += phi_pair(a + 2 * i, a + 2 * i + 1, TMP, TMP + 1, a + i, sL2E, sEps)
            if p % 4 == 3:
                f.append(wr(a + i - 3, p // 4, STK))
        f += signal(R_K)
        per = OPT.get('yper', 40)
    o += merge(p3a, f, start=0, per=per)
    o += stamp(4)
    f = [f"v_cvt_pk_bf16_f32 v{PK+i}, v{accB+2*i}, v{accB+2*i+1}" for i in range(8)]
    f += [wr(PK, 0, STQ), wr(PK + 4, 1, STQ)] + signal(R_Q)
    o += merge(p3b, f, start=4, per=2)
    o += stamp(5)
    a = accB + 16
    o += [f"v_cvt_pk_bf16_f32 v{QF+i}, v{a+2*i}, v{a+2*i+1}" for i in range(8)]
    o += [f"v_and_b32 v{QF}, v{QF}, v{vMA}", f"v_and_b32 v{QF+1}, v{QF+1}, v{vMA}",
          f"v_and_b32 v{QF+6}, v{QF+6}, v{vMB}", f"v_and_b32 v{QF+7}, v{QF+7}, v{vMB}"]
    return o


CM, SA, SB, SC, SF, SX = 16, 32, 64, 80, 96, 112
KFR = 128
PA, PB, PF = 200, 208, 216
OACC = 96
VF = (224, 232)
vKA, vVA, vMx, vG = 2, 3, 4, 5
NEG = '0xf149f2ca'


def attention(guard):
    sI0 = sSt
    o = []

    def kread(i):
        b = KFR + 8 * i
        return [f"ds_read_b128 v[{b+4*s}:{b+4*s+3}], v{vKA} offset:{2048*i+1024*s} ;@tag=k{i}" for s in range(2)]

    def vread(i, buf):
        return [f"ds_read_b128 v[{buf+4*s}:{buf+4*s+3}], v{vVA} offset:{2048*i+1024*s} ;@tag=v{i}" for s in range(2)]

    def qk(d, i, c):
        b = KFR + 8 * i
        return [mfma(d, b, QF, c), mfma(d, b + 4, QF + 4, d)]

    def setc(i, src):
        L, Lb = lab('g'), lab('gb')
        slow.extend([f"{L}:", "s_nop 7"] + [f"v_mov_b32 v{CM+r}, {src}" for r in range(16)] + [f"s_branch {Lb}"])
        return [f"s_cmp_eq_u32 s{sI0}, {i}", f"!s_cbranch_scc1 {L}", f"!{Lb}:"]

    def maxes(s, first):
        m = []
        if first:
            m.append(f"v_max3_f32 v{vMx}, v{s}, v{s+1}, v{s+2}")
            rest = list(range(3, 16))
        else:
            rest = list(range(16))
        while rest:
            if len(rest) >= 2:
                m.append(f"v_max3_f32 v{vMx}, v{vMx}, v{s+rest[0]}, v{s+rest[1]}")
                rest = rest[2:]
            else:
                m.append(f"v_max_f32 v{vMx}, v{vMx}, v{s+rest[0]}")
                rest = []
        return m

    C1 = CM if guard else None
    if guard:
        o += [f"v_mov_b32 v{CM+r}, {NEG}" for r in range(16)]
    o += wait_land(ST_K, inline=True)
    o += stamp(6)
    order = [0, 1, 2, 3, 4, 5, 6, 7, 8] if guard else [0, 8, 1, 2, 3, 4, 5, 6, 7]
    b1 = {0: SF, 8: SC}
    bufs = {}
    for i in range(1, 8):
        b1[i] = (SA, SB, SX)[i % 3]
        bufs[i] = (SA, SB)[i % 2]
    mrg = [f"v_cndmask_b32 v{SC+r}, v{SF+r}, v{SC+r}, s[{sMask+2*r}:{sMask+2*r+1}]" for r in range(16)]
    work = {}
    for i in range(1, 8):
        work[i] = maxes(b1[i], first=(guard and i == 1))
    work[8] = mrg + maxes(SC, first=not guard)
    work[0] = []
    o += kread(order[0]) + kread(order[1]) + kread(order[2])
    q = []
    for n, i in enumerate(order):
        if guard:
            o += setc(i, "0")
        m = qk(b1[i], i, C1)
        nxt = kread(order[n + 3]) if n + 3 < 9 else []
        take = 4 if len(q) <= 12 else 6
        o += [f"@wait_ds k{i}", m[0]] + q[:take] + [m[1]] + nxt
        q = q[take:]
        if n >= 1:
            q = q + work[order[n - 1]]
        must = len(q) - len(work[order[n - 1]]) if n >= 1 else 0
        take = max(must, 4 if len(q) <= 12 else 6)
        o += q[:take]
        q = q[take:]
    vrd, vchk = wait_land(ST_V)
    o += vrd + q + work[order[-1]][:4] + vchk
    o += vread(0, VF[0]) + vread(8, VF[1])
    o += work[order[-1]][4:]
    t = TMP
    o += [f"v_mov_b32 v{t}, v{vMx}", f"v_permlane32_swap_b32 v{t}, v{vMx}",
          f"v_max_f32 v{vMx}, v{vMx}, v{t}", f"v_sub_f32 v{vMx}, 0, v{vMx}"]
    o += stamp(7)
    if guard:
        o += [f"v_mov_b32 v{CM+r}, {NEG}" for r in range(16)]
        o += setc(1, f"v{vMx}")
    else:
        o += [f"v_mov_b32 v{CM+r}, v{vMx}" for r in range(16)]

    def expcvt(s, p, sub):
        e = []
        for r in range(16):
            if sub:
                e.append(f"v_add_f32 v{s+r}, v{s+r}, v{vMx}")
        for r in range(16):
            e.append(f"v_exp_f32 v{s+r}, v{s+r}")
            if r % 2 == 1 and r >= 3:
                e.append(f"v_cvt_pk_bf16_f32 v{p+(r-3)//2}, v{s+r-3}, v{s+r-2}")
        e.append(f"v_cvt_pk_bf16_f32 v{p+7}, v{s+14}, v{s+15}")
        return e

    def spread(mf, va):
        r = []
        n = len(mf)
        k = 0
        for idx, g in enumerate(mf):
            r += g
            want = (len(va) * (idx + 1)) // n - k
            r += va[k:k + want]
            k += want
        return r

    ev = expcvt(SC, PA, True)
    ev += [x for p in range(8) for x in (f"v_and_b32 v{PB+p}, v{PA+p}, v{MK+p}", f"v_xor_b32 v{PF+p}, v{PA+p}, v{PB+p}")]
    q1 = qk(bufs[1], 1, CM)
    o += spread([[q1[0]], [q1[1]]], ev)
    prev_pv = [["@wait_ds v8", mfma(OACC, VF[0], PF, None)], [mfma(OACC, VF[0] + 4, PF + 4, OACC)] + vread(1, VF[0]),
               [mfma(OACC, VF[1], PB, OACC)], [mfma(OACC, VF[1] + 4, PB + 4, OACC)] + vread(2, VF[1])]
    gearly, glate = check_ev(GRDY, 'own', vG)
    for i in range(1, 8):
        P = (PB, PA)[i % 2]
        seq = []
        if i + 1 <= 7:
            if guard:
                o += setc(i + 1, f"v{vMx}")
            nq = qk(bufs[i + 1], i + 1, CM)
            seq += [[nq[0]], [nq[1]]]
        seq += prev_pv
        if i == 6:
            seq[-1] = seq[-1] + gearly
        if i == 7:
            seq[0] = glate + [f"ds_read_b32 v{vG}, v{vGA}", f"ds_read_b32 v{vEc}, v{vM} offset:{16*EPOCH}"] + seq[0]
        o += spread(seq, expcvt(bufs[i], P, False))
        vb = VF[(i + 1) % 2]
        prev_pv = [[f"@wait_ds v{i}", mfma(OACC, vb, P, OACC)],
                   [mfma(OACC, vb + 4, P + 4, OACC)] + (vread(i + 2, vb) if i + 2 <= 7 else [])]
    o += prev_pv[0] + prev_pv[1]
    return o


vGA, vEc = 8, 6


def finish_o(A, D, vscale, t, u, soff, vtag, snot, eps=None):
    o = [f"v_mov_b32 v{t}, v{A+15}", f"v_mov_b32 v{u}, v{A+15}", f"v_permlane32_swap_b32 v{t}, v{u}"]
    if eps is not None:
        o += [f"v_add_f32 v{u}, s{eps}, v{u}"]
    o += [f"v_rcp_f32 v{u}, v{u}", f"v_mov_b32 v{t}, 0xffff", f"v_mul_f32 v{u}, v{u}, v{vscale}"]
    for p in range(8):
        o += [f"v_mul_f32 v{A+2*p}, v{A+2*p}, v{u}"]
        if p % 4 != 3:
            o += [f"v_mul_f32 v{A+2*p+1}, v{A+2*p+1}, v{u}"]
        o += [f"v_cvt_pk_bf16_f32 v{D+p}, v{A+2*p}, v{A+2*p+1}"]
        if p % 4 == 3:
            e = p // 4
            o += [f"v_bfi_b32 v{D+p}, v{t}, v{D+p}, v{vtag}",
                  f"buffer_store_dwordx4 v[{D+4*e}:{D+4*e+3}], v{vL16}, s[{sWSD}:{sWSD+3}], s{soff} offen offset:{1024*e} sc1"]
    return o + notify(snot, t, vtag)


def c_tail():
    o = finish_o(OACC, PA, vG, TMP, TMP + 1, sSt + 1, vEc, sSt + 2)
    o += signal(E_OA)
    o += stamp(3)
    if OPT.get('alt') == 8:
        o += ["s_waitcnt vmcnt(1)", f"!s_memtime s[{sStamp+8}:{sStamp+9}]", "s_waitcnt vmcnt(0)", f"!s_memtime s[{sStamp+10}:{sStamp+11}]"]
    o += c_phase3()
    o += stamp_flush(TMP, 0)
    o += ["s_endpgm"]
    return o


def c_wave():
    ROLE[0] = 'C'
    o = ["@reset", "L_cwave:"] + stamp(4, 's')
    o += ["v_lshlrev_b32 v20, 3, v0", "v_mov_b32 v22, 0", "v_mov_b32 v23, 0", f"v_add_u32 v20, {MISC}, v20", "ds_write_b64 v20, v[22:23]",
          ]
    o += c_setup()
    o += stamp(5, 's') + ["s_waitcnt lgkmcnt(0)"] + stamp(6, 's') + ["s_barrier"] + stamp(7, 's')
    o += srd(sWSD, sWS, WS_SIZE)
    o += [f"s_cmp_eq_u32 s{sZ}, 0", "!s_cbranch_scc1 L_cY"]
    o += c_gemm(False)
    o += ["s_branch L_attn", "@reset", "L_cY:"]
    o += c_gemm(True)
    o += ["L_attn:", f"s_setprio {OPT.get('cprio', 0)}"]
    o += [f"s_lshl_b32 s{sT0}, s{sWave}, 11",
          f"s_add_u32 s{sT1}, s{sT0}, {KL}", f"v_add_u32 v{vKA}, s{sT1}, v{vL16}",
          f"s_add_u32 s{sT1}, s{sT0}, {VL}", f"v_add_u32 v{vVA}, s{sT1}, v{vL16}",
          f"s_lshl_b32 s{sT0}, s{sWave}, 8", f"s_add_u32 s{sT0}, s{sT0}, {GL}", f"v_lshl_add_u32 v{vGA}, v0, 2, s{sT0}",
          f"s_lshl_b32 s{sT0}, s{sWave}, 2", f"s_add_u32 s{sT0}, s{sT0}, {MISC}", f"v_mov_b32 v{vOwn}, s{sT0}",
          f"s_lshl_b32 s{sT0}, s{sTile}, 4", f"s_add_u32 s{sT0}, s{sT0}, s{sH}",
          f"s_lshl_b32 s{sT1}, s{sT0}, 7", f"s_add_u32 s{sSt+2}, s{sT1}, {NA}",
          f"s_lshl_b32 s{sT0}, s{sT0}, 11", f"s_add_u32 s{sSt+1}, s{sT0}, {OA}",
          f"s_cmp_lt_u32 s{sTile}, 8", "!s_cbranch_scc1 L_attn_g"]
    o += attention(False)
    o += ["L_ctail:"]
    o += c_tail()
    o += ["@reset", "L_attn_g:", f"s_sub_u32 s{sSt}, 8, s{sTile}"]
    o += attention(True)
    o += ["s_waitcnt lgkmcnt(0)", "s_nop 15", "s_branch L_ctail", "@reset"]
    return o


def code_prefetch():
    n = OPT['prefetch']
    if not n:
        return []
    o = ["s_getpc_b64 s[38:39]", "L_pc:",
         f"s_sub_u32 s38, s38, L_pc-{NAME}_kernel", "s_subb_u32 s39, s39, 0",
         f"s_lshr_b32 s{sT0}, s2, 3", f"s_lshl_b32 s{sT1}, s{sWave}, 5", f"s_add_u32 s{sT0}, s{sT0}, s{sT1}",
         f"s_mul_i32 s{sT0}, s{sT0}, {128*n}",
         f"v_lshl_add_u32 v20, v0, 7, s{sT0}",
         f"v_min_u32 v20, L_end-{NAME}_kernel-4, v20",
         f"s_mov_b64 exec, {(1 << n) - 1}",
         "!global_load_dword v239, v20, s[38:39]", "s_mov_b64 exec, -1"]
    return o


sXD, sWD, sQBD, sQAD, sGD = 36, 40, 44, 48, 52
sKGD, sVGD = 56, 60
sRt, sTT, sE2, sL2 = 64, 65, 66, 67
sOBo, sA, sB, sC = 68, 69, 70, 71
sOff, sLi, sKh = 72, 73, 75
sEarly = 61
sOBn = 62
sNo = 63
sC7 = 53
sOBd = 60
vX, vW, vQ, vPat, vK, vV, vWO = 2, 3, 4, 5, 6, 7, 8
vEp = 15
GV = 16
HQ = 28
PQR = 16
vG1 = 27
KVr = 88
sRet = 54


def p3_slot():
    return [f"s_and_b32 s{sT0}, s{sRB}, 3", f"s_lshl_b32 s{sT0}, s{sT0}, 3", f"s_and_b32 s{sT1}, s{sH}, 7",
            f"s_add_u32 s{sJ3}, s{sT0}, s{sT1}",
            f"s_cmp_ge_u32 s{sJ3}, 14", f"s_cselect_b32 s{sT0}, 14, 0", f"s_cselect_b32 s{sT1}, 1, 0",
            f"s_sub_u32 s{sT0}, s{sJ3}, s{sT0}", f"s_lshr_b32 s{sCT}, s{sT0}, 1", f"s_and_b32 s{sT0}, s{sT0}, 1",
            f"s_lshr_b32 s{sT2}, s{sH}, 3", f"s_lshl_b32 s{sT2}, s{sT2}, 1", f"s_add_u32 s{sT1}, s{sT1}, s{sT2}",
            f"s_and_b32 s{sT2}, s{sRB}, 12", f"s_add_u32 s{sT1}, s{sT1}, s{sT2}",
            f"s_lshl_b32 s{sT1}, s{sT1}, 1", f"s_add_u32 s{sT1}, s{sT1}, s{sT0}", f"s_lshl_b32 s{sTB}, s{sT1}, 1"]


def h_setup():
    return p3_slot() + [
            f"s_lshl_b32 s{sT0}, s{sW4}, 2", f"s_add_u32 s{sT0}, s{sT0}, {MISC}", f"v_mov_b32 v{vOwn}, s{sT0}",
            f"v_lshrrev_b32 v{vLow}, 5, v0", f"v_add_u32 v{vLow}, -1, v{vLow}",
            f"s_mov_b32 s{sE2}, {fhex(1e-6)}", f"s_mov_b32 s{sL2}, {fhex(LOG2E)}",
            f"s_lshl_b32 s{sT0}, s{sRB}, 2", f"s_add_u32 s{sT0}, s{sT0}, s{sW4}", f"s_lshl_b32 s{sT0}, s{sT0}, 4",
            f"s_add_u32 s{sT0}, s{sT0}, s{sH}",
            f"s_lshl_b32 s{sT1}, s{sT0}, 7", f"s_add_u32 s{sOBn}, s{sT1}, {NB}",
            f"s_lshl_b32 s{sT0}, s{sT0}, 11", f"s_add_u32 s{sOBo}, s{sT0}, {OB}"]


def qb_phi():
    R, A = 96, 64
    t, u = 24, 25
    o = spin_ev(R_Q, 'own', HQ)
    o += [f"s_lshl_b32 s{sT0}, s{sW4}, 12", f"v_add_u32 v{t}, s{sT0}, v{vL16}",
          f"ds_read_b128 v[{R}:{R+3}], v{t}", f"ds_read_b128 v[{R+4}:{R+7}], v{t} offset:1024",
          f"s_lshl_b32 s{sT0}, s{sW4}, 8", f"s_add_u32 s{sT0}, s{sT0}, {GL}", f"v_lshl_add_u32 v{26}, v0, 2, s{sT0}",
          f"v_lshlrev_b32 v{t}, 16, v{R+6}", f"v_lshlrev_b32 v{u}, 16, v{R+6}",
          f"v_permlane32_swap_b32 v{t}, v{u}",
          f"v_mul_f32 v{u}, s{sL2}, v{u}", f"v_exp_f32_e64 v{u}, -v{u}", f"v_add_f32 v{u}, 1.0, v{u}",
          f"v_rcp_f32 v{u}, v{u}", f"ds_write_b32 v26, v{u}"] + signal(GRDY) + [f"v_sub_f32 v{vG1}, 1.0, v{u}"]
    for p in range(8):
        o += [f"v_lshlrev_b32 v{A+2*p}, 16, v{R+p}", f"v_and_b32 v{A+2*p+1}, 0xffff0000, v{R+p}"]
        o += phi_pair(A + 2 * p, A + 2 * p + 1, t, u, PQR + p, sL2, sE2)
    o += [f"v_and_b32 v{PQR+6}, v{PQR+6}, v{vLow}", f"v_and_b32 v{PQR+7}, v{PQR+7}, v{vLow}"]
    return o


def ob_tile(read_kv=True):
    o = []
    if read_kv:
        o += spin_ev(KVRDY, 3, HQ)
        o += [f"v_add_u32 v24, {KVF}, v{vL16}",
              f"ds_read_b128 v[{KVr}:{KVr+3}], v24", f"ds_read_b128 v[{KVr+4}:{KVr+7}], v24 offset:1024"]
    o += [mfma(64, KVr, PQR, None), mfma(64, KVr + 4, PQR + 4, 64)]
    o += finish_o(64, 80, vG1, 24, 25, sOBo, vEp, sOBn, eps=sE2)
    return o


def call(name):
    return ["@drain", f"!s_call_b64 s[{sRet}:{sRet+1}], L_sub_{name}", "@reset"]


def subroutines():
    o = []
    for name, body in (("phi", qb_phi()), ("ob", ob_tile()), ("r0", woa_read(0) + signal(R1)), ("r1", woa_read(1))):
        o += ["@reset", f"L_sub_{name}:"] + body + ["s_waitcnt lgkmcnt(0)", f"!s_setpc_b64 s[{sRet}:{sRet+1}]"]
    for name, w in (("d7", f"!s_waitcnt vmcnt({OPT.get('wlead', 20) - 1})"), ("d7e", f"!s_waitcnt vmcnt({OPT.get('elead', 14) - 1})")):
        o += ["@reset", f"L_sub_{name}:"]
        for m in range(7):
            o += [w, f"!buffer_load_dwordx4 v{vWO}, s[{sXD}:{sXD+3}], s{sOff} offen lds",
                  f"!s_add_u32 s{sOff}, s{sOff}, s{sC7}", "!s_addk_i32 m0, 1024"]
        o += [f"!s_setpc_b64 s[{sRet}:{sRet+1}]"]
    return o


def wait_serving(rd, red, cmp_ok, early=None):
    L, L1, L2 = lab('ws'), lab('ws1'), lab('ws2')
    o = ["@drain", f"s_mov_b32 s{sTO}, 0", f"!{L}:", "!" + rd, f"!ds_read_b32 v24, v{vM} offset:{16*KVRDY+12}"]
    o += ["!" + x for x in _tmo()]
    o += ["!s_waitcnt lgkmcnt(0)", f"!v_cmp_lt_u32 vcc, s{sOBd}, v24", f"!s_cbranch_vccz {L1}",
          f"!s_call_b64 s[{sRet}:{sRet+1}], L_sub_ob", f"!s_mov_b32 s{sOBd}, 1", f"!s_mov_b32 s{sTO}, 0", f"!s_branch {L}", f"!{L1}:"]
    o += ["!" + x for x in red + [cmp_ok, f"s_cbranch_vccnz {L2}"]]
    if early is not None:
        o += [f"!s_mov_b32 s{early}, 1"]
    o += [f"!s_sleep {OPT.get('ssleep', 2)}", f"!s_branch {L}", "@reset", f"!{L2}:"]
    return o


def serve_ev(ev, early=None):
    return wait_serving(f"ds_read_b128 v[{HQ}:{HQ+3}], v{vM} offset:{16*ev}",
                        [f"v_min3_u32 v{HQ}, v{HQ}, v{HQ+1}, v{HQ+2}", f"v_min_u32 v{HQ}, v{HQ}, v{HQ+3}"],
                        f"v_cmp_ne_u32 vcc, 0, v{HQ}", early)


def serve_land(st):
    return wait_serving(f"ds_read_b32 v{HQ}, v{vM} offset:{256+4*st}", [], f"v_cmp_eq_u32 vcc, 2, v{HQ}")


def dma(vaddr, sd, soff, lds, extra="", tag=None):
    o = [f"s_add_u32 m0, s{sLi}, {lds}"]
    if soff:
        o.append(f"s_mov_b32 s{sOff}, {soff}")
        so = f"s{sOff}"
    else:
        so = "0"
    o.append(f"buffer_load_dwordx4 v{vaddr}, s[{sd}:{sd+3}], {so} offen {extra} lds" + (f" ;@tag={tag}" if tag else ""))
    return o


def spin_vm(body, cond, sleep=0):
    L = lab('pv')
    o = [f"!s_mov_b32 s{sTO}, 0", f"!{L}:"]
    o += ["!" + b for b in body + _tmo()]
    o += ["s_waitcnt vmcnt(0)"]
    o += ["!" + c for c in cond]
    o += [f"!s_cbranch_vccnz {L}"]
    return o


def flag_ld(vdst, vaddr, soff):
    if 1:
        return [f"v_mov_b32 v{vdst}, 0", f"buffer_atomic_or v{vdst}, v{vaddr}, s[{sWSD}:{sWSD+3}], {soff} offen sc0 sc1"]
    return [f"buffer_load_dword v{vdst}, v{vaddr}, s[{sWSD}:{sWSD+3}], {soff} offen sc1"]


def light_poll(vdst, vaddr, soff, mask, cmp_bad, first_issued=False, sleep=None, flag=False, hook=None):
    sleep = OPT.get('psleep', 1) if sleep is None else sleep
    L, L2, L0 = lab('lp'), lab('lpx'), lab('lp0')
    ld = f"buffer_load_dword v{vdst}, v{vaddr}, s[{sWSD}:{sWSD+3}], {soff} offen sc1"
    o = [f"s_mov_b64 exec, {mask}", f"s_mov_b32 s{sTO}, 0"]
    if first_issued:
        o += [f"!s_branch {L0}"]
    o += [f"!{L}:"] + ["!!" + x for x in (flag_ld(vdst, vaddr, soff) if flag else [ld])] + [f"!{L0}:"] + ["!" + x for x in _tmo()] + ["s_waitcnt vmcnt(0)"]
    o += ["!" + c for c in cmp_bad]
    o += [f"!s_cbranch_vccz {L2}"]
    if hook:
        o += ["!!s_mov_b64 s[50:51], vcc", "!!s_mov_b64 exec, -1"] + ["!!" + x.lstrip('!') for x in hook if not x.startswith('@')] + ["!!s_mov_b64 vcc, s[50:51]"]
    o += ["!!s_mov_b64 exec, vcc"] + ([f"!!s_sleep {sleep}"] if sleep else []) + \
         [f"!!s_branch {L}", f"!{L2}:", "s_mov_b64 exec, -1"]
    return o


def notify(soff, vt, vep, fan=1):
    return [f"v_lshlrev_b32 v{vt}, 7, v0", f"s_mov_b64 exec, {(1 << fan) - 1}",
            f"buffer_store_dword v{vep}, v{vt}, s[{sWSD}:{sWSD+3}], s{soff} offen sc1", "s_mov_b64 exec, -1"]


def fmap(d, t):
    return [f"v_bfe_u32 v{d}, v0, 4, 1", f"v_bfe_u32 v{t}, v0, 2, 1", f"v_lshl_add_u32 v{d}, v{d}, 1, v{t}",
            f"v_mul_u32_u24 v{d}, 7, v{d}", f"v_bfe_u32 v{t}, v0, 3, 1", f"v_lshl_add_u32 v{d}, v{t}, 2, v{d}",
            f"v_and_b32 v{t}, 3, v0", f"v_add_u32 v{d}, v{d}, v{t}"]


def l_wave():
    ROLE[0] = 'L'
    o = [f"s_setprio {OPT.get('lprio', 2)}"]
    t0, t1, t2 = 24, 25, 26
    sHW = sW4
    o += [f"s_lshl_b32 s{sLi}, s{sHW}, 10",
          f"v_mov_b32 v{vMl}, v{vMs}", f"s_mov_b32 s{sT0}, {LANDC}", f"v_writelane_b32 v{vMl}, s{sT0}, 0"]
    o += [f"v_lshrrev_b32 v{t0}, 3, v0", f"s_lshl_b32 s{sT0}, s{sRB}, 4", f"s_add_u32 s{sT0}, s{sT0}, s{sHW}",
          f"s_lshl_b32 s{sT0}, s{sT0}, 3", f"v_add_u32 v{t1}, s{sT0}, v{t0}", f"v_mul_u32_u24 v{vX}, 896, v{t1}",
          f"v_lshrrev_b32 v{t1}, 4, v0", f"s_lshl_b32 s{sT0}, s{sHW}, 2", f"v_add_u32 v{t1}, s{sT0}, v{t1}",
          f"v_and_b32 v{t2}, 7, v0", f"v_xor_b32 v{t1}, v{t1}, v{t2}", f"v_lshl_add_u32 v{vX}, v{t1}, 4, v{vX}"]
    o += [f"s_lshl_b32 s{sT2}, s{sZ}, 4", f"s_add_u32 s{sT1}, s{sT2}, 112", f"s_add_u32 s{sT2}, s{sT2}, 48",
          f"s_mul_i32 s{sT1}, s{sT1}, s{sHH}", f"s_add_u32 s{sT1}, s{sT1}, 896",
          f"s_lshl_b32 s{sT0}, s{sHW}, 3", f"v_add_u32 v{t1}, s{sT0}, v{t0}", f"v_mul_u32_u24 v{vW}, 2688, v{t1}",
          f"v_bfe_u32 v{t1}, v0, 2, 1", f"v_bfe_u32 v{t2}, v0, 4, 1", f"v_xor_b32 v{t1}, v{t1}, v{t2}",
          f"v_mul_u32_u24 v{t2}, s{sT2}, v{t1}", f"v_add3_u32 v{vW}, v{vW}, v{t2}, s{sT1}",
          f"v_and_b32 v{t2}, 3, v0", f"v_lshl_add_u32 v{vW}, v{t2}, 4, v{vW}"]
    o += [f"s_mov_b32 s{sXD+2}, 1835008", f"s_mov_b32 s{sXD+3}, 0x20000",
          f"s_mov_b32 s{sWD+2}, 1204224", f"s_mov_b32 s{sWD+3}, 0x20000",
          f"s_cmp_eq_u32 s{sH}, 15", f"s_cselect_b32 s{sWD+2}, 0, s{sWD+2}",
          f"s_cmp_eq_u32 s{sZ}, 0"]
    o += stamp(1, 'f')
    o += ["s_waitcnt lgkmcnt(0)",
          f"s_mov_b32 s{sXD}, s{sX}", f"s_mov_b32 s{sXD+1}, s{sX+1}",
          f"s_cselect_b32 s{sWD}, s{sBW}, s{sAW}", f"s_cselect_b32 s{sWD+1}, s{sBW+1}, s{sAW+1}"]
    ops = []
    for c in range(7):
        for ii in range(8):
            ops.append((dma(vX, sXD, 16 * ii * 896 + 128 * c, XR(c) + 2048 * ii), c))
        for p in range(2):
            for ii in range(4):
                ops.append((dma(vW, sWD, (64 * c + 16 * ii) * 2688 + 896 * p, WR(c) + 8192 * p + 2048 * ii), c))
    for q, sd in enumerate((sQBD, sQAD)):
        for c in range(7):
            for ii in range(2):
                ops.append((dma(vQ, sd, (64 * c + 32 * ii) * 2688, QLOC[7 * q + c] + 2048 * ii), 7 + 7 * q + c))
    late = srd(sWSD, sWS, WS_SIZE) + srd(sQBD, sBW, 1204224) + srd(sQAD, sAW, 1204224) + srd(sGD, sGW, 896)
    late += [f"v_lshrrev_b32 v{t0}, 2, v0", f"s_lshl_b32 s{sT0}, s{sHW}, 4", f"v_add_u32 v{t0}, s{sT0}, v{t0}",
             f"v_mul_u32_u24 v{vQ}, 2688, v{t0}", f"v_and_b32 v{t1}, 3, v0", f"v_lshl_add_u32 v{vQ}, v{t1}, 4, v{vQ}",
             f"s_mul_i32 s{sT0}, s{sH}, 56", f"s_lshl_b32 s{sT1}, s{sPar}, 3", f"s_sub_u32 s{sT0}, s{sT0}, s{sT1}",
             f"v_add_u32 v{vQ}, s{sT0}, v{vQ}",
             f"v_bfe_u32 v{t0}, v0, 4, 1", f"v_lshlrev_b32 v{t0}, 5, v{t0}", f"v_and_b32 v{t1}, 15, v0",
             f"s_lshl_b32 s{sT0}, s{sHW}, 4", f"v_add3_u32 v{t0}, v{t0}, v{t1}, s{sT0}",
             f"v_lshlrev_b32 v27, 1, v{t0}",
             f"s_xor_b32 s{sT0}, s{sPar}, 1", f"s_mul_i32 s{sT0}, s{sT0}, 56", f"s_add_u32 s{sT0}, s{sT0}, {QBB}",
             f"v_lshl_add_u32 v{vPat}, v{t0}, 6, s{sT0}"]
    late += [f"buffer_load_ushort v{GV+c}, v27, s[{sGD}:{sGD+3}], 0 offen offset:{128*c}" for c in range(7)]
    late += [f"s_mul_i32 s{sT0}, s{sHW}, {VG}", [f"s_add_u32 s{sKGD}, s{sWS}, s{sT0}", f"s_addc_u32 s{sKGD+1}, s{sWS+1}, 0"],
             f"s_mov_b32 s{sKGD+2}, 1835008", f"s_mov_b32 s{sKGD+3}, 0x20000"]
    late += [f"s_lshl_b32 s{sT0}, s{sRB}, 2", f"s_sub_u32 s{sT0}, s{sT0}, 8", f"s_mul_i32 s{sA}, s{sT0}, 28672",
             f"s_mul_i32 s{sT1}, s{sH}, 7", f"s_lshr_b32 s{sT1}, s{sT1}, 1", f"s_lshl_b32 s{sT1}, s{sT1}, 9",
             f"s_add_u32 s{sT1}, s{sT1}, s{sA}",
             f"v_add_u32 v{vK}, s{sT1}, v{vL16}",
             f"s_mul_i32 s{sT1}, s{sH}, 448", f"s_add_u32 s{sT1}, s{sT1}, s{sA}",
             f"v_lshrrev_b32 v{t0}, 5, v0", f"v_mul_u32_u24 v{t0}, 7168, v{t0}"] + fmap(t1, t2) + [
             f"v_lshl_add_u32 v{t0}, v{t1}, 4, v{t0}", f"v_add_u32 v{vV}, s{sT1}, v{t0}"]
    vFl = 32
    late += [f"s_mul_i32 s{sT0}, s{sH}, 28", f"s_add_u32 s{sT1}, s{sT0}, 27",
             f"s_lshr_b32 s{sT0}, s{sT0}, 6", [f"s_lshr_b32 s{sT1}, s{sT1}, 6", f"s_cmp_eq_u32 s{sT0}, s{sT1}",
             f"s_cselect_b32 s{sB}, 0x15, 63"],
             f"s_min_u32 s{sT0}, s{sRB}, 2", f"s_lshl_b32 s{sT0}, s{sT0}, 1", f"s_sub_u32 s{sT0}, 4, s{sT0}",
             f"s_lshl_b32 s{sT1}, -1, s{sT0}", f"s_and_b32 s{sB}, s{sB}, s{sT1}", f"s_mov_b32 s{sB+1}, 0",
             f"s_lshl_b32 s{sT0}, s{sRB}, 4", f"s_add_u32 s{sT0}, s{sT0}, s{sH}", f"s_lshl_b32 s{sT0}, s{sT0}, 7",
             f"v_lshl_add_u32 v{vFl}, v0, 2, s{sT0}"]
    late += [h_setup()] + p3_early()
    late += [f"v_lshrrev_b32 v{t0}, 3, v0", f"s_mul_i32 s{sT0}, s{sHW}, 224", f"v_add_u32 v{t1}, s{sT0}, v{t0}",
             f"v_mul_u32_u24 v{vWO}, 896, v{t1}",
             f"v_bfe_u32 v{t1}, v0, 2, 1", f"v_bfe_u32 v{t2}, v0, 4, 1", f"v_xor_b32 v{t1}, v{t1}, v{t2}",
             f"v_lshl_add_u32 v{vWO}, v{t1}, 6, v{vWO}", f"v_and_b32 v{t2}, 3, v0", f"v_lshl_add_u32 v{vWO}, v{t2}, 4, v{vWO}",
             f"s_lshl_b32 s{sT0}, s{sCT}, 7", f"v_add_u32 v{vWO}, s{sT0}, v{vWO}"]
    pieces = [late[i:i + 6] for i in range(0, len(late), 6)]
    last_of = {}
    for n, (_, st) in enumerate(ops):
        last_of[st] = n
    def lead_at(n):
        return OPT['l1'] if ops[n][1] < 7 else OPT['l3']
    sig_next = 0

    def do_signal(st):
        r = [f"@wait_vm o{last_of[st]}"]
        if 7 <= st <= 13:
            r.append(f"ds_write_b16 v{vPat}, v{GV+st-7} offset:{QLOC[st-7]-QBB}")
        return r + land(st)

    def emit_ops(n0, n1, sig, fine):
        r = []
        for n in range(n0, n1):
            ins, st = ops[n]
            need = {64: 1, 80: 2, 96: 3, 124: 4}.get(n)
            if need:
                assert sig >= need
                r += spin_ev(E_PA, 'all', HQ, ge=need)
            ins = ins[:-1] + [ins[-1] + f" ;@tag=o{n}"]
            if n == 0:
                r += stamp(2, 'f')
            r += ins
            if n == 15:
                r += stamp(3, 'f') + ["s_barrier"] + stamp(4, 'f')
            if n >= 16 and pieces:
                r += sum([x if isinstance(x, list) else [x] for x in pieces.pop(0)], [])
            done = n - lead_at(n)
            if done >= 0 and n >= 15:
                r += [f"@wait_vm o{done}"]
            while sig < 21 and last_of[sig] <= done and n >= 15:
                r += do_signal(sig)
                r += {0: stamp(5, 'f'), 1: stamp(6, 'f'), 2: stamp(7, 'f'), 4: stamp(8, 'f'), 6: stamp(9, 'f'), 10: stamp(10, 'f')}.get(sig, [])
                sig += 1
        return r, sig

    def tail(sig, pf=False):
        r, sig = emit_ops(HOLD, len(ops), sig, False)
        r += stamp(1) + stamp(11, 'f')
        if pf and OPT.get('ypf', 0):
            r += [f"s_cmp_eq_u32 s{sHW}, 0", f"s_cselect_b32 s48, s{sAO}, s{sBO}", f"s_cselect_b32 s49, s{sAO+1}, s{sBO+1}",
                  f"s_and_b32 s{sT0}, s{sRB}, 3", f"s_lshl_b32 s{sT0}, s{sT0}, 2", f"s_and_b32 s{sT1}, s{sHH}, 3",
                  f"s_add_u32 s{sT0}, s{sT0}, s{sT1}", f"s_mul_i32 s{sT0}, s{sT0}, {196*128}",
                  f"v_lshl_add_u32 v33, v0, 7, s{sT0}", "s_mov_b32 exec_hi, 0x1ffff"]
            for i in range(4):
                r += [f"global_load_dword v{40+i}, v33, s[48:49]"] + ([f"v_add_u32 v33, {49*128}, v33"] if i < 3 else [])
            r += ["s_mov_b64 exec, -1"]
        for st in range(sig, 21):
            r += do_signal(st)
        return r
    HOLD = OPT.get('hold', 140)
    r, sig = emit_ops(0, HOLD, 0, True)
    assert not pieces
    o += r
    if HOLD < len(ops):
        o += [f"s_cmp_eq_u32 s{sZ}, 0", "!s_cbranch_scc0 L_lhold"]
    o += tail(sig, True)
    if HOLD < len(ops):
        o += ["s_branch L_ljoin", "@reset", "L_lhold:"]
        while last_of[sig] < HOLD:
            o += [f"s_waitcnt vmcnt({HOLD - 1 - last_of[sig]})"] + do_signal(sig)
            sig += 1
        o += spin_ev(X_PUB, 'hi', HQ)
        o += tail(sig)
        o += ["@reset", "L_ljoin:"]
    o += spin_ev(EPOCH, 0, vEp)
    d7 = [f"!s_call_b64 s[{sRet}:{sRet+1}], L_sub_d7e"]

    def batch(ptr, row0, lds, stride, n, sub=d7):
        return [f"s_mov_b32 s{sXD}, s{ptr}", f"s_mov_b32 s{sXD+1}, s{ptr+1}", f"s_mov_b32 s{sOff}, {row0*896}",
                f"s_mul_i32 s{sLi}, s{sHW}, {stride}", f"s_add_u32 m0, s{sLi}, {lds}"] + sub * n
    o += [f"s_mov_b32 s{sXD+2}, 401408", f"s_mov_b32 s{sC7}, 7168",
          f"s_cmp_ge_u32 s{sJ3}, 28", "!s_cbranch_scc1 L_lnoA"]
    if OPT.get('e1', 1):
        o += [f"s_cmp_eq_u32 s{sHW}, 0", "!s_cbranch_scc1 L_lnoA"]
    o += spin_ev(E_P2, 'all', HQ)
    if OPT.get('zgate', 1):
        o += [f"s_cmp_eq_u32 s{sZ}, 0", "!s_cbranch_scc1 L_lgoA"] + spin_ev(X_PUB, 'hi', HQ) + ["L_lgoA:"]
    o += batch(sAO, 0, WBA, WBAS, 3)
    if OPT.get('e1', 1):
        o += [f"v_subrev_u32 v{vWO}, {224*896}, v{vWO}", f"s_mov_b32 s{sOff}, 0", f"s_mov_b32 m0, {WBA}"] + d7 * 3
    o += ["L_lnoA:"]
    o += [f"s_cmp_eq_u32 s{sHW}, 0", "!s_cbranch_scc0 L_lgV"] + spin_ev(F_K, 'hi', HQ, ge=2) + ["s_branch L_lg", "L_lgV:"]
    o += spin_ev(E_P3A, 'all', HQ) + ["L_lg:"]
    o += stamp(6, 'z')
    o += [f"s_mul_i32 s{sT1}, s{sHW}, {FV-FK}", f"s_add_u32 s{sT1}, s{sT1}, {FK}"]
    o += light_poll(t1, 32, f"s{sT1}", f"s[{sB}:{sB+1}]", [f"v_cmp_ne_u32 vcc, v{t1}, v{vEp}"], flag=OPT.get('apoll', 1), sleep=OPT.get('fsleep', 2))
    o += stamp(2)
    if OPT.get('alt') == 5:
        o += [f"s_add_u32 s{sStamp+14}, s{sStamp}, s{sTO}"]
    o += [f"s_cmp_eq_u32 s{sHW}, 0", "!s_cbranch_scc0 L_lV"]
    for j in range(12):
        for e in range(2):
            o += [f"s_mov_b32 m0, {KL + 2048*j + 1024*e - 1024*e}",
                  f"buffer_load_dwordx4 v{vK}, s[{sKGD}:{sKGD+3}], 0 offen offset:{1024*e} sc1 lds"]
        o += [f"v_add_u32 v{vK}, 28672, v{vK}"]
    o += [f"s_mov_b32 s{sA}, {4*ST_K}", "s_branch L_lKV", "@reset", "L_lV:"]
    o += [f"v_mov_b32 v{36+i}, 0x3f803f80" for i in range(4)]
    o += [f"v_lshlrev_b32 v{t0}, 9, v0", f"v_add_u32 v{t0}, {VL+496}, v{t0}",
          "s_mov_b32 exec_hi, 0xffff", f"ds_write_b128 v{t0}, v[36:39]",
          "s_mov_b32 exec_lo, 0x7fffffff", "s_mov_b32 exec_hi, 0x7fffffff", f"s_mov_b32 s{sOff}, 14336"]
    for j in range(12):
        for e in range(2):
            pre = [f"v_add_u32 v{t2}, s{sOff}, v{vV}"] if e else []
            o += pre + [f"s_mov_b32 m0, {VL + 2048*j + 1024*e}",
                        f"buffer_load_dwordx4 v{t2 if e else vV}, s[{sKGD}:{sKGD+3}], 0 offen sc1 lds"]
        o += [f"v_add_u32 v{vV}, 28672, v{vV}"]
    o += ["s_mov_b64 exec, -1", f"s_mov_b32 s{sA}, {4*ST_V}", "@reset", "L_lKV:"]
    o += stamp(3) + signal(KVISS)
    kvland = [f"v_add_u32 v{t2}, s{sA}, v{vMl}", f"v_mov_b32 v{t0}, 2", f"ds_add_u32 v{t2}, v{t0}"]
    o += [f"s_cmp_ge_u32 s{sJ3}, 28", "!s_cbranch_scc0 L_lwo"] + call("phi") + \
        ["s_waitcnt vmcnt(0)"] + kvland + call("ob") + stamp_flush(20, 0) + ["s_endpgm", "@reset", "L_lwo:"]
    o += call("phi") + stamp(8, 'z')
    o += ["s_waitcnt vmcnt(0)"] + kvland
    o += stamp(4)
    o += land(ST_WB)
    o += p3_setup() + [f"s_mov_b32 s{sOBd}, 0"] + serve_land(ST_WA1) + call("r0")
    o += stamp(5)
    o += ["s_branch L_p3", "@reset"]
    return o


sOb, sNb = 58, 59


def gload(g):
    r = [f"s_add_u32 s{sT2}, s{sOb}, {4096*g}"]
    for e in range(4):
        n = 4 * g + e
        r.append(f"buffer_load_dwordx4 v[{OF+4*n}:{OF+4*n+3}], v{vOG}, s[{sWSD}:{sWSD+3}], s{sT2} offen offset:{1024*e} sc1")
    return r


WA = 128
OF = 64
ACC = 32
BB = 16
vA = 2
vOG = 6
vTg = 9


def p3_early(PARK=248, base=STG, stride=STGS):
    t0, t1, t2, r, cg = 240, 241, 242, 243, 244
    o = [f"s_lshr_b32 s{sKh}, s{sW4}, 1", f"s_and_b32 s{sRt}, s{sW4}, 1",
         f"s_add_u32 s{sTT}, s{sTB}, s{sRt}",
         f"v_bfe_u32 v{r}, v0, 2, 2", f"v_bfe_u32 v{t0}, v0, 4, 1", f"v_and_b32 v{cg}, 3, v0",
         f"v_lshl_add_u32 v{cg}, v{t0}, 2, v{cg}", f"v_lshlrev_b32 v{cg}, 3, v{cg}",
         f"s_mul_i32 s{sT0}, s{sKh}, {stride}", f"s_add_u32 s{sT0}, s{sT0}, {base}",
         f"v_add_u32 v{cg}, s{sT0}, v{cg}",
         f"v_lshrrev_b32 v{t2}, 5, v0", f"v_mul_u32_u24 v{t2}, 7, v{t2}"]
    for s_ in range(2):
        for u in range(2):
            d = PARK + 2 * s_ + u
            o += [f"v_min_u32 v{t0}, {2 if u else 3}, v{r}", f"v_add3_u32 v{t0}, v{t0}, v{t2}, {14*s_+4*u}",
                  f"v_bfe_u32 v{t1}, v{t0}, 1, 1", f"v_xor_b32 v{t1}, s{sKh}, v{t1}",
                  f"v_lshl_add_u32 v{d}, v{t0}, 7, v{cg}", f"v_lshl_add_u32 v{d}, v{t1}, 6, v{d}"]
    o += [f"s_lshl_b32 s{sT0}, s{sTT}, 1", f"s_add_u32 s{sT0}, s{sT0}, s{sKh}", f"s_lshl_b32 s{sNo}, s{sT0}, 10", f"s_lshl_b32 s{sT0}, s{sT0}, 14",
          f"v_add_u32 v{PARK+4}, s{sT0}, v{vL16}"]
    return o


def p3_setup():
    return [f"v_mov_b32 v{vA+i}, v{248+i}" for i in range(5)] + [f"v_and_b32 v{vTg}, 0xffff0000, v{vEp}"]


FLIP = [f"v_xor_b32 v{vA+i}, 64, v{vA+i}" for i in range(4)]


def wo_frag(dst, hl, s, tag=None):
    return [tr(dst, vA + 2 * s, 28 * hl * 128), tr(dst + 2, vA + 2 * s + 1, 28 * hl * 128, tag)]


def woa_read(rho):
    o = []
    for j in range(2):
        for hl in range(4):
            for s in range(2):
                o += wo_frag(WA + 64 * j + 8 * (4 * rho + hl) + 4 * s, hl, s)
        o += FLIP
    return o


RSTR = VL - KL


def half_sub():
    vC = 7
    o = ["@reset", "L_sub_half:"]

    def gcheck(g):
        b = OF + 16 * g
        ch = [f"v_xor_b32 v{b+4*e+3}, v{b+4*e+3}, v{vTg}" for e in range(4)]
        ch += [f"v_or3_b32 v{vC}, v{b+3}, v{b+7}, v{b+11}", f"v_or_b32 v{vC}, v{vC}, v{b+15}",
               f"v_cmp_lt_u32 vcc, 0xffff, v{vC}"]
        Ls, Lb = lab('slow'), lab('back')
        slow.extend([f"{Ls}:"] + ([f"s_add_u32 s{sStamp+14}, s{sStamp+14}, 1"] if OPT.get('alt') == 6 else []) + [f"s_mov_b32 s{sTO}, 0", f"{Ls}_s:", "s_sleep 4"] + gload(g) + _tmo() + ["s_waitcnt vmcnt(0)"] + ch +
                    [f"s_cbranch_vccnz {Ls}_s", f"s_branch {Lb}"])
        return ch + [f"!s_cbranch_vccnz {Ls}", f"!{Lb}:"]
    if OPT.get('alt') == 6:
        o += ["s_waitcnt lgkmcnt(0)", f"s_mov_b32 s{sStamp+14}, s{sStamp}"]
    if OPT.get('alt') in (7, 8):
        o += [f"!s_memtime s[{sStamp+12}:{sStamp+13}]"]
    o += [f"v_lshlrev_b32 v7, 7, v0"]
    o += light_poll(HQ, 7, f"s{sNb}", "0xff", [f"v_cmp_ne_u32 vcc, v{HQ}, v{vEp}"], sleep=OPT.get('osleep', 1))
    o += stamp(9)
    if OPT.get('alt') in (7, 8):
        o += [f"s_add_u32 s{sStamp+14}, s{sStamp}, s{sTO}"]
    for g in range(4):
        o += gload(g)
    sO = 40
    o += srd(sO, sOUT, 1835008)
    o += [f"s_lshr_b32 s{sT2}, s{sWave}, 2", f"s_mul_i32 s{sT1}, s{sT2}, {RSTR}",
          f"s_mul_i32 s{sT0}, s{sW4}, 6144", f"s_add_u32 s{sT0}, s{sT0}, {KL}",
          f"s_add_u32 s44, s{sT0}, s{sT1}", f"v_add_u32 v2, s44, v{vL16}",
          f"s_sub_u32 s44, s{sT0}, s{sT1}", f"s_add_u32 s44, s44, {RSTR+4096}", f"v_add_u32 v3, s44, v{vL16}",
          f"s_lshl_b32 s{sT2}, s{sT2}, 11",
          f"s_xor_b32 s{sT1}, s{sW4}, 2", f"s_mul_i32 s{sT0}, s{sT1}, 6144", f"s_add_u32 s{sT0}, s{sT0}, s{sT2}",
          f"s_add_u32 s{sT0}, s{sT0}, {KL}", f"v_add_u32 v4, s{sT0}, v{vL16}", f"v_add_u32 v24, {RSTR}, v4",
          f"v_and_b32 v8, 31, v0", f"s_lshl_b32 s{sT0}, s{sTT}, 5", f"v_add_u32 v8, s{sT0}, v8",
          f"v_mul_u32_u24 v8, 896, v8", f"v_lshrrev_b32 v5, 5, v0",
          f"v_lshl_add_u32 v8, v5, 4, v8",
          f"s_lshl_b32 s{sT0}, s{sCT}, 1", f"s_add_u32 s{sT0}, s{sT0}, s{sKh}", f"s_lshl_b32 s{sT0}, s{sT0}, 6",
          f"s_lshr_b32 s{sT2}, s{sT2}, 6", f"s_add_u32 s{sT0}, s{sT0}, s{sT2}",
          f"v_add_u32 v8, s{sT0}, v8"]
    early, late = check_ev(E_OA, 'all', HQ)
    for n in range(16):
        if n % 4 == 0:
            o += gcheck(n // 4)
        if n == 12:
            o += early
        for j in ((0, 1) if n < 12 else ()):
            o.append(mfma(ACC + 16 * j, WA + 64 * j + 4 * n, OF + 4 * n, ACC + 16 * j if n else None))
    for j in (1, 0):
        for n in range(12, 16):
            o.append(mfma(ACC + 16 * j, WA + 64 * j + 4 * n, OF + 4 * n, ACC + 16 * j))
        if j == 1:
            o += late
    o += [f"ds_write_b128 v2, v[{ACC+16+4*i}:{ACC+16+4*i+3}] offset:{1024*i}" for i in range(4)]
    o += stamp(8)
    o += [f"s_cmp_lt_u32 s{sWave}, 4", "!s_cbranch_scc1 L_finC"]

    def fin(role):
        mine, spare = ACC + 8 * role, ACC + 8 * (1 - role)
        r = [f"ds_write_b128 v2, v[{spare+4*i}:{spare+4*i+3}] offset:{4096+1024*i}" for i in range(2)]
        r += ["s_waitcnt lgkmcnt(0)", "s_barrier"]
        r += [f"ds_read_b128 v[{OF+4*i}:{OF+4*i+3}], v3 offset:{1024*i}" for i in range(2)]
        r += [f"ds_read_b128 v[{OF+8+4*i}:{OF+8+4*i+3}], v4 offset:{1024*i}" for i in range(2)]
        r += [f"ds_read_b128 v[{OF+16+4*i}:{OF+16+4*i+3}], v24 offset:{1024*i}" for i in range(2)]
        for i in range(8):
            r += [f"v_add_f32 v{mine+i}, v{mine+i}, v{OF+i}"]
        for i in range(8):
            r += [f"v_add_f32 v{OF+8+i}, v{OF+8+i}, v{OF+16+i}"]
        for p in range(4):
            r += [f"v_add_f32 v{mine+2*p}, v{mine+2*p}, v{OF+8+2*p}", f"v_add_f32 v{mine+2*p+1}, v{mine+2*p+1}, v{OF+8+2*p+1}",
                  f"v_cvt_pk_bf16_f32 v{16+p}, v{mine+2*p}, v{mine+2*p+1}"]
        r += ["s_branch L_fin"] if role == 1 else []
        return r
    st = [x for x in o if 0]
    o += fin(1) + ["@reset", "L_finC:", "s_nop 7"] + fin(0) + ["L_fin:"]
    o += [f"v_permlane32_swap_b32 v16, v18", f"v_permlane32_swap_b32 v17, v19"]
    fl = {0: "", 1: " sc1", 2: " nt", 3: " sc0 sc1"}[OPT.get('outfl', 0)]
    o += [f"buffer_store_dwordx4 v[16:19], v8, s[{sO}:{sO+3}], 0 offen{fl}"]
    if OPT.get('until'):
        o += [f"!s_mov_b32 s45, {OPT['until']}"]
        if 'pw' in OPT:
            st = sStamp + 2 * OPT['ps']
            o += ["!s_waitcnt lgkmcnt(0)", f"!s_sub_u32 s44, s{st}, s98", f"!s_cmp_ge_u32 s{sWave}, {OPT['pw']}", "!s_cselect_b32 s44, s44, 0",
                  f"!s_cmp_le_u32 s{sWave}, {OPT['pw2']}", "!s_cselect_b32 s44, s44, 0", "!s_add_u32 s45, s45, s44"]
        o += ["!L_dly2:", f"!s_memtime s[46:47]", "!s_waitcnt lgkmcnt(0)",
              "!s_sub_u32 s46, s46, s98", f"!s_cmp_lt_u32 s46, s45", "!s_cbranch_scc1 L_dly2"]
    o += stamp(10)
    if OPT['stamps'] and 'pw' not in OPT:
        o += ["s_waitcnt vmcnt(0)"] + stamp(11)
    o += stamp_flush(20, 0)
    o += ["s_endpgm"]
    return o


def phase3():
    ROLE[0] = 'H'
    o = ["@reset", "L_p3:"]
    o += serve_land(ST_WA2) + call("r1")
    o += stamp(6)
    o += [f"s_cmp_lg_u32 s{sOBd}, 0", "!s_cbranch_scc1 L_pB"] + call("ob") + ["L_pB:"]
    o += stamp(7)
    o += [f"s_mov_b32 s{sOb}, {OB}", f"s_add_u32 s{sNb}, s{sNo}, {NB}"]
    return o + half_sub()


def c_phase3():
    o = p3_slot() + [f"s_cmp_ge_u32 s{sJ3}, 28", "!s_cbranch_scc1 L_cend"]
    o += [f"v_mov_b32 v{vEp}, v{vEc}"] + p3_early(vA, WBA, WBAS) + [f"v_and_b32 v{vTg}, 0xffff0000, v{vEp}"]
    o += [f"s_mul_i32 s{sB}, s{sKh}, {(WBAS - WBBS) & 0xffffffff}", f"s_add_u32 s{sB}, s{sB}, {WBA - WBB}",
          f"s_mov_b32 s{sOb}, {OA}", f"s_add_u32 s{sNb}, s{sNo}, {NA}"]
    o += wait_land(ST_WB, HQ, inline=True, n=3)
    rd = lambda j, hl: sum([wo_frag(WA + 64 * j + 8 * hl + 4 * s_, hl if hl < 6 else hl - 6, s_) for s_ in range(2)], [])
    for hl in range(6):
        o += rd(0, hl)
    o += [f"v_subrev_u32 v{vA+x}, s{sB}, v{vA+x}" for x in range(4)] + rd(0, 6) + rd(0, 7) + FLIP + rd(1, 6) + rd(1, 7)
    o += [f"v_add_u32 v{vA+x}, s{sB}, v{vA+x}" for x in range(4)]
    for hl in range(6):
        o += rd(1, hl)
    o += [] + ["s_waitcnt lgkmcnt(0)", "s_branch L_sub_half", "@reset", "L_cend:"]
    return o


def pretouch():
    if not OPT.get('touch', 1):
        return []
    o = []
    for p in (sAW, sBW, sOUT, sAO, sBO, sGW, sDBG):
        o.append(f"!s_load_dword s44, s[{p}:{p+1}], 0")
    o += [f"s_mov_b32 s46, s{sWS}", f"s_mov_b32 s47, s{sWS+1}"]
    for i in range(6):
        o += ["!s_load_dword s44, s[46:47], 0", "s_add_u32 s46, s46, 0x200000", "s_addc_u32 s47, s47, 0"]
    return o


def x_wave():
    ROLE[0] = 'X'
    o = ["@reset", "L_xwave:", "s_waitcnt lgkmcnt(0)"] + pretouch() + ["s_barrier"]
    o += srd(sWSD, sWS, WS_SIZE)
    o += h_setup() + p3_early()
    sDD, sKD = 36, 40
    sJ = sLi
    t0, t1, t2 = 24, 25, 26
    o += [f"s_sub_u32 s{sJ}, s{sWave}, 6"]
    o += srd(sDD, sDBG, 256) + srd(sKD, sWS, WS_SIZE)
    o += [f"s_cmp_eq_u32 s{sH}, 15", f"s_cselect_b32 s{sKD+2}, 0, s{sKD+2}"]
    o += [f"v_mov_b32 v{t0}, 0", f"s_lshl_b32 s{sT0}, s2, 1", f"s_add_u32 s{sT0}, s{sT0}, s{sJ}",
          f"s_cmp_eq_u32 s{sT0}, 0", "!s_cbranch_scc0 L_xnoep",
          f"s_mov_b32 s{sT0}, {EPW}",
          f"buffer_load_dword v{vEp}, v{t0}, s[{sWSD}:{sWSD+3}], s{sT0} offen sc1",
          f"v_lshrrev_b32 v{t1}, 16, v{vEp}", f"v_add_u32 v{vEp}, 1, v{vEp}", f"v_and_b32 v{vEp}, 0xffff, v{vEp}",
          f"v_max_u32 v{vEp}, 1, v{vEp}", f"v_cmp_eq_u32 vcc, v{vEp}, v{t1}", f"v_addc_co_u32 v{vEp}, vcc, 0, v{vEp}, vcc",
          f"v_and_b32 v{vEp}, 0xffff, v{vEp}", f"v_max_u32 v{vEp}, 1, v{vEp}", f"v_lshl_or_b32 v{vEp}, v{vEp}, 16, v{vEp}",
          "s_mov_b64 exec, 1",
          f"buffer_store_dword v{vEp}, v{t0}, s[{sDD}:{sDD+3}], 0 offen sc1",
          f"buffer_store_dword v{vEp}, v{t0}, s[{sWSD}:{sWSD+3}], s{sT0} offen sc1",
          "s_mov_b64 exec, -1", "@reset", "L_xnoep:"]
    o += wait_land(OPT.get('epgate', 2), HQ, inline=True)
    o += spin_vm([f"buffer_load_dword v{vEp}, v{t0}, s[{sDD}:{sDD+3}], 0 offen sc1"], [f"v_cmp_eq_u32 vcc, 0, v{vEp}"])
    o += [f"ds_write_b32 v{vM}, v{vEp} offset:{16*EPOCH}"]
    o += stamp(1)
    o += [f"s_setprio {OPT.get('xprio', 3)}", f"s_cmp_eq_u32 s{sZ}, 0", "!s_cbranch_scc1 L_xY"]
    o += [f"s_lshl_b32 s{sT0}, s{sHH}, 6", f"s_mul_i32 s{sT1}, s{sT0}, 2341", f"s_lshr_b32 s{sT1}, s{sT1}, 16",
          f"s_add_u32 s{sT0}, s{sT0}, 63", f"s_mul_i32 s{sT2}, s{sT0}, 2341", f"s_lshr_b32 s{sT2}, s{sT2}, 16",
          f"v_and_b32 v4, 3, v0", f"v_add_u32 v4, s{sT1}, v4", f"v_lshrrev_b32 v5, 2, v0",
          f"v_cmp_ge_u32 s[48:49], s{sT2}, v4", f"v_add_u32 v6, s{sRB}, v5", f"v_cmp_gt_u32 vcc, 16, v6",
          "s_and_b64 s[48:49], s[48:49], vcc", "s_and_b32 s48, s48, 0xfff", "s_mov_b32 s49, 0",
          f"s_cmp_eq_u32 s{sH}, 15", "s_cselect_b32 s48, 0, s48",
          "v_lshl_add_u32 v3, v6, 4, v4", "v_lshlrev_b32 v3, 5, v3",
          "v_mul_u32_u24 v4, 28, v4", "v_lshrrev_b32 v4, 6, v4", f"v_sub_u32 v4, s{sHH}, v4",
          "v_lshlrev_b32 v5, 1, v5", "v_sub_u32 v5, 4, v5", "v_add3_u32 v3, v3, v4, v5", "v_lshlrev_b32 v3, 2, v3",
          f"s_mul_i32 s50, s{sJ}, {FV-FK}", f"s_add_u32 s50, s50, {FK}",
          f"s_mul_i32 s44, s{sRB}, {4*28672}",
          f"s_cmp_eq_u32 s{sJ}, 0", "!s_cbranch_scc0 L_xZV"]
    o += [f"s_lshl_b32 s{sT0}, s{sHH}, 12", f"s_add_u32 s44, s44, s{sT0}"]
    o += spin_ev(R_K, 'all', HQ)
    o += [f"ds_read_b128 v[{64+4*i}:{64+4*i+3}], v{vL16} offset:{STK+1024*i}" for i in range(16)] + signal(F_K) + signal(F_K)
    for i in range(16):
        o += [f"buffer_store_dwordx4 v[{64+4*i}:{64+4*i+3}], v{vL16}, s[{sKD}:{sKD+3}], s44 offen offset:{1024*(i%4)} sc1"]
        if i % 4 == 3:
            o += ["s_add_u32 s44, s44, 28672"]
    o += ["s_branch L_xZn", "@reset", "L_xZV:"]
    o += [f"s_lshl_b32 s{sT0}, s{sHH}, 10", f"s_add_u32 s44, s44, s{sT0}", f"s_add_u32 s44, s44, {VG}", "s_add_u32 s45, s44, 14336",
          f"v_lshrrev_b32 v2, 5, v0", f"v_mul_u32_u24 v2, {7168-512}, v2", f"v_add_u32 v2, v2, v{vL16}"]
    o += spin_ev(R_V, 'all', HQ)
    o += [f"ds_read_b128 v[{64+4*i}:{64+4*i+3}], v{vL16} offset:{STV+1024*i}" for i in range(16)] + signal(F_K) + signal(F_K)
    if OPT.get('vafter', 1):
        o += spin_ev(X_PUB, 2, HQ)
    for i in range(16):
        j, s_ = (i % 4) // 2, i % 2
        o += [f"buffer_store_dwordx4 v[{64+4*i}:{64+4*i+3}], v2, s[{sKD}:{sKD+3}], s{44+s_} offen offset:{512*j} sc1"]
        if i % 4 == 3:
            o += ["s_add_u32 s44, s44, 28672", "s_add_u32 s45, s45, 28672"]
    o += ["@reset", "L_xZn:"] + signal(X_PUB) + stamp(2)
    Ln = lab('nn')
    o += ["s_cmp_eq_u32 s48, 0", f"!s_cbranch_scc1 {Ln}"]
    o += ["s_waitcnt vmcnt(0)", "s_mov_b64 exec, s[48:49]",
          f"buffer_store_dword v{vEp}, v3, s[{sWSD}:{sWSD+3}], s50 offen sc1", "s_mov_b64 exec, -1", f"!{Ln}:"] + stamp(3)
    o += ["s_branch L_xjoin", "@reset", "L_xY:"]
    o += fmap(t2, t1) + [f"v_lshrrev_b32 v{t1}, 5, v0", f"v_lshlrev_b32 v{t1}, 9, v{t1}", f"v_lshl_add_u32 v{t2}, v{t2}, 4, v{t1}"]
    o += [f"s_lshl_b32 s{sT0}, s{sJ}, 11", f"v_add_u32 v{t1}, s{sT0}, v{vL16}",
          f"s_add_u32 s{sT1}, s{sT0}, {STV}", f"v_add_u32 v{t2}, s{sT1}, v{t2}",
          f"v_lshrrev_b32 v2, 2, v0", f"v_lshlrev_b32 v2, 12, v2", f"v_and_b32 v3, 3, v0", f"v_lshl_add_u32 v2, v3, 9, v2",
          f"s_add_u32 s{sT0}, s{sT0}, {STV+448}", f"v_add_u32 v2, s{sT0}, v2"]
    o += [f"v_mov_b32 v{32+i}, 0x3f803f80" for i in range(4)]
    o += [f"s_lshl_b32 s{sT0}, s{sHH}, 1", f"s_add_u32 s{sT0}, s{sT0}, s{sJ}", f"s_lshl_b32 s{sT0}, s{sT0}, 4", f"s_add_u32 s{sT0}, s{sT0}, s{sRB}",
          f"s_lshl_b32 s44, s{sT0}, 13", f"s_add_u32 s44, s44, {KVP}", "s_add_u32 s45, s44, 4096",
          f"s_lshl_b32 s46, s{sT0}, 9", f"s_add_u32 s46, s46, {N1}"]
    o += spin_ev(R_V, 'all', HQ)
    o += ["s_mov_b64 exec, 0xffff", "ds_write_b128 v2, v[32:35]", "s_mov_b64 exec, -1"]
    o += [f"ds_read_b128 v[{96+4*i}:{96+4*i+3}], v{t2} offset:{4096*(i//2)+1024*(i%2)}" for i in range(8)] + signal(F_K)
    o += [f"v_mov_b32 v{33+2*i}, v{vEp}" for i in range(16)]
    o += spin_ev(R_K, 'all', HQ)
    o += [f"ds_read_b128 v[{64+4*i}:{64+4*i+3}], v{t1} offset:{STK+4096*(i//2)+1024*(i%2)}" for i in range(8)] + signal(F_K)
    o += stamp(2)
    o += [mfma(128, 64 + 4 * i, 96 + 4 * i, 128 if i else None) for i in range(8)]
    for i in range(8):
        o += [f"v_mov_b32 v{32+4*i}, v{128+2*i}", f"v_mov_b32 v{34+4*i}, v{129+2*i}",
              f"buffer_store_dwordx4 v[{32+4*i}:{35+4*i}], v{vL16}, s[{sWSD}:{sWSD+3}], s{44+i//4} offen offset:{1024*(i%4)} sc1"]
    o += notify(46, 24, vEp, 4)
    o += stamp(3)
    o += ["s_nop 1", "@reset", "L_xjoin:", f"s_setprio {OPT.get('hprio', 2)}"]
    if OPT.get('wopf', 1):
        Lp = lab('wopf')
        o += [f"s_cmp_eq_u32 s{sJ}, 0", f"!s_cbranch_scc0 {Lp}",
              f"s_lshr_b32 s{sT0}, s2, 3", f"s_mul_i32 s{sT0}, s{sT0}, {98*128}", f"v_lshl_add_u32 v24, v0, 7, s{sT0}",
              f"v_add_u32 v25, {49*128}, v24",
              "s_mov_b32 exec_hi, 0x1ffff"]
        for p in (sAO, sBO):
            o += [f"!global_load_dword v12, v24, s[{p}:{p+1}]", f"!global_load_dword v12, v25, s[{p}:{p+1}]"]
        o += ["s_mov_b64 exec, -1", f"!{Lp}:"]
    o += call("phi") + p3_setup() + [f"s_mov_b32 s{sOBd}, 0"]
    o += [f"s_cmp_eq_u32 s{sJ}, 1", "!s_cbranch_scc1 L_x1"]
    o += stamp(4)
    o += [f"s_cmp_ge_u32 s{sJ3}, 28", "!s_cbranch_scc1 L_xfin"]
    t0, t1, t2 = 24, 25, 26
    o += srd(sXD, sBO, 401408) + [f"s_mov_b32 s{sC7}, 7168",
          f"v_lshrrev_b32 v{t0}, 3, v0", f"v_mul_u32_u24 v{vWO}, 896, v{t0}",
          f"v_bfe_u32 v{t1}, v0, 2, 1", f"v_bfe_u32 v{t2}, v0, 4, 1", f"v_xor_b32 v{t1}, v{t1}, v{t2}",
          f"v_lshl_add_u32 v{vWO}, v{t1}, 6, v{vWO}", f"v_and_b32 v{t2}, 3, v0", f"v_lshl_add_u32 v{vWO}, v{t2}, 4, v{vWO}",
          f"s_lshl_b32 s{sT0}, s{sCT}, 7", f"v_add_u32 v{vWO}, s{sT0}, v{vWO}",
          f"v_mov_b32 v{vMl}, v{vMs}", f"s_mov_b32 s{sT0}, {LANDC}", f"v_writelane_b32 v{vMl}, s{sT0}, 0"]
    d7 = [f"!s_call_b64 s[{sRet}:{sRet+1}], L_sub_d7"]

    def xb(ptr, row0, lds, n):
        return [f"s_mov_b32 s{sXD}, s{ptr}", f"s_mov_b32 s{sXD+1}, s{ptr+1}", f"s_mov_b32 s{sOff}, {row0*896}",
                f"s_mov_b32 m0, {lds}"] + d7 * n
    o += spin_ev(F_K, 'hi', HQ, ge=2) + spin_ev(E_P3, 'all', HQ) + spin_ev(KVISS, 'lo', HQ)
    o += xb(sBO, 0, STG, 2) + xb(sBO, 224, STG + STGS, 2)
    if OPT.get('tailfirst', 1):
        o += xb(sAO, 168, WBB, 1) + xb(sAO, 224 + 168, WBB + WBBS, 1)
        o += ["s_waitcnt vmcnt(14)"] + land(ST_WA1) + land(ST_WA1)
    else:
        o += ["s_waitcnt vmcnt(0)"] + land(ST_WA1) + land(ST_WA1)
        o += xb(sAO, 168, WBB, 1) + xb(sAO, 224 + 168, WBB + WBBS, 1)
    o += call("r0")
    o += ["s_waitcnt vmcnt(0)"] + land(ST_WB)
    o += serve_ev(R1)
    o += xb(sBO, 112, STG, 2) + xb(sBO, 224 + 112, STG + STGS, 2)
    o += ["s_waitcnt vmcnt(0)"] + land(ST_WA2) + land(ST_WA2) + stamp(5)
    o += ["s_branch L_p3", "@reset", "L_x1:"]
    o += [f"v_lshlrev_b32 v{t0}, 3, v0",
          f"s_lshl_b32 s44, s{sH}, 17", f"s_lshl_b32 s{sT0}, s{sRB}, 9", f"s_add_u32 s44, s44, s{sT0}", f"s_add_u32 s44, s44, {KVP}",
          f"s_lshl_b32 s45, s{sH}, 13", f"s_add_u32 s45, s45, {KVT}", f"s_add_u32 s46, s45, s{sT0}", "s_add_u32 s47, s45, 4096"]

    def tagcheck():
        c = ["v_min3_u32 v25, v65, v67, v69", "v_max3_u32 v26, v65, v67, v69"]
        for j in range(3, 15, 2):
            c += [f"v_min3_u32 v25, v25, v{65+2*j}, v{67+2*j}", f"v_max3_u32 v26, v26, v{65+2*j}, v{67+2*j}"]
        c += [f"v_min3_u32 v25, v25, v95, v{vEp}", f"v_max3_u32 v26, v26, v95, v{vEp}", "v_cmp_ne_u32 vcc, v25, v26"]
        return c
    body = [f"s_mov_b32 s{sT1}, s44"]
    for j in range(16):
        body += [f"buffer_load_dwordx2 v[{64+2*j}:{65+2*j}], v{t0}, s[{sWSD}:{sWSD+3}], s{sT1} offen sc1",
                 f"s_add_u32 s{sT1}, s{sT1}, 8192"]
    o += [f"v_lshlrev_b32 v26, 9, v0", f"s_lshl_b32 s49, s{sH}, 6", f"s_lshr_b32 s{sT0}, s{sRB}, 2",
          f"s_add_u32 s49, s49, s{sT0}", "s_lshl_b32 s49, s49, 7", f"s_add_u32 s49, s49, {N1}"]
    if OPT.get('h1direct', 1):
        o += ["!" + x for x in body] + ["s_waitcnt vmcnt(0)"] + ["!" + x for x in tagcheck()] + ["!s_cbranch_vccz L_h1ok", "!v_lshlrev_b32 v26, 9, v0"]
    o += light_poll(25, 26, "s49", "0xffff", [f"v_cmp_ne_u32 vcc, v25, v{vEp}"])
    o += stamp(6, 'y')
    o += spin_vm(body, tagcheck())
    o += ["L_h1ok:"]
    for st in (1, 2, 4, 8):
        for j in range(0, 16, 2 * st):
            o.append(f"v_add_f32 v{64+2*j}, v{64+2*j}, v{64+2*(j+st)}")
    o += [f"buffer_store_dwordx2 v[64:65], v{t0}, s[{sWSD}:{sWSD+3}], s46 offen sc1",
          f"s_add_u32 s49, s49, {N2-N1}", f"s_lshl_b32 s46, s{sH}, 4", f"s_add_u32 s46, s46, s{sRB}",
          "s_lshl_b32 s46, s46, 9", f"s_add_u32 s46, s46, {N2}"] + notify(46, 25, vEp, 4)
    o += stamp(4)
    o += [f"s_mov_b32 s48, 1"]
    r0hook = [f"ds_read_b32 v{HQ}, v{vM} offset:{256+4*ST_WA1}", "s_waitcnt lgkmcnt(0)", f"v_cmp_lt_u32 vcc, s48, v{HQ}",
              "s_cbranch_vccz L_x1a"] + call("r0") + ["s_mov_b32 s48, 2", "L_x1a:"]
    body = [f"buffer_load_dwordx4 v[{64+4*j}:{67+4*j}], v{vL16}, s[{sWSD}:{sWSD+3}], s{45+2*(j//4)} offen offset:{1024*(j%4)} sc1" for j in range(8)]
    if OPT.get('x1block', 1):
        o += [f"s_cmp_ge_u32 s{sJ3}, 28", "!s_cbranch_scc1 L_x1b"] + wait_land(ST_WA1, HQ, inline=True) + call("r0") + ["s_mov_b32 s48, 2", "L_x1b:"]
    o += stamp(7, 'y')
    o += ["v_lshlrev_b32 v26, 9, v0"]
    o += light_poll(25, 26, "s49", "0xffff", [f"v_cmp_ne_u32 vcc, v25, v{vEp}"], hook=r0hook)
    o += stamp(8, 'y')
    o += spin_vm(body, tagcheck())
    o += stamp(9, 'y')
    o += [f"v_cvt_pk_bf16_f32 v{96+p}, v{64+4*p}, v{66+4*p}" for p in range(8)]
    o += [f"v_add_u32 v24, {KVF}, v{vL16}",
          f"ds_write_b128 v24, v[96:99]", f"ds_write_b128 v24, v[100:103] offset:1024"] + signal(KVRDY)
    o += call("ob") + [f"s_mov_b32 s{sOBd}, 1"]
    o += stamp(5)
    o += [f"s_cmp_ge_u32 s{sJ3}, 28", "!s_cbranch_scc1 L_xend", "s_cmp_eq_u32 s48, 2", "!s_cbranch_scc1 L_p3"]
    o += wait_land(ST_WA1, HQ, inline=True) + call("r0")
    o += ["s_branch L_p3", "@reset", "L_xfin:"] + call("ob") + ["L_xend:"] + stamp_flush(20, 0) + ["s_endpgm"]
    return o


HEADER = f"""; Fused sliding-window attention + linear attention + gated output projection (gfx950).
; One persistent launch: 256 workgroups x 8 waves (4 compute, 2 loader, 2 auxiliary).
; @launch grid=(256,1,1) block=(512,1,1) lds=163840
.amdgcn_target "amdgcn-amd-amdhsa--gfx950"
.text
.globl {NAME}_kernel
.p2align 8
.type {NAME}_kernel,@function
{NAME}_kernel:
"""
FOOTER = f"""
.section .rodata,"a"
.p2align 6
.amdhsa_kernel {NAME}_kernel
  .amdhsa_next_free_vgpr 256
  .amdhsa_next_free_sgpr 102
  .amdhsa_accum_offset 256
  .amdhsa_group_segment_fixed_size 0
  .amdhsa_kernarg_size 80
  .amdhsa_user_sgpr_count 2
  .amdhsa_user_sgpr_kernarg_segment_ptr 1
  .amdhsa_system_sgpr_workgroup_id_x 1
.end_amdhsa_kernel
"""


def main():
    body = prologue()
    SLEEP[0] = OPT.get('sleep', 1)
    l = l_wave()
    x = x_wave()
    p3 = phase3()
    sub = subroutines()
    SLEEP[0] = 0
    c = c_wave()
    rep = []
    lines = finalize(body + l + x + p3 + sub + c, rep)
    lines += ['    ' + s if not s.endswith(':') else s for s in slow]
    lines += ["L_abort:", "L_exit:", "    s_endpgm", "L_end:"]
    open(sys.argv[1], 'w').write(HEADER + "\n".join(lines) + FOOTER)
    big = [r for r in rep if r[0] >= 3]
    print("nops inserted:", len(rep), "total states", sum(r[0] for r in rep))
    for r in big:
        print("   ", r)


main()
```

```python
import sys, math, struct
from asmlib import finalize, merge

NAME = "gated_mix__sliding_block__linear_attn_block__prompt"
OPT = dict(stamps=0, l1=14, l3=8, prefetch=2, touch=0, refetch=0, wopf=0)
for a in sys.argv[2:]:
    k, v = a.split('=')
    OPT[k] = int(v)


def fhex(x):
    return '0x%08x' % struct.unpack('<I', struct.pack('<f', x))[0]


LOG2E = math.log2(math.e)
KSCALE = LOG2E * 28 ** -0.5
SPIN = 60000

def XR(c): return 16384 * (c % 4)
def WR(c): return 65536 + 16384 * (c % 4)
QLOC = [131072 + 4096 * c for c in range(6)] + [114688] + [114688 + 4096 * c for c in (1, 2, 3)] + [49152 + 4096 * c for c in range(4)]
QBB = 114688
KL = 16384
VL = 131072
STQ, STV, STK = 0, 16384, 32768
STG, STGS = 40960, 67584
WBA, WBAS = 65536, 21504
WBB, WBBS = 55296, 67584
MISC = 158720
LANDC = MISC + 256
JUNK = MISC + 512
GL = MISC + 1536
KVF = MISC + 2560
E_PA, X_PUB, E_P2, E_P3, R_K, R_V, R_Q, E_OA, F_K, E_P3A, R1, GRDY, KVRDY, EPOCH, KVISS = range(15)
ST_K, ST_V, ST_WA1, ST_WB, ST_WA2 = 21, 22, 23, 24, 25

KG, VG, OA, OB, KVP, KVT = 0x000000, 0x200000, 0x400000, 0x600000, 0x800000, 0xA00000
FK, FV, N1, N2, NA, NB, EPW = 0xA40000, 0xA48000, 0xA60000, 0xA80000, 0xAA0000, 0xAC0000, 0xA50000
STAMPS = 0xB00000
WS_SIZE = 0x1000000

sX, sAW, sAO, sBW, sBO, sGW, sOUT, sDBG, sWS = 4, 6, 8, 12, 14, 16, 18, 20, 22
sWave, sH, sRB, sPar, sHH = 24, 25, 26, 27, 28
sT0, sT1, sT2, sTO = 29, 30, 31, 3
sZ = 74
sWSD = 32
sStamp = 76
sJ3, sCT, sTB = 100, 10, 11
sW4 = 101

_lab = [0]
slow = []
ROLE = ['P']
SLEEP = [0]
vL16, vM, vOne, vF, vMs = 1, 10, 11, 12, 13
vFq = 252


def lab(p):
    _lab[0] += 1
    return f"L_{p}_{_lab[0]}"


def srd(d, ptr, size, add=0):
    o = []
    if add:
        o += [f"s_add_u32 s{d}, s{ptr}, {add}", f"s_addc_u32 s{d+1}, s{ptr+1}, 0"]
    else:
        o += [f"s_mov_b32 s{d}, s{ptr}", f"s_mov_b32 s{d+1}, s{ptr+1}"]
    o += [f"s_mov_b32 s{d+2}, {size}", f"s_mov_b32 s{d+3}, 0x20000"]
    return o


def stamp(i, kind=''):
    if not OPT['stamps']:
        return []
    alt = OPT.get('alt', 0)
    if kind == 'z':
        return [f"!s_memtime s[{sStamp+2*i}:{sStamp+2*i+1}]"] if alt == 5 else []
    if kind == 's':
        return [f"!s_memtime s[{sStamp+2*i}:{sStamp+2*i+1}]"] if alt == 9 else []
    if alt == 9 and 4 <= i <= 8:
        return []
    if ROLE[0] == 'L' and (alt == 1) != (kind == 'f'):
        return []
    if kind == 'z':
        return [f"!s_memtime s[{sStamp+2*i}:{sStamp+2*i+1}]"] if alt == 5 else []
    if ROLE[0] == 'H' and alt in (1, 3, 4, 5):
        return []
    if kind == 'y' and alt != 4:
        return []
    if kind == 'x' and alt != 3:
        return []
    if ROLE[0] == 'C' and (alt == 2) != (kind == 'f'):
        return []
    return [f"!s_memtime s[{sStamp+2*i}:{sStamp+2*i+1}]"]


def stamp_flush(vt, vlane):
    if not OPT['stamps'] or 'pw' in OPT:
        return []
    o = ["s_mov_b64 exec, -1", "s_waitcnt lgkmcnt(0)", f"v_mov_b32 v{vt}, 0"]
    for i in range(12):
        o.append(f"v_writelane_b32 v{vt}, s{sStamp+2*i}, {i}")
    o += [f"s_lshl_b32 s{sT0}, s2, 3", f"s_add_u32 s{sT0}, s{sT0}, s{sWave}", f"s_lshl_b32 s{sT0}, s{sT0}, 8",
          f"s_add_u32 s{sT0}, s{sT0}, {STAMPS}",
          f"v_lshlrev_b32 v{vt+1}, 2, v{vlane}",
          f"buffer_store_dword v{vt}, v{vt+1}, s[{sWSD}:{sWSD+3}], s{sT0} offen"]
    return o


def _tmo():
    return [f"s_add_u32 s{sTO}, s{sTO}, 1", f"s_cmp_gt_u32 s{sTO}, {SPIN}", "s_cbranch_scc1 L_abort"]


def _ev_read(ev, which, q):
    if which == 'all':
        return [f"ds_read_b128 v[{q}:{q+3}], v{vM} offset:{16*ev}"], \
               [f"v_min3_u32 v{q}, v{q}, v{q+1}, v{q+2}", f"v_min_u32 v{q}, v{q}, v{q+3}"]
    if which in ('hi', 'lo'):
        return [f"ds_read_b64 v[{q}:{q+1}], v{vM} offset:{16*ev + (8 if which == 'hi' else 0)}"], \
               [f"v_min_u32 v{q}, v{q}, v{q+1}"]
    if which == 'own':
        return [f"ds_read_b32 v{q}, v{vOwn} offset:{16*ev}"], []
    return [f"ds_read_b32 v{q}, v{vM} offset:{16*ev + 4*which}"], []


def spin_ev(ev, which, q=None, ge=1):
    q = vFq if q is None else q
    L, L2 = lab('sp'), lab('spx')
    rd, red = _ev_read(ev, which, q)
    o = ["s_waitcnt lgkmcnt(0)", f"!s_mov_b32 s{sTO}, 0", f"!{L}:"]
    o += ["!" + x for x in rd + _tmo() + ["s_waitcnt lgkmcnt(0)"] + red]
    if SLEEP[0]:
        o += [f"!v_cmp_le_u32 vcc, {ge}, v{q}", f"!s_cbranch_vccnz {L2}", f"!!s_sleep {SLEEP[0]}", f"!!s_branch {L}", f"!{L2}:"]
    else:
        o += [f"!v_cmp_gt_u32 vcc, {ge}, v{q}", f"!s_cbranch_vccnz {L}"]
    return o


def check_ev(ev, which, q):
    Ls, Lb = lab('slow'), lab('back')
    rd, red = _ev_read(ev, which, q)
    slow.extend([f"{Ls}:", f"s_mov_b32 s{sTO}, 0", f"{Ls}_s:"] + rd + _tmo() + ["s_waitcnt lgkmcnt(0)"] + red +
                [f"v_cmp_eq_u32 vcc, 0, v{q}", f"s_cbranch_vccnz {Ls}_s", f"s_branch {Lb}"])
    return rd, red + [f"v_cmp_eq_u32 vcc, 0, v{q}", f"!s_cbranch_vccnz {Ls}", f"!{Lb}:"]


def wait_land(st, q=None, inline=False, n=2):
    q = vFq if q is None else q
    rd = f"ds_read_b32 v{q}, v{vM} offset:{256 + 4*st}"
    if inline:
        L, L2 = lab('wl'), lab('wlx')
        o = ["s_waitcnt lgkmcnt(0)", f"!s_mov_b32 s{sTO}, 0", f"!{L}:"] + ["!" + x for x in [rd] + _tmo() + ["s_waitcnt lgkmcnt(0)"]]
        if SLEEP[0]:
            return o + [f"!v_cmp_eq_u32 vcc, {n}, v{q}", f"!s_cbranch_vccnz {L2}", f"!!s_sleep {SLEEP[0]}", f"!!s_branch {L}", f"!{L2}:"]
        return o + [f"!v_cmp_ne_u32 vcc, {n}, v{q}", f"!s_cbranch_vccnz {L}"]
    Ls, Lb = lab('slow'), lab('back')
    slow.extend([f"{Ls}:", f"s_mov_b32 s{sTO}, 0", f"{Ls}_s:", rd] + _tmo() +
                ["s_waitcnt lgkmcnt(0)", f"v_cmp_ne_u32 vcc, {n}, v{q}", f"s_cbranch_vccnz {Ls}_s", f"s_branch {Lb}"])
    return [rd], [f"v_cmp_ne_u32 vcc, {n}, v{q}", f"!s_cbranch_vccnz {Ls}", f"!{Lb}:"]


vMl = 12


def land(st):
    return [f"ds_add_u32 v{vMl}, v{vOne} offset:{4*st}"]


def signal(ev):
    return [f"ds_add_u32 v{vMs}, v{vOne} offset:{16*ev}"]


def mfma(d, a, b, c):
    cs = f"v[{c}:{c+15}]" if isinstance(c, int) and c >= 0 else "0"
    return f"v_mfma_f32_32x32x16_bf16 v[{d}:{d+15}], v[{a}:{a+3}], v[{b}:{b+3}], {cs}"


def tr(d, a, off, tag=None):
    return f"ds_read_b64_tr_b16 v[{d}:{d+1}], v{a} offset:{off}" + (f" ;@tag={tag}" if tag else "")


vOwn = 9


def common_setup():
    return [f"v_lshlrev_b32 v{vL16}, 4, v0", f"v_mov_b32 v{vM}, {MISC}", f"v_mov_b32 v{vOne}, 1",
            f"s_and_b32 s{sW4}, s{sWave}, 3",
            f"v_lshlrev_b32 v{vMs}, 2, v0", f"v_add_u32 v{vMs}, {JUNK}, v{vMs}",
            f"s_lshl_b32 s{sT0}, s{sW4}, 2", f"s_add_u32 s{sT0}, s{sT0}, {MISC}",
            f"v_writelane_b32 v{vMs}, s{sT0}, 0"]


def prologue():
    o = []
    o += ["s_load_dwordx4 s[4:7], s[0:1], 0", "s_load_dwordx8 s[12:19], s[0:1], 32",
          "s_load_dwordx4 s[20:23], s[0:1], 64", "s_load_dwordx2 s[8:9], s[0:1], 16"]
    o += stamp(0)
    if OPT.get('until'):
        o += ["!s_memtime s[98:99]"]
    o += ["s_cmp_ge_u32 s2, 256", "!s_cbranch_scc1 L_exit",
          "v_lshrrev_b32 v1, 6, v0", "v_and_b32 v0, 63, v0",
          f"v_readfirstlane_b32 s{sWave}, v1"] + code_prefetch() + [
          f"s_and_b32 s{sT0}, s2, 7", f"s_lshr_b32 s{sT1}, s2, 3",
          f"s_and_b32 s{sH}, s{sT0}, 1", f"s_lshl_b32 s{sH}, s{sH}, 3",
          f"s_and_b32 s{sT2}, s{sT1}, 7", f"s_add_u32 s{sH}, s{sH}, s{sT2}",
          f"s_lshr_b32 s{sRB}, s{sT0}, 1", f"s_lshl_b32 s{sRB}, s{sRB}, 2",
          f"s_lshr_b32 s{sT2}, s{sT1}, 3", f"s_add_u32 s{sRB}, s{sRB}, s{sT2}",
          f"s_and_b32 s{sPar}, s{sH}, 1", f"s_lshr_b32 s{sHH}, s{sH}, 1",
          f"s_and_b32 s{sT0}, s2, 1", f"s_xor_b32 s{sZ}, s{sPar}, s{sT0}", f"s_xor_b32 s{sZ}, s{sZ}, 1"]
    o += common_setup()
    o += [f"s_cmp_lt_u32 s{sWave}, 4", "!s_cbranch_scc1 L_cwave",
          f"s_cmp_ge_u32 s{sWave}, 6", "!s_cbranch_scc1 L_xwave"]
    return o


vXA, vW0, vW1, vQB, vQA, vLow, vSt = 2, 6, 7, 8, 9, 14, 15
PK = 16
WB = 32
MK = 56
accA, accB = 64, 96
XF = 128
QF = 240
vMA, vMB = 248, 249
TMP = 250
sMask = 40
sL2E, sEps, sKS, sTile, sSt = 72, 73, 39, 75, 36


def c_setup():
    o = []
    lo, hh, t0, t1, t2 = 20, 21, 22, 23, 24
    o += [f"v_and_b32 v{lo}, 31, v0", f"v_lshrrev_b32 v{hh}, 5, v0",
          f"s_lshl_b32 s{sTile}, s{sRB}, 2", f"s_add_u32 s{sTile}, s{sTile}, s{sWave}",
          f"s_mov_b32 s{sL2E}, {fhex(LOG2E)}", f"s_mov_b32 s{sEps}, {fhex(1e-6)}", f"s_mov_b32 s{sKS}, {fhex(KSCALE)}"]
    o += [f"v_bfe_u32 v{t0}, v0, 1, 3", f"v_xor_b32 v{t0}, v{t0}, v{hh}",
          f"s_lshl_b32 s{sT0}, s{sWave}, 12",
          f"v_add_u32 v{vSt}, s{sT0}, v{vL16}",
          f"v_lshlrev_b32 v{t1}, 7, v{lo}", f"v_add_u32 v{t1}, s{sT0}, v{t1}"]
    for s in range(4):
        o += [f"v_xor_b32 v{t2}, {2*s}, v{t0}", f"v_lshl_add_u32 v{vXA+s}, v{t2}, 4, v{t1}"]
    r, cg, row = 25, 26, 27
    o += [f"v_bfe_u32 v{r}, v0, 2, 2", f"v_bfe_u32 v{t0}, v0, 4, 1", f"v_and_b32 v{cg}, 3, v0",
          f"v_lshl_add_u32 v{cg}, v{t0}, 2, v{cg}",
          f"v_lshl_add_u32 v{row}, v{hh}, 3, v{r}"]
    o += [f"v_lshrrev_b32 v{t0}, 1, v{r}",
          f"v_lshlrev_b32 v{t1}, 7, v{row}", f"v_add_u32 v{t1}, 65536, v{t1}",
          f"v_lshl_add_u32 v{vW0}, v{t0}, 6, v{t1}",
          f"v_xor_b32 v{vW1}, 64, v{vW0}",
          f"v_lshl_add_u32 v{vW0}, v{cg}, 3, v{vW0}",
          f"s_xor_b32 s{sT0}, s{sZ}, 1",
          f"v_add_u32 v{t2}, s{sT0}, v{cg}", f"v_and_b32 v{t2}, 7, v{t2}",
          f"v_lshl_add_u32 v{vW1}, v{t2}, 3, v{vW1}"]
    o += [f"v_lshlrev_b32 v{t1}, 6, v{row}",
          f"v_add_u32 v{t2}, s{sPar}, v{cg}", f"v_and_b32 v{t2}, 7, v{t2}",
          f"v_lshl_add_u32 v{vQB}, v{t2}, 3, v{t1}", f"v_add_u32 v{vQB}, {QBB}, v{vQB}",
          f"v_and_b32 v{t0}, 1, v{cg}", f"v_lshlrev_b32 v{t0}, 1, v{t0}",
          f"v_bfe_u32 v{t2}, v{cg}, 1, 1", f"v_or_b32 v{t0}, v{t0}, v{t2}",
          f"v_and_b32 v{t2}, 4, v{cg}", f"v_or_b32 v{t0}, v{t0}, v{t2}",
          f"v_lshl_add_u32 v{vQA}, v{t0}, 3, v{t1}", f"v_add_u32 v{vQA}, {QBB}, v{vQA}"]
    o += [f"v_add_u32 v{vLow}, -1, v{hh}",
          f"s_sub_u32 s{sT0}, s{sPar}, 1",
          f"v_not_b32 v{t0}, v{vLow}",
          f"v_or_b32 v{vMA}, s{sT0}, v{t0}",
          f"s_not_b32 s{sT0}, s{sT0}",
          f"v_or_b32 v{vMB}, s{sT0}, v{vLow}"]
    o += [f"v_lshlrev_b32 v{t0}, 2, v{hh}", f"v_sub_u32 v{t0}, v{lo}, v{t0}"]
    for rr in range(16):
        b = 8 * (rr >> 2) + (rr & 3)
        o.append(f"v_cmp_le_i32 s[{sMask+2*rr}:{sMask+2*rr+1}], {b}, v{t0}")
    o += [f"v_mov_b32 v{t1}, 0xffff", f"v_mov_b32 v{t2}, 0xffff0000"]
    for p in range(8):
        o += [f"v_cndmask_b32 v{MK+p}, 0, v{t1}, s[{sMask+4*p}:{sMask+4*p+1}]",
              f"v_cndmask_b32 v{t0}, 0, v{t2}, s[{sMask+4*p+2}:{sMask+4*p+3}]",
              f"v_or_b32 v{MK+p}, v{MK+p}, v{t0}"]
    return o


def gemm_frags(isY):
    fr = []
    for k in range(28):
        c, s = divmod(k, 4)
        order = [(0, 0), (0, 1), (1, 0), (1, 1)] if k < 27 else [(1, 0), (1, 1), (0, 0), (0, 1)]
        for i, (p, j) in enumerate(order):
            fr.append(dict(step=c, addr=(vW0, vW1)[j], off=XR(c) + 8192 * p + s * 2048, du=512, k=k,
                           acc=(accA, accB)[p] + 16 * j, wfirst=(p == 0 and not isY), pre=[],
                           xread=(f"ds_read_b128 v[{XF+4*k}:{XF+4*k+3}], v{vXA+s} offset:{XR(c)}" if i == 0 else None)))
    for q, a in enumerate((vQB, vQA)):
        for k in range(28):
            c, s = divmod(k, 4)
            loc = QLOC[7 * q + c]
            base = QBB if loc >= QBB else 49152
            pre = [f"v_subrev_u32 v{vQA}, {QBB-49152}, v{vQA}"] if (q, k) == (1, 12) else []
            fr.append(dict(step=7 + 7 * q + c, addr=a, off=loc - base + s * 1024, du=256, k=k,
                           acc=accB + 16 * q, wfirst=True, pre=pre, xread=None))
    return fr


def need_step(st):
    if st < 7:
        return st
    base = 7 if st < 14 else 14
    return base + {0: 0, 1: 2, 2: 2, 3: 4, 4: 4, 5: 6, 6: 6}[st - base]


def gemm_slots(isY):
    fr = gemm_frags(isY)
    N = len(fr)
    D = 5
    slots = []
    issued = 0
    checked = set()
    early = {}
    for n in range(N):
        cur = []
        f = fr[n]
        lim = 3 if n == 0 else min(n + D, N - 1)
        while issued <= lim:
            g = fr[issued]
            st = need_step(g['step'])
            if st not in checked:
                checked.add(st)
                if st == 0:
                    cur += stamp(8, 's') + wait_land(st, inline=True) + stamp(1)
                else:
                    cur += early[st]
                if st == 5:
                    cur += ["s_waitcnt vmcnt(0)"]
            b = WB + 4 * (issued % 6)
            cur += g['pre']
            if g['xread']:
                cur.append(g['xread'])
            cur += [tr(b, g['addr'], g['off']), tr(b + 2, g['addr'], g['off'] + g['du'], tag=f"f{issued}")]
            issued += 1
            last_of_step = issued == N or fr[issued]['step'] != g['step']
            if last_of_step:
                ev = {0: E_PA, 1: E_PA, 2: E_PA, 3: E_PA, 6: E_P2, 13: E_P3A, 20: E_P3}.get(g['step'])
                if ev is not None:
                    cur += signal(ev)
        if issued + 1 < N:
            st = need_step(fr[issued + 1]['step'])
            if st > 0 and st not in early:
                rd, early[st] = wait_land(st, q=vFq + 2)
                cur += rd
        if n % 2 == 0:
            cur.append(f"@wait_ds f{n+1}")
        b = WB + 4 * (n % 6)
        x = XF + 4 * f['k']
        A, B = (b, x) if f['wfirst'] else (x, b)
        cur.append(mfma(f['acc'], A, B, f['acc'] if f['k'] else None))
        slots.append(cur)
    if OPT.get('alt') == 2:
        for i in range(11):
            n = OPT['cst'] + i * OPT.get('cstep', 4)
            if n < len(slots):
                slots[n] = stamp(i + 1, 'f') + slots[n]
    return slots


def phi_pair(a, b, ta, tb, dst, l2e, eps):
    return [f"v_mul_f32 v{ta}, s{l2e}, v{a}", f"v_mul_f32 v{tb}, s{l2e}, v{b}",
            f"v_exp_f32_e64 v{ta}, v{ta} clamp", f"v_exp_f32_e64 v{tb}, v{tb} clamp",
            f"v_max_f32 v{a}, 0, v{a}", f"v_max_f32 v{b}, 0, v{b}",
            f"v_add_f32 v{a}, v{a}, v{ta}", f"v_add_f32 v{b}, v{b}, v{tb}",
            f"v_add_f32 v{a}, s{eps}, v{a}", f"v_add_f32 v{b}, s{eps}, v{b}",
            f"v_cvt_pk_bf16_f32 v{dst}, v{a}, v{b}"]


def c_gemm(isY):
    slots = gemm_slots(isY)
    pa, p3a, p3b = slots[:112], slots[112:140], slots[140:168]
    o = []
    for s in pa:
        o += s
    o += stamp(2)
    wr = lambda d, i, base: f"ds_write_b128 v{vSt}, v[{d}:{d+3}] offset:{base + 1024*i}"
    vc = lambda j: [f"v_cvt_pk_bf16_f32 v{PK+8*j+i}, v{accB+16*j+2*i}, v{accB+16*j+2*i+1}" for i in range(8)]
    vw = [wr(PK + 4 * i, i, STV) for i in range(4)]
    o += vc(0)
    if not isY:
        f = []
        for j in range(2):
            a = accA + 16 * j
            for i in range(8):
                f += [f"v_mul_f32 v{a+2*i}, s{sKS}, v{a+2*i}", f"v_mul_f32 v{a+2*i+1}, s{sKS}, v{a+2*i+1}",
                      f"v_cvt_pk_bf16_f32 v{a+i}, v{a+2*i}, v{a+2*i+1}"]
            f += [f"v_permlane32_swap_b32 v{a+x}, v{a+x+2}" for x in (0, 1, 4, 5)]
            f += [wr(a + 4 * e, 2 * j + e, STK) for e in range(2)]
        f += signal(R_K) + vc(1) + vw + signal(R_V)
        per = OPT.get('kper', 40)
    else:
        f = vc(1) + vw + signal(R_V)
        for p in range(16):
            a = accA + 16 * (p // 8)
            i = p % 8
            f += phi_pair(a + 2 * i, a + 2 * i + 1, TMP, TMP + 1, a + i, sL2E, sEps)
            if p % 4 == 3:
                f.append(wr(a + i - 3, p // 4, STK))
        f += signal(R_K)
        per = OPT.get('yper', 40)
    o += merge(p3a, f, start=0, per=per)
    o += stamp(4)
    f = [f"v_cvt_pk_bf16_f32 v{PK+i}, v{accB+2*i}, v{accB+2*i+1}" for i in range(8)]
    f += [wr(PK, 0, STQ), wr(PK + 4, 1, STQ)] + signal(R_Q)
    o += merge(p3b, f, start=4, per=2)
    o += stamp(5)
    a = accB + 16
    o += [f"v_cvt_pk_bf16_f32 v{QF+i}, v{a+2*i}, v{a+2*i+1}" for i in range(8)]
    o += [f"v_and_b32 v{QF}, v{QF}, v{vMA}", f"v_and_b32 v{QF+1}, v{QF+1}, v{vMA}",
          f"v_and_b32 v{QF+6}, v{QF+6}, v{vMB}", f"v_and_b32 v{QF+7}, v{QF+7}, v{vMB}"]
    return o


CM, SA, SB, SC, SF, SX = 16, 32, 64, 80, 96, 112
KFR = 128
PA, PB, PF = 200, 208, 216
OACC = 96
VF = (224, 232)
vKA, vVA, vMx, vG = 2, 3, 4, 5
NEG = '0xf149f2ca'


def attention(guard):
    sI0 = sSt
    o = []

    def kread(i):
        b = KFR + 8 * i
        return [f"ds_read_b128 v[{b+4*s}:{b+4*s+3}], v{vKA} offset:{2048*i+1024*s} ;@tag=k{i}" for s in range(2)]

    def vread(i, buf):
        return [f"ds_read_b128 v[{buf+4*s}:{buf+4*s+3}], v{vVA} offset:{2048*i+1024*s} ;@tag=v{i}" for s in range(2)]

    def qk(d, i, c):
        b = KFR + 8 * i
        return [mfma(d, b, QF, c), mfma(d, b + 4, QF + 4, d)]

    def setc(i, src):
        L, Lb = lab('g'), lab('gb')
        slow.extend([f"{L}:", "s_nop 7"] + [f"v_mov_b32 v{CM+r}, {src}" for r in range(16)] + [f"s_branch {Lb}"])
        return [f"s_cmp_eq_u32 s{sI0}, {i}", f"!s_cbranch_scc1 {L}", f"!{Lb}:"]

    def maxes(s, first):
        m = []
        if first:
            m.append(f"v_max3_f32 v{vMx}, v{s}, v{s+1}, v{s+2}")
            rest = list(range(3, 16))
        else:
            rest = list(range(16))
        while rest:
            if len(rest) >= 2:
                m.append(f"v_max3_f32 v{vMx}, v{vMx}, v{s+rest[0]}, v{s+rest[1]}")
                rest = rest[2:]
            else:
                m.append(f"v_max_f32 v{vMx}, v{vMx}, v{s+rest[0]}")
                rest = []
        return m

    C1 = CM if guard else None
    if guard:
        o += [f"v_mov_b32 v{CM+r}, {NEG}" for r in range(16)]
    o += wait_land(ST_K, inline=True)
    o += stamp(6)
    order = [0, 1, 2, 3, 4, 5, 6, 7, 8] if guard else [0, 8, 1, 2, 3, 4, 5, 6, 7]
    b1 = {0: SF, 8: SC}
    bufs = {}
    for i in range(1, 8):
        b1[i] = (SA, SB, SX)[i % 3]
        bufs[i] = (SA, SB)[i % 2]
    mrg = [f"v_cndmask_b32 v{SC+r}, v{SF+r}, v{SC+r}, s[{sMask+2*r}:{sMask+2*r+1}]" for r in range(16)]
    work = {}
    for i in range(1, 8):
        work[i] = maxes(b1[i], first=(guard and i == 1))
    work[8] = mrg + maxes(SC, first=not guard)
    work[0] = []
    o += kread(order[0]) + kread(order[1]) + kread(order[2])
    q = []
    for n, i in enumerate(order):
        if guard:
            o += setc(i, "0")
        m = qk(b1[i], i, C1)
        nxt = kread(order[n + 3]) if n + 3 < 9 else []
        take = 4 if len(q) <= 12 else 6
        o += [f"@wait_ds k{i}", m[0]] + q[:take] + [m[1]] + nxt
        q = q[take:]
        if n >= 1:
            q = q + work[order[n - 1]]
        must = len(q) - len(work[order[n - 1]]) if n >= 1 else 0
        take = max(must, 4 if len(q) <= 12 else 6)
        o += q[:take]
        q = q[take:]
    vrd, vchk = wait_land(ST_V)
    o += vrd + q + work[order[-1]][:4] + vchk
    o += vread(0, VF[0]) + vread(8, VF[1])
    o += work[order[-1]][4:]
    t = TMP
    o += [f"v_mov_b32 v{t}, v{vMx}", f"v_permlane32_swap_b32 v{t}, v{vMx}",
          f"v_max_f32 v{vMx}, v{vMx}, v{t}", f"v_sub_f32 v{vMx}, 0, v{vMx}"]
    o += stamp(7)
    if guard:
        o += [f"v_mov_b32 v{CM+r}, {NEG}" for r in range(16)]
        o += setc(1, f"v{vMx}")
    else:
        o += [f"v_mov_b32 v{CM+r}, v{vMx}" for r in range(16)]

    def expcvt(s, p, sub):
        e = []
        for r in range(16):
            if sub:
                e.append(f"v_add_f32 v{s+r}, v{s+r}, v{vMx}")
        for r in range(16):
            e.append(f"v_exp_f32 v{s+r}, v{s+r}")
            if r % 2 == 1 and r >= 3:
                e.append(f"v_cvt_pk_bf16_f32 v{p+(r-3)//2}, v{s+r-3}, v{s+r-2}")
        e.append(f"v_cvt_pk_bf16_f32 v{p+7}, v{s+14}, v{s+15}")
        return e

    def spread(mf, va):
        r = []
        n = len(mf)
        k = 0
        for idx, g in enumerate(mf):
            r += g
            want = (len(va) * (idx + 1)) // n - k
            r += va[k:k + want]
            k += want
        return r

    ev = expcvt(SC, PA, True)
    ev += [x for p in range(8) for x in (f"v_and_b32 v{PB+p}, v{PA+p}, v{MK+p}", f"v_xor_b32 v{PF+p}, v{PA+p}, v{PB+p}")]
    q1 = qk(bufs[1], 1, CM)
    o += spread([[q1[0]], [q1[1]]], ev)
    prev_pv = [["@wait_ds v8", mfma(OACC, VF[0], PF, None)], [mfma(OACC, VF[0] + 4, PF + 4, OACC)] + vread(1, VF[0]),
               [mfma(OACC, VF[1], PB, OACC)], [mfma(OACC, VF[1] + 4, PB + 4, OACC)] + vread(2, VF[1])]
    gearly, glate = check_ev(GRDY, 'own', vG)
    for i in range(1, 8):
        P = (PB, PA)[i % 2]
        seq = []
        if i + 1 <= 7:
            if guard:
                o += setc(i + 1, f"v{vMx}")
            nq = qk(bufs[i + 1], i + 1, CM)
            seq += [[nq[0]], [nq[1]]]
        seq += prev_pv
        if i == 6:
            seq[-1] = seq[-1] + gearly
        if i == 7:
            seq[0] = glate + [f"ds_read_b32 v{vG}, v{vGA}", f"ds_read_b32 v{vEc}, v{vM} offset:{16*EPOCH}"] + seq[0]
        o += spread(seq, expcvt(bufs[i], P, False))
        vb = VF[(i + 1) % 2]
        prev_pv = [[f"@wait_ds v{i}", mfma(OACC, vb, P, OACC)],
                   [mfma(OACC, vb + 4, P + 4, OACC)] + (vread(i + 2, vb) if i + 2 <= 7 else [])]
    o += prev_pv[0] + prev_pv[1]
    return o


vGA, vEc = 8, 6


def finish_o(A, D, vscale, t, u, soff, vtag, snot, eps=None):
    o = [f"v_mov_b32 v{t}, v{A+15}", f"v_mov_b32 v{u}, v{A+15}", f"v_permlane32_swap_b32 v{t}, v{u}"]
    if eps is not None:
        o += [f"v_add_f32 v{u}, s{eps}, v{u}"]
    o += [f"v_rcp_f32 v{u}, v{u}", f"v_mov_b32 v{t}, 0xffff", f"v_mul_f32 v{u}, v{u}, v{vscale}"]
    for p in range(8):
        o += [f"v_mul_f32 v{A+2*p}, v{A+2*p}, v{u}"]
        if p % 4 != 3:
            o += [f"v_mul_f32 v{A+2*p+1}, v{A+2*p+1}, v{u}"]
        o += [f"v_cvt_pk_bf16_f32 v{D+p}, v{A+2*p}, v{A+2*p+1}"]
        if p % 4 == 3:
            e = p // 4
            o += [f"v_bfi_b32 v{D+p}, v{t}, v{D+p}, v{vtag}",
                  f"buffer_store_dwordx4 v[{D+4*e}:{D+4*e+3}], v{vL16}, s[{sWSD}:{sWSD+3}], s{soff} offen offset:{1024*e} sc1"]
    return o + notify(snot, t, vtag)


def c_tail():
    o = finish_o(OACC, PA, vG, TMP, TMP + 1, sSt + 1, vEc, sSt + 2)
    o += signal(E_OA)
    o += stamp(3)
    if OPT.get('alt') == 8:
        o += ["s_waitcnt vmcnt(1)", f"!s_memtime s[{sStamp+8}:{sStamp+9}]", "s_waitcnt vmcnt(0)", f"!s_memtime s[{sStamp+10}:{sStamp+11}]"]
    o += c_phase3()
    o += stamp_flush(TMP, 0)
    o += ["s_endpgm"]
    return o


def c_wave():
    ROLE[0] = 'C'
    o = ["@reset", "L_cwave:"] + stamp(4, 's')
    o += ["v_lshlrev_b32 v20, 3, v0", "v_mov_b32 v22, 0", "v_mov_b32 v23, 0", f"v_add_u32 v20, {MISC}, v20", "ds_write_b64 v20, v[22:23]",
          ]
    o += c_setup()
    o += stamp(5, 's') + ["s_waitcnt lgkmcnt(0)"] + stamp(6, 's') + ["s_barrier"] + stamp(7, 's')
    o += srd(sWSD, sWS, WS_SIZE)
    o += [f"s_cmp_eq_u32 s{sZ}, 0", "!s_cbranch_scc1 L_cY"]
    o += c_gemm(False)
    o += ["s_branch L_attn", "@reset", "L_cY:"]
    o += c_gemm(True)
    o += ["L_attn:", f"s_setprio {OPT.get('cprio', 0)}"]
    o += [f"s_lshl_b32 s{sT0}, s{sWave}, 11",
          f"s_add_u32 s{sT1}, s{sT0}, {KL}", f"v_add_u32 v{vKA}, s{sT1}, v{vL16}",
          f"s_add_u32 s{sT1}, s{sT0}, {VL}", f"v_add_u32 v{vVA}, s{sT1}, v{vL16}",
          f"s_lshl_b32 s{sT0}, s{sWave}, 8", f"s_add_u32 s{sT0}, s{sT0}, {GL}", f"v_lshl_add_u32 v{vGA}, v0, 2, s{sT0}",
          f"s_lshl_b32 s{sT0}, s{sWave}, 2", f"s_add_u32 s{sT0}, s{sT0}, {MISC}", f"v_mov_b32 v{vOwn}, s{sT0}",
          f"s_lshl_b32 s{sT0}, s{sTile}, 4", f"s_add_u32 s{sT0}, s{sT0}, s{sH}",
          f"s_lshl_b32 s{sT1}, s{sT0}, 7", f"s_add_u32 s{sSt+2}, s{sT1}, {NA}",
          f"s_lshl_b32 s{sT0}, s{sT0}, 11", f"s_add_u32 s{sSt+1}, s{sT0}, {OA}",
          f"s_cmp_lt_u32 s{sTile}, 8", "!s_cbranch_scc1 L_attn_g"]
    o += attention(False)
    o += ["L_ctail:"]
    o += c_tail()
    o += ["@reset", "L_attn_g:", f"s_sub_u32 s{sSt}, 8, s{sTile}"]
    o += attention(True)
    o += ["s_waitcnt lgkmcnt(0)", "s_nop 15", "s_branch L_ctail", "@reset"]
    return o


def code_prefetch():
    n = OPT['prefetch']
    if not n:
        return []
    o = ["s_getpc_b64 s[38:39]", "L_pc:",
         f"s_sub_u32 s38, s38, L_pc-{NAME}_kernel", "s_subb_u32 s39, s39, 0",
         f"s_lshr_b32 s{sT0}, s2, 3", f"s_lshl_b32 s{sT1}, s{sWave}, 5", f"s_add_u32 s{sT0}, s{sT0}, s{sT1}",
         f"s_mul_i32 s{sT0}, s{sT0}, {128*n}",
         f"v_lshl_add_u32 v20, v0, 7, s{sT0}",
         f"v_min_u32 v20, L_end-{NAME}_kernel-4, v20",
         f"s_mov_b64 exec, {(1 << n) - 1}",
         "!global_load_dword v239, v20, s[38:39]", "s_mov_b64 exec, -1"]
    return o


sXD, sWD, sQBD, sQAD, sGD = 36, 40, 44, 48, 52
sKGD, sVGD = 56, 60
sRt, sTT, sE2, sL2 = 64, 65, 66, 67
sOBo, sA, sB, sC = 68, 69, 70, 71
sOff, sLi, sKh = 72, 73, 75
sEarly = 61
sOBn = 62
sNo = 63
sC7 = 53
sCc, sCx, sCw, sRot = 60, 20, 21, 61
sOBd = 60
vX, vW, vQ, vPat, vK, vV, vWO = 2, 3, 4, 5, 6, 7, 8
vEp = 15
GV = 16
HQ = 28
PQR = 16
vG1 = 27
KVr = 88
sRet = 54


def p3_slot():
    return [f"s_and_b32 s{sT0}, s{sRB}, 3", f"s_lshl_b32 s{sT0}, s{sT0}, 3", f"s_and_b32 s{sT1}, s{sH}, 7",
            f"s_add_u32 s{sJ3}, s{sT0}, s{sT1}",
            f"s_cmp_ge_u32 s{sJ3}, 14", f"s_cselect_b32 s{sT0}, 14, 0", f"s_cselect_b32 s{sT1}, 1, 0",
            f"s_sub_u32 s{sT0}, s{sJ3}, s{sT0}", f"s_lshr_b32 s{sCT}, s{sT0}, 1", f"s_and_b32 s{sT0}, s{sT0}, 1",
            f"s_lshr_b32 s{sT2}, s{sH}, 3", f"s_lshl_b32 s{sT2}, s{sT2}, 1", f"s_add_u32 s{sT1}, s{sT1}, s{sT2}",
            f"s_and_b32 s{sT2}, s{sRB}, 12", f"s_add_u32 s{sT1}, s{sT1}, s{sT2}",
            f"s_lshl_b32 s{sT1}, s{sT1}, 1", f"s_add_u32 s{sT1}, s{sT1}, s{sT0}", f"s_lshl_b32 s{sTB}, s{sT1}, 1"]


def h_setup():
    return p3_slot() + [
            f"s_lshl_b32 s{sT0}, s{sW4}, 2", f"s_add_u32 s{sT0}, s{sT0}, {MISC}", f"v_mov_b32 v{vOwn}, s{sT0}",
            f"v_lshrrev_b32 v{vLow}, 5, v0", f"v_add_u32 v{vLow}, -1, v{vLow}",
            f"s_mov_b32 s{sE2}, {fhex(1e-6)}", f"s_mov_b32 s{sL2}, {fhex(LOG2E)}",
            f"s_lshl_b32 s{sT0}, s{sRB}, 2", f"s_add_u32 s{sT0}, s{sT0}, s{sW4}", f"s_lshl_b32 s{sT0}, s{sT0}, 4",
            f"s_add_u32 s{sT0}, s{sT0}, s{sH}",
            f"s_lshl_b32 s{sT1}, s{sT0}, 7", f"s_add_u32 s{sOBn}, s{sT1}, {NB}",
            f"s_lshl_b32 s{sT0}, s{sT0}, 11", f"s_add_u32 s{sOBo}, s{sT0}, {OB}"]


def qb_phi():
    R, A = 96, 64
    t, u = 24, 25
    o = spin_ev(R_Q, 'own', HQ)
    o += [f"s_lshl_b32 s{sT0}, s{sW4}, 12", f"v_add_u32 v{t}, s{sT0}, v{vL16}",
          f"ds_read_b128 v[{R}:{R+3}], v{t}", f"ds_read_b128 v[{R+4}:{R+7}], v{t} offset:1024",
          f"s_lshl_b32 s{sT0}, s{sW4}, 8", f"s_add_u32 s{sT0}, s{sT0}, {GL}", f"v_lshl_add_u32 v{26}, v0, 2, s{sT0}",
          f"v_lshlrev_b32 v{t}, 16, v{R+6}", f"v_lshlrev_b32 v{u}, 16, v{R+6}",
          f"v_permlane32_swap_b32 v{t}, v{u}",
          f"v_mul_f32 v{u}, s{sL2}, v{u}", f"v_exp_f32_e64 v{u}, -v{u}", f"v_add_f32 v{u}, 1.0, v{u}",
          f"v_rcp_f32 v{u}, v{u}", f"ds_write_b32 v26, v{u}"] + signal(GRDY) + [f"v_sub_f32 v{vG1}, 1.0, v{u}"]
    for p in range(8):
        o += [f"v_lshlrev_b32 v{A+2*p}, 16, v{R+p}", f"v_and_b32 v{A+2*p+1}, 0xffff0000, v{R+p}"]
        o += phi_pair(A + 2 * p, A + 2 * p + 1, t, u, PQR + p, sL2, sE2)
    o += [f"v_and_b32 v{PQR+6}, v{PQR+6}, v{vLow}", f"v_and_b32 v{PQR+7}, v{PQR+7}, v{vLow}"]
    return o


def ob_tile(read_kv=True):
    o = []
    if read_kv:
        o += spin_ev(KVRDY, 3, HQ)
        o += [f"v_add_u32 v24, {KVF}, v{vL16}",
              f"ds_read_b128 v[{KVr}:{KVr+3}], v24", f"ds_read_b128 v[{KVr+4}:{KVr+7}], v24 offset:1024"]
    o += [mfma(64, KVr, PQR, None), mfma(64, KVr + 4, PQR + 4, 64)]
    o += finish_o(64, 80, vG1, 24, 25, sOBo, vEp, sOBn, eps=sE2)
    return o


def call(name):
    return ["@drain", f"!s_call_b64 s[{sRet}:{sRet+1}], L_sub_{name}", "@reset"]


def subroutines():
    o = []
    for name, body in (("phi", qb_phi()), ("ob", ob_tile()), ("r0", woa_read(0) + signal(R1)), ("r1", woa_read(1))):
        o += ["@reset", f"L_sub_{name}:"] + body + ["s_waitcnt lgkmcnt(0)", f"!s_setpc_b64 s[{sRet}:{sRet+1}]"]
    for name, w in (("d7", f"!s_waitcnt vmcnt({OPT.get('wlead', 20) - 1})"), ("d7e", f"!s_waitcnt vmcnt({OPT.get('elead', 14) - 1})")):
        o += ["@reset", f"L_sub_{name}:"]
        for m in range(7):
            o += [w, f"!buffer_load_dwordx4 v{vWO}, s[{sXD}:{sXD+3}], s{sOff} offen lds",
                  f"!s_add_u32 s{sOff}, s{sOff}, s{sC7}", "!s_addk_i32 m0, 1024"]
        o += [f"!s_setpc_b64 s[{sRet}:{sRet+1}]"]
    return o


def wait_serving(rd, red, cmp_ok, early=None):
    L, L1, L2 = lab('ws'), lab('ws1'), lab('ws2')
    o = ["@drain", f"s_mov_b32 s{sTO}, 0", f"!{L}:", "!" + rd, f"!ds_read_b32 v24, v{vM} offset:{16*KVRDY+12}"]
    o += ["!" + x for x in _tmo()]
    o += ["!s_waitcnt lgkmcnt(0)", f"!v_cmp_lt_u32 vcc, s{sOBd}, v24", f"!s_cbranch_vccz {L1}",
          f"!s_call_b64 s[{sRet}:{sRet+1}], L_sub_ob", f"!s_mov_b32 s{sOBd}, 1", f"!s_mov_b32 s{sTO}, 0", f"!s_branch {L}", f"!{L1}:"]
    o += ["!" + x for x in red + [cmp_ok, f"s_cbranch_vccnz {L2}"]]
    if early is not None:
        o += [f"!s_mov_b32 s{early}, 1"]
    o += [f"!s_sleep {OPT.get('ssleep', 2)}", f"!s_branch {L}", "@reset", f"!{L2}:"]
    return o


def serve_ev(ev, early=None):
    return wait_serving(f"ds_read_b128 v[{HQ}:{HQ+3}], v{vM} offset:{16*ev}",
                        [f"v_min3_u32 v{HQ}, v{HQ}, v{HQ+1}, v{HQ+2}", f"v_min_u32 v{HQ}, v{HQ}, v{HQ+3}"],
                        f"v_cmp_ne_u32 vcc, 0, v{HQ}", early)


def serve_land(st):
    return wait_serving(f"ds_read_b32 v{HQ}, v{vM} offset:{256+4*st}", [], f"v_cmp_eq_u32 vcc, 2, v{HQ}")


def dma(vaddr, sd, soff, lds, extra="", tag=None, sbase=None):
    o = [f"s_add_u32 m0, s{sLi}, {lds}"]
    if sbase is not None:
        if soff:
            o.append(f"s_add_u32 s{sOff}, s{sbase}, {soff}")
            so = f"s{sOff}"
        else:
            so = f"s{sbase}"
    elif soff:
        o.append(f"s_mov_b32 s{sOff}, {soff}")
        so = f"s{sOff}"
    else:
        so = "0"
    o.append(f"buffer_load_dwordx4 v{vaddr}, s[{sd}:{sd+3}], {so} offen {extra} lds" + (f" ;@tag={tag}" if tag else ""))
    return o


def spin_vm(body, cond, sleep=0):
    L = lab('pv')
    o = [f"!s_mov_b32 s{sTO}, 0", f"!{L}:"]
    o += ["!" + b for b in body + _tmo()]
    o += ["s_waitcnt vmcnt(0)"]
    o += ["!" + c for c in cond]
    o += [f"!s_cbranch_vccnz {L}"]
    return o


def flag_ld(vdst, vaddr, soff):
    if 1:
        return [f"v_mov_b32 v{vdst}, 0", f"buffer_atomic_or v{vdst}, v{vaddr}, s[{sWSD}:{sWSD+3}], {soff} offen sc0 sc1"]
    return [f"buffer_load_dword v{vdst}, v{vaddr}, s[{sWSD}:{sWSD+3}], {soff} offen sc1"]


def light_poll(vdst, vaddr, soff, mask, cmp_bad, first_issued=False, sleep=None, flag=False, hook=None):
    sleep = OPT.get('psleep', 1) if sleep is None else sleep
    L, L2, L0 = lab('lp'), lab('lpx'), lab('lp0')
    ld = f"buffer_load_dword v{vdst}, v{vaddr}, s[{sWSD}:{sWSD+3}], {soff} offen sc1"
    o = [f"s_mov_b64 exec, {mask}", f"s_mov_b32 s{sTO}, 0"]
    if first_issued:
        o += [f"!s_branch {L0}"]
    o += [f"!{L}:"] + ["!!" + x for x in (flag_ld(vdst, vaddr, soff) if flag else [ld])] + [f"!{L0}:"] + ["!" + x for x in _tmo()] + ["s_waitcnt vmcnt(0)"]
    o += ["!" + c for c in cmp_bad]
    o += [f"!s_cbranch_vccz {L2}"]
    if hook:
        o += ["!!s_mov_b64 s[50:51], vcc", "!!s_mov_b64 exec, -1"] + ["!!" + x.lstrip('!') for x in hook if not x.startswith('@')] + ["!!s_mov_b64 vcc, s[50:51]"]
    o += ["!!s_mov_b64 exec, vcc"] + ([f"!!s_sleep {sleep}"] if sleep else []) + \
         [f"!!s_branch {L}", f"!{L2}:", "s_mov_b64 exec, -1"]
    return o


def notify(soff, vt, vep, fan=1):
    return [f"v_lshlrev_b32 v{vt}, 7, v0", f"s_mov_b64 exec, {(1 << fan) - 1}",
            f"buffer_store_dword v{vep}, v{vt}, s[{sWSD}:{sWSD+3}], s{soff} offen sc1", "s_mov_b64 exec, -1"]


def fmap(d, t):
    return [f"v_bfe_u32 v{d}, v0, 4, 1", f"v_bfe_u32 v{t}, v0, 2, 1", f"v_lshl_add_u32 v{d}, v{d}, 1, v{t}",
            f"v_mul_u32_u24 v{d}, 7, v{d}", f"v_bfe_u32 v{t}, v0, 3, 1", f"v_lshl_add_u32 v{d}, v{t}, 2, v{d}",
            f"v_and_b32 v{t}, 3, v0", f"v_add_u32 v{d}, v{d}, v{t}"]


def l_wave():
    ROLE[0] = 'L'
    o = [f"s_setprio {OPT.get('lprio', 2)}"]
    t0, t1, t2 = 24, 25, 26
    sHW = sW4
    o += [f"s_lshl_b32 s{sLi}, s{sHW}, 10",
          f"v_mov_b32 v{vMl}, v{vMs}", f"s_mov_b32 s{sT0}, {LANDC}", f"v_writelane_b32 v{vMl}, s{sT0}, 0"]
    o += [f"v_lshrrev_b32 v{t0}, 3, v0", f"s_lshl_b32 s{sT0}, s{sRB}, 4", f"s_add_u32 s{sT0}, s{sT0}, s{sHW}",
          f"s_lshl_b32 s{sT0}, s{sT0}, 3", f"v_add_u32 v{t1}, s{sT0}, v{t0}", f"v_mul_u32_u24 v{vX}, 896, v{t1}",
          f"v_lshrrev_b32 v{t1}, 4, v0", f"s_lshl_b32 s{sT0}, s{sHW}, 2", f"v_add_u32 v{t1}, s{sT0}, v{t1}",
          f"v_and_b32 v{t2}, 7, v0", f"v_xor_b32 v{t1}, v{t1}, v{t2}", f"v_lshl_add_u32 v{vX}, v{t1}, 4, v{vX}"]
    o += [f"s_lshl_b32 s{sT2}, s{sZ}, 4", f"s_add_u32 s{sT1}, s{sT2}, 112", f"s_add_u32 s{sT2}, s{sT2}, 48",
          f"s_mul_i32 s{sT1}, s{sT1}, s{sHH}", f"s_add_u32 s{sT1}, s{sT1}, 896",
          f"s_lshl_b32 s{sT0}, s{sHW}, 3", f"v_add_u32 v{t1}, s{sT0}, v{t0}", f"v_mul_u32_u24 v{vW}, 2688, v{t1}",
          f"v_bfe_u32 v{t1}, v0, 2, 1", f"v_bfe_u32 v{t2}, v0, 4, 1", f"v_xor_b32 v{t1}, v{t1}, v{t2}",
          f"v_mul_u32_u24 v{t2}, s{sT2}, v{t1}", f"v_add3_u32 v{vW}, v{vW}, v{t2}, s{sT1}",
          f"v_and_b32 v{t2}, 3, v0", f"v_lshl_add_u32 v{vW}, v{t2}, 4, v{vW}"]
    o += [f"s_mov_b32 s{sXD+2}, 1835008", f"s_mov_b32 s{sXD+3}, 0x20000",
          f"s_mov_b32 s{sWD+2}, 1204224", f"s_mov_b32 s{sWD+3}, 0x20000",
          f"s_cmp_eq_u32 s{sH}, 15", f"s_cselect_b32 s{sWD+2}, 0, s{sWD+2}",
          ] + {0: [f"s_mov_b32 s{sCc}, 0"],
               1: [f"s_xor_b32 s{sT0}, s{sRB}, s{sH}", f"s_and_b32 s{sT0}, s{sT0}, 1", f"s_mul_i32 s{sCc}, s{sT0}, {OPT.get('rotk', 3)}"],
               2: [f"s_add_u32 s{sT0}, s{sRB}, s{sH}", f"s_and_b32 s{sT0}, s{sT0}, 3", f"s_mul_i32 s{sCc}, s{sT0}, {OPT.get('rotk', 2)}"],
               3: [f"s_and_b32 s{sT0}, s{sRB}, 3", f"s_lshl_b32 s{sT0}, s{sT0}, 1", f"s_and_b32 s{sT1}, s{sH}, 7", f"s_add_u32 s{sCc}, s{sT0}, s{sT1}"],
               }[OPT.get('rotm', 1)] + [
          f"s_cmp_ge_u32 s{sCc}, 7", f"s_cselect_b32 s{sT0}, 7, 0", f"s_sub_u32 s{sCc}, s{sCc}, s{sT0}",
          f"s_cmp_ge_u32 s{sCc}, 7", f"s_cselect_b32 s{sT0}, 7, 0", f"s_sub_u32 s{sCc}, s{sCc}, s{sT0}",
          f"s_mov_b32 s{sRot}, s{sCc}",
          f"s_cmp_eq_u32 s{sZ}, 0"]
    o += stamp(1, 'f')
    o += ["s_waitcnt lgkmcnt(0)",
          f"s_mov_b32 s{sXD}, s{sX}", f"s_mov_b32 s{sXD+1}, s{sX+1}",
          f"s_cselect_b32 s{sWD}, s{sBW}, s{sAW}", f"s_cselect_b32 s{sWD+1}, s{sBW+1}, s{sAW+1}",
          f"s_lshl_b32 s{sCx}, s{sCc}, 7", f"s_mul_i32 s{sCw}, s{sCc}, {64*2688}"]
    nextc = [f"s_add_u32 s{sCc}, s{sCc}, 1", f"s_cmp_eq_u32 s{sCc}, 7", f"s_cselect_b32 s{sCc}, 0, s{sCc}"]
    setc_ = [f"s_lshl_b32 s{sCx}, s{sCc}, 7", f"s_mul_i32 s{sCw}, s{sCc}, {64*2688}"]
    ops = []
    for c in range(7):
        for ii in range(8):
            pre = (nextc + setc_) if (ii == 0 and c) else []
            ops.append((pre + dma(vX, sXD, 16 * ii * 896, XR(c) + 2048 * ii, sbase=sCx), c))
        for p in range(2):
            for ii in range(4):
                ops.append((dma(vW, sWD, 16 * ii * 2688 + 896 * p, WR(c) + 8192 * p + 2048 * ii, sbase=sCw), c))
    for q, sd in enumerate((sQBD, sQAD)):
        for c in range(7):
            for ii in range(2):
                pre = (nextc + setc_[1:]) if ii == 0 else []
                ops.append((pre + dma(vQ, sd, 32 * ii * 2688, QLOC[7 * q + c] + 2048 * ii, sbase=sCw), 7 + 7 * q + c))
    late = srd(sWSD, sWS, WS_SIZE) + srd(sQBD, sBW, 1204224) + srd(sQAD, sAW, 1204224) + srd(sGD, sGW, 896)
    late += [f"v_lshrrev_b32 v{t0}, 2, v0", f"s_lshl_b32 s{sT0}, s{sHW}, 4", f"v_add_u32 v{t0}, s{sT0}, v{t0}",
             f"v_mul_u32_u24 v{vQ}, 2688, v{t0}", f"v_and_b32 v{t1}, 3, v0", f"v_lshl_add_u32 v{vQ}, v{t1}, 4, v{vQ}",
             f"s_mul_i32 s{sT0}, s{sH}, 56", f"s_lshl_b32 s{sT1}, s{sPar}, 3", f"s_sub_u32 s{sT0}, s{sT0}, s{sT1}",
             f"v_add_u32 v{vQ}, s{sT0}, v{vQ}",
             f"v_bfe_u32 v{t0}, v0, 4, 1", f"v_lshlrev_b32 v{t0}, 5, v{t0}", f"v_and_b32 v{t1}, 15, v0",
             f"s_lshl_b32 s{sT0}, s{sHW}, 4", f"v_add3_u32 v{t0}, v{t0}, v{t1}, s{sT0}",
             f"v_lshlrev_b32 v27, 1, v{t0}",
             f"s_xor_b32 s{sT0}, s{sPar}, 1", f"s_mul_i32 s{sT0}, s{sT0}, 56", f"s_add_u32 s{sT0}, s{sT0}, {QBB}",
             f"v_lshl_add_u32 v{vPat}, v{t0}, 6, s{sT0}"]
    for c in range(7):
        late += [[f"s_lshl_b32 s{sT0}, s{sRot}, 7", f"buffer_load_ushort v{GV+c}, v27, s[{sGD}:{sGD+3}], s{sT0} offen",
                  f"s_add_u32 s{sRot}, s{sRot}, 1", f"s_cmp_eq_u32 s{sRot}, 7", f"s_cselect_b32 s{sRot}, 0, s{sRot}"]]
    late += [f"s_mul_i32 s{sT0}, s{sHW}, {VG}", [f"s_add_u32 s{sKGD}, s{sWS}, s{sT0}", f"s_addc_u32 s{sKGD+1}, s{sWS+1}, 0"],
             f"s_mov_b32 s{sKGD+2}, 1835008", f"s_mov_b32 s{sKGD+3}, 0x20000"]
    late += [f"s_lshl_b32 s{sT0}, s{sRB}, 2", f"s_sub_u32 s{sT0}, s{sT0}, 8", f"s_mul_i32 s{sA}, s{sT0}, 28672",
             f"s_mul_i32 s{sT1}, s{sH}, 7", f"s_lshr_b32 s{sT1}, s{sT1}, 1", f"s_lshl_b32 s{sT1}, s{sT1}, 9",
             f"s_add_u32 s{sT1}, s{sT1}, s{sA}",
             f"v_add_u32 v{vK}, s{sT1}, v{vL16}",
             f"s_mul_i32 s{sT1}, s{sH}, 448", f"s_add_u32 s{sT1}, s{sT1}, s{sA}",
             f"v_lshrrev_b32 v{t0}, 5, v0", f"v_mul_u32_u24 v{t0}, 7168, v{t0}"] + fmap(t1, t2) + [
             f"v_lshl_add_u32 v{t0}, v{t1}, 4, v{t0}", f"v_add_u32 v{vV}, s{sT1}, v{t0}"]
    vFl = 32
    late += [f"s_mul_i32 s{sT0}, s{sH}, 28", f"s_add_u32 s{sT1}, s{sT0}, 27",
             f"s_lshr_b32 s{sT0}, s{sT0}, 6", [f"s_lshr_b32 s{sT1}, s{sT1}, 6", f"s_cmp_eq_u32 s{sT0}, s{sT1}",
             f"s_cselect_b32 s{sB}, 0x15, 63"],
             f"s_min_u32 s{sT0}, s{sRB}, 2", f"s_lshl_b32 s{sT0}, s{sT0}, 1", f"s_sub_u32 s{sT0}, 4, s{sT0}",
             f"s_lshl_b32 s{sT1}, -1, s{sT0}", f"s_and_b32 s{sB}, s{sB}, s{sT1}", f"s_mov_b32 s{sB+1}, 0",
             f"s_lshl_b32 s{sT0}, s{sRB}, 4", f"s_add_u32 s{sT0}, s{sT0}, s{sH}", f"s_lshl_b32 s{sT0}, s{sT0}, 7",
             f"v_lshl_add_u32 v{vFl}, v0, 2, s{sT0}"]
    late += [h_setup()] + p3_early()
    late += [f"v_lshrrev_b32 v{t0}, 3, v0", f"s_mul_i32 s{sT0}, s{sHW}, 224", f"v_add_u32 v{t1}, s{sT0}, v{t0}",
             f"v_mul_u32_u24 v{vWO}, 896, v{t1}",
             f"v_bfe_u32 v{t1}, v0, 2, 1", f"v_bfe_u32 v{t2}, v0, 4, 1", f"v_xor_b32 v{t1}, v{t1}, v{t2}",
             f"v_lshl_add_u32 v{vWO}, v{t1}, 6, v{vWO}", f"v_and_b32 v{t2}, 3, v0", f"v_lshl_add_u32 v{vWO}, v{t2}, 4, v{vWO}",
             f"s_lshl_b32 s{sT0}, s{sCT}, 7", f"v_add_u32 v{vWO}, s{sT0}, v{vWO}"]
    pieces = [late[i:i + 6] for i in range(0, len(late), 6)]
    last_of = {}
    for n, (_, st) in enumerate(ops):
        last_of[st] = n
    def lead_at(n):
        return OPT['l1'] if ops[n][1] < 7 else OPT['l3']
    sig_next = 0

    def do_signal(st):
        r = [f"@wait_vm o{last_of[st]}"]
        if 7 <= st <= 13:
            r.append(f"ds_write_b16 v{vPat}, v{GV+st-7} offset:{QLOC[st-7]-QBB}")
        return r + land(st)

    def emit_ops(n0, n1, sig, fine):
        r = []
        for n in range(n0, n1):
            ins, st = ops[n]
            need = {64: 1, 80: 2, 96: 3, 124: 4}.get(n)
            if need:
                assert sig >= need
                r += spin_ev(E_PA, 'all', HQ, ge=need)
            ins = ins[:-1] + [ins[-1] + f" ;@tag=o{n}"]
            if n == 0:
                r += stamp(2, 'f')
            r += ins
            if n == 15:
                r += stamp(3, 'f') + ["s_barrier"] + stamp(4, 'f')
            if n >= 16 and pieces:
                r += sum([x if isinstance(x, list) else [x] for x in pieces.pop(0)], [])
            done = n - lead_at(n)
            if done >= 0 and n >= 15:
                r += [f"@wait_vm o{done}"]
            while sig < 21 and last_of[sig] <= done and n >= 15:
                r += do_signal(sig)
                r += {0: stamp(5, 'f'), 1: stamp(6, 'f'), 2: stamp(7, 'f'), 4: stamp(8, 'f'), 6: stamp(9, 'f'), 10: stamp(10, 'f')}.get(sig, [])
                sig += 1
        return r, sig

    def tail(sig, pf=False):
        r, sig = emit_ops(HOLD, len(ops), sig, False)
        r += stamp(1) + stamp(11, 'f')
        if pf and OPT.get('ypf', 0):
            r += [f"s_cmp_eq_u32 s{sHW}, 0", f"s_cselect_b32 s48, s{sAO}, s{sBO}", f"s_cselect_b32 s49, s{sAO+1}, s{sBO+1}",
                  f"s_and_b32 s{sT0}, s{sRB}, 3", f"s_lshl_b32 s{sT0}, s{sT0}, 2", f"s_and_b32 s{sT1}, s{sHH}, 3",
                  f"s_add_u32 s{sT0}, s{sT0}, s{sT1}", f"s_mul_i32 s{sT0}, s{sT0}, {196*128}",
                  f"v_lshl_add_u32 v33, v0, 7, s{sT0}", "s_mov_b32 exec_hi, 0x1ffff"]
            for i in range(4):
                r += [f"global_load_dword v{40+i}, v33, s[48:49]"] + ([f"v_add_u32 v33, {49*128}, v33"] if i < 3 else [])
            r += ["s_mov_b64 exec, -1"]
        for st in range(sig, 21):
            r += do_signal(st)
        return r
    HOLD = OPT.get('hold', 140)
    r, sig = emit_ops(0, HOLD, 0, True)
    assert not pieces
    o += r
    if HOLD < len(ops):
        o += [f"s_cmp_eq_u32 s{sZ}, 0", "!s_cbranch_scc0 L_lhold"]
    o += tail(sig, True)
    if HOLD < len(ops):
        o += ["s_branch L_ljoin", "@reset", "L_lhold:"]
        while last_of[sig] < HOLD:
            o += [f"s_waitcnt vmcnt({HOLD - 1 - last_of[sig]})"] + do_signal(sig)
            sig += 1
        o += spin_ev(X_PUB, 'hi', HQ)
        o += tail(sig)
        o += ["@reset", "L_ljoin:"]
    o += spin_ev(EPOCH, 0, vEp)
    d7 = [f"!s_call_b64 s[{sRet}:{sRet+1}], L_sub_d7e"]

    def batch(ptr, row0, lds, stride, n, sub=d7):
        return [f"s_mov_b32 s{sXD}, s{ptr}", f"s_mov_b32 s{sXD+1}, s{ptr+1}", f"s_mov_b32 s{sOff}, {row0*896}",
                f"s_mul_i32 s{sLi}, s{sHW}, {stride}", f"s_add_u32 m0, s{sLi}, {lds}"] + sub * n
    o += [f"s_mov_b32 s{sXD+2}, 401408", f"s_mov_b32 s{sC7}, 7168",
          f"s_cmp_ge_u32 s{sJ3}, 28", "!s_cbranch_scc1 L_lnoA"]
    if OPT.get('e1', 1):
        o += [f"s_cmp_eq_u32 s{sHW}, 0", "!s_cbranch_scc1 L_lnoA"]
    o += spin_ev(E_P2, 'all', HQ)
    if OPT.get('zgate', 1):
        o += [f"s_cmp_eq_u32 s{sZ}, 0", "!s_cbranch_scc1 L_lgoA"] + spin_ev(X_PUB, 'hi', HQ) + ["L_lgoA:"]
    o += batch(sAO, 0, WBA, WBAS, 3)
    if OPT.get('e1', 1):
        o += [f"v_subrev_u32 v{vWO}, {224*896}, v{vWO}", f"s_mov_b32 s{sOff}, 0", f"s_mov_b32 m0, {WBA}"] + d7 * 3
    o += ["L_lnoA:"]
    o += [f"s_cmp_eq_u32 s{sHW}, 0", "!s_cbranch_scc0 L_lgV"] + spin_ev(F_K, 'hi', HQ, ge=2) + ["s_branch L_lg", "L_lgV:"]
    o += spin_ev(E_P3A, 'all', HQ) + ["L_lg:"]
    o += stamp(6, 'z')
    o += [f"s_mul_i32 s{sT1}, s{sHW}, {FV-FK}", f"s_add_u32 s{sT1}, s{sT1}, {FK}"]
    o += light_poll(t1, 32, f"s{sT1}", f"s[{sB}:{sB+1}]", [f"v_cmp_ne_u32 vcc, v{t1}, v{vEp}"], flag=OPT.get('apoll', 1), sleep=OPT.get('fsleep', 2))
    o += stamp(2)
    if OPT.get('alt') == 5:
        o += [f"s_add_u32 s{sStamp+14}, s{sStamp}, s{sTO}"]
    o += [f"s_cmp_eq_u32 s{sHW}, 0", "!s_cbranch_scc0 L_lV"]
    for j in range(12):
        for e in range(2):
            o += [f"s_mov_b32 m0, {KL + 2048*j + 1024*e - 1024*e}",
                  f"buffer_load_dwordx4 v{vK}, s[{sKGD}:{sKGD+3}], 0 offen offset:{1024*e} sc1 lds"]
        o += [f"v_add_u32 v{vK}, 28672, v{vK}"]
    o += [f"s_mov_b32 s{sA}, {4*ST_K}", "s_branch L_lKV", "@reset", "L_lV:"]
    o += [f"v_mov_b32 v{36+i}, 0x3f803f80" for i in range(4)]
    o += [f"v_lshlrev_b32 v{t0}, 9, v0", f"v_add_u32 v{t0}, {VL+496}, v{t0}",
          "s_mov_b32 exec_hi, 0xffff", f"ds_write_b128 v{t0}, v[36:39]",
          "s_mov_b32 exec_lo, 0x7fffffff", "s_mov_b32 exec_hi, 0x7fffffff", f"s_mov_b32 s{sOff}, 14336"]
    for j in range(12):
        for e in range(2):
            pre = [f"v_add_u32 v{t2}, s{sOff}, v{vV}"] if e else []
            o += pre + [f"s_mov_b32 m0, {VL + 2048*j + 1024*e}",
                        f"buffer_load_dwordx4 v{t2 if e else vV}, s[{sKGD}:{sKGD+3}], 0 offen sc1 lds"]
        o += [f"v_add_u32 v{vV}, 28672, v{vV}"]
    o += ["s_mov_b64 exec, -1", f"s_mov_b32 s{sA}, {4*ST_V}", "@reset", "L_lKV:"]
    o += stamp(3) + signal(KVISS)
    kvland = [f"v_add_u32 v{t2}, s{sA}, v{vMl}", f"v_mov_b32 v{t0}, 2", f"ds_add_u32 v{t2}, v{t0}"]
    o += [f"s_cmp_ge_u32 s{sJ3}, 28", "!s_cbranch_scc0 L_lwo"] + call("phi") + \
        ["s_waitcnt vmcnt(0)"] + kvland + call("ob") + stamp_flush(20, 0) + ["s_endpgm", "@reset", "L_lwo:"]
    o += call("phi") + stamp(8, 'z')
    o += ["s_waitcnt vmcnt(0)"] + kvland
    o += stamp(4)
    o += land(ST_WB)
    o += p3_setup() + [f"s_mov_b32 s{sOBd}, 0"] + serve_land(ST_WA1) + call("r0")
    o += stamp(5)
    o += ["s_branch L_p3", "@reset"]
    return o


sOb, sNb = 58, 59


def gload(g):
    r = [f"s_add_u32 s{sT2}, s{sOb}, {4096*g}"]
    for e in range(4):
        n = 4 * g + e
        r.append(f"buffer_load_dwordx4 v[{OF+4*n}:{OF+4*n+3}], v{vOG}, s[{sWSD}:{sWSD+3}], s{sT2} offen offset:{1024*e} sc1")
    return r


WA = 128
OF = 64
ACC = 32
BB = 16
vA = 2
vOG = 6
vTg = 9


def p3_early(PARK=248, base=STG, stride=STGS):
    t0, t1, t2, r, cg = 240, 241, 242, 243, 244
    o = [f"s_lshr_b32 s{sKh}, s{sW4}, 1", f"s_and_b32 s{sRt}, s{sW4}, 1",
         f"s_add_u32 s{sTT}, s{sTB}, s{sRt}",
         f"v_bfe_u32 v{r}, v0, 2, 2", f"v_bfe_u32 v{t0}, v0, 4, 1", f"v_and_b32 v{cg}, 3, v0",
         f"v_lshl_add_u32 v{cg}, v{t0}, 2, v{cg}", f"v_lshlrev_b32 v{cg}, 3, v{cg}",
         f"s_mul_i32 s{sT0}, s{sKh}, {stride}", f"s_add_u32 s{sT0}, s{sT0}, {base}",
         f"v_add_u32 v{cg}, s{sT0}, v{cg}",
         f"v_lshrrev_b32 v{t2}, 5, v0", f"v_mul_u32_u24 v{t2}, 7, v{t2}"]
    for s_ in range(2):
        for u in range(2):
            d = PARK + 2 * s_ + u
            o += [f"v_min_u32 v{t0}, {2 if u else 3}, v{r}", f"v_add3_u32 v{t0}, v{t0}, v{t2}, {14*s_+4*u}",
                  f"v_bfe_u32 v{t1}, v{t0}, 1, 1", f"v_xor_b32 v{t1}, s{sKh}, v{t1}",
                  f"v_lshl_add_u32 v{d}, v{t0}, 7, v{cg}", f"v_lshl_add_u32 v{d}, v{t1}, 6, v{d}"]
    o += [f"s_lshl_b32 s{sT0}, s{sTT}, 1", f"s_add_u32 s{sT0}, s{sT0}, s{sKh}", f"s_lshl_b32 s{sNo}, s{sT0}, 10", f"s_lshl_b32 s{sT0}, s{sT0}, 14",
          f"v_add_u32 v{PARK+4}, s{sT0}, v{vL16}"]
    return o


def p3_setup():
    return [f"v_mov_b32 v{vA+i}, v{248+i}" for i in range(5)] + [f"v_and_b32 v{vTg}, 0xffff0000, v{vEp}"]


FLIP = [f"v_xor_b32 v{vA+i}, 64, v{vA+i}" for i in range(4)]


def wo_frag(dst, hl, s, tag=None):
    return [tr(dst, vA + 2 * s, 28 * hl * 128), tr(dst + 2, vA + 2 * s + 1, 28 * hl * 128, tag)]


def woa_read(rho):
    o = []
    for j in range(2):
        for hl in range(4):
            for s in range(2):
                o += wo_frag(WA + 64 * j + 8 * (4 * rho + hl) + 4 * s, hl, s)
        o += FLIP
    return o


RSTR = VL - KL


def half_sub():
    vC = 7
    o = ["@reset", "L_sub_half:"]

    def gcheck(g):
        b = OF + 16 * g
        ch = [f"v_xor_b32 v{b+4*e+3}, v{b+4*e+3}, v{vTg}" for e in range(4)]
        ch += [f"v_or3_b32 v{vC}, v{b+3}, v{b+7}, v{b+11}", f"v_or_b32 v{vC}, v{vC}, v{b+15}",
               f"v_cmp_lt_u32 vcc, 0xffff, v{vC}"]
        Ls, Lb = lab('slow'), lab('back')
        slow.extend([f"{Ls}:"] + ([f"s_add_u32 s{sStamp+14}, s{sStamp+14}, 1"] if OPT.get('alt') == 6 else []) + [f"s_mov_b32 s{sTO}, 0", f"{Ls}_s:", "s_sleep 4"] + gload(g) + _tmo() + ["s_waitcnt vmcnt(0)"] + ch +
                    [f"s_cbranch_vccnz {Ls}_s", f"s_branch {Lb}"])
        return ch + [f"!s_cbranch_vccnz {Ls}", f"!{Lb}:"]
    if OPT.get('alt') == 6:
        o += ["s_waitcnt lgkmcnt(0)", f"s_mov_b32 s{sStamp+14}, s{sStamp}"]
    if OPT.get('alt') in (7, 8):
        o += [f"!s_memtime s[{sStamp+12}:{sStamp+13}]"]
    o += [f"v_lshlrev_b32 v7, 7, v0"]
    o += light_poll(HQ, 7, f"s{sNb}", "0xff", [f"v_cmp_ne_u32 vcc, v{HQ}, v{vEp}"], sleep=OPT.get('osleep', 1))
    o += stamp(9)
    if OPT.get('alt') in (7, 8):
        o += [f"s_add_u32 s{sStamp+14}, s{sStamp}, s{sTO}"]
    for g in range(4):
        o += gload(g)
    sO = 40
    o += srd(sO, sOUT, 1835008)
    o += [f"s_lshr_b32 s{sT2}, s{sWave}, 2", f"s_mul_i32 s{sT1}, s{sT2}, {RSTR}",
          f"s_mul_i32 s{sT0}, s{sW4}, 6144", f"s_add_u32 s{sT0}, s{sT0}, {KL}",
          f"s_add_u32 s44, s{sT0}, s{sT1}", f"v_add_u32 v2, s44, v{vL16}",
          f"s_sub_u32 s44, s{sT0}, s{sT1}", f"s_add_u32 s44, s44, {RSTR+4096}", f"v_add_u32 v3, s44, v{vL16}",
          f"s_lshl_b32 s{sT2}, s{sT2}, 11",
          f"s_xor_b32 s{sT1}, s{sW4}, 2", f"s_mul_i32 s{sT0}, s{sT1}, 6144", f"s_add_u32 s{sT0}, s{sT0}, s{sT2}",
          f"s_add_u32 s{sT0}, s{sT0}, {KL}", f"v_add_u32 v4, s{sT0}, v{vL16}", f"v_add_u32 v24, {RSTR}, v4",
          f"v_and_b32 v8, 31, v0", f"s_lshl_b32 s{sT0}, s{sTT}, 5", f"v_add_u32 v8, s{sT0}, v8",
          f"v_mul_u32_u24 v8, 896, v8", f"v_lshrrev_b32 v5, 5, v0",
          f"v_lshl_add_u32 v8, v5, 4, v8",
          f"s_lshl_b32 s{sT0}, s{sCT}, 1", f"s_add_u32 s{sT0}, s{sT0}, s{sKh}", f"s_lshl_b32 s{sT0}, s{sT0}, 6",
          f"s_lshr_b32 s{sT2}, s{sT2}, 6", f"s_add_u32 s{sT0}, s{sT0}, s{sT2}",
          f"v_add_u32 v8, s{sT0}, v8"]
    early, late = check_ev(E_OA, 'all', HQ)
    for n in range(16):
        if n % 4 == 0:
            o += gcheck(n // 4)
        if n == 12:
            o += early
        for j in ((0, 1) if n < 12 else ()):
            o.append(mfma(ACC + 16 * j, WA + 64 * j + 4 * n, OF + 4 * n, ACC + 16 * j if n else None))
    for j in (1, 0):
        for n in range(12, 16):
            o.append(mfma(ACC + 16 * j, WA + 64 * j + 4 * n, OF + 4 * n, ACC + 16 * j))
        if j == 1:
            o += late
    o += [f"ds_write_b128 v2, v[{ACC+16+4*i}:{ACC+16+4*i+3}] offset:{1024*i}" for i in range(4)]
    o += stamp(8)
    o += [f"s_cmp_lt_u32 s{sWave}, 4", "!s_cbranch_scc1 L_finC"]

    def fin(role):
        mine, spare = ACC + 8 * role, ACC + 8 * (1 - role)
        r = [f"ds_write_b128 v2, v[{spare+4*i}:{spare+4*i+3}] offset:{4096+1024*i}" for i in range(2)]
        r += ["s_waitcnt lgkmcnt(0)", "s_barrier"]
        r += [f"ds_read_b128 v[{OF+4*i}:{OF+4*i+3}], v3 offset:{1024*i}" for i in range(2)]
        r += [f"ds_read_b128 v[{OF+8+4*i}:{OF+8+4*i+3}], v4 offset:{1024*i}" for i in range(2)]
        r += [f"ds_read_b128 v[{OF+16+4*i}:{OF+16+4*i+3}], v24 offset:{1024*i}" for i in range(2)]
        for i in range(8):
            r += [f"v_add_f32 v{mine+i}, v{mine+i}, v{OF+i}"]
        for i in range(8):
            r += [f"v_add_f32 v{OF+8+i}, v{OF+8+i}, v{OF+16+i}"]
        for p in range(4):
            r += [f"v_add_f32 v{mine+2*p}, v{mine+2*p}, v{OF+8+2*p}", f"v_add_f32 v{mine+2*p+1}, v{mine+2*p+1}, v{OF+8+2*p+1}",
                  f"v_cvt_pk_bf16_f32 v{16+p}, v{mine+2*p}, v{mine+2*p+1}"]
        r += ["s_branch L_fin"] if role == 1 else []
        return r
    st = [x for x in o if 0]
    o += fin(1) + ["@reset", "L_finC:", "s_nop 7"] + fin(0) + ["L_fin:"]
    o += [f"v_permlane32_swap_b32 v16, v18", f"v_permlane32_swap_b32 v17, v19"]
    fl = {0: "", 1: " sc1", 2: " nt", 3: " sc0 sc1"}[OPT.get('outfl', 0)]
    o += [f"buffer_store_dwordx4 v[16:19], v8, s[{sO}:{sO+3}], 0 offen{fl}"]
    if OPT.get('until'):
        o += [f"!s_mov_b32 s45, {OPT['until']}"]
        if 'pw' in OPT:
            st = sStamp + 2 * OPT['ps']
            o += ["!s_waitcnt lgkmcnt(0)", f"!s_sub_u32 s44, s{st}, s98", f"!s_cmp_ge_u32 s{sWave}, {OPT['pw']}", "!s_cselect_b32 s44, s44, 0",
                  f"!s_cmp_le_u32 s{sWave}, {OPT['pw2']}", "!s_cselect_b32 s44, s44, 0", "!s_add_u32 s45, s45, s44"]
        o += ["!L_dly2:", f"!s_memtime s[46:47]", "!s_waitcnt lgkmcnt(0)",
              "!s_sub_u32 s46, s46, s98", f"!s_cmp_lt_u32 s46, s45", "!s_cbranch_scc1 L_dly2"]
    o += stamp(10)
    if OPT['stamps'] and 'pw' not in OPT:
        o += ["s_waitcnt vmcnt(0)"] + stamp(11)
    o += stamp_flush(20, 0)
    o += ["s_endpgm"]
    return o


def phase3():
    ROLE[0] = 'H'
    o = ["@reset", "L_p3:"]
    o += serve_land(ST_WA2) + call("r1")
    o += stamp(6)
    o += [f"s_cmp_lg_u32 s{sOBd}, 0", "!s_cbranch_scc1 L_pB"] + call("ob") + ["L_pB:"]
    o += stamp(7)
    o += [f"s_mov_b32 s{sOb}, {OB}", f"s_add_u32 s{sNb}, s{sNo}, {NB}"]
    return o + half_sub()


def c_phase3():
    o = p3_slot() + [f"s_cmp_ge_u32 s{sJ3}, 28", "!s_cbranch_scc1 L_cend"]
    o += [f"v_mov_b32 v{vEp}, v{vEc}"] + p3_early(vA, WBA, WBAS) + [f"v_and_b32 v{vTg}, 0xffff0000, v{vEp}"]
    o += [f"s_mul_i32 s{sB}, s{sKh}, {(WBAS - WBBS) & 0xffffffff}", f"s_add_u32 s{sB}, s{sB}, {WBA - WBB}",
          f"s_mov_b32 s{sOb}, {OA}", f"s_add_u32 s{sNb}, s{sNo}, {NA}"]
    o += wait_land(ST_WB, HQ, inline=True, n=3)
    rd = lambda j, hl: sum([wo_frag(WA + 64 * j + 8 * hl + 4 * s_, hl if hl < 6 else hl - 6, s_) for s_ in range(2)], [])
    for hl in range(6):
        o += rd(0, hl)
    o += [f"v_subrev_u32 v{vA+x}, s{sB}, v{vA+x}" for x in range(4)] + rd(0, 6) + rd(0, 7) + FLIP + rd(1, 6) + rd(1, 7)
    o += [f"v_add_u32 v{vA+x}, s{sB}, v{vA+x}" for x in range(4)]
    for hl in range(6):
        o += rd(1, hl)
    o += [] + ["s_waitcnt lgkmcnt(0)", "s_branch L_sub_half", "@reset", "L_cend:"]
    return o


def pretouch():
    if not OPT.get('touch', 1):
        return []
    o = []
    for p in (sAW, sBW, sOUT, sAO, sBO, sGW, sDBG):
        o.append(f"!s_load_dword s44, s[{p}:{p+1}], 0")
    o += [f"s_mov_b32 s46, s{sWS}", f"s_mov_b32 s47, s{sWS+1}"]
    for i in range(6):
        o += ["!s_load_dword s44, s[46:47], 0", "s_add_u32 s46, s46, 0x200000", "s_addc_u32 s47, s47, 0"]
    return o


def x_wave():
    ROLE[0] = 'X'
    o = ["@reset", "L_xwave:", "s_waitcnt lgkmcnt(0)"] + pretouch() + ["s_barrier"]
    o += srd(sWSD, sWS, WS_SIZE)
    o += h_setup() + p3_early()
    sDD, sKD = 36, 40
    sJ = sLi
    t0, t1, t2 = 24, 25, 26
    o += [f"s_sub_u32 s{sJ}, s{sWave}, 6"]
    o += srd(sDD, sDBG, 256) + srd(sKD, sWS, WS_SIZE)
    o += [f"s_cmp_eq_u32 s{sH}, 15", f"s_cselect_b32 s{sKD+2}, 0, s{sKD+2}"]
    o += [f"v_mov_b32 v{t0}, 0", f"s_lshl_b32 s{sT0}, s2, 1", f"s_add_u32 s{sT0}, s{sT0}, s{sJ}",
          f"s_cmp_eq_u32 s{sT0}, 0", "!s_cbranch_scc0 L_xnoep",
          f"s_mov_b32 s{sT0}, {EPW}",
          f"buffer_load_dword v{vEp}, v{t0}, s[{sWSD}:{sWSD+3}], s{sT0} offen sc1",
          f"v_lshrrev_b32 v{t1}, 16, v{vEp}", f"v_add_u32 v{vEp}, 1, v{vEp}", f"v_and_b32 v{vEp}, 0xffff, v{vEp}",
          f"v_max_u32 v{vEp}, 1, v{vEp}", f"v_cmp_eq_u32 vcc, v{vEp}, v{t1}", f"v_addc_co_u32 v{vEp}, vcc, 0, v{vEp}, vcc",
          f"v_and_b32 v{vEp}, 0xffff, v{vEp}", f"v_max_u32 v{vEp}, 1, v{vEp}", f"v_lshl_or_b32 v{vEp}, v{vEp}, 16, v{vEp}",
          "s_mov_b64 exec, 1",
          f"buffer_store_dword v{vEp}, v{t0}, s[{sDD}:{sDD+3}], 0 offen sc1",
          f"buffer_store_dword v{vEp}, v{t0}, s[{sWSD}:{sWSD+3}], s{sT0} offen sc1",
          "s_mov_b64 exec, -1", "@reset", "L_xnoep:"]
    o += wait_land(OPT.get('epgate', 2), HQ, inline=True)
    o += spin_vm([f"buffer_load_dword v{vEp}, v{t0}, s[{sDD}:{sDD+3}], 0 offen sc1"], [f"v_cmp_eq_u32 vcc, 0, v{vEp}"])
    o += [f"ds_write_b32 v{vM}, v{vEp} offset:{16*EPOCH}"]
    o += stamp(1)
    o += [f"s_setprio {OPT.get('xprio', 3)}", f"s_cmp_eq_u32 s{sZ}, 0", "!s_cbranch_scc1 L_xY"]
    o += [f"s_lshl_b32 s{sT0}, s{sHH}, 6", f"s_mul_i32 s{sT1}, s{sT0}, 2341", f"s_lshr_b32 s{sT1}, s{sT1}, 16",
          f"s_add_u32 s{sT0}, s{sT0}, 63", f"s_mul_i32 s{sT2}, s{sT0}, 2341", f"s_lshr_b32 s{sT2}, s{sT2}, 16",
          f"v_and_b32 v4, 3, v0", f"v_add_u32 v4, s{sT1}, v4", f"v_lshrrev_b32 v5, 2, v0",
          f"v_cmp_ge_u32 s[48:49], s{sT2}, v4", f"v_add_u32 v6, s{sRB}, v5", f"v_cmp_gt_u32 vcc, 16, v6",
          "s_and_b64 s[48:49], s[48:49], vcc", "s_and_b32 s48, s48, 0xfff", "s_mov_b32 s49, 0",
          f"s_cmp_eq_u32 s{sH}, 15", "s_cselect_b32 s48, 0, s48",
          "v_lshl_add_u32 v3, v6, 4, v4", "v_lshlrev_b32 v3, 5, v3",
          "v_mul_u32_u24 v4, 28, v4", "v_lshrrev_b32 v4, 6, v4", f"v_sub_u32 v4, s{sHH}, v4",
          "v_lshlrev_b32 v5, 1, v5", "v_sub_u32 v5, 4, v5", "v_add3_u32 v3, v3, v4, v5", "v_lshlrev_b32 v3, 2, v3",
          f"s_mul_i32 s50, s{sJ}, {FV-FK}", f"s_add_u32 s50, s50, {FK}",
          f"s_mul_i32 s44, s{sRB}, {4*28672}",
          f"s_cmp_eq_u32 s{sJ}, 0", "!s_cbranch_scc0 L_xZV"]
    o += [f"s_lshl_b32 s{sT0}, s{sHH}, 12", f"s_add_u32 s44, s44, s{sT0}"]
    o += spin_ev(R_K, 'all', HQ)
    o += [f"ds_read_b128 v[{64+4*i}:{64+4*i+3}], v{vL16} offset:{STK+1024*i}" for i in range(16)] + signal(F_K) + signal(F_K)
    for i in range(16):
        o += [f"buffer_store_dwordx4 v[{64+4*i}:{64+4*i+3}], v{vL16}, s[{sKD}:{sKD+3}], s44 offen offset:{1024*(i%4)} sc1"]
        if i % 4 == 3:
            o += ["s_add_u32 s44, s44, 28672"]
    o += ["s_branch L_xZn", "@reset", "L_xZV:"]
    o += [f"s_lshl_b32 s{sT0}, s{sHH}, 10", f"s_add_u32 s44, s44, s{sT0}", f"s_add_u32 s44, s44, {VG}", "s_add_u32 s45, s44, 14336",
          f"v_lshrrev_b32 v2, 5, v0", f"v_mul_u32_u24 v2, {7168-512}, v2", f"v_add_u32 v2, v2, v{vL16}"]
    o += spin_ev(R_V, 'all', HQ)
    o += [f"ds_read_b128 v[{64+4*i}:{64+4*i+3}], v{vL16} offset:{STV+1024*i}" for i in range(16)] + signal(F_K) + signal(F_K)
    if OPT.get('vafter', 1):
        o += spin_ev(X_PUB, 2, HQ)
    for i in range(16):
        j, s_ = (i % 4) // 2, i % 2
        o += [f"buffer_store_dwordx4 v[{64+4*i}:{64+4*i+3}], v2, s[{sKD}:{sKD+3}], s{44+s_} offen offset:{512*j} sc1"]
        if i % 4 == 3:
            o += ["s_add_u32 s44, s44, 28672", "s_add_u32 s45, s45, 28672"]
    o += ["@reset", "L_xZn:"] + signal(X_PUB) + stamp(2)
    Ln = lab('nn')
    o += ["s_cmp_eq_u32 s48, 0", f"!s_cbranch_scc1 {Ln}"]
    o += ["s_waitcnt vmcnt(0)", "s_mov_b64 exec, s[48:49]",
          f"buffer_store_dword v{vEp}, v3, s[{sWSD}:{sWSD+3}], s50 offen sc1", "s_mov_b64 exec, -1", f"!{Ln}:"] + stamp(3)
    o += ["s_branch L_xjoin", "@reset", "L_xY:"]
    o += fmap(t2, t1) + [f"v_lshrrev_b32 v{t1}, 5, v0", f"v_lshlrev_b32 v{t1}, 9, v{t1}", f"v_lshl_add_u32 v{t2}, v{t2}, 4, v{t1}"]
    o += [f"s_lshl_b32 s{sT0}, s{sJ}, 11", f"v_add_u32 v{t1}, s{sT0}, v{vL16}",
          f"s_add_u32 s{sT1}, s{sT0}, {STV}", f"v_add_u32 v{t2}, s{sT1}, v{t2}",
          f"v_lshrrev_b32 v2, 2, v0", f"v_lshlrev_b32 v2, 12, v2", f"v_and_b32 v3, 3, v0", f"v_lshl_add_u32 v2, v3, 9, v2",
          f"s_add_u32 s{sT0}, s{sT0}, {STV+448}", f"v_add_u32 v2, s{sT0}, v2"]
    o += [f"v_mov_b32 v{32+i}, 0x3f803f80" for i in range(4)]
    o += [f"s_lshl_b32 s{sT0}, s{sHH}, 1", f"s_add_u32 s{sT0}, s{sT0}, s{sJ}", f"s_lshl_b32 s{sT0}, s{sT0}, 4", f"s_add_u32 s{sT0}, s{sT0}, s{sRB}",
          f"s_lshl_b32 s44, s{sT0}, 13", f"s_add_u32 s44, s44, {KVP}", "s_add_u32 s45, s44, 4096",
          f"s_lshl_b32 s46, s{sT0}, 9", f"s_add_u32 s46, s46, {N1}"]
    o += spin_ev(R_V, 'all', HQ)
    o += ["s_mov_b64 exec, 0xffff", "ds_write_b128 v2, v[32:35]", "s_mov_b64 exec, -1"]
    o += [f"ds_read_b128 v[{96+4*i}:{96+4*i+3}], v{t2} offset:{4096*(i//2)+1024*(i%2)}" for i in range(8)] + signal(F_K)
    o += [f"v_mov_b32 v{33+2*i}, v{vEp}" for i in range(16)]
    o += spin_ev(R_K, 'all', HQ)
    o += [f"ds_read_b128 v[{64+4*i}:{64+4*i+3}], v{t1} offset:{STK+4096*(i//2)+1024*(i%2)}" for i in range(8)] + signal(F_K)
    o += stamp(2)
    o += [mfma(128, 64 + 4 * i, 96 + 4 * i, 128 if i else None) for i in range(8)]
    for i in range(8):
        o += [f"v_mov_b32 v{32+4*i}, v{128+2*i}", f"v_mov_b32 v{34+4*i}, v{129+2*i}",
              f"buffer_store_dwordx4 v[{32+4*i}:{35+4*i}], v{vL16}, s[{sWSD}:{sWSD+3}], s{44+i//4} offen offset:{1024*(i%4)} sc1"]
    o += notify(46, 24, vEp, 4)
    o += stamp(3)
    o += ["s_nop 1", "@reset", "L_xjoin:", f"s_setprio {OPT.get('hprio', 2)}"]
    if OPT.get('wopf', 1):
        Lp = lab('wopf')
        o += [f"s_cmp_eq_u32 s{sJ}, 0", f"!s_cbranch_scc0 {Lp}",
              f"s_lshr_b32 s{sT0}, s2, 3", f"s_mul_i32 s{sT0}, s{sT0}, {98*128}", f"v_lshl_add_u32 v24, v0, 7, s{sT0}",
              f"v_add_u32 v25, {49*128}, v24",
              "s_mov_b32 exec_hi, 0x1ffff"]
        for p in (sAO, sBO):
            o += [f"!global_load_dword v12, v24, s[{p}:{p+1}]", f"!global_load_dword v12, v25, s[{p}:{p+1}]"]
        o += ["s_mov_b64 exec, -1", f"!{Lp}:"]
    o += call("phi") + p3_setup() + [f"s_mov_b32 s{sOBd}, 0"]
    o += [f"s_cmp_eq_u32 s{sJ}, 1", "!s_cbranch_scc1 L_x1"]
    o += stamp(4)
    o += [f"s_cmp_ge_u32 s{sJ3}, 28", "!s_cbranch_scc1 L_xfin"]
    t0, t1, t2 = 24, 25, 26
    o += srd(sXD, sBO, 401408) + [f"s_mov_b32 s{sC7}, 7168",
          f"v_lshrrev_b32 v{t0}, 3, v0", f"v_mul_u32_u24 v{vWO}, 896, v{t0}",
          f"v_bfe_u32 v{t1}, v0, 2, 1", f"v_bfe_u32 v{t2}, v0, 4, 1", f"v_xor_b32 v{t1}, v{t1}, v{t2}",
          f"v_lshl_add_u32 v{vWO}, v{t1}, 6, v{vWO}", f"v_and_b32 v{t2}, 3, v0", f"v_lshl_add_u32 v{vWO}, v{t2}, 4, v{vWO}",
          f"s_lshl_b32 s{sT0}, s{sCT}, 7", f"v_add_u32 v{vWO}, s{sT0}, v{vWO}",
          f"v_mov_b32 v{vMl}, v{vMs}", f"s_mov_b32 s{sT0}, {LANDC}", f"v_writelane_b32 v{vMl}, s{sT0}, 0"]
    d7 = [f"!s_call_b64 s[{sRet}:{sRet+1}], L_sub_d7"]

    def xb(ptr, row0, lds, n):
        return [f"s_mov_b32 s{sXD}, s{ptr}", f"s_mov_b32 s{sXD+1}, s{ptr+1}", f"s_mov_b32 s{sOff}, {row0*896}",
                f"s_mov_b32 m0, {lds}"] + d7 * n
    o += spin_ev(F_K, 'hi', HQ, ge=2) + spin_ev(E_P3, 'all', HQ) + spin_ev(KVISS, 'lo', HQ)
    o += xb(sBO, 0, STG, 2) + xb(sBO, 224, STG + STGS, 2)
    if OPT.get('tailfirst', 1):
        o += xb(sAO, 168, WBB, 1) + xb(sAO, 224 + 168, WBB + WBBS, 1)
        o += ["s_waitcnt vmcnt(14)"] + land(ST_WA1) + land(ST_WA1)
    else:
        o += ["s_waitcnt vmcnt(0)"] + land(ST_WA1) + land(ST_WA1)
        o += xb(sAO, 168, WBB, 1) + xb(sAO, 224 + 168, WBB + WBBS, 1)
    o += call("r0")
    o += ["s_waitcnt vmcnt(0)"] + land(ST_WB)
    o += serve_ev(R1)
    o += xb(sBO, 112, STG, 2) + xb(sBO, 224 + 112, STG + STGS, 2)
    o += ["s_waitcnt vmcnt(0)"] + land(ST_WA2) + land(ST_WA2) + stamp(5)
    o += ["s_branch L_p3", "@reset", "L_x1:"]
    o += [f"v_lshlrev_b32 v{t0}, 3, v0",
          f"s_lshl_b32 s44, s{sH}, 17", f"s_lshl_b32 s{sT0}, s{sRB}, 9", f"s_add_u32 s44, s44, s{sT0}", f"s_add_u32 s44, s44, {KVP}",
          f"s_lshl_b32 s45, s{sH}, 13", f"s_add_u32 s45, s45, {KVT}", f"s_add_u32 s46, s45, s{sT0}", "s_add_u32 s47, s45, 4096"]

    def tagcheck():
        c = ["v_min3_u32 v25, v65, v67, v69", "v_max3_u32 v26, v65, v67, v69"]
        for j in range(3, 15, 2):
            c += [f"v_min3_u32 v25, v25, v{65+2*j}, v{67+2*j}", f"v_max3_u32 v26, v26, v{65+2*j}, v{67+2*j}"]
        c += [f"v_min3_u32 v25, v25, v95, v{vEp}", f"v_max3_u32 v26, v26, v95, v{vEp}", "v_cmp_ne_u32 vcc, v25, v26"]
        return c
    body = [f"s_mov_b32 s{sT1}, s44"]
    for j in range(16):
        body += [f"buffer_load_dwordx2 v[{64+2*j}:{65+2*j}], v{t0}, s[{sWSD}:{sWSD+3}], s{sT1} offen sc1",
                 f"s_add_u32 s{sT1}, s{sT1}, 8192"]
    o += [f"v_lshlrev_b32 v26, 9, v0", f"s_lshl_b32 s49, s{sH}, 6", f"s_lshr_b32 s{sT0}, s{sRB}, 2",
          f"s_add_u32 s49, s49, s{sT0}", "s_lshl_b32 s49, s49, 7", f"s_add_u32 s49, s49, {N1}"]
    if OPT.get('h1direct', 1):
        o += ["!" + x for x in body] + ["s_waitcnt vmcnt(0)"] + ["!" + x for x in tagcheck()] + ["!s_cbranch_vccz L_h1ok", "!v_lshlrev_b32 v26, 9, v0"]
    o += light_poll(25, 26, "s49", "0xffff", [f"v_cmp_ne_u32 vcc, v25, v{vEp}"])
    o += stamp(6, 'y')
    o += spin_vm(body, tagcheck())
    o += ["L_h1ok:"]
    for st in (1, 2, 4, 8):
        for j in range(0, 16, 2 * st):
            o.append(f"v_add_f32 v{64+2*j}, v{64+2*j}, v{64+2*(j+st)}")
    o += [f"buffer_store_dwordx2 v[64:65], v{t0}, s[{sWSD}:{sWSD+3}], s46 offen sc1",
          f"s_add_u32 s49, s49, {N2-N1}", f"s_lshl_b32 s46, s{sH}, 4", f"s_add_u32 s46, s46, s{sRB}",
          "s_lshl_b32 s46, s46, 9", f"s_add_u32 s46, s46, {N2}"] + notify(46, 25, vEp, 4)
    o += stamp(4)
    o += [f"s_mov_b32 s48, 1"]
    r0hook = [f"ds_read_b32 v{HQ}, v{vM} offset:{256+4*ST_WA1}", "s_waitcnt lgkmcnt(0)", f"v_cmp_lt_u32 vcc, s48, v{HQ}",
              "s_cbranch_vccz L_x1a"] + call("r0") + ["s_mov_b32 s48, 2", "L_x1a:"]
    body = [f"buffer_load_dwordx4 v[{64+4*j}:{67+4*j}], v{vL16}, s[{sWSD}:{sWSD+3}], s{45+2*(j//4)} offen offset:{1024*(j%4)} sc1" for j in range(8)]
    if OPT.get('x1block', 1):
        o += [f"s_cmp_ge_u32 s{sJ3}, 28", "!s_cbranch_scc1 L_x1b"] + wait_land(ST_WA1, HQ, inline=True) + call("r0") + ["s_mov_b32 s48, 2", "L_x1b:"]
    o += stamp(7, 'y')
    o += ["v_lshlrev_b32 v26, 9, v0"]
    o += light_poll(25, 26, "s49", "0xffff", [f"v_cmp_ne_u32 vcc, v25, v{vEp}"], hook=r0hook)
    o += stamp(8, 'y')
    o += spin_vm(body, tagcheck())
    o += stamp(9, 'y')
    o += [f"v_cvt_pk_bf16_f32 v{96+p}, v{64+4*p}, v{66+4*p}" for p in range(8)]
    o += [f"v_add_u32 v24, {KVF}, v{vL16}",
          f"ds_write_b128 v24, v[96:99]", f"ds_write_b128 v24, v[100:103] offset:1024"] + signal(KVRDY)
    o += call("ob") + [f"s_mov_b32 s{sOBd}, 1"]
    o += stamp(5)
    o += [f"s_cmp_ge_u32 s{sJ3}, 28", "!s_cbranch_scc1 L_xend", "s_cmp_eq_u32 s48, 2", "!s_cbranch_scc1 L_p3"]
    o += wait_land(ST_WA1, HQ, inline=True) + call("r0")
    o += ["s_branch L_p3", "@reset", "L_xfin:"] + call("ob") + ["L_xend:"] + stamp_flush(20, 0) + ["s_endpgm"]
    return o


HEADER = f"""; Fused sliding-window attention + linear attention + gated output projection (gfx950).
; One persistent launch: 256 workgroups x 8 waves (4 compute, 2 loader, 2 auxiliary).
; @launch grid=(256,1,1) block=(512,1,1) lds=163840
.amdgcn_target "amdgcn-amd-amdhsa--gfx950"
.text
.globl {NAME}_kernel
.p2align 8
.type {NAME}_kernel,@function
{NAME}_kernel:
"""
FOOTER = f"""
.section .rodata,"a"
.p2align 6
.amdhsa_kernel {NAME}_kernel
  .amdhsa_next_free_vgpr 256
  .amdhsa_next_free_sgpr 102
  .amdhsa_accum_offset 256
  .amdhsa_group_segment_fixed_size 0
  .amdhsa_kernarg_size 80
  .amdhsa_user_sgpr_count 2
  .amdhsa_user_sgpr_kernarg_segment_ptr 1
  .amdhsa_system_sgpr_workgroup_id_x 1
.end_amdhsa_kernel
"""


def main():
    body = prologue()
    SLEEP[0] = OPT.get('sleep', 1)
    l = l_wave()
    x = x_wave()
    p3 = phase3()
    sub = subroutines()
    SLEEP[0] = 0
    c = c_wave()
    rep = []
    lines = finalize(body + l + x + p3 + sub + c, rep)
    lines += ['    ' + s if not s.endswith(':') else s for s in slow]
    lines += ["L_abort:", "L_exit:", "    s_endpgm", "L_end:"]
    open(sys.argv[1], 'w').write(HEADER + "\n".join(lines) + FOOTER)
    big = [r for r in rep if r[0] >= 3]
    print("nops inserted:", len(rep), "total states", sum(r[0] for r in rep))
    for r in big:
        print("   ", r)


main()
```

```python
import sys, math, struct
from asmlib import finalize, merge

NAME = "gated_mix__sliding_block__linear_attn_block__prompt"
OPT = dict(stamps=0, l1=14, l3=8, prefetch=2, touch=0, refetch=0, wopf=0)
for a in sys.argv[2:]:
    k, v = a.split('=')
    OPT[k] = int(v)


def fhex(x):
    return '0x%08x' % struct.unpack('<I', struct.pack('<f', x))[0]


LOG2E = math.log2(math.e)
KSCALE = LOG2E * 28 ** -0.5
SPIN = 60000

def XR(c): return 16384 * (c % 4)
def WR(c): return 65536 + 16384 * (c % 4)
QLOC = [131072 + 4096 * c for c in range(6)] + [114688] + [114688 + 4096 * c for c in (1, 2, 3)] + [49152 + 4096 * c for c in range(4)]
QBB = 114688
KL = 16384
VL = 131072
STQ, STV, STK = 0, 16384, 32768
STG, STGS = 40960, 67584
WBA, WBAS = 65536, 21504
WBB, WBBS = 55296, 67584
MISC = 158720
LANDC = MISC + 256
JUNK = MISC + 512
GL = MISC + 1536
KVF = MISC + 2560
E_PA, X_PUB, E_P2, E_P3, R_K, R_V, R_Q, E_OA, F_K, E_P3A, R1, GRDY, KVRDY, EPOCH, KVISS = range(15)
ST_K, ST_V, ST_WA1, ST_WB, ST_WA2 = 21, 22, 23, 24, 25

KG, VG, OA, OB, KVP, KVT = 0x000000, 0x200000, 0x400000, 0x600000, 0x800000, 0xA00000
FK, FV, N1, N2, NA, NB, EPW = 0xA40000, 0xA48000, 0xA60000, 0xA80000, 0xAA0000, 0xAC0000, 0xA50000
STAMPS = 0xB00000
WS_SIZE = 0x1000000

sX, sAW, sAO, sBW, sBO, sGW, sOUT, sDBG, sWS = 4, 6, 8, 12, 14, 16, 18, 20, 22
sWave, sH, sRB, sPar, sHH = 24, 25, 26, 27, 28
sT0, sT1, sT2, sTO = 29, 30, 31, 3
sZ = 74
sWSD = 32
sStamp = 76
sJ3, sCT, sTB = 100, 10, 11
sW4 = 101

_lab = [0]
slow = []
ROLE = ['P']
SLEEP = [0]
vL16, vM, vOne, vF, vMs = 1, 10, 11, 12, 13
vFq = 252


def lab(p):
    _lab[0] += 1
    return f"L_{p}_{_lab[0]}"


def srd(d, ptr, size, add=0):
    o = []
    if add:
        o += [f"s_add_u32 s{d}, s{ptr}, {add}", f"s_addc_u32 s{d+1}, s{ptr+1}, 0"]
    else:
        o += [f"s_mov_b32 s{d}, s{ptr}", f"s_mov_b32 s{d+1}, s{ptr+1}"]
    o += [f"s_mov_b32 s{d+2}, {size}", f"s_mov_b32 s{d+3}, 0x20000"]
    return o


def stamp(i, kind=''):
    if not OPT['stamps']:
        return []
    alt = OPT.get('alt', 0)
    if kind == 'z':
        return [f"!s_memtime s[{sStamp+2*i}:{sStamp+2*i+1}]"] if alt == 5 else []
    if kind == 's':
        return [f"!s_memtime s[{sStamp+2*i}:{sStamp+2*i+1}]"] if alt == 9 else []
    if alt == 9 and 4 <= i <= 8:
        return []
    if ROLE[0] == 'L' and (alt == 1) != (kind == 'f'):
        return []
    if kind == 'z':
        return [f"!s_memtime s[{sStamp+2*i}:{sStamp+2*i+1}]"] if alt == 5 else []
    if ROLE[0] == 'H' and alt in (1, 3, 4, 5):
        return []
    if kind == 'y' and alt != 4:
        return []
    if kind == 'x' and alt != 3:
        return []
    if ROLE[0] == 'C' and (alt == 2) != (kind == 'f'):
        return []
    return [f"!s_memtime s[{sStamp+2*i}:{sStamp+2*i+1}]"]


def stamp_flush(vt, vlane):
    if not OPT['stamps'] or 'pw' in OPT:
        return []
    o = ["s_mov_b64 exec, -1", "s_waitcnt lgkmcnt(0)", f"v_mov_b32 v{vt}, 0"]
    for i in range(12):
        o.append(f"v_writelane_b32 v{vt}, s{sStamp+2*i}, {i}")
    o += [f"s_lshl_b32 s{sT0}, s2, 3", f"s_add_u32 s{sT0}, s{sT0}, s{sWave}", f"s_lshl_b32 s{sT0}, s{sT0}, 8",
          f"s_add_u32 s{sT0}, s{sT0}, {STAMPS}",
          f"v_lshlrev_b32 v{vt+1}, 2, v{vlane}",
          f"buffer_store_dword v{vt}, v{vt+1}, s[{sWSD}:{sWSD+3}], s{sT0} offen"]
    return o


def _tmo():
    return [f"s_add_u32 s{sTO}, s{sTO}, 1", f"s_cmp_gt_u32 s{sTO}, {SPIN}", "s_cbranch_scc1 L_abort"]


def _ev_read(ev, which, q):
    if which == 'all':
        return [f"ds_read_b128 v[{q}:{q+3}], v{vM} offset:{16*ev}"], \
               [f"v_min3_u32 v{q}, v{q}, v{q+1}, v{q+2}", f"v_min_u32 v{q}, v{q}, v{q+3}"]
    if which in ('hi', 'lo'):
        return [f"ds_read_b64 v[{q}:{q+1}], v{vM} offset:{16*ev + (8 if which == 'hi' else 0)}"], \
               [f"v_min_u32 v{q}, v{q}, v{q+1}"]
    if which == 'own':
        return [f"ds_read_b32 v{q}, v{vOwn} offset:{16*ev}"], []
    return [f"ds_read_b32 v{q}, v{vM} offset:{16*ev + 4*which}"], []


def spin_ev(ev, which, q=None, ge=1):
    q = vFq if q is None else q
    L, L2 = lab('sp'), lab('spx')
    rd, red = _ev_read(ev, which, q)
    o = ["s_waitcnt lgkmcnt(0)", f"!s_mov_b32 s{sTO}, 0", f"!{L}:"]
    o += ["!" + x for x in rd + _tmo() + ["s_waitcnt lgkmcnt(0)"] + red]
    if SLEEP[0]:
        o += [f"!v_cmp_le_u32 vcc, {ge}, v{q}", f"!s_cbranch_vccnz {L2}", f"!!s_sleep {SLEEP[0]}", f"!!s_branch {L}", f"!{L2}:"]
    else:
        o += [f"!v_cmp_gt_u32 vcc, {ge}, v{q}", f"!s_cbranch_vccnz {L}"]
    return o


def check_ev(ev, which, q):
    Ls, Lb = lab('slow'), lab('back')
    rd, red = _ev_read(ev, which, q)
    slow.extend([f"{Ls}:", f"s_mov_b32 s{sTO}, 0", f"{Ls}_s:"] + rd + _tmo() + ["s_waitcnt lgkmcnt(0)"] + red +
                [f"v_cmp_eq_u32 vcc, 0, v{q}", f"s_cbranch_vccnz {Ls}_s", f"s_branch {Lb}"])
    return rd, red + [f"v_cmp_eq_u32 vcc, 0, v{q}", f"!s_cbranch_vccnz {Ls}", f"!{Lb}:"]


def wait_land(st, q=None, inline=False, n=2):
    q = vFq if q is None else q
    rd = f"ds_read_b32 v{q}, v{vM} offset:{256 + 4*st}"
    if inline:
        L, L2 = lab('wl'), lab('wlx')
        o = ["s_waitcnt lgkmcnt(0)", f"!s_mov_b32 s{sTO}, 0", f"!{L}:"] + ["!" + x for x in [rd] + _tmo() + ["s_waitcnt lgkmcnt(0)"]]
        if SLEEP[0]:
            return o + [f"!v_cmp_eq_u32 vcc, {n}, v{q}", f"!s_cbranch_vccnz {L2}", f"!!s_sleep {SLEEP[0]}", f"!!s_branch {L}", f"!{L2}:"]
        return o + [f"!v_cmp_ne_u32 vcc, {n}, v{q}", f"!s_cbranch_vccnz {L}"]
    Ls, Lb = lab('slow'), lab('back')
    slow.extend([f"{Ls}:", f"s_mov_b32 s{sTO}, 0", f"{Ls}_s:", rd] + _tmo() +
                ["s_waitcnt lgkmcnt(0)", f"v_cmp_ne_u32 vcc, {n}, v{q}", f"s_cbranch_vccnz {Ls}_s", f"s_branch {Lb}"])
    return [rd], [f"v_cmp_ne_u32 vcc, {n}, v{q}", f"!s_cbranch_vccnz {Ls}", f"!{Lb}:"]


vMl = 12


def land(st):
    return [f"ds_add_u32 v{vMl}, v{vOne} offset:{4*st}"]


def signal(ev):
    return [f"ds_add_u32 v{vMs}, v{vOne} offset:{16*ev}"]


def mfma(d, a, b, c):
    cs = f"v[{c}:{c+15}]" if isinstance(c, int) and c >= 0 else "0"
    return f"v_mfma_f32_32x32x16_bf16 v[{d}:{d+15}], v[{a}:{a+3}], v[{b}:{b+3}], {cs}"


def tr(d, a, off, tag=None):
    return f"ds_read_b64_tr_b16 v[{d}:{d+1}], v{a} offset:{off}" + (f" ;@tag={tag}" if tag else "")


vOwn = 9


def common_setup():
    return [f"v_lshlrev_b32 v{vL16}, 4, v0", f"v_mov_b32 v{vM}, {MISC}", f"v_mov_b32 v{vOne}, 1",
            f"s_and_b32 s{sW4}, s{sWave}, 3",
            f"v_lshlrev_b32 v{vMs}, 2, v0", f"v_add_u32 v{vMs}, {JUNK}, v{vMs}",
            f"s_lshl_b32 s{sT0}, s{sW4}, 2", f"s_add_u32 s{sT0}, s{sT0}, {MISC}",
            f"v_writelane_b32 v{vMs}, s{sT0}, 0"]


def prologue():
    o = []
    o += ["s_load_dwordx4 s[4:7], s[0:1], 0", "s_load_dwordx8 s[12:19], s[0:1], 32",
          "s_load_dwordx4 s[20:23], s[0:1], 64", "s_load_dwordx2 s[8:9], s[0:1], 16"]
    o += stamp(0)
    if OPT.get('until'):
        o += ["!s_memtime s[98:99]"]
    o += ["s_cmp_ge_u32 s2, 256", "!s_cbranch_scc1 L_exit",
          "v_lshrrev_b32 v1, 6, v0", "v_and_b32 v0, 63, v0",
          f"v_readfirstlane_b32 s{sWave}, v1"] + code_prefetch() + [
          f"s_and_b32 s{sT0}, s2, 7", f"s_lshr_b32 s{sT1}, s2, 3",
          f"s_and_b32 s{sH}, s{sT0}, 1", f"s_lshl_b32 s{sH}, s{sH}, 3",
          f"s_and_b32 s{sT2}, s{sT1}, 7", f"s_add_u32 s{sH}, s{sH}, s{sT2}",
          f"s_lshr_b32 s{sRB}, s{sT0}, 1", f"s_lshl_b32 s{sRB}, s{sRB}, 2",
          f"s_lshr_b32 s{sT2}, s{sT1}, 3", f"s_add_u32 s{sRB}, s{sRB}, s{sT2}",
          f"s_and_b32 s{sPar}, s{sH}, 1", f"s_lshr_b32 s{sHH}, s{sH}, 1",
          f"s_and_b32 s{sT0}, s2, 1", f"s_xor_b32 s{sZ}, s{sPar}, s{sT0}", f"s_xor_b32 s{sZ}, s{sZ}, 1"]
    o += common_setup()
    o += [f"s_cmp_lt_u32 s{sWave}, 4", "!s_cbranch_scc1 L_cwave",
          f"s_cmp_ge_u32 s{sWave}, 6", "!s_cbranch_scc1 L_xwave"]
    return o


vXA, vW0, vW1, vQB, vQA, vLow, vSt = 2, 6, 7, 8, 9, 14, 15
PK = 16
WB = 32
MK = 56
accA, accB = 64, 96
XF = 128
QF = 240
vMA, vMB = 248, 249
TMP = 250
sMask = 40
sL2E, sEps, sKS, sTile, sSt = 72, 73, 39, 75, 36


def c_setup():
    o = []
    lo, hh, t0, t1, t2 = 20, 21, 22, 23, 24
    o += [f"v_and_b32 v{lo}, 31, v0", f"v_lshrrev_b32 v{hh}, 5, v0",
          f"s_lshl_b32 s{sTile}, s{sRB}, 2", f"s_add_u32 s{sTile}, s{sTile}, s{sWave}",
          f"s_mov_b32 s{sL2E}, {fhex(LOG2E)}", f"s_mov_b32 s{sEps}, {fhex(1e-6)}", f"s_mov_b32 s{sKS}, {fhex(KSCALE)}"]
    o += [f"v_bfe_u32 v{t0}, v0, 1, 3", f"v_xor_b32 v{t0}, v{t0}, v{hh}",
          f"s_lshl_b32 s{sT0}, s{sWave}, 12",
          f"v_add_u32 v{vSt}, s{sT0}, v{vL16}",
          f"v_lshlrev_b32 v{t1}, 7, v{lo}", f"v_add_u32 v{t1}, s{sT0}, v{t1}"]
    for s in range(4):
        o += [f"v_xor_b32 v{t2}, {2*s}, v{t0}", f"v_lshl_add_u32 v{vXA+s}, v{t2}, 4, v{t1}"]
    r, cg, row = 25, 26, 27
    o += [f"v_bfe_u32 v{r}, v0, 2, 2", f"v_bfe_u32 v{t0}, v0, 4, 1", f"v_and_b32 v{cg}, 3, v0",
          f"v_lshl_add_u32 v{cg}, v{t0}, 2, v{cg}",
          f"v_lshl_add_u32 v{row}, v{hh}, 3, v{r}"]
    o += [f"v_lshrrev_b32 v{t0}, 1, v{r}",
          f"v_lshlrev_b32 v{t1}, 7, v{row}", f"v_add_u32 v{t1}, 65536, v{t1}",
          f"v_lshl_add_u32 v{vW0}, v{t0}, 6, v{t1}",
          f"v_xor_b32 v{vW1}, 64, v{vW0}",
          f"v_lshl_add_u32 v{vW0}, v{cg}, 3, v{vW0}",
          f"s_xor_b32 s{sT0}, s{sZ}, 1",
          f"v_add_u32 v{t2}, s{sT0}, v{cg}", f"v_and_b32 v{t2}, 7, v{t2}",
          f"v_lshl_add_u32 v{vW1}, v{t2}, 3, v{vW1}"]
    o += [f"v_lshlrev_b32 v{t1}, 6, v{row}",
          f"v_add_u32 v{t2}, s{sPar}, v{cg}", f"v_and_b32 v{t2}, 7, v{t2}",
          f"v_lshl_add_u32 v{vQB}, v{t2}, 3, v{t1}", f"v_add_u32 v{vQB}, {QBB}, v{vQB}",
          f"v_and_b32 v{t0}, 1, v{cg}", f"v_lshlrev_b32 v{t0}, 1, v{t0}",
          f"v_bfe_u32 v{t2}, v{cg}, 1, 1", f"v_or_b32 v{t0}, v{t0}, v{t2}",
          f"v_and_b32 v{t2}, 4, v{cg}", f"v_or_b32 v{t0}, v{t0}, v{t2}",
          f"v_lshl_add_u32 v{vQA}, v{t0}, 3, v{t1}", f"v_add_u32 v{vQA}, {QBB}, v{vQA}"]
    o += [f"v_add_u32 v{vLow}, -1, v{hh}",
          f"s_sub_u32 s{sT0}, s{sPar}, 1",
          f"v_not_b32 v{t0}, v{vLow}",
          f"v_or_b32 v{vMA}, s{sT0}, v{t0}",
          f"s_not_b32 s{sT0}, s{sT0}",
          f"v_or_b32 v{vMB}, s{sT0}, v{vLow}"]
    o += [f"v_lshlrev_b32 v{t0}, 2, v{hh}", f"v_sub_u32 v{t0}, v{lo}, v{t0}"]
    for rr in range(16):
        b = 8 * (rr >> 2) + (rr & 3)
        o.append(f"v_cmp_le_i32 s[{sMask+2*rr}:{sMask+2*rr+1}], {b}, v{t0}")
    o += [f"v_mov_b32 v{t1}, 0xffff", f"v_mov_b32 v{t2}, 0xffff0000"]
    for p in range(8):
        o += [f"v_cndmask_b32 v{MK+p}, 0, v{t1}, s[{sMask+4*p}:{sMask+4*p+1}]",
              f"v_cndmask_b32 v{t0}, 0, v{t2}, s[{sMask+4*p+2}:{sMask+4*p+3}]",
              f"v_or_b32 v{MK+p}, v{MK+p}, v{t0}"]
    return o


def gemm_frags(isY):
    fr = []
    for k in range(28):
        c, s = divmod(k, 4)
        order = [(0, 0), (0, 1), (1, 0), (1, 1)] if k < 27 else [(1, 0), (1, 1), (0, 0), (0, 1)]
        for i, (p, j) in enumerate(order):
            fr.append(dict(step=c, addr=(vW0, vW1)[j], off=XR(c) + 8192 * p + s * 2048, du=512, k=k,
                           acc=(accA, accB)[p] + 16 * j, wfirst=(p == 0 and not isY), pre=[],
                           xread=(f"ds_read_b128 v[{XF+4*k}:{XF+4*k+3}], v{vXA+s} offset:{XR(c)}" if i == 0 else None)))
    for q, a in enumerate((vQB, vQA)):
        for k in range(28):
            c, s = divmod(k, 4)
            loc = QLOC[7 * q + c]
            base = QBB if loc >= QBB else 49152
            pre = [f"v_subrev_u32 v{vQA}, {QBB-49152}, v{vQA}"] if (q, k) == (1, 12) else []
            fr.append(dict(step=7 + 7 * q + c, addr=a, off=loc - base + s * 1024, du=256, k=k,
                           acc=accB + 16 * q, wfirst=True, pre=pre, xread=None))
    return fr


def need_step(st):
    if st < 7:
        return st
    base = 7 if st < 14 else 14
    return base + {0: 0, 1: 2, 2: 2, 3: 4, 4: 4, 5: 6, 6: 6}[st - base]


def gemm_slots(isY):
    fr = gemm_frags(isY)
    N = len(fr)
    D = 5
    slots = []
    issued = 0
    checked = set()
    early = {}
    for n in range(N):
        cur = []
        f = fr[n]
        lim = 3 if n == 0 else min(n + D, N - 1)
        while issued <= lim:
            g = fr[issued]
            st = need_step(g['step'])
            if st not in checked:
                checked.add(st)
                if st == 0:
                    cur += stamp(8, 's') + wait_land(st, inline=True) + stamp(1)
                else:
                    cur += early[st]
                if st == 5:
                    cur += ["s_waitcnt vmcnt(0)"]
            b = WB + 4 * (issued % 6)
            cur += g['pre']
            if g['xread']:
                cur.append(g['xread'])
            cur += [tr(b, g['addr'], g['off']), tr(b + 2, g['addr'], g['off'] + g['du'], tag=f"f{issued}")]
            issued += 1
            last_of_step = issued == N or fr[issued]['step'] != g['step']
            if last_of_step:
                ev = {0: E_PA, 1: E_PA, 2: E_PA, 3: E_PA, 6: E_P2, 13: E_P3A, 20: E_P3}.get(g['step'])
                if ev is not None:
                    cur += signal(ev)
        if issued + 1 < N:
            st = need_step(fr[issued + 1]['step'])
            if st > 0 and st not in early:
                rd, early[st] = wait_land(st, q=vFq + 2)
                cur += rd
        if n % 2 == 0:
            cur.append(f"@wait_ds f{n+1}")
        b = WB + 4 * (n % 6)
        x = XF + 4 * f['k']
        A, B = (b, x) if f['wfirst'] else (x, b)
        cur.append(mfma(f['acc'], A, B, f['acc'] if f['k'] else None))
        slots.append(cur)
    if OPT.get('alt') == 2:
        for i in range(11):
            n = OPT['cst'] + i * OPT.get('cstep', 4)
            if n < len(slots):
                slots[n] = stamp(i + 1, 'f') + slots[n]
    return slots


def phi_pair(a, b, ta, tb, dst, l2e, eps):
    return [f"v_mul_f32 v{ta}, s{l2e}, v{a}", f"v_mul_f32 v{tb}, s{l2e}, v{b}",
            f"v_exp_f32_e64 v{ta}, v{ta} clamp", f"v_exp_f32_e64 v{tb}, v{tb} clamp",
            f"v_max_f32 v{a}, 0, v{a}", f"v_max_f32 v{b}, 0, v{b}",
            f"v_add_f32 v{a}, v{a}, v{ta}", f"v_add_f32 v{b}, v{b}, v{tb}",
            f"v_add_f32 v{a}, s{eps}, v{a}", f"v_add_f32 v{b}, s{eps}, v{b}",
            f"v_cvt_pk_bf16_f32 v{dst}, v{a}, v{b}"]


def c_gemm(isY):
    slots = gemm_slots(isY)
    pa, p3a, p3b = slots[:112], slots[112:140], slots[140:168]
    o = []
    for s in pa:
        o += s
    o += stamp(2)
    wr = lambda d, i, base: f"ds_write_b128 v{vSt}, v[{d}:{d+3}] offset:{base + 1024*i}"
    vc = lambda j: [f"v_cvt_pk_bf16_f32 v{PK+8*j+i}, v{accB+16*j+2*i}, v{accB+16*j+2*i+1}" for i in range(8)]
    vw = [wr(PK + 4 * i, i, STV) for i in range(4)]
    o += vc(0)
    if not isY:
        f = []
        for j in range(2):
            a = accA + 16 * j
            for i in range(8):
                f += [f"v_mul_f32 v{a+2*i}, s{sKS}, v{a+2*i}", f"v_mul_f32 v{a+2*i+1}, s{sKS}, v{a+2*i+1}",
                      f"v_cvt_pk_bf16_f32 v{a+i}, v{a+2*i}, v{a+2*i+1}"]
            f += [f"v_permlane32_swap_b32 v{a+x}, v{a+x+2}" for x in (0, 1, 4, 5)]
            f += [wr(a + 4 * e, 2 * j + e, STK) for e in range(2)]
        f += signal(R_K) + vc(1) + vw + signal(R_V)
        per = OPT.get('kper', 40)
    else:
        f = vc(1) + vw + signal(R_V)
        for p in range(16):
            a = accA + 16 * (p // 8)
            i = p % 8
            f += phi_pair(a + 2 * i, a + 2 * i + 1, TMP, TMP + 1, a + i, sL2E, sEps)
            if p % 4 == 3:
                f.append(wr(a + i - 3, p // 4, STK))
        f += signal(R_K)
        per = OPT.get('yper', 40)
    o += merge(p3a, f, start=0, per=per)
    o += stamp(4)
    f = [f"v_cvt_pk_bf16_f32 v{PK+i}, v{accB+2*i}, v{accB+2*i+1}" for i in range(8)]
    f += [wr(PK, 0, STQ), wr(PK + 4, 1, STQ)] + signal(R_Q)
    o += merge(p3b, f, start=4, per=2)
    o += stamp(5)
    a = accB + 16
    o += [f"v_cvt_pk_bf16_f32 v{QF+i}, v{a+2*i}, v{a+2*i+1}" for i in range(8)]
    o += [f"v_and_b32 v{QF}, v{QF}, v{vMA}", f"v_and_b32 v{QF+1}, v{QF+1}, v{vMA}",
          f"v_and_b32 v{QF+6}, v{QF+6}, v{vMB}", f"v_and_b32 v{QF+7}, v{QF+7}, v{vMB}"]
    return o


CM, SA, SB, SC, SF, SX = 16, 32, 64, 80, 96, 112
KFR = 128
PA, PB, PF = 200, 208, 216
OACC = 96
VF = (224, 232)
vKA, vVA, vMx, vG = 2, 3, 4, 5
NEG = '0xf149f2ca'


def attention(guard):
    sI0 = sSt
    o = []

    def kread(i):
        b = KFR + 8 * i
        return [f"ds_read_b128 v[{b+4*s}:{b+4*s+3}], v{vKA} offset:{2048*i+1024*s} ;@tag=k{i}" for s in range(2)]

    def vread(i, buf):
        return [f"ds_read_b128 v[{buf+4*s}:{buf+4*s+3}], v{vVA} offset:{2048*i+1024*s} ;@tag=v{i}" for s in range(2)]

    def qk(d, i, c):
        b = KFR + 8 * i
        return [mfma(d, b, QF, c), mfma(d, b + 4, QF + 4, d)]

    def setc(i, src):
        L, Lb = lab('g'), lab('gb')
        slow.extend([f"{L}:", "s_nop 7"] + [f"v_mov_b32 v{CM+r}, {src}" for r in range(16)] + [f"s_branch {Lb}"])
        return [f"s_cmp_eq_u32 s{sI0}, {i}", f"!s_cbranch_scc1 {L}", f"!{Lb}:"]

    def maxes(s, first):
        m = []
        if first:
            m.append(f"v_max3_f32 v{vMx}, v{s}, v{s+1}, v{s+2}")
            rest = list(range(3, 16))
        else:
            rest = list(range(16))
        while rest:
            if len(rest) >= 2:
                m.append(f"v_max3_f32 v{vMx}, v{vMx}, v{s+rest[0]}, v{s+rest[1]}")
                rest = rest[2:]
            else:
                m.append(f"v_max_f32 v{vMx}, v{vMx}, v{s+rest[0]}")
                rest = []
        return m

    C1 = CM if guard else None
    if guard:
        o += [f"v_mov_b32 v{CM+r}, {NEG}" for r in range(16)]
    o += wait_land(ST_K, inline=True)
    o += stamp(6)
    order = [0, 1, 2, 3, 4, 5, 6, 7, 8] if guard else [0, 8, 1, 2, 3, 4, 5, 6, 7]
    b1 = {0: SF, 8: SC}
    bufs = {}
    for i in range(1, 8):
        b1[i] = (SA, SB, SX)[i % 3]
        bufs[i] = (SA, SB)[i % 2]
    mrg = [f"v_cndmask_b32 v{SC+r}, v{SF+r}, v{SC+r}, s[{sMask+2*r}:{sMask+2*r+1}]" for r in range(16)]
    work = {}
    for i in range(1, 8):
        work[i] = maxes(b1[i], first=(guard and i == 1))
    work[8] = mrg + maxes(SC, first=not guard)
    work[0] = []
    o += kread(order[0]) + kread(order[1]) + kread(order[2])
    q = []
    for n, i in enumerate(order):
        if guard:
            o += setc(i, "0")
        m = qk(b1[i], i, C1)
        nxt = kread(order[n + 3]) if n + 3 < 9 else []
        take = 4 if len(q) <= 12 else 6
        o += [f"@wait_ds k{i}", m[0]] + q[:take] + [m[1]] + nxt
        q = q[take:]
        if n >= 1:
            q = q + work[order[n - 1]]
        must = len(q) - len(work[order[n - 1]]) if n >= 1 else 0
        take = max(must, 4 if len(q) <= 12 else 6)
        o += q[:take]
        q = q[take:]
    vrd, vchk = wait_land(ST_V)
    o += vrd + q + work[order[-1]][:4] + vchk
    o += vread(0, VF[0]) + vread(8, VF[1])
    o += work[order[-1]][4:]
    t = TMP
    o += [f"v_mov_b32 v{t}, v{vMx}", f"v_permlane32_swap_b32 v{t}, v{vMx}",
          f"v_max_f32 v{vMx}, v{vMx}, v{t}", f"v_sub_f32 v{vMx}, 0, v{vMx}"]
    o += stamp(7)
    if guard:
        o += [f"v_mov_b32 v{CM+r}, {NEG}" for r in range(16)]
        o += setc(1, f"v{vMx}")
    else:
        o += [f"v_mov_b32 v{CM+r}, v{vMx}" for r in range(16)]

    def expcvt(s, p, sub):
        e = []
        for r in range(16):
            if sub:
                e.append(f"v_add_f32 v{s+r}, v{s+r}, v{vMx}")
        for r in range(16):
            e.append(f"v_exp_f32 v{s+r}, v{s+r}")
            if r % 2 == 1 and r >= 3:
                e.append(f"v_cvt_pk_bf16_f32 v{p+(r-3)//2}, v{s+r-3}, v{s+r-2}")
        e.append(f"v_cvt_pk_bf16_f32 v{p+7}, v{s+14}, v{s+15}")
        return e

    def spread(mf, va):
        r = []
        n = len(mf)
        k = 0
        for idx, g in enumerate(mf):
            r += g
            want = (len(va) * (idx + 1)) // n - k
            r += va[k:k + want]
            k += want
        return r

    ev = expcvt(SC, PA, True)
    ev += [x for p in range(8) for x in (f"v_and_b32 v{PB+p}, v{PA+p}, v{MK+p}", f"v_xor_b32 v{PF+p}, v{PA+p}, v{PB+p}")]
    q1 = qk(bufs[1], 1, CM)
    o += spread([[q1[0]], [q1[1]]], ev)
    prev_pv = [["@wait_ds v8", mfma(OACC, VF[0], PF, None)], [mfma(OACC, VF[0] + 4, PF + 4, OACC)] + vread(1, VF[0]),
               [mfma(OACC, VF[1], PB, OACC)], [mfma(OACC, VF[1] + 4, PB + 4, OACC)] + vread(2, VF[1])]
    gearly, glate = check_ev(GRDY, 'own', vG)
    for i in range(1, 8):
        P = (PB, PA)[i % 2]
        seq = []
        if i + 1 <= 7:
            if guard:
                o += setc(i + 1, f"v{vMx}")
            nq = qk(bufs[i + 1], i + 1, CM)
            seq += [[nq[0]], [nq[1]]]
        seq += prev_pv
        if i == 6:
            seq[-1] = seq[-1] + gearly
        if i == 7:
            seq[0] = glate + [f"ds_read_b32 v{vG}, v{vGA}", f"ds_read_b32 v{vEc}, v{vM} offset:{16*EPOCH}"] + seq[0]
        o += spread(seq, expcvt(bufs[i], P, False))
        vb = VF[(i + 1) % 2]
        prev_pv = [[f"@wait_ds v{i}", mfma(OACC, vb, P, OACC)],
                   [mfma(OACC, vb + 4, P + 4, OACC)] + (vread(i + 2, vb) if i + 2 <= 7 else [])]
    o += prev_pv[0] + prev_pv[1]
    return o


vGA, vEc = 8, 6


def finish_o(A, D, vscale, t, u, soff, vtag, snot, eps=None):
    o = [f"v_mov_b32 v{t}, v{A+15}", f"v_mov_b32 v{u}, v{A+15}", f"v_permlane32_swap_b32 v{t}, v{u}"]
    if eps is not None:
        o += [f"v_add_f32 v{u}, s{eps}, v{u}"]
    o += [f"v_rcp_f32 v{u}, v{u}", f"v_mov_b32 v{t}, 0xffff", f"v_mul_f32 v{u}, v{u}, v{vscale}"]
    for p in range(8):
        o += [f"v_mul_f32 v{A+2*p}, v{A+2*p}, v{u}"]
        if p % 4 != 3:
            o += [f"v_mul_f32 v{A+2*p+1}, v{A+2*p+1}, v{u}"]
        o += [f"v_cvt_pk_bf16_f32 v{D+p}, v{A+2*p}, v{A+2*p+1}"]
        if p % 4 == 3:
            e = p // 4
            o += [f"v_bfi_b32 v{D+p}, v{t}, v{D+p}, v{vtag}",
                  f"buffer_store_dwordx4 v[{D+4*e}:{D+4*e+3}], v{vL16}, s[{sWSD}:{sWSD+3}], s{soff} offen offset:{1024*e} sc1"]
    return o + notify(snot, t, vtag)


def c_tail():
    o = finish_o(OACC, PA, vG, TMP, TMP + 1, sSt + 1, vEc, sSt + 2)
    o += signal(E_OA)
    o += stamp(3)
    if OPT.get('alt') == 8:
        o += ["s_waitcnt vmcnt(1)", f"!s_memtime s[{sStamp+8}:{sStamp+9}]", "s_waitcnt vmcnt(0)", f"!s_memtime s[{sStamp+10}:{sStamp+11}]"]
    o += c_phase3()
    o += stamp_flush(TMP, 0)
    o += ["s_endpgm"]
    return o


def c_wave():
    ROLE[0] = 'C'
    o = ["@reset", "L_cwave:"] + stamp(4, 's')
    o += ["v_lshlrev_b32 v20, 3, v0", "v_mov_b32 v22, 0", "v_mov_b32 v23, 0", f"v_add_u32 v20, {MISC}, v20", "ds_write_b64 v20, v[22:23]",
          ]
    o += c_setup()
    o += stamp(5, 's') + ["s_waitcnt lgkmcnt(0)"] + stamp(6, 's') + ["s_barrier"] + stamp(7, 's')
    o += srd(sWSD, sWS, WS_SIZE)
    o += [f"s_cmp_eq_u32 s{sZ}, 0", "!s_cbranch_scc1 L_cY"]
    o += c_gemm(False)
    o += ["s_branch L_attn", "@reset", "L_cY:"]
    o += c_gemm(True)
    o += ["L_attn:", f"s_setprio {OPT.get('cprio', 0)}"]
    o += [f"s_lshl_b32 s{sT0}, s{sWave}, 11",
          f"s_add_u32 s{sT1}, s{sT0}, {KL}", f"v_add_u32 v{vKA}, s{sT1}, v{vL16}",
          f"s_add_u32 s{sT1}, s{sT0}, {VL}", f"v_add_u32 v{vVA}, s{sT1}, v{vL16}",
          f"s_lshl_b32 s{sT0}, s{sWave}, 8", f"s_add_u32 s{sT0}, s{sT0}, {GL}", f"v_lshl_add_u32 v{vGA}, v0, 2, s{sT0}",
          f"s_lshl_b32 s{sT0}, s{sWave}, 2", f"s_add_u32 s{sT0}, s{sT0}, {MISC}", f"v_mov_b32 v{vOwn}, s{sT0}",
          f"s_lshl_b32 s{sT0}, s{sTile}, 4", f"s_add_u32 s{sT0}, s{sT0}, s{sH}",
          f"s_lshl_b32 s{sT1}, s{sT0}, 7", f"s_add_u32 s{sSt+2}, s{sT1}, {NA}",
          f"s_lshl_b32 s{sT0}, s{sT0}, 11", f"s_add_u32 s{sSt+1}, s{sT0}, {OA}",
          f"s_cmp_lt_u32 s{sTile}, 8", "!s_cbranch_scc1 L_attn_g"]
    o += attention(False)
    o += ["L_ctail:"]
    o += c_tail()
    o += ["@reset", "L_attn_g:", f"s_sub_u32 s{sSt}, 8, s{sTile}"]
    o += attention(True)
    o += ["s_waitcnt lgkmcnt(0)", "s_nop 15", "s_branch L_ctail", "@reset"]
    return o


def code_prefetch():
    n = OPT['prefetch']
    if not n:
        return []
    o = ["s_getpc_b64 s[38:39]", "L_pc:",
         f"s_sub_u32 s38, s38, L_pc-{NAME}_kernel", "s_subb_u32 s39, s39, 0",
         f"s_lshr_b32 s{sT0}, s2, 3", f"s_lshl_b32 s{sT1}, s{sWave}, 5", f"s_add_u32 s{sT0}, s{sT0}, s{sT1}",
         f"s_mul_i32 s{sT0}, s{sT0}, {128*n}",
         f"v_lshl_add_u32 v20, v0, 7, s{sT0}",
         f"v_min_u32 v20, L_end-{NAME}_kernel-4, v20",
         f"s_mov_b64 exec, {(1 << n) - 1}",
         "!global_load_dword v239, v20, s[38:39]", "s_mov_b64 exec, -1"]
    return o


sXD, sWD, sQBD, sQAD, sGD = 36, 40, 44, 48, 52
sKGD, sVGD = 56, 60
sRt, sTT, sE2, sL2 = 64, 65, 66, 67
sOBo, sA, sB, sC = 68, 69, 70, 71
sOff, sLi, sKh = 72, 73, 75
sEarly = 61
sOBn = 62
sNo = 63
sC7 = 53
sCc, sCx, sCw, sRot = 60, 20, 21, 61
sOBd = 60
vX, vW, vQ, vPat, vK, vV, vWO = 2, 3, 4, 5, 6, 7, 8
vEp = 15
GV = 16
HQ = 28
PQR = 16
vG1 = 27
KVr = 88
sRet = 54


def p3_slot():
    return [f"s_and_b32 s{sT0}, s{sRB}, 3", f"s_lshl_b32 s{sT0}, s{sT0}, 3", f"s_and_b32 s{sT1}, s{sH}, 7",
            f"s_add_u32 s{sJ3}, s{sT0}, s{sT1}",
            f"s_cmp_ge_u32 s{sJ3}, 14", f"s_cselect_b32 s{sT0}, 14, 0", f"s_cselect_b32 s{sT1}, 1, 0",
            f"s_sub_u32 s{sT0}, s{sJ3}, s{sT0}", f"s_lshr_b32 s{sCT}, s{sT0}, 1", f"s_and_b32 s{sT0}, s{sT0}, 1",
            f"s_lshr_b32 s{sT2}, s{sH}, 3", f"s_lshl_b32 s{sT2}, s{sT2}, 1", f"s_add_u32 s{sT1}, s{sT1}, s{sT2}",
            f"s_and_b32 s{sT2}, s{sRB}, 12", f"s_add_u32 s{sT1}, s{sT1}, s{sT2}",
            f"s_lshl_b32 s{sT1}, s{sT1}, 1", f"s_add_u32 s{sT1}, s{sT1}, s{sT0}", f"s_lshl_b32 s{sTB}, s{sT1}, 1"]


def h_setup():
    return p3_slot() + [
            f"s_lshl_b32 s{sT0}, s{sW4}, 2", f"s_add_u32 s{sT0}, s{sT0}, {MISC}", f"v_mov_b32 v{vOwn}, s{sT0}",
            f"v_lshrrev_b32 v{vLow}, 5, v0", f"v_add_u32 v{vLow}, -1, v{vLow}",
            f"s_mov_b32 s{sE2}, {fhex(1e-6)}", f"s_mov_b32 s{sL2}, {fhex(LOG2E)}",
            f"s_lshl_b32 s{sT0}, s{sRB}, 2", f"s_add_u32 s{sT0}, s{sT0}, s{sW4}", f"s_lshl_b32 s{sT0}, s{sT0}, 4",
            f"s_add_u32 s{sT0}, s{sT0}, s{sH}",
            f"s_lshl_b32 s{sT1}, s{sT0}, 7", f"s_add_u32 s{sOBn}, s{sT1}, {NB}",
            f"s_lshl_b32 s{sT0}, s{sT0}, 11", f"s_add_u32 s{sOBo}, s{sT0}, {OB}"]


def qb_phi():
    R, A = 96, 64
    t, u = 24, 25
    o = spin_ev(R_Q, 'own', HQ)
    o += [f"s_lshl_b32 s{sT0}, s{sW4}, 12", f"v_add_u32 v{t}, s{sT0}, v{vL16}",
          f"ds_read_b128 v[{R}:{R+3}], v{t}", f"ds_read_b128 v[{R+4}:{R+7}], v{t} offset:1024",
          f"s_lshl_b32 s{sT0}, s{sW4}, 8", f"s_add_u32 s{sT0}, s{sT0}, {GL}", f"v_lshl_add_u32 v{26}, v0, 2, s{sT0}",
          f"v_lshlrev_b32 v{t}, 16, v{R+6}", f"v_lshlrev_b32 v{u}, 16, v{R+6}",
          f"v_permlane32_swap_b32 v{t}, v{u}",
          f"v_mul_f32 v{u}, s{sL2}, v{u}", f"v_exp_f32_e64 v{u}, -v{u}", f"v_add_f32 v{u}, 1.0, v{u}",
          f"v_rcp_f32 v{u}, v{u}", f"ds_write_b32 v26, v{u}"] + signal(GRDY) + [f"v_sub_f32 v{vG1}, 1.0, v{u}"]
    for p in range(8):
        o += [f"v_lshlrev_b32 v{A+2*p}, 16, v{R+p}", f"v_and_b32 v{A+2*p+1}, 0xffff0000, v{R+p}"]
        o += phi_pair(A + 2 * p, A + 2 * p + 1, t, u, PQR + p, sL2, sE2)
    o += [f"v_and_b32 v{PQR+6}, v{PQR+6}, v{vLow}", f"v_and_b32 v{PQR+7}, v{PQR+7}, v{vLow}"]
    return o


def ob_tile(read_kv=True):
    o = []
    if read_kv:
        o += spin_ev(KVRDY, 3, HQ)
        o += [f"v_add_u32 v24, {KVF}, v{vL16}",
              f"ds_read_b128 v[{KVr}:{KVr+3}], v24", f"ds_read_b128 v[{KVr+4}:{KVr+7}], v24 offset:1024"]
    o += [mfma(64, KVr, PQR, None), mfma(64, KVr + 4, PQR + 4, 64)]
    o += finish_o(64, 80, vG1, 24, 25, sOBo, vEp, sOBn, eps=sE2)
    return o


def call(name):
    return ["@drain", f"!s_call_b64 s[{sRet}:{sRet+1}], L_sub_{name}", "@reset"]


def subroutines():
    o = []
    for name, body in (("phi", qb_phi()), ("ob", ob_tile()), ("r0", woa_read(0) + signal(R1)), ("r1", woa_read(1))):
        o += ["@reset", f"L_sub_{name}:"] + body + ["s_waitcnt lgkmcnt(0)", f"!s_setpc_b64 s[{sRet}:{sRet+1}]"]
    for name, w in (("d7", f"!s_waitcnt vmcnt({OPT.get('wlead', 20) - 1})"), ("d7e", f"!s_waitcnt vmcnt({OPT.get('elead', 14) - 1})")):
        o += ["@reset", f"L_sub_{name}:"]
        for m in range(7):
            o += [w, f"!buffer_load_dwordx4 v{vWO}, s[{sXD}:{sXD+3}], s{sOff} offen lds",
                  f"!s_add_u32 s{sOff}, s{sOff}, s{sC7}", "!s_addk_i32 m0, 1024"]
        o += [f"!s_setpc_b64 s[{sRet}:{sRet+1}]"]
    return o


def wait_serving(rd, red, cmp_ok, early=None):
    L, L1, L2 = lab('ws'), lab('ws1'), lab('ws2')
    o = ["@drain", f"s_mov_b32 s{sTO}, 0", f"!{L}:", "!" + rd, f"!ds_read_b32 v24, v{vM} offset:{16*KVRDY+12}"]
    o += ["!" + x for x in _tmo()]
    o += ["!s_waitcnt lgkmcnt(0)", f"!v_cmp_lt_u32 vcc, s{sOBd}, v24", f"!s_cbranch_vccz {L1}",
          f"!s_call_b64 s[{sRet}:{sRet+1}], L_sub_ob", f"!s_mov_b32 s{sOBd}, 1", f"!s_mov_b32 s{sTO}, 0", f"!s_branch {L}", f"!{L1}:"]
    o += ["!" + x for x in red + [cmp_ok, f"s_cbranch_vccnz {L2}"]]
    if early is not None:
        o += [f"!s_mov_b32 s{early}, 1"]
    o += [f"!s_sleep {OPT.get('ssleep', 2)}", f"!s_branch {L}", "@reset", f"!{L2}:"]
    return o


def serve_ev(ev, early=None):
    return wait_serving(f"ds_read_b128 v[{HQ}:{HQ+3}], v{vM} offset:{16*ev}",
                        [f"v_min3_u32 v{HQ}, v{HQ}, v{HQ+1}, v{HQ+2}", f"v_min_u32 v{HQ}, v{HQ}, v{HQ+3}"],
                        f"v_cmp_ne_u32 vcc, 0, v{HQ}", early)


def serve_land(st):
    return wait_serving(f"ds_read_b32 v{HQ}, v{vM} offset:{256+4*st}", [], f"v_cmp_eq_u32 vcc, 2, v{HQ}")


def dma(vaddr, sd, soff, lds, extra="", tag=None, sbase=None):
    o = [f"s_add_u32 m0, s{sLi}, {lds}"]
    if sbase is not None:
        if soff:
            o.append(f"s_add_u32 s{sOff}, s{sbase}, {soff}")
            so = f"s{sOff}"
        else:
            so = f"s{sbase}"
    elif soff:
        o.append(f"s_mov_b32 s{sOff}, {soff}")
        so = f"s{sOff}"
    else:
        so = "0"
    o.append(f"buffer_load_dwordx4 v{vaddr}, s[{sd}:{sd+3}], {so} offen {extra} lds" + (f" ;@tag={tag}" if tag else ""))
    return o


def spin_vm(body, cond, sleep=0):
    L = lab('pv')
    o = [f"!s_mov_b32 s{sTO}, 0", f"!{L}:"]
    o += ["!" + b for b in body + _tmo()]
    o += ["s_waitcnt vmcnt(0)"]
    o += ["!" + c for c in cond]
    o += [f"!s_cbranch_vccnz {L}"]
    return o


def flag_ld(vdst, vaddr, soff):
    if 1:
        return [f"v_mov_b32 v{vdst}, 0", f"buffer_atomic_or v{vdst}, v{vaddr}, s[{sWSD}:{sWSD+3}], {soff} offen sc0 sc1"]
    return [f"buffer_load_dword v{vdst}, v{vaddr}, s[{sWSD}:{sWSD+3}], {soff} offen sc1"]


def light_poll(vdst, vaddr, soff, mask, cmp_bad, first_issued=False, sleep=None, flag=False, hook=None):
    sleep = OPT.get('psleep', 1) if sleep is None else sleep
    L, L2, L0 = lab('lp'), lab('lpx'), lab('lp0')
    ld = f"buffer_load_dword v{vdst}, v{vaddr}, s[{sWSD}:{sWSD+3}], {soff} offen sc1"
    o = [f"s_mov_b64 exec, {mask}", f"s_mov_b32 s{sTO}, 0"]
    if first_issued:
        o += [f"!s_branch {L0}"]
    o += [f"!{L}:"] + ["!!" + x for x in (flag_ld(vdst, vaddr, soff) if flag else [ld])] + [f"!{L0}:"] + ["!" + x for x in _tmo()] + ["s_waitcnt vmcnt(0)"]
    o += ["!" + c for c in cmp_bad]
    o += [f"!s_cbranch_vccz {L2}"]
    if hook:
        o += ["!!s_mov_b64 s[50:51], vcc", "!!s_mov_b64 exec, -1"] + ["!!" + x.lstrip('!') for x in hook if not x.startswith('@')] + ["!!s_mov_b64 vcc, s[50:51]"]
    o += ["!!s_mov_b64 exec, vcc"] + ([f"!!s_sleep {sleep}"] if sleep else []) + \
         [f"!!s_branch {L}", f"!{L2}:", "s_mov_b64 exec, -1"]
    return o


def notify(soff, vt, vep, fan=1):
    return [f"v_lshlrev_b32 v{vt}, 7, v0", f"s_mov_b64 exec, {(1 << fan) - 1}",
            f"buffer_store_dword v{vep}, v{vt}, s[{sWSD}:{sWSD+3}], s{soff} offen sc1", "s_mov_b64 exec, -1"]


def fmap(d, t):
    return [f"v_bfe_u32 v{d}, v0, 4, 1", f"v_bfe_u32 v{t}, v0, 2, 1", f"v_lshl_add_u32 v{d}, v{d}, 1, v{t}",
            f"v_mul_u32_u24 v{d}, 7, v{d}", f"v_bfe_u32 v{t}, v0, 3, 1", f"v_lshl_add_u32 v{d}, v{t}, 2, v{d}",
            f"v_and_b32 v{t}, 3, v0", f"v_add_u32 v{d}, v{d}, v{t}"]


def l_wave():
    ROLE[0] = 'L'
    o = [f"s_setprio {OPT.get('lprio', 2)}"]
    t0, t1, t2 = 24, 25, 26
    sHW = sW4
    o += [f"s_lshl_b32 s{sLi}, s{sHW}, 10",
          f"v_mov_b32 v{vMl}, v{vMs}", f"s_mov_b32 s{sT0}, {LANDC}", f"v_writelane_b32 v{vMl}, s{sT0}, 0"]
    o += [f"v_lshrrev_b32 v{t0}, 3, v0", f"s_lshl_b32 s{sT0}, s{sRB}, 4", f"s_add_u32 s{sT0}, s{sT0}, s{sHW}",
          f"s_lshl_b32 s{sT0}, s{sT0}, 3", f"v_add_u32 v{t1}, s{sT0}, v{t0}", f"v_mul_u32_u24 v{vX}, 896, v{t1}",
          f"v_lshrrev_b32 v{t1}, 4, v0", f"s_lshl_b32 s{sT0}, s{sHW}, 2", f"v_add_u32 v{t1}, s{sT0}, v{t1}",
          f"v_and_b32 v{t2}, 7, v0", f"v_xor_b32 v{t1}, v{t1}, v{t2}", f"v_lshl_add_u32 v{vX}, v{t1}, 4, v{vX}"]
    o += [f"s_lshl_b32 s{sT2}, s{sZ}, 4", f"s_add_u32 s{sT1}, s{sT2}, 112", f"s_add_u32 s{sT2}, s{sT2}, 48",
          f"s_mul_i32 s{sT1}, s{sT1}, s{sHH}", f"s_add_u32 s{sT1}, s{sT1}, 896",
          f"s_lshl_b32 s{sT0}, s{sHW}, 3", f"v_add_u32 v{t1}, s{sT0}, v{t0}", f"v_mul_u32_u24 v{vW}, 2688, v{t1}",
          f"v_bfe_u32 v{t1}, v0, 2, 1", f"v_bfe_u32 v{t2}, v0, 4, 1", f"v_xor_b32 v{t1}, v{t1}, v{t2}",
          f"v_mul_u32_u24 v{t2}, s{sT2}, v{t1}", f"v_add3_u32 v{vW}, v{vW}, v{t2}, s{sT1}",
          f"v_and_b32 v{t2}, 3, v0", f"v_lshl_add_u32 v{vW}, v{t2}, 4, v{vW}"]
    o += [f"s_mov_b32 s{sXD+2}, 1835008", f"s_mov_b32 s{sXD+3}, 0x20000",
          f"s_mov_b32 s{sWD+2}, 1204224", f"s_mov_b32 s{sWD+3}, 0x20000",
          f"s_cmp_eq_u32 s{sH}, 15", f"s_cselect_b32 s{sWD+2}, 0, s{sWD+2}",
          ] + {0: [f"s_mov_b32 s{sCc}, 0"],
               1: [f"s_xor_b32 s{sT0}, s{sRB}, s{sH}", f"s_and_b32 s{sT0}, s{sT0}, 1", f"s_mul_i32 s{sCc}, s{sT0}, {OPT.get('rotk', 3)}"],
               2: [f"s_add_u32 s{sT0}, s{sRB}, s{sH}", f"s_and_b32 s{sT0}, s{sT0}, 3", f"s_mul_i32 s{sCc}, s{sT0}, {OPT.get('rotk', 2)}"],
               3: [f"s_and_b32 s{sT0}, s{sRB}, 3", f"s_lshl_b32 s{sT0}, s{sT0}, 1", f"s_and_b32 s{sT1}, s{sH}, 7", f"s_add_u32 s{sCc}, s{sT0}, s{sT1}"],
               }[OPT.get('rotm', 1)] + [
          f"s_cmp_ge_u32 s{sCc}, 7", f"s_cselect_b32 s{sT0}, 7, 0", f"s_sub_u32 s{sCc}, s{sCc}, s{sT0}",
          f"s_cmp_ge_u32 s{sCc}, 7", f"s_cselect_b32 s{sT0}, 7, 0", f"s_sub_u32 s{sCc}, s{sCc}, s{sT0}",
          f"s_mov_b32 s{sRot}, s{sCc}",
          f"s_cmp_eq_u32 s{sZ}, 0"]
    o += stamp(1, 'f')
    o += ["s_waitcnt lgkmcnt(0)",
          f"s_mov_b32 s{sXD}, s{sX}", f"s_mov_b32 s{sXD+1}, s{sX+1}",
          f"s_cselect_b32 s{sWD}, s{sBW}, s{sAW}", f"s_cselect_b32 s{sWD+1}, s{sBW+1}, s{sAW+1}",
          f"s_lshl_b32 s{sCx}, s{sCc}, 7", f"s_mul_i32 s{sCw}, s{sCc}, {64*2688}"]
    nextc = [f"s_add_u32 s{sCc}, s{sCc}, 1", f"s_cmp_eq_u32 s{sCc}, 7", f"s_cselect_b32 s{sCc}, 0, s{sCc}"]
    setc_ = [f"s_lshl_b32 s{sCx}, s{sCc}, 7", f"s_mul_i32 s{sCw}, s{sCc}, {64*2688}"]
    ops = []
    for c in range(7):
        for ii in range(8):
            pre = (nextc + setc_) if (ii == 0 and c) else []
            ops.append((pre + dma(vX, sXD, 16 * ii * 896, XR(c) + 2048 * ii, sbase=sCx), c))
        for p in range(2):
            for ii in range(4):
                ops.append((dma(vW, sWD, 16 * ii * 2688 + 896 * p, WR(c) + 8192 * p + 2048 * ii, sbase=sCw), c))
    for q, sd in enumerate((sQBD, sQAD)):
        for c in range(7):
            for ii in range(2):
                pre = (nextc + setc_[1:]) if ii == 0 else []
                ops.append((pre + dma(vQ, sd, 32 * ii * 2688, QLOC[7 * q + c] + 2048 * ii, sbase=sCw), 7 + 7 * q + c))
    late = srd(sWSD, sWS, WS_SIZE) + srd(sQBD, sBW, 1204224) + srd(sQAD, sAW, 1204224) + srd(sGD, sGW, 896)
    late += [f"v_lshrrev_b32 v{t0}, 2, v0", f"s_lshl_b32 s{sT0}, s{sHW}, 4", f"v_add_u32 v{t0}, s{sT0}, v{t0}",
             f"v_mul_u32_u24 v{vQ}, 2688, v{t0}", f"v_and_b32 v{t1}, 3, v0", f"v_lshl_add_u32 v{vQ}, v{t1}, 4, v{vQ}",
             f"s_mul_i32 s{sT0}, s{sH}, 56", f"s_lshl_b32 s{sT1}, s{sPar}, 3", f"s_sub_u32 s{sT0}, s{sT0}, s{sT1}",
             f"v_add_u32 v{vQ}, s{sT0}, v{vQ}",
             f"v_bfe_u32 v{t0}, v0, 4, 1", f"v_lshlrev_b32 v{t0}, 5, v{t0}", f"v_and_b32 v{t1}, 15, v0",
             f"s_lshl_b32 s{sT0}, s{sHW}, 4", f"v_add3_u32 v{t0}, v{t0}, v{t1}, s{sT0}",
             f"v_lshlrev_b32 v27, 1, v{t0}",
             f"s_xor_b32 s{sT0}, s{sPar}, 1", f"s_mul_i32 s{sT0}, s{sT0}, 56", f"s_add_u32 s{sT0}, s{sT0}, {QBB}",
             f"v_lshl_add_u32 v{vPat}, v{t0}, 6, s{sT0}"]
    for c in range(7):
        late += [[f"s_lshl_b32 s{sT0}, s{sRot}, 7", f"buffer_load_ushort v{GV+c}, v27, s[{sGD}:{sGD+3}], s{sT0} offen",
                  f"s_add_u32 s{sRot}, s{sRot}, 1", f"s_cmp_eq_u32 s{sRot}, 7", f"s_cselect_b32 s{sRot}, 0, s{sRot}"]]
    late += [f"s_mul_i32 s{sT0}, s{sHW}, {VG}", [f"s_add_u32 s{sKGD}, s{sWS}, s{sT0}", f"s_addc_u32 s{sKGD+1}, s{sWS+1}, 0"],
             f"s_mov_b32 s{sKGD+2}, 1835008", f"s_mov_b32 s{sKGD+3}, 0x20000"]
    late += [f"s_lshl_b32 s{sT0}, s{sRB}, 2", f"s_sub_u32 s{sT0}, s{sT0}, 8", f"s_mul_i32 s{sA}, s{sT0}, 28672",
             f"s_mul_i32 s{sT1}, s{sH}, 7", f"s_lshr_b32 s{sT1}, s{sT1}, 1", f"s_lshl_b32 s{sT1}, s{sT1}, 9",
             f"s_add_u32 s{sT1}, s{sT1}, s{sA}",
             f"v_add_u32 v{vK}, s{sT1}, v{vL16}",
             f"s_mul_i32 s{sT1}, s{sH}, 448", f"s_add_u32 s{sT1}, s{sT1}, s{sA}",
             f"v_lshrrev_b32 v{t0}, 5, v0", f"v_mul_u32_u24 v{t0}, 7168, v{t0}"] + fmap(t1, t2) + [
             f"v_lshl_add_u32 v{t0}, v{t1}, 4, v{t0}", f"v_add_u32 v{vV}, s{sT1}, v{t0}"]
    vFl = 32
    late += [f"s_mul_i32 s{sT0}, s{sH}, 28", f"s_add_u32 s{sT1}, s{sT0}, 27",
             f"s_lshr_b32 s{sT0}, s{sT0}, 6", [f"s_lshr_b32 s{sT1}, s{sT1}, 6", f"s_cmp_eq_u32 s{sT0}, s{sT1}",
             f"s_cselect_b32 s{sB}, 0x15, 63"],
             f"s_min_u32 s{sT0}, s{sRB}, 2", f"s_lshl_b32 s{sT0}, s{sT0}, 1", f"s_sub_u32 s{sT0}, 4, s{sT0}",
             f"s_lshl_b32 s{sT1}, -1, s{sT0}", f"s_and_b32 s{sB}, s{sB}, s{sT1}", f"s_mov_b32 s{sB+1}, 0",
             f"s_lshl_b32 s{sT0}, s{sRB}, 4", f"s_add_u32 s{sT0}, s{sT0}, s{sH}", f"s_lshl_b32 s{sT0}, s{sT0}, 7",
             f"v_lshl_add_u32 v{vFl}, v0, 2, s{sT0}"]
    late += [h_setup()] + p3_early()
    late += [f"v_lshrrev_b32 v{t0}, 3, v0", f"s_mul_i32 s{sT0}, s{sHW}, 224", f"v_add_u32 v{t1}, s{sT0}, v{t0}",
             f"v_mul_u32_u24 v{vWO}, 896, v{t1}",
             f"v_bfe_u32 v{t1}, v0, 2, 1", f"v_bfe_u32 v{t2}, v0, 4, 1", f"v_xor_b32 v{t1}, v{t1}, v{t2}",
             f"v_lshl_add_u32 v{vWO}, v{t1}, 6, v{vWO}", f"v_and_b32 v{t2}, 3, v0", f"v_lshl_add_u32 v{vWO}, v{t2}, 4, v{vWO}",
             f"s_lshl_b32 s{sT0}, s{sCT}, 7", f"v_add_u32 v{vWO}, s{sT0}, v{vWO}"]
    pieces = [late[i:i + 6] for i in range(0, len(late), 6)]
    last_of = {}
    for n, (_, st) in enumerate(ops):
        last_of[st] = n
    def lead_at(n):
        return OPT['l1'] if ops[n][1] < 7 else OPT['l3']
    sig_next = 0

    def do_signal(st):
        r = [f"@wait_vm o{last_of[st]}"]
        if 7 <= st <= 13:
            r.append(f"ds_write_b16 v{vPat}, v{GV+st-7} offset:{QLOC[st-7]-QBB}")
        return r + land(st)

    def emit_ops(n0, n1, sig, fine):
        r = []
        for n in range(n0, n1):
            ins, st = ops[n]
            need = {64: 1, 80: 2, 96: 3, 124: 4}.get(n)
            if need:
                assert sig >= need
                r += spin_ev(E_PA, 'all', HQ, ge=need)
            ins = ins[:-1] + [ins[-1] + f" ;@tag=o{n}"]
            if n == 0:
                r += stamp(2, 'f')
            r += ins
            if n == 15:
                r += stamp(3, 'f') + ["s_barrier"] + stamp(4, 'f')
            if n >= 16 and pieces:
                r += sum([x if isinstance(x, list) else [x] for x in pieces.pop(0)], [])
            done = n - lead_at(n)
            if done >= 0 and n >= 15:
                r += [f"@wait_vm o{done}"]
            while sig < 21 and last_of[sig] <= done and n >= 15:
                r += do_signal(sig)
                r += {0: stamp(5, 'f'), 1: stamp(6, 'f'), 2: stamp(7, 'f'), 4: stamp(8, 'f'), 6: stamp(9, 'f'), 10: stamp(10, 'f')}.get(sig, [])
                sig += 1
        return r, sig

    def tail(sig, pf=False):
        r, sig = emit_ops(HOLD, len(ops), sig, False)
        r += stamp(1) + stamp(11, 'f')
        if pf and OPT.get('ypf', 0):
            r += [f"s_cmp_eq_u32 s{sHW}, 0", f"s_cselect_b32 s48, s{sAO}, s{sBO}", f"s_cselect_b32 s49, s{sAO+1}, s{sBO+1}",
                  f"s_and_b32 s{sT0}, s{sRB}, 3", f"s_lshl_b32 s{sT0}, s{sT0}, 2", f"s_and_b32 s{sT1}, s{sHH}, 3",
                  f"s_add_u32 s{sT0}, s{sT0}, s{sT1}", f"s_mul_i32 s{sT0}, s{sT0}, {196*128}",
                  f"v_lshl_add_u32 v33, v0, 7, s{sT0}", "s_mov_b32 exec_hi, 0x1ffff"]
            for i in range(4):
                r += [f"global_load_dword v{40+i}, v33, s[48:49]"] + ([f"v_add_u32 v33, {49*128}, v33"] if i < 3 else [])
            r += ["s_mov_b64 exec, -1"]
        for st in range(sig, 21):
            r += do_signal(st)
        return r
    HOLD = OPT.get('hold', 140)
    r, sig = emit_ops(0, HOLD, 0, True)
    assert not pieces
    o += r
    if HOLD < len(ops):
        o += [f"s_cmp_eq_u32 s{sZ}, 0", "!s_cbranch_scc0 L_lhold"]
    o += tail(sig, True)
    if HOLD < len(ops):
        o += ["s_branch L_ljoin", "@reset", "L_lhold:"]
        while last_of[sig] < HOLD:
            o += [f"s_waitcnt vmcnt({HOLD - 1 - last_of[sig]})"] + do_signal(sig)
            sig += 1
        o += spin_ev(X_PUB, 'hi', HQ)
        o += tail(sig)
        o += ["@reset", "L_ljoin:"]
    o += spin_ev(EPOCH, 0, vEp)
    d7 = [f"!s_call_b64 s[{sRet}:{sRet+1}], L_sub_d7e"]

    def batch(ptr, row0, lds, stride, n, sub=d7):
        return [f"s_mov_b32 s{sXD}, s{ptr}", f"s_mov_b32 s{sXD+1}, s{ptr+1}", f"s_mov_b32 s{sOff}, {row0*896}",
                f"s_mul_i32 s{sLi}, s{sHW}, {stride}", f"s_add_u32 m0, s{sLi}, {lds}"] + sub * n
    o += [f"s_mov_b32 s{sXD+2}, 401408", f"s_mov_b32 s{sC7}, 7168",
          f"s_cmp_ge_u32 s{sJ3}, 28", "!s_cbranch_scc1 L_lnoA"]
    if OPT.get('e1', 1):
        o += [f"s_cmp_eq_u32 s{sHW}, 0", "!s_cbranch_scc1 L_lnoA"]
    o += spin_ev(E_P2, 'all', HQ)
    if OPT.get('zgate', 1):
        o += [f"s_cmp_eq_u32 s{sZ}, 0", "!s_cbranch_scc1 L_lgoA"] + spin_ev(X_PUB, 'hi', HQ) + ["L_lgoA:"]
    o += batch(sAO, 0, WBA, WBAS, 3)
    if OPT.get('e1', 1):
        o += [f"v_subrev_u32 v{vWO}, {224*896}, v{vWO}", f"s_mov_b32 s{sOff}, 0", f"s_mov_b32 m0, {WBA}"] + d7 * 3
    o += ["L_lnoA:"]
    o += [f"s_cmp_eq_u32 s{sHW}, 0", "!s_cbranch_scc0 L_lgV"] + spin_ev(F_K, 'hi', HQ, ge=2) + ["s_branch L_lg", "L_lgV:"]
    o += spin_ev(E_P3A, 'all', HQ) + ["L_lg:"]
    o += stamp(6, 'z')
    o += [f"s_mul_i32 s{sT1}, s{sHW}, {FV-FK}", f"s_add_u32 s{sT1}, s{sT1}, {FK}"]
    o += light_poll(t1, 32, f"s{sT1}", f"s[{sB}:{sB+1}]", [f"v_cmp_ne_u32 vcc, v{t1}, v{vEp}"], flag=OPT.get('apoll', 1), sleep=OPT.get('fsleep', 2))
    o += stamp(2)
    if OPT.get('alt') == 5:
        o += [f"s_add_u32 s{sStamp+14}, s{sStamp}, s{sTO}"]
    o += [f"s_cmp_eq_u32 s{sHW}, 0", "!s_cbranch_scc0 L_lV"]
    for j in range(12):
        for e in range(2):
            o += [f"s_mov_b32 m0, {KL + 2048*j + 1024*e - 1024*e}",
                  f"buffer_load_dwordx4 v{vK}, s[{sKGD}:{sKGD+3}], 0 offen offset:{1024*e} sc1 lds"]
        o += [f"v_add_u32 v{vK}, 28672, v{vK}"]
    o += [f"s_mov_b32 s{sA}, {4*ST_K}", "s_branch L_lKV", "@reset", "L_lV:"]
    o += [f"v_mov_b32 v{36+i}, 0x3f803f80" for i in range(4)]
    o += [f"v_lshlrev_b32 v{t0}, 9, v0", f"v_add_u32 v{t0}, {VL+496}, v{t0}",
          "s_mov_b32 exec_hi, 0xffff", f"ds_write_b128 v{t0}, v[36:39]",
          "s_mov_b32 exec_lo, 0x7fffffff", "s_mov_b32 exec_hi, 0x7fffffff", f"s_mov_b32 s{sOff}, 14336"]
    for j in range(12):
        for e in range(2):
            pre = [f"v_add_u32 v{t2}, s{sOff}, v{vV}"] if e else []
            o += pre + [f"s_mov_b32 m0, {VL + 2048*j + 1024*e}",
                        f"buffer_load_dwordx4 v{t2 if e else vV}, s[{sKGD}:{sKGD+3}], 0 offen sc1 lds"]
        o += [f"v_add_u32 v{vV}, 28672, v{vV}"]
    o += ["s_mov_b64 exec, -1", f"s_mov_b32 s{sA}, {4*ST_V}", "@reset", "L_lKV:"]
    o += stamp(3) + signal(KVISS)
    kvland = [f"v_add_u32 v{t2}, s{sA}, v{vMl}", f"v_mov_b32 v{t0}, 2", f"ds_add_u32 v{t2}, v{t0}"]
    o += [f"s_cmp_ge_u32 s{sJ3}, 28", "!s_cbranch_scc0 L_lwo"] + call("phi") + \
        ["s_waitcnt vmcnt(0)"] + kvland + call("ob") + stamp_flush(20, 0) + ["s_endpgm", "@reset", "L_lwo:"]
    o += call("phi") + stamp(8, 'z')
    o += ["s_waitcnt vmcnt(0)"] + kvland
    o += stamp(4)
    o += land(ST_WB)
    o += p3_setup() + [f"s_mov_b32 s{sOBd}, 0"] + serve_land(ST_WA1) + call("r0")
    o += stamp(5)
    o += ["s_branch L_p3", "@reset"]
    return o


sOb, sNb = 58, 59


def gload(g):
    r = [f"s_add_u32 s{sT2}, s{sOb}, {4096*g}"]
    for e in range(4):
        n = 4 * g + e
        r.append(f"buffer_load_dwordx4 v[{OF+4*n}:{OF+4*n+3}], v{vOG}, s[{sWSD}:{sWSD+3}], s{sT2} offen offset:{1024*e} sc1")
    return r


WA = 128
OF = 64
ACC = 32
BB = 16
vA = 2
vOG = 6
vTg = 9


def p3_early(PARK=248, base=STG, stride=STGS):
    t0, t1, t2, r, cg = 240, 241, 242, 243, 244
    o = [f"s_lshr_b32 s{sKh}, s{sW4}, 1", f"s_and_b32 s{sRt}, s{sW4}, 1",
         f"s_add_u32 s{sTT}, s{sTB}, s{sRt}",
         f"v_bfe_u32 v{r}, v0, 2, 2", f"v_bfe_u32 v{t0}, v0, 4, 1", f"v_and_b32 v{cg}, 3, v0",
         f"v_lshl_add_u32 v{cg}, v{t0}, 2, v{cg}", f"v_lshlrev_b32 v{cg}, 3, v{cg}",
         f"s_mul_i32 s{sT0}, s{sKh}, {stride}", f"s_add_u32 s{sT0}, s{sT0}, {base}",
         f"v_add_u32 v{cg}, s{sT0}, v{cg}",
         f"v_lshrrev_b32 v{t2}, 5, v0", f"v_mul_u32_u24 v{t2}, 7, v{t2}"]
    for s_ in range(2):
        for u in range(2):
            d = PARK + 2 * s_ + u
            o += [f"v_min_u32 v{t0}, {2 if u else 3}, v{r}", f"v_add3_u32 v{t0}, v{t0}, v{t2}, {14*s_+4*u}",
                  f"v_bfe_u32 v{t1}, v{t0}, 1, 1", f"v_xor_b32 v{t1}, s{sKh}, v{t1}",
                  f"v_lshl_add_u32 v{d}, v{t0}, 7, v{cg}", f"v_lshl_add_u32 v{d}, v{t1}, 6, v{d}"]
    o += [f"s_lshl_b32 s{sT0}, s{sTT}, 1", f"s_add_u32 s{sT0}, s{sT0}, s{sKh}", f"s_lshl_b32 s{sNo}, s{sT0}, 10", f"s_lshl_b32 s{sT0}, s{sT0}, 14",
          f"v_add_u32 v{PARK+4}, s{sT0}, v{vL16}"]
    return o


def p3_setup():
    return [f"v_mov_b32 v{vA+i}, v{248+i}" for i in range(5)] + [f"v_and_b32 v{vTg}, 0xffff0000, v{vEp}"]


FLIP = [f"v_xor_b32 v{vA+i}, 64, v{vA+i}" for i in range(4)]


def wo_frag(dst, hl, s, tag=None):
    return [tr(dst, vA + 2 * s, 28 * hl * 128), tr(dst + 2, vA + 2 * s + 1, 28 * hl * 128, tag)]


def woa_read(rho):
    o = []
    for j in range(2):
        for hl in range(4):
            for s in range(2):
                o += wo_frag(WA + 64 * j + 8 * (4 * rho + hl) + 4 * s, hl, s)
        o += FLIP
    return o


RSTR = VL - KL


def half_sub():
    vC = 7
    o = ["@reset", "L_sub_half:"]

    def gcheck(g):
        b = OF + 16 * g
        ch = [f"v_xor_b32 v{b+4*e+3}, v{b+4*e+3}, v{vTg}" for e in range(4)]
        ch += [f"v_or3_b32 v{vC}, v{b+3}, v{b+7}, v{b+11}", f"v_or_b32 v{vC}, v{vC}, v{b+15}",
               f"v_cmp_lt_u32 vcc, 0xffff, v{vC}"]
        Ls, Lb = lab('slow'), lab('back')
        slow.extend([f"{Ls}:"] + ([f"s_add_u32 s{sStamp+14}, s{sStamp+14}, 1"] if OPT.get('alt') == 6 else []) + [f"s_mov_b32 s{sTO}, 0", f"{Ls}_s:", "s_sleep 4"] + gload(g) + _tmo() + ["s_waitcnt vmcnt(0)"] + ch +
                    [f"s_cbranch_vccnz {Ls}_s", f"s_branch {Lb}"])
        return ch + [f"!s_cbranch_vccnz {Ls}", f"!{Lb}:"]
    if OPT.get('alt') == 6:
        o += ["s_waitcnt lgkmcnt(0)", f"s_mov_b32 s{sStamp+14}, s{sStamp}"]
    if OPT.get('alt') in (7, 8):
        o += [f"!s_memtime s[{sStamp+12}:{sStamp+13}]"]
    o += [f"v_lshlrev_b32 v7, 7, v0"]
    o += light_poll(HQ, 7, f"s{sNb}", "0xff", [f"v_cmp_ne_u32 vcc, v{HQ}, v{vEp}"], sleep=OPT.get('osleep', 1))
    o += stamp(9)
    if OPT.get('alt') in (7, 8):
        o += [f"s_add_u32 s{sStamp+14}, s{sStamp}, s{sTO}"]
    for g in range(4):
        o += gload(g)
    sO = 40
    o += srd(sO, sOUT, 1835008)
    o += [f"s_lshr_b32 s{sT2}, s{sWave}, 2", f"s_mul_i32 s{sT1}, s{sT2}, {RSTR}",
          f"s_mul_i32 s{sT0}, s{sW4}, 6144", f"s_add_u32 s{sT0}, s{sT0}, {KL}",
          f"s_add_u32 s44, s{sT0}, s{sT1}", f"v_add_u32 v2, s44, v{vL16}",
          f"s_sub_u32 s44, s{sT0}, s{sT1}", f"s_add_u32 s44, s44, {RSTR+4096}", f"v_add_u32 v3, s44, v{vL16}",
          f"s_lshl_b32 s{sT2}, s{sT2}, 11",
          f"s_xor_b32 s{sT1}, s{sW4}, 2", f"s_mul_i32 s{sT0}, s{sT1}, 6144", f"s_add_u32 s{sT0}, s{sT0}, s{sT2}",
          f"s_add_u32 s{sT0}, s{sT0}, {KL}", f"v_add_u32 v4, s{sT0}, v{vL16}", f"v_add_u32 v24, {RSTR}, v4",
          f"v_and_b32 v8, 31, v0", f"s_lshl_b32 s{sT0}, s{sTT}, 5", f"v_add_u32 v8, s{sT0}, v8",
          f"v_mul_u32_u24 v8, 896, v8", f"v_lshrrev_b32 v5, 5, v0",
          f"v_lshl_add_u32 v8, v5, 4, v8",
          f"s_lshl_b32 s{sT0}, s{sCT}, 1", f"s_add_u32 s{sT0}, s{sT0}, s{sKh}", f"s_lshl_b32 s{sT0}, s{sT0}, 6",
          f"s_lshr_b32 s{sT2}, s{sT2}, 6", f"s_add_u32 s{sT0}, s{sT0}, s{sT2}",
          f"v_add_u32 v8, s{sT0}, v8"]
    early, late = check_ev(E_OA, 'all', HQ)
    for n in range(16):
        if n % 4 == 0:
            o += gcheck(n // 4)
        if n == 12:
            o += early
        for j in ((0, 1) if n < 12 else ()):
            o.append(mfma(ACC + 16 * j, WA + 64 * j + 4 * n, OF + 4 * n, ACC + 16 * j if n else None))
    for j in (1, 0):
        for n in range(12, 16):
            o.append(mfma(ACC + 16 * j, WA + 64 * j + 4 * n, OF + 4 * n, ACC + 16 * j))
        if j == 1:
            o += late
    o += [f"ds_write_b128 v2, v[{ACC+16+4*i}:{ACC+16+4*i+3}] offset:{1024*i}" for i in range(4)]
    o += stamp(8)
    o += [f"s_cmp_lt_u32 s{sWave}, 4", "!s_cbranch_scc1 L_finC"]

    def fin(role):
        mine, spare = ACC + 8 * role, ACC + 8 * (1 - role)
        r = [f"ds_write_b128 v2, v[{spare+4*i}:{spare+4*i+3}] offset:{4096+1024*i}" for i in range(2)]
        r += ["s_waitcnt lgkmcnt(0)", "s_barrier"]
        r += [f"ds_read_b128 v[{OF+4*i}:{OF+4*i+3}], v3 offset:{1024*i}" for i in range(2)]
        r += [f"ds_read_b128 v[{OF+8+4*i}:{OF+8+4*i+3}], v4 offset:{1024*i}" for i in range(2)]
        r += [f"ds_read_b128 v[{OF+16+4*i}:{OF+16+4*i+3}], v24 offset:{1024*i}" for i in range(2)]
        for i in range(8):
            r += [f"v_add_f32 v{mine+i}, v{mine+i}, v{OF+i}"]
        for i in range(8):
            r += [f"v_add_f32 v{OF+8+i}, v{OF+8+i}, v{OF+16+i}"]
        for p in range(4):
            r += [f"v_add_f32 v{mine+2*p}, v{mine+2*p}, v{OF+8+2*p}", f"v_add_f32 v{mine+2*p+1}, v{mine+2*p+1}, v{OF+8+2*p+1}",
                  f"v_cvt_pk_bf16_f32 v{16+p}, v{mine+2*p}, v{mine+2*p+1}"]
        r += ["s_branch L_fin"] if role == 1 else []
        return r
    st = [x for x in o if 0]
    o += fin(1) + ["@reset", "L_finC:", "s_nop 7"] + fin(0) + ["L_fin:"]
    o += [f"v_permlane32_swap_b32 v16, v18", f"v_permlane32_swap_b32 v17, v19"]
    fl = {0: "", 1: " sc1", 2: " nt", 3: " sc0 sc1"}[OPT.get('outfl', 0)]
    o += [f"buffer_store_dwordx4 v[16:19], v8, s[{sO}:{sO+3}], 0 offen{fl}"]
    if OPT.get('until'):
        o += [f"!s_mov_b32 s45, {OPT['until']}"]
        if 'pw' in OPT:
            st = sStamp + 2 * OPT['ps']
            o += ["!s_waitcnt lgkmcnt(0)", f"!s_sub_u32 s44, s{st}, s98", f"!s_cmp_ge_u32 s{sWave}, {OPT['pw']}", "!s_cselect_b32 s44, s44, 0",
                  f"!s_cmp_le_u32 s{sWave}, {OPT['pw2']}", "!s_cselect_b32 s44, s44, 0", "!s_add_u32 s45, s45, s44"]
        o += ["!L_dly2:", f"!s_memtime s[46:47]", "!s_waitcnt lgkmcnt(0)",
              "!s_sub_u32 s46, s46, s98", f"!s_cmp_lt_u32 s46, s45", "!s_cbranch_scc1 L_dly2"]
    o += stamp(10)
    if OPT['stamps'] and 'pw' not in OPT:
        o += ["s_waitcnt vmcnt(0)"] + stamp(11)
    o += stamp_flush(20, 0)
    o += ["s_endpgm"]
    return o


def phase3():
    ROLE[0] = 'H'
    o = ["@reset", "L_p3:"]
    o += serve_land(ST_WA2) + call("r1")
    o += stamp(6)
    o += [f"s_cmp_lg_u32 s{sOBd}, 0", "!s_cbranch_scc1 L_pB"] + call("ob") + ["L_pB:"]
    o += stamp(7)
    o += [f"s_mov_b32 s{sOb}, {OB}", f"s_add_u32 s{sNb}, s{sNo}, {NB}"]
    return o + half_sub()


def c_phase3():
    o = p3_slot() + [f"s_cmp_ge_u32 s{sJ3}, 28", "!s_cbranch_scc1 L_cend"]
    o += [f"v_mov_b32 v{vEp}, v{vEc}"] + p3_early(vA, WBA, WBAS) + [f"v_and_b32 v{vTg}, 0xffff0000, v{vEp}"]
    o += [f"s_mul_i32 s{sB}, s{sKh}, {(WBAS - WBBS) & 0xffffffff}", f"s_add_u32 s{sB}, s{sB}, {WBA - WBB}",
          f"s_mov_b32 s{sOb}, {OA}", f"s_add_u32 s{sNb}, s{sNo}, {NA}"]
    o += wait_land(ST_WB, HQ, inline=True, n=3)
    rd = lambda j, hl: sum([wo_frag(WA + 64 * j + 8 * hl + 4 * s_, hl if hl < 6 else hl - 6, s_) for s_ in range(2)], [])
    for hl in range(6):
        o += rd(0, hl)
    o += [f"v_subrev_u32 v{vA+x}, s{sB}, v{vA+x}" for x in range(4)] + rd(0, 6) + rd(0, 7) + FLIP + rd(1, 6) + rd(1, 7)
    o += [f"v_add_u32 v{vA+x}, s{sB}, v{vA+x}" for x in range(4)]
    for hl in range(6):
        o += rd(1, hl)
    o += [] + ["s_waitcnt lgkmcnt(0)", "s_branch L_sub_half", "@reset", "L_cend:"]
    return o


def pretouch():
    if not OPT.get('touch', 1):
        return []
    o = []
    for p in (sAW, sBW, sOUT, sAO, sBO, sGW, sDBG):
        o.append(f"!s_load_dword s44, s[{p}:{p+1}], 0")
    o += [f"s_mov_b32 s46, s{sWS}", f"s_mov_b32 s47, s{sWS+1}"]
    for i in range(6):
        o += ["!s_load_dword s44, s[46:47], 0", "s_add_u32 s46, s46, 0x200000", "s_addc_u32 s47, s47, 0"]
    return o


def x_wave():
    ROLE[0] = 'X'
    o = ["@reset", "L_xwave:", "s_waitcnt lgkmcnt(0)"] + pretouch() + ["s_barrier"]
    o += srd(sWSD, sWS, WS_SIZE)
    o += h_setup() + p3_early()
    sDD, sKD = 36, 40
    sJ = sLi
    t0, t1, t2 = 24, 25, 26
    o += [f"s_sub_u32 s{sJ}, s{sWave}, 6"]
    o += srd(sDD, sDBG, 256) + srd(sKD, sWS, WS_SIZE)
    o += [f"s_cmp_eq_u32 s{sH}, 15", f"s_cselect_b32 s{sKD+2}, 0, s{sKD+2}"]
    o += [f"v_mov_b32 v{t0}, 0", f"s_lshl_b32 s{sT0}, s2, 1", f"s_add_u32 s{sT0}, s{sT0}, s{sJ}",
          f"s_cmp_eq_u32 s{sT0}, 0", "!s_cbranch_scc0 L_xnoep",
          f"s_mov_b32 s{sT0}, {EPW}",
          f"buffer_load_dword v{vEp}, v{t0}, s[{sWSD}:{sWSD+3}], s{sT0} offen sc1",
          f"v_lshrrev_b32 v{t1}, 16, v{vEp}", f"v_add_u32 v{vEp}, 1, v{vEp}", f"v_and_b32 v{vEp}, 0xffff, v{vEp}",
          f"v_max_u32 v{vEp}, 1, v{vEp}", f"v_cmp_eq_u32 vcc, v{vEp}, v{t1}", f"v_addc_co_u32 v{vEp}, vcc, 0, v{vEp}, vcc",
          f"v_and_b32 v{vEp}, 0xffff, v{vEp}", f"v_max_u32 v{vEp}, 1, v{vEp}", f"v_lshl_or_b32 v{vEp}, v{vEp}, 16, v{vEp}",
          "s_mov_b64 exec, 1",
          f"buffer_store_dword v{vEp}, v{t0}, s[{sDD}:{sDD+3}], 0 offen sc1",
          f"buffer_store_dword v{vEp}, v{t0}, s[{sWSD}:{sWSD+3}], s{sT0} offen sc1",
          "s_mov_b64 exec, -1", "@reset", "L_xnoep:"]
    if OPT.get('gpf', 1):
        o += wait_land(OPT.get('gpfgate', 0), HQ, inline=True)
        o += [f"s_cmp_eq_u32 s{sJ}, 0", f"s_cselect_b32 s44, s{sAO}, s{sAW}", f"s_cselect_b32 s45, s{sAO+1}, s{sAW+1}",
              f"s_cselect_b32 s48, s{sBO}, s{sBW}", f"s_cselect_b32 s49, s{sBO+1}, s{sBW+1}",
              f"s_mov_b32 s{sT0}, 1204224", f"s_cselect_b32 s46, 401408, s{sT0}", "s_mov_b32 s47, 0x20000",
              f"s_mov_b32 s{sT0}, 2688", f"s_cselect_b32 s{sT1}, 896, s{sT0}",
              "s_mov_b32 s50, s46", "s_mov_b32 s51, 0x20000",
              f"s_mul_i32 s{sT0}, s2, 13", f"v_add_u32 v32, s{sT0}, v0", "v_mul_u32_u24 v33, 9363, v32", "v_lshrrev_b32 v33, 16, v33",
              "v_mul_u32_u24 v34, 7, v33", "v_sub_u32 v32, v32, v34", f"v_mul_u32_u24 v33, s{sT1}, v33", "v_lshl_add_u32 v32, v32, 7, v33",
              "s_mov_b64 exec, 0x1fff",
              "buffer_load_dword v33, v32, s[44:47], 0 offen", "buffer_load_dword v34, v32, s[48:51], 0 offen", "s_mov_b64 exec, -1"]
    o += wait_land(OPT.get('epgate', 2), HQ, inline=True)
    o += spin_vm([f"buffer_load_dword v{vEp}, v{t0}, s[{sDD}:{sDD+3}], 0 offen sc1"], [f"v_cmp_eq_u32 vcc, 0, v{vEp}"])
    o += [f"ds_write_b32 v{vM}, v{vEp} offset:{16*EPOCH}"]
    o += stamp(1)
    o += [f"s_setprio {OPT.get('xprio', 3)}", f"s_cmp_eq_u32 s{sZ}, 0", "!s_cbranch_scc1 L_xY"]
    o += [f"s_lshl_b32 s{sT0}, s{sHH}, 6", f"s_mul_i32 s{sT1}, s{sT0}, 2341", f"s_lshr_b32 s{sT1}, s{sT1}, 16",
          f"s_add_u32 s{sT0}, s{sT0}, 63", f"s_mul_i32 s{sT2}, s{sT0}, 2341", f"s_lshr_b32 s{sT2}, s{sT2}, 16",
          f"v_and_b32 v4, 3, v0", f"v_add_u32 v4, s{sT1}, v4", f"v_lshrrev_b32 v5, 2, v0",
          f"v_cmp_ge_u32 s[48:49], s{sT2}, v4", f"v_add_u32 v6, s{sRB}, v5", f"v_cmp_gt_u32 vcc, 16, v6",
          "s_and_b64 s[48:49], s[48:49], vcc", "s_and_b32 s48, s48, 0xfff", "s_mov_b32 s49, 0",
          f"s_cmp_eq_u32 s{sH}, 15", "s_cselect_b32 s48, 0, s48",
          "v_lshl_add_u32 v3, v6, 4, v4", "v_lshlrev_b32 v3, 5, v3",
          "v_mul_u32_u24 v4, 28, v4", "v_lshrrev_b32 v4, 6, v4", f"v_sub_u32 v4, s{sHH}, v4",
          "v_lshlrev_b32 v5, 1, v5", "v_sub_u32 v5, 4, v5", "v_add3_u32 v3, v3, v4, v5", "v_lshlrev_b32 v3, 2, v3",
          f"s_mul_i32 s50, s{sJ}, {FV-FK}", f"s_add_u32 s50, s50, {FK}",
          f"s_mul_i32 s44, s{sRB}, {4*28672}",
          f"s_cmp_eq_u32 s{sJ}, 0", "!s_cbranch_scc0 L_xZV"]
    o += [f"s_lshl_b32 s{sT0}, s{sHH}, 12", f"s_add_u32 s44, s44, s{sT0}"]
    o += spin_ev(R_K, 'all', HQ)
    o += [f"ds_read_b128 v[{64+4*i}:{64+4*i+3}], v{vL16} offset:{STK+1024*i}" for i in range(16)] + signal(F_K) + signal(F_K)
    for i in range(16):
        o += [f"buffer_store_dwordx4 v[{64+4*i}:{64+4*i+3}], v{vL16}, s[{sKD}:{sKD+3}], s44 offen offset:{1024*(i%4)} sc1"]
        if i % 4 == 3:
            o += ["s_add_u32 s44, s44, 28672"]
    o += ["s_branch L_xZn", "@reset", "L_xZV:"]
    o += [f"s_lshl_b32 s{sT0}, s{sHH}, 10", f"s_add_u32 s44, s44, s{sT0}", f"s_add_u32 s44, s44, {VG}", "s_add_u32 s45, s44, 14336",
          f"v_lshrrev_b32 v2, 5, v0", f"v_mul_u32_u24 v2, {7168-512}, v2", f"v_add_u32 v2, v2, v{vL16}"]
    o += spin_ev(R_V, 'all', HQ)
    o += [f"ds_read_b128 v[{64+4*i}:{64+4*i+3}], v{vL16} offset:{STV+1024*i}" for i in range(16)] + signal(F_K) + signal(F_K)
    if OPT.get('vafter', 1):
        o += spin_ev(X_PUB, 2, HQ)
    for i in range(16):
        j, s_ = (i % 4) // 2, i % 2
        o += [f"buffer_store_dwordx4 v[{64+4*i}:{64+4*i+3}], v2, s[{sKD}:{sKD+3}], s{44+s_} offen offset:{512*j} sc1"]
        if i % 4 == 3:
            o += ["s_add_u32 s44, s44, 28672", "s_add_u32 s45, s45, 28672"]
    o += ["@reset", "L_xZn:"] + signal(X_PUB) + stamp(2)
    Ln = lab('nn')
    o += ["s_cmp_eq_u32 s48, 0", f"!s_cbranch_scc1 {Ln}"]
    o += ["s_waitcnt vmcnt(0)", "s_mov_b64 exec, s[48:49]",
          f"buffer_store_dword v{vEp}, v3, s[{sWSD}:{sWSD+3}], s50 offen sc1", "s_mov_b64 exec, -1", f"!{Ln}:"] + stamp(3)
    o += ["s_branch L_xjoin", "@reset", "L_xY:"]
    o += fmap(t2, t1) + [f"v_lshrrev_b32 v{t1}, 5, v0", f"v_lshlrev_b32 v{t1}, 9, v{t1}", f"v_lshl_add_u32 v{t2}, v{t2}, 4, v{t1}"]
    o += [f"s_lshl_b32 s{sT0}, s{sJ}, 11", f"v_add_u32 v{t1}, s{sT0}, v{vL16}",
          f"s_add_u32 s{sT1}, s{sT0}, {STV}", f"v_add_u32 v{t2}, s{sT1}, v{t2}",
          f"v_lshrrev_b32 v2, 2, v0", f"v_lshlrev_b32 v2, 12, v2", f"v_and_b32 v3, 3, v0", f"v_lshl_add_u32 v2, v3, 9, v2",
          f"s_add_u32 s{sT0}, s{sT0}, {STV+448}", f"v_add_u32 v2, s{sT0}, v2"]
    o += [f"v_mov_b32 v{32+i}, 0x3f803f80" for i in range(4)]
    o += [f"s_lshl_b32 s{sT0}, s{sHH}, 1", f"s_add_u32 s{sT0}, s{sT0}, s{sJ}", f"s_lshl_b32 s{sT0}, s{sT0}, 4", f"s_add_u32 s{sT0}, s{sT0}, s{sRB}",
          f"s_lshl_b32 s44, s{sT0}, 13", f"s_add_u32 s44, s44, {KVP}", "s_add_u32 s45, s44, 4096",
          f"s_lshl_b32 s46, s{sT0}, 9", f"s_add_u32 s46, s46, {N1}"]
    o += spin_ev(R_V, 'all', HQ)
    o += ["s_mov_b64 exec, 0xffff", "ds_write_b128 v2, v[32:35]", "s_mov_b64 exec, -1"]
    o += [f"ds_read_b128 v[{96+4*i}:{96+4*i+3}], v{t2} offset:{4096*(i//2)+1024*(i%2)}" for i in range(8)] + signal(F_K)
    o += [f"v_mov_b32 v{33+2*i}, v{vEp}" for i in range(16)]
    o += spin_ev(R_K, 'all', HQ)
    o += [f"ds_read_b128 v[{64+4*i}:{64+4*i+3}], v{t1} offset:{STK+4096*(i//2)+1024*(i%2)}" for i in range(8)] + signal(F_K)
    o += stamp(2)
    o += [mfma(128, 64 + 4 * i, 96 + 4 * i, 128 if i else None) for i in range(8)]
    for i in range(8):
        o += [f"v_mov_b32 v{32+4*i}, v{128+2*i}", f"v_mov_b32 v{34+4*i}, v{129+2*i}",
              f"buffer_store_dwordx4 v[{32+4*i}:{35+4*i}], v{vL16}, s[{sWSD}:{sWSD+3}], s{44+i//4} offen offset:{1024*(i%4)} sc1"]
    o += notify(46, 24, vEp, 4)
    o += stamp(3)
    o += ["s_nop 1", "@reset", "L_xjoin:", f"s_setprio {OPT.get('hprio', 2)}"]
    if OPT.get('wopf', 1):
        Lp = lab('wopf')
        o += [f"s_cmp_eq_u32 s{sJ}, 0", f"!s_cbranch_scc0 {Lp}",
              f"s_lshr_b32 s{sT0}, s2, 3", f"s_mul_i32 s{sT0}, s{sT0}, {98*128}", f"v_lshl_add_u32 v24, v0, 7, s{sT0}",
              f"v_add_u32 v25, {49*128}, v24",
              "s_mov_b32 exec_hi, 0x1ffff"]
        for p in (sAO, sBO):
            o += [f"!global_load_dword v12, v24, s[{p}:{p+1}]", f"!global_load_dword v12, v25, s[{p}:{p+1}]"]
        o += ["s_mov_b64 exec, -1", f"!{Lp}:"]
    o += call("phi") + p3_setup() + [f"s_mov_b32 s{sOBd}, 0"]
    o += [f"s_cmp_eq_u32 s{sJ}, 1", "!s_cbranch_scc1 L_x1"]
    o += stamp(4)
    o += [f"s_cmp_ge_u32 s{sJ3}, 28", "!s_cbranch_scc1 L_xfin"]
    t0, t1, t2 = 24, 25, 26
    o += srd(sXD, sBO, 401408) + [f"s_mov_b32 s{sC7}, 7168",
          f"v_lshrrev_b32 v{t0}, 3, v0", f"v_mul_u32_u24 v{vWO}, 896, v{t0}",
          f"v_bfe_u32 v{t1}, v0, 2, 1", f"v_bfe_u32 v{t2}, v0, 4, 1", f"v_xor_b32 v{t1}, v{t1}, v{t2}",
          f"v_lshl_add_u32 v{vWO}, v{t1}, 6, v{vWO}", f"v_and_b32 v{t2}, 3, v0", f"v_lshl_add_u32 v{vWO}, v{t2}, 4, v{vWO}",
          f"s_lshl_b32 s{sT0}, s{sCT}, 7", f"v_add_u32 v{vWO}, s{sT0}, v{vWO}",
          f"v_mov_b32 v{vMl}, v{vMs}", f"s_mov_b32 s{sT0}, {LANDC}", f"v_writelane_b32 v{vMl}, s{sT0}, 0"]
    d7 = [f"!s_call_b64 s[{sRet}:{sRet+1}], L_sub_d7"]

    def xb(ptr, row0, lds, n):
        return [f"s_mov_b32 s{sXD}, s{ptr}", f"s_mov_b32 s{sXD+1}, s{ptr+1}", f"s_mov_b32 s{sOff}, {row0*896}",
                f"s_mov_b32 m0, {lds}"] + d7 * n
    o += spin_ev(F_K, 'hi', HQ, ge=2) + spin_ev(E_P3, 'all', HQ) + spin_ev(KVISS, 'lo', HQ)
    o += xb(sBO, 0, STG, 2) + xb(sBO, 224, STG + STGS, 2)
    if OPT.get('tailfirst', 1):
        o += xb(sAO, 168, WBB, 1) + xb(sAO, 224 + 168, WBB + WBBS, 1)
        o += ["s_waitcnt vmcnt(14)"] + land(ST_WA1) + land(ST_WA1)
    else:
        o += ["s_waitcnt vmcnt(0)"] + land(ST_WA1) + land(ST_WA1)
        o += xb(sAO, 168, WBB, 1) + xb(sAO, 224 + 168, WBB + WBBS, 1)
    o += call("r0")
    o += ["s_waitcnt vmcnt(0)"] + land(ST_WB)
    o += serve_ev(R1)
    o += xb(sBO, 112, STG, 2) + xb(sBO, 224 + 112, STG + STGS, 2)
    o += ["s_waitcnt vmcnt(0)"] + land(ST_WA2) + land(ST_WA2) + stamp(5)
    o += ["s_branch L_p3", "@reset", "L_x1:"]
    o += [f"v_lshlrev_b32 v{t0}, 3, v0",
          f"s_lshl_b32 s44, s{sH}, 17", f"s_lshl_b32 s{sT0}, s{sRB}, 9", f"s_add_u32 s44, s44, s{sT0}", f"s_add_u32 s44, s44, {KVP}",
          f"s_lshl_b32 s45, s{sH}, 13", f"s_add_u32 s45, s45, {KVT}", f"s_add_u32 s46, s45, s{sT0}", "s_add_u32 s47, s45, 4096"]

    def tagcheck():
        c = ["v_min3_u32 v25, v65, v67, v69", "v_max3_u32 v26, v65, v67, v69"]
        for j in range(3, 15, 2):
            c += [f"v_min3_u32 v25, v25, v{65+2*j}, v{67+2*j}", f"v_max3_u32 v26, v26, v{65+2*j}, v{67+2*j}"]
        c += [f"v_min3_u32 v25, v25, v95, v{vEp}", f"v_max3_u32 v26, v26, v95, v{vEp}", "v_cmp_ne_u32 vcc, v25, v26"]
        return c
    body = [f"s_mov_b32 s{sT1}, s44"]
    for j in range(16):
        body += [f"buffer_load_dwordx2 v[{64+2*j}:{65+2*j}], v{t0}, s[{sWSD}:{sWSD+3}], s{sT1} offen sc1",
                 f"s_add_u32 s{sT1}, s{sT1}, 8192"]
    o += [f"v_lshlrev_b32 v26, 9, v0", f"s_lshl_b32 s49, s{sH}, 6", f"s_lshr_b32 s{sT0}, s{sRB}, 2",
          f"s_add_u32 s49, s49, s{sT0}", "s_lshl_b32 s49, s49, 7", f"s_add_u32 s49, s49, {N1}"]
    if OPT.get('h1direct', 1):
        o += ["!" + x for x in body] + ["s_waitcnt vmcnt(0)"] + ["!" + x for x in tagcheck()] + ["!s_cbranch_vccz L_h1ok", "!v_lshlrev_b32 v26, 9, v0"]
    o += light_poll(25, 26, "s49", "0xffff", [f"v_cmp_ne_u32 vcc, v25, v{vEp}"])
    o += stamp(6, 'y')
    o += spin_vm(body, tagcheck())
    o += ["L_h1ok:"]
    for st in (1, 2, 4, 8):
        for j in range(0, 16, 2 * st):
            o.append(f"v_add_f32 v{64+2*j}, v{64+2*j}, v{64+2*(j+st)}")
    o += [f"buffer_store_dwordx2 v[64:65], v{t0}, s[{sWSD}:{sWSD+3}], s46 offen sc1",
          f"s_add_u32 s49, s49, {N2-N1}", f"s_lshl_b32 s46, s{sH}, 4", f"s_add_u32 s46, s46, s{sRB}",
          "s_lshl_b32 s46, s46, 9", f"s_add_u32 s46, s46, {N2}"] + notify(46, 25, vEp, 4)
    o += stamp(4)
    o += [f"s_mov_b32 s48, 1"]
    r0hook = [f"ds_read_b32 v{HQ}, v{vM} offset:{256+4*ST_WA1}", "s_waitcnt lgkmcnt(0)", f"v_cmp_lt_u32 vcc, s48, v{HQ}",
              "s_cbranch_vccz L_x1a"] + call("r0") + ["s_mov_b32 s48, 2", "L_x1a:"]
    body = [f"buffer_load_dwordx4 v[{64+4*j}:{67+4*j}], v{vL16}, s[{sWSD}:{sWSD+3}], s{45+2*(j//4)} offen offset:{1024*(j%4)} sc1" for j in range(8)]
    if OPT.get('x1block', 1):
        o += [f"s_cmp_ge_u32 s{sJ3}, 28", "!s_cbranch_scc1 L_x1b"] + wait_land(ST_WA1, HQ, inline=True) + call("r0") + ["s_mov_b32 s48, 2", "L_x1b:"]
    o += stamp(7, 'y')
    o += ["v_lshlrev_b32 v26, 9, v0"]
    o += light_poll(25, 26, "s49", "0xffff", [f"v_cmp_ne_u32 vcc, v25, v{vEp}"], hook=r0hook)
    o += stamp(8, 'y')
    o += spin_vm(body, tagcheck())
    o += stamp(9, 'y')
    o += [f"v_cvt_pk_bf16_f32 v{96+p}, v{64+4*p}, v{66+4*p}" for p in range(8)]
    o += [f"v_add_u32 v24, {KVF}, v{vL16}",
          f"ds_write_b128 v24, v[96:99]", f"ds_write_b128 v24, v[100:103] offset:1024"] + signal(KVRDY)
    o += call("ob") + [f"s_mov_b32 s{sOBd}, 1"]
    o += stamp(5)
    o += [f"s_cmp_ge_u32 s{sJ3}, 28", "!s_cbranch_scc1 L_xend", "s_cmp_eq_u32 s48, 2", "!s_cbranch_scc1 L_p3"]
    o += wait_land(ST_WA1, HQ, inline=True) + call("r0")
    o += ["s_branch L_p3", "@reset", "L_xfin:"] + call("ob") + ["L_xend:"] + stamp_flush(20, 0) + ["s_endpgm"]
    return o


HEADER = f"""; Fused sliding-window attention + linear attention + gated output projection (gfx950).
; One persistent launch: 256 workgroups x 8 waves (4 compute, 2 loader, 2 auxiliary).
; @launch grid=(256,1,1) block=(512,1,1) lds=163840
.amdgcn_target "amdgcn-amd-amdhsa--gfx950"
.text
.globl {NAME}_kernel
.p2align 8
.type {NAME}_kernel,@function
{NAME}_kernel:
"""
FOOTER = f"""
.section .rodata,"a"
.p2align 6
.amdhsa_kernel {NAME}_kernel
  .amdhsa_next_free_vgpr 256
  .amdhsa_next_free_sgpr 102
  .amdhsa_accum_offset 256
  .amdhsa_group_segment_fixed_size 0
  .amdhsa_kernarg_size 80
  .amdhsa_user_sgpr_count 2
  .amdhsa_user_sgpr_kernarg_segment_ptr 1
  .amdhsa_system_sgpr_workgroup_id_x 1
.end_amdhsa_kernel
"""


def main():
    body = prologue()
    SLEEP[0] = OPT.get('sleep', 1)
    l = l_wave()
    x = x_wave()
    p3 = phase3()
    sub = subroutines()
    SLEEP[0] = 0
    c = c_wave()
    rep = []
    lines = finalize(body + l + x + p3 + sub + c, rep)
    lines += ['    ' + s if not s.endswith(':') else s for s in slow]
    lines += ["L_abort:", "L_exit:", "    s_endpgm", "L_end:"]
    open(sys.argv[1], 'w').write(HEADER + "\n".join(lines) + FOOTER)
    big = [r for r in rep if r[0] >= 3]
    print("nops inserted:", len(rep), "total states", sum(r[0] for r in rep))
    for r in big:
        print("   ", r)


main()
```

```python
import sys, math, struct
from asmlib import finalize, merge

NAME = "gated_mix__sliding_block__linear_attn_block__prompt"
OPT = dict(stamps=0, l1=14, l3=8, prefetch=2, touch=0, refetch=0, wopf=0)
for a in sys.argv[2:]:
    k, v = a.split('=')
    OPT[k] = int(v)


def fhex(x):
    return '0x%08x' % struct.unpack('<I', struct.pack('<f', x))[0]


LOG2E = math.log2(math.e)
KSCALE = LOG2E * 28 ** -0.5
SPIN = 60000

def XR(c): return 16384 * (c % 4)
def WR(c): return 65536 + 16384 * (c % 4)
QLOC = [131072 + 4096 * c for c in range(6)] + [114688] + [114688 + 4096 * c for c in (1, 2, 3)] + [49152 + 4096 * c for c in range(4)]
QBB = 114688
KL = 16384
VL = 131072
STQ, STV, STK = 0, 16384, 32768
STG, STGS = 40960, 67584
WBA, WBAS = 65536, 21504
WBB, WBBS = 55296, 67584
MISC = 158720
LANDC = MISC + 256
JUNK = MISC + 512
GL = MISC + 1536
KVF = MISC + 2560
E_PA, X_PUB, E_P2, E_P3, R_K, R_V, R_Q, E_OA, F_K, E_P3A, R1, GRDY, KVRDY, EPOCH, KVISS = range(15)
ST_K, ST_V, ST_WA1, ST_WB, ST_WA2 = 21, 22, 23, 24, 25

KG, VG, OA, OB, KVP, KVT = 0x000000, 0x200000, 0x400000, 0x600000, 0x800000, 0xA00000
FK, FV, N1, N2, NA, NB, EPW = 0xA40000, 0xA48000, 0xA60000, 0xA80000, 0xAA0000, 0xAC0000, 0xA50000
STAMPS = 0xB00000
WS_SIZE = 0x1000000

sX, sAW, sAO, sBW, sBO, sGW, sOUT, sDBG, sWS = 4, 6, 8, 12, 14, 16, 18, 20, 22
sWave, sH, sRB, sPar, sHH = 24, 25, 26, 27, 28
sT0, sT1, sT2, sTO = 29, 30, 31, 3
sZ = 74
sWSD = 32
sStamp = 76
sJ3, sCT, sTB = 100, 10, 11
sW4 = 101

_lab = [0]
slow = []
ROLE = ['P']
SLEEP = [0]
vL16, vM, vOne, vF, vMs = 1, 10, 11, 12, 13
vFq = 252


def lab(p):
    _lab[0] += 1
    return f"L_{p}_{_lab[0]}"


def srd(d, ptr, size, add=0):
    o = []
    if ptr == sWS:
        add += OPT.get('wsoff', 0) << 20
    if add:
        o += [f"s_add_u32 s{d}, s{ptr}, {add}", f"s_addc_u32 s{d+1}, s{ptr+1}, 0"]
    else:
        o += [f"s_mov_b32 s{d}, s{ptr}", f"s_mov_b32 s{d+1}, s{ptr+1}"]
    o += [f"s_mov_b32 s{d+2}, {size}", f"s_mov_b32 s{d+3}, 0x20000"]
    return o


def stamp(i, kind=''):
    if not OPT['stamps']:
        return []
    alt = OPT.get('alt', 0)
    if kind == 'z':
        return [f"!s_memtime s[{sStamp+2*i}:{sStamp+2*i+1}]"] if alt == 5 else []
    if kind == 's':
        return [f"!s_memtime s[{sStamp+2*i}:{sStamp+2*i+1}]"] if alt == 9 else []
    if alt == 9 and 4 <= i <= 8:
        return []
    if ROLE[0] == 'L' and (alt == 1) != (kind == 'f'):
        return []
    if kind == 'z':
        return [f"!s_memtime s[{sStamp+2*i}:{sStamp+2*i+1}]"] if alt == 5 else []
    if ROLE[0] == 'H' and alt in (1, 3, 4, 5):
        return []
    if kind == 'y' and alt != 4:
        return []
    if kind == 'x' and alt != 3:
        return []
    if ROLE[0] == 'C' and (alt == 2) != (kind == 'f'):
        return []
    return [f"!s_memtime s[{sStamp+2*i}:{sStamp+2*i+1}]"]


def stamp_flush(vt, vlane):
    if not OPT['stamps'] or 'pw' in OPT:
        return []
    o = ["s_mov_b64 exec, -1", "s_waitcnt lgkmcnt(0)", f"v_mov_b32 v{vt}, 0"]
    for i in range(12):
        o.append(f"v_writelane_b32 v{vt}, s{sStamp+2*i}, {i}")
    o += [f"s_lshl_b32 s{sT0}, s2, 3", f"s_add_u32 s{sT0}, s{sT0}, s{sWave}", f"s_lshl_b32 s{sT0}, s{sT0}, 8",
          f"s_add_u32 s{sT0}, s{sT0}, {STAMPS}",
          f"v_lshlrev_b32 v{vt+1}, 2, v{vlane}",
          f"buffer_store_dword v{vt}, v{vt+1}, s[{sWSD}:{sWSD+3}], s{sT0} offen"]
    return o


def _tmo():
    return [f"s_add_u32 s{sTO}, s{sTO}, 1", f"s_cmp_gt_u32 s{sTO}, {SPIN}", "s_cbranch_scc1 L_abort"]


def _ev_read(ev, which, q):
    if which == 'all':
        return [f"ds_read_b128 v[{q}:{q+3}], v{vM} offset:{16*ev}"], \
               [f"v_min3_u32 v{q}, v{q}, v{q+1}, v{q+2}", f"v_min_u32 v{q}, v{q}, v{q+3}"]
    if which in ('hi', 'lo'):
        return [f"ds_read_b64 v[{q}:{q+1}], v{vM} offset:{16*ev + (8 if which == 'hi' else 0)}"], \
               [f"v_min_u32 v{q}, v{q}, v{q+1}"]
    if which == 'own':
        return [f"ds_read_b32 v{q}, v{vOwn} offset:{16*ev}"], []
    return [f"ds_read_b32 v{q}, v{vM} offset:{16*ev + 4*which}"], []


def spin_ev(ev, which, q=None, ge=1):
    q = vFq if q is None else q
    L, L2 = lab('sp'), lab('spx')
    rd, red = _ev_read(ev, which, q)
    o = ["s_waitcnt lgkmcnt(0)", f"!s_mov_b32 s{sTO}, 0", f"!{L}:"]
    o += ["!" + x for x in rd + _tmo() + ["s_waitcnt lgkmcnt(0)"] + red]
    if SLEEP[0]:
        o += [f"!v_cmp_le_u32 vcc, {ge}, v{q}", f"!s_cbranch_vccnz {L2}", f"!!s_sleep {SLEEP[0]}", f"!!s_branch {L}", f"!{L2}:"]
    else:
        o += [f"!v_cmp_gt_u32 vcc, {ge}, v{q}", f"!s_cbranch_vccnz {L}"]
    return o


def check_ev(ev, which, q):
    Ls, Lb = lab('slow'), lab('back')
    rd, red = _ev_read(ev, which, q)
    slow.extend([f"{Ls}:", f"s_mov_b32 s{sTO}, 0", f"{Ls}_s:"] + rd + _tmo() + ["s_waitcnt lgkmcnt(0)"] + red +
                [f"v_cmp_eq_u32 vcc, 0, v{q}", f"s_cbranch_vccnz {Ls}_s", f"s_branch {Lb}"])
    return rd, red + [f"v_cmp_eq_u32 vcc, 0, v{q}", f"!s_cbranch_vccnz {Ls}", f"!{Lb}:"]


def wait_land(st, q=None, inline=False, n=2):
    q = vFq if q is None else q
    rd = f"ds_read_b32 v{q}, v{vM} offset:{256 + 4*st}"
    if inline:
        L, L2 = lab('wl'), lab('wlx')
        o = ["s_waitcnt lgkmcnt(0)", f"!s_mov_b32 s{sTO}, 0", f"!{L}:"] + ["!" + x for x in [rd] + _tmo() + ["s_waitcnt lgkmcnt(0)"]]
        if SLEEP[0]:
            return o + [f"!v_cmp_eq_u32 vcc, {n}, v{q}", f"!s_cbranch_vccnz {L2}", f"!!s_sleep {SLEEP[0]}", f"!!s_branch {L}", f"!{L2}:"]
        return o + [f"!v_cmp_ne_u32 vcc, {n}, v{q}", f"!s_cbranch_vccnz {L}"]
    Ls, Lb = lab('slow'), lab('back')
    slow.extend([f"{Ls}:", f"s_mov_b32 s{sTO}, 0", f"{Ls}_s:", rd] + _tmo() +
                ["s_waitcnt lgkmcnt(0)", f"v_cmp_ne_u32 vcc, {n}, v{q}", f"s_cbranch_vccnz {Ls}_s", f"s_branch {Lb}"])
    return [rd], [f"v_cmp_ne_u32 vcc, {n}, v{q}", f"!s_cbranch_vccnz {Ls}", f"!{Lb}:"]


vMl = 12


def land(st):
    return [f"ds_add_u32 v{vMl}, v{vOne} offset:{4*st}"]


def signal(ev):
    return [f"ds_add_u32 v{vMs}, v{vOne} offset:{16*ev}"]


def mfma(d, a, b, c):
    cs = f"v[{c}:{c+15}]" if isinstance(c, int) and c >= 0 else "0"
    return f"v_mfma_f32_32x32x16_bf16 v[{d}:{d+15}], v[{a}:{a+3}], v[{b}:{b+3}], {cs}"


def tr(d, a, off, tag=None):
    return f"ds_read_b64_tr_b16 v[{d}:{d+1}], v{a} offset:{off}" + (f" ;@tag={tag}" if tag else "")


vOwn = 9


def common_setup():
    return [f"v_lshlrev_b32 v{vL16}, 4, v0", f"v_mov_b32 v{vM}, {MISC}", f"v_mov_b32 v{vOne}, 1",
            f"s_and_b32 s{sW4}, s{sWave}, 3",
            f"v_lshlrev_b32 v{vMs}, 2, v0", f"v_add_u32 v{vMs}, {JUNK}, v{vMs}",
            f"s_lshl_b32 s{sT0}, s{sW4}, 2", f"s_add_u32 s{sT0}, s{sT0}, {MISC}",
            f"v_writelane_b32 v{vMs}, s{sT0}, 0"]


def prologue():
    o = []
    o += ["s_load_dwordx4 s[4:7], s[0:1], 0", "s_load_dwordx8 s[12:19], s[0:1], 32",
          "s_load_dwordx4 s[20:23], s[0:1], 64", "s_load_dwordx2 s[8:9], s[0:1], 16"]
    o += stamp(0)
    if OPT.get('until'):
        o += ["!s_memtime s[98:99]"]
    o += ["s_cmp_ge_u32 s2, 256", "!s_cbranch_scc1 L_exit",
          "v_lshrrev_b32 v1, 6, v0", "v_and_b32 v0, 63, v0",
          f"v_readfirstlane_b32 s{sWave}, v1"] + code_prefetch() + [
          f"s_and_b32 s{sT0}, s2, 7", f"s_lshr_b32 s{sT1}, s2, 3",
          f"s_and_b32 s{sH}, s{sT0}, 1", f"s_lshl_b32 s{sH}, s{sH}, 3",
          f"s_and_b32 s{sT2}, s{sT1}, 7", f"s_add_u32 s{sH}, s{sH}, s{sT2}",
          f"s_lshr_b32 s{sRB}, s{sT0}, 1", f"s_lshl_b32 s{sRB}, s{sRB}, 2",
          f"s_lshr_b32 s{sT2}, s{sT1}, 3", f"s_add_u32 s{sRB}, s{sRB}, s{sT2}",
          f"s_and_b32 s{sPar}, s{sH}, 1", f"s_lshr_b32 s{sHH}, s{sH}, 1",
          f"s_and_b32 s{sT0}, s2, 1", f"s_xor_b32 s{sZ}, s{sPar}, s{sT0}", f"s_xor_b32 s{sZ}, s{sZ}, 1"]
    o += common_setup()
    o += [f"s_cmp_lt_u32 s{sWave}, 4", "!s_cbranch_scc1 L_cwave",
          f"s_cmp_ge_u32 s{sWave}, 6", "!s_cbranch_scc1 L_xwave"]
    return o


vXA, vW0, vW1, vQB, vQA, vLow, vSt = 2, 6, 7, 8, 9, 14, 15
PK = 16
WB = 32
MK = 56
accA, accB = 64, 96
XF = 128
QF = 240
vMA, vMB = 248, 249
TMP = 250
sMask = 40
sL2E, sEps, sKS, sTile, sSt = 72, 73, 39, 75, 36


def c_setup():
    o = []
    lo, hh, t0, t1, t2 = 20, 21, 22, 23, 24
    o += [f"v_and_b32 v{lo}, 31, v0", f"v_lshrrev_b32 v{hh}, 5, v0",
          f"s_lshl_b32 s{sTile}, s{sRB}, 2", f"s_add_u32 s{sTile}, s{sTile}, s{sWave}",
          f"s_mov_b32 s{sL2E}, {fhex(LOG2E)}", f"s_mov_b32 s{sEps}, {fhex(1e-6)}", f"s_mov_b32 s{sKS}, {fhex(KSCALE)}"]
    o += [f"v_bfe_u32 v{t0}, v0, 1, 3", f"v_xor_b32 v{t0}, v{t0}, v{hh}",
          f"s_lshl_b32 s{sT0}, s{sWave}, 12",
          f"v_add_u32 v{vSt}, s{sT0}, v{vL16}",
          f"v_lshlrev_b32 v{t1}, 7, v{lo}", f"v_add_u32 v{t1}, s{sT0}, v{t1}"]
    for s in range(4):
        o += [f"v_xor_b32 v{t2}, {2*s}, v{t0}", f"v_lshl_add_u32 v{vXA+s}, v{t2}, 4, v{t1}"]
    r, cg, row = 25, 26, 27
    o += [f"v_bfe_u32 v{r}, v0, 2, 2", f"v_bfe_u32 v{t0}, v0, 4, 1", f"v_and_b32 v{cg}, 3, v0",
          f"v_lshl_add_u32 v{cg}, v{t0}, 2, v{cg}",
          f"v_lshl_add_u32 v{row}, v{hh}, 3, v{r}"]
    o += [f"v_lshrrev_b32 v{t0}, 1, v{r}",
          f"v_lshlrev_b32 v{t1}, 7, v{row}", f"v_add_u32 v{t1}, 65536, v{t1}",
          f"v_lshl_add_u32 v{vW0}, v{t0}, 6, v{t1}",
          f"v_xor_b32 v{vW1}, 64, v{vW0}",
          f"v_lshl_add_u32 v{vW0}, v{cg}, 3, v{vW0}",
          f"s_xor_b32 s{sT0}, s{sZ}, 1",
          f"v_add_u32 v{t2}, s{sT0}, v{cg}", f"v_and_b32 v{t2}, 7, v{t2}",
          f"v_lshl_add_u32 v{vW1}, v{t2}, 3, v{vW1}"]
    o += [f"v_lshlrev_b32 v{t1}, 6, v{row}",
          f"v_add_u32 v{t2}, s{sPar}, v{cg}", f"v_and_b32 v{t2}, 7, v{t2}",
          f"v_lshl_add_u32 v{vQB}, v{t2}, 3, v{t1}", f"v_add_u32 v{vQB}, {QBB}, v{vQB}",
          f"v_and_b32 v{t0}, 1, v{cg}", f"v_lshlrev_b32 v{t0}, 1, v{t0}",
          f"v_bfe_u32 v{t2}, v{cg}, 1, 1", f"v_or_b32 v{t0}, v{t0}, v{t2}",
          f"v_and_b32 v{t2}, 4, v{cg}", f"v_or_b32 v{t0}, v{t0}, v{t2}",
          f"v_lshl_add_u32 v{vQA}, v{t0}, 3, v{t1}", f"v_add_u32 v{vQA}, {QBB}, v{vQA}"]
    o += [f"v_add_u32 v{vLow}, -1, v{hh}",
          f"s_sub_u32 s{sT0}, s{sPar}, 1",
          f"v_not_b32 v{t0}, v{vLow}",
          f"v_or_b32 v{vMA}, s{sT0}, v{t0}",
          f"s_not_b32 s{sT0}, s{sT0}",
          f"v_or_b32 v{vMB}, s{sT0}, v{vLow}"]
    o += [f"v_lshlrev_b32 v{t0}, 2, v{hh}", f"v_sub_u32 v{t0}, v{lo}, v{t0}"]
    for rr in range(16):
        b = 8 * (rr >> 2) + (rr & 3)
        o.append(f"v_cmp_le_i32 s[{sMask+2*rr}:{sMask+2*rr+1}], {b}, v{t0}")
    o += [f"v_mov_b32 v{t1}, 0xffff", f"v_mov_b32 v{t2}, 0xffff0000"]
    for p in range(8):
        o += [f"v_cndmask_b32 v{MK+p}, 0, v{t1}, s[{sMask+4*p}:{sMask+4*p+1}]",
              f"v_cndmask_b32 v{t0}, 0, v{t2}, s[{sMask+4*p+2}:{sMask+4*p+3}]",
              f"v_or_b32 v{MK+p}, v{MK+p}, v{t0}"]
    return o


def gemm_frags(isY):
    fr = []
    for k in range(28):
        c, s = divmod(k, 4)
        order = [(0, 0), (0, 1), (1, 0), (1, 1)] if k < 27 else [(1, 0), (1, 1), (0, 0), (0, 1)]
        for i, (p, j) in enumerate(order):
            fr.append(dict(step=c, addr=(vW0, vW1)[j], off=XR(c) + 8192 * p + s * 2048, du=512, k=k,
                           acc=(accA, accB)[p] + 16 * j, wfirst=(p == 0 and not isY), pre=[],
                           xread=(f"ds_read_b128 v[{XF+4*k}:{XF+4*k+3}], v{vXA+s} offset:{XR(c)}" if i == 0 else None)))
    for q, a in enumerate((vQB, vQA)):
        for k in range(28):
            c, s = divmod(k, 4)
            loc = QLOC[7 * q + c]
            base = QBB if loc >= QBB else 49152
            pre = [f"v_subrev_u32 v{vQA}, {QBB-49152}, v{vQA}"] if (q, k) == (1, 12) else []
            fr.append(dict(step=7 + 7 * q + c, addr=a, off=loc - base + s * 1024, du=256, k=k,
                           acc=accB + 16 * q, wfirst=True, pre=pre, xread=None))
    return fr


def need_step(st):
    if st < 7:
        return st
    base = 7 if st < 14 else 14
    return base + {0: 0, 1: 2, 2: 2, 3: 4, 4: 4, 5: 6, 6: 6}[st - base]


def gemm_slots(isY):
    fr = gemm_frags(isY)
    N = len(fr)
    D = 5
    slots = []
    issued = 0
    checked = set()
    early = {}
    for n in range(N):
        cur = []
        f = fr[n]
        lim = 3 if n == 0 else min(n + D, N - 1)
        while issued <= lim:
            g = fr[issued]
            st = need_step(g['step'])
            if st not in checked:
                checked.add(st)
                if st == 0:
                    cur += stamp(8, 's') + wait_land(st, inline=True) + stamp(1)
                else:
                    cur += early[st]
                if st == 5:
                    cur += ["s_waitcnt vmcnt(0)"]
            b = WB + 4 * (issued % 6)
            cur += g['pre']
            if g['xread']:
                cur.append(g['xread'])
            cur += [tr(b, g['addr'], g['off']), tr(b + 2, g['addr'], g['off'] + g['du'], tag=f"f{issued}")]
            issued += 1
            last_of_step = issued == N or fr[issued]['step'] != g['step']
            if last_of_step:
                ev = {0: E_PA, 1: E_PA, 2: E_PA, 3: E_PA, 6: E_P2, 13: E_P3A, 20: E_P3}.get(g['step'])
                if ev is not None:
                    cur += signal(ev)
        if issued + 1 < N:
            st = need_step(fr[issued + 1]['step'])
            if st > 0 and st not in early:
                rd, early[st] = wait_land(st, q=vFq + 2)
                cur += rd
        if n % 2 == 0:
            cur.append(f"@wait_ds f{n+1}")
        b = WB + 4 * (n % 6)
        x = XF + 4 * f['k']
        A, B = (b, x) if f['wfirst'] else (x, b)
        cur.append(mfma(f['acc'], A, B, f['acc'] if f['k'] else None))
        slots.append(cur)
    if OPT.get('alt') == 2:
        for i in range(11):
            n = OPT['cst'] + i * OPT.get('cstep', 4)
            if n < len(slots):
                slots[n] = stamp(i + 1, 'f') + slots[n]
    return slots


def phi_pair(a, b, ta, tb, dst, l2e, eps):
    return [f"v_mul_f32 v{ta}, s{l2e}, v{a}", f"v_mul_f32 v{tb}, s{l2e}, v{b}",
            f"v_exp_f32_e64 v{ta}, v{ta} clamp", f"v_exp_f32_e64 v{tb}, v{tb} clamp",
            f"v_max_f32 v{a}, 0, v{a}", f"v_max_f32 v{b}, 0, v{b}",
            f"v_add_f32 v{a}, v{a}, v{ta}", f"v_add_f32 v{b}, v{b}, v{tb}",
            f"v_add_f32 v{a}, s{eps}, v{a}", f"v_add_f32 v{b}, s{eps}, v{b}",
            f"v_cvt_pk_bf16_f32 v{dst}, v{a}, v{b}"]


def c_gemm(isY):
    slots = gemm_slots(isY)
    pa, p3a, p3b = slots[:112], slots[112:140], slots[140:168]
    o = []
    for s in pa:
        o += s
    o += stamp(2)
    wr = lambda d, i, base: f"ds_write_b128 v{vSt}, v[{d}:{d+3}] offset:{base + 1024*i}"
    vc = lambda j: [f"v_cvt_pk_bf16_f32 v{PK+8*j+i}, v{accB+16*j+2*i}, v{accB+16*j+2*i+1}" for i in range(8)]
    vw = [wr(PK + 4 * i, i, STV) for i in range(4)]
    o += vc(0)
    if not isY:
        f = []
        for j in range(2):
            a = accA + 16 * j
            for i in range(8):
                f += [f"v_mul_f32 v{a+2*i}, s{sKS}, v{a+2*i}", f"v_mul_f32 v{a+2*i+1}, s{sKS}, v{a+2*i+1}",
                      f"v_cvt_pk_bf16_f32 v{a+i}, v{a+2*i}, v{a+2*i+1}"]
            f += [f"v_permlane32_swap_b32 v{a+x}, v{a+x+2}" for x in (0, 1, 4, 5)]
            f += [wr(a + 4 * e, 2 * j + e, STK) for e in range(2)]
        f += signal(R_K) + vc(1) + vw + signal(R_V)
        per = OPT.get('kper', 40)
    else:
        f = vc(1) + vw + signal(R_V)
        for p in range(16):
            a = accA + 16 * (p // 8)
            i = p % 8
            f += phi_pair(a + 2 * i, a + 2 * i + 1, TMP, TMP + 1, a + i, sL2E, sEps)
            if p % 4 == 3:
                f.append(wr(a + i - 3, p // 4, STK))
        f += signal(R_K)
        per = OPT.get('yper', 40)
    o += merge(p3a, f, start=0, per=per)
    o += stamp(4)
    f = [f"v_cvt_pk_bf16_f32 v{PK+i}, v{accB+2*i}, v{accB+2*i+1}" for i in range(8)]
    f += [wr(PK, 0, STQ), wr(PK + 4, 1, STQ)] + signal(R_Q)
    o += merge(p3b, f, start=4, per=2)
    o += stamp(5)
    a = accB + 16
    o += [f"v_cvt_pk_bf16_f32 v{QF+i}, v{a+2*i}, v{a+2*i+1}" for i in range(8)]
    o += [f"v_and_b32 v{QF}, v{QF}, v{vMA}", f"v_and_b32 v{QF+1}, v{QF+1}, v{vMA}",
          f"v_and_b32 v{QF+6}, v{QF+6}, v{vMB}", f"v_and_b32 v{QF+7}, v{QF+7}, v{vMB}"]
    return o


CM, SA, SB, SC, SF, SX = 16, 32, 64, 80, 96, 112
KFR = 128
PA, PB, PF = 200, 208, 216
OACC = 96
VF = (224, 232)
vKA, vVA, vMx, vG = 2, 3, 4, 5
NEG = '0xf149f2ca'


def attention(guard):
    sI0 = sSt
    o = []

    def kread(i):
        b = KFR + 8 * i
        return [f"ds_read_b128 v[{b+4*s}:{b+4*s+3}], v{vKA} offset:{2048*i+1024*s} ;@tag=k{i}" for s in range(2)]

    def vread(i, buf):
        return [f"ds_read_b128 v[{buf+4*s}:{buf+4*s+3}], v{vVA} offset:{2048*i+1024*s} ;@tag=v{i}" for s in range(2)]

    def qk(d, i, c):
        b = KFR + 8 * i
        return [mfma(d, b, QF, c), mfma(d, b + 4, QF + 4, d)]

    def setc(i, src):
        L, Lb = lab('g'), lab('gb')
        slow.extend([f"{L}:", "s_nop 7"] + [f"v_mov_b32 v{CM+r}, {src}" for r in range(16)] + [f"s_branch {Lb}"])
        return [f"s_cmp_eq_u32 s{sI0}, {i}", f"!s_cbranch_scc1 {L}", f"!{Lb}:"]

    def maxes(s, first):
        m = []
        if first:
            m.append(f"v_max3_f32 v{vMx}, v{s}, v{s+1}, v{s+2}")
            rest = list(range(3, 16))
        else:
            rest = list(range(16))
        while rest:
            if len(rest) >= 2:
                m.append(f"v_max3_f32 v{vMx}, v{vMx}, v{s+rest[0]}, v{s+rest[1]}")
                rest = rest[2:]
            else:
                m.append(f"v_max_f32 v{vMx}, v{vMx}, v{s+rest[0]}")
                rest = []
        return m

    C1 = CM if guard else None
    if guard:
        o += [f"v_mov_b32 v{CM+r}, {NEG}" for r in range(16)]
    o += wait_land(ST_K, inline=True)
    o += stamp(6)
    order = [0, 1, 2, 3, 4, 5, 6, 7, 8] if guard else [0, 8, 1, 2, 3, 4, 5, 6, 7]
    b1 = {0: SF, 8: SC}
    bufs = {}
    for i in range(1, 8):
        b1[i] = (SA, SB, SX)[i % 3]
        bufs[i] = (SA, SB)[i % 2]
    mrg = [f"v_cndmask_b32 v{SC+r}, v{SF+r}, v{SC+r}, s[{sMask+2*r}:{sMask+2*r+1}]" for r in range(16)]
    work = {}
    for i in range(1, 8):
        work[i] = maxes(b1[i], first=(guard and i == 1))
    work[8] = mrg + maxes(SC, first=not guard)
    work[0] = []
    o += kread(order[0]) + kread(order[1]) + kread(order[2])
    q = []
    for n, i in enumerate(order):
        if guard:
            o += setc(i, "0")
        m = qk(b1[i], i, C1)
        nxt = kread(order[n + 3]) if n + 3 < 9 else []
        take = 4 if len(q) <= 12 else 6
        o += [f"@wait_ds k{i}", m[0]] + q[:take] + [m[1]] + nxt
        q = q[take:]
        if n >= 1:
            q = q + work[order[n - 1]]
        must = len(q) - len(work[order[n - 1]]) if n >= 1 else 0
        take = max(must, 4 if len(q) <= 12 else 6)
        o += q[:take]
        q = q[take:]
    vrd, vchk = wait_land(ST_V)
    o += vrd + q + work[order[-1]][:4] + vchk
    o += vread(0, VF[0]) + vread(8, VF[1])
    o += work[order[-1]][4:]
    t = TMP
    o += [f"v_mov_b32 v{t}, v{vMx}", f"v_permlane32_swap_b32 v{t}, v{vMx}",
          f"v_max_f32 v{vMx}, v{vMx}, v{t}", f"v_sub_f32 v{vMx}, 0, v{vMx}"]
    o += stamp(7)
    if guard:
        o += [f"v_mov_b32 v{CM+r}, {NEG}" for r in range(16)]
        o += setc(1, f"v{vMx}")
    else:
        o += [f"v_mov_b32 v{CM+r}, v{vMx}" for r in range(16)]

    def expcvt(s, p, sub):
        e = []
        for r in range(16):
            if sub:
                e.append(f"v_add_f32 v{s+r}, v{s+r}, v{vMx}")
        for r in range(16):
            e.append(f"v_exp_f32 v{s+r}, v{s+r}")
            if r % 2 == 1 and r >= 3:
                e.append(f"v_cvt_pk_bf16_f32 v{p+(r-3)//2}, v{s+r-3}, v{s+r-2}")
        e.append(f"v_cvt_pk_bf16_f32 v{p+7}, v{s+14}, v{s+15}")
        return e

    def spread(mf, va):
        r = []
        n = len(mf)
        k = 0
        for idx, g in enumerate(mf):
            r += g
            want = (len(va) * (idx + 1)) // n - k
            r += va[k:k + want]
            k += want
        return r

    ev = expcvt(SC, PA, True)
    ev += [x for p in range(8) for x in (f"v_and_b32 v{PB+p}, v{PA+p}, v{MK+p}", f"v_xor_b32 v{PF+p}, v{PA+p}, v{PB+p}")]
    q1 = qk(bufs[1], 1, CM)
    o += spread([[q1[0]], [q1[1]]], ev)
    prev_pv = [["@wait_ds v8", mfma(OACC, VF[0], PF, None)], [mfma(OACC, VF[0] + 4, PF + 4, OACC)] + vread(1, VF[0]),
               [mfma(OACC, VF[1], PB, OACC)], [mfma(OACC, VF[1] + 4, PB + 4, OACC)] + vread(2, VF[1])]
    gearly, glate = check_ev(GRDY, 'own', vG)
    for i in range(1, 8):
        P = (PB, PA)[i % 2]
        seq = []
        if i + 1 <= 7:
            if guard:
                o += setc(i + 1, f"v{vMx}")
            nq = qk(bufs[i + 1], i + 1, CM)
            seq += [[nq[0]], [nq[1]]]
        seq += prev_pv
        if i == 6:
            seq[-1] = seq[-1] + gearly
        if i == 7:
            seq[0] = glate + [f"ds_read_b32 v{vG}, v{vGA}", f"ds_read_b32 v{vEc}, v{vM} offset:{16*EPOCH}"] + seq[0]
        o += spread(seq, expcvt(bufs[i], P, False))
        vb = VF[(i + 1) % 2]
        prev_pv = [[f"@wait_ds v{i}", mfma(OACC, vb, P, OACC)],
                   [mfma(OACC, vb + 4, P + 4, OACC)] + (vread(i + 2, vb) if i + 2 <= 7 else [])]
    o += prev_pv[0] + prev_pv[1]
    return o


vGA, vEc = 8, 6


def finish_o(A, D, vscale, t, u, soff, vtag, snot, eps=None):
    o = [f"v_mov_b32 v{t}, v{A+15}", f"v_mov_b32 v{u}, v{A+15}", f"v_permlane32_swap_b32 v{t}, v{u}"]
    if eps is not None:
        o += [f"v_add_f32 v{u}, s{eps}, v{u}"]
    o += [f"v_rcp_f32 v{u}, v{u}", f"v_mov_b32 v{t}, 0xffff", f"v_mul_f32 v{u}, v{u}, v{vscale}"]
    for p in range(8):
        o += [f"v_mul_f32 v{A+2*p}, v{A+2*p}, v{u}"]
        if p % 4 != 3:
            o += [f"v_mul_f32 v{A+2*p+1}, v{A+2*p+1}, v{u}"]
        o += [f"v_cvt_pk_bf16_f32 v{D+p}, v{A+2*p}, v{A+2*p+1}"]
        if p % 4 == 3:
            e = p // 4
            o += [f"v_bfi_b32 v{D+p}, v{t}, v{D+p}, v{vtag}",
                  f"buffer_store_dwordx4 v[{D+4*e}:{D+4*e+3}], v{vL16}, s[{sWSD}:{sWSD+3}], s{soff} offen offset:{1024*e} sc1"]
    return o + notify(snot, t, vtag)


def c_tail():
    o = finish_o(OACC, PA, vG, TMP, TMP + 1, sSt + 1, vEc, sSt + 2)
    o += signal(E_OA)
    o += stamp(3)
    if OPT.get('alt') == 8:
        o += ["s_waitcnt vmcnt(1)", f"!s_memtime s[{sStamp+8}:{sStamp+9}]", "s_waitcnt vmcnt(0)", f"!s_memtime s[{sStamp+10}:{sStamp+11}]"]
    o += c_phase3()
    o += stamp_flush(TMP, 0)
    o += ["s_endpgm"]
    return o


def c_wave():
    ROLE[0] = 'C'
    o = ["@reset", "L_cwave:"] + stamp(4, 's')
    o += ["v_lshlrev_b32 v20, 3, v0", "v_mov_b32 v22, 0", "v_mov_b32 v23, 0", f"v_add_u32 v20, {MISC}, v20", "ds_write_b64 v20, v[22:23]",
          ]
    o += c_setup()
    o += stamp(5, 's') + ["s_waitcnt lgkmcnt(0)"] + stamp(6, 's') + ["s_barrier"] + stamp(7, 's')
    o += srd(sWSD, sWS, WS_SIZE)
    if OPT.get('cpf', 1):
        o += [f"s_cmp_eq_u32 s{sWave}, 1", f"s_cselect_b32 s16, s{sAW}, s{sBW}", f"s_cselect_b32 s17, s{sAW+1}, s{sBW+1}",
              "s_mov_b32 s18x, 1204224".replace("s18x", "s10"), "s_mov_b32 s11, 0x20000",
              f"s_cmp_eq_u32 s{sWave}, 0", f"s_cselect_b32 s8, s{sX}, s16", f"s_cselect_b32 s9, s{sX+1}, s17",
              f"s_cselect_b32 s10, 1835008, s10",
              f"s_cselect_b32 s{sT0}, 56, 25", f"s_mul_i32 s{sT1}, s{sT0}, s2", f"v_add_u32 v16, s{sT1}, v0",
              "v_mul_u32_u24 v17, 9363, v16", "v_lshrrev_b32 v17, 17, v17",
              f"s_cselect_b32 s{sT1}, 0, 896", f"v_mul_u32_u24 v17, s{sT1}, v17",
              f"v_lshl_add_u32 v16, v16, 7, v17", f"v_add_u32 v16, s{sT1}, v16",
              f"v_cmp_gt_u32 vcc, s{sT0}, v0", f"s_cmp_lt_u32 s{sWave}, 3", "s_cselect_b64 exec, vcc, 1",
              "!buffer_load_dword v238, v16, s[8:11], 0 offen", "s_mov_b64 exec, -1"]
    o += [f"s_cmp_eq_u32 s{sZ}, 0", "!s_cbranch_scc1 L_cY"]
    o += c_gemm(False)
    o += ["s_branch L_attn", "@reset", "L_cY:"]
    o += c_gemm(True)
    o += ["L_attn:", f"s_setprio {OPT.get('cprio', 0)}"]
    o += [f"s_lshl_b32 s{sT0}, s{sWave}, 11",
          f"s_add_u32 s{sT1}, s{sT0}, {KL}", f"v_add_u32 v{vKA}, s{sT1}, v{vL16}",
          f"s_add_u32 s{sT1}, s{sT0}, {VL}", f"v_add_u32 v{vVA}, s{sT1}, v{vL16}",
          f"s_lshl_b32 s{sT0}, s{sWave}, 8", f"s_add_u32 s{sT0}, s{sT0}, {GL}", f"v_lshl_add_u32 v{vGA}, v0, 2, s{sT0}",
          f"s_lshl_b32 s{sT0}, s{sWave}, 2", f"s_add_u32 s{sT0}, s{sT0}, {MISC}", f"v_mov_b32 v{vOwn}, s{sT0}",
          f"s_lshl_b32 s{sT0}, s{sTile}, 4", f"s_add_u32 s{sT0}, s{sT0}, s{sH}",
          f"s_lshl_b32 s{sT1}, s{sT0}, 7", f"s_add_u32 s{sSt+2}, s{sT1}, {NA}",
          f"s_lshl_b32 s{sT0}, s{sT0}, 11", f"s_add_u32 s{sSt+1}, s{sT0}, {OA}",
          f"s_cmp_lt_u32 s{sTile}, 8", "!s_cbranch_scc1 L_attn_g"]
    o += attention(False)
    o += ["L_ctail:"]
    o += c_tail()
    o += ["@reset", "L_attn_g:", f"s_sub_u32 s{sSt}, 8, s{sTile}"]
    o += attention(True)
    o += ["s_waitcnt lgkmcnt(0)", "s_nop 15", "s_branch L_ctail", "@reset"]
    return o


def code_prefetch():
    n = OPT['prefetch']
    if not n:
        return []
    o = ["s_getpc_b64 s[38:39]", "L_pc:",
         f"s_sub_u32 s38, s38, L_pc-{NAME}_kernel", "s_subb_u32 s39, s39, 0",
         f"s_lshr_b32 s{sT0}, s2, 3", f"s_lshl_b32 s{sT1}, s{sWave}, 5", f"s_add_u32 s{sT0}, s{sT0}, s{sT1}",
         f"s_mul_i32 s{sT0}, s{sT0}, {128*n}",
         f"v_lshl_add_u32 v20, v0, 7, s{sT0}",
         f"v_min_u32 v20, L_end-{NAME}_kernel-4, v20",
         f"s_mov_b64 exec, {(1 << n) - 1}",
         "!global_load_dword v239, v20, s[38:39]", "s_mov_b64 exec, -1"]
    return o


sXD, sWD, sQBD, sQAD, sGD = 36, 40, 44, 48, 52
sKGD, sVGD = 56, 60
sRt, sTT, sE2, sL2 = 64, 65, 66, 67
sOBo, sA, sB, sC = 68, 69, 70, 71
sOff, sLi, sKh = 72, 73, 75
sEarly = 61
sOBn = 62
sNo = 63
sC7 = 53
sCc, sCx, sCw, sRot = 60, 20, 21, 61
sOBd = 60
vX, vW, vQ, vPat, vK, vV, vWO = 2, 3, 4, 5, 6, 7, 8
vEp = 15
GV = 16
HQ = 28
PQR = 16
vG1 = 27
KVr = 88
sRet = 54


def p3_slot():
    return [f"s_and_b32 s{sT0}, s{sRB}, 3", f"s_lshl_b32 s{sT0}, s{sT0}, 3", f"s_and_b32 s{sT1}, s{sH}, 7",
            f"s_add_u32 s{sJ3}, s{sT0}, s{sT1}",
            f"s_cmp_ge_u32 s{sJ3}, 14", f"s_cselect_b32 s{sT0}, 14, 0", f"s_cselect_b32 s{sT1}, 1, 0",
            f"s_sub_u32 s{sT0}, s{sJ3}, s{sT0}", f"s_lshr_b32 s{sCT}, s{sT0}, 1", f"s_and_b32 s{sT0}, s{sT0}, 1",
            f"s_lshr_b32 s{sT2}, s{sH}, 3", f"s_lshl_b32 s{sT2}, s{sT2}, 1", f"s_add_u32 s{sT1}, s{sT1}, s{sT2}",
            f"s_and_b32 s{sT2}, s{sRB}, 12", f"s_add_u32 s{sT1}, s{sT1}, s{sT2}",
            f"s_lshl_b32 s{sT1}, s{sT1}, 1", f"s_add_u32 s{sT1}, s{sT1}, s{sT0}", f"s_lshl_b32 s{sTB}, s{sT1}, 1"]


def h_setup():
    return p3_slot() + [
            f"s_lshl_b32 s{sT0}, s{sW4}, 2", f"s_add_u32 s{sT0}, s{sT0}, {MISC}", f"v_mov_b32 v{vOwn}, s{sT0}",
            f"v_lshrrev_b32 v{vLow}, 5, v0", f"v_add_u32 v{vLow}, -1, v{vLow}",
            f"s_mov_b32 s{sE2}, {fhex(1e-6)}", f"s_mov_b32 s{sL2}, {fhex(LOG2E)}",
            f"s_lshl_b32 s{sT0}, s{sRB}, 2", f"s_add_u32 s{sT0}, s{sT0}, s{sW4}", f"s_lshl_b32 s{sT0}, s{sT0}, 4",
            f"s_add_u32 s{sT0}, s{sT0}, s{sH}",
            f"s_lshl_b32 s{sT1}, s{sT0}, 7", f"s_add_u32 s{sOBn}, s{sT1}, {NB}",
            f"s_lshl_b32 s{sT0}, s{sT0}, 11", f"s_add_u32 s{sOBo}, s{sT0}, {OB}"]


def qb_phi():
    R, A = 96, 64
    t, u = 24, 25
    o = spin_ev(R_Q, 'own', HQ)
    o += [f"s_lshl_b32 s{sT0}, s{sW4}, 12", f"v_add_u32 v{t}, s{sT0}, v{vL16}",
          f"ds_read_b128 v[{R}:{R+3}], v{t}", f"ds_read_b128 v[{R+4}:{R+7}], v{t} offset:1024",
          f"s_lshl_b32 s{sT0}, s{sW4}, 8", f"s_add_u32 s{sT0}, s{sT0}, {GL}", f"v_lshl_add_u32 v{26}, v0, 2, s{sT0}",
          f"v_lshlrev_b32 v{t}, 16, v{R+6}", f"v_lshlrev_b32 v{u}, 16, v{R+6}",
          f"v_permlane32_swap_b32 v{t}, v{u}",
          f"v_mul_f32 v{u}, s{sL2}, v{u}", f"v_exp_f32_e64 v{u}, -v{u}", f"v_add_f32 v{u}, 1.0, v{u}",
          f"v_rcp_f32 v{u}, v{u}", f"ds_write_b32 v26, v{u}"] + signal(GRDY) + [f"v_sub_f32 v{vG1}, 1.0, v{u}"]
    for p in range(8):
        o += [f"v_lshlrev_b32 v{A+2*p}, 16, v{R+p}", f"v_and_b32 v{A+2*p+1}, 0xffff0000, v{R+p}"]
        o += phi_pair(A + 2 * p, A + 2 * p + 1, t, u, PQR + p, sL2, sE2)
    o += [f"v_and_b32 v{PQR+6}, v{PQR+6}, v{vLow}", f"v_and_b32 v{PQR+7}, v{PQR+7}, v{vLow}"]
    return o


def ob_tile(read_kv=True):
    o = []
    if read_kv:
        o += spin_ev(KVRDY, 3, HQ)
        o += [f"v_add_u32 v24, {KVF}, v{vL16}",
              f"ds_read_b128 v[{KVr}:{KVr+3}], v24", f"ds_read_b128 v[{KVr+4}:{KVr+7}], v24 offset:1024"]
    o += [mfma(64, KVr, PQR, None), mfma(64, KVr + 4, PQR + 4, 64)]
    o += finish_o(64, 80, vG1, 24, 25, sOBo, vEp, sOBn, eps=sE2)
    return o


def call(name):
    return ["@drain", f"!s_call_b64 s[{sRet}:{sRet+1}], L_sub_{name}", "@reset"]


def subroutines():
    o = []
    for name, body in (("phi", qb_phi()), ("ob", ob_tile()), ("r0", woa_read(0) + signal(R1)), ("r1", woa_read(1))):
        o += ["@reset", f"L_sub_{name}:"] + body + ["s_waitcnt lgkmcnt(0)", f"!s_setpc_b64 s[{sRet}:{sRet+1}]"]
    for name, w in (("d7", f"!s_waitcnt vmcnt({OPT.get('wlead', 20) - 1})"), ("d7e", f"!s_waitcnt vmcnt({OPT.get('elead', 14) - 1})")):
        o += ["@reset", f"L_sub_{name}:"]
        for m in range(7):
            o += [w, f"!buffer_load_dwordx4 v{vWO}, s[{sXD}:{sXD+3}], s{sOff} offen lds",
                  f"!s_add_u32 s{sOff}, s{sOff}, s{sC7}", "!s_addk_i32 m0, 1024"]
        o += [f"!s_setpc_b64 s[{sRet}:{sRet+1}]"]
    return o


def wait_serving(rd, red, cmp_ok, early=None):
    L, L1, L2 = lab('ws'), lab('ws1'), lab('ws2')
    o = ["@drain", f"s_mov_b32 s{sTO}, 0", f"!{L}:", "!" + rd, f"!ds_read_b32 v24, v{vM} offset:{16*KVRDY+12}"]
    o += ["!" + x for x in _tmo()]
    o += ["!s_waitcnt lgkmcnt(0)", f"!v_cmp_lt_u32 vcc, s{sOBd}, v24", f"!s_cbranch_vccz {L1}",
          f"!s_call_b64 s[{sRet}:{sRet+1}], L_sub_ob", f"!s_mov_b32 s{sOBd}, 1", f"!s_mov_b32 s{sTO}, 0", f"!s_branch {L}", f"!{L1}:"]
    o += ["!" + x for x in red + [cmp_ok, f"s_cbranch_vccnz {L2}"]]
    if early is not None:
        o += [f"!s_mov_b32 s{early}, 1"]
    o += [f"!s_sleep {OPT.get('ssleep', 2)}", f"!s_branch {L}", "@reset", f"!{L2}:"]
    return o


def serve_ev(ev, early=None):
    return wait_serving(f"ds_read_b128 v[{HQ}:{HQ+3}], v{vM} offset:{16*ev}",
                        [f"v_min3_u32 v{HQ}, v{HQ}, v{HQ+1}, v{HQ+2}", f"v_min_u32 v{HQ}, v{HQ}, v{HQ+3}"],
                        f"v_cmp_ne_u32 vcc, 0, v{HQ}", early)


def serve_land(st):
    return wait_serving(f"ds_read_b32 v{HQ}, v{vM} offset:{256+4*st}", [], f"v_cmp_eq_u32 vcc, 2, v{HQ}")


def dma(vaddr, sd, soff, lds, extra="", tag=None, sbase=None):
    o = [f"s_add_u32 m0, s{sLi}, {lds}"]
    if sbase is not None:
        if soff:
            o.append(f"s_add_u32 s{sOff}, s{sbase}, {soff}")
            so = f"s{sOff}"
        else:
            so = f"s{sbase}"
    elif soff:
        o.append(f"s_mov_b32 s{sOff}, {soff}")
        so = f"s{sOff}"
    else:
        so = "0"
    o.append(f"buffer_load_dwordx4 v{vaddr}, s[{sd}:{sd+3}], {so} offen {extra} lds" + (f" ;@tag={tag}" if tag else ""))
    return o


def spin_vm(body, cond, sleep=0):
    L = lab('pv')
    o = [f"!s_mov_b32 s{sTO}, 0", f"!{L}:"]
    o += ["!" + b for b in body + _tmo()]
    o += ["s_waitcnt vmcnt(0)"]
    o += ["!" + c for c in cond]
    o += [f"!s_cbranch_vccnz {L}"]
    return o


def flag_ld(vdst, vaddr, soff):
    if 1:
        return [f"v_mov_b32 v{vdst}, 0", f"buffer_atomic_or v{vdst}, v{vaddr}, s[{sWSD}:{sWSD+3}], {soff} offen sc0 sc1"]
    return [f"buffer_load_dword v{vdst}, v{vaddr}, s[{sWSD}:{sWSD+3}], {soff} offen sc1"]


def light_poll(vdst, vaddr, soff, mask, cmp_bad, first_issued=False, sleep=None, flag=False, hook=None):
    sleep = OPT.get('psleep', 1) if sleep is None else sleep
    L, L2, L0 = lab('lp'), lab('lpx'), lab('lp0')
    ld = f"buffer_load_dword v{vdst}, v{vaddr}, s[{sWSD}:{sWSD+3}], {soff} offen sc1"
    o = [f"s_mov_b64 exec, {mask}", f"s_mov_b32 s{sTO}, 0"]
    if first_issued:
        o += [f"!s_branch {L0}"]
    o += [f"!{L}:"] + ["!!" + x for x in (flag_ld(vdst, vaddr, soff) if flag else [ld])] + [f"!{L0}:"] + ["!" + x for x in _tmo()] + ["s_waitcnt vmcnt(0)"]
    o += ["!" + c for c in cmp_bad]
    o += [f"!s_cbranch_vccz {L2}"]
    if hook:
        o += ["!!s_mov_b64 s[50:51], vcc", "!!s_mov_b64 exec, -1"] + ["!!" + x.lstrip('!') for x in hook if not x.startswith('@')] + ["!!s_mov_b64 vcc, s[50:51]"]
    o += ["!!s_mov_b64 exec, vcc"] + ([f"!!s_sleep {sleep}"] if sleep else []) + \
         [f"!!s_branch {L}", f"!{L2}:", "s_mov_b64 exec, -1"]
    return o


def notify(soff, vt, vep, fan=1):
    return [f"v_lshlrev_b32 v{vt}, 7, v0", f"s_mov_b64 exec, {(1 << fan) - 1}",
            f"buffer_store_dword v{vep}, v{vt}, s[{sWSD}:{sWSD+3}], s{soff} offen sc1", "s_mov_b64 exec, -1"]


def fmap(d, t):
    return [f"v_bfe_u32 v{d}, v0, 4, 1", f"v_bfe_u32 v{t}, v0, 2, 1", f"v_lshl_add_u32 v{d}, v{d}, 1, v{t}",
            f"v_mul_u32_u24 v{d}, 7, v{d}", f"v_bfe_u32 v{t}, v0, 3, 1", f"v_lshl_add_u32 v{d}, v{t}, 2, v{d}",
            f"v_and_b32 v{t}, 3, v0", f"v_add_u32 v{d}, v{d}, v{t}"]


def l_wave():
    ROLE[0] = 'L'
    o = [f"s_setprio {OPT.get('lprio', 2)}"]
    t0, t1, t2 = 24, 25, 26
    sHW = sW4
    o += [f"s_lshl_b32 s{sLi}, s{sHW}, 10",
          f"v_mov_b32 v{vMl}, v{vMs}", f"s_mov_b32 s{sT0}, {LANDC}", f"v_writelane_b32 v{vMl}, s{sT0}, 0"]
    o += [f"v_lshrrev_b32 v{t0}, 3, v0", f"s_lshl_b32 s{sT0}, s{sRB}, 4", f"s_add_u32 s{sT0}, s{sT0}, s{sHW}",
          f"s_lshl_b32 s{sT0}, s{sT0}, 3", f"v_add_u32 v{t1}, s{sT0}, v{t0}", f"v_mul_u32_u24 v{vX}, 896, v{t1}",
          f"v_lshrrev_b32 v{t1}, 4, v0", f"s_lshl_b32 s{sT0}, s{sHW}, 2", f"v_add_u32 v{t1}, s{sT0}, v{t1}",
          f"v_and_b32 v{t2}, 7, v0", f"v_xor_b32 v{t1}, v{t1}, v{t2}", f"v_lshl_add_u32 v{vX}, v{t1}, 4, v{vX}"]
    o += [f"s_lshl_b32 s{sT2}, s{sZ}, 4", f"s_add_u32 s{sT1}, s{sT2}, 112", f"s_add_u32 s{sT2}, s{sT2}, 48",
          f"s_mul_i32 s{sT1}, s{sT1}, s{sHH}", f"s_add_u32 s{sT1}, s{sT1}, 896",
          f"s_lshl_b32 s{sT0}, s{sHW}, 3", f"v_add_u32 v{t1}, s{sT0}, v{t0}", f"v_mul_u32_u24 v{vW}, 2688, v{t1}",
          f"v_bfe_u32 v{t1}, v0, 2, 1", f"v_bfe_u32 v{t2}, v0, 4, 1", f"v_xor_b32 v{t1}, v{t1}, v{t2}",
          f"v_mul_u32_u24 v{t2}, s{sT2}, v{t1}", f"v_add3_u32 v{vW}, v{vW}, v{t2}, s{sT1}",
          f"v_and_b32 v{t2}, 3, v0", f"v_lshl_add_u32 v{vW}, v{t2}, 4, v{vW}"]
    o += [f"s_mov_b32 s{sXD+2}, 1835008", f"s_mov_b32 s{sXD+3}, 0x20000",
          f"s_mov_b32 s{sWD+2}, 1204224", f"s_mov_b32 s{sWD+3}, 0x20000",
          f"s_cmp_eq_u32 s{sH}, 15", f"s_cselect_b32 s{sWD+2}, 0, s{sWD+2}",
          ] + {0: [f"s_mov_b32 s{sCc}, 0"],
               1: [f"s_xor_b32 s{sT0}, s{sRB}, s{sH}", f"s_and_b32 s{sT0}, s{sT0}, 1", f"s_mul_i32 s{sCc}, s{sT0}, {OPT.get('rotk', 3)}"],
               2: [f"s_add_u32 s{sT0}, s{sRB}, s{sH}", f"s_and_b32 s{sT0}, s{sT0}, 3", f"s_mul_i32 s{sCc}, s{sT0}, {OPT.get('rotk', 2)}"],
               3: [f"s_and_b32 s{sT0}, s{sRB}, 3", f"s_lshl_b32 s{sT0}, s{sT0}, 1", f"s_and_b32 s{sT1}, s{sH}, 7", f"s_add_u32 s{sCc}, s{sT0}, s{sT1}"],
               }[OPT.get('rotm', 0)] + [
          f"s_cmp_ge_u32 s{sCc}, 7", f"s_cselect_b32 s{sT0}, 7, 0", f"s_sub_u32 s{sCc}, s{sCc}, s{sT0}",
          f"s_cmp_ge_u32 s{sCc}, 7", f"s_cselect_b32 s{sT0}, 7, 0", f"s_sub_u32 s{sCc}, s{sCc}, s{sT0}",
          f"s_mov_b32 s{sRot}, s{sCc}",
          f"s_cmp_eq_u32 s{sZ}, 0"]
    o += stamp(1, 'f')
    o += ["s_waitcnt lgkmcnt(0)",
          f"s_mov_b32 s{sXD}, s{sX}", f"s_mov_b32 s{sXD+1}, s{sX+1}",
          f"s_cselect_b32 s{sWD}, s{sBW}, s{sAW}", f"s_cselect_b32 s{sWD+1}, s{sBW+1}, s{sAW+1}",
          f"s_lshl_b32 s{sCx}, s{sCc}, 7", f"s_mul_i32 s{sCw}, s{sCc}, {64*2688}"]
    nextc = [f"s_add_u32 s{sCc}, s{sCc}, 1", f"s_cmp_eq_u32 s{sCc}, 7", f"s_cselect_b32 s{sCc}, 0, s{sCc}"]
    setc_ = [f"s_lshl_b32 s{sCx}, s{sCc}, 7", f"s_mul_i32 s{sCw}, s{sCc}, {64*2688}"]
    ops = []
    for c in range(7):
        for ii in range(8):
            pre = (nextc + setc_) if (ii == 0 and c) else []
            ops.append((pre + dma(vX, sXD, 16 * ii * 896, XR(c) + 2048 * ii, sbase=sCx), c))
        for p in range(2):
            for ii in range(4):
                ops.append((dma(vW, sWD, 16 * ii * 2688 + 896 * p, WR(c) + 8192 * p + 2048 * ii, sbase=sCw), c))
    for q, sd in enumerate((sQBD, sQAD)):
        for c in range(7):
            for ii in range(2):
                pre = (nextc + setc_[1:]) if ii == 0 else []
                ops.append((pre + dma(vQ, sd, 32 * ii * 2688, QLOC[7 * q + c] + 2048 * ii, sbase=sCw), 7 + 7 * q + c))
    late = srd(sWSD, sWS, WS_SIZE) + srd(sQBD, sBW, 1204224) + srd(sQAD, sAW, 1204224) + srd(sGD, sGW, 896)
    late += [f"v_lshrrev_b32 v{t0}, 2, v0", f"s_lshl_b32 s{sT0}, s{sHW}, 4", f"v_add_u32 v{t0}, s{sT0}, v{t0}",
             f"v_mul_u32_u24 v{vQ}, 2688, v{t0}", f"v_and_b32 v{t1}, 3, v0", f"v_lshl_add_u32 v{vQ}, v{t1}, 4, v{vQ}",
             f"s_mul_i32 s{sT0}, s{sH}, 56", f"s_lshl_b32 s{sT1}, s{sPar}, 3", f"s_sub_u32 s{sT0}, s{sT0}, s{sT1}",
             f"v_add_u32 v{vQ}, s{sT0}, v{vQ}",
             f"v_bfe_u32 v{t0}, v0, 4, 1", f"v_lshlrev_b32 v{t0}, 5, v{t0}", f"v_and_b32 v{t1}, 15, v0",
             f"s_lshl_b32 s{sT0}, s{sHW}, 4", f"v_add3_u32 v{t0}, v{t0}, v{t1}, s{sT0}",
             f"v_lshlrev_b32 v27, 1, v{t0}",
             f"s_xor_b32 s{sT0}, s{sPar}, 1", f"s_mul_i32 s{sT0}, s{sT0}, 56", f"s_add_u32 s{sT0}, s{sT0}, {QBB}",
             f"v_lshl_add_u32 v{vPat}, v{t0}, 6, s{sT0}"]
    for c in range(7):
        late += [[f"s_lshl_b32 s{sT0}, s{sRot}, 7", f"buffer_load_ushort v{GV+c}, v27, s[{sGD}:{sGD+3}], s{sT0} offen",
                  f"s_add_u32 s{sRot}, s{sRot}, 1", f"s_cmp_eq_u32 s{sRot}, 7", f"s_cselect_b32 s{sRot}, 0, s{sRot}"]]
    late += [f"s_mul_i32 s{sT0}, s{sHW}, {VG}", f"s_add_u32 s{sT0}, s{sT0}, {OPT.get('wsoff', 0) << 20}", [f"s_add_u32 s{sKGD}, s{sWS}, s{sT0}", f"s_addc_u32 s{sKGD+1}, s{sWS+1}, 0"],
             f"s_mov_b32 s{sKGD+2}, 1835008", f"s_mov_b32 s{sKGD+3}, 0x20000"]
    late += [f"s_lshl_b32 s{sT0}, s{sRB}, 2", f"s_sub_u32 s{sT0}, s{sT0}, 8", f"s_mul_i32 s{sA}, s{sT0}, 28672",
             f"s_mul_i32 s{sT1}, s{sH}, 7", f"s_lshr_b32 s{sT1}, s{sT1}, 1", f"s_lshl_b32 s{sT1}, s{sT1}, 9",
             f"s_add_u32 s{sT1}, s{sT1}, s{sA}",
             f"v_add_u32 v{vK}, s{sT1}, v{vL16}",
             f"s_mul_i32 s{sT1}, s{sH}, 448", f"s_add_u32 s{sT1}, s{sT1}, s{sA}",
             f"v_lshrrev_b32 v{t0}, 5, v0", f"v_mul_u32_u24 v{t0}, 7168, v{t0}"] + fmap(t1, t2) + [
             f"v_lshl_add_u32 v{t0}, v{t1}, 4, v{t0}", f"v_add_u32 v{vV}, s{sT1}, v{t0}"]
    vFl = 32
    late += [f"s_mul_i32 s{sT0}, s{sH}, 28", f"s_add_u32 s{sT1}, s{sT0}, 27",
             f"s_lshr_b32 s{sT0}, s{sT0}, 6", [f"s_lshr_b32 s{sT1}, s{sT1}, 6", f"s_cmp_eq_u32 s{sT0}, s{sT1}",
             f"s_cselect_b32 s{sB}, 0x15, 63"],
             f"s_min_u32 s{sT0}, s{sRB}, 2", f"s_lshl_b32 s{sT0}, s{sT0}, 1", f"s_sub_u32 s{sT0}, 4, s{sT0}",
             f"s_lshl_b32 s{sT1}, -1, s{sT0}", f"s_and_b32 s{sB}, s{sB}, s{sT1}", f"s_mov_b32 s{sB+1}, 0",
             f"s_lshl_b32 s{sT0}, s{sRB}, 4", f"s_add_u32 s{sT0}, s{sT0}, s{sH}", f"s_lshl_b32 s{sT0}, s{sT0}, 7",
             f"v_lshl_add_u32 v{vFl}, v0, 2, s{sT0}"]
    late += [h_setup()] + p3_early()
    late += [f"v_lshrrev_b32 v{t0}, 3, v0", f"s_mul_i32 s{sT0}, s{sHW}, 224", f"v_add_u32 v{t1}, s{sT0}, v{t0}",
             f"v_mul_u32_u24 v{vWO}, 896, v{t1}",
             f"v_bfe_u32 v{t1}, v0, 2, 1", f"v_bfe_u32 v{t2}, v0, 4, 1", f"v_xor_b32 v{t1}, v{t1}, v{t2}",
             f"v_lshl_add_u32 v{vWO}, v{t1}, 6, v{vWO}", f"v_and_b32 v{t2}, 3, v0", f"v_lshl_add_u32 v{vWO}, v{t2}, 4, v{vWO}",
             f"s_lshl_b32 s{sT0}, s{sCT}, 7", f"v_add_u32 v{vWO}, s{sT0}, v{vWO}"]
    pieces = [late[i:i + 6] for i in range(0, len(late), 6)]
    last_of = {}
    for n, (_, st) in enumerate(ops):
        last_of[st] = n
    def lead_at(n):
        return OPT['l1'] if ops[n][1] < 7 else OPT['l3']
    sig_next = 0

    def do_signal(st):
        r = [f"@wait_vm o{last_of[st]}"]
        if 7 <= st <= 13:
            r.append(f"ds_write_b16 v{vPat}, v{GV+st-7} offset:{QLOC[st-7]-QBB}")
        return r + land(st)

    def emit_ops(n0, n1, sig, fine):
        r = []
        for n in range(n0, n1):
            ins, st = ops[n]
            need = {64: 1, 80: 2, 96: 3, 124: 4}.get(n)
            if need:
                assert sig >= need
                r += spin_ev(E_PA, 'all', HQ, ge=need)
            ins = ins[:-1] + [ins[-1] + f" ;@tag=o{n}"]
            if n == 0:
                r += stamp(2, 'f')
            r += ins
            if n == 15:
                r += stamp(3, 'f') + ["s_barrier"] + stamp(4, 'f')
            if n >= 16 and pieces:
                r += sum([x if isinstance(x, list) else [x] for x in pieces.pop(0)], [])
            done = n - lead_at(n)
            if done >= 0 and n >= 15:
                r += [f"@wait_vm o{done}"]
            while sig < 21 and last_of[sig] <= done and n >= 15:
                r += do_signal(sig)
                r += {0: stamp(5, 'f'), 1: stamp(6, 'f'), 2: stamp(7, 'f'), 4: stamp(8, 'f'), 6: stamp(9, 'f'), 10: stamp(10, 'f')}.get(sig, [])
                sig += 1
        return r, sig

    def tail(sig, pf=False):
        r, sig = emit_ops(HOLD, len(ops), sig, False)
        r += stamp(1) + stamp(11, 'f')
        if pf and OPT.get('ypf', 0):
            r += [f"s_cmp_eq_u32 s{sHW}, 0", f"s_cselect_b32 s48, s{sAO}, s{sBO}", f"s_cselect_b32 s49, s{sAO+1}, s{sBO+1}",
                  f"s_and_b32 s{sT0}, s{sRB}, 3", f"s_lshl_b32 s{sT0}, s{sT0}, 2", f"s_and_b32 s{sT1}, s{sHH}, 3",
                  f"s_add_u32 s{sT0}, s{sT0}, s{sT1}", f"s_mul_i32 s{sT0}, s{sT0}, {196*128}",
                  f"v_lshl_add_u32 v33, v0, 7, s{sT0}", "s_mov_b32 exec_hi, 0x1ffff"]
            for i in range(4):
                r += [f"global_load_dword v{40+i}, v33, s[48:49]"] + ([f"v_add_u32 v33, {49*128}, v33"] if i < 3 else [])
            r += ["s_mov_b64 exec, -1"]
        for st in range(sig, 21):
            r += do_signal(st)
        return r
    HOLD = OPT.get('hold', 140)
    r, sig = emit_ops(0, HOLD, 0, True)
    assert not pieces
    o += r
    if HOLD < len(ops):
        o += [f"s_cmp_eq_u32 s{sZ}, 0", "!s_cbranch_scc0 L_lhold"]
    o += tail(sig, True)
    if HOLD < len(ops):
        o += ["s_branch L_ljoin", "@reset", "L_lhold:"]
        while last_of[sig] < HOLD:
            o += [f"s_waitcnt vmcnt({HOLD - 1 - last_of[sig]})"] + do_signal(sig)
            sig += 1
        o += spin_ev(X_PUB, 'hi', HQ)
        o += tail(sig)
        o += ["@reset", "L_ljoin:"]
    o += spin_ev(EPOCH, 0, vEp)
    d7 = [f"!s_call_b64 s[{sRet}:{sRet+1}], L_sub_d7e"]

    def batch(ptr, row0, lds, stride, n, sub=d7):
        return [f"s_mov_b32 s{sXD}, s{ptr}", f"s_mov_b32 s{sXD+1}, s{ptr+1}", f"s_mov_b32 s{sOff}, {row0*896}",
                f"s_mul_i32 s{sLi}, s{sHW}, {stride}", f"s_add_u32 m0, s{sLi}, {lds}"] + sub * n
    o += [f"s_mov_b32 s{sXD+2}, 401408", f"s_mov_b32 s{sC7}, 7168",
          f"s_cmp_ge_u32 s{sJ3}, 28", "!s_cbranch_scc1 L_lnoA"]
    if OPT.get('e1', 0):
        o += [f"s_cmp_eq_u32 s{sHW}, 0", "!s_cbranch_scc1 L_lnoA"]
    o += spin_ev(E_P2, 'all', HQ)
    if OPT.get('zgate', 1):
        o += [f"s_cmp_eq_u32 s{sZ}, 0", "!s_cbranch_scc1 L_lgoA"] + spin_ev(X_PUB, 'hi', HQ) + ["L_lgoA:"]
    o += batch(sAO, 0, WBA, WBAS, 3)
    if OPT.get('e1', 0):
        o += [f"v_subrev_u32 v{vWO}, {224*896}, v{vWO}", f"s_mov_b32 s{sOff}, 0", f"s_mov_b32 m0, {WBA}"] + d7 * 3
    o += ["L_lnoA:"]
    o += [f"s_cmp_eq_u32 s{sHW}, 0", "!s_cbranch_scc0 L_lgV"] + spin_ev(F_K, 'hi', HQ, ge=2) + ["s_branch L_lg", "L_lgV:"]
    o += spin_ev(E_P3A, 'all', HQ) + ["L_lg:"]
    o += stamp(6, 'z')
    o += [f"s_mul_i32 s{sT1}, s{sHW}, {FV-FK}", f"s_add_u32 s{sT1}, s{sT1}, {FK}"]
    o += light_poll(t1, 32, f"s{sT1}", f"s[{sB}:{sB+1}]", [f"v_cmp_ne_u32 vcc, v{t1}, v{vEp}"], flag=OPT.get('apoll', 1), sleep=OPT.get('fsleep', 2))
    o += stamp(2)
    if OPT.get('alt') == 5:
        o += [f"s_add_u32 s{sStamp+14}, s{sStamp}, s{sTO}"]
    o += [f"s_cmp_eq_u32 s{sHW}, 0", "!s_cbranch_scc0 L_lV"]
    for j in range(12):
        for e in range(2):
            o += [f"s_mov_b32 m0, {KL + 2048*j + 1024*e - 1024*e}",
                  f"buffer_load_dwordx4 v{vK}, s[{sKGD}:{sKGD+3}], 0 offen offset:{1024*e} sc1 lds"]
        o += [f"v_add_u32 v{vK}, 28672, v{vK}"]
    o += [f"s_mov_b32 s{sA}, {4*ST_K}", "s_branch L_lKV", "@reset", "L_lV:"]
    o += [f"v_mov_b32 v{36+i}, 0x3f803f80" for i in range(4)]
    o += [f"v_lshlrev_b32 v{t0}, 9, v0", f"v_add_u32 v{t0}, {VL+496}, v{t0}",
          "s_mov_b32 exec_hi, 0xffff", f"ds_write_b128 v{t0}, v[36:39]",
          "s_mov_b32 exec_lo, 0x7fffffff", "s_mov_b32 exec_hi, 0x7fffffff", f"s_mov_b32 s{sOff}, 14336"]
    for j in range(12):
        for e in range(2):
            pre = [f"v_add_u32 v{t2}, s{sOff}, v{vV}"] if e else []
            o += pre + [f"s_mov_b32 m0, {VL + 2048*j + 1024*e}",
                        f"buffer_load_dwordx4 v{t2 if e else vV}, s[{sKGD}:{sKGD+3}], 0 offen sc1 lds"]
        o += [f"v_add_u32 v{vV}, 28672, v{vV}"]
    o += ["s_mov_b64 exec, -1", f"s_mov_b32 s{sA}, {4*ST_V}", "@reset", "L_lKV:"]
    o += stamp(3) + signal(KVISS)
    kvland = [f"v_add_u32 v{t2}, s{sA}, v{vMl}", f"v_mov_b32 v{t0}, 2", f"ds_add_u32 v{t2}, v{t0}"]
    o += [f"s_cmp_ge_u32 s{sJ3}, 28", "!s_cbranch_scc0 L_lwo"] + call("phi") + \
        ["s_waitcnt vmcnt(0)"] + kvland + call("ob") + stamp_flush(20, 0) + ["s_endpgm", "@reset", "L_lwo:"]
    o += call("phi") + stamp(8, 'z')
    o += ["s_waitcnt vmcnt(0)"] + kvland
    o += stamp(4)
    o += land(ST_WB)
    o += p3_setup() + [f"s_mov_b32 s{sOBd}, 0"] + serve_land(ST_WA1) + call("r0")
    o += stamp(5)
    o += ["s_branch L_p3", "@reset"]
    return o


sOb, sNb = 58, 59


def gload(g):
    r = [f"s_add_u32 s{sT2}, s{sOb}, {4096*g}"]
    for e in range(4):
        n = 4 * g + e
        r.append(f"buffer_load_dwordx4 v[{OF+4*n}:{OF+4*n+3}], v{vOG}, s[{sWSD}:{sWSD+3}], s{sT2} offen offset:{1024*e} sc1")
    return r


WA = 128
OF = 64
ACC = 32
BB = 16
vA = 2
vOG = 6
vTg = 9


def p3_early(PARK=248, base=STG, stride=STGS):
    t0, t1, t2, r, cg = 240, 241, 242, 243, 244
    o = [f"s_lshr_b32 s{sKh}, s{sW4}, 1", f"s_and_b32 s{sRt}, s{sW4}, 1",
         f"s_add_u32 s{sTT}, s{sTB}, s{sRt}",
         f"v_bfe_u32 v{r}, v0, 2, 2", f"v_bfe_u32 v{t0}, v0, 4, 1", f"v_and_b32 v{cg}, 3, v0",
         f"v_lshl_add_u32 v{cg}, v{t0}, 2, v{cg}", f"v_lshlrev_b32 v{cg}, 3, v{cg}",
         f"s_mul_i32 s{sT0}, s{sKh}, {stride}", f"s_add_u32 s{sT0}, s{sT0}, {base}",
         f"v_add_u32 v{cg}, s{sT0}, v{cg}",
         f"v_lshrrev_b32 v{t2}, 5, v0", f"v_mul_u32_u24 v{t2}, 7, v{t2}"]
    for s_ in range(2):
        for u in range(2):
            d = PARK + 2 * s_ + u
            o += [f"v_min_u32 v{t0}, {2 if u else 3}, v{r}", f"v_add3_u32 v{t0}, v{t0}, v{t2}, {14*s_+4*u}",
                  f"v_bfe_u32 v{t1}, v{t0}, 1, 1", f"v_xor_b32 v{t1}, s{sKh}, v{t1}",
                  f"v_lshl_add_u32 v{d}, v{t0}, 7, v{cg}", f"v_lshl_add_u32 v{d}, v{t1}, 6, v{d}"]
    o += [f"s_lshl_b32 s{sT0}, s{sTT}, 1", f"s_add_u32 s{sT0}, s{sT0}, s{sKh}", f"s_lshl_b32 s{sNo}, s{sT0}, 10", f"s_lshl_b32 s{sT0}, s{sT0}, 14",
          f"v_add_u32 v{PARK+4}, s{sT0}, v{vL16}"]
    return o


def p3_setup():
    return [f"v_mov_b32 v{vA+i}, v{248+i}" for i in range(5)] + [f"v_and_b32 v{vTg}, 0xffff0000, v{vEp}"]


FLIP = [f"v_xor_b32 v{vA+i}, 64, v{vA+i}" for i in range(4)]


def wo_frag(dst, hl, s, tag=None):
    return [tr(dst, vA + 2 * s, 28 * hl * 128), tr(dst + 2, vA + 2 * s + 1, 28 * hl * 128, tag)]


def woa_read(rho):
    o = []
    for j in range(2):
        for hl in range(4):
            for s in range(2):
                o += wo_frag(WA + 64 * j + 8 * (4 * rho + hl) + 4 * s, hl, s)
        o += FLIP
    return o


RSTR = VL - KL


def half_sub():
    vC = 7
    o = ["@reset", "L_sub_half:"]

    def gcheck(g):
        b = OF + 16 * g
        ch = [f"v_xor_b32 v{b+4*e+3}, v{b+4*e+3}, v{vTg}" for e in range(4)]
        ch += [f"v_or3_b32 v{vC}, v{b+3}, v{b+7}, v{b+11}", f"v_or_b32 v{vC}, v{vC}, v{b+15}",
               f"v_cmp_lt_u32 vcc, 0xffff, v{vC}"]
        Ls, Lb = lab('slow'), lab('back')
        slow.extend([f"{Ls}:"] + ([f"s_add_u32 s{sStamp+14}, s{sStamp+14}, 1"] if OPT.get('alt') == 6 else []) + [f"s_mov_b32 s{sTO}, 0", f"{Ls}_s:", "s_sleep 4"] + gload(g) + _tmo() + ["s_waitcnt vmcnt(0)"] + ch +
                    [f"s_cbranch_vccnz {Ls}_s", f"s_branch {Lb}"])
        return ch + [f"!s_cbranch_vccnz {Ls}", f"!{Lb}:"]
    if OPT.get('alt') == 6:
        o += ["s_waitcnt lgkmcnt(0)", f"s_mov_b32 s{sStamp+14}, s{sStamp}"]
    if OPT.get('alt') in (7, 8):
        o += [f"!s_memtime s[{sStamp+12}:{sStamp+13}]"]
    o += [f"v_lshlrev_b32 v7, 7, v0"]
    o += light_poll(HQ, 7, f"s{sNb}", "0xff", [f"v_cmp_ne_u32 vcc, v{HQ}, v{vEp}"], sleep=OPT.get('osleep', 1))
    o += stamp(9)
    if OPT.get('alt') in (7, 8):
        o += [f"s_add_u32 s{sStamp+14}, s{sStamp}, s{sTO}"]
    for g in range(4):
        o += gload(g)
    sO = 40
    o += srd(sO, sOUT, 1835008)
    o += [f"s_lshr_b32 s{sT2}, s{sWave}, 2", f"s_mul_i32 s{sT1}, s{sT2}, {RSTR}",
          f"s_mul_i32 s{sT0}, s{sW4}, 6144", f"s_add_u32 s{sT0}, s{sT0}, {KL}",
          f"s_add_u32 s44, s{sT0}, s{sT1}", f"v_add_u32 v2, s44, v{vL16}",
          f"s_sub_u32 s44, s{sT0}, s{sT1}", f"s_add_u32 s44, s44, {RSTR+4096}", f"v_add_u32 v3, s44, v{vL16}",
          f"s_lshl_b32 s{sT2}, s{sT2}, 11",
          f"s_xor_b32 s{sT1}, s{sW4}, 2", f"s_mul_i32 s{sT0}, s{sT1}, 6144", f"s_add_u32 s{sT0}, s{sT0}, s{sT2}",
          f"s_add_u32 s{sT0}, s{sT0}, {KL}", f"v_add_u32 v4, s{sT0}, v{vL16}", f"v_add_u32 v24, {RSTR}, v4",
          f"v_and_b32 v8, 31, v0", f"s_lshl_b32 s{sT0}, s{sTT}, 5", f"v_add_u32 v8, s{sT0}, v8",
          f"v_mul_u32_u24 v8, 896, v8", f"v_lshrrev_b32 v5, 5, v0",
          f"v_lshl_add_u32 v8, v5, 4, v8",
          f"s_lshl_b32 s{sT0}, s{sCT}, 1", f"s_add_u32 s{sT0}, s{sT0}, s{sKh}", f"s_lshl_b32 s{sT0}, s{sT0}, 6",
          f"s_lshr_b32 s{sT2}, s{sT2}, 6", f"s_add_u32 s{sT0}, s{sT0}, s{sT2}",
          f"v_add_u32 v8, s{sT0}, v8"]
    early, late = check_ev(E_OA, 'all', HQ)
    for n in range(16):
        if n % 4 == 0:
            o += gcheck(n // 4)
        if n == 12:
            o += early
        for j in ((0, 1) if n < 12 else ()):
            o.append(mfma(ACC + 16 * j, WA + 64 * j + 4 * n, OF + 4 * n, ACC + 16 * j if n else None))
    for j in (1, 0):
        for n in range(12, 16):
            o.append(mfma(ACC + 16 * j, WA + 64 * j + 4 * n, OF + 4 * n, ACC + 16 * j))
        if j == 1:
            o += late
    o += [f"ds_write_b128 v2, v[{ACC+16+4*i}:{ACC+16+4*i+3}] offset:{1024*i}" for i in range(4)]
    o += stamp(8)
    o += [f"s_cmp_lt_u32 s{sWave}, 4", "!s_cbranch_scc1 L_finC"]

    def fin(role):
        mine, spare = ACC + 8 * role, ACC + 8 * (1 - role)
        r = [f"ds_write_b128 v2, v[{spare+4*i}:{spare+4*i+3}] offset:{4096+1024*i}" for i in range(2)]
        r += ["s_waitcnt lgkmcnt(0)", "s_barrier"]
        r += [f"ds_read_b128 v[{OF+4*i}:{OF+4*i+3}], v3 offset:{1024*i}" for i in range(2)]
        r += [f"ds_read_b128 v[{OF+8+4*i}:{OF+8+4*i+3}], v4 offset:{1024*i}" for i in range(2)]
        r += [f"ds_read_b128 v[{OF+16+4*i}:{OF+16+4*i+3}], v24 offset:{1024*i}" for i in range(2)]
        for i in range(8):
            r += [f"v_add_f32 v{mine+i}, v{mine+i}, v{OF+i}"]
        for i in range(8):
            r += [f"v_add_f32 v{OF+8+i}, v{OF+8+i}, v{OF+16+i}"]
        for p in range(4):
            r += [f"v_add_f32 v{mine+2*p}, v{mine+2*p}, v{OF+8+2*p}", f"v_add_f32 v{mine+2*p+1}, v{mine+2*p+1}, v{OF+8+2*p+1}",
                  f"v_cvt_pk_bf16_f32 v{16+p}, v{mine+2*p}, v{mine+2*p+1}"]
        r += ["s_branch L_fin"] if role == 1 else []
        return r
    st = [x for x in o if 0]
    o += fin(1) + ["@reset", "L_finC:", "s_nop 7"] + fin(0) + ["L_fin:"]
    o += [f"v_permlane32_swap_b32 v16, v18", f"v_permlane32_swap_b32 v17, v19"]
    fl = {0: "", 1: " sc1", 2: " nt", 3: " sc0 sc1"}[OPT.get('outfl', 0)]
    o += [f"buffer_store_dwordx4 v[16:19], v8, s[{sO}:{sO+3}], 0 offen{fl}"]
    if OPT.get('until'):
        o += [f"!s_mov_b32 s45, {OPT['until']}"]
        if 'pw' in OPT:
            st = sStamp + 2 * OPT['ps']
            o += ["!s_waitcnt lgkmcnt(0)", f"!s_sub_u32 s44, s{st}, s98", f"!s_cmp_ge_u32 s{sWave}, {OPT['pw']}", "!s_cselect_b32 s44, s44, 0",
                  f"!s_cmp_le_u32 s{sWave}, {OPT['pw2']}", "!s_cselect_b32 s44, s44, 0", "!s_add_u32 s45, s45, s44"]
        o += ["!L_dly2:", f"!s_memtime s[46:47]", "!s_waitcnt lgkmcnt(0)",
              "!s_sub_u32 s46, s46, s98", f"!s_cmp_lt_u32 s46, s45", "!s_cbranch_scc1 L_dly2"]
    o += stamp(10)
    if OPT['stamps'] and 'pw' not in OPT:
        o += ["s_waitcnt vmcnt(0)"] + stamp(11)
    o += stamp_flush(20, 0)
    o += ["s_endpgm"]
    return o


def phase3():
    ROLE[0] = 'H'
    o = ["@reset", "L_p3:"]
    o += serve_land(ST_WA2) + call("r1")
    o += stamp(6)
    o += [f"s_cmp_lg_u32 s{sOBd}, 0", "!s_cbranch_scc1 L_pB"] + call("ob") + ["L_pB:"]
    o += stamp(7)
    o += [f"s_mov_b32 s{sOb}, {OB}", f"s_add_u32 s{sNb}, s{sNo}, {NB}"]
    return o + half_sub()


def c_phase3():
    o = p3_slot() + [f"s_cmp_ge_u32 s{sJ3}, 28", "!s_cbranch_scc1 L_cend"]
    o += [f"v_mov_b32 v{vEp}, v{vEc}"] + p3_early(vA, WBA, WBAS) + [f"v_and_b32 v{vTg}, 0xffff0000, v{vEp}"]
    o += [f"s_mul_i32 s{sB}, s{sKh}, {(WBAS - WBBS) & 0xffffffff}", f"s_add_u32 s{sB}, s{sB}, {WBA - WBB}",
          f"s_mov_b32 s{sOb}, {OA}", f"s_add_u32 s{sNb}, s{sNo}, {NA}"]
    o += wait_land(ST_WB, HQ, inline=True, n=3)
    rd = lambda j, hl: sum([wo_frag(WA + 64 * j + 8 * hl + 4 * s_, hl if hl < 6 else hl - 6, s_) for s_ in range(2)], [])
    for hl in range(6):
        o += rd(0, hl)
    o += [f"v_subrev_u32 v{vA+x}, s{sB}, v{vA+x}" for x in range(4)] + rd(0, 6) + rd(0, 7) + FLIP + rd(1, 6) + rd(1, 7)
    o += [f"v_add_u32 v{vA+x}, s{sB}, v{vA+x}" for x in range(4)]
    for hl in range(6):
        o += rd(1, hl)
    o += [] + ["s_waitcnt lgkmcnt(0)", "s_branch L_sub_half", "@reset", "L_cend:"]
    return o


def pretouch():
    if not OPT.get('touch', 1):
        return []
    o = []
    for p in (sAW, sBW, sOUT, sAO, sBO, sGW, sDBG):
        o.append(f"!s_load_dword s44, s[{p}:{p+1}], 0")
    o += [f"s_mov_b32 s46, s{sWS}", f"s_mov_b32 s47, s{sWS+1}"]
    for i in range(6):
        o += ["!s_load_dword s44, s[46:47], 0", "s_add_u32 s46, s46, 0x200000", "s_addc_u32 s47, s47, 0"]
    return o


def x_wave():
    ROLE[0] = 'X'
    o = ["@reset", "L_xwave:", "s_waitcnt lgkmcnt(0)"] + pretouch() + ["s_barrier"]
    o += srd(sWSD, sWS, WS_SIZE)
    o += h_setup() + p3_early()
    sDD, sKD = 36, 40
    sJ = sLi
    t0, t1, t2 = 24, 25, 26
    o += [f"s_sub_u32 s{sJ}, s{sWave}, 6"]
    o += srd(sDD, sDBG, 256) + srd(sKD, sWS, WS_SIZE)
    o += [f"s_cmp_eq_u32 s{sH}, 15", f"s_cselect_b32 s{sKD+2}, 0, s{sKD+2}"]
    o += [f"v_mov_b32 v{t0}, 0", f"s_lshl_b32 s{sT0}, s2, 1", f"s_add_u32 s{sT0}, s{sT0}, s{sJ}",
          f"s_cmp_eq_u32 s{sT0}, 0", "!s_cbranch_scc0 L_xnoep",
          f"s_mov_b32 s{sT0}, {EPW}",
          f"buffer_load_dword v{vEp}, v{t0}, s[{sWSD}:{sWSD+3}], s{sT0} offen sc1",
          f"v_lshrrev_b32 v{t1}, 16, v{vEp}", f"v_add_u32 v{vEp}, 1, v{vEp}", f"v_and_b32 v{vEp}, 0xffff, v{vEp}",
          f"v_max_u32 v{vEp}, 1, v{vEp}", f"v_cmp_eq_u32 vcc, v{vEp}, v{t1}", f"v_addc_co_u32 v{vEp}, vcc, 0, v{vEp}, vcc",
          f"v_and_b32 v{vEp}, 0xffff, v{vEp}", f"v_max_u32 v{vEp}, 1, v{vEp}", f"v_lshl_or_b32 v{vEp}, v{vEp}, 16, v{vEp}",
          "s_mov_b64 exec, 1",
          f"buffer_store_dword v{vEp}, v{t0}, s[{sDD}:{sDD+3}], 0 offen sc1",
          f"buffer_store_dword v{vEp}, v{t0}, s[{sWSD}:{sWSD+3}], s{sT0} offen sc1",
          "s_mov_b64 exec, -1", "@reset", "L_xnoep:"]
    if OPT.get('gpf', 1):
        o += wait_land(OPT.get('gpfgate', 0), HQ, inline=True)
        o += [f"s_cmp_eq_u32 s{sJ}, 0", f"s_cselect_b32 s44, s{sAO}, s{sAW}", f"s_cselect_b32 s45, s{sAO+1}, s{sAW+1}",
              f"s_cselect_b32 s48, s{sBO}, s{sBW}", f"s_cselect_b32 s49, s{sBO+1}, s{sBW+1}",
              f"s_mov_b32 s{sT0}, 1204224", f"s_cselect_b32 s46, 401408, s{sT0}", "s_mov_b32 s47, 0x20000",
              f"s_mov_b32 s{sT0}, 2688", f"s_cselect_b32 s{sT1}, 896, s{sT0}",
              "s_mov_b32 s50, s46", "s_mov_b32 s51, 0x20000",
              f"s_mul_i32 s{sT0}, s2, 13", f"v_add_u32 v32, s{sT0}, v0", "v_mul_u32_u24 v33, 9363, v32", "v_lshrrev_b32 v33, 16, v33",
              "v_mul_u32_u24 v34, 7, v33", "v_sub_u32 v32, v32, v34", f"v_mul_u32_u24 v33, s{sT1}, v33", "v_lshl_add_u32 v32, v32, 7, v33",
              "s_mov_b64 exec, 0x1fff",
              "buffer_load_dword v33, v32, s[44:47], 0 offen", "buffer_load_dword v34, v32, s[48:51], 0 offen", "s_mov_b64 exec, -1"]
    o += wait_land(OPT.get('epgate', 2), HQ, inline=True)
    o += spin_vm([f"buffer_load_dword v{vEp}, v{t0}, s[{sDD}:{sDD+3}], 0 offen sc1"], [f"v_cmp_eq_u32 vcc, 0, v{vEp}"])
    o += [f"ds_write_b32 v{vM}, v{vEp} offset:{16*EPOCH}"]
    o += stamp(1)
    o += [f"s_setprio {OPT.get('xprio', 3)}", f"s_cmp_eq_u32 s{sZ}, 0", "!s_cbranch_scc1 L_xY"]
    o += [f"s_lshl_b32 s{sT0}, s{sHH}, 6", f"s_mul_i32 s{sT1}, s{sT0}, 2341", f"s_lshr_b32 s{sT1}, s{sT1}, 16",
          f"s_add_u32 s{sT0}, s{sT0}, 63", f"s_mul_i32 s{sT2}, s{sT0}, 2341", f"s_lshr_b32 s{sT2}, s{sT2}, 16",
          f"v_and_b32 v4, 3, v0", f"v_add_u32 v4, s{sT1}, v4", f"v_lshrrev_b32 v5, 2, v0",
          f"v_cmp_ge_u32 s[48:49], s{sT2}, v4", f"v_add_u32 v6, s{sRB}, v5", f"v_cmp_gt_u32 vcc, 16, v6",
          "s_and_b64 s[48:49], s[48:49], vcc", "s_and_b32 s48, s48, 0xfff", "s_mov_b32 s49, 0",
          f"s_cmp_eq_u32 s{sH}, 15", "s_cselect_b32 s48, 0, s48",
          "v_lshl_add_u32 v3, v6, 4, v4", "v_lshlrev_b32 v3, 5, v3",
          "v_mul_u32_u24 v4, 28, v4", "v_lshrrev_b32 v4, 6, v4", f"v_sub_u32 v4, s{sHH}, v4",
          "v_lshlrev_b32 v5, 1, v5", "v_sub_u32 v5, 4, v5", "v_add3_u32 v3, v3, v4, v5", "v_lshlrev_b32 v3, 2, v3",
          f"s_mul_i32 s50, s{sJ}, {FV-FK}", f"s_add_u32 s50, s50, {FK}",
          f"s_mul_i32 s44, s{sRB}, {4*28672}",
          f"s_cmp_eq_u32 s{sJ}, 0", "!s_cbranch_scc0 L_xZV"]
    o += [f"s_lshl_b32 s{sT0}, s{sHH}, 12", f"s_add_u32 s44, s44, s{sT0}"]
    o += spin_ev(R_K, 'all', HQ)
    o += [f"ds_read_b128 v[{64+4*i}:{64+4*i+3}], v{vL16} offset:{STK+1024*i}" for i in range(16)] + signal(F_K) + signal(F_K)
    for i in range(16):
        o += [f"buffer_store_dwordx4 v[{64+4*i}:{64+4*i+3}], v{vL16}, s[{sKD}:{sKD+3}], s44 offen offset:{1024*(i%4)} sc1"]
        if i % 4 == 3:
            o += ["s_add_u32 s44, s44, 28672"]
    o += ["s_branch L_xZn", "@reset", "L_xZV:"]
    o += [f"s_lshl_b32 s{sT0}, s{sHH}, 10", f"s_add_u32 s44, s44, s{sT0}", f"s_add_u32 s44, s44, {VG}", "s_add_u32 s45, s44, 14336",
          f"v_lshrrev_b32 v2, 5, v0", f"v_mul_u32_u24 v2, {7168-512}, v2", f"v_add_u32 v2, v2, v{vL16}"]
    o += spin_ev(R_V, 'all', HQ)
    o += [f"ds_read_b128 v[{64+4*i}:{64+4*i+3}], v{vL16} offset:{STV+1024*i}" for i in range(16)] + signal(F_K) + signal(F_K)
    if OPT.get('vafter', 1):
        o += spin_ev(X_PUB, 2, HQ)
    for i in range(16):
        j, s_ = (i % 4) // 2, i % 2
        o += [f"buffer_store_dwordx4 v[{64+4*i}:{64+4*i+3}], v2, s[{sKD}:{sKD+3}], s{44+s_} offen offset:{512*j} sc1"]
        if i % 4 == 3:
            o += ["s_add_u32 s44, s44, 28672", "s_add_u32 s45, s45, 28672"]
    o += ["@reset", "L_xZn:"] + signal(X_PUB) + stamp(2)
    Ln = lab('nn')
    o += ["s_cmp_eq_u32 s48, 0", f"!s_cbranch_scc1 {Ln}"]
    o += ["s_waitcnt vmcnt(0)", "s_mov_b64 exec, s[48:49]",
          f"buffer_store_dword v{vEp}, v3, s[{sWSD}:{sWSD+3}], s50 offen sc1", "s_mov_b64 exec, -1", f"!{Ln}:"] + stamp(3)
    o += ["s_branch L_xjoin", "@reset", "L_xY:"]
    o += fmap(t2, t1) + [f"v_lshrrev_b32 v{t1}, 5, v0", f"v_lshlrev_b32 v{t1}, 9, v{t1}", f"v_lshl_add_u32 v{t2}, v{t2}, 4, v{t1}"]
    o += [f"s_lshl_b32 s{sT0}, s{sJ}, 11", f"v_add_u32 v{t1}, s{sT0}, v{vL16}",
          f"s_add_u32 s{sT1}, s{sT0}, {STV}", f"v_add_u32 v{t2}, s{sT1}, v{t2}",
          f"v_lshrrev_b32 v2, 2, v0", f"v_lshlrev_b32 v2, 12, v2", f"v_and_b32 v3, 3, v0", f"v_lshl_add_u32 v2, v3, 9, v2",
          f"s_add_u32 s{sT0}, s{sT0}, {STV+448}", f"v_add_u32 v2, s{sT0}, v2"]
    o += [f"v_mov_b32 v{32+i}, 0x3f803f80" for i in range(4)]
    o += [f"s_lshl_b32 s{sT0}, s{sHH}, 1", f"s_add_u32 s{sT0}, s{sT0}, s{sJ}", f"s_lshl_b32 s{sT0}, s{sT0}, 4", f"s_add_u32 s{sT0}, s{sT0}, s{sRB}",
          f"s_lshl_b32 s44, s{sT0}, 13", f"s_add_u32 s44, s44, {KVP}", "s_add_u32 s45, s44, 4096",
          f"s_lshl_b32 s46, s{sT0}, 9", f"s_add_u32 s46, s46, {N1}"]
    o += spin_ev(R_V, 'all', HQ)
    o += ["s_mov_b64 exec, 0xffff", "ds_write_b128 v2, v[32:35]", "s_mov_b64 exec, -1"]
    o += [f"ds_read_b128 v[{96+4*i}:{96+4*i+3}], v{t2} offset:{4096*(i//2)+1024*(i%2)}" for i in range(8)] + signal(F_K)
    o += [f"v_mov_b32 v{33+2*i}, v{vEp}" for i in range(16)]
    o += spin_ev(R_K, 'all', HQ)
    o += [f"ds_read_b128 v[{64+4*i}:{64+4*i+3}], v{t1} offset:{STK+4096*(i//2)+1024*(i%2)}" for i in range(8)] + signal(F_K)
    o += stamp(2)
    o += [mfma(128, 64 + 4 * i, 96 + 4 * i, 128 if i else None) for i in range(8)]
    for i in range(8):
        o += [f"v_mov_b32 v{32+4*i}, v{128+2*i}", f"v_mov_b32 v{34+4*i}, v{129+2*i}",
              f"buffer_store_dwordx4 v[{32+4*i}:{35+4*i}], v{vL16}, s[{sWSD}:{sWSD+3}], s{44+i//4} offen offset:{1024*(i%4)} sc1"]
    o += notify(46, 24, vEp, 4)
    o += stamp(3)
    o += ["s_nop 1", "@reset", "L_xjoin:", f"s_setprio {OPT.get('hprio', 2)}"]
    if OPT.get('wopf', 1):
        Lp = lab('wopf')
        o += [f"s_cmp_eq_u32 s{sJ}, 0", f"!s_cbranch_scc0 {Lp}",
              f"s_lshr_b32 s{sT0}, s2, 3", f"s_mul_i32 s{sT0}, s{sT0}, {98*128}", f"v_lshl_add_u32 v24, v0, 7, s{sT0}",
              f"v_add_u32 v25, {49*128}, v24",
              "s_mov_b32 exec_hi, 0x1ffff"]
        for p in (sAO, sBO):
            o += [f"!global_load_dword v12, v24, s[{p}:{p+1}]", f"!global_load_dword v12, v25, s[{p}:{p+1}]"]
        o += ["s_mov_b64 exec, -1", f"!{Lp}:"]
    o += call("phi") + p3_setup() + [f"s_mov_b32 s{sOBd}, 0"]
    o += [f"s_cmp_eq_u32 s{sJ}, 1", "!s_cbranch_scc1 L_x1"]
    o += stamp(4)
    o += [f"s_cmp_ge_u32 s{sJ3}, 28", "!s_cbranch_scc1 L_xfin"]
    t0, t1, t2 = 24, 25, 26
    o += srd(sXD, sBO, 401408) + [f"s_mov_b32 s{sC7}, 7168",
          f"v_lshrrev_b32 v{t0}, 3, v0", f"v_mul_u32_u24 v{vWO}, 896, v{t0}",
          f"v_bfe_u32 v{t1}, v0, 2, 1", f"v_bfe_u32 v{t2}, v0, 4, 1", f"v_xor_b32 v{t1}, v{t1}, v{t2}",
          f"v_lshl_add_u32 v{vWO}, v{t1}, 6, v{vWO}", f"v_and_b32 v{t2}, 3, v0", f"v_lshl_add_u32 v{vWO}, v{t2}, 4, v{vWO}",
          f"s_lshl_b32 s{sT0}, s{sCT}, 7", f"v_add_u32 v{vWO}, s{sT0}, v{vWO}",
          f"v_mov_b32 v{vMl}, v{vMs}", f"s_mov_b32 s{sT0}, {LANDC}", f"v_writelane_b32 v{vMl}, s{sT0}, 0"]
    d7 = [f"!s_call_b64 s[{sRet}:{sRet+1}], L_sub_d7"]

    def xb(ptr, row0, lds, n):
        return [f"s_mov_b32 s{sXD}, s{ptr}", f"s_mov_b32 s{sXD+1}, s{ptr+1}", f"s_mov_b32 s{sOff}, {row0*896}",
                f"s_mov_b32 m0, {lds}"] + d7 * n
    o += spin_ev(F_K, 'hi', HQ, ge=2) + spin_ev(E_P3, 'all', HQ) + spin_ev(KVISS, 'lo', HQ)
    o += xb(sBO, 0, STG, 2) + xb(sBO, 224, STG + STGS, 2)
    if OPT.get('tailfirst', 1):
        o += xb(sAO, 168, WBB, 1) + xb(sAO, 224 + 168, WBB + WBBS, 1)
        o += ["s_waitcnt vmcnt(14)"] + land(ST_WA1) + land(ST_WA1)
    else:
        o += ["s_waitcnt vmcnt(0)"] + land(ST_WA1) + land(ST_WA1)
        o += xb(sAO, 168, WBB, 1) + xb(sAO, 224 + 168, WBB + WBBS, 1)
    o += call("r0")
    o += ["s_waitcnt vmcnt(0)"] + land(ST_WB)
    o += serve_ev(R1)
    o += xb(sBO, 112, STG, 2) + xb(sBO, 224 + 112, STG + STGS, 2)
    o += ["s_waitcnt vmcnt(0)"] + land(ST_WA2) + land(ST_WA2) + stamp(5)
    o += ["s_branch L_p3", "@reset", "L_x1:"]
    o += [f"v_lshlrev_b32 v{t0}, 3, v0",
          f"s_lshl_b32 s44, s{sH}, 17", f"s_lshl_b32 s{sT0}, s{sRB}, 9", f"s_add_u32 s44, s44, s{sT0}", f"s_add_u32 s44, s44, {KVP}",
          f"s_lshl_b32 s45, s{sH}, 13", f"s_add_u32 s45, s45, {KVT}", f"s_add_u32 s46, s45, s{sT0}", "s_add_u32 s47, s45, 4096"]

    def tagcheck():
        c = ["v_min3_u32 v25, v65, v67, v69", "v_max3_u32 v26, v65, v67, v69"]
        for j in range(3, 15, 2):
            c += [f"v_min3_u32 v25, v25, v{65+2*j}, v{67+2*j}", f"v_max3_u32 v26, v26, v{65+2*j}, v{67+2*j}"]
        c += [f"v_min3_u32 v25, v25, v95, v{vEp}", f"v_max3_u32 v26, v26, v95, v{vEp}", "v_cmp_ne_u32 vcc, v25, v26"]
        return c
    body = [f"s_mov_b32 s{sT1}, s44"]
    for j in range(16):
        body += [f"buffer_load_dwordx2 v[{64+2*j}:{65+2*j}], v{t0}, s[{sWSD}:{sWSD+3}], s{sT1} offen sc1",
                 f"s_add_u32 s{sT1}, s{sT1}, 8192"]
    o += [f"v_lshlrev_b32 v26, 9, v0", f"s_lshl_b32 s49, s{sH}, 6", f"s_lshr_b32 s{sT0}, s{sRB}, 2",
          f"s_add_u32 s49, s49, s{sT0}", "s_lshl_b32 s49, s49, 7", f"s_add_u32 s49, s49, {N1}"]
    if OPT.get('h1direct', 1):
        o += ["!" + x for x in body] + ["s_waitcnt vmcnt(0)"] + ["!" + x for x in tagcheck()] + ["!s_cbranch_vccz L_h1ok", "!v_lshlrev_b32 v26, 9, v0"]
    o += light_poll(25, 26, "s49", "0xffff", [f"v_cmp_ne_u32 vcc, v25, v{vEp}"])
    o += stamp(6, 'y')
    o += spin_vm(body, tagcheck())
    o += ["L_h1ok:"]
    for st in (1, 2, 4, 8):
        for j in range(0, 16, 2 * st):
            o.append(f"v_add_f32 v{64+2*j}, v{64+2*j}, v{64+2*(j+st)}")
    o += [f"buffer_store_dwordx2 v[64:65], v{t0}, s[{sWSD}:{sWSD+3}], s46 offen sc1",
          f"s_add_u32 s49, s49, {N2-N1}", f"s_lshl_b32 s46, s{sH}, 4", f"s_add_u32 s46, s46, s{sRB}",
          "s_lshl_b32 s46, s46, 9", f"s_add_u32 s46, s46, {N2}"] + notify(46, 25, vEp, 4)
    o += stamp(4)
    o += [f"s_mov_b32 s48, 1"]
    r0hook = [f"ds_read_b32 v{HQ}, v{vM} offset:{256+4*ST_WA1}", "s_waitcnt lgkmcnt(0)", f"v_cmp_lt_u32 vcc, s48, v{HQ}",
              "s_cbranch_vccz L_x1a"] + call("r0") + ["s_mov_b32 s48, 2", "L_x1a:"]
    body = [f"buffer_load_dwordx4 v[{64+4*j}:{67+4*j}], v{vL16}, s[{sWSD}:{sWSD+3}], s{45+2*(j//4)} offen offset:{1024*(j%4)} sc1" for j in range(8)]
    if OPT.get('x1block', 1):
        o += [f"s_cmp_ge_u32 s{sJ3}, 28", "!s_cbranch_scc1 L_x1b"] + wait_land(ST_WA1, HQ, inline=True) + call("r0") + ["s_mov_b32 s48, 2", "L_x1b:"]
    o += stamp(7, 'y')
    o += ["v_lshlrev_b32 v26, 9, v0"]
    o += light_poll(25, 26, "s49", "0xffff", [f"v_cmp_ne_u32 vcc, v25, v{vEp}"], hook=r0hook)
    o += stamp(8, 'y')
    o += spin_vm(body, tagcheck())
    o += stamp(9, 'y')
    o += [f"v_cvt_pk_bf16_f32 v{96+p}, v{64+4*p}, v{66+4*p}" for p in range(8)]
    o += [f"v_add_u32 v24, {KVF}, v{vL16}",
          f"ds_write_b128 v24, v[96:99]", f"ds_write_b128 v24, v[100:103] offset:1024"] + signal(KVRDY)
    o += call("ob") + [f"s_mov_b32 s{sOBd}, 1"]
    o += stamp(5)
    o += [f"s_cmp_ge_u32 s{sJ3}, 28", "!s_cbranch_scc1 L_xend", "s_cmp_eq_u32 s48, 2", "!s_cbranch_scc1 L_p3"]
    o += wait_land(ST_WA1, HQ, inline=True) + call("r0")
    o += ["s_branch L_p3", "@reset", "L_xfin:"] + call("ob") + ["L_xend:"] + stamp_flush(20, 0) + ["s_endpgm"]
    return o


HEADER = f"""; Fused sliding-window attention + linear attention + gated output projection (gfx950).
; One persistent launch: 256 workgroups x 8 waves (4 compute, 2 loader, 2 auxiliary).
; @launch grid=(256,1,1) block=(512,1,1) lds=163840
.amdgcn_target "amdgcn-amd-amdhsa--gfx950"
.text
.globl {NAME}_kernel
.p2align 8
.type {NAME}_kernel,@function
{NAME}_kernel:
"""
FOOTER = f"""
.section .rodata,"a"
.p2align 6
.amdhsa_kernel {NAME}_kernel
  .amdhsa_next_free_vgpr 256
  .amdhsa_next_free_sgpr 102
  .amdhsa_accum_offset 256
  .amdhsa_group_segment_fixed_size 0
  .amdhsa_kernarg_size 80
  .amdhsa_user_sgpr_count 2
  .amdhsa_user_sgpr_kernarg_segment_ptr 1
  .amdhsa_system_sgpr_workgroup_id_x 1
.end_amdhsa_kernel
"""


def main():
    body = prologue()
    SLEEP[0] = OPT.get('sleep', 1)
    l = l_wave()
    x = x_wave()
    p3 = phase3()
    sub = subroutines()
    SLEEP[0] = 0
    c = c_wave()
    rep = []
    lines = finalize(body + l + x + p3 + sub + c, rep)
    lines += ['    ' + s if not s.endswith(':') else s for s in slow]
    lines += ["L_abort:", "L_exit:", "    s_endpgm", "L_end:"]
    open(sys.argv[1], 'w').write(HEADER + "\n".join(lines) + FOOTER)
    big = [r for r in rep if r[0] >= 3]
    print("nops inserted:", len(rep), "total states", sum(r[0] for r in rep))
    for r in big:
        print("   ", r)


main()
```

```python
import sys, math, struct
from asmlib import finalize, merge

NAME = "gated_mix__sliding_block__linear_attn_block__prompt"
OPT = dict(stamps=0, l1=14, l3=8, prefetch=2, touch=0, refetch=0, wopf=0)
for a in sys.argv[2:]:
    k, v = a.split('=')
    OPT[k] = int(v)


def fhex(x):
    return '0x%08x' % struct.unpack('<I', struct.pack('<f', x))[0]


LOG2E = math.log2(math.e)
KSCALE = LOG2E * 28 ** -0.5
SPIN = 60000

def XR(c): return 16384 * (c % 4)
def WR(c): return 65536 + 16384 * (c % 4)
QLOC = [131072 + 4096 * c for c in range(6)] + [114688] + [114688 + 4096 * c for c in (1, 2, 3)] + [49152 + 4096 * c for c in range(4)]
QBB = 114688
KL = 16384
VL = 131072
STQ, STV, STK = 0, 16384, 32768
STG, STGS = 65536, 21504
WBA, WBAS = 40960, 67584
WBB, WBBS = 0, 7168
MISC = 158720
LANDC = MISC + 256
JUNK = MISC + 512
GL = MISC + 1536
KVF = MISC + 2560
E_PA, X_PUB, E_P2, E_P3, R_K, R_V, R_Q, E_OA, F_K, E_P3A, R1, GRDY, KVRDY, EPOCH, KVISS = range(15)
ST_K, ST_V, ST_WA1, ST_WB, ST_WA2 = 21, 22, 23, 24, 25

KG, VG, OA, OB, KVP, KVT = 0x000000, 0x200000, 0x400000, 0x600000, 0x800000, 0xA00000
FK, FV, N1, N2, NA, NB, EPW = 0xA40000, 0xA48000, 0xA60000, 0xA80000, 0xAA0000, 0xAC0000, 0xA50000
STAMPS = 0xB00000
WS_SIZE = 0x1000000

sX, sAW, sAO, sBW, sBO, sGW, sOUT, sDBG, sWS = 4, 6, 8, 12, 14, 16, 18, 20, 22
sWave, sH, sRB, sPar, sHH = 24, 25, 26, 27, 28
sT0, sT1, sT2, sTO = 29, 30, 31, 3
sZ = 74
sWSD = 32
sStamp = 76
sJ3, sCT, sTB = 100, 10, 11
sW4 = 101

_lab = [0]
slow = []
ROLE = ['P']
SLEEP = [0]
vL16, vM, vOne, vF, vMs = 1, 10, 11, 12, 13
vFq = 252


def lab(p):
    _lab[0] += 1
    return f"L_{p}_{_lab[0]}"


def srd(d, ptr, size, add=0):
    o = []
    if ptr == sWS:
        add += OPT.get('wsoff', 0) << 20
    if add:
        o += [f"s_add_u32 s{d}, s{ptr}, {add}", f"s_addc_u32 s{d+1}, s{ptr+1}, 0"]
    else:
        o += [f"s_mov_b32 s{d}, s{ptr}", f"s_mov_b32 s{d+1}, s{ptr+1}"]
    o += [f"s_mov_b32 s{d+2}, {size}", f"s_mov_b32 s{d+3}, 0x20000"]
    return o


def stamp(i, kind=''):
    if not OPT['stamps']:
        return []
    alt = OPT.get('alt', 0)
    if kind == 'z':
        return [f"!s_memtime s[{sStamp+2*i}:{sStamp+2*i+1}]"] if alt == 5 else []
    if kind == 's':
        return [f"!s_memtime s[{sStamp+2*i}:{sStamp+2*i+1}]"] if alt == 9 else []
    if alt == 9 and 4 <= i <= 8:
        return []
    if ROLE[0] == 'L' and (alt == 1) != (kind == 'f'):
        return []
    if kind == 'z':
        return [f"!s_memtime s[{sStamp+2*i}:{sStamp+2*i+1}]"] if alt == 5 else []
    if ROLE[0] == 'H' and alt in (1, 3, 4, 5):
        return []
    if kind == 'y' and alt != 4:
        return []
    if kind == 'x' and alt != 3:
        return []
    if ROLE[0] == 'C' and (alt == 2) != (kind == 'f'):
        return []
    return [f"!s_memtime s[{sStamp+2*i}:{sStamp+2*i+1}]"]


def stamp_flush(vt, vlane):
    if not OPT['stamps'] or 'pw' in OPT:
        return []
    o = ["s_mov_b64 exec, -1", "s_waitcnt lgkmcnt(0)", f"v_mov_b32 v{vt}, 0"]
    for i in range(12):
        o.append(f"v_writelane_b32 v{vt}, s{sStamp+2*i}, {i}")
    o += [f"s_lshl_b32 s{sT0}, s2, 3", f"s_add_u32 s{sT0}, s{sT0}, s{sWave}", f"s_lshl_b32 s{sT0}, s{sT0}, 8",
          f"s_add_u32 s{sT0}, s{sT0}, {STAMPS}",
          f"v_lshlrev_b32 v{vt+1}, 2, v{vlane}",
          f"buffer_store_dword v{vt}, v{vt+1}, s[{sWSD}:{sWSD+3}], s{sT0} offen"]
    return o


def _tmo():
    return [f"s_add_u32 s{sTO}, s{sTO}, 1", f"s_cmp_gt_u32 s{sTO}, {SPIN}", "s_cbranch_scc1 L_abort"]


def _ev_read(ev, which, q):
    if which == 'all':
        return [f"ds_read_b128 v[{q}:{q+3}], v{vM} offset:{16*ev}"], \
               [f"v_min3_u32 v{q}, v{q}, v{q+1}, v{q+2}", f"v_min_u32 v{q}, v{q}, v{q+3}"]
    if which in ('hi', 'lo'):
        return [f"ds_read_b64 v[{q}:{q+1}], v{vM} offset:{16*ev + (8 if which == 'hi' else 0)}"], \
               [f"v_min_u32 v{q}, v{q}, v{q+1}"]
    if which == 'own':
        return [f"ds_read_b32 v{q}, v{vOwn} offset:{16*ev}"], []
    return [f"ds_read_b32 v{q}, v{vM} offset:{16*ev + 4*which}"], []


def spin_ev(ev, which, q=None, ge=1):
    q = vFq if q is None else q
    L, L2 = lab('sp'), lab('spx')
    rd, red = _ev_read(ev, which, q)
    o = ["s_waitcnt lgkmcnt(0)", f"!s_mov_b32 s{sTO}, 0", f"!{L}:"]
    o += ["!" + x for x in rd + _tmo() + ["s_waitcnt lgkmcnt(0)"] + red]
    if SLEEP[0]:
        o += [f"!v_cmp_le_u32 vcc, {ge}, v{q}", f"!s_cbranch_vccnz {L2}", f"!!s_sleep {SLEEP[0]}", f"!!s_branch {L}", f"!{L2}:"]
    else:
        o += [f"!v_cmp_gt_u32 vcc, {ge}, v{q}", f"!s_cbranch_vccnz {L}"]
    return o


def check_ev(ev, which, q):
    Ls, Lb = lab('slow'), lab('back')
    rd, red = _ev_read(ev, which, q)
    slow.extend([f"{Ls}:", f"s_mov_b32 s{sTO}, 0", f"{Ls}_s:"] + rd + _tmo() + ["s_waitcnt lgkmcnt(0)"] + red +
                [f"v_cmp_eq_u32 vcc, 0, v{q}", f"s_cbranch_vccnz {Ls}_s", f"s_branch {Lb}"])
    return rd, red + [f"v_cmp_eq_u32 vcc, 0, v{q}", f"!s_cbranch_vccnz {Ls}", f"!{Lb}:"]


def wait_land(st, q=None, inline=False, n=2):
    q = vFq if q is None else q
    rd = f"ds_read_b32 v{q}, v{vM} offset:{256 + 4*st}"
    if inline:
        L, L2 = lab('wl'), lab('wlx')
        o = ["s_waitcnt lgkmcnt(0)", f"!s_mov_b32 s{sTO}, 0", f"!{L}:"] + ["!" + x for x in [rd] + _tmo() + ["s_waitcnt lgkmcnt(0)"]]
        if SLEEP[0]:
            return o + [f"!v_cmp_eq_u32 vcc, {n}, v{q}", f"!s_cbranch_vccnz {L2}", f"!!s_sleep {SLEEP[0]}", f"!!s_branch {L}", f"!{L2}:"]
        return o + [f"!v_cmp_ne_u32 vcc, {n}, v{q}", f"!s_cbranch_vccnz {L}"]
    Ls, Lb = lab('slow'), lab('back')
    slow.extend([f"{Ls}:", f"s_mov_b32 s{sTO}, 0", f"{Ls}_s:", rd] + _tmo() +
                ["s_waitcnt lgkmcnt(0)", f"v_cmp_ne_u32 vcc, {n}, v{q}", f"s_cbranch_vccnz {Ls}_s", f"s_branch {Lb}"])
    return [rd], [f"v_cmp_ne_u32 vcc, {n}, v{q}", f"!s_cbranch_vccnz {Ls}", f"!{Lb}:"]


vMl = 12


def land(st):
    return [f"ds_add_u32 v{vMl}, v{vOne} offset:{4*st}"]


def signal(ev):
    return [f"ds_add_u32 v{vMs}, v{vOne} offset:{16*ev}"]


def mfma(d, a, b, c):
    cs = f"v[{c}:{c+15}]" if isinstance(c, int) and c >= 0 else "0"
    return f"v_mfma_f32_32x32x16_bf16 v[{d}:{d+15}], v[{a}:{a+3}], v[{b}:{b+3}], {cs}"


def tr(d, a, off, tag=None):
    return f"ds_read_b64_tr_b16 v[{d}:{d+1}], v{a} offset:{off}" + (f" ;@tag={tag}" if tag else "")


vOwn = 9


def common_setup():
    return [f"v_lshlrev_b32 v{vL16}, 4, v0", f"v_mov_b32 v{vM}, {MISC}", f"v_mov_b32 v{vOne}, 1",
            f"s_and_b32 s{sW4}, s{sWave}, 3",
            f"v_lshlrev_b32 v{vMs}, 2, v0", f"v_add_u32 v{vMs}, {JUNK}, v{vMs}",
            f"s_lshl_b32 s{sT0}, s{sW4}, 2", f"s_add_u32 s{sT0}, s{sT0}, {MISC}",
            f"v_writelane_b32 v{vMs}, s{sT0}, 0"]


def prologue():
    o = []
    o += ["s_load_dwordx4 s[4:7], s[0:1], 0", "s_load_dwordx8 s[12:19], s[0:1], 32",
          "s_load_dwordx4 s[20:23], s[0:1], 64", "s_load_dwordx2 s[8:9], s[0:1], 16"]
    o += stamp(0)
    if OPT.get('until'):
        o += ["!s_memtime s[98:99]"]
    o += ["s_cmp_ge_u32 s2, 256", "!s_cbranch_scc1 L_exit",
          "v_lshrrev_b32 v1, 6, v0", "v_and_b32 v0, 63, v0", f"v_xor_b32 v1, {OPT.get('wswap', 4)}, v1", "s_nop 0",
          f"v_readfirstlane_b32 s{sWave}, v1"] + code_prefetch() + [
          f"s_and_b32 s{sT0}, s2, 7", f"s_lshr_b32 s{sT1}, s2, 3",
          f"s_and_b32 s{sH}, s{sT0}, 1", f"s_lshl_b32 s{sH}, s{sH}, 3",
          f"s_and_b32 s{sT2}, s{sT1}, 7", f"s_add_u32 s{sH}, s{sH}, s{sT2}",
          f"s_lshr_b32 s{sRB}, s{sT0}, 1", f"s_lshl_b32 s{sRB}, s{sRB}, 2",
          f"s_lshr_b32 s{sT2}, s{sT1}, 3", f"s_add_u32 s{sRB}, s{sRB}, s{sT2}",
          f"s_and_b32 s{sPar}, s{sH}, 1", f"s_lshr_b32 s{sHH}, s{sH}, 1",
          f"s_and_b32 s{sT0}, s2, 1", f"s_xor_b32 s{sZ}, s{sPar}, s{sT0}", f"s_xor_b32 s{sZ}, s{sZ}, 1"]
    o += common_setup()
    o += [f"s_cmp_lt_u32 s{sWave}, 4", "!s_cbranch_scc1 L_cwave",
          f"s_cmp_ge_u32 s{sWave}, 6", "!s_cbranch_scc1 L_xwave"]
    return o


vXA, vW0, vW1, vQB, vQA, vLow, vSt = 2, 6, 7, 8, 9, 14, 15
PK = 16
WB = 32
MK = 56
accA, accB = 64, 96
XF = 128
QF = 240
vMA, vMB = 248, 249
TMP = 250
sMask = 40
sL2E, sEps, sKS, sTile, sSt = 72, 73, 39, 75, 36


def c_setup():
    o = []
    lo, hh, t0, t1, t2 = 20, 21, 22, 23, 24
    o += [f"v_and_b32 v{lo}, 31, v0", f"v_lshrrev_b32 v{hh}, 5, v0",
          f"s_lshl_b32 s{sTile}, s{sRB}, 2", f"s_add_u32 s{sTile}, s{sTile}, s{sWave}",
          f"s_mov_b32 s{sL2E}, {fhex(LOG2E)}", f"s_mov_b32 s{sEps}, {fhex(1e-6)}", f"s_mov_b32 s{sKS}, {fhex(KSCALE)}"]
    o += [f"v_bfe_u32 v{t0}, v0, 1, 3", f"v_xor_b32 v{t0}, v{t0}, v{hh}",
          f"s_lshl_b32 s{sT0}, s{sWave}, 12",
          f"v_add_u32 v{vSt}, s{sT0}, v{vL16}",
          f"v_lshlrev_b32 v{t1}, 7, v{lo}", f"v_add_u32 v{t1}, s{sT0}, v{t1}"]
    for s in range(4):
        o += [f"v_xor_b32 v{t2}, {2*s}, v{t0}", f"v_lshl_add_u32 v{vXA+s}, v{t2}, 4, v{t1}"]
    r, cg, row = 25, 26, 27
    o += [f"v_bfe_u32 v{r}, v0, 2, 2", f"v_bfe_u32 v{t0}, v0, 4, 1", f"v_and_b32 v{cg}, 3, v0",
          f"v_lshl_add_u32 v{cg}, v{t0}, 2, v{cg}",
          f"v_lshl_add_u32 v{row}, v{hh}, 3, v{r}"]
    o += [f"v_lshrrev_b32 v{t0}, 1, v{r}",
          f"v_lshlrev_b32 v{t1}, 7, v{row}", f"v_add_u32 v{t1}, 65536, v{t1}",
          f"v_lshl_add_u32 v{vW0}, v{t0}, 6, v{t1}",
          f"v_xor_b32 v{vW1}, 64, v{vW0}",
          f"v_lshl_add_u32 v{vW0}, v{cg}, 3, v{vW0}",
          f"s_xor_b32 s{sT0}, s{sZ}, 1",
          f"v_add_u32 v{t2}, s{sT0}, v{cg}", f"v_and_b32 v{t2}, 7, v{t2}",
          f"v_lshl_add_u32 v{vW1}, v{t2}, 3, v{vW1}"]
    o += [f"v_lshlrev_b32 v{t1}, 6, v{row}",
          f"v_add_u32 v{t2}, s{sPar}, v{cg}", f"v_and_b32 v{t2}, 7, v{t2}",
          f"v_lshl_add_u32 v{vQB}, v{t2}, 3, v{t1}", f"v_add_u32 v{vQB}, {QBB}, v{vQB}",
          f"v_and_b32 v{t0}, 1, v{cg}", f"v_lshlrev_b32 v{t0}, 1, v{t0}",
          f"v_bfe_u32 v{t2}, v{cg}, 1, 1", f"v_or_b32 v{t0}, v{t0}, v{t2}",
          f"v_and_b32 v{t2}, 4, v{cg}", f"v_or_b32 v{t0}, v{t0}, v{t2}",
          f"v_lshl_add_u32 v{vQA}, v{t0}, 3, v{t1}", f"v_add_u32 v{vQA}, {QBB}, v{vQA}"]
    o += [f"v_add_u32 v{vLow}, -1, v{hh}",
          f"s_sub_u32 s{sT0}, s{sPar}, 1",
          f"v_not_b32 v{t0}, v{vLow}",
          f"v_or_b32 v{vMA}, s{sT0}, v{t0}",
          f"s_not_b32 s{sT0}, s{sT0}",
          f"v_or_b32 v{vMB}, s{sT0}, v{vLow}"]
    o += [f"v_lshlrev_b32 v{t0}, 2, v{hh}", f"v_sub_u32 v{t0}, v{lo}, v{t0}"]
    for rr in range(16):
        b = 8 * (rr >> 2) + (rr & 3)
        o.append(f"v_cmp_le_i32 s[{sMask+2*rr}:{sMask+2*rr+1}], {b}, v{t0}")
    o += [f"v_mov_b32 v{t1}, 0xffff", f"v_mov_b32 v{t2}, 0xffff0000"]
    for p in range(8):
        o += [f"v_cndmask_b32 v{MK+p}, 0, v{t1}, s[{sMask+4*p}:{sMask+4*p+1}]",
              f"v_cndmask_b32 v{t0}, 0, v{t2}, s[{sMask+4*p+2}:{sMask+4*p+3}]",
              f"v_or_b32 v{MK+p}, v{MK+p}, v{t0}"]
    return o


def gemm_frags(isY):
    fr = []
    for k in range(28):
        c, s = divmod(k, 4)
        order = [(0, 0), (0, 1), (1, 0), (1, 1)] if k < 27 else [(1, 0), (1, 1), (0, 0), (0, 1)]
        for i, (p, j) in enumerate(order):
            fr.append(dict(step=c, addr=(vW0, vW1)[j], off=XR(c) + 8192 * p + s * 2048, du=512, k=k,
                           acc=(accA, accB)[p] + 16 * j, wfirst=(p == 0 and not isY), pre=[],
                           xread=(f"ds_read_b128 v[{XF+4*k}:{XF+4*k+3}], v{vXA+s} offset:{XR(c)}" if i == 0 else None)))
    for q, a in enumerate((vQB, vQA)):
        for k in range(28):
            c, s = divmod(k, 4)
            loc = QLOC[7 * q + c]
            base = QBB if loc >= QBB else 49152
            pre = [f"v_subrev_u32 v{vQA}, {QBB-49152}, v{vQA}"] if (q, k) == (1, 12) else []
            fr.append(dict(step=7 + 7 * q + c, addr=a, off=loc - base + s * 1024, du=256, k=k,
                           acc=accB + 16 * q, wfirst=True, pre=pre, xread=None))
    return fr


def need_step(st):
    if st < 7:
        return st
    base = 7 if st < 14 else 14
    return base + {0: 0, 1: 2, 2: 2, 3: 4, 4: 4, 5: 6, 6: 6}[st - base]


def gemm_slots(isY):
    fr = gemm_frags(isY)
    N = len(fr)
    D = 5
    slots = []
    issued = 0
    checked = set()
    early = {}
    for n in range(N):
        cur = []
        f = fr[n]
        lim = 3 if n == 0 else min(n + D, N - 1)
        while issued <= lim:
            g = fr[issued]
            st = need_step(g['step'])
            if st not in checked:
                checked.add(st)
                if st == 0:
                    cur += stamp(8, 's') + wait_land(st, inline=True) + stamp(1)
                else:
                    cur += early[st]
                if st == 5:
                    cur += ["s_waitcnt vmcnt(0)"]
            b = WB + 4 * (issued % 6)
            cur += g['pre']
            if g['xread']:
                cur.append(g['xread'])
            cur += [tr(b, g['addr'], g['off']), tr(b + 2, g['addr'], g['off'] + g['du'], tag=f"f{issued}")]
            issued += 1
            last_of_step = issued == N or fr[issued]['step'] != g['step']
            if last_of_step:
                ev = {0: E_PA, 1: E_PA, 2: E_PA, 3: E_PA, 6: E_P2, 13: E_P3A, 20: E_P3}.get(g['step'])
                if ev is not None:
                    cur += signal(ev)
        if issued + 1 < N:
            st = need_step(fr[issued + 1]['step'])
            if st > 0 and st not in early:
                rd, early[st] = wait_land(st, q=vFq + 2)
                cur += rd
        if n % 2 == 0:
            cur.append(f"@wait_ds f{n+1}")
        b = WB + 4 * (n % 6)
        x = XF + 4 * f['k']
        A, B = (b, x) if f['wfirst'] else (x, b)
        cur.append(mfma(f['acc'], A, B, f['acc'] if f['k'] else None))
        slots.append(cur)
    if OPT.get('alt') == 2:
        for i in range(11):
            n = OPT['cst'] + i * OPT.get('cstep', 4)
            if n < len(slots):
                slots[n] = stamp(i + 1, 'f') + slots[n]
    return slots


def phi_pair(a, b, ta, tb, dst, l2e, eps):
    return [f"v_mul_f32 v{ta}, s{l2e}, v{a}", f"v_mul_f32 v{tb}, s{l2e}, v{b}",
            f"v_exp_f32_e64 v{ta}, v{ta} clamp", f"v_exp_f32_e64 v{tb}, v{tb} clamp",
            f"v_max_f32 v{a}, 0, v{a}", f"v_max_f32 v{b}, 0, v{b}",
            f"v_add_f32 v{a}, v{a}, v{ta}", f"v_add_f32 v{b}, v{b}, v{tb}",
            f"v_add_f32 v{a}, s{eps}, v{a}", f"v_add_f32 v{b}, s{eps}, v{b}",
            f"v_cvt_pk_bf16_f32 v{dst}, v{a}, v{b}"]


def c_gemm(isY):
    slots = gemm_slots(isY)
    pa, p3a, p3b = slots[:112], slots[112:140], slots[140:168]
    o = []
    for s in pa:
        o += s
    o += stamp(2)
    wr = lambda d, i, base: f"ds_write_b128 v{vSt}, v[{d}:{d+3}] offset:{base + 1024*i}"
    vc = lambda j: [f"v_cvt_pk_bf16_f32 v{PK+8*j+i}, v{accB+16*j+2*i}, v{accB+16*j+2*i+1}" for i in range(8)]
    vw = [wr(PK + 4 * i, i, STV) for i in range(4)]
    o += vc(0)
    if not isY:
        f = []
        for j in range(2):
            a = accA + 16 * j
            for i in range(8):
                f += [f"v_mul_f32 v{a+2*i}, s{sKS}, v{a+2*i}", f"v_mul_f32 v{a+2*i+1}, s{sKS}, v{a+2*i+1}",
                      f"v_cvt_pk_bf16_f32 v{a+i}, v{a+2*i}, v{a+2*i+1}"]
            f += [f"v_permlane32_swap_b32 v{a+x}, v{a+x+2}" for x in (0, 1, 4, 5)]
            f += [wr(a + 4 * e, 2 * j + e, STK) for e in range(2)]
        f += signal(R_K) + vc(1) + vw + signal(R_V)
        per = OPT.get('kper', 40)
    else:
        f = vc(1) + vw + signal(R_V)
        for p in range(16):
            a = accA + 16 * (p // 8)
            i = p % 8
            f += phi_pair(a + 2 * i, a + 2 * i + 1, TMP, TMP + 1, a + i, sL2E, sEps)
            if p % 4 == 3:
                f.append(wr(a + i - 3, p // 4, STK))
        f += signal(R_K)
        per = OPT.get('yper', 40)
    o += merge(p3a, f, start=0, per=per)
    o += stamp(4)
    f = [f"v_cvt_pk_bf16_f32 v{PK+i}, v{accB+2*i}, v{accB+2*i+1}" for i in range(8)]
    f += [wr(PK, 0, STQ), wr(PK + 4, 1, STQ)] + signal(R_Q)
    o += merge(p3b, f, start=4, per=2)
    o += stamp(5)
    a = accB + 16
    o += [f"v_cvt_pk_bf16_f32 v{QF+i}, v{a+2*i}, v{a+2*i+1}" for i in range(8)]
    o += [f"v_and_b32 v{QF}, v{QF}, v{vMA}", f"v_and_b32 v{QF+1}, v{QF+1}, v{vMA}",
          f"v_and_b32 v{QF+6}, v{QF+6}, v{vMB}", f"v_and_b32 v{QF+7}, v{QF+7}, v{vMB}"]
    return o


CM, SA, SB, SC, SF, SX = 16, 32, 64, 80, 96, 112
KFR = 128
PA, PB, PF = 200, 208, 216
OACC = 96
VF = (224, 232)
vKA, vVA, vMx, vG = 2, 3, 4, 5
NEG = '0xf149f2ca'


def attention(guard):
    sI0 = sSt
    o = []

    def kread(i):
        b = KFR + 8 * i
        return [f"ds_read_b128 v[{b+4*s}:{b+4*s+3}], v{vKA} offset:{2048*i+1024*s} ;@tag=k{i}" for s in range(2)]

    def vread(i, buf):
        return [f"ds_read_b128 v[{buf+4*s}:{buf+4*s+3}], v{vVA} offset:{2048*i+1024*s} ;@tag=v{i}" for s in range(2)]

    def qk(d, i, c):
        b = KFR + 8 * i
        return [mfma(d, b, QF, c), mfma(d, b + 4, QF + 4, d)]

    def setc(i, src):
        L, Lb = lab('g'), lab('gb')
        slow.extend([f"{L}:", "s_nop 7"] + [f"v_mov_b32 v{CM+r}, {src}" for r in range(16)] + [f"s_branch {Lb}"])
        return [f"s_cmp_eq_u32 s{sI0}, {i}", f"!s_cbranch_scc1 {L}", f"!{Lb}:"]

    def maxes(s, first):
        m = []
        if first:
            m.append(f"v_max3_f32 v{vMx}, v{s}, v{s+1}, v{s+2}")
            rest = list(range(3, 16))
        else:
            rest = list(range(16))
        while rest:
            if len(rest) >= 2:
                m.append(f"v_max3_f32 v{vMx}, v{vMx}, v{s+rest[0]}, v{s+rest[1]}")
                rest = rest[2:]
            else:
                m.append(f"v_max_f32 v{vMx}, v{vMx}, v{s+rest[0]}")
                rest = []
        return m

    C1 = CM if guard else None
    if guard:
        o += [f"v_mov_b32 v{CM+r}, {NEG}" for r in range(16)]
    o += wait_land(ST_K, inline=True)
    o += stamp(6)
    order = [0, 1, 2, 3, 4, 5, 6, 7, 8] if guard else [0, 8, 1, 2, 3, 4, 5, 6, 7]
    b1 = {0: SF, 8: SC}
    bufs = {}
    for i in range(1, 8):
        b1[i] = (SA, SB, SX)[i % 3]
        bufs[i] = (SA, SB)[i % 2]
    mrg = [f"v_cndmask_b32 v{SC+r}, v{SF+r}, v{SC+r}, s[{sMask+2*r}:{sMask+2*r+1}]" for r in range(16)]
    work = {}
    for i in range(1, 8):
        work[i] = maxes(b1[i], first=(guard and i == 1))
    work[8] = mrg + maxes(SC, first=not guard)
    work[0] = []
    o += kread(order[0]) + kread(order[1]) + kread(order[2])
    q = []
    for n, i in enumerate(order):
        if guard:
            o += setc(i, "0")
        m = qk(b1[i], i, C1)
        nxt = kread(order[n + 3]) if n + 3 < 9 else []
        take = 4 if len(q) <= 12 else 6
        o += [f"@wait_ds k{i}", m[0]] + q[:take] + [m[1]] + nxt
        q = q[take:]
        if n >= 1:
            q = q + work[order[n - 1]]
        must = len(q) - len(work[order[n - 1]]) if n >= 1 else 0
        take = max(must, 4 if len(q) <= 12 else 6)
        o += q[:take]
        q = q[take:]
    vrd, vchk = wait_land(ST_V)
    o += vrd + q + work[order[-1]][:4] + vchk
    o += vread(0, VF[0]) + vread(8, VF[1])
    o += work[order[-1]][4:]
    t = TMP
    o += [f"v_mov_b32 v{t}, v{vMx}", f"v_permlane32_swap_b32 v{t}, v{vMx}",
          f"v_max_f32 v{vMx}, v{vMx}, v{t}", f"v_sub_f32 v{vMx}, 0, v{vMx}"]
    o += stamp(7)
    if guard:
        o += [f"v_mov_b32 v{CM+r}, {NEG}" for r in range(16)]
        o += setc(1, f"v{vMx}")
    else:
        o += [f"v_mov_b32 v{CM+r}, v{vMx}" for r in range(16)]

    def expcvt(s, p, sub):
        e = []
        for r in range(16):
            if sub:
                e.append(f"v_add_f32 v{s+r}, v{s+r}, v{vMx}")
        for r in range(16):
            e.append(f"v_exp_f32 v{s+r}, v{s+r}")
            if r % 2 == 1 and r >= 3:
                e.append(f"v_cvt_pk_bf16_f32 v{p+(r-3)//2}, v{s+r-3}, v{s+r-2}")
        e.append(f"v_cvt_pk_bf16_f32 v{p+7}, v{s+14}, v{s+15}")
        return e

    def spread(mf, va):
        r = []
        n = len(mf)
        k = 0
        for idx, g in enumerate(mf):
            r += g
            want = (len(va) * (idx + 1)) // n - k
            r += va[k:k + want]
            k += want
        return r

    ev = expcvt(SC, PA, True)
    ev += [x for p in range(8) for x in (f"v_and_b32 v{PB+p}, v{PA+p}, v{MK+p}", f"v_xor_b32 v{PF+p}, v{PA+p}, v{PB+p}")]
    q1 = qk(bufs[1], 1, CM)
    o += spread([[q1[0]], [q1[1]]], ev)
    prev_pv = [["@wait_ds v8", mfma(OACC, VF[0], PF, None)], [mfma(OACC, VF[0] + 4, PF + 4, OACC)] + vread(1, VF[0]),
               [mfma(OACC, VF[1], PB, OACC)], [mfma(OACC, VF[1] + 4, PB + 4, OACC)] + vread(2, VF[1])]
    gearly, glate = check_ev(GRDY, 'own', vG)
    for i in range(1, 8):
        P = (PB, PA)[i % 2]
        seq = []
        if i + 1 <= 7:
            if guard:
                o += setc(i + 1, f"v{vMx}")
            nq = qk(bufs[i + 1], i + 1, CM)
            seq += [[nq[0]], [nq[1]]]
        seq += prev_pv
        if i == 6:
            seq[-1] = seq[-1] + gearly
        if i == 7:
            seq[0] = glate + [f"ds_read_b32 v{vG}, v{vGA}", f"ds_read_b32 v{vEc}, v{vM} offset:{16*EPOCH}"] + seq[0]
        o += spread(seq, expcvt(bufs[i], P, False))
        vb = VF[(i + 1) % 2]
        prev_pv = [[f"@wait_ds v{i}", mfma(OACC, vb, P, OACC)],
                   [mfma(OACC, vb + 4, P + 4, OACC)] + (vread(i + 2, vb) if i + 2 <= 7 else [])]
    o += prev_pv[0] + prev_pv[1]
    return o


vGA, vEc = 8, 6


def finish_o(A, D, vscale, t, u, soff, vtag, snot, eps=None):
    o = [f"v_mov_b32 v{t}, v{A+15}", f"v_mov_b32 v{u}, v{A+15}", f"v_permlane32_swap_b32 v{t}, v{u}"]
    if eps is not None:
        o += [f"v_add_f32 v{u}, s{eps}, v{u}"]
    o += [f"v_rcp_f32 v{u}, v{u}", f"v_mov_b32 v{t}, 0xffff", f"v_mul_f32 v{u}, v{u}, v{vscale}"]
    for p in range(8):
        o += [f"v_mul_f32 v{A+2*p}, v{A+2*p}, v{u}"]
        if p % 4 != 3:
            o += [f"v_mul_f32 v{A+2*p+1}, v{A+2*p+1}, v{u}"]
        o += [f"v_cvt_pk_bf16_f32 v{D+p}, v{A+2*p}, v{A+2*p+1}"]
        if p % 4 == 3:
            e = p // 4
            o += [f"v_bfi_b32 v{D+p}, v{t}, v{D+p}, v{vtag}",
                  f"buffer_store_dwordx4 v[{D+4*e}:{D+4*e+3}], v{vL16}, s[{sWSD}:{sWSD+3}], s{soff} offen offset:{1024*e} sc1"]
    return o + notify(snot, t, vtag)


def c_tail():
    o = finish_o(OACC, PA, vG, TMP, TMP + 1, sSt + 1, vEc, sSt + 2)
    o += signal(E_OA)
    o += stamp(3)
    if OPT.get('alt') == 8:
        o += ["s_waitcnt vmcnt(1)", f"!s_memtime s[{sStamp+8}:{sStamp+9}]", "s_waitcnt vmcnt(0)", f"!s_memtime s[{sStamp+10}:{sStamp+11}]"]
    o += c_phase3()
    o += stamp_flush(TMP, 0)
    o += ["s_endpgm"]
    return o


def cpf():
    o = []
    if OPT.get('cpf', 1):
        o += [f"s_cmp_eq_u32 s{sWave}, 1", f"s_cselect_b32 s16, s{sAW}, s{sBW}", f"s_cselect_b32 s17, s{sAW+1}, s{sBW+1}",
              "s_mov_b32 s18x, 1204224".replace("s18x", "s10"), "s_mov_b32 s11, 0x20000",
              f"s_cmp_eq_u32 s{sWave}, 0", f"s_cselect_b32 s8, s{sX}, s16", f"s_cselect_b32 s9, s{sX+1}, s17",
              f"s_cselect_b32 s10, 1835008, s10",
              f"s_cselect_b32 s{sT0}, 56, 25", f"s_mul_i32 s{sT1}, s{sT0}, s2", f"v_add_u32 v16, s{sT1}, v0",
              "v_mul_u32_u24 v17, 9363, v16", "v_lshrrev_b32 v17, 17, v17",
              f"s_cselect_b32 s{sT1}, 0, 896", f"v_mul_u32_u24 v17, s{sT1}, v17",
              f"v_lshl_add_u32 v16, v16, 7, v17", f"v_add_u32 v16, s{sT1}, v16",
              f"v_cmp_gt_u32 vcc, s{sT0}, v0", f"s_cmp_lt_u32 s{sWave}, 3", "s_cselect_b64 exec, vcc, 1",
              "!buffer_load_dword v238, v16, s[8:11], 0 offen", "s_mov_b64 exec, -1"]
    return o


def c_wave():
    ROLE[0] = 'C'
    o = ["@reset", "L_cwave:"] + stamp(4, 's')
    o += ["v_lshlrev_b32 v20, 3, v0", "v_mov_b32 v22, 0", "v_mov_b32 v23, 0", f"v_add_u32 v20, {MISC}, v20", "ds_write_b64 v20, v[22:23]",
          ]
    o += c_setup()
    o += stamp(5, 's') + ["s_waitcnt lgkmcnt(0)"] + stamp(6, 's') + ([] if OPT.get('cpfpos', 1) else cpf()) + ["s_barrier"] + stamp(7, 's')
    o += srd(sWSD, sWS, WS_SIZE)
    if OPT.get('cpfpos', 1):
        o += cpf()
    o += [f"s_cmp_eq_u32 s{sZ}, 0", "!s_cbranch_scc1 L_cY"]
    o += c_gemm(False)
    o += ["s_branch L_attn", "@reset", "L_cY:"]
    o += c_gemm(True)
    o += ["L_attn:", f"s_setprio {OPT.get('cprio', 0)}"]
    o += [f"s_lshl_b32 s{sT0}, s{sWave}, 11",
          f"s_add_u32 s{sT1}, s{sT0}, {KL}", f"v_add_u32 v{vKA}, s{sT1}, v{vL16}",
          f"s_add_u32 s{sT1}, s{sT0}, {VL}", f"v_add_u32 v{vVA}, s{sT1}, v{vL16}",
          f"s_lshl_b32 s{sT0}, s{sWave}, 8", f"s_add_u32 s{sT0}, s{sT0}, {GL}", f"v_lshl_add_u32 v{vGA}, v0, 2, s{sT0}",
          f"s_lshl_b32 s{sT0}, s{sWave}, 2", f"s_add_u32 s{sT0}, s{sT0}, {MISC}", f"v_mov_b32 v{vOwn}, s{sT0}",
          f"s_lshl_b32 s{sT0}, s{sTile}, 4", f"s_add_u32 s{sT0}, s{sT0}, s{sH}",
          f"s_lshl_b32 s{sT1}, s{sT0}, 7", f"s_add_u32 s{sSt+2}, s{sT1}, {NA}",
          f"s_lshl_b32 s{sT0}, s{sT0}, 11", f"s_add_u32 s{sSt+1}, s{sT0}, {OA}",
          f"s_cmp_lt_u32 s{sTile}, 8", "!s_cbranch_scc1 L_attn_g"]
    o += attention(False)
    o += ["L_ctail:"]
    o += c_tail()
    o += ["@reset", "L_attn_g:", f"s_sub_u32 s{sSt}, 8, s{sTile}"]
    o += attention(True)
    o += ["s_waitcnt lgkmcnt(0)", "s_nop 15", "s_branch L_ctail", "@reset"]
    return o


def code_prefetch():
    n = OPT['prefetch']
    if not n:
        return []
    o = ["s_getpc_b64 s[38:39]", "L_pc:",
         f"s_sub_u32 s38, s38, L_pc-{NAME}_kernel", "s_subb_u32 s39, s39, 0",
         f"s_lshr_b32 s{sT0}, s2, 3", f"s_lshl_b32 s{sT1}, s{sWave}, 5", f"s_add_u32 s{sT0}, s{sT0}, s{sT1}",
         f"s_mul_i32 s{sT0}, s{sT0}, {128*n}",
         f"v_lshl_add_u32 v20, v0, 7, s{sT0}",
         f"v_min_u32 v20, L_end-{NAME}_kernel-4, v20",
         f"s_mov_b64 exec, {(1 << n) - 1}",
         "!global_load_dword v239, v20, s[38:39]", "s_mov_b64 exec, -1"]
    return o


sXD, sWD, sQBD, sQAD, sGD = 36, 40, 44, 48, 52
sKGD, sVGD = 56, 60
sRt, sTT, sE2, sL2 = 64, 65, 66, 67
sOBo, sA, sB, sC = 68, 69, 70, 71
sOff, sLi, sKh = 72, 73, 75
sEarly = 61
sOBn = 62
sNo = 63
sC7 = 53
sCc, sCx, sCw, sRot = 60, 20, 21, 61
sOBd = 60
vX, vW, vQ, vPat, vK, vV, vWO = 2, 3, 4, 5, 6, 7, 8
vEp = 15
GV = 16
HQ = 28
PQR = 16
vG1 = 27
KVr = 88
IDF = 48
sRet = 54


def p3_slot():
    return [f"s_and_b32 s{sT0}, s{sRB}, 3", f"s_lshl_b32 s{sT0}, s{sT0}, 3", f"s_and_b32 s{sT1}, s{sH}, 7",
            f"s_add_u32 s{sJ3}, s{sT0}, s{sT1}",
            f"s_cmp_ge_u32 s{sJ3}, 14", f"s_cselect_b32 s{sT0}, 14, 0", f"s_cselect_b32 s{sT1}, 1, 0",
            f"s_sub_u32 s{sT0}, s{sJ3}, s{sT0}", f"s_lshr_b32 s{sCT}, s{sT0}, 1", f"s_and_b32 s{sT0}, s{sT0}, 1",
            f"s_lshr_b32 s{sT2}, s{sH}, 3", f"s_lshl_b32 s{sT2}, s{sT2}, 1", f"s_add_u32 s{sT1}, s{sT1}, s{sT2}",
            f"s_and_b32 s{sT2}, s{sRB}, 12", f"s_add_u32 s{sT1}, s{sT1}, s{sT2}",
            f"s_lshl_b32 s{sT1}, s{sT1}, 1", f"s_add_u32 s{sT1}, s{sT1}, s{sT0}", f"s_lshl_b32 s{sTB}, s{sT1}, 1"]


def h_setup():
    return p3_slot() + [
            f"s_lshl_b32 s{sT0}, s{sW4}, 2", f"s_add_u32 s{sT0}, s{sT0}, {MISC}", f"v_mov_b32 v{vOwn}, s{sT0}",
            f"v_lshrrev_b32 v{vLow}, 5, v0", f"v_add_u32 v{vLow}, -1, v{vLow}",
            f"s_mov_b32 s{sE2}, {fhex(1e-6)}", f"s_mov_b32 s{sL2}, {fhex(LOG2E)}",
            f"s_lshl_b32 s{sT0}, s{sRB}, 2", f"s_add_u32 s{sT0}, s{sT0}, s{sW4}", f"s_lshl_b32 s{sT0}, s{sT0}, 4",
            f"s_add_u32 s{sT0}, s{sT0}, s{sH}",
            f"s_lshl_b32 s{sT1}, s{sT0}, 7", f"s_add_u32 s{sOBn}, s{sT1}, {NB}",
            f"s_lshl_b32 s{sT0}, s{sT0}, 11", f"s_add_u32 s{sOBo}, s{sT0}, {OB}"]


def qb_phi():
    R, A = 96, 64
    t, u = 24, 25
    o = spin_ev(R_Q, 'own', HQ)
    o += [f"s_lshl_b32 s{sT0}, s{sW4}, 12", f"v_add_u32 v{t}, s{sT0}, v{vL16}",
          f"ds_read_b128 v[{R}:{R+3}], v{t}", f"ds_read_b128 v[{R+4}:{R+7}], v{t} offset:1024",
          f"s_lshl_b32 s{sT0}, s{sW4}, 8", f"s_add_u32 s{sT0}, s{sT0}, {GL}", f"v_lshl_add_u32 v{26}, v0, 2, s{sT0}",
          f"v_lshlrev_b32 v{t}, 16, v{R+6}", f"v_lshlrev_b32 v{u}, 16, v{R+6}",
          f"v_permlane32_swap_b32 v{t}, v{u}",
          f"v_mul_f32 v{u}, s{sL2}, v{u}", f"v_exp_f32_e64 v{u}, -v{u}", f"v_add_f32 v{u}, 1.0, v{u}",
          f"v_rcp_f32 v{u}, v{u}", f"ds_write_b32 v26, v{u}"] + signal(GRDY) + [f"v_sub_f32 v{vG1}, 1.0, v{u}"]
    for p in range(8):
        o += [f"v_lshlrev_b32 v{A+2*p}, 16, v{R+p}", f"v_and_b32 v{A+2*p+1}, 0xffff0000, v{R+p}"]
        o += phi_pair(A + 2 * p, A + 2 * p + 1, t, u, PQR + p, sL2, sE2)
    o += [f"v_and_b32 v{PQR+6}, v{PQR+6}, v{vLow}", f"v_and_b32 v{PQR+7}, v{PQR+7}, v{vLow}"]
    return o


def ob_tile(read_kv=True):
    o = []
    if read_kv:
        o += spin_ev(KVRDY, 3, HQ)
        o += [f"v_add_u32 v24, {KVF}, v{vL16}",
              f"ds_read_b128 v[{KVr}:{KVr+3}], v24", f"ds_read_b128 v[{KVr+4}:{KVr+7}], v24 offset:1024"]
    o += [mfma(64, KVr, PQR, None), mfma(64, KVr + 4, PQR + 4, 64)]
    o += finish_o(64, 80, vG1, 24, 25, sOBo, vEp, sOBn, eps=sE2)
    return o


def call(name):
    return ["@drain", f"!s_call_b64 s[{sRet}:{sRet+1}], L_sub_{name}", "@reset"]


def subroutines():
    o = []
    for name, body in (("phi", qb_phi()), ("ob", ob_tile()), ("r0", woa_read(0) + signal(R1)), ("r1", woa_read(1))):
        o += ["@reset", f"L_sub_{name}:"] + body + ["s_waitcnt lgkmcnt(0)", f"!s_setpc_b64 s[{sRet}:{sRet+1}]"]
    for name, w in (("d7", f"!s_waitcnt vmcnt({OPT.get('wlead', 20) - 1})"), ("d7e", f"!s_waitcnt vmcnt({OPT.get('elead', 14) - 1})")):
        o += ["@reset", f"L_sub_{name}:"]
        for m in range(7):
            o += [w, f"!buffer_load_dwordx4 v{vWO}, s[{sXD}:{sXD+3}], s{sOff} offen lds",
                  f"!s_add_u32 s{sOff}, s{sOff}, s{sC7}", "!s_addk_i32 m0, 1024"]
        o += [f"!s_setpc_b64 s[{sRet}:{sRet+1}]"]
    return o


def wait_serving(rd, red, cmp_ok, early=None):
    L, L1, L2 = lab('ws'), lab('ws1'), lab('ws2')
    o = ["@drain", f"s_mov_b32 s{sTO}, 0", f"!{L}:", "!" + rd, f"!ds_read_b32 v24, v{vM} offset:{16*KVRDY+12}"]
    o += ["!" + x for x in _tmo()]
    o += ["!s_waitcnt lgkmcnt(0)", f"!v_cmp_lt_u32 vcc, s{sOBd}, v24", f"!s_cbranch_vccz {L1}",
          f"!s_call_b64 s[{sRet}:{sRet+1}], L_sub_ob", f"!s_mov_b32 s{sOBd}, 1", f"!s_mov_b32 s{sTO}, 0", f"!s_branch {L}", f"!{L1}:"]
    o += ["!" + x for x in red + [cmp_ok, f"s_cbranch_vccnz {L2}"]]
    if early is not None:
        o += [f"!s_mov_b32 s{early}, 1"]
    o += [f"!s_sleep {OPT.get('ssleep', 2)}", f"!s_branch {L}", "@reset", f"!{L2}:"]
    return o


def serve_ev(ev, early=None):
    return wait_serving(f"ds_read_b128 v[{HQ}:{HQ+3}], v{vM} offset:{16*ev}",
                        [f"v_min3_u32 v{HQ}, v{HQ}, v{HQ+1}, v{HQ+2}", f"v_min_u32 v{HQ}, v{HQ}, v{HQ+3}"],
                        f"v_cmp_ne_u32 vcc, 0, v{HQ}", early)


def serve_land(st):
    return wait_serving(f"ds_read_b32 v{HQ}, v{vM} offset:{256+4*st}", [], f"v_cmp_eq_u32 vcc, 2, v{HQ}")


def dma(vaddr, sd, soff, lds, extra="", tag=None, sbase=None):
    o = [f"s_add_u32 m0, s{sLi}, {lds}"]
    if sbase is not None:
        if soff:
            o.append(f"s_add_u32 s{sOff}, s{sbase}, {soff}")
            so = f"s{sOff}"
        else:
            so = f"s{sbase}"
    elif soff:
        o.append(f"s_mov_b32 s{sOff}, {soff}")
        so = f"s{sOff}"
    else:
        so = "0"
    o.append(f"buffer_load_dwordx4 v{vaddr}, s[{sd}:{sd+3}], {so} offen {extra} lds" + (f" ;@tag={tag}" if tag else ""))
    return o


def spin_vm(body, cond, sleep=0):
    L = lab('pv')
    o = [f"!s_mov_b32 s{sTO}, 0", f"!{L}:"]
    o += ["!" + b for b in body + _tmo()]
    o += ["s_waitcnt vmcnt(0)"]
    o += ["!" + c for c in cond]
    o += [f"!s_cbranch_vccnz {L}"]
    return o


def flag_ld(vdst, vaddr, soff):
    if 1:
        return [f"v_mov_b32 v{vdst}, 0", f"buffer_atomic_or v{vdst}, v{vaddr}, s[{sWSD}:{sWSD+3}], {soff} offen sc0 sc1"]
    return [f"buffer_load_dword v{vdst}, v{vaddr}, s[{sWSD}:{sWSD+3}], {soff} offen sc1"]


def light_poll(vdst, vaddr, soff, mask, cmp_bad, first_issued=False, sleep=None, flag=False, hook=None):
    sleep = OPT.get('psleep', 1) if sleep is None else sleep
    L, L2, L0 = lab('lp'), lab('lpx'), lab('lp0')
    ld = f"buffer_load_dword v{vdst}, v{vaddr}, s[{sWSD}:{sWSD+3}], {soff} offen sc1"
    o = [f"s_mov_b64 exec, {mask}", f"s_mov_b32 s{sTO}, 0"]
    if first_issued:
        o += [f"!s_branch {L0}"]
    o += [f"!{L}:"] + ["!!" + x for x in (flag_ld(vdst, vaddr, soff) if flag else [ld])] + [f"!{L0}:"] + ["!" + x for x in _tmo()] + ["s_waitcnt vmcnt(0)"]
    o += ["!" + c for c in cmp_bad]
    o += [f"!s_cbranch_vccz {L2}"]
    if hook:
        o += ["!!s_mov_b64 s[50:51], vcc", "!!s_mov_b64 exec, -1"] + ["!!" + x.lstrip('!') for x in hook if not x.startswith('@')] + ["!!s_mov_b64 vcc, s[50:51]"]
    o += ["!!s_mov_b64 exec, vcc"] + ([f"!!s_sleep {sleep}"] if sleep else []) + \
         [f"!!s_branch {L}", f"!{L2}:", "s_mov_b64 exec, -1"]
    return o


def notify(soff, vt, vep, fan=1):
    return [f"v_lshlrev_b32 v{vt}, 7, v0", f"s_mov_b64 exec, {(1 << fan) - 1}",
            f"buffer_store_dword v{vep}, v{vt}, s[{sWSD}:{sWSD+3}], s{soff} offen sc1", "s_mov_b64 exec, -1"]


def fmap(d, t):
    return [f"v_bfe_u32 v{d}, v0, 4, 1", f"v_bfe_u32 v{t}, v0, 2, 1", f"v_lshl_add_u32 v{d}, v{d}, 1, v{t}",
            f"v_mul_u32_u24 v{d}, 7, v{d}", f"v_bfe_u32 v{t}, v0, 3, 1", f"v_lshl_add_u32 v{d}, v{t}, 2, v{d}",
            f"v_and_b32 v{t}, 3, v0", f"v_add_u32 v{d}, v{d}, v{t}"]


def l_wave():
    ROLE[0] = 'L'
    o = [f"s_setprio {OPT.get('lprio', 2)}"]
    t0, t1, t2 = 24, 25, 26
    sHW = sW4
    o += [f"s_lshl_b32 s{sLi}, s{sHW}, 10",
          f"v_mov_b32 v{vMl}, v{vMs}", f"s_mov_b32 s{sT0}, {LANDC}", f"v_writelane_b32 v{vMl}, s{sT0}, 0"]
    o += [f"v_lshrrev_b32 v{t0}, 3, v0", f"s_lshl_b32 s{sT0}, s{sRB}, 4", f"s_add_u32 s{sT0}, s{sT0}, s{sHW}",
          f"s_lshl_b32 s{sT0}, s{sT0}, 3", f"v_add_u32 v{t1}, s{sT0}, v{t0}", f"v_mul_u32_u24 v{vX}, 896, v{t1}",
          f"v_lshrrev_b32 v{t1}, 4, v0", f"s_lshl_b32 s{sT0}, s{sHW}, 2", f"v_add_u32 v{t1}, s{sT0}, v{t1}",
          f"v_and_b32 v{t2}, 7, v0", f"v_xor_b32 v{t1}, v{t1}, v{t2}", f"v_lshl_add_u32 v{vX}, v{t1}, 4, v{vX}"]
    o += [f"s_lshl_b32 s{sT2}, s{sZ}, 4", f"s_add_u32 s{sT1}, s{sT2}, 112", f"s_add_u32 s{sT2}, s{sT2}, 48",
          f"s_mul_i32 s{sT1}, s{sT1}, s{sHH}", f"s_add_u32 s{sT1}, s{sT1}, 896",
          f"s_lshl_b32 s{sT0}, s{sHW}, 3", f"v_add_u32 v{t1}, s{sT0}, v{t0}", f"v_mul_u32_u24 v{vW}, 2688, v{t1}",
          f"v_bfe_u32 v{t1}, v0, 2, 1", f"v_bfe_u32 v{t2}, v0, 4, 1", f"v_xor_b32 v{t1}, v{t1}, v{t2}",
          f"v_mul_u32_u24 v{t2}, s{sT2}, v{t1}", f"v_add3_u32 v{vW}, v{vW}, v{t2}, s{sT1}",
          f"v_and_b32 v{t2}, 3, v0", f"v_lshl_add_u32 v{vW}, v{t2}, 4, v{vW}"]
    o += [f"s_mov_b32 s{sXD+2}, 1835008", f"s_mov_b32 s{sXD+3}, 0x20000",
          f"s_mov_b32 s{sWD+2}, 1204224", f"s_mov_b32 s{sWD+3}, 0x20000",
          f"s_cmp_eq_u32 s{sH}, 15", f"s_cselect_b32 s{sWD+2}, 0, s{sWD+2}",
          ] + {0: [f"s_mov_b32 s{sCc}, 0"],
               1: [f"s_xor_b32 s{sT0}, s{sRB}, s{sH}", f"s_and_b32 s{sT0}, s{sT0}, 1", f"s_mul_i32 s{sCc}, s{sT0}, {OPT.get('rotk', 3)}"],
               2: [f"s_add_u32 s{sT0}, s{sRB}, s{sH}", f"s_and_b32 s{sT0}, s{sT0}, 3", f"s_mul_i32 s{sCc}, s{sT0}, {OPT.get('rotk', 2)}"],
               3: [f"s_and_b32 s{sT0}, s{sRB}, 3", f"s_lshl_b32 s{sT0}, s{sT0}, 1", f"s_and_b32 s{sT1}, s{sH}, 7", f"s_add_u32 s{sCc}, s{sT0}, s{sT1}"],
               }[OPT.get('rotm', 0)] + [
          f"s_cmp_ge_u32 s{sCc}, 7", f"s_cselect_b32 s{sT0}, 7, 0", f"s_sub_u32 s{sCc}, s{sCc}, s{sT0}",
          f"s_cmp_ge_u32 s{sCc}, 7", f"s_cselect_b32 s{sT0}, 7, 0", f"s_sub_u32 s{sCc}, s{sCc}, s{sT0}",
          f"s_mov_b32 s{sRot}, s{sCc}",
          f"s_cmp_eq_u32 s{sZ}, 0"]
    o += stamp(1, 'f')
    o += ["s_waitcnt lgkmcnt(0)",
          f"s_mov_b32 s{sXD}, s{sX}", f"s_mov_b32 s{sXD+1}, s{sX+1}",
          f"s_cselect_b32 s{sWD}, s{sBW}, s{sAW}", f"s_cselect_b32 s{sWD+1}, s{sBW+1}, s{sAW+1}",
          f"s_lshl_b32 s{sCx}, s{sCc}, 7", f"s_mul_i32 s{sCw}, s{sCc}, {64*2688}"]
    nextc = [f"s_add_u32 s{sCc}, s{sCc}, 1", f"s_cmp_eq_u32 s{sCc}, 7", f"s_cselect_b32 s{sCc}, 0, s{sCc}"]
    setc_ = [f"s_lshl_b32 s{sCx}, s{sCc}, 7", f"s_mul_i32 s{sCw}, s{sCc}, {64*2688}"]
    ops = []
    for c in range(7):
        for ii in range(8):
            pre = (nextc + setc_) if (ii == 0 and c) else []
            ops.append((pre + dma(vX, sXD, 16 * ii * 896, XR(c) + 2048 * ii, sbase=sCx), c))
        for p in range(2):
            for ii in range(4):
                ops.append((dma(vW, sWD, 16 * ii * 2688 + 896 * p, WR(c) + 8192 * p + 2048 * ii, sbase=sCw), c))
    for q, sd in enumerate((sQBD, sQAD)):
        for c in range(7):
            for ii in range(2):
                pre = (nextc + setc_[1:]) if ii == 0 else []
                ops.append((pre + dma(vQ, sd, 32 * ii * 2688, QLOC[7 * q + c] + 2048 * ii, sbase=sCw), 7 + 7 * q + c))
    late = srd(sWSD, sWS, WS_SIZE) + srd(sQBD, sBW, 1204224) + srd(sQAD, sAW, 1204224) + srd(sGD, sGW, 896)
    late += [f"v_lshrrev_b32 v{t0}, 2, v0", f"s_lshl_b32 s{sT0}, s{sHW}, 4", f"v_add_u32 v{t0}, s{sT0}, v{t0}",
             f"v_mul_u32_u24 v{vQ}, 2688, v{t0}", f"v_and_b32 v{t1}, 3, v0", f"v_lshl_add_u32 v{vQ}, v{t1}, 4, v{vQ}",
             f"s_mul_i32 s{sT0}, s{sH}, 56", f"s_lshl_b32 s{sT1}, s{sPar}, 3", f"s_sub_u32 s{sT0}, s{sT0}, s{sT1}",
             f"v_add_u32 v{vQ}, s{sT0}, v{vQ}",
             f"v_bfe_u32 v{t0}, v0, 4, 1", f"v_lshlrev_b32 v{t0}, 5, v{t0}", f"v_and_b32 v{t1}, 15, v0",
             f"s_lshl_b32 s{sT0}, s{sHW}, 4", f"v_add3_u32 v{t0}, v{t0}, v{t1}, s{sT0}",
             f"v_lshlrev_b32 v27, 1, v{t0}",
             f"s_xor_b32 s{sT0}, s{sPar}, 1", f"s_mul_i32 s{sT0}, s{sT0}, 56", f"s_add_u32 s{sT0}, s{sT0}, {QBB}",
             f"v_lshl_add_u32 v{vPat}, v{t0}, 6, s{sT0}"]
    for c in range(7):
        late += [[f"s_lshl_b32 s{sT0}, s{sRot}, 7", f"buffer_load_ushort v{GV+c}, v27, s[{sGD}:{sGD+3}], s{sT0} offen",
                  f"s_add_u32 s{sRot}, s{sRot}, 1", f"s_cmp_eq_u32 s{sRot}, 7", f"s_cselect_b32 s{sRot}, 0, s{sRot}"]]
    late += [f"s_mul_i32 s{sT0}, s{sHW}, {VG}", f"s_add_u32 s{sT0}, s{sT0}, {OPT.get('wsoff', 0) << 20}", [f"s_add_u32 s{sKGD}, s{sWS}, s{sT0}", f"s_addc_u32 s{sKGD+1}, s{sWS+1}, 0"],
             f"s_mov_b32 s{sKGD+2}, 1835008", f"s_mov_b32 s{sKGD+3}, 0x20000"]
    late += [f"s_lshl_b32 s{sT0}, s{sRB}, 2", f"s_sub_u32 s{sT0}, s{sT0}, 8", f"s_mul_i32 s{sA}, s{sT0}, 28672",
             f"s_mul_i32 s{sT1}, s{sH}, 7", f"s_lshr_b32 s{sT1}, s{sT1}, 1", f"s_lshl_b32 s{sT1}, s{sT1}, 9",
             f"s_add_u32 s{sT1}, s{sT1}, s{sA}",
             f"v_add_u32 v{vK}, s{sT1}, v{vL16}",
             f"s_mul_i32 s{sT1}, s{sH}, 448", f"s_add_u32 s{sT1}, s{sT1}, s{sA}",
             f"v_lshrrev_b32 v{t0}, 5, v0", f"v_mul_u32_u24 v{t0}, 7168, v{t0}"] + fmap(t1, t2) + [
             f"v_lshl_add_u32 v{t0}, v{t1}, 4, v{t0}", f"v_add_u32 v{vV}, s{sT1}, v{t0}"]
    vFl = 32
    late += [f"s_mul_i32 s{sT0}, s{sH}, 28", f"s_add_u32 s{sT1}, s{sT0}, 27",
             f"s_lshr_b32 s{sT0}, s{sT0}, 6", [f"s_lshr_b32 s{sT1}, s{sT1}, 6", f"s_cmp_eq_u32 s{sT0}, s{sT1}",
             f"s_cselect_b32 s{sB}, 0x15, 63"],
             f"s_min_u32 s{sT0}, s{sRB}, 2", f"s_lshl_b32 s{sT0}, s{sT0}, 1", f"s_sub_u32 s{sT0}, 4, s{sT0}",
             f"s_lshl_b32 s{sT1}, -1, s{sT0}", f"s_and_b32 s{sB}, s{sB}, s{sT1}", f"s_mov_b32 s{sB+1}, 0",
             f"s_lshl_b32 s{sT0}, s{sRB}, 4", f"s_add_u32 s{sT0}, s{sT0}, s{sH}", f"s_lshl_b32 s{sT0}, s{sT0}, 7",
             f"v_lshl_add_u32 v{vFl}, v0, 2, s{sT0}"]
    late += [h_setup()] + p3_early()
    late += [f"v_lshrrev_b32 v{t0}, 3, v0", f"s_mul_i32 s{sT0}, s{sHW}, 224", f"v_add_u32 v{t1}, s{sT0}, v{t0}",
             f"v_mul_u32_u24 v{vWO}, 896, v{t1}",
             f"v_bfe_u32 v{t1}, v0, 2, 1", f"v_bfe_u32 v{t2}, v0, 4, 1", f"v_xor_b32 v{t1}, v{t1}, v{t2}",
             f"v_lshl_add_u32 v{vWO}, v{t1}, 6, v{vWO}", f"v_and_b32 v{t2}, 3, v0", f"v_lshl_add_u32 v{vWO}, v{t2}, 4, v{vWO}",
             f"s_lshl_b32 s{sT0}, s{sCT}, 7", f"v_add_u32 v{vWO}, s{sT0}, v{vWO}"]
    pieces = [late[i:i + 6] for i in range(0, len(late), 6)]
    last_of = {}
    for n, (_, st) in enumerate(ops):
        last_of[st] = n
    def lead_at(n):
        return OPT['l1'] if ops[n][1] < 7 else OPT['l3']
    sig_next = 0

    def do_signal(st):
        r = [f"@wait_vm o{last_of[st]}"]
        if 7 <= st <= 13:
            r.append(f"ds_write_b16 v{vPat}, v{GV+st-7} offset:{QLOC[st-7]-QBB}")
        return r + land(st)

    def emit_ops(n0, n1, sig, fine):
        r = []
        for n in range(n0, n1):
            ins, st = ops[n]
            need = {64: 1, 80: 2, 96: 3, 124: 4}.get(n)
            if need:
                assert sig >= need
                r += spin_ev(E_PA, 'all', HQ, ge=need)
            ins = ins[:-1] + [ins[-1] + f" ;@tag=o{n}"]
            if n == 0:
                r += stamp(2, 'f')
            r += ins
            if n == 15:
                r += stamp(3, 'f') + ["s_barrier"] + stamp(4, 'f')
            if n >= 16 and pieces:
                r += sum([x if isinstance(x, list) else [x] for x in pieces.pop(0)], [])
            done = n - lead_at(n)
            if done >= 0 and n >= 15:
                r += [f"@wait_vm o{done}"]
            while sig < 21 and last_of[sig] <= done and n >= 15:
                r += do_signal(sig)
                r += {0: stamp(5, 'f'), 1: stamp(6, 'f'), 2: stamp(7, 'f'), 4: stamp(8, 'f'), 6: stamp(9, 'f'), 10: stamp(10, 'f')}.get(sig, [])
                sig += 1
        return r, sig

    def tail(sig, pf=False):
        r, sig = emit_ops(HOLD, len(ops), sig, False)
        r += stamp(1) + stamp(11, 'f')
        if pf and OPT.get('ypf', 0):
            r += [f"s_cmp_eq_u32 s{sHW}, 0", f"s_cselect_b32 s48, s{sAO}, s{sBO}", f"s_cselect_b32 s49, s{sAO+1}, s{sBO+1}",
                  f"s_and_b32 s{sT0}, s{sRB}, 3", f"s_lshl_b32 s{sT0}, s{sT0}, 2", f"s_and_b32 s{sT1}, s{sHH}, 3",
                  f"s_add_u32 s{sT0}, s{sT0}, s{sT1}", f"s_mul_i32 s{sT0}, s{sT0}, {196*128}",
                  f"v_lshl_add_u32 v33, v0, 7, s{sT0}", "s_mov_b32 exec_hi, 0x1ffff"]
            for i in range(4):
                r += [f"global_load_dword v{40+i}, v33, s[48:49]"] + ([f"v_add_u32 v33, {49*128}, v33"] if i < 3 else [])
            r += ["s_mov_b64 exec, -1"]
        for st in range(sig, 21):
            r += do_signal(st)
        return r
    HOLD = OPT.get('hold', 140)
    r, sig = emit_ops(0, HOLD, 0, True)
    assert not pieces
    o += r
    if HOLD < len(ops):
        o += [f"s_cmp_eq_u32 s{sZ}, 0", "!s_cbranch_scc0 L_lhold"]
    o += tail(sig, True)
    if HOLD < len(ops):
        o += ["s_branch L_ljoin", "@reset", "L_lhold:"]
        while last_of[sig] < HOLD:
            o += [f"s_waitcnt vmcnt({HOLD - 1 - last_of[sig]})"] + do_signal(sig)
            sig += 1
        o += spin_ev(X_PUB, 'hi', HQ)
        o += tail(sig)
        o += ["@reset", "L_ljoin:"]
    o += spin_ev(EPOCH, 0, vEp)
    d7 = [f"!s_call_b64 s[{sRet}:{sRet+1}], L_sub_d7e"]

    def batch(ptr, row0, lds, stride, n, sub=d7):
        return [f"s_mov_b32 s{sXD}, s{ptr}", f"s_mov_b32 s{sXD+1}, s{ptr+1}", f"s_mov_b32 s{sOff}, {row0*896}",
                f"s_mul_i32 s{sLi}, s{sHW}, {stride}", f"s_add_u32 m0, s{sLi}, {lds}"] + sub * n
    o += [f"s_mov_b32 s{sXD+2}, 401408", f"s_mov_b32 s{sC7}, 7168",
          f"s_cmp_ge_u32 s{sJ3}, 28", "!s_cbranch_scc1 L_lnoA"]
    if OPT.get('e1', 0):
        o += [f"s_cmp_eq_u32 s{sHW}, 0", "!s_cbranch_scc1 L_lnoA"]
    o += spin_ev(E_P2, 'all', HQ)
    if OPT.get('zgate', 1):
        o += [f"s_cmp_eq_u32 s{sZ}, 0", "!s_cbranch_scc1 L_lgoA"] + spin_ev(X_PUB, 'hi', HQ) + ["L_lgoA:"]
    o += batch(sBO, 0, STG, STGS, 3)
    o += ["s_waitcnt vmcnt(0)"] + land(ST_WA1)
    if OPT.get('lr0', 0):
        o += wait_land(ST_WA1, HQ, inline=True) + call("r0")
    if OPT.get('e1', 0):
        o += [f"v_subrev_u32 v{vWO}, {224*896}, v{vWO}", f"s_mov_b32 s{sOff}, 0", f"s_mov_b32 m0, {WBA}"] + d7 * 3
    o += ["L_lnoA:"]
    o += [f"s_cmp_eq_u32 s{sHW}, 0", "!s_cbranch_scc0 L_lgV"] + spin_ev(F_K, 'hi', HQ, ge=2) + ["s_branch L_lg", "L_lgV:"]
    o += spin_ev(E_P3A, 'all', HQ) + ["L_lg:"]
    o += stamp(6, 'z')
    o += [f"s_mul_i32 s{sT1}, s{sHW}, {FV-FK}", f"s_add_u32 s{sT1}, s{sT1}, {FK}"]
    o += light_poll(t1, 32, f"s{sT1}", f"s[{sB}:{sB+1}]", [f"v_cmp_ne_u32 vcc, v{t1}, v{vEp}"], flag=OPT.get('apoll', 1), sleep=OPT.get('fsleep', 2))
    o += stamp(2)
    if OPT.get('alt') == 5:
        o += [f"s_add_u32 s{sStamp+14}, s{sStamp}, s{sTO}"]
    o += [f"s_cmp_eq_u32 s{sHW}, 0", "!s_cbranch_scc0 L_lV"]
    for j in range(12):
        for e in range(2):
            o += [f"s_mov_b32 m0, {KL + 2048*j + 1024*e - 1024*e}",
                  f"buffer_load_dwordx4 v{vK}, s[{sKGD}:{sKGD+3}], 0 offen offset:{1024*e} sc1 lds"]
        o += [f"v_add_u32 v{vK}, 28672, v{vK}"]
    o += [f"s_mov_b32 s{sA}, {4*ST_K}", "s_branch L_lKV", "@reset", "L_lV:"]
    o += [f"v_mov_b32 v{36+i}, 0x3f803f80" for i in range(4)]
    o += [f"v_lshlrev_b32 v{t0}, 9, v0", f"v_add_u32 v{t0}, {VL+496}, v{t0}",
          "s_mov_b32 exec_hi, 0xffff", f"ds_write_b128 v{t0}, v[36:39]",
          "s_mov_b32 exec_lo, 0x7fffffff", "s_mov_b32 exec_hi, 0x7fffffff", f"s_mov_b32 s{sOff}, 14336"]
    for j in range(12):
        for e in range(2):
            pre = [f"v_add_u32 v{t2}, s{sOff}, v{vV}"] if e else []
            o += pre + [f"s_mov_b32 m0, {VL + 2048*j + 1024*e}",
                        f"buffer_load_dwordx4 v{t2 if e else vV}, s[{sKGD}:{sKGD+3}], 0 offen sc1 lds"]
        o += [f"v_add_u32 v{vV}, 28672, v{vV}"]
    o += ["s_mov_b64 exec, -1", f"s_mov_b32 s{sA}, {4*ST_V}", "@reset", "L_lKV:"]
    o += stamp(3) + signal(KVISS)
    kvland = [f"v_add_u32 v{t2}, s{sA}, v{vMl}", f"v_mov_b32 v{t0}, 2", f"ds_add_u32 v{t2}, v{t0}"]
    o += [f"s_cmp_ge_u32 s{sJ3}, 28", "!s_cbranch_scc0 L_lwo"] + call("phi") + \
        ["s_waitcnt vmcnt(0)"] + kvland + call("ob") + stamp_flush(20, 0) + ["s_endpgm", "@reset", "L_lwo:"]
    o += call("phi") + stamp(8, 'z')
    o += ["s_waitcnt vmcnt(0)"] + kvland
    o += stamp(4)
    if not OPT.get('lr0', 0):
        o += wait_land(ST_WA1, HQ, inline=True) + call("r0")
    o += p3_setup() + [f"s_mov_b32 s{sOBd}, 0"] + serve_ev(R1)
    o += batch(sBO, 168, STG, STGS, 1) + ["s_waitcnt vmcnt(0)"] + land(ST_WA2)
    o += stamp(5)
    o += ["s_branch L_p3", "@reset"]
    return o


sOb, sNb = 58, 59


def gload(g):
    r = [f"s_add_u32 s{sT2}, s{sOb}, {4096*g}"]
    for e in range(4):
        n = 4 * g + e
        r.append(f"buffer_load_dwordx4 v[{OF+4*n}:{OF+4*n+3}], v{vOG}, s[{sWSD}:{sWSD+3}], s{sT2} offen offset:{1024*e} sc1")
    return r


WA = 128
OF = 64
ACC = 32
BB = 16
vA = 2
vOG = 6
vTg = 9


def p3_early(PARK=248, base=STG, stride=STGS):
    t0, t1, t2, r, cg = 240, 241, 242, 243, 244
    o = [f"s_lshr_b32 s{sKh}, s{sW4}, 1", f"s_and_b32 s{sRt}, s{sW4}, 1",
         f"s_add_u32 s{sTT}, s{sTB}, s{sRt}",
         f"v_bfe_u32 v{r}, v0, 2, 2", f"v_bfe_u32 v{t0}, v0, 4, 1", f"v_and_b32 v{cg}, 3, v0",
         f"v_lshl_add_u32 v{cg}, v{t0}, 2, v{cg}", f"v_lshlrev_b32 v{cg}, 3, v{cg}",
         f"s_mul_i32 s{sT0}, s{sKh}, {stride}", f"s_add_u32 s{sT0}, s{sT0}, {base}",
         f"v_add_u32 v{cg}, s{sT0}, v{cg}",
         f"v_lshrrev_b32 v{t2}, 5, v0", f"v_mul_u32_u24 v{t2}, 7, v{t2}"]
    for s_ in range(2):
        for u in range(2):
            d = PARK + 2 * s_ + u
            o += [f"v_min_u32 v{t0}, {2 if u else 3}, v{r}", f"v_add3_u32 v{t0}, v{t0}, v{t2}, {14*s_+4*u}",
                  f"v_bfe_u32 v{t1}, v{t0}, 1, 1", f"v_xor_b32 v{t1}, s{sKh}, v{t1}",
                  f"v_lshl_add_u32 v{d}, v{t0}, 7, v{cg}", f"v_lshl_add_u32 v{d}, v{t1}, 6, v{d}"]
    o += [f"s_lshl_b32 s{sT0}, s{sTT}, 1", f"s_add_u32 s{sT0}, s{sT0}, s{sKh}", f"s_lshl_b32 s{sNo}, s{sT0}, 10", f"s_lshl_b32 s{sT0}, s{sT0}, 14",
          f"v_add_u32 v{PARK+4}, s{sT0}, v{vL16}"]
    return o


def p3_setup():
    return [f"v_mov_b32 v{vA+i}, v{248+i}" for i in range(5)] + [f"v_and_b32 v{vTg}, 0xffff0000, v{vEp}"]


def flip(A):
    return [f"v_xor_b32 v{A+i}, 64, v{A+i}" for i in range(4)]


FLIP = flip(vA)


def wo_frag(dst, hl, s, tag=None, A=vA):
    return [tr(dst, A + 2 * s, 28 * hl * 128), tr(dst + 2, A + 2 * s + 1, 28 * hl * 128, tag)]


def woa_read(rho):
    o = []
    A = 248 if rho == 0 else vA
    for j in range(2):
        for hl in (range(6) if rho == 0 else range(6, 8)):
            for s in range(2):
                o += wo_frag(WA + 64 * j + 8 * hl + 4 * s, hl % 6, s, A=A)
        o += flip(A)
    return o


RSTR = VL - KL


def half_sub():
    vC = 7
    o = ["@reset", "L_sub_half:"]

    def gcheck(g):
        b = OF + 16 * g
        ch = [f"v_xor_b32 v{b+4*e+3}, v{b+4*e+3}, v{vTg}" for e in range(4)]
        ch += [f"v_or3_b32 v{vC}, v{b+3}, v{b+7}, v{b+11}", f"v_or_b32 v{vC}, v{vC}, v{b+15}",
               f"v_cmp_lt_u32 vcc, 0xffff, v{vC}"]
        Ls, Lb = lab('slow'), lab('back')
        slow.extend([f"{Ls}:"] + ([f"s_add_u32 s{sStamp+14}, s{sStamp+14}, 1"] if OPT.get('alt') == 6 else []) + [f"s_mov_b32 s{sTO}, 0", f"{Ls}_s:", "s_sleep 4"] + gload(g) + _tmo() + ["s_waitcnt vmcnt(0)"] + ch +
                    [f"s_cbranch_vccnz {Ls}_s", f"s_branch {Lb}"])
        return ch + [f"!s_cbranch_vccnz {Ls}", f"!{Lb}:"]
    if OPT.get('alt') == 6:
        o += ["s_waitcnt lgkmcnt(0)", f"s_mov_b32 s{sStamp+14}, s{sStamp}"]
    if OPT.get('alt') in (7, 8):
        o += [f"!s_memtime s[{sStamp+12}:{sStamp+13}]"]
    o += [f"v_lshlrev_b32 v7, 7, v0"]
    o += light_poll(HQ, 7, f"s{sNb}", "0xff", [f"v_cmp_ne_u32 vcc, v{HQ}, v{vEp}"], sleep=OPT.get('osleep', 1))
    o += stamp(9)
    if OPT.get('alt') in (7, 8):
        o += [f"s_add_u32 s{sStamp+14}, s{sStamp}, s{sTO}"]
    for g in range(4):
        o += gload(g)
    sO = 40
    o += srd(sO, sOUT, 1835008)
    o += [f"s_lshr_b32 s{sT2}, s{sWave}, 2", f"s_mul_i32 s{sT1}, s{sT2}, {RSTR}",
          f"s_mul_i32 s{sT0}, s{sW4}, 6144", f"s_add_u32 s{sT0}, s{sT0}, {KL}",
          f"s_add_u32 s44, s{sT0}, s{sT1}", f"v_add_u32 v2, s44, v{vL16}",
          f"s_sub_u32 s44, s{sT0}, s{sT1}", f"s_add_u32 s44, s44, {RSTR+4096}", f"v_add_u32 v3, s44, v{vL16}",
          f"s_lshl_b32 s{sT2}, s{sT2}, 11",
          f"s_xor_b32 s{sT1}, s{sW4}, 2", f"s_mul_i32 s{sT0}, s{sT1}, 6144", f"s_add_u32 s{sT0}, s{sT0}, s{sT2}",
          f"s_add_u32 s{sT0}, s{sT0}, {KL}", f"v_add_u32 v4, s{sT0}, v{vL16}", f"v_add_u32 v24, {RSTR}, v4",
          f"v_and_b32 v8, 31, v0", f"s_lshl_b32 s{sT0}, s{sTT}, 5", f"v_add_u32 v8, s{sT0}, v8",
          f"v_mul_u32_u24 v8, 896, v8", f"v_lshrrev_b32 v5, 5, v0",
          f"v_lshl_add_u32 v8, v5, 4, v8",
          f"s_lshl_b32 s{sT0}, s{sCT}, 1", f"s_add_u32 s{sT0}, s{sT0}, s{sKh}", f"s_lshl_b32 s{sT0}, s{sT0}, 6",
          f"s_lshr_b32 s{sT2}, s{sT2}, 6", f"s_add_u32 s{sT0}, s{sT0}, s{sT2}",
          f"v_add_u32 v8, s{sT0}, v8"]
    early, late = check_ev(E_OA, 'all', HQ)
    for n in range(16):
        if n % 4 == 0:
            o += gcheck(n // 4)
        if n == 12:
            o += early
        for j in ((0, 1) if n < 12 else ()):
            o.append(mfma(ACC + 16 * j, WA + 64 * j + 4 * n, OF + 4 * n, ACC + 16 * j if n else None))
    for j in (1, 0):
        for n in range(12, 16):
            o.append(mfma(ACC + 16 * j, WA + 64 * j + 4 * n, OF + 4 * n, ACC + 16 * j))
        if j == 1:
            o += late
    o += [f"ds_write_b128 v2, v[{ACC+16+4*i}:{ACC+16+4*i+3}] offset:{1024*i}" for i in range(4)]
    o += stamp(8)
    o += [f"s_cmp_lt_u32 s{sWave}, 4", "!s_cbranch_scc1 L_finC"]

    def fin(role):
        mine, spare = ACC + 8 * role, ACC + 8 * (1 - role)
        r = [f"ds_write_b128 v2, v[{spare+4*i}:{spare+4*i+3}] offset:{4096+1024*i}" for i in range(2)]
        r += ["s_waitcnt lgkmcnt(0)", "s_barrier"]
        r += [f"ds_read_b128 v[{OF+4*i}:{OF+4*i+3}], v3 offset:{1024*i}" for i in range(2)]
        r += [f"ds_read_b128 v[{OF+8+4*i}:{OF+8+4*i+3}], v4 offset:{1024*i}" for i in range(2)]
        r += [f"ds_read_b128 v[{OF+16+4*i}:{OF+16+4*i+3}], v24 offset:{1024*i}" for i in range(2)]
        for i in range(8):
            r += [f"v_add_f32 v{mine+i}, v{mine+i}, v{OF+i}"]
        for i in range(8):
            r += [f"v_add_f32 v{OF+8+i}, v{OF+8+i}, v{OF+16+i}"]
        for p in range(4):
            r += [f"v_add_f32 v{mine+2*p}, v{mine+2*p}, v{OF+8+2*p}", f"v_add_f32 v{mine+2*p+1}, v{mine+2*p+1}, v{OF+8+2*p+1}",
                  f"v_cvt_pk_bf16_f32 v{16+p}, v{mine+2*p}, v{mine+2*p+1}"]
        r += ["s_branch L_fin"] if role == 1 else []
        return r
    st = [x for x in o if 0]
    o += fin(1) + ["@reset", "L_finC:", "s_nop 7"] + fin(0) + ["L_fin:"]
    o += [f"v_permlane32_swap_b32 v16, v18", f"v_permlane32_swap_b32 v17, v19"]
    fl = {0: "", 1: " sc1", 2: " nt", 3: " sc0 sc1"}[OPT.get('outfl', 0)]
    o += [f"buffer_store_dwordx4 v[16:19], v8, s[{sO}:{sO+3}], 0 offen{fl}"]
    if OPT.get('until'):
        o += [f"!s_mov_b32 s45, {OPT['until']}"]
        if 'pw' in OPT:
            st = sStamp + 2 * OPT['ps']
            o += ["!s_waitcnt lgkmcnt(0)", f"!s_sub_u32 s44, s{st}, s98", f"!s_cmp_ge_u32 s{sWave}, {OPT['pw']}", "!s_cselect_b32 s44, s44, 0",
                  f"!s_cmp_le_u32 s{sWave}, {OPT['pw2']}", "!s_cselect_b32 s44, s44, 0", "!s_add_u32 s45, s45, s44"]
        o += ["!L_dly2:", f"!s_memtime s[46:47]", "!s_waitcnt lgkmcnt(0)",
              "!s_sub_u32 s46, s46, s98", f"!s_cmp_lt_u32 s46, s45", "!s_cbranch_scc1 L_dly2"]
    o += stamp(10)
    if OPT['stamps'] and 'pw' not in OPT:
        o += ["s_waitcnt vmcnt(0)"] + stamp(11)
    o += stamp_flush(20, 0)
    o += ["s_endpgm"]
    return o


def phase3():
    ROLE[0] = 'H'
    o = ["@reset", "L_p3:"]
    o += serve_land(ST_WA2) + call("r1")
    o += stamp(6)
    o += [f"s_cmp_lg_u32 s{sOBd}, 0", "!s_cbranch_scc1 L_pB"] + call("ob") + ["L_pB:"]
    o += stamp(7)
    o += [f"s_mov_b32 s{sOb}, {OB}", f"s_add_u32 s{sNb}, s{sNo}, {NB}"]
    return o + half_sub()


def c_phase3():
    o = p3_slot() + [f"s_cmp_ge_u32 s{sJ3}, 28", "!s_cbranch_scc1 L_cend"]
    o += [f"v_mov_b32 v{vEp}, v{vEc}"] + p3_early(vA, WBA, WBAS) + [f"v_and_b32 v{vTg}, 0xffff0000, v{vEp}"]
    o += [f"s_mul_i32 s{sB}, s{sKh}, {(WBAS - WBBS) & 0xffffffff}", f"s_add_u32 s{sB}, s{sB}, {WBA - WBB}",
          f"s_mov_b32 s{sOb}, {OA}", f"s_add_u32 s{sNb}, s{sNo}, {NA}"]
    o += wait_land(ST_WB, HQ, inline=True, n=1)
    rd = lambda j, hl: sum([wo_frag(WA + 64 * j + 8 * hl + 4 * s_, hl if hl < 6 else hl - 6, s_) for s_ in range(2)], [])
    for hl in range(6):
        o += rd(0, hl)
    o += [f"v_subrev_u32 v{vA+x}, s{sB}, v{vA+x}" for x in range(4)] + rd(0, 6) + rd(0, 7) + FLIP + rd(1, 6) + rd(1, 7)
    o += [f"v_add_u32 v{vA+x}, s{sB}, v{vA+x}" for x in range(4)]
    for hl in range(6):
        o += rd(1, hl)
    o += [] + ["s_waitcnt lgkmcnt(0)", "s_branch L_sub_half", "@reset", "L_cend:"]
    return o


def pretouch():
    if not OPT.get('touch', 1):
        return []
    o = []
    for p in (sAW, sBW, sOUT, sAO, sBO, sGW, sDBG):
        o.append(f"!s_load_dword s44, s[{p}:{p+1}], 0")
    o += [f"s_mov_b32 s46, s{sWS}", f"s_mov_b32 s47, s{sWS+1}"]
    for i in range(6):
        o += ["!s_load_dword s44, s[46:47], 0", "s_add_u32 s46, s46, 0x200000", "s_addc_u32 s47, s47, 0"]
    return o


def x_wave():
    ROLE[0] = 'X'
    o = ["@reset", "L_xwave:", "s_waitcnt lgkmcnt(0)"] + pretouch() + ["s_barrier"]
    o += srd(sWSD, sWS, WS_SIZE)
    o += h_setup() + p3_early()
    o += ["v_lshrrev_b32 v24, 5, v0", "v_lshlrev_b32 v24, 2, v24", "v_and_b32 v25, 31, v0", "v_sub_u32 v24, v25, v24",
          "v_mov_b32 v25, 0x3f80", "v_mov_b32 v26, 0x3f800000"]
    for r in range(8):
        d0 = 16 * (r >> 2) + 8 * ((r & 3) >> 1) + 2 * (r & 1)
        o += [f"v_cmp_eq_u32 vcc, {d0}, v24", f"v_cndmask_b32 v{IDF+r}, 0, v25, vcc", f"v_cmp_eq_u32 vcc, {d0+1}, v24",
              f"v_cndmask_b32 v{IDF+r}, v{IDF+r}, v26, vcc"]
    sDD, sKD = 36, 40
    sJ = sLi
    t0, t1, t2 = 24, 25, 26
    o += [f"s_sub_u32 s{sJ}, s{sWave}, 6"]
    o += srd(sDD, sDBG, 256) + srd(sKD, sWS, WS_SIZE)
    o += [f"s_cmp_eq_u32 s{sH}, 15", f"s_cselect_b32 s{sKD+2}, 0, s{sKD+2}"]
    o += [f"v_mov_b32 v{t0}, 0", f"s_lshl_b32 s{sT0}, s2, 1", f"s_add_u32 s{sT0}, s{sT0}, s{sJ}",
          f"s_cmp_eq_u32 s{sT0}, 0", "!s_cbranch_scc0 L_xnoep",
          f"s_mov_b32 s{sT0}, {EPW}",
          f"buffer_load_dword v{vEp}, v{t0}, s[{sWSD}:{sWSD+3}], s{sT0} offen sc1",
          f"v_lshrrev_b32 v{t1}, 16, v{vEp}", f"v_add_u32 v{vEp}, 1, v{vEp}", f"v_and_b32 v{vEp}, 0xffff, v{vEp}",
          f"v_max_u32 v{vEp}, 1, v{vEp}", f"v_cmp_eq_u32 vcc, v{vEp}, v{t1}", f"v_addc_co_u32 v{vEp}, vcc, 0, v{vEp}, vcc",
          f"v_and_b32 v{vEp}, 0xffff, v{vEp}", f"v_max_u32 v{vEp}, 1, v{vEp}", f"v_lshl_or_b32 v{vEp}, v{vEp}, 16, v{vEp}",
          "s_mov_b64 exec, 1",
          f"buffer_store_dword v{vEp}, v{t0}, s[{sDD}:{sDD+3}], 0 offen sc1",
          f"buffer_store_dword v{vEp}, v{t0}, s[{sWSD}:{sWSD+3}], s{sT0} offen sc1",
          "s_mov_b64 exec, -1", "@reset", "L_xnoep:"]
    if OPT.get('gpf', 1):
        if OPT.get('gpfgate', 0) >= 0:
            o += wait_land(OPT.get('gpfgate', 0), HQ, inline=True)
        o += [f"s_cmp_eq_u32 s{sJ}, 0", f"s_cselect_b32 s44, s{sAO}, s{sAW}", f"s_cselect_b32 s45, s{sAO+1}, s{sAW+1}",
              f"s_cselect_b32 s48, s{sBO}, s{sBW}", f"s_cselect_b32 s49, s{sBO+1}, s{sBW+1}",
              f"s_mov_b32 s{sT0}, 1204224", f"s_cselect_b32 s46, 401408, s{sT0}", "s_mov_b32 s47, 0x20000",
              f"s_mov_b32 s{sT0}, 2688", f"s_cselect_b32 s{sT1}, 896, s{sT0}",
              "s_mov_b32 s50, s46", "s_mov_b32 s51, 0x20000",
              f"s_mul_i32 s{sT0}, s2, 13", f"v_add_u32 v32, s{sT0}, v0", "v_mul_u32_u24 v33, 9363, v32", "v_lshrrev_b32 v33, 16, v33",
              "v_mul_u32_u24 v34, 7, v33", "v_sub_u32 v32, v32, v34", f"v_mul_u32_u24 v33, s{sT1}, v33", "v_lshl_add_u32 v32, v32, 7, v33",
              "s_mov_b64 exec, 0x1fff",
              "buffer_load_dword v33, v32, s[44:47], 0 offen", "buffer_load_dword v34, v32, s[48:51], 0 offen", "s_mov_b64 exec, -1"]
    if OPT.get('ntouch', 1):
        o += [f"s_lshl_b32 s{sT0}, s{sRB}, 4", f"s_add_u32 s{sT0}, s{sT0}, s{sH}", f"s_lshl_b32 s{sT0}, s{sT0}, 7",
              f"s_lshl_b32 s{sT1}, s{sH}, 4", f"s_add_u32 s{sT1}, s{sT1}, s{sRB}", f"s_lshl_b32 s{sT1}, s{sT1}, 9",
              f"s_lshl_b32 s{sT2}, s{sRB}, 6", f"s_add_u32 s{sT2}, s{sT2}, s{sH}", f"s_lshl_b32 s{sT2}, s{sT2}, 7",
              f"s_add_u32 s{sT0}, s{sT0}, {FK}", f"s_add_u32 s{sT1}, s{sT1}, {N1}", f"s_add_u32 s{sT2}, s{sT2}, {NA}",
              f"s_cmp_eq_u32 s{sJ}, 0", f"s_cselect_b32 s{sT1}, s{sT1}, s{sT2}", f"s_cselect_b32 s{sT2}, 7, 11",
              "v_and_b32 v35, 3, v0", f"v_lshlrev_b32 v35, s{sT2}, v35", "v_bfe_u32 v36, v0, 2, 1",
              f"v_lshlrev_b32 v36, 17, v36", f"v_add3_u32 v35, v35, v36, s{sT1}",
              f"v_writelane_b32 v35, s{sT0}, 8", f"s_add_u32 s{sT0}, s{sT0}, {FV-FK}", f"v_writelane_b32 v35, s{sT0}, 9",
              "v_mov_b32 v36, 0", "s_mov_b64 exec, 0x3ff",
              f"buffer_atomic_or v36, v35, s[{sWSD}:{sWSD+3}], 0 offen sc1", "s_mov_b64 exec, -1"]
    o += wait_land(OPT.get('epgate', 2), HQ, inline=True)
    o += spin_vm([f"buffer_load_dword v{vEp}, v{t0}, s[{sDD}:{sDD+3}], 0 offen sc1"], [f"v_cmp_eq_u32 vcc, 0, v{vEp}"])
    o += [f"ds_write_b32 v{vM}, v{vEp} offset:{16*EPOCH}"]
    o += stamp(1)
    o += [f"s_setprio {OPT.get('xprio', 3)}", f"s_cmp_eq_u32 s{sZ}, 0", "!s_cbranch_scc1 L_xY"]
    o += [f"s_lshl_b32 s{sT0}, s{sHH}, 6", f"s_mul_i32 s{sT1}, s{sT0}, 2341", f"s_lshr_b32 s{sT1}, s{sT1}, 16",
          f"s_add_u32 s{sT0}, s{sT0}, 63", f"s_mul_i32 s{sT2}, s{sT0}, 2341", f"s_lshr_b32 s{sT2}, s{sT2}, 16",
          f"v_and_b32 v4, 3, v0", f"v_add_u32 v4, s{sT1}, v4", f"v_lshrrev_b32 v5, 2, v0",
          f"v_cmp_ge_u32 s[48:49], s{sT2}, v4", f"v_add_u32 v6, s{sRB}, v5", f"v_cmp_gt_u32 vcc, 16, v6",
          "s_and_b64 s[48:49], s[48:49], vcc", "s_and_b32 s48, s48, 0xfff", "s_mov_b32 s49, 0",
          f"s_cmp_eq_u32 s{sH}, 15", "s_cselect_b32 s48, 0, s48",
          "v_lshl_add_u32 v3, v6, 4, v4", "v_lshlrev_b32 v3, 5, v3",
          "v_mul_u32_u24 v4, 28, v4", "v_lshrrev_b32 v4, 6, v4", f"v_sub_u32 v4, s{sHH}, v4",
          "v_lshlrev_b32 v5, 1, v5", "v_sub_u32 v5, 4, v5", "v_add3_u32 v3, v3, v4, v5", "v_lshlrev_b32 v3, 2, v3",
          f"s_mul_i32 s50, s{sJ}, {FV-FK}", f"s_add_u32 s50, s50, {FK}",
          f"s_mul_i32 s44, s{sRB}, {4*28672}",
          f"s_cmp_eq_u32 s{sJ}, 0", "!s_cbranch_scc0 L_xZV"]
    o += [f"s_lshl_b32 s{sT0}, s{sHH}, 12", f"s_add_u32 s44, s44, s{sT0}"]
    o += spin_ev(R_K, 'all', HQ)
    o += [f"ds_read_b128 v[{64+4*i}:{64+4*i+3}], v{vL16} offset:{STK+1024*i}" for i in range(16)] + signal(F_K) + signal(F_K)
    for i in range(16):
        o += [f"buffer_store_dwordx4 v[{64+4*i}:{64+4*i+3}], v{vL16}, s[{sKD}:{sKD+3}], s44 offen offset:{1024*(i%4)} sc1"]
        if i % 4 == 3:
            o += ["s_add_u32 s44, s44, 28672"]
    o += ["s_branch L_xZn", "@reset", "L_xZV:"]
    o += [f"s_lshl_b32 s{sT0}, s{sHH}, 10", f"s_add_u32 s44, s44, s{sT0}", f"s_add_u32 s44, s44, {VG}", "s_add_u32 s45, s44, 14336",
          f"v_lshrrev_b32 v2, 5, v0", f"v_mul_u32_u24 v2, {7168-512}, v2", f"v_add_u32 v2, v2, v{vL16}"]
    o += spin_ev(R_V, 'all', HQ)
    o += [f"ds_read_b128 v[{64+4*i}:{64+4*i+3}], v{vL16} offset:{STV+1024*i}" for i in range(16)] + signal(F_K) + signal(F_K)
    if OPT.get('vafter', 1):
        o += spin_ev(X_PUB, 2, HQ)
    for i in range(16):
        j, s_ = (i % 4) // 2, i % 2
        o += [f"buffer_store_dwordx4 v[{64+4*i}:{64+4*i+3}], v2, s[{sKD}:{sKD+3}], s{44+s_} offen offset:{512*j} sc1"]
        if i % 4 == 3:
            o += ["s_add_u32 s44, s44, 28672", "s_add_u32 s45, s45, 28672"]
    o += ["@reset", "L_xZn:"] + signal(X_PUB) + stamp(2)
    Ln = lab('nn')
    o += ["s_cmp_eq_u32 s48, 0", f"!s_cbranch_scc1 {Ln}"]
    o += ["s_waitcnt vmcnt(0)", "s_mov_b64 exec, s[48:49]",
          f"buffer_store_dword v{vEp}, v3, s[{sWSD}:{sWSD+3}], s50 offen sc1", "s_mov_b64 exec, -1", f"!{Ln}:"] + stamp(3)
    o += ["s_branch L_xjoin", "@reset", "L_xY:"]
    o += fmap(t2, t1) + [f"v_lshrrev_b32 v{t1}, 5, v0", f"v_lshlrev_b32 v{t1}, 9, v{t1}", f"v_lshl_add_u32 v{t2}, v{t2}, 4, v{t1}"]
    o += [f"s_lshl_b32 s{sT0}, s{sJ}, 11", f"v_add_u32 v{t1}, s{sT0}, v{vL16}",
          f"s_add_u32 s{sT1}, s{sT0}, {STV}", f"v_add_u32 v{t2}, s{sT1}, v{t2}",
          f"v_lshrrev_b32 v2, 2, v0", f"v_lshlrev_b32 v2, 12, v2", f"v_and_b32 v3, 3, v0", f"v_lshl_add_u32 v2, v3, 9, v2",
          f"s_add_u32 s{sT0}, s{sT0}, {STV+448}", f"v_add_u32 v2, s{sT0}, v2"]
    o += [f"v_mov_b32 v{32+i}, 0x3f803f80" for i in range(4)]
    o += [f"s_lshl_b32 s{sT0}, s{sHH}, 1", f"s_add_u32 s{sT0}, s{sT0}, s{sJ}", f"s_lshl_b32 s{sT0}, s{sT0}, 4", f"s_add_u32 s{sT0}, s{sT0}, s{sRB}",
          f"s_lshl_b32 s44, s{sT0}, 11", f"s_add_u32 s44, s44, {KVP}",
          f"s_lshl_b32 s46, s{sT0}, 9", f"s_add_u32 s46, s46, {N1}"]
    o += spin_ev(R_V, 'all', HQ)
    o += ["s_mov_b64 exec, 0xffff", "ds_write_b128 v2, v[32:35]", "s_mov_b64 exec, -1"]
    o += [f"ds_read_b128 v[{96+4*i}:{96+4*i+3}], v{t2} offset:{4096*(i//2)+1024*(i%2)}" for i in range(8)] + signal(F_K)
    o += spin_ev(R_K, 'all', HQ)
    o += [f"ds_read_b128 v[{64+4*i}:{64+4*i+3}], v{t1} offset:{STK+4096*(i//2)+1024*(i%2)}" for i in range(8)] + signal(F_K)
    o += stamp(2)
    o += [mfma(32, 64 + 4 * i, 96 + 4 * i, 32 if i else None) for i in range(8)]
    o += [f"v_cvt_pk_bf16_f32 v{56+p}, v{32+2*p}, v{33+2*p}" for p in range(8)]
    o += [f"buffer_store_dwordx4 v[{56+4*e}:{59+4*e}], v{vL16}, s[{sWSD}:{sWSD+3}], s44 offen offset:{1024*e} sc1" for e in range(2)]
    o += ["s_waitcnt vmcnt(0)"]
    o += notify(46, 24, vEp, 4)
    o += stamp(3)
    o += ["s_nop 1", "@reset", "L_xjoin:", f"s_setprio {OPT.get('hprio', 2)}"]
    if OPT.get('wopf', 1):
        Lp = lab('wopf')
        o += [f"s_cmp_eq_u32 s{sJ}, 0", f"!s_cbranch_scc0 {Lp}",
              f"s_lshr_b32 s{sT0}, s2, 3", f"s_mul_i32 s{sT0}, s{sT0}, {98*128}", f"v_lshl_add_u32 v24, v0, 7, s{sT0}",
              f"v_add_u32 v25, {49*128}, v24",
              "s_mov_b32 exec_hi, 0x1ffff"]
        for p in (sAO, sBO):
            o += [f"!global_load_dword v12, v24, s[{p}:{p+1}]", f"!global_load_dword v12, v25, s[{p}:{p+1}]"]
        o += ["s_mov_b64 exec, -1", f"!{Lp}:"]
    Lq = lab('nr0')
    r0x = [f"s_cmp_ge_u32 s{sJ3}, 28", f"!s_cbranch_scc1 {Lq}"] + wait_land(ST_WA1, HQ, inline=True) + call("r0") + [f"{Lq}:"]
    Lz, Lz2 = lab('zo'), lab('zo2')
    o += [f"s_cmp_eq_u32 s{sZ}, 0", f"!s_cbranch_scc1 {Lz}"] + call("phi") + [f"{Lz}:"] + r0x
    o += [f"s_cmp_eq_u32 s{sZ}, 0", f"!s_cbranch_scc0 {Lz2}"] + call("phi") + [f"{Lz2}:"]
    o += p3_setup() + [f"s_mov_b32 s{sOBd}, 0"]
    o += [f"s_cmp_eq_u32 s{sJ}, 1", "!s_cbranch_scc1 L_x1"]
    o += stamp(4)
    o += [f"s_cmp_ge_u32 s{sJ3}, 28", "!s_cbranch_scc1 L_xfin"]
    t0, t1, t2 = 24, 25, 26
    o += srd(sXD, sBO, 401408) + [f"s_mov_b32 s{sC7}, 7168",
          f"v_lshrrev_b32 v{t0}, 3, v0", f"v_mul_u32_u24 v{vWO}, 896, v{t0}",
          f"v_bfe_u32 v{t1}, v0, 2, 1", f"v_bfe_u32 v{t2}, v0, 4, 1", f"v_xor_b32 v{t1}, v{t1}, v{t2}",
          f"v_lshl_add_u32 v{vWO}, v{t1}, 6, v{vWO}", f"v_and_b32 v{t2}, 3, v0", f"v_lshl_add_u32 v{vWO}, v{t2}, 4, v{vWO}",
          f"s_lshl_b32 s{sT0}, s{sCT}, 7", f"v_add_u32 v{vWO}, s{sT0}, v{vWO}",
          f"v_mov_b32 v{vMl}, v{vMs}", f"s_mov_b32 s{sT0}, {LANDC}", f"v_writelane_b32 v{vMl}, s{sT0}, 0"]
    d7 = [f"!s_call_b64 s[{sRet}:{sRet+1}], L_sub_d7"]

    def xb(ptr, row0, lds, n):
        return [f"s_mov_b32 s{sXD}, s{ptr}", f"s_mov_b32 s{sXD+1}, s{ptr+1}", f"s_mov_b32 s{sOff}, {row0*896}",
                f"s_mov_b32 m0, {lds}"] + d7 * n
    o += spin_ev(F_K, 'hi', HQ, ge=2) + spin_ev(E_P3, 'all', HQ) + spin_ev(KVISS, 'lo', HQ)
    o += xb(sAO, 0, WBA, 3) + xb(sAO, 224, WBA + WBAS, 3)
    o += serve_ev(GRDY)
    o += xb(sAO, 168, WBB, 1) + xb(sAO, 224 + 168, WBB + WBBS, 1)
    o += ["s_waitcnt vmcnt(0)"] + land(ST_WB) + stamp(5)
    o += ["s_branch L_p3", "@reset", "L_x1:"]
    o += [f"s_lshl_b32 s44, s{sH}, 15", f"s_add_u32 s44, s44, {KVP}",
          f"v_lshlrev_b32 v26, 9, v0", f"s_lshl_b32 s49, s{sH}, 6", f"s_lshr_b32 s{sT0}, s{sRB}, 2",
          f"s_add_u32 s49, s49, s{sT0}", "s_lshl_b32 s49, s49, 7", f"s_add_u32 s49, s49, {N1}"]
    o += stamp(7, 'y')
    o += light_poll(25, 26, "s49", "0xffff", [f"v_cmp_ne_u32 vcc, v25, v{vEp}"])
    o += stamp(4)

    def pl(n):
        r = [f"buffer_load_dwordx4 v[{64+4*(n%16)}:{67+4*(n%16)}], v{vL16}, s[{sWSD}:{sWSD+3}], s44 offen offset:{1024*(n%4)} sc1"]
        return r + (["s_add_u32 s44, s44, 4096"] if n % 4 == 3 else [])
    for n in range(16):
        o += pl(n)
    for n in range(32):
        o += [mfma(32, IDF + 4 * (n % 2), 64 + 4 * (n % 16), 32 if n else None)]
        if n < 16:
            o += pl(n + 16)
    o += stamp(9, 'y')
    o += [f"v_cvt_pk_bf16_f32 v{96+p}, v{32+2*p}, v{33+2*p}" for p in range(8)]
    o += [f"v_add_u32 v24, {KVF}, v{vL16}",
          f"ds_write_b128 v24, v[96:99]", f"ds_write_b128 v24, v[100:103] offset:1024"] + signal(KVRDY)
    o += call("ob") + [f"s_mov_b32 s{sOBd}, 1"]
    o += stamp(5)
    o += [f"s_cmp_ge_u32 s{sJ3}, 28", "!s_cbranch_scc1 L_xend"]
    o += ["s_branch L_p3", "@reset", "L_xfin:"] + call("ob") + ["L_xend:"] + stamp_flush(20, 0) + ["s_endpgm"]
    return o


HEADER = f"""; Fused sliding-window attention + linear attention + gated output projection (gfx950).
; One persistent launch: 256 workgroups x 8 waves (4 compute, 2 loader, 2 auxiliary).
; @launch grid=(256,1,1) block=(512,1,1) lds=163840
.amdgcn_target "amdgcn-amd-amdhsa--gfx950"
.text
.globl {NAME}_kernel
.p2align 8
.type {NAME}_kernel,@function
{NAME}_kernel:
"""
FOOTER = f"""
.section .rodata,"a"
.p2align 6
.amdhsa_kernel {NAME}_kernel
  .amdhsa_next_free_vgpr 256
  .amdhsa_next_free_sgpr 102
  .amdhsa_accum_offset 256
  .amdhsa_group_segment_fixed_size 0
  .amdhsa_kernarg_size 80
  .amdhsa_user_sgpr_count 2
  .amdhsa_user_sgpr_kernarg_segment_ptr 1
  .amdhsa_system_sgpr_workgroup_id_x 1
.end_amdhsa_kernel
"""


def main():
    body = prologue()
    SLEEP[0] = OPT.get('sleep', 1)
    l = l_wave()
    x = x_wave()
    p3 = phase3()
    sub = subroutines()
    SLEEP[0] = 0
    c = c_wave()
    rep = []
    lines = finalize(body + l + x + p3 + sub + c, rep)
    lines += ['    ' + s if not s.endswith(':') else s for s in slow]
    lines += ["L_abort:", "L_exit:", "    s_endpgm", "L_end:"]
    open(sys.argv[1], 'w').write(HEADER + "\n".join(lines) + FOOTER)
    big = [r for r in rep if r[0] >= 3]
    print("nops inserted:", len(rep), "total states", sum(r[0] for r in rep))
    for r in big:
        print("   ", r)


main()
```

```python
import sys, math, struct
from asmlib import finalize, merge

NAME = "gated_mix__sliding_block__linear_attn_block__prompt"
OPT = dict(stamps=0, l1=14, l3=8, prefetch=2, touch=0, refetch=0, wopf=0)
for a in sys.argv[2:]:
    k, v = a.split('=')
    OPT[k] = int(v)


def fhex(x):
    return '0x%08x' % struct.unpack('<I', struct.pack('<f', x))[0]


LOG2E = math.log2(math.e)
KSCALE = LOG2E * 28 ** -0.5
SPIN = 60000

def XR(c): return 16384 * (c % 4)
def WR(c): return 65536 + 16384 * (c % 4)
QLOC = [131072 + 4096 * c for c in range(6)] + [114688] + [114688 + 4096 * c for c in (1, 2, 3)] + [49152 + 4096 * c for c in range(4)]
QBB = 114688
KL = 16384
VL = 131072
STQ, STV, STK = 0, 16384, 32768
STG, STGS = 65536, 21504
WBA, WBAS = 40960, 67584
WBB, WBBS = 0, 7168
MISC = 158720
LANDC = MISC + 256
JUNK = MISC + 512
GL = MISC + 1536
KVF = MISC + 2560
E_PA, X_PUB, E_P2, E_P3, R_K, R_V, R_Q, E_OA, F_K, E_P3A, R1, GRDY, KVRDY, EPOCH, KVISS = range(15)
ST_K, ST_V, ST_WA1, ST_WB, ST_WA2 = 21, 22, 23, 24, 25

KG, VG, OA, OB, KVP, KVT = 0x000000, 0x200000, 0x400000, 0x600000, 0x800000, 0xA00000
FK, FV, N1, N2, NA, NB, EPW = 0xA40000, 0xA48000, 0xA60000, 0xA80000, 0xAA0000, 0xAC0000, 0xA50000
STAMPS = 0xB00000
WS_SIZE = 0x1000000

sX, sAW, sAO, sBW, sBO, sGW, sOUT, sDBG, sWS = 4, 6, 8, 12, 14, 16, 18, 20, 22
sWave, sH, sRB, sPar, sHH = 24, 25, 26, 27, 28
sT0, sT1, sT2, sTO = 29, 30, 31, 3
sZ = 74
sWSD = 32
sStamp = 76
sJ3, sCT, sTB = 100, 10, 11
sW4 = 101

_lab = [0]
slow = []
ROLE = ['P']
SLEEP = [0]
vL16, vM, vOne, vF, vMs = 1, 10, 11, 12, 13
vFq = 252


def lab(p):
    _lab[0] += 1
    return f"L_{p}_{_lab[0]}"


def srd(d, ptr, size, add=0):
    o = []
    if ptr == sWS:
        add += OPT.get('wsoff', 0) << 20
    if add:
        o += [f"s_add_u32 s{d}, s{ptr}, {add}", f"s_addc_u32 s{d+1}, s{ptr+1}, 0"]
    else:
        o += [f"s_mov_b32 s{d}, s{ptr}", f"s_mov_b32 s{d+1}, s{ptr+1}"]
    o += [f"s_mov_b32 s{d+2}, {size}", f"s_mov_b32 s{d+3}, 0x20000"]
    return o


def stamp(i, kind=''):
    if not OPT['stamps']:
        return []
    alt = OPT.get('alt', 0)
    if kind == 'z':
        return [f"!s_memtime s[{sStamp+2*i}:{sStamp+2*i+1}]"] if alt == 5 else []
    if kind == 's':
        return [f"!s_memtime s[{sStamp+2*i}:{sStamp+2*i+1}]"] if alt == 9 else []
    if alt == 9 and 4 <= i <= 8:
        return []
    if ROLE[0] == 'L' and (alt == 1) != (kind == 'f'):
        return []
    if kind == 'z':
        return [f"!s_memtime s[{sStamp+2*i}:{sStamp+2*i+1}]"] if alt == 5 else []
    if ROLE[0] == 'H' and alt in (1, 3, 4, 5):
        return []
    if kind == 'y' and alt != 4:
        return []
    if kind == 'x' and alt != 3:
        return []
    if ROLE[0] == 'C' and (alt == 2) != (kind == 'f'):
        return []
    return [f"!s_memtime s[{sStamp+2*i}:{sStamp+2*i+1}]"]


def stamp_flush(vt, vlane):
    if not OPT['stamps'] or 'pw' in OPT:
        return []
    o = ["s_mov_b64 exec, -1", "s_waitcnt lgkmcnt(0)", f"v_mov_b32 v{vt}, 0"]
    for i in range(12):
        o.append(f"v_writelane_b32 v{vt}, s{sStamp+2*i}, {i}")
    o += [f"s_lshl_b32 s{sT0}, s2, 3", f"s_add_u32 s{sT0}, s{sT0}, s{sWave}", f"s_lshl_b32 s{sT0}, s{sT0}, 8",
          f"s_add_u32 s{sT0}, s{sT0}, {STAMPS}",
          f"v_lshlrev_b32 v{vt+1}, 2, v{vlane}",
          f"buffer_store_dword v{vt}, v{vt+1}, s[{sWSD}:{sWSD+3}], s{sT0} offen"]
    return o


def _tmo():
    return [f"s_add_u32 s{sTO}, s{sTO}, 1", f"s_cmp_gt_u32 s{sTO}, {SPIN}", "s_cbranch_scc1 L_abort"]


def _ev_read(ev, which, q):
    if which == 'all':
        return [f"ds_read_b128 v[{q}:{q+3}], v{vM} offset:{16*ev}"], \
               [f"v_min3_u32 v{q}, v{q}, v{q+1}, v{q+2}", f"v_min_u32 v{q}, v{q}, v{q+3}"]
    if which in ('hi', 'lo'):
        return [f"ds_read_b64 v[{q}:{q+1}], v{vM} offset:{16*ev + (8 if which == 'hi' else 0)}"], \
               [f"v_min_u32 v{q}, v{q}, v{q+1}"]
    if which == 'own':
        return [f"ds_read_b32 v{q}, v{vOwn} offset:{16*ev}"], []
    return [f"ds_read_b32 v{q}, v{vM} offset:{16*ev + 4*which}"], []


def spin_ev(ev, which, q=None, ge=1):
    q = vFq if q is None else q
    L, L2 = lab('sp'), lab('spx')
    rd, red = _ev_read(ev, which, q)
    o = ["s_waitcnt lgkmcnt(0)", f"!s_mov_b32 s{sTO}, 0", f"!{L}:"]
    o += ["!" + x for x in rd + _tmo() + ["s_waitcnt lgkmcnt(0)"] + red]
    if SLEEP[0]:
        o += [f"!v_cmp_le_u32 vcc, {ge}, v{q}", f"!s_cbranch_vccnz {L2}", f"!!s_sleep {SLEEP[0]}", f"!!s_branch {L}", f"!{L2}:"]
    else:
        o += [f"!v_cmp_gt_u32 vcc, {ge}, v{q}", f"!s_cbranch_vccnz {L}"]
    return o


def check_ev(ev, which, q):
    Ls, Lb = lab('slow'), lab('back')
    rd, red = _ev_read(ev, which, q)
    slow.extend([f"{Ls}:", f"s_mov_b32 s{sTO}, 0", f"{Ls}_s:"] + rd + _tmo() + ["s_waitcnt lgkmcnt(0)"] + red +
                [f"v_cmp_eq_u32 vcc, 0, v{q}", f"s_cbranch_vccnz {Ls}_s", f"s_branch {Lb}"])
    return rd, red + [f"v_cmp_eq_u32 vcc, 0, v{q}", f"!s_cbranch_vccnz {Ls}", f"!{Lb}:"]


def wait_land(st, q=None, inline=False, n=2):
    q = vFq if q is None else q
    rd = f"ds_read_b32 v{q}, v{vM} offset:{256 + 4*st}"
    if inline:
        L, L2 = lab('wl'), lab('wlx')
        o = ["s_waitcnt lgkmcnt(0)", f"!s_mov_b32 s{sTO}, 0", f"!{L}:"] + ["!" + x for x in [rd] + _tmo() + ["s_waitcnt lgkmcnt(0)"]]
        if SLEEP[0]:
            return o + [f"!v_cmp_eq_u32 vcc, {n}, v{q}", f"!s_cbranch_vccnz {L2}", f"!!s_sleep {SLEEP[0]}", f"!!s_branch {L}", f"!{L2}:"]
        return o + [f"!v_cmp_ne_u32 vcc, {n}, v{q}", f"!s_cbranch_vccnz {L}"]
    Ls, Lb = lab('slow'), lab('back')
    slow.extend([f"{Ls}:", f"s_mov_b32 s{sTO}, 0", f"{Ls}_s:", rd] + _tmo() +
                ["s_waitcnt lgkmcnt(0)", f"v_cmp_ne_u32 vcc, {n}, v{q}", f"s_cbranch_vccnz {Ls}_s", f"s_branch {Lb}"])
    return [rd], [f"v_cmp_ne_u32 vcc, {n}, v{q}", f"!s_cbranch_vccnz {Ls}", f"!{Lb}:"]


vMl = 12


def land(st):
    return [f"ds_add_u32 v{vMl}, v{vOne} offset:{4*st}"]


def signal(ev):
    return [f"ds_add_u32 v{vMs}, v{vOne} offset:{16*ev}"]


def mfma(d, a, b, c):
    cs = f"v[{c}:{c+15}]" if isinstance(c, int) and c >= 0 else "0"
    return f"v_mfma_f32_32x32x16_bf16 v[{d}:{d+15}], v[{a}:{a+3}], v[{b}:{b+3}], {cs}"


def tr(d, a, off, tag=None):
    return f"ds_read_b64_tr_b16 v[{d}:{d+1}], v{a} offset:{off}" + (f" ;@tag={tag}" if tag else "")


vOwn = 9


def common_setup():
    return [f"v_lshlrev_b32 v{vL16}, 4, v0", f"v_mov_b32 v{vM}, {MISC}", f"v_mov_b32 v{vOne}, 1",
            f"s_and_b32 s{sW4}, s{sWave}, 3",
            f"v_lshlrev_b32 v{vMs}, 2, v0", f"v_add_u32 v{vMs}, {JUNK}, v{vMs}",
            f"s_lshl_b32 s{sT0}, s{sW4}, 2", f"s_add_u32 s{sT0}, s{sT0}, {MISC}",
            f"v_writelane_b32 v{vMs}, s{sT0}, 0"]


def prologue():
    o = []
    o += ["s_load_dwordx4 s[4:7], s[0:1], 0", "s_load_dwordx8 s[12:19], s[0:1], 32",
          "s_load_dwordx4 s[20:23], s[0:1], 64", "s_load_dwordx2 s[8:9], s[0:1], 16"]
    o += stamp(0)
    if OPT.get('until'):
        o += ["!s_memtime s[98:99]"]
    o += ["s_cmp_ge_u32 s2, 256", "!s_cbranch_scc1 L_exit",
          "v_lshrrev_b32 v1, 6, v0", "v_and_b32 v0, 63, v0", f"v_xor_b32 v1, {OPT.get('wswap', 4)}, v1", "s_nop 0",
          f"v_readfirstlane_b32 s{sWave}, v1"] + code_prefetch() + [
          f"s_and_b32 s{sT0}, s2, 7", f"s_lshr_b32 s{sT1}, s2, 3",
          f"s_and_b32 s{sH}, s{sT0}, 1", f"s_lshl_b32 s{sH}, s{sH}, 3",
          f"s_and_b32 s{sT2}, s{sT1}, 7", f"s_add_u32 s{sH}, s{sH}, s{sT2}",
          f"s_lshr_b32 s{sRB}, s{sT0}, 1", f"s_lshl_b32 s{sRB}, s{sRB}, 2",
          f"s_lshr_b32 s{sT2}, s{sT1}, 3", f"s_add_u32 s{sRB}, s{sRB}, s{sT2}",
          f"s_and_b32 s{sPar}, s{sH}, 1", f"s_lshr_b32 s{sHH}, s{sH}, 1",
          f"s_and_b32 s{sT0}, s2, 1", f"s_xor_b32 s{sZ}, s{sPar}, s{sT0}", f"s_xor_b32 s{sZ}, s{sZ}, 1"]
    o += common_setup()
    o += [f"s_cmp_lt_u32 s{sWave}, 4", "!s_cbranch_scc1 L_cwave",
          f"s_cmp_ge_u32 s{sWave}, 6", "!s_cbranch_scc1 L_xwave"]
    return o


vXA, vW0, vW1, vQB, vQA, vLow, vSt = 2, 6, 7, 8, 9, 14, 15
PK = 16
WB = 32
MK = 56
accA, accB = 64, 96
XF = 128
QF = 240
vMA, vMB = 248, 249
TMP = 250
sMask = 40
sL2E, sEps, sKS, sTile, sSt = 72, 73, 39, 75, 36


def c_setup():
    o = []
    lo, hh, t0, t1, t2 = 20, 21, 22, 23, 24
    o += [f"v_and_b32 v{lo}, 31, v0", f"v_lshrrev_b32 v{hh}, 5, v0",
          f"s_lshl_b32 s{sTile}, s{sRB}, 2", f"s_add_u32 s{sTile}, s{sTile}, s{sWave}",
          f"s_mov_b32 s{sL2E}, {fhex(LOG2E)}", f"s_mov_b32 s{sEps}, {fhex(1e-6)}", f"s_mov_b32 s{sKS}, {fhex(KSCALE)}"]
    o += [f"v_bfe_u32 v{t0}, v0, 1, 3", f"v_xor_b32 v{t0}, v{t0}, v{hh}",
          f"s_lshl_b32 s{sT0}, s{sWave}, 12",
          f"v_add_u32 v{vSt}, s{sT0}, v{vL16}",
          f"v_lshlrev_b32 v{t1}, 7, v{lo}", f"v_add_u32 v{t1}, s{sT0}, v{t1}"]
    for s in range(4):
        o += [f"v_xor_b32 v{t2}, {2*s}, v{t0}", f"v_lshl_add_u32 v{vXA+s}, v{t2}, 4, v{t1}"]
    r, cg, row = 25, 26, 27
    o += [f"v_bfe_u32 v{r}, v0, 2, 2", f"v_bfe_u32 v{t0}, v0, 4, 1", f"v_and_b32 v{cg}, 3, v0",
          f"v_lshl_add_u32 v{cg}, v{t0}, 2, v{cg}",
          f"v_lshl_add_u32 v{row}, v{hh}, 3, v{r}"]
    o += [f"v_lshrrev_b32 v{t0}, 1, v{r}",
          f"v_lshlrev_b32 v{t1}, 7, v{row}", f"v_add_u32 v{t1}, 65536, v{t1}",
          f"v_lshl_add_u32 v{vW0}, v{t0}, 6, v{t1}",
          f"v_xor_b32 v{vW1}, 64, v{vW0}",
          f"v_lshl_add_u32 v{vW0}, v{cg}, 3, v{vW0}",
          f"s_xor_b32 s{sT0}, s{sZ}, 1",
          f"v_add_u32 v{t2}, s{sT0}, v{cg}", f"v_and_b32 v{t2}, 7, v{t2}",
          f"v_lshl_add_u32 v{vW1}, v{t2}, 3, v{vW1}"]
    o += [f"v_lshlrev_b32 v{t1}, 6, v{row}",
          f"v_add_u32 v{t2}, s{sPar}, v{cg}", f"v_and_b32 v{t2}, 7, v{t2}",
          f"v_lshl_add_u32 v{vQB}, v{t2}, 3, v{t1}", f"v_add_u32 v{vQB}, {QBB}, v{vQB}",
          f"v_and_b32 v{t0}, 1, v{cg}", f"v_lshlrev_b32 v{t0}, 1, v{t0}",
          f"v_bfe_u32 v{t2}, v{cg}, 1, 1", f"v_or_b32 v{t0}, v{t0}, v{t2}",
          f"v_and_b32 v{t2}, 4, v{cg}", f"v_or_b32 v{t0}, v{t0}, v{t2}",
          f"v_lshl_add_u32 v{vQA}, v{t0}, 3, v{t1}", f"v_add_u32 v{vQA}, {QBB}, v{vQA}"]
    o += [f"v_add_u32 v{vLow}, -1, v{hh}",
          f"s_sub_u32 s{sT0}, s{sPar}, 1",
          f"v_not_b32 v{t0}, v{vLow}",
          f"v_or_b32 v{vMA}, s{sT0}, v{t0}",
          f"s_not_b32 s{sT0}, s{sT0}",
          f"v_or_b32 v{vMB}, s{sT0}, v{vLow}"]
    o += [f"v_lshlrev_b32 v{t0}, 2, v{hh}", f"v_sub_u32 v{t0}, v{lo}, v{t0}"]
    for rr in range(16):
        b = 8 * (rr >> 2) + (rr & 3)
        o.append(f"v_cmp_le_i32 s[{sMask+2*rr}:{sMask+2*rr+1}], {b}, v{t0}")
    o += [f"v_mov_b32 v{t1}, 0xffff", f"v_mov_b32 v{t2}, 0xffff0000"]
    for p in range(8):
        o += [f"v_cndmask_b32 v{MK+p}, 0, v{t1}, s[{sMask+4*p}:{sMask+4*p+1}]",
              f"v_cndmask_b32 v{t0}, 0, v{t2}, s[{sMask+4*p+2}:{sMask+4*p+3}]",
              f"v_or_b32 v{MK+p}, v{MK+p}, v{t0}"]
    return o


def gemm_frags(isY):
    fr = []
    for k in range(28):
        c, s = divmod(k, 4)
        order = [(0, 0), (0, 1), (1, 0), (1, 1)] if k < 27 else [(1, 0), (1, 1), (0, 0), (0, 1)]
        for i, (p, j) in enumerate(order):
            fr.append(dict(step=c, addr=(vW0, vW1)[j], off=XR(c) + 8192 * p + s * 2048, du=512, k=k,
                           acc=(accA, accB)[p] + 16 * j, wfirst=(p == 0 and not isY), pre=[],
                           xread=(f"ds_read_b128 v[{XF+4*k}:{XF+4*k+3}], v{vXA+s} offset:{XR(c)}" if i == 0 else None)))
    for q, a in enumerate((vQB, vQA)):
        for k in range(28):
            c, s = divmod(k, 4)
            loc = QLOC[7 * q + c]
            base = QBB if loc >= QBB else 49152
            pre = [f"v_subrev_u32 v{vQA}, {QBB-49152}, v{vQA}"] if (q, k) == (1, 12) else []
            fr.append(dict(step=7 + 7 * q + c, addr=a, off=loc - base + s * 1024, du=256, k=k,
                           acc=accB + 16 * q, wfirst=True, pre=pre, xread=None))
    return fr


def need_step(st):
    if st < 7:
        return st
    base = 7 if st < 14 else 14
    return base + {0: 0, 1: 2, 2: 2, 3: 4, 4: 4, 5: 6, 6: 6}[st - base]


def gemm_slots(isY):
    fr = gemm_frags(isY)
    N = len(fr)
    D = 5
    slots = []
    issued = 0
    checked = set()
    early = {}
    for n in range(N):
        cur = []
        f = fr[n]
        lim = 3 if n == 0 else min(n + D, N - 1)
        while issued <= lim:
            g = fr[issued]
            st = need_step(g['step'])
            if st not in checked:
                checked.add(st)
                if st == 0:
                    cur += stamp(8, 's') + wait_land(st, inline=True) + stamp(1)
                else:
                    cur += early[st]
                if st == 5:
                    cur += ["s_waitcnt vmcnt(0)"]
            b = WB + 4 * (issued % 6)
            cur += g['pre']
            if g['xread']:
                cur.append(g['xread'])
            cur += [tr(b, g['addr'], g['off']), tr(b + 2, g['addr'], g['off'] + g['du'], tag=f"f{issued}")]
            issued += 1
            last_of_step = issued == N or fr[issued]['step'] != g['step']
            if last_of_step:
                ev = {0: E_PA, 1: E_PA, 2: E_PA, 3: E_PA, 6: E_P2, 13: E_P3A, 20: E_P3}.get(g['step'])
                if ev is not None:
                    cur += signal(ev)
        if issued + 1 < N:
            st = need_step(fr[issued + 1]['step'])
            if st > 0 and st not in early:
                rd, early[st] = wait_land(st, q=vFq + 2)
                cur += rd
        if n % 2 == 0:
            cur.append(f"@wait_ds f{n+1}")
        b = WB + 4 * (n % 6)
        x = XF + 4 * f['k']
        A, B = (b, x) if f['wfirst'] else (x, b)
        cur.append(mfma(f['acc'], A, B, f['acc'] if f['k'] else None))
        slots.append(cur)
    if OPT.get('alt') == 2:
        for i in range(11):
            n = OPT['cst'] + i * OPT.get('cstep', 4)
            if n < len(slots):
                slots[n] = stamp(i + 1, 'f') + slots[n]
    return slots


def phi_pair(a, b, ta, tb, dst, l2e, eps):
    return [f"v_mul_f32 v{ta}, s{l2e}, v{a}", f"v_mul_f32 v{tb}, s{l2e}, v{b}",
            f"v_exp_f32_e64 v{ta}, v{ta} clamp", f"v_exp_f32_e64 v{tb}, v{tb} clamp",
            f"v_max_f32 v{a}, 0, v{a}", f"v_max_f32 v{b}, 0, v{b}",
            f"v_add_f32 v{a}, v{a}, v{ta}", f"v_add_f32 v{b}, v{b}, v{tb}",
            f"v_add_f32 v{a}, s{eps}, v{a}", f"v_add_f32 v{b}, s{eps}, v{b}",
            f"v_cvt_pk_bf16_f32 v{dst}, v{a}, v{b}"]


def c_gemm(isY):
    slots = gemm_slots(isY)
    pa, p3a, p3b = slots[:112], slots[112:140], slots[140:168]
    o = []
    for s in pa:
        o += s
    o += stamp(2)
    wr = lambda d, i, base: f"ds_write_b128 v{vSt}, v[{d}:{d+3}] offset:{base + 1024*i}"
    vc = lambda j: [f"v_cvt_pk_bf16_f32 v{PK+8*j+i}, v{accB+16*j+2*i}, v{accB+16*j+2*i+1}" for i in range(8)]
    vw = [wr(PK + 4 * i, i, STV) for i in range(4)]
    o += vc(0)
    if not isY:
        f = []
        for j in range(2):
            a = accA + 16 * j
            for i in range(8):
                f += [f"v_mul_f32 v{a+2*i}, s{sKS}, v{a+2*i}", f"v_mul_f32 v{a+2*i+1}, s{sKS}, v{a+2*i+1}",
                      f"v_cvt_pk_bf16_f32 v{a+i}, v{a+2*i}, v{a+2*i+1}"]
            f += [f"v_permlane32_swap_b32 v{a+x}, v{a+x+2}" for x in (0, 1, 4, 5)]
            f += [wr(a + 4 * e, 2 * j + e, STK) for e in range(2)]
        f += signal(R_K) + vc(1) + vw + signal(R_V)
        per = OPT.get('kper', 40)
    else:
        f = vc(1) + vw + signal(R_V)
        for p in range(16):
            a = accA + 16 * (p // 8)
            i = p % 8
            f += phi_pair(a + 2 * i, a + 2 * i + 1, TMP, TMP + 1, a + i, sL2E, sEps)
            if p % 4 == 3:
                f.append(wr(a + i - 3, p // 4, STK))
        f += signal(R_K)
        per = OPT.get('yper', 40)
    o += merge(p3a, f, start=0, per=per)
    o += stamp(4)
    f = [f"v_cvt_pk_bf16_f32 v{PK+i}, v{accB+2*i}, v{accB+2*i+1}" for i in range(8)]
    f += [wr(PK, 0, STQ), wr(PK + 4, 1, STQ)] + signal(R_Q)
    o += merge(p3b, f, start=4, per=2)
    o += stamp(5)
    a = accB + 16
    o += [f"v_cvt_pk_bf16_f32 v{QF+i}, v{a+2*i}, v{a+2*i+1}" for i in range(8)]
    o += [f"v_and_b32 v{QF}, v{QF}, v{vMA}", f"v_and_b32 v{QF+1}, v{QF+1}, v{vMA}",
          f"v_and_b32 v{QF+6}, v{QF+6}, v{vMB}", f"v_and_b32 v{QF+7}, v{QF+7}, v{vMB}"]
    return o


CM, SA, SB, SC, SF, SX = 16, 32, 64, 80, 96, 112
KFR = 128
PA, PB, PF = 200, 208, 216
OACC = 96
VF = (224, 232)
vKA, vVA, vMx, vG = 2, 3, 4, 5
NEG = '0xf149f2ca'


def attention(guard):
    sI0 = sSt
    o = []

    def kread(i):
        b = KFR + 8 * i
        return [f"ds_read_b128 v[{b+4*s}:{b+4*s+3}], v{vKA} offset:{2048*i+1024*s} ;@tag=k{i}" for s in range(2)]

    def vread(i, buf):
        return [f"ds_read_b128 v[{buf+4*s}:{buf+4*s+3}], v{vVA} offset:{2048*i+1024*s} ;@tag=v{i}" for s in range(2)]

    def qk(d, i, c):
        b = KFR + 8 * i
        return [mfma(d, b, QF, c), mfma(d, b + 4, QF + 4, d)]

    def setc(i, src):
        L, Lb = lab('g'), lab('gb')
        slow.extend([f"{L}:", "s_nop 7"] + [f"v_mov_b32 v{CM+r}, {src}" for r in range(16)] + [f"s_branch {Lb}"])
        return [f"s_cmp_eq_u32 s{sI0}, {i}", f"!s_cbranch_scc1 {L}", f"!{Lb}:"]

    def maxes(s, first):
        m = []
        if first:
            m.append(f"v_max3_f32 v{vMx}, v{s}, v{s+1}, v{s+2}")
            rest = list(range(3, 16))
        else:
            rest = list(range(16))
        while rest:
            if len(rest) >= 2:
                m.append(f"v_max3_f32 v{vMx}, v{vMx}, v{s+rest[0]}, v{s+rest[1]}")
                rest = rest[2:]
            else:
                m.append(f"v_max_f32 v{vMx}, v{vMx}, v{s+rest[0]}")
                rest = []
        return m

    C1 = CM if guard else None
    if guard:
        o += [f"v_mov_b32 v{CM+r}, {NEG}" for r in range(16)]
    o += wait_land(ST_K, inline=True)
    o += stamp(6)
    order = [0, 1, 2, 3, 4, 5, 6, 7, 8] if guard else [0, 8, 1, 2, 3, 4, 5, 6, 7]
    b1 = {0: SF, 8: SC}
    bufs = {}
    for i in range(1, 8):
        b1[i] = (SA, SB, SX)[i % 3]
        bufs[i] = (SA, SB)[i % 2]
    mrg = [f"v_cndmask_b32 v{SC+r}, v{SF+r}, v{SC+r}, s[{sMask+2*r}:{sMask+2*r+1}]" for r in range(16)]
    work = {}
    for i in range(1, 8):
        work[i] = maxes(b1[i], first=(guard and i == 1))
    work[8] = mrg + maxes(SC, first=not guard)
    work[0] = []
    o += kread(order[0]) + kread(order[1]) + kread(order[2])
    q = []
    for n, i in enumerate(order):
        if guard:
            o += setc(i, "0")
        m = qk(b1[i], i, C1)
        nxt = kread(order[n + 3]) if n + 3 < 9 else []
        take = 4 if len(q) <= 12 else 6
        o += [f"@wait_ds k{i}", m[0]] + q[:take] + [m[1]] + nxt
        q = q[take:]
        if n >= 1:
            q = q + work[order[n - 1]]
        must = len(q) - len(work[order[n - 1]]) if n >= 1 else 0
        take = max(must, 4 if len(q) <= 12 else 6)
        o += q[:take]
        q = q[take:]
    vrd, vchk = wait_land(ST_V)
    o += vrd + q + work[order[-1]][:4] + vchk
    o += vread(0, VF[0]) + vread(8, VF[1])
    o += work[order[-1]][4:]
    t = TMP
    o += [f"v_mov_b32 v{t}, v{vMx}", f"v_permlane32_swap_b32 v{t}, v{vMx}",
          f"v_max_f32 v{vMx}, v{vMx}, v{t}", f"v_sub_f32 v{vMx}, 0, v{vMx}"]
    o += stamp(7)
    if guard:
        o += [f"v_mov_b32 v{CM+r}, {NEG}" for r in range(16)]
        o += setc(1, f"v{vMx}")
    else:
        o += [f"v_mov_b32 v{CM+r}, v{vMx}" for r in range(16)]

    def expcvt(s, p, sub):
        e = []
        for r in range(16):
            if sub:
                e.append(f"v_add_f32 v{s+r}, v{s+r}, v{vMx}")
        for r in range(16):
            e.append(f"v_exp_f32 v{s+r}, v{s+r}")
            if r % 2 == 1 and r >= 3:
                e.append(f"v_cvt_pk_bf16_f32 v{p+(r-3)//2}, v{s+r-3}, v{s+r-2}")
        e.append(f"v_cvt_pk_bf16_f32 v{p+7}, v{s+14}, v{s+15}")
        return e

    def spread(mf, va):
        r = []
        n = len(mf)
        k = 0
        for idx, g in enumerate(mf):
            r += g
            want = (len(va) * (idx + 1)) // n - k
            r += va[k:k + want]
            k += want
        return r

    ev = expcvt(SC, PA, True)
    ev += [x for p in range(8) for x in (f"v_and_b32 v{PB+p}, v{PA+p}, v{MK+p}", f"v_xor_b32 v{PF+p}, v{PA+p}, v{PB+p}")]
    q1 = qk(bufs[1], 1, CM)
    o += spread([[q1[0]], [q1[1]]], ev)
    prev_pv = [["@wait_ds v8", mfma(OACC, VF[0], PF, None)], [mfma(OACC, VF[0] + 4, PF + 4, OACC)] + vread(1, VF[0]),
               [mfma(OACC, VF[1], PB, OACC)], [mfma(OACC, VF[1] + 4, PB + 4, OACC)] + vread(2, VF[1])]
    gearly, glate = check_ev(GRDY, 'own', vG)
    for i in range(1, 8):
        P = (PB, PA)[i % 2]
        seq = []
        if i + 1 <= 7:
            if guard:
                o += setc(i + 1, f"v{vMx}")
            nq = qk(bufs[i + 1], i + 1, CM)
            seq += [[nq[0]], [nq[1]]]
        seq += prev_pv
        if i == 6:
            seq[-1] = seq[-1] + gearly
        if i == 7:
            seq[0] = glate + [f"ds_read_b32 v{vG}, v{vGA}", f"ds_read_b32 v{vEc}, v{vM} offset:{16*EPOCH}"] + seq[0]
        o += spread(seq, expcvt(bufs[i], P, False))
        vb = VF[(i + 1) % 2]
        prev_pv = [[f"@wait_ds v{i}", mfma(OACC, vb, P, OACC)],
                   [mfma(OACC, vb + 4, P + 4, OACC)] + (vread(i + 2, vb) if i + 2 <= 7 else [])]
    o += prev_pv[0] + prev_pv[1]
    return o


vGA, vEc = 8, 6


def finish_o(A, D, vscale, t, u, soff, vtag, snot, eps=None):
    o = [f"v_mov_b32 v{t}, v{A+15}", f"v_mov_b32 v{u}, v{A+15}", f"v_permlane32_swap_b32 v{t}, v{u}"]
    if eps is not None:
        o += [f"v_add_f32 v{u}, s{eps}, v{u}"]
    o += [f"v_rcp_f32 v{u}, v{u}", f"v_mov_b32 v{t}, 0xffff", f"v_mul_f32 v{u}, v{u}, v{vscale}"]
    for p in range(8):
        o += [f"v_mul_f32 v{A+2*p}, v{A+2*p}, v{u}"]
        if p % 4 != 3:
            o += [f"v_mul_f32 v{A+2*p+1}, v{A+2*p+1}, v{u}"]
        o += [f"v_cvt_pk_bf16_f32 v{D+p}, v{A+2*p}, v{A+2*p+1}"]
        if p % 4 == 3:
            e = p // 4
            o += [f"v_bfi_b32 v{D+p}, v{t}, v{D+p}, v{vtag}",
                  f"buffer_store_dwordx4 v[{D+4*e}:{D+4*e+3}], v{vL16}, s[{sWSD}:{sWSD+3}], s{soff} offen offset:{1024*e} sc1"]
    return o + notify(snot, t, vtag)


def c_tail():
    o = finish_o(OACC, PA, vG, TMP, TMP + 1, sSt + 1, vEc, sSt + 2)
    o += signal(E_OA)
    o += stamp(3)
    if OPT.get('alt') == 8:
        o += ["s_waitcnt vmcnt(1)", f"!s_memtime s[{sStamp+8}:{sStamp+9}]", "s_waitcnt vmcnt(0)", f"!s_memtime s[{sStamp+10}:{sStamp+11}]"]
    o += c_phase3()
    o += stamp_flush(TMP, 0)
    o += ["s_endpgm"]
    return o


def cpf():
    o = []
    if OPT.get('cpf', 1):
        o += [f"s_cmp_eq_u32 s{sWave}, 1", f"s_cselect_b32 s16, s{sAW}, s{sBW}", f"s_cselect_b32 s17, s{sAW+1}, s{sBW+1}",
              "s_mov_b32 s18x, 1204224".replace("s18x", "s10"), "s_mov_b32 s11, 0x20000",
              f"s_cmp_eq_u32 s{sWave}, 0", f"s_cselect_b32 s8, s{sX}, s16", f"s_cselect_b32 s9, s{sX+1}, s17",
              f"s_cselect_b32 s10, 1835008, s10",
              f"s_cselect_b32 s{sT0}, 56, 25", f"s_mul_i32 s{sT1}, s{sT0}, s2", f"v_add_u32 v16, s{sT1}, v0",
              "v_mul_u32_u24 v17, 9363, v16", "v_lshrrev_b32 v17, 17, v17",
              f"s_cselect_b32 s{sT1}, 0, 896", f"v_mul_u32_u24 v17, s{sT1}, v17",
              f"v_lshl_add_u32 v16, v16, 7, v17", f"v_add_u32 v16, s{sT1}, v16",
              f"v_cmp_gt_u32 vcc, s{sT0}, v0", f"s_cmp_lt_u32 s{sWave}, 3", "s_cselect_b64 exec, vcc, 1",
              "!buffer_load_dword v238, v16, s[8:11], 0 offen", "s_mov_b64 exec, -1"]
    return o


def c_wave():
    ROLE[0] = 'C'
    o = ["@reset", "L_cwave:"] + stamp(4, 's')
    o += ["v_lshlrev_b32 v20, 3, v0", "v_mov_b32 v22, 0", "v_mov_b32 v23, 0", f"v_add_u32 v20, {MISC}, v20", "ds_write_b64 v20, v[22:23]",
          ]
    o += c_setup()
    o += stamp(5, 's') + ["s_waitcnt lgkmcnt(0)"] + stamp(6, 's') + ([] if OPT.get('cpfpos', 1) else cpf()) + ["s_barrier"] + stamp(7, 's')
    o += srd(sWSD, sWS, WS_SIZE)
    if OPT.get('cpfpos', 1):
        o += cpf()
    o += [f"s_cmp_eq_u32 s{sZ}, 0", "!s_cbranch_scc1 L_cY"]
    o += c_gemm(False)
    o += ["s_branch L_attn", "@reset", "L_cY:"]
    o += c_gemm(True)
    o += ["L_attn:", f"s_setprio {OPT.get('cprio', 0)}"]
    o += [f"s_lshl_b32 s{sT0}, s{sWave}, 11",
          f"s_add_u32 s{sT1}, s{sT0}, {KL}", f"v_add_u32 v{vKA}, s{sT1}, v{vL16}",
          f"s_add_u32 s{sT1}, s{sT0}, {VL}", f"v_add_u32 v{vVA}, s{sT1}, v{vL16}",
          f"s_lshl_b32 s{sT0}, s{sWave}, 8", f"s_add_u32 s{sT0}, s{sT0}, {GL}", f"v_lshl_add_u32 v{vGA}, v0, 2, s{sT0}",
          f"s_lshl_b32 s{sT0}, s{sWave}, 2", f"s_add_u32 s{sT0}, s{sT0}, {MISC}", f"v_mov_b32 v{vOwn}, s{sT0}",
          f"s_lshl_b32 s{sT0}, s{sTile}, 4", f"s_add_u32 s{sT0}, s{sT0}, s{sH}",
          f"s_lshl_b32 s{sT1}, s{sT0}, 7", f"s_add_u32 s{sSt+2}, s{sT1}, {NA}",
          f"s_lshl_b32 s{sT0}, s{sT0}, 11", f"s_add_u32 s{sSt+1}, s{sT0}, {OA}",
          f"s_cmp_lt_u32 s{sTile}, 8", "!s_cbranch_scc1 L_attn_g"]
    o += attention(False)
    o += ["L_ctail:"]
    o += c_tail()
    o += ["@reset", "L_attn_g:", f"s_sub_u32 s{sSt}, 8, s{sTile}"]
    o += attention(True)
    o += ["s_waitcnt lgkmcnt(0)", "s_nop 15", "s_branch L_ctail", "@reset"]
    return o


def code_prefetch():
    n = OPT['prefetch']
    if not n:
        return []
    o = ["s_getpc_b64 s[38:39]", "L_pc:",
         f"s_sub_u32 s38, s38, L_pc-{NAME}_kernel", "s_subb_u32 s39, s39, 0",
         f"s_lshr_b32 s{sT0}, s2, 3", f"s_lshl_b32 s{sT1}, s{sWave}, 5", f"s_add_u32 s{sT0}, s{sT0}, s{sT1}",
         f"s_mul_i32 s{sT0}, s{sT0}, {128*n}",
         f"v_lshl_add_u32 v20, v0, 7, s{sT0}",
         f"v_min_u32 v20, L_end-{NAME}_kernel-4, v20",
         f"s_mov_b64 exec, {(1 << n) - 1}",
         "!global_load_dword v239, v20, s[38:39]", "s_mov_b64 exec, -1"]
    return o


sXD, sWD, sQBD, sQAD, sGD = 36, 40, 44, 48, 52
sKGD, sVGD = 56, 60
sRt, sTT, sE2, sL2 = 64, 65, 66, 67
sOBo, sA, sB, sC = 68, 69, 70, 71
sOff, sLi, sKh = 72, 73, 75
sEarly = 61
sOBn = 62
sNo = 63
sC7 = 53
sCc, sCx, sCw, sRot = 60, 20, 21, 61
sOBd = 60
vX, vW, vQ, vPat, vK, vV, vWO = 2, 3, 4, 5, 6, 7, 8
vEp = 15
GV = 16
HQ = 28
PQR = 16
vG1 = 27
KVr = 88
IDF = 48
sRet = 54


def p3_slot():
    return [f"s_and_b32 s{sT0}, s{sRB}, 3", f"s_lshl_b32 s{sT0}, s{sT0}, 3", f"s_and_b32 s{sT1}, s{sH}, 7",
            f"s_add_u32 s{sJ3}, s{sT0}, s{sT1}",
            f"s_cmp_ge_u32 s{sJ3}, 14", f"s_cselect_b32 s{sT0}, 14, 0", f"s_cselect_b32 s{sT1}, 1, 0",
            f"s_sub_u32 s{sT0}, s{sJ3}, s{sT0}", f"s_lshr_b32 s{sCT}, s{sT0}, 1", f"s_and_b32 s{sT0}, s{sT0}, 1",
            f"s_lshr_b32 s{sT2}, s{sH}, 3", f"s_lshl_b32 s{sT2}, s{sT2}, 1", f"s_add_u32 s{sT1}, s{sT1}, s{sT2}",
            f"s_and_b32 s{sT2}, s{sRB}, 12", f"s_add_u32 s{sT1}, s{sT1}, s{sT2}",
            f"s_lshl_b32 s{sT1}, s{sT1}, 1", f"s_add_u32 s{sT1}, s{sT1}, s{sT0}", f"s_lshl_b32 s{sTB}, s{sT1}, 1"]


def h_setup():
    return p3_slot() + [
            f"s_lshl_b32 s{sT0}, s{sW4}, 2", f"s_add_u32 s{sT0}, s{sT0}, {MISC}", f"v_mov_b32 v{vOwn}, s{sT0}",
            f"v_lshrrev_b32 v{vLow}, 5, v0", f"v_add_u32 v{vLow}, -1, v{vLow}",
            f"s_mov_b32 s{sE2}, {fhex(1e-6)}", f"s_mov_b32 s{sL2}, {fhex(LOG2E)}",
            f"s_lshl_b32 s{sT0}, s{sRB}, 2", f"s_add_u32 s{sT0}, s{sT0}, s{sW4}", f"s_lshl_b32 s{sT0}, s{sT0}, 4",
            f"s_add_u32 s{sT0}, s{sT0}, s{sH}",
            f"s_lshl_b32 s{sT1}, s{sT0}, 7", f"s_add_u32 s{sOBn}, s{sT1}, {NB}",
            f"s_lshl_b32 s{sT0}, s{sT0}, 11", f"s_add_u32 s{sOBo}, s{sT0}, {OB}"]


def qb_phi():
    R, A = 96, 64
    t, u = 24, 25
    o = spin_ev(R_Q, 'own', HQ)
    o += [f"s_lshl_b32 s{sT0}, s{sW4}, 12", f"v_add_u32 v{t}, s{sT0}, v{vL16}",
          f"ds_read_b128 v[{R}:{R+3}], v{t}", f"ds_read_b128 v[{R+4}:{R+7}], v{t} offset:1024",
          f"s_lshl_b32 s{sT0}, s{sW4}, 8", f"s_add_u32 s{sT0}, s{sT0}, {GL}", f"v_lshl_add_u32 v{26}, v0, 2, s{sT0}",
          f"v_lshlrev_b32 v{t}, 16, v{R+6}", f"v_lshlrev_b32 v{u}, 16, v{R+6}",
          f"v_permlane32_swap_b32 v{t}, v{u}",
          f"v_mul_f32 v{u}, s{sL2}, v{u}", f"v_exp_f32_e64 v{u}, -v{u}", f"v_add_f32 v{u}, 1.0, v{u}",
          f"v_rcp_f32 v{u}, v{u}", f"ds_write_b32 v26, v{u}"] + signal(GRDY) + [f"v_sub_f32 v{vG1}, 1.0, v{u}"]
    for p in range(8):
        o += [f"v_lshlrev_b32 v{A+2*p}, 16, v{R+p}", f"v_and_b32 v{A+2*p+1}, 0xffff0000, v{R+p}"]
        o += phi_pair(A + 2 * p, A + 2 * p + 1, t, u, PQR + p, sL2, sE2)
    o += [f"v_and_b32 v{PQR+6}, v{PQR+6}, v{vLow}", f"v_and_b32 v{PQR+7}, v{PQR+7}, v{vLow}"]
    return o


def ob_tile(read_kv=True):
    o = []
    if read_kv:
        o += spin_ev(KVRDY, 3, HQ)
        o += [f"v_add_u32 v24, {KVF}, v{vL16}",
              f"ds_read_b128 v[{KVr}:{KVr+3}], v24", f"ds_read_b128 v[{KVr+4}:{KVr+7}], v24 offset:1024"]
    o += [mfma(64, KVr, PQR, None), mfma(64, KVr + 4, PQR + 4, 64)]
    o += finish_o(64, 80, vG1, 24, 25, sOBo, vEp, sOBn, eps=sE2)
    return o


def call(name):
    return ["@drain", f"!s_call_b64 s[{sRet}:{sRet+1}], L_sub_{name}", "@reset"]


def subroutines():
    o = []
    for name, body in (("phi", qb_phi()), ("ob", ob_tile()), ("r0", woa_read(0) + signal(R1)), ("r1", woa_read(1))):
        o += ["@reset", f"L_sub_{name}:"] + body + ["s_waitcnt lgkmcnt(0)", f"!s_setpc_b64 s[{sRet}:{sRet+1}]"]
    for name, w in (("d7", f"!s_waitcnt vmcnt({OPT.get('wlead', 20) - 1})"), ("d7e", f"!s_waitcnt vmcnt({OPT.get('elead', 14) - 1})")):
        o += ["@reset", f"L_sub_{name}:"]
        for m in range(7):
            o += [w, f"!buffer_load_dwordx4 v{vWO}, s[{sXD}:{sXD+3}], s{sOff} offen lds",
                  f"!s_add_u32 s{sOff}, s{sOff}, s{sC7}", "!s_addk_i32 m0, 1024"]
        o += [f"!s_setpc_b64 s[{sRet}:{sRet+1}]"]
    return o


def wait_serving(rd, red, cmp_ok, early=None):
    L, L1, L2 = lab('ws'), lab('ws1'), lab('ws2')
    o = ["@drain", f"s_mov_b32 s{sTO}, 0", f"!{L}:", "!" + rd, f"!ds_read_b32 v24, v{vM} offset:{16*KVRDY+12}"]
    o += ["!" + x for x in _tmo()]
    o += ["!s_waitcnt lgkmcnt(0)", f"!v_cmp_lt_u32 vcc, s{sOBd}, v24", f"!s_cbranch_vccz {L1}",
          f"!s_call_b64 s[{sRet}:{sRet+1}], L_sub_ob", f"!s_mov_b32 s{sOBd}, 1", f"!s_mov_b32 s{sTO}, 0", f"!s_branch {L}", f"!{L1}:"]
    o += ["!" + x for x in red + [cmp_ok, f"s_cbranch_vccnz {L2}"]]
    if early is not None:
        o += [f"!s_mov_b32 s{early}, 1"]
    o += [f"!s_sleep {OPT.get('ssleep', 2)}", f"!s_branch {L}", "@reset", f"!{L2}:"]
    return o


def serve_ev(ev, early=None):
    return wait_serving(f"ds_read_b128 v[{HQ}:{HQ+3}], v{vM} offset:{16*ev}",
                        [f"v_min3_u32 v{HQ}, v{HQ}, v{HQ+1}, v{HQ+2}", f"v_min_u32 v{HQ}, v{HQ}, v{HQ+3}"],
                        f"v_cmp_ne_u32 vcc, 0, v{HQ}", early)


def serve_land(st):
    return wait_serving(f"ds_read_b32 v{HQ}, v{vM} offset:{256+4*st}", [], f"v_cmp_eq_u32 vcc, 2, v{HQ}")


def dma(vaddr, sd, soff, lds, extra="", tag=None, sbase=None):
    o = [f"s_add_u32 m0, s{sLi}, {lds}"]
    if sbase is not None:
        if soff:
            o.append(f"s_add_u32 s{sOff}, s{sbase}, {soff}")
            so = f"s{sOff}"
        else:
            so = f"s{sbase}"
    elif soff:
        o.append(f"s_mov_b32 s{sOff}, {soff}")
        so = f"s{sOff}"
    else:
        so = "0"
    o.append(f"buffer_load_dwordx4 v{vaddr}, s[{sd}:{sd+3}], {so} offen {extra} lds" + (f" ;@tag={tag}" if tag else ""))
    return o


def spin_vm(body, cond, sleep=0):
    L = lab('pv')
    o = [f"!s_mov_b32 s{sTO}, 0", f"!{L}:"]
    o += ["!" + b for b in body + _tmo()]
    o += ["s_waitcnt vmcnt(0)"]
    o += ["!" + c for c in cond]
    o += [f"!s_cbranch_vccnz {L}"]
    return o


def flag_ld(vdst, vaddr, soff):
    if 1:
        return [f"v_mov_b32 v{vdst}, 0", f"buffer_atomic_or v{vdst}, v{vaddr}, s[{sWSD}:{sWSD+3}], {soff} offen sc0 sc1"]
    return [f"buffer_load_dword v{vdst}, v{vaddr}, s[{sWSD}:{sWSD+3}], {soff} offen sc1"]


def light_poll(vdst, vaddr, soff, mask, cmp_bad, first_issued=False, sleep=None, flag=False, hook=None):
    sleep = OPT.get('psleep', 1) if sleep is None else sleep
    L, L2, L0 = lab('lp'), lab('lpx'), lab('lp0')
    ld = f"buffer_load_dword v{vdst}, v{vaddr}, s[{sWSD}:{sWSD+3}], {soff} offen sc1"
    o = [f"s_mov_b64 exec, {mask}", f"s_mov_b32 s{sTO}, 0"]
    if first_issued:
        o += [f"!s_branch {L0}"]
    o += [f"!{L}:"] + ["!!" + x for x in (flag_ld(vdst, vaddr, soff) if flag else [ld])] + [f"!{L0}:"] + ["!" + x for x in _tmo()] + ["s_waitcnt vmcnt(0)"]
    o += ["!" + c for c in cmp_bad]
    o += [f"!s_cbranch_vccz {L2}"]
    if hook:
        o += ["!!s_mov_b64 s[50:51], vcc", "!!s_mov_b64 exec, -1"] + ["!!" + x.lstrip('!') for x in hook if not x.startswith('@')] + ["!!s_mov_b64 vcc, s[50:51]"]
    o += ["!!s_mov_b64 exec, vcc"] + ([f"!!s_sleep {sleep}"] if sleep else []) + \
         [f"!!s_branch {L}", f"!{L2}:", "s_mov_b64 exec, -1"]
    return o


def notify(soff, vt, vep, fan=1):
    return [f"v_lshlrev_b32 v{vt}, 7, v0", f"s_mov_b64 exec, {(1 << fan) - 1}",
            f"buffer_store_dword v{vep}, v{vt}, s[{sWSD}:{sWSD+3}], s{soff} offen sc1", "s_mov_b64 exec, -1"]


def fmap(d, t):
    return [f"v_bfe_u32 v{d}, v0, 4, 1", f"v_bfe_u32 v{t}, v0, 2, 1", f"v_lshl_add_u32 v{d}, v{d}, 1, v{t}",
            f"v_mul_u32_u24 v{d}, 7, v{d}", f"v_bfe_u32 v{t}, v0, 3, 1", f"v_lshl_add_u32 v{d}, v{t}, 2, v{d}",
            f"v_and_b32 v{t}, 3, v0", f"v_add_u32 v{d}, v{d}, v{t}"]


def l_wave():
    ROLE[0] = 'L'
    o = [f"s_setprio {OPT.get('lprio', 2)}"]
    t0, t1, t2 = 24, 25, 26
    sHW = sW4
    o += [f"s_lshl_b32 s{sLi}, s{sHW}, 10",
          f"v_mov_b32 v{vMl}, v{vMs}", f"s_mov_b32 s{sT0}, {LANDC}", f"v_writelane_b32 v{vMl}, s{sT0}, 0"]
    o += [f"v_lshrrev_b32 v{t0}, 3, v0", f"s_lshl_b32 s{sT0}, s{sRB}, 4", f"s_add_u32 s{sT0}, s{sT0}, s{sHW}",
          f"s_lshl_b32 s{sT0}, s{sT0}, 3", f"v_add_u32 v{t1}, s{sT0}, v{t0}", f"v_mul_u32_u24 v{vX}, 896, v{t1}",
          f"v_lshrrev_b32 v{t1}, 4, v0", f"s_lshl_b32 s{sT0}, s{sHW}, 2", f"v_add_u32 v{t1}, s{sT0}, v{t1}",
          f"v_and_b32 v{t2}, 7, v0", f"v_xor_b32 v{t1}, v{t1}, v{t2}", f"v_lshl_add_u32 v{vX}, v{t1}, 4, v{vX}"]
    o += [f"s_lshl_b32 s{sT2}, s{sZ}, 4", f"s_add_u32 s{sT1}, s{sT2}, 112", f"s_add_u32 s{sT2}, s{sT2}, 48",
          f"s_mul_i32 s{sT1}, s{sT1}, s{sHH}", f"s_add_u32 s{sT1}, s{sT1}, 896",
          f"s_lshl_b32 s{sT0}, s{sHW}, 3", f"v_add_u32 v{t1}, s{sT0}, v{t0}", f"v_mul_u32_u24 v{vW}, 2688, v{t1}",
          f"v_bfe_u32 v{t1}, v0, 2, 1", f"v_bfe_u32 v{t2}, v0, 4, 1", f"v_xor_b32 v{t1}, v{t1}, v{t2}",
          f"v_mul_u32_u24 v{t2}, s{sT2}, v{t1}", f"v_add3_u32 v{vW}, v{vW}, v{t2}, s{sT1}",
          f"v_and_b32 v{t2}, 3, v0", f"v_lshl_add_u32 v{vW}, v{t2}, 4, v{vW}"]
    o += [f"s_mov_b32 s{sXD+2}, 1835008", f"s_mov_b32 s{sXD+3}, 0x20000",
          f"s_mov_b32 s{sWD+2}, 1204224", f"s_mov_b32 s{sWD+3}, 0x20000",
          f"s_cmp_eq_u32 s{sH}, 15", f"s_cselect_b32 s{sWD+2}, 0, s{sWD+2}",
          ] + {0: [f"s_mov_b32 s{sCc}, 0"],
               1: [f"s_xor_b32 s{sT0}, s{sRB}, s{sH}", f"s_and_b32 s{sT0}, s{sT0}, 1", f"s_mul_i32 s{sCc}, s{sT0}, {OPT.get('rotk', 3)}"],
               2: [f"s_add_u32 s{sT0}, s{sRB}, s{sH}", f"s_and_b32 s{sT0}, s{sT0}, 3", f"s_mul_i32 s{sCc}, s{sT0}, {OPT.get('rotk', 2)}"],
               3: [f"s_and_b32 s{sT0}, s{sRB}, 3", f"s_lshl_b32 s{sT0}, s{sT0}, 1", f"s_and_b32 s{sT1}, s{sH}, 7", f"s_add_u32 s{sCc}, s{sT0}, s{sT1}"],
               }[OPT.get('rotm', 0)] + [
          f"s_cmp_ge_u32 s{sCc}, 7", f"s_cselect_b32 s{sT0}, 7, 0", f"s_sub_u32 s{sCc}, s{sCc}, s{sT0}",
          f"s_cmp_ge_u32 s{sCc}, 7", f"s_cselect_b32 s{sT0}, 7, 0", f"s_sub_u32 s{sCc}, s{sCc}, s{sT0}",
          f"s_mov_b32 s{sRot}, s{sCc}",
          f"s_cmp_eq_u32 s{sZ}, 0"]
    o += stamp(1, 'f')
    o += ["s_waitcnt lgkmcnt(0)",
          f"s_mov_b32 s{sXD}, s{sX}", f"s_mov_b32 s{sXD+1}, s{sX+1}",
          f"s_cselect_b32 s{sWD}, s{sBW}, s{sAW}", f"s_cselect_b32 s{sWD+1}, s{sBW+1}, s{sAW+1}",
          f"s_lshl_b32 s{sCx}, s{sCc}, 7", f"s_mul_i32 s{sCw}, s{sCc}, {64*2688}"]
    nextc = [f"s_add_u32 s{sCc}, s{sCc}, 1", f"s_cmp_eq_u32 s{sCc}, 7", f"s_cselect_b32 s{sCc}, 0, s{sCc}"]
    setc_ = [f"s_lshl_b32 s{sCx}, s{sCc}, 7", f"s_mul_i32 s{sCw}, s{sCc}, {64*2688}"]
    ops = []
    for c in range(7):
        for ii in range(8):
            pre = (nextc + setc_) if (ii == 0 and c) else []
            ops.append((pre + dma(vX, sXD, 16 * ii * 896, XR(c) + 2048 * ii, sbase=sCx), c))
        for p in range(2):
            for ii in range(4):
                ops.append((dma(vW, sWD, 16 * ii * 2688 + 896 * p, WR(c) + 8192 * p + 2048 * ii, sbase=sCw), c))
    for q, sd in enumerate((sQBD, sQAD)):
        for c in range(7):
            for ii in range(2):
                pre = (nextc + setc_[1:]) if ii == 0 else []
                ops.append((pre + dma(vQ, sd, 32 * ii * 2688, QLOC[7 * q + c] + 2048 * ii, sbase=sCw), 7 + 7 * q + c))
    late = srd(sWSD, sWS, WS_SIZE) + srd(sQBD, sBW, 1204224) + srd(sQAD, sAW, 1204224) + srd(sGD, sGW, 896)
    late += [f"v_lshrrev_b32 v{t0}, 2, v0", f"s_lshl_b32 s{sT0}, s{sHW}, 4", f"v_add_u32 v{t0}, s{sT0}, v{t0}",
             f"v_mul_u32_u24 v{vQ}, 2688, v{t0}", f"v_and_b32 v{t1}, 3, v0", f"v_lshl_add_u32 v{vQ}, v{t1}, 4, v{vQ}",
             f"s_mul_i32 s{sT0}, s{sH}, 56", f"s_lshl_b32 s{sT1}, s{sPar}, 3", f"s_sub_u32 s{sT0}, s{sT0}, s{sT1}",
             f"v_add_u32 v{vQ}, s{sT0}, v{vQ}",
             f"v_bfe_u32 v{t0}, v0, 4, 1", f"v_lshlrev_b32 v{t0}, 5, v{t0}", f"v_and_b32 v{t1}, 15, v0",
             f"s_lshl_b32 s{sT0}, s{sHW}, 4", f"v_add3_u32 v{t0}, v{t0}, v{t1}, s{sT0}",
             f"v_lshlrev_b32 v27, 1, v{t0}",
             f"s_xor_b32 s{sT0}, s{sPar}, 1", f"s_mul_i32 s{sT0}, s{sT0}, 56", f"s_add_u32 s{sT0}, s{sT0}, {QBB}",
             f"v_lshl_add_u32 v{vPat}, v{t0}, 6, s{sT0}"]
    for c in range(7):
        late += [[f"s_lshl_b32 s{sT0}, s{sRot}, 7", f"buffer_load_ushort v{GV+c}, v27, s[{sGD}:{sGD+3}], s{sT0} offen",
                  f"s_add_u32 s{sRot}, s{sRot}, 1", f"s_cmp_eq_u32 s{sRot}, 7", f"s_cselect_b32 s{sRot}, 0, s{sRot}"]]
    late += [f"s_mul_i32 s{sT0}, s{sHW}, {VG}", f"s_add_u32 s{sT0}, s{sT0}, {OPT.get('wsoff', 0) << 20}", [f"s_add_u32 s{sKGD}, s{sWS}, s{sT0}", f"s_addc_u32 s{sKGD+1}, s{sWS+1}, 0"],
             f"s_mov_b32 s{sKGD+2}, 1835008", f"s_mov_b32 s{sKGD+3}, 0x20000"]
    late += [f"s_lshl_b32 s{sT0}, s{sRB}, 2", f"s_sub_u32 s{sT0}, s{sT0}, 8", f"s_mul_i32 s{sA}, s{sT0}, 28672",
             f"s_mul_i32 s{sT1}, s{sH}, 7", f"s_lshr_b32 s{sT1}, s{sT1}, 1", f"s_lshl_b32 s{sT1}, s{sT1}, 9",
             f"s_add_u32 s{sT1}, s{sT1}, s{sA}",
             f"v_add_u32 v{vK}, s{sT1}, v{vL16}",
             f"s_mul_i32 s{sT1}, s{sH}, 448", f"s_add_u32 s{sT1}, s{sT1}, s{sA}",
             f"v_lshrrev_b32 v{t0}, 5, v0", f"v_mul_u32_u24 v{t0}, 7168, v{t0}"] + fmap(t1, t2) + [
             f"v_lshl_add_u32 v{t0}, v{t1}, 4, v{t0}", f"v_add_u32 v{vV}, s{sT1}, v{t0}"]
    vFl = 32
    late += [f"s_mul_i32 s{sT0}, s{sH}, 28", f"s_add_u32 s{sT1}, s{sT0}, 27",
             f"s_lshr_b32 s{sT0}, s{sT0}, 6", [f"s_lshr_b32 s{sT1}, s{sT1}, 6", f"s_cmp_eq_u32 s{sT0}, s{sT1}",
             f"s_cselect_b32 s{sB}, 0x15, 63"],
             f"s_min_u32 s{sT0}, s{sRB}, 2", f"s_lshl_b32 s{sT0}, s{sT0}, 1", f"s_sub_u32 s{sT0}, 4, s{sT0}",
             f"s_lshl_b32 s{sT1}, -1, s{sT0}", f"s_and_b32 s{sB}, s{sB}, s{sT1}", f"s_mov_b32 s{sB+1}, 0",
             f"s_lshl_b32 s{sT0}, s{sRB}, 4", f"s_add_u32 s{sT0}, s{sT0}, s{sH}", f"s_lshl_b32 s{sT0}, s{sT0}, 7",
             f"v_lshl_add_u32 v{vFl}, v0, 2, s{sT0}"]
    late += [h_setup()] + p3_early()
    late += [f"v_lshrrev_b32 v{t0}, 3, v0", f"s_mul_i32 s{sT0}, s{sHW}, 224", f"v_add_u32 v{t1}, s{sT0}, v{t0}",
             f"v_mul_u32_u24 v{vWO}, 896, v{t1}",
             f"v_bfe_u32 v{t1}, v0, 2, 1", f"v_bfe_u32 v{t2}, v0, 4, 1", f"v_xor_b32 v{t1}, v{t1}, v{t2}",
             f"v_lshl_add_u32 v{vWO}, v{t1}, 6, v{vWO}", f"v_and_b32 v{t2}, 3, v0", f"v_lshl_add_u32 v{vWO}, v{t2}, 4, v{vWO}",
             f"s_lshl_b32 s{sT0}, s{sCT}, 7", f"v_add_u32 v{vWO}, s{sT0}, v{vWO}"]
    pieces = [late[i:i + 6] for i in range(0, len(late), 6)]
    last_of = {}
    for n, (_, st) in enumerate(ops):
        last_of[st] = n
    def lead_at(n):
        return OPT['l1'] if ops[n][1] < 7 else OPT['l3']
    sig_next = 0

    def do_signal(st):
        r = [f"@wait_vm o{last_of[st]}"]
        if 7 <= st <= 13:
            r.append(f"ds_write_b16 v{vPat}, v{GV+st-7} offset:{QLOC[st-7]-QBB}")
        return r + land(st)

    def emit_ops(n0, n1, sig, fine):
        r = []
        for n in range(n0, n1):
            ins, st = ops[n]
            need = {64: 1, 80: 2, 96: 3, 124: 4}.get(n)
            if need:
                assert sig >= need
                r += spin_ev(E_PA, 'all', HQ, ge=need)
            ins = ins[:-1] + [ins[-1] + f" ;@tag=o{n}"]
            if n == 0:
                r += stamp(2, 'f')
            r += ins
            if n == 15:
                r += stamp(3, 'f') + ["s_barrier"] + stamp(4, 'f')
            if n >= 16 and pieces:
                r += sum([x if isinstance(x, list) else [x] for x in pieces.pop(0)], [])
            done = n - lead_at(n)
            if done >= 0 and n >= 15:
                r += [f"@wait_vm o{done}"]
            while sig < 21 and last_of[sig] <= done and n >= 15:
                r += do_signal(sig)
                r += {0: stamp(5, 'f'), 1: stamp(6, 'f'), 2: stamp(7, 'f'), 4: stamp(8, 'f'), 6: stamp(9, 'f'), 10: stamp(10, 'f')}.get(sig, [])
                sig += 1
        return r, sig

    def tail(sig, pf=False):
        r, sig = emit_ops(HOLD, len(ops), sig, False)
        r += stamp(1) + stamp(11, 'f')
        if pf and OPT.get('ypf', 0):
            r += [f"s_cmp_eq_u32 s{sHW}, 0", f"s_cselect_b32 s48, s{sAO}, s{sBO}", f"s_cselect_b32 s49, s{sAO+1}, s{sBO+1}",
                  f"s_and_b32 s{sT0}, s{sRB}, 3", f"s_lshl_b32 s{sT0}, s{sT0}, 2", f"s_and_b32 s{sT1}, s{sHH}, 3",
                  f"s_add_u32 s{sT0}, s{sT0}, s{sT1}", f"s_mul_i32 s{sT0}, s{sT0}, {196*128}",
                  f"v_lshl_add_u32 v33, v0, 7, s{sT0}", "s_mov_b32 exec_hi, 0x1ffff"]
            for i in range(4):
                r += [f"global_load_dword v{40+i}, v33, s[48:49]"] + ([f"v_add_u32 v33, {49*128}, v33"] if i < 3 else [])
            r += ["s_mov_b64 exec, -1"]
        for st in range(sig, 21):
            r += do_signal(st)
        return r
    HOLD = OPT.get('hold', 140)
    r, sig = emit_ops(0, HOLD, 0, True)
    assert not pieces
    o += r
    if HOLD < len(ops):
        o += [f"s_cmp_eq_u32 s{sZ}, 0", "!s_cbranch_scc0 L_lhold"]
    o += tail(sig, True)
    if HOLD < len(ops):
        o += ["s_branch L_ljoin", "@reset", "L_lhold:"]
        while last_of[sig] < HOLD:
            o += [f"s_waitcnt vmcnt({HOLD - 1 - last_of[sig]})"] + do_signal(sig)
            sig += 1
        o += spin_ev(X_PUB, 'hi', HQ)
        o += tail(sig)
        o += ["@reset", "L_ljoin:"]
    o += spin_ev(EPOCH, 0, vEp)
    d7 = [f"!s_call_b64 s[{sRet}:{sRet+1}], L_sub_d7e"]

    def batch(ptr, row0, lds, stride, n, sub=d7):
        return [f"s_mov_b32 s{sXD}, s{ptr}", f"s_mov_b32 s{sXD+1}, s{ptr+1}", f"s_mov_b32 s{sOff}, {row0*896}",
                f"s_mul_i32 s{sLi}, s{sHW}, {stride}", f"s_add_u32 m0, s{sLi}, {lds}"] + sub * n
    o += [f"s_mov_b32 s{sXD+2}, 401408", f"s_mov_b32 s{sC7}, 7168",
          f"s_cmp_ge_u32 s{sJ3}, 28", "!s_cbranch_scc1 L_lnoA"]
    if OPT.get('e1', 0):
        o += [f"s_cmp_eq_u32 s{sHW}, 0", "!s_cbranch_scc1 L_lnoA"]
    o += spin_ev(E_P2, 'all', HQ)
    if OPT.get('zgate', 1):
        o += [f"s_cmp_eq_u32 s{sZ}, 0", "!s_cbranch_scc1 L_lgoA"] + spin_ev(X_PUB, 'hi', HQ) + ["L_lgoA:"]
    o += batch(sBO, 0, STG, STGS, 3)
    o += ["s_waitcnt vmcnt(0)"] + land(ST_WA1)
    if OPT.get('lr0', 0):
        o += wait_land(ST_WA1, HQ, inline=True) + call("r0")
    if OPT.get('e1', 0):
        o += [f"v_subrev_u32 v{vWO}, {224*896}, v{vWO}", f"s_mov_b32 s{sOff}, 0", f"s_mov_b32 m0, {WBA}"] + d7 * 3
    o += ["L_lnoA:"]
    o += [f"s_cmp_eq_u32 s{sHW}, 0", "!s_cbranch_scc0 L_lgV"] + spin_ev(F_K, 'hi', HQ, ge=2) + ["s_branch L_lg", "L_lgV:"]
    o += spin_ev(E_P3A, 'all', HQ) + ["L_lg:"]
    o += stamp(6, 'z')
    o += [f"s_mul_i32 s{sT1}, s{sHW}, {FV-FK}", f"s_add_u32 s{sT1}, s{sT1}, {FK}"]
    o += light_poll(t1, 32, f"s{sT1}", f"s[{sB}:{sB+1}]", [f"v_cmp_ne_u32 vcc, v{t1}, v{vEp}"], flag=OPT.get('apoll', 1), sleep=OPT.get('fsleep', 2))
    o += stamp(2)
    if OPT.get('alt') == 5:
        o += [f"s_add_u32 s{sStamp+14}, s{sStamp}, s{sTO}"]
    o += [f"s_cmp_eq_u32 s{sHW}, 0", "!s_cbranch_scc0 L_lV"]
    for j in range(12):
        for e in range(2):
            o += [f"s_mov_b32 m0, {KL + 2048*j + 1024*e - 1024*e}",
                  f"buffer_load_dwordx4 v{vK}, s[{sKGD}:{sKGD+3}], 0 offen offset:{1024*e} sc1 lds"]
        o += [f"v_add_u32 v{vK}, 28672, v{vK}"]
    o += [f"s_mov_b32 s{sA}, {4*ST_K}", "s_branch L_lKV", "@reset", "L_lV:"]
    o += [f"v_mov_b32 v{36+i}, 0x3f803f80" for i in range(4)]
    o += [f"v_lshlrev_b32 v{t0}, 9, v0", f"v_add_u32 v{t0}, {VL+496}, v{t0}",
          "s_mov_b32 exec_hi, 0xffff", f"ds_write_b128 v{t0}, v[36:39]",
          "s_mov_b32 exec_lo, 0x7fffffff", "s_mov_b32 exec_hi, 0x7fffffff", f"s_mov_b32 s{sOff}, 14336"]
    for j in range(12):
        for e in range(2):
            pre = [f"v_add_u32 v{t2}, s{sOff}, v{vV}"] if e else []
            o += pre + [f"s_mov_b32 m0, {VL + 2048*j + 1024*e}",
                        f"buffer_load_dwordx4 v{t2 if e else vV}, s[{sKGD}:{sKGD+3}], 0 offen sc1 lds"]
        o += [f"v_add_u32 v{vV}, 28672, v{vV}"]
    o += ["s_mov_b64 exec, -1", f"s_mov_b32 s{sA}, {4*ST_V}", "@reset", "L_lKV:"]
    o += stamp(3) + signal(KVISS)
    kvland = [f"v_add_u32 v{t2}, s{sA}, v{vMl}", f"v_mov_b32 v{t0}, 2", f"ds_add_u32 v{t2}, v{t0}"]
    o += [f"s_cmp_ge_u32 s{sJ3}, 28", "!s_cbranch_scc0 L_lwo"] + call("phi") + \
        ["s_waitcnt vmcnt(0)"] + kvland + call("ob") + stamp_flush(20, 0) + ["s_endpgm", "@reset", "L_lwo:"]
    o += call("phi") + stamp(8, 'z')
    o += ["s_waitcnt vmcnt(0)"] + kvland
    o += stamp(4)
    if not OPT.get('lr0', 0):
        o += wait_land(ST_WA1, HQ, inline=True) + call("r0")
    o += p3_setup() + [f"s_mov_b32 s{sOBd}, 0"] + serve_ev(R1)
    o += batch(sBO, 168, STG, STGS, 1)
    o += [f"s_cmp_lg_u32 s{sOBd}, 0", "!s_cbranch_scc1 L_lt0"] + call("ob") + [f"s_mov_b32 s{sOBd}, 1", "s_waitcnt vmcnt(3)", "s_branch L_lt1",
          "L_lt0:", "s_waitcnt vmcnt(0)", "L_lt1:"] + land(ST_WA2)
    o += stamp(5)
    o += ["s_branch L_p3", "@reset"]
    return o


sOb, sNb = 58, 59


def gload(g):
    r = [f"s_add_u32 s{sT2}, s{sOb}, {4096*g}"]
    for e in range(4):
        n = 4 * g + e
        r.append(f"buffer_load_dwordx4 v[{OF+4*n}:{OF+4*n+3}], v{vOG}, s[{sWSD}:{sWSD+3}], s{sT2} offen offset:{1024*e} sc1")
    return r


WA = 128
OF = 64
ACC = 32
BB = 16
vA = 2
vOG = 6
vTg = 9


def p3_early(PARK=248, base=STG, stride=STGS):
    t0, t1, t2, r, cg = 240, 241, 242, 243, 244
    o = [f"s_lshr_b32 s{sKh}, s{sW4}, 1", f"s_and_b32 s{sRt}, s{sW4}, 1",
         f"s_add_u32 s{sTT}, s{sTB}, s{sRt}",
         f"v_bfe_u32 v{r}, v0, 2, 2", f"v_bfe_u32 v{t0}, v0, 4, 1", f"v_and_b32 v{cg}, 3, v0",
         f"v_lshl_add_u32 v{cg}, v{t0}, 2, v{cg}", f"v_lshlrev_b32 v{cg}, 3, v{cg}",
         f"s_mul_i32 s{sT0}, s{sKh}, {stride}", f"s_add_u32 s{sT0}, s{sT0}, {base}",
         f"v_add_u32 v{cg}, s{sT0}, v{cg}",
         f"v_lshrrev_b32 v{t2}, 5, v0", f"v_mul_u32_u24 v{t2}, 7, v{t2}"]
    for s_ in range(2):
        for u in range(2):
            d = PARK + 2 * s_ + u
            o += [f"v_min_u32 v{t0}, {2 if u else 3}, v{r}", f"v_add3_u32 v{t0}, v{t0}, v{t2}, {14*s_+4*u}",
                  f"v_bfe_u32 v{t1}, v{t0}, 1, 1", f"v_xor_b32 v{t1}, s{sKh}, v{t1}",
                  f"v_lshl_add_u32 v{d}, v{t0}, 7, v{cg}", f"v_lshl_add_u32 v{d}, v{t1}, 6, v{d}"]
    o += [f"s_lshl_b32 s{sT0}, s{sTT}, 1", f"s_add_u32 s{sT0}, s{sT0}, s{sKh}", f"s_lshl_b32 s{sNo}, s{sT0}, 10", f"s_lshl_b32 s{sT0}, s{sT0}, 14",
          f"v_add_u32 v{PARK+4}, s{sT0}, v{vL16}"]
    return o


def p3_setup():
    return [f"v_mov_b32 v{vA+i}, v{248+i}" for i in range(5)] + [f"v_and_b32 v{vTg}, 0xffff0000, v{vEp}"]


def flip(A):
    return [f"v_xor_b32 v{A+i}, 64, v{A+i}" for i in range(4)]


FLIP = flip(vA)


def wo_frag(dst, hl, s, tag=None, A=vA):
    return [tr(dst, A + 2 * s, 28 * hl * 128), tr(dst + 2, A + 2 * s + 1, 28 * hl * 128, tag)]


def woa_read(rho):
    o = []
    A = 248 if rho == 0 else vA
    for j in range(2):
        for hl in (range(6) if rho == 0 else range(6, 8)):
            for s in range(2):
                o += wo_frag(WA + 64 * j + 8 * hl + 4 * s, hl % 6, s, A=A)
        o += flip(A)
    return o


RSTR = VL - KL


def half_sub():
    vC = 7
    o = ["@reset", "L_sub_half:"]

    def gcheck(g):
        b = OF + 16 * g
        ch = [f"v_xor_b32 v{b+4*e+3}, v{b+4*e+3}, v{vTg}" for e in range(4)]
        ch += [f"v_or3_b32 v{vC}, v{b+3}, v{b+7}, v{b+11}", f"v_or_b32 v{vC}, v{vC}, v{b+15}",
               f"v_cmp_lt_u32 vcc, 0xffff, v{vC}"]
        Ls, Lb = lab('slow'), lab('back')
        slow.extend([f"{Ls}:"] + ([f"s_add_u32 s{sStamp+14}, s{sStamp+14}, 1"] if OPT.get('alt') == 6 else []) + [x.lstrip('!') for x in ["v_lshlrev_b32 v7, 7, v0"] + light_poll(HQ, 7, f"s{sNb}", str(3 << (2 * g)), [f"v_cmp_ne_u32 vcc, v{HQ}, v{vEp}"], sleep=2)] + [f"s_mov_b32 s{sTO}, 0", f"{Ls}_s:"] + gload(g) + _tmo() + ["s_waitcnt vmcnt(0)"] + ch +
                    [f"s_cbranch_vccnz {Ls}_s", f"s_branch {Lb}"])
        return ch + [f"!s_cbranch_vccnz {Ls}", f"!{Lb}:"]
    if OPT.get('alt') in (7, 8):
        o += [f"!s_memtime s[{sStamp+12}:{sStamp+13}]"]
    o += [f"v_lshlrev_b32 v7, 7, v0"]
    o += light_poll(HQ, 7, f"s{sNb}", "0xff", [f"v_cmp_ne_u32 vcc, v{HQ}, v{vEp}"], sleep=OPT.get('osleep', 1))
    o += spin_ev(E_OA, 'all', HQ)
    o += ["@reset", "L_half_go:"]
    if OPT.get('alt') == 6:
        o += ["s_waitcnt lgkmcnt(0)", f"s_mov_b32 s{sStamp+14}, s{sStamp}"]
    o += stamp(9)
    if OPT.get('alt') in (7, 8):
        o += [f"s_add_u32 s{sStamp+14}, s{sStamp}, s{sTO}"]
    for g in range(4):
        o += gload(g)
    sO = 40
    o += srd(sO, sOUT, 1835008)
    o += [f"s_lshr_b32 s{sT2}, s{sWave}, 2", f"s_mul_i32 s{sT1}, s{sT2}, {RSTR}",
          f"s_mul_i32 s{sT0}, s{sW4}, 6144", f"s_add_u32 s{sT0}, s{sT0}, {KL}",
          f"s_add_u32 s44, s{sT0}, s{sT1}", f"v_add_u32 v2, s44, v{vL16}",
          f"s_sub_u32 s44, s{sT0}, s{sT1}", f"s_add_u32 s44, s44, {RSTR+4096}", f"v_add_u32 v3, s44, v{vL16}",
          f"s_lshl_b32 s{sT2}, s{sT2}, 11",
          f"s_xor_b32 s{sT1}, s{sW4}, 2", f"s_mul_i32 s{sT0}, s{sT1}, 6144", f"s_add_u32 s{sT0}, s{sT0}, s{sT2}",
          f"s_add_u32 s{sT0}, s{sT0}, {KL}", f"v_add_u32 v4, s{sT0}, v{vL16}", f"v_add_u32 v24, {RSTR}, v4",
          f"v_and_b32 v8, 31, v0", f"s_lshl_b32 s{sT0}, s{sTT}, 5", f"v_add_u32 v8, s{sT0}, v8",
          f"v_mul_u32_u24 v8, 896, v8", f"v_lshrrev_b32 v5, 5, v0",
          f"v_lshl_add_u32 v8, v5, 4, v8",
          f"s_lshl_b32 s{sT0}, s{sCT}, 1", f"s_add_u32 s{sT0}, s{sT0}, s{sKh}", f"s_lshl_b32 s{sT0}, s{sT0}, 6",
          f"s_lshr_b32 s{sT2}, s{sT2}, 6", f"s_add_u32 s{sT0}, s{sT0}, s{sT2}",
          f"v_add_u32 v8, s{sT0}, v8"]
    for n in range(16):
        if n % 4 == 0:
            o += gcheck(n // 4)
        for j in ((0, 1) if n < 12 else ()):
            o.append(mfma(ACC + 16 * j, WA + 64 * j + 4 * n, OF + 4 * n, ACC + 16 * j if n else None))
    for j in (1, 0):
        for n in range(12, 16):
            o.append(mfma(ACC + 16 * j, WA + 64 * j + 4 * n, OF + 4 * n, ACC + 16 * j))
    o += [f"ds_write_b128 v2, v[{ACC+16+4*i}:{ACC+16+4*i+3}] offset:{1024*i}" for i in range(4)]
    o += stamp(8)
    o += [f"s_cmp_lt_u32 s{sWave}, 4", "!s_cbranch_scc1 L_finC"]

    def fin(role):
        mine, spare = ACC + 8 * role, ACC + 8 * (1 - role)
        r = [f"ds_write_b128 v2, v[{spare+4*i}:{spare+4*i+3}] offset:{4096+1024*i}" for i in range(2)]
        r += ["s_waitcnt lgkmcnt(0)", "s_barrier"]
        r += [f"ds_read_b128 v[{OF+4*i}:{OF+4*i+3}], v3 offset:{1024*i}" for i in range(2)]
        r += [f"ds_read_b128 v[{OF+8+4*i}:{OF+8+4*i+3}], v4 offset:{1024*i}" for i in range(2)]
        r += [f"ds_read_b128 v[{OF+16+4*i}:{OF+16+4*i+3}], v24 offset:{1024*i}" for i in range(2)]
        for i in range(8):
            r += [f"v_add_f32 v{mine+i}, v{mine+i}, v{OF+i}"]
        for i in range(8):
            r += [f"v_add_f32 v{OF+8+i}, v{OF+8+i}, v{OF+16+i}"]
        for p in range(4):
            r += [f"v_add_f32 v{mine+2*p}, v{mine+2*p}, v{OF+8+2*p}", f"v_add_f32 v{mine+2*p+1}, v{mine+2*p+1}, v{OF+8+2*p+1}",
                  f"v_cvt_pk_bf16_f32 v{16+p}, v{mine+2*p}, v{mine+2*p+1}"]
        r += ["s_branch L_fin"] if role == 1 else []
        return r
    st = [x for x in o if 0]
    o += fin(1) + ["@reset", "L_finC:", "s_nop 7"] + fin(0) + ["L_fin:"]
    o += [f"v_permlane32_swap_b32 v16, v18", f"v_permlane32_swap_b32 v17, v19"]
    fl = {0: "", 1: " sc1", 2: " nt", 3: " sc0 sc1"}[OPT.get('outfl', 0)]
    o += [f"buffer_store_dwordx4 v[16:19], v8, s[{sO}:{sO+3}], 0 offen{fl}"]
    if OPT.get('until'):
        o += [f"!s_mov_b32 s45, {OPT['until']}"]
        if 'pw' in OPT:
            st = sStamp + 2 * OPT['ps']
            o += ["!s_waitcnt lgkmcnt(0)", f"!s_sub_u32 s44, s{st}, s98", f"!s_cmp_ge_u32 s{sWave}, {OPT['pw']}", "!s_cselect_b32 s44, s44, 0",
                  f"!s_cmp_le_u32 s{sWave}, {OPT['pw2']}", "!s_cselect_b32 s44, s44, 0", "!s_add_u32 s45, s45, s44"]
        o += ["!L_dly2:", f"!s_memtime s[46:47]", "!s_waitcnt lgkmcnt(0)",
              "!s_sub_u32 s46, s46, s98", f"!s_cmp_lt_u32 s46, s45", "!s_cbranch_scc1 L_dly2"]
    o += stamp(10)
    if OPT['stamps'] and 'pw' not in OPT:
        o += ["s_waitcnt vmcnt(0)"] + stamp(11)
    o += stamp_flush(20, 0)
    o += ["s_endpgm"]
    return o


def phase3():
    ROLE[0] = 'H'
    o = ["@reset", "L_p3:"]
    o += serve_land(ST_WA2) + call("r1")
    o += stamp(6)
    o += [f"s_cmp_lg_u32 s{sOBd}, 0", "!s_cbranch_scc1 L_pB"] + call("ob") + ["L_pB:"]
    if OPT.get('bgate', 1):
        o += spin_ev(E_OA, 'all', HQ)
    o += stamp(7)
    o += [f"s_mov_b32 s{sOb}, {OB}", f"s_add_u32 s{sNb}, s{sNo}, {NB}"]
    if OPT.get('bdirect', 1):
        o += ["s_branch L_half_go"]
    return o + half_sub()


def c_phase3():
    o = p3_slot() + [f"s_cmp_ge_u32 s{sJ3}, 28", "!s_cbranch_scc1 L_cend"]
    o += [f"v_mov_b32 v{vEp}, v{vEc}"] + p3_early(vA, WBA, WBAS) + [f"v_and_b32 v{vTg}, 0xffff0000, v{vEp}"]
    o += [f"s_mul_i32 s{sB}, s{sKh}, {(WBAS - WBBS) & 0xffffffff}", f"s_add_u32 s{sB}, s{sB}, {WBA - WBB}",
          f"s_mov_b32 s{sOb}, {OA}", f"s_add_u32 s{sNb}, s{sNo}, {NA}"]
    o += wait_land(ST_WB, HQ, inline=True, n=1)
    rd = lambda j, hl: sum([wo_frag(WA + 64 * j + 8 * hl + 4 * s_, hl if hl < 6 else hl - 6, s_) for s_ in range(2)], [])
    for hl in range(6):
        o += rd(0, hl)
    o += [f"v_subrev_u32 v{vA+x}, s{sB}, v{vA+x}" for x in range(4)] + rd(0, 6) + rd(0, 7) + FLIP + rd(1, 6) + rd(1, 7)
    o += [f"v_add_u32 v{vA+x}, s{sB}, v{vA+x}" for x in range(4)]
    for hl in range(6):
        o += rd(1, hl)
    o += [] + ["s_waitcnt lgkmcnt(0)", "s_branch L_sub_half", "@reset", "L_cend:"]
    return o


def pretouch():
    if not OPT.get('touch', 1):
        return []
    o = []
    for p in (sAW, sBW, sOUT, sAO, sBO, sGW, sDBG):
        o.append(f"!s_load_dword s44, s[{p}:{p+1}], 0")
    o += [f"s_mov_b32 s46, s{sWS}", f"s_mov_b32 s47, s{sWS+1}"]
    for i in range(6):
        o += ["!s_load_dword s44, s[46:47], 0", "s_add_u32 s46, s46, 0x200000", "s_addc_u32 s47, s47, 0"]
    return o


def x_wave():
    ROLE[0] = 'X'
    o = ["@reset", "L_xwave:", "s_waitcnt lgkmcnt(0)"] + pretouch() + ["s_barrier"]
    o += srd(sWSD, sWS, WS_SIZE)
    o += h_setup() + p3_early()
    o += ["v_lshrrev_b32 v24, 5, v0", "v_lshlrev_b32 v24, 2, v24", "v_and_b32 v25, 31, v0", "v_sub_u32 v24, v25, v24",
          "v_mov_b32 v25, 0x3f80", "v_mov_b32 v26, 0x3f800000"]
    for r in range(8):
        d0 = 16 * (r >> 2) + 8 * ((r & 3) >> 1) + 2 * (r & 1)
        o += [f"v_cmp_eq_u32 vcc, {d0}, v24", f"v_cndmask_b32 v{IDF+r}, 0, v25, vcc", f"v_cmp_eq_u32 vcc, {d0+1}, v24",
              f"v_cndmask_b32 v{IDF+r}, v{IDF+r}, v26, vcc"]
    sDD, sKD = 36, 40
    sJ = sLi
    t0, t1, t2 = 24, 25, 26
    o += [f"s_sub_u32 s{sJ}, s{sWave}, 6"]
    o += srd(sDD, sDBG, 256) + srd(sKD, sWS, WS_SIZE)
    o += [f"s_cmp_eq_u32 s{sH}, 15", f"s_cselect_b32 s{sKD+2}, 0, s{sKD+2}"]
    o += [f"v_mov_b32 v{t0}, 0", f"s_lshl_b32 s{sT0}, s2, 1", f"s_add_u32 s{sT0}, s{sT0}, s{sJ}",
          f"s_cmp_eq_u32 s{sT0}, 0", "!s_cbranch_scc0 L_xnoep",
          f"s_mov_b32 s{sT0}, {EPW}",
          f"buffer_load_dword v{vEp}, v{t0}, s[{sWSD}:{sWSD+3}], s{sT0} offen sc1",
          f"v_lshrrev_b32 v{t1}, 16, v{vEp}", f"v_add_u32 v{vEp}, 1, v{vEp}", f"v_and_b32 v{vEp}, 0xffff, v{vEp}",
          f"v_max_u32 v{vEp}, 1, v{vEp}", f"v_cmp_eq_u32 vcc, v{vEp}, v{t1}", f"v_addc_co_u32 v{vEp}, vcc, 0, v{vEp}, vcc",
          f"v_and_b32 v{vEp}, 0xffff, v{vEp}", f"v_max_u32 v{vEp}, 1, v{vEp}", f"v_lshl_or_b32 v{vEp}, v{vEp}, 16, v{vEp}",
          "s_mov_b64 exec, 1",
          f"buffer_store_dword v{vEp}, v{t0}, s[{sDD}:{sDD+3}], 0 offen sc1",
          f"buffer_store_dword v{vEp}, v{t0}, s[{sWSD}:{sWSD+3}], s{sT0} offen sc1",
          "s_mov_b64 exec, -1", "@reset", "L_xnoep:"]
    if OPT.get('gpf', 1):
        if OPT.get('gpfgate', 0) >= 0:
            o += wait_land(OPT.get('gpfgate', 0), HQ, inline=True)
        o += [f"s_cmp_eq_u32 s{sJ}, 0", f"s_cselect_b32 s44, s{sAO}, s{sAW}", f"s_cselect_b32 s45, s{sAO+1}, s{sAW+1}",
              f"s_cselect_b32 s48, s{sBO}, s{sBW}", f"s_cselect_b32 s49, s{sBO+1}, s{sBW+1}",
              f"s_mov_b32 s{sT0}, 1204224", f"s_cselect_b32 s46, 401408, s{sT0}", "s_mov_b32 s47, 0x20000",
              f"s_mov_b32 s{sT0}, 2688", f"s_cselect_b32 s{sT1}, 896, s{sT0}",
              "s_mov_b32 s50, s46", "s_mov_b32 s51, 0x20000",
              f"s_mul_i32 s{sT0}, s2, 13", f"v_add_u32 v32, s{sT0}, v0", "v_mul_u32_u24 v33, 9363, v32", "v_lshrrev_b32 v33, 16, v33",
              "v_mul_u32_u24 v34, 7, v33", "v_sub_u32 v32, v32, v34", f"v_mul_u32_u24 v33, s{sT1}, v33", "v_lshl_add_u32 v32, v32, 7, v33",
              "s_mov_b64 exec, 0x1fff",
              "buffer_load_dword v33, v32, s[44:47], 0 offen", "buffer_load_dword v34, v32, s[48:51], 0 offen", "s_mov_b64 exec, -1"]
    if OPT.get('ntouch', 1):
        o += [f"s_lshl_b32 s{sT0}, s{sRB}, 4", f"s_add_u32 s{sT0}, s{sT0}, s{sH}", f"s_lshl_b32 s{sT0}, s{sT0}, 7",
              f"s_lshl_b32 s{sT1}, s{sH}, 4", f"s_add_u32 s{sT1}, s{sT1}, s{sRB}", f"s_lshl_b32 s{sT1}, s{sT1}, 9",
              f"s_lshl_b32 s{sT2}, s{sRB}, 6", f"s_add_u32 s{sT2}, s{sT2}, s{sH}", f"s_lshl_b32 s{sT2}, s{sT2}, 7",
              f"s_add_u32 s{sT0}, s{sT0}, {FK}", f"s_add_u32 s{sT1}, s{sT1}, {N1}", f"s_add_u32 s{sT2}, s{sT2}, {NA}",
              f"s_cmp_eq_u32 s{sJ}, 0", f"s_cselect_b32 s{sT1}, s{sT1}, s{sT2}", f"s_cselect_b32 s{sT2}, 7, 11",
              "v_and_b32 v35, 3, v0", f"v_lshlrev_b32 v35, s{sT2}, v35", "v_bfe_u32 v36, v0, 2, 1",
              f"v_lshlrev_b32 v36, 17, v36", f"v_add3_u32 v35, v35, v36, s{sT1}",
              f"v_writelane_b32 v35, s{sT0}, 8", f"s_add_u32 s{sT0}, s{sT0}, {FV-FK}", f"v_writelane_b32 v35, s{sT0}, 9",
              "v_mov_b32 v36, 0", "s_mov_b64 exec, 0x3ff",
              f"buffer_atomic_or v36, v35, s[{sWSD}:{sWSD+3}], 0 offen sc1", "s_mov_b64 exec, -1"]
    o += wait_land(OPT.get('epgate', 2), HQ, inline=True)
    o += spin_vm([f"buffer_load_dword v{vEp}, v{t0}, s[{sDD}:{sDD+3}], 0 offen sc1"], [f"v_cmp_eq_u32 vcc, 0, v{vEp}"])
    o += [f"ds_write_b32 v{vM}, v{vEp} offset:{16*EPOCH}"]
    o += stamp(1)
    o += [f"s_setprio {OPT.get('xprio', 3)}", f"s_cmp_eq_u32 s{sZ}, 0", "!s_cbranch_scc1 L_xY"]
    o += [f"s_lshl_b32 s{sT0}, s{sHH}, 6", f"s_mul_i32 s{sT1}, s{sT0}, 2341", f"s_lshr_b32 s{sT1}, s{sT1}, 16",
          f"s_add_u32 s{sT0}, s{sT0}, 63", f"s_mul_i32 s{sT2}, s{sT0}, 2341", f"s_lshr_b32 s{sT2}, s{sT2}, 16",
          f"v_and_b32 v4, 3, v0", f"v_add_u32 v4, s{sT1}, v4", f"v_lshrrev_b32 v5, 2, v0",
          f"v_cmp_ge_u32 s[48:49], s{sT2}, v4", f"v_add_u32 v6, s{sRB}, v5", f"v_cmp_gt_u32 vcc, 16, v6",
          "s_and_b64 s[48:49], s[48:49], vcc", "s_and_b32 s48, s48, 0xfff", "s_mov_b32 s49, 0",
          f"s_cmp_eq_u32 s{sH}, 15", "s_cselect_b32 s48, 0, s48",
          "v_lshl_add_u32 v3, v6, 4, v4", "v_lshlrev_b32 v3, 5, v3",
          "v_mul_u32_u24 v4, 28, v4", "v_lshrrev_b32 v4, 6, v4", f"v_sub_u32 v4, s{sHH}, v4",
          "v_lshlrev_b32 v5, 1, v5", "v_sub_u32 v5, 4, v5", "v_add3_u32 v3, v3, v4, v5", "v_lshlrev_b32 v3, 2, v3",
          f"s_mul_i32 s50, s{sJ}, {FV-FK}", f"s_add_u32 s50, s50, {FK}",
          f"s_mul_i32 s44, s{sRB}, {4*28672}",
          f"s_cmp_eq_u32 s{sJ}, 0", "!s_cbranch_scc0 L_xZV"]
    o += [f"s_lshl_b32 s{sT0}, s{sHH}, 12", f"s_add_u32 s44, s44, s{sT0}"]
    o += spin_ev(R_K, 'all', HQ)
    o += [f"ds_read_b128 v[{64+4*i}:{64+4*i+3}], v{vL16} offset:{STK+1024*i}" for i in range(16)] + signal(F_K) + signal(F_K)
    for i in range(16):
        o += [f"buffer_store_dwordx4 v[{64+4*i}:{64+4*i+3}], v{vL16}, s[{sKD}:{sKD+3}], s44 offen offset:{1024*(i%4)} sc1"]
        if i % 4 == 3:
            o += ["s_add_u32 s44, s44, 28672"]
    o += ["s_branch L_xZn", "@reset", "L_xZV:"]
    o += [f"s_lshl_b32 s{sT0}, s{sHH}, 10", f"s_add_u32 s44, s44, s{sT0}", f"s_add_u32 s44, s44, {VG}", "s_add_u32 s45, s44, 14336",
          f"v_lshrrev_b32 v2, 5, v0", f"v_mul_u32_u24 v2, {7168-512}, v2", f"v_add_u32 v2, v2, v{vL16}"]
    o += spin_ev(R_V, 'all', HQ)
    o += [f"ds_read_b128 v[{64+4*i}:{64+4*i+3}], v{vL16} offset:{STV+1024*i}" for i in range(16)] + signal(F_K) + signal(F_K)
    if OPT.get('vafter', 1):
        o += spin_ev(X_PUB, 2, HQ)
    for i in range(16):
        j, s_ = (i % 4) // 2, i % 2
        o += [f"buffer_store_dwordx4 v[{64+4*i}:{64+4*i+3}], v2, s[{sKD}:{sKD+3}], s{44+s_} offen offset:{512*j} sc1"]
        if i % 4 == 3:
            o += ["s_add_u32 s44, s44, 28672", "s_add_u32 s45, s45, 28672"]
    o += ["@reset", "L_xZn:"] + signal(X_PUB) + stamp(2)
    Ln = lab('nn')
    o += ["s_cmp_eq_u32 s48, 0", f"!s_cbranch_scc1 {Ln}"]
    o += ["s_waitcnt vmcnt(0)", "s_mov_b64 exec, s[48:49]",
          f"buffer_store_dword v{vEp}, v3, s[{sWSD}:{sWSD+3}], s50 offen sc1", "s_mov_b64 exec, -1", f"!{Ln}:"] + stamp(3)
    o += ["s_branch L_xjoin", "@reset", "L_xY:"]
    o += fmap(t2, t1) + [f"v_lshrrev_b32 v{t1}, 5, v0", f"v_lshlrev_b32 v{t1}, 9, v{t1}", f"v_lshl_add_u32 v{t2}, v{t2}, 4, v{t1}"]
    o += [f"s_lshl_b32 s{sT0}, s{sJ}, 11", f"v_add_u32 v{t1}, s{sT0}, v{vL16}",
          f"s_add_u32 s{sT1}, s{sT0}, {STV}", f"v_add_u32 v{t2}, s{sT1}, v{t2}",
          f"v_lshrrev_b32 v2, 2, v0", f"v_lshlrev_b32 v2, 12, v2", f"v_and_b32 v3, 3, v0", f"v_lshl_add_u32 v2, v3, 9, v2",
          f"s_add_u32 s{sT0}, s{sT0}, {STV+448}", f"v_add_u32 v2, s{sT0}, v2"]
    o += [f"v_mov_b32 v{32+i}, 0x3f803f80" for i in range(4)]
    o += [f"s_lshl_b32 s{sT0}, s{sHH}, 1", f"s_add_u32 s{sT0}, s{sT0}, s{sJ}", f"s_lshl_b32 s{sT0}, s{sT0}, 4", f"s_add_u32 s{sT0}, s{sT0}, s{sRB}",
          f"s_lshl_b32 s44, s{sT0}, 11", f"s_add_u32 s44, s44, {KVP}",
          f"s_lshl_b32 s46, s{sT0}, 9", f"s_add_u32 s46, s46, {N1}"]
    o += spin_ev(R_V, 'all', HQ)
    o += ["s_mov_b64 exec, 0xffff", "ds_write_b128 v2, v[32:35]", "s_mov_b64 exec, -1"]
    o += [f"ds_read_b128 v[{96+4*i}:{96+4*i+3}], v{t2} offset:{4096*(i//2)+1024*(i%2)}" for i in range(8)] + signal(F_K)
    o += spin_ev(R_K, 'all', HQ)
    o += [f"ds_read_b128 v[{64+4*i}:{64+4*i+3}], v{t1} offset:{STK+4096*(i//2)+1024*(i%2)}" for i in range(8)] + signal(F_K)
    o += stamp(2)
    o += [mfma(32, 64 + 4 * i, 96 + 4 * i, 32 if i else None) for i in range(8)]
    o += [f"v_cvt_pk_bf16_f32 v{56+p}, v{32+2*p}, v{33+2*p}" for p in range(8)]
    o += [f"buffer_store_dwordx4 v[{56+4*e}:{59+4*e}], v{vL16}, s[{sWSD}:{sWSD+3}], s44 offen offset:{1024*e} sc1" for e in range(2)]
    o += ["s_waitcnt vmcnt(0)"]
    o += notify(46, 24, vEp, 4)
    o += stamp(3)
    o += ["s_nop 1", "@reset", "L_xjoin:", f"s_setprio {OPT.get('hprio', 2)}"]
    if OPT.get('wopf', 1):
        Lp = lab('wopf')
        o += [f"s_cmp_eq_u32 s{sJ}, 0", f"!s_cbranch_scc0 {Lp}",
              f"s_lshr_b32 s{sT0}, s2, 3", f"s_mul_i32 s{sT0}, s{sT0}, {98*128}", f"v_lshl_add_u32 v24, v0, 7, s{sT0}",
              f"v_add_u32 v25, {49*128}, v24",
              "s_mov_b32 exec_hi, 0x1ffff"]
        for p in (sAO, sBO):
            o += [f"!global_load_dword v12, v24, s[{p}:{p+1}]", f"!global_load_dword v12, v25, s[{p}:{p+1}]"]
        o += ["s_mov_b64 exec, -1", f"!{Lp}:"]
    Lq = lab('nr0')
    r0x = [f"s_cmp_ge_u32 s{sJ3}, 28", f"!s_cbranch_scc1 {Lq}"] + wait_land(ST_WA1, HQ, inline=True) + call("r0") + [f"{Lq}:"]
    Lz, Lz2 = lab('zo'), lab('zo2')
    o += [f"s_cmp_eq_u32 s{sZ}, 0", f"!s_cbranch_scc1 {Lz}"] + call("phi") + [f"{Lz}:"] + r0x
    o += [f"s_cmp_eq_u32 s{sZ}, 0", f"!s_cbranch_scc0 {Lz2}"] + call("phi") + [f"{Lz2}:"]
    o += p3_setup() + [f"s_mov_b32 s{sOBd}, 0"]
    o += [f"s_cmp_eq_u32 s{sJ}, 1", "!s_cbranch_scc1 L_x1"]
    o += stamp(4)
    o += [f"s_cmp_ge_u32 s{sJ3}, 28", "!s_cbranch_scc1 L_xfin"]
    t0, t1, t2 = 24, 25, 26
    o += srd(sXD, sBO, 401408) + [f"s_mov_b32 s{sC7}, 7168",
          f"v_lshrrev_b32 v{t0}, 3, v0", f"v_mul_u32_u24 v{vWO}, 896, v{t0}",
          f"v_bfe_u32 v{t1}, v0, 2, 1", f"v_bfe_u32 v{t2}, v0, 4, 1", f"v_xor_b32 v{t1}, v{t1}, v{t2}",
          f"v_lshl_add_u32 v{vWO}, v{t1}, 6, v{vWO}", f"v_and_b32 v{t2}, 3, v0", f"v_lshl_add_u32 v{vWO}, v{t2}, 4, v{vWO}",
          f"s_lshl_b32 s{sT0}, s{sCT}, 7", f"v_add_u32 v{vWO}, s{sT0}, v{vWO}",
          f"v_mov_b32 v{vMl}, v{vMs}", f"s_mov_b32 s{sT0}, {LANDC}", f"v_writelane_b32 v{vMl}, s{sT0}, 0"]
    d7 = [f"!s_call_b64 s[{sRet}:{sRet+1}], L_sub_d7"]

    def tryob():
        L = lab('to')
        return [f"!ds_read_b32 v24, v{vM} offset:{16*KVRDY+12}", "!s_waitcnt lgkmcnt(0)", f"!v_cmp_lt_u32 vcc, s{sOBd}, v24",
                f"!s_cbranch_vccz {L}", f"!s_call_b64 s[{sRet}:{sRet+1}], L_sub_ob", f"!s_mov_b32 s{sOBd}, 1", f"!{L}:"]

    def xb(ptr, row0, lds, n, chk=0):
        r = [f"s_mov_b32 s{sXD}, s{ptr}", f"s_mov_b32 s{sXD+1}, s{ptr+1}", f"s_mov_b32 s{sOff}, {row0*896}",
             f"s_mov_b32 m0, {lds}"]
        for i in range(n):
            r += d7 + (tryob() if chk else [])
        return r
    o += spin_ev(F_K, 'hi', HQ, ge=2) + spin_ev(E_P3, 'all', HQ) + spin_ev(KVISS, 'lo', HQ)
    o += xb(sAO, 0, WBA, 3) + xb(sAO, 224, WBA + WBAS, 3, chk=OPT.get('xchk', 1))
    o += serve_ev(GRDY)
    o += xb(sAO, 168, WBB, 1, chk=OPT.get('xchk', 1)) + xb(sAO, 224 + 168, WBB + WBBS, 1)
    o += [f"s_cmp_lg_u32 s{sOBd}, 0", "!s_cbranch_scc1 L_xt0"] + call("ob") + [f"s_mov_b32 s{sOBd}, 1", "s_waitcnt vmcnt(3)", "s_branch L_xt1",
          "L_xt0:", "s_waitcnt vmcnt(0)", "L_xt1:"] + land(ST_WB) + stamp(5)
    o += ["s_branch L_p3", "@reset", "L_x1:"]
    o += [f"s_lshl_b32 s44, s{sH}, 15", f"s_add_u32 s44, s44, {KVP}",
          f"v_lshlrev_b32 v26, 9, v0", f"s_lshl_b32 s49, s{sH}, 6", f"s_lshr_b32 s{sT0}, s{sRB}, 2",
          f"s_add_u32 s49, s49, s{sT0}", "s_lshl_b32 s49, s49, 7", f"s_add_u32 s49, s49, {N1}"]
    o += stamp(7, 'y')
    o += light_poll(25, 26, "s49", "0xffff", [f"v_cmp_ne_u32 vcc, v25, v{vEp}"])
    o += stamp(4)

    def pl(n):
        r = [f"buffer_load_dwordx4 v[{64+4*(n%16)}:{67+4*(n%16)}], v{vL16}, s[{sWSD}:{sWSD+3}], s44 offen offset:{1024*(n%4)} sc1"]
        return r + (["s_add_u32 s44, s44, 4096"] if n % 4 == 3 else [])
    for n in range(16):
        o += pl(n)
    for n in range(32):
        o += [mfma(32, IDF + 4 * (n % 2), 64 + 4 * (n % 16), 32 if n else None)]
        if n < 16:
            o += pl(n + 16)
    o += stamp(9, 'y')
    o += [f"v_cvt_pk_bf16_f32 v{96+p}, v{32+2*p}, v{33+2*p}" for p in range(8)]
    o += [f"v_add_u32 v24, {KVF}, v{vL16}",
          f"ds_write_b128 v24, v[96:99]", f"ds_write_b128 v24, v[100:103] offset:1024"] + signal(KVRDY)
    o += call("ob") + [f"s_mov_b32 s{sOBd}, 1"]
    o += stamp(5)
    o += [f"s_cmp_ge_u32 s{sJ3}, 28", "!s_cbranch_scc1 L_xend"]
    o += ["s_branch L_p3", "@reset", "L_xfin:"] + call("ob") + ["L_xend:"] + stamp_flush(20, 0) + ["s_endpgm"]
    return o


HEADER = f"""; Fused sliding-window attention + linear attention + gated output projection (gfx950).
; One persistent launch: 256 workgroups x 8 waves (4 compute, 2 loader, 2 auxiliary).
; @launch grid=(256,1,1) block=(512,1,1) lds=163840
.amdgcn_target "amdgcn-amd-amdhsa--gfx950"
.text
.globl {NAME}_kernel
.p2align 8
.type {NAME}_kernel,@function
{NAME}_kernel:
"""
FOOTER = f"""
.section .rodata,"a"
.p2align 6
.amdhsa_kernel {NAME}_kernel
  .amdhsa_next_free_vgpr 256
  .amdhsa_next_free_sgpr 102
  .amdhsa_accum_offset 256
  .amdhsa_group_segment_fixed_size 0
  .amdhsa_kernarg_size 80
  .amdhsa_user_sgpr_count 2
  .amdhsa_user_sgpr_kernarg_segment_ptr 1
  .amdhsa_system_sgpr_workgroup_id_x 1
.end_amdhsa_kernel
"""


def main():
    body = prologue()
    SLEEP[0] = OPT.get('sleep', 1)
    l = l_wave()
    x = x_wave()
    p3 = phase3()
    sub = subroutines()
    SLEEP[0] = 0
    c = c_wave()
    rep = []
    lines = finalize(body + l + x + p3 + sub + c, rep)
    lines += ['    ' + s if not s.endswith(':') else s for s in slow]
    lines += ["L_abort:", "L_exit:", "    s_endpgm", "L_end:"]
    open(sys.argv[1], 'w').write(HEADER + "\n".join(lines) + FOOTER)
    big = [r for r in rep if r[0] >= 3]
    print("nops inserted:", len(rep), "total states", sum(r[0] for r in rep))
    for r in big:
        print("   ", r)


main()
```

```python
import sys, math, struct
from asmlib import finalize, merge

NAME = "gated_mix__sliding_block__linear_attn_block__prompt"
OPT = dict(stamps=0, l1=16, l3=8, prefetch=2, touch=0, refetch=0, wopf=0)
for a in sys.argv[2:]:
    k, v = a.split('=')
    OPT[k] = int(v)


def fhex(x):
    return '0x%08x' % struct.unpack('<I', struct.pack('<f', x))[0]


LOG2E = math.log2(math.e)
KSCALE = LOG2E * 28 ** -0.5
SPIN = 60000

def XR(c): return 16384 * (c % 4)
def WR(c): return 65536 + 16384 * (c % 4)
QLOC = [131072 + 4096 * c for c in range(6)] + [114688] + [114688 + 4096 * c for c in (1, 2, 3)] + [49152 + 4096 * c for c in range(4)]
QBB = 114688
KL = 16384
VL = 131072
STQ, STV, STK = 0, 16384, 32768
STG, STGS = 65536, 21504
WBA, WBAS = 40960, 67584
WBB, WBBS = 0, 7168
MISC = 158720
LANDC = MISC + 256
JUNK = MISC + 512
GL = MISC + 1536
KVF = MISC + 2560
E_PA, X_PUB, E_P2, E_P3, R_K, R_V, R_Q, E_OA, F_K, E_P3A, R1, GRDY, KVRDY, EPOCH, KVISS, STI = range(16)
ST_K, ST_V, ST_WA1, ST_WB, ST_WA2 = 21, 22, 23, 24, 25

KG, VG, OA, OB, KVP, KVT = 0x000000, 0x200000, 0x400000, 0x600000, 0x800000, 0xA00000
FK, FV, N1, N2, NA, NB, EPW = 0xA40000, 0xA48000, 0xA60000, 0xA80000, 0xAA0000, 0xAC0000, 0xA50000
STAMPS = 0xB00000
WS_SIZE = 0x1000000

sX, sAW, sAO, sBW, sBO, sGW, sOUT, sDBG, sWS = 4, 6, 8, 12, 14, 16, 18, 20, 22
sWave, sH, sRB, sPar, sHH = 24, 25, 26, 27, 28
sT0, sT1, sT2, sTO = 29, 30, 31, 3
sZ = 74
sWSD = 32
sStamp = 76
sJ3, sCT, sTB = 100, 10, 11
sW4 = 101

_lab = [0]
slow = []
ROLE = ['P']
SLEEP = [0]
vL16, vM, vOne, vF, vMs = 1, 10, 11, 12, 13
vFq = 252


def lab(p):
    _lab[0] += 1
    return f"L_{p}_{_lab[0]}"


def srd(d, ptr, size, add=0):
    o = []
    if ptr == sWS:
        add += OPT.get('wsoff', 0) << 20
    if add:
        o += [f"s_add_u32 s{d}, s{ptr}, {add}", f"s_addc_u32 s{d+1}, s{ptr+1}, 0"]
    else:
        o += [f"s_mov_b32 s{d}, s{ptr}", f"s_mov_b32 s{d+1}, s{ptr+1}"]
    o += [f"s_mov_b32 s{d+2}, {size}", f"s_mov_b32 s{d+3}, 0x20000"]
    return o


def stamp(i, kind=''):
    if not OPT['stamps']:
        return []
    alt = OPT.get('alt', 0)
    if kind == 'z':
        return [f"!s_memtime s[{sStamp+2*i}:{sStamp+2*i+1}]"] if alt == 5 else []
    if kind == 's':
        return [f"!s_memtime s[{sStamp+2*i}:{sStamp+2*i+1}]"] if alt == 9 else []
    if alt == 9 and 4 <= i <= 8:
        return []
    if ROLE[0] == 'L' and (alt == 1) != (kind == 'f'):
        return []
    if kind == 'z':
        return [f"!s_memtime s[{sStamp+2*i}:{sStamp+2*i+1}]"] if alt == 5 else []
    if ROLE[0] == 'H' and alt in (1, 3, 4, 5):
        return []
    if kind == 'y' and alt != 4:
        return []
    if kind == 'x' and alt != 3:
        return []
    if ROLE[0] == 'C' and (alt == 2) != (kind == 'f'):
        return []
    return [f"!s_memtime s[{sStamp+2*i}:{sStamp+2*i+1}]"]


def stamp_flush(vt, vlane):
    if not OPT['stamps'] or 'pw' in OPT:
        return []
    o = ["s_mov_b64 exec, -1", "s_waitcnt lgkmcnt(0)", f"v_mov_b32 v{vt}, 0"]
    for i in range(12):
        o.append(f"v_writelane_b32 v{vt}, s{sStamp+2*i}, {i}")
    o.append(f"v_writelane_b32 v{vt}, s0, 12")
    o += [f"s_lshl_b32 s{sT0}, s1, 3", f"s_add_u32 s{sT0}, s{sT0}, s{sWave}", f"s_lshl_b32 s{sT0}, s{sT0}, 8",
          f"s_add_u32 s{sT0}, s{sT0}, {STAMPS}",
          f"v_lshlrev_b32 v{vt+1}, 2, v{vlane}",
          f"buffer_store_dword v{vt}, v{vt+1}, s[{sWSD}:{sWSD+3}], s{sT0} offen"]
    return o


def _tmo():
    return [f"s_add_u32 s{sTO}, s{sTO}, 1", f"s_cmp_gt_u32 s{sTO}, {SPIN}", "s_cbranch_scc1 L_abort"]


def _ev_read(ev, which, q):
    if which == 'all':
        return [f"ds_read_b128 v[{q}:{q+3}], v{vM} offset:{16*ev}"], \
               [f"v_min3_u32 v{q}, v{q}, v{q+1}, v{q+2}", f"v_min_u32 v{q}, v{q}, v{q+3}"]
    if which in ('hi', 'lo'):
        return [f"ds_read_b64 v[{q}:{q+1}], v{vM} offset:{16*ev + (8 if which == 'hi' else 0)}"], \
               [f"v_min_u32 v{q}, v{q}, v{q+1}"]
    if which == 'own':
        return [f"ds_read_b32 v{q}, v{vOwn} offset:{16*ev}"], []
    return [f"ds_read_b32 v{q}, v{vM} offset:{16*ev + 4*which}"], []


def spin_ev(ev, which, q=None, ge=1):
    q = vFq if q is None else q
    L, L2 = lab('sp'), lab('spx')
    rd, red = _ev_read(ev, which, q)
    o = ["s_waitcnt lgkmcnt(0)", f"!s_mov_b32 s{sTO}, 0", f"!{L}:"]
    o += ["!" + x for x in rd + _tmo() + ["s_waitcnt lgkmcnt(0)"] + red]
    if SLEEP[0]:
        o += [f"!v_cmp_le_u32 vcc, {ge}, v{q}", f"!s_cbranch_vccnz {L2}", f"!!s_sleep {SLEEP[0]}", f"!!s_branch {L}", f"!{L2}:"]
    else:
        o += [f"!v_cmp_gt_u32 vcc, {ge}, v{q}", f"!s_cbranch_vccnz {L}"]
    return o


def check_ev(ev, which, q):
    Ls, Lb = lab('slow'), lab('back')
    rd, red = _ev_read(ev, which, q)
    slow.extend([f"{Ls}:", f"s_mov_b32 s{sTO}, 0", f"{Ls}_s:"] + rd + _tmo() + ["s_waitcnt lgkmcnt(0)"] + red +
                [f"v_cmp_eq_u32 vcc, 0, v{q}", f"s_cbranch_vccnz {Ls}_s", f"s_branch {Lb}"])
    return rd, red + [f"v_cmp_eq_u32 vcc, 0, v{q}", f"!s_cbranch_vccnz {Ls}", f"!{Lb}:"]


def wait_land(st, q=None, inline=False, n=2):
    q = vFq if q is None else q
    rd = f"ds_read_b32 v{q}, v{vM} offset:{256 + 4*st}"
    if inline:
        L, L2 = lab('wl'), lab('wlx')
        o = ["s_waitcnt lgkmcnt(0)", f"!s_mov_b32 s{sTO}, 0", f"!{L}:"] + ["!" + x for x in [rd] + _tmo() + ["s_waitcnt lgkmcnt(0)"]]
        if SLEEP[0]:
            return o + [f"!v_cmp_eq_u32 vcc, {n}, v{q}", f"!s_cbranch_vccnz {L2}", f"!!s_sleep {SLEEP[0]}", f"!!s_branch {L}", f"!{L2}:"]
        return o + [f"!v_cmp_ne_u32 vcc, {n}, v{q}", f"!s_cbranch_vccnz {L}"]
    Ls, Lb = lab('slow'), lab('back')
    slow.extend([f"{Ls}:", f"s_mov_b32 s{sTO}, 0", f"{Ls}_s:", rd] + _tmo() +
                ["s_waitcnt lgkmcnt(0)", f"v_cmp_ne_u32 vcc, {n}, v{q}", f"s_cbranch_vccnz {Ls}_s", f"s_branch {Lb}"])
    return [rd], [f"v_cmp_ne_u32 vcc, {n}, v{q}", f"!s_cbranch_vccnz {Ls}", f"!{Lb}:"]


vMl = 12


def land(st):
    return [f"ds_add_u32 v{vMl}, v{vOne} offset:{4*st}"]


def signal(ev):
    return [f"ds_add_u32 v{vMs}, v{vOne} offset:{16*ev}"]


def mfma(d, a, b, c):
    cs = f"v[{c}:{c+15}]" if isinstance(c, int) and c >= 0 else "0"
    return f"v_mfma_f32_32x32x16_bf16 v[{d}:{d+15}], v[{a}:{a+3}], v[{b}:{b+3}], {cs}"


def tr(d, a, off, tag=None):
    return f"ds_read_b64_tr_b16 v[{d}:{d+1}], v{a} offset:{off}" + (f" ;@tag={tag}" if tag else "")


vOwn = 9


def common_setup():
    return [f"v_lshlrev_b32 v{vL16}, 4, v0", f"v_mov_b32 v{vM}, {MISC}", f"v_mov_b32 v{vOne}, 1",
            f"s_and_b32 s{sW4}, s{sWave}, 3",
            f"v_lshlrev_b32 v{vMs}, 2, v0", f"v_add_u32 v{vMs}, {JUNK}, v{vMs}",
            f"s_lshl_b32 s{sT0}, s{sW4}, 2", f"s_add_u32 s{sT0}, s{sT0}, {MISC}",
            f"v_writelane_b32 v{vMs}, s{sT0}, 0"]


def prologue():
    o = []
    o += ["s_load_dwordx4 s[4:7], s[0:1], 0", "s_load_dwordx8 s[12:19], s[0:1], 32",
          "s_load_dwordx4 s[20:23], s[0:1], 64", "s_load_dwordx2 s[8:9], s[0:1], 16"]
    o += stamp(0)
    if OPT['stamps']:
        o += ["!s_memrealtime s[0:1]"]
    if OPT.get('until'):
        o += ["!s_memtime s[98:99]"]
    o += ["s_cmp_ge_u32 s2, 256", "!s_cbranch_scc1 L_exit",
          "v_lshrrev_b32 v1, 6, v0", "v_and_b32 v0, 63, v0", f"v_xor_b32 v1, {OPT.get('wswap', 4)}, v1", "s_nop 0",
          f"v_readfirstlane_b32 s{sWave}, v1"] + code_prefetch() + [
          f"s_and_b32 s{sT0}, s2, 7", f"s_lshr_b32 s{sT1}, s2, 3",
          f"s_and_b32 s{sH}, s{sT0}, 1", f"s_lshl_b32 s{sH}, s{sH}, 3",
          f"s_and_b32 s{sT2}, s{sT1}, 7", f"s_add_u32 s{sH}, s{sH}, s{sT2}",
          f"s_lshr_b32 s{sRB}, s{sT0}, 1", f"s_lshl_b32 s{sRB}, s{sRB}, 2",
          f"s_lshr_b32 s{sT2}, s{sT1}, 3", f"s_add_u32 s{sRB}, s{sRB}, s{sT2}",
          f"s_and_b32 s{sPar}, s{sH}, 1", f"s_lshr_b32 s{sHH}, s{sH}, 1",
          f"s_and_b32 s{sT0}, s2, 1", f"s_xor_b32 s{sZ}, s{sPar}, s{sT0}", f"s_xor_b32 s{sZ}, s{sZ}, 1"]
    o += common_setup()
    o += [f"s_cmp_lt_u32 s{sWave}, 4", "!s_cbranch_scc1 L_cwave",
          f"s_cmp_ge_u32 s{sWave}, 6", "!s_cbranch_scc1 L_xwave"]
    return o


vXA, vW0, vW1, vQB, vQA, vLow, vSt = 2, 6, 7, 8, 9, 14, 15
PK = 16
WB = 32
MK = 56
accA, accB = 64, 96
XF = 128
QF = 240
vMA, vMB = 248, 249
TMP = 250
sMask = 40
sL2E, sEps, sKS, sTile, sSt = 72, 73, 39, 75, 36


def c_setup():
    o = []
    lo, hh, t0, t1, t2 = 20, 21, 22, 23, 24
    o += [f"v_and_b32 v{lo}, 31, v0", f"v_lshrrev_b32 v{hh}, 5, v0",
          f"s_lshl_b32 s{sTile}, s{sRB}, 2", f"s_add_u32 s{sTile}, s{sTile}, s{sWave}",
          f"s_mov_b32 s{sL2E}, {fhex(LOG2E)}", f"s_mov_b32 s{sEps}, {fhex(1e-6)}", f"s_mov_b32 s{sKS}, {fhex(KSCALE)}"]
    o += [f"v_bfe_u32 v{t0}, v0, 1, 3", f"v_xor_b32 v{t0}, v{t0}, v{hh}",
          f"s_lshl_b32 s{sT0}, s{sWave}, 12",
          f"v_add_u32 v{vSt}, s{sT0}, v{vL16}",
          f"v_lshlrev_b32 v{t1}, 7, v{lo}", f"v_add_u32 v{t1}, s{sT0}, v{t1}"]
    for s in range(4):
        o += [f"v_xor_b32 v{t2}, {2*s}, v{t0}", f"v_lshl_add_u32 v{vXA+s}, v{t2}, 4, v{t1}"]
    r, cg, row = 25, 26, 27
    o += [f"v_bfe_u32 v{r}, v0, 2, 2", f"v_bfe_u32 v{t0}, v0, 4, 1", f"v_and_b32 v{cg}, 3, v0",
          f"v_lshl_add_u32 v{cg}, v{t0}, 2, v{cg}",
          f"v_lshl_add_u32 v{row}, v{hh}, 3, v{r}"]
    o += [f"v_lshrrev_b32 v{t0}, 1, v{r}",
          f"v_lshlrev_b32 v{t1}, 7, v{row}", f"v_add_u32 v{t1}, 65536, v{t1}",
          f"v_lshl_add_u32 v{vW0}, v{t0}, 6, v{t1}",
          f"v_xor_b32 v{vW1}, 64, v{vW0}",
          f"v_lshl_add_u32 v{vW0}, v{cg}, 3, v{vW0}",
          f"s_xor_b32 s{sT0}, s{sZ}, 1",
          f"v_add_u32 v{t2}, s{sT0}, v{cg}", f"v_and_b32 v{t2}, 7, v{t2}",
          f"v_lshl_add_u32 v{vW1}, v{t2}, 3, v{vW1}"]
    o += [f"v_lshlrev_b32 v{t1}, 6, v{row}",
          f"v_add_u32 v{t2}, s{sPar}, v{cg}", f"v_and_b32 v{t2}, 7, v{t2}",
          f"v_lshl_add_u32 v{vQB}, v{t2}, 3, v{t1}", f"v_add_u32 v{vQB}, {QBB}, v{vQB}",
          f"v_and_b32 v{t0}, 1, v{cg}", f"v_lshlrev_b32 v{t0}, 1, v{t0}",
          f"v_bfe_u32 v{t2}, v{cg}, 1, 1", f"v_or_b32 v{t0}, v{t0}, v{t2}",
          f"v_and_b32 v{t2}, 4, v{cg}", f"v_or_b32 v{t0}, v{t0}, v{t2}",
          f"v_lshl_add_u32 v{vQA}, v{t0}, 3, v{t1}", f"v_add_u32 v{vQA}, {QBB}, v{vQA}"]
    o += [f"v_add_u32 v{vLow}, -1, v{hh}",
          f"s_sub_u32 s{sT0}, s{sPar}, 1",
          f"v_not_b32 v{t0}, v{vLow}",
          f"v_or_b32 v{vMA}, s{sT0}, v{t0}",
          f"s_not_b32 s{sT0}, s{sT0}",
          f"v_or_b32 v{vMB}, s{sT0}, v{vLow}"]
    o += [f"v_lshlrev_b32 v{t0}, 2, v{hh}", f"v_sub_u32 v{t0}, v{lo}, v{t0}"]
    for rr in range(16):
        b = 8 * (rr >> 2) + (rr & 3)
        o.append(f"v_cmp_le_i32 s[{sMask+2*rr}:{sMask+2*rr+1}], {b}, v{t0}")
    o += [f"v_mov_b32 v{t1}, 0xffff", f"v_mov_b32 v{t2}, 0xffff0000"]
    for p in range(8):
        o += [f"v_cndmask_b32 v{MK+p}, 0, v{t1}, s[{sMask+4*p}:{sMask+4*p+1}]",
              f"v_cndmask_b32 v{t0}, 0, v{t2}, s[{sMask+4*p+2}:{sMask+4*p+3}]",
              f"v_or_b32 v{MK+p}, v{MK+p}, v{t0}"]
    return o


ZD = OPT.get('zd', 1)
sKD = 8


def gemm_frags(isY):
    fr = []
    for k in range(28):
        c, s = divmod(k, 4)
        order = [(0, 0), (0, 1), (1, 0), (1, 1)] if k < 27 else [(1, 0), (1, 1), (0, 0), (0, 1)]
        for i, (p, j) in enumerate(order):
            fr.append(dict(step=c, addr=(vW0, vW1)[j], off=XR(c) + 8192 * p + s * 2048, du=512, k=k,
                           acc=(accA, accB)[p] + 16 * j, wfirst=(p == 0 and not isY), pre=[],
                           xread=(f"ds_read_b128 v[{XF+4*k}:{XF+4*k+3}], v{vXA+s} offset:{XR(c)}" if i == 0 else None)))
    for q, a in enumerate((vQB, vQA)):
        for k in range(28):
            c, s = divmod(k, 4)
            loc = QLOC[7 * q + c]
            base = QBB if loc >= QBB else 49152
            pre = [f"v_subrev_u32 v{vQA}, {QBB-49152}, v{vQA}"] if (q, k) == (1, 12) else []
            fr.append(dict(step=7 + 7 * q + c, addr=a, off=loc - base + s * 1024, du=256, k=k,
                           acc=accB + 16 * q, wfirst=True, pre=pre, xread=None))
    return fr


def need_step(st):
    if st < 7:
        return st
    base = 7 if st < 14 else 14
    return base + {0: 0, 1: 2, 2: 2, 3: 4, 4: 4, 5: 6, 6: 6}[st - base]


def gemm_slots(isY):
    fr = gemm_frags(isY)
    N = len(fr)
    D = 5
    slots = []
    issued = 0
    checked = set()
    early = {}
    for n in range(N):
        cur = []
        f = fr[n]
        lim = 3 if n == 0 else min(n + D, N - 1)
        if not isY and ZD and n < 112:
            lim = min(lim, 111)
        if not isY and ZD and n == 112:
            lim = 114
        while issued <= lim:
            g = fr[issued]
            st = need_step(g['step'])
            if st not in checked:
                checked.add(st)
                if st == 0:
                    cur += stamp(8, 's') + wait_land(st, inline=True) + stamp(1)
                else:
                    if st not in early:
                        rd, early[st] = wait_land(st, q=vFq + 2)
                        cur += rd
                    cur += early[st]
                if st == 5:
                    cur += ["s_waitcnt vmcnt(0)"]
            b = WB + 4 * (issued % 6)
            cur += g['pre']
            if g['xread']:
                cur.append(g['xread'])
            cur += [tr(b, g['addr'], g['off']), tr(b + 2, g['addr'], g['off'] + g['du'], tag=f"f{issued}")]
            issued += 1
            last_of_step = issued == N or fr[issued]['step'] != g['step']
            if last_of_step:
                ev = {0: E_PA, 1: E_PA, 2: E_PA, 3: E_PA, 6: E_P2, 13: E_P3A, 20: E_P3}.get(g['step'])
                if ev is not None:
                    cur += signal(ev)
        if issued + 1 < N:
            st = need_step(fr[issued + 1]['step'])
            if not isY and ZD and st == 7:
                early[st] = wait_land(7, inline=True)
            if st > 0 and st not in early:
                rd, early[st] = wait_land(st, q=vFq + 2)
                cur += rd
        if n % 2 == 0:
            cur.append(f"@wait_ds f{n+1}")
        b = WB + 4 * (n % 6)
        x = XF + 4 * f['k']
        A, B = (b, x) if f['wfirst'] else (x, b)
        cur.append(mfma(f['acc'], A, B, f['acc'] if f['k'] else None))
        slots.append(cur)
    if OPT.get('alt') == 2:
        for i in range(11):
            n = OPT['cst'] + i * OPT.get('cstep', 4)
            if n < len(slots):
                slots[n] = stamp(i + 1, 'f') + slots[n]
    return slots


def phi_pair(a, b, ta, tb, dst, l2e, eps):
    return [f"v_mul_f32 v{ta}, s{l2e}, v{a}", f"v_mul_f32 v{tb}, s{l2e}, v{b}",
            f"v_exp_f32_e64 v{ta}, v{ta} clamp", f"v_exp_f32_e64 v{tb}, v{tb} clamp",
            f"v_max_f32 v{a}, 0, v{a}", f"v_max_f32 v{b}, 0, v{b}",
            f"v_add_f32 v{a}, v{a}, v{ta}", f"v_add_f32 v{b}, v{b}, v{tb}",
            f"v_add_f32 v{a}, s{eps}, v{a}", f"v_add_f32 v{b}, s{eps}, v{b}",
            f"v_cvt_pk_bf16_f32 v{dst}, v{a}, v{b}"]


def c_gemm(isY):
    slots = gemm_slots(isY)
    pa, p3a, p3b = slots[:112], slots[112:140], slots[140:168]
    o = []
    for s in pa:
        o += s
    o += stamp(2)
    wr = lambda d, i, base: f"ds_write_b128 v{vSt}, v[{d}:{d+3}] offset:{base + 1024*i}"
    vc = lambda j: [f"v_cvt_pk_bf16_f32 v{PK+8*j+i}, v{accB+16*j+2*i}, v{accB+16*j+2*i+1}" for i in range(8)]
    vw = [wr(PK + 4 * i, i, STV) for i in range(4)]
    if not isY and ZD:
        o += srd(sKD, sWS, WS_SIZE) + [f"s_cmp_eq_u32 s{sH}, 15", f"s_cselect_b32 s{sKD+2}, 0, s{sKD+2}",
              f"s_mul_i32 s36, s{sTile}, 28672", f"s_lshl_b32 s{sT0}, s{sHH}, 10", f"s_add_u32 s37, s36, s{sT0}",
              f"s_add_u32 s37, s37, {VG}", "s_add_u32 s38, s37, 14336", f"s_lshl_b32 s{sT0}, s{sHH}, 12", f"s_add_u32 s36, s36, s{sT0}"]
        for j in range(2):
            a = accA + 16 * j
            for i in range(8):
                o += [f"v_mul_f32 v{a+2*i}, s{sKS}, v{a+2*i}", f"v_mul_f32 v{a+2*i+1}, s{sKS}, v{a+2*i+1}",
                      f"v_cvt_pk_bf16_f32 v{a+i}, v{a+2*i}, v{a+2*i+1}"]
            o += [f"v_permlane32_swap_b32 v{a+x}, v{a+x+2}" for x in (0, 1, 4, 5)]
            o += [f"buffer_store_dwordx4 v[{a+4*e}:{a+4*e+3}], v{vL16}, s[{sKD}:{sKD+3}], s36 offen offset:{1024*(2*j+e)} sc1 ;@tag=kst" for e in range(2)]
        o += vc(0) + vc(1) + [f"v_lshrrev_b32 v{TMP}, 5, v0", f"v_mul_u32_u24 v{TMP}, {7168-512}, v{TMP}", f"v_add_u32 v{TMP}, v{TMP}, v{vL16}"]
        o += [f"buffer_store_dwordx4 v[{PK+4*i}:{PK+4*i+3}], v{TMP}, s[{sKD}:{sKD+3}], s{37+i%2} offen offset:{512*(i//2)} sc1 ;@tag=vst" for i in range(4)]
        o += signal(STI) + ["@wait_vm kst"] + signal(R_K) + ["@wait_vm vst"] + signal(R_V)
        f = []
        per = 1
    elif not isY:
        o += vc(0)
        f = []
        for j in range(2):
            a = accA + 16 * j
            for i in range(8):
                f += [f"v_mul_f32 v{a+2*i}, s{sKS}, v{a+2*i}", f"v_mul_f32 v{a+2*i+1}, s{sKS}, v{a+2*i+1}",
                      f"v_cvt_pk_bf16_f32 v{a+i}, v{a+2*i}, v{a+2*i+1}"]
            f += [f"v_permlane32_swap_b32 v{a+x}, v{a+x+2}" for x in (0, 1, 4, 5)]
            f += [wr(a + 4 * e, 2 * j + e, STK) for e in range(2)]
        f += signal(R_K) + vc(1) + vw + signal(R_V)
        per = OPT.get('kper', 40)
    else:
        o += vc(0)
        f = vc(1) + vw + signal(R_V)
        for p in range(16):
            a = accA + 16 * (p // 8)
            i = p % 8
            f += phi_pair(a + 2 * i, a + 2 * i + 1, TMP, TMP + 1, a + i, sL2E, sEps)
            if p % 4 == 3:
                f.append(wr(a + i - 3, p // 4, STK))
        f += signal(R_K)
        per = OPT.get('yper', 40)
    o += merge(p3a, f, start=0, per=per)
    o += stamp(4)
    f = [f"v_cvt_pk_bf16_f32 v{PK+i}, v{accB+2*i}, v{accB+2*i+1}" for i in range(8)]
    f += [wr(PK, 0, STQ), wr(PK + 4, 1, STQ)] + signal(R_Q)
    o += merge(p3b, f, start=4, per=2)
    o += stamp(5)
    a = accB + 16
    o += [f"v_cvt_pk_bf16_f32 v{QF+i}, v{a+2*i}, v{a+2*i+1}" for i in range(8)]
    o += [f"v_and_b32 v{QF}, v{QF}, v{vMA}", f"v_and_b32 v{QF+1}, v{QF+1}, v{vMA}",
          f"v_and_b32 v{QF+6}, v{QF+6}, v{vMB}", f"v_and_b32 v{QF+7}, v{QF+7}, v{vMB}"]
    return o


CM, SA, SB, SC, SF, SX = 16, 32, 64, 80, 96, 112
KFR = 128
PA, PB, PF = 200, 208, 216
OACC = 96
VF = (224, 232)
vKA, vVA, vMx, vG = 2, 3, 4, 5
NEG = '0xf149f2ca'


def attention(guard):
    sI0 = sSt
    o = []

    def kread(i):
        b = KFR + 8 * i
        return [f"ds_read_b128 v[{b+4*s}:{b+4*s+3}], v{vKA} offset:{2048*i+1024*s} ;@tag=k{i}" for s in range(2)]

    def vread(i, buf):
        return [f"ds_read_b128 v[{buf+4*s}:{buf+4*s+3}], v{vVA} offset:{2048*i+1024*s} ;@tag=v{i}" for s in range(2)]

    def qk(d, i, c):
        b = KFR + 8 * i
        return [mfma(d, b, QF, c), mfma(d, b + 4, QF + 4, d)]

    def setc(i, src):
        L, Lb = lab('g'), lab('gb')
        slow.extend([f"{L}:", "s_nop 7"] + [f"v_mov_b32 v{CM+r}, {src}" for r in range(16)] + [f"s_branch {Lb}"])
        return [f"s_cmp_eq_u32 s{sI0}, {i}", f"!s_cbranch_scc1 {L}", f"!{Lb}:"]

    def maxes(s, first):
        m = []
        if first:
            m.append(f"v_max3_f32 v{vMx}, v{s}, v{s+1}, v{s+2}")
            rest = list(range(3, 16))
        else:
            rest = list(range(16))
        while rest:
            if len(rest) >= 2:
                m.append(f"v_max3_f32 v{vMx}, v{vMx}, v{s+rest[0]}, v{s+rest[1]}")
                rest = rest[2:]
            else:
                m.append(f"v_max_f32 v{vMx}, v{vMx}, v{s+rest[0]}")
                rest = []
        return m

    b1 = {0: SF, 8: SC}
    bufs = {}
    for i in range(1, 8):
        b1[i] = (SA, SB, SX)[i % 3]
        bufs[i] = (SA, SB)[i % 2]
    mrg = [f"v_cndmask_b32 v{SC+r}, v{SF+r}, v{SC+r}, s[{sMask+2*r}:{sMask+2*r+1}]" for r in range(16)]
    t = TMP
    cross = [f"v_mov_b32 v{t}, v{vMx}", f"v_permlane32_swap_b32 v{t}, v{vMx}",
             f"v_max_f32 v{vMx}, v{vMx}, v{t}", f"v_sub_f32 v{vMx}, 0, v{vMx}"]
    vrd, vchk = wait_land(ST_V)
    if guard:
        o += [f"v_mov_b32 v{CM+r}, {NEG}" for r in range(16)]
        o += wait_land(ST_K, inline=True)
        o += stamp(6)
        order = list(range(9))
        work = {i: maxes(b1[i], first=(i == 1)) for i in range(1, 8)}
        work[8] = mrg + maxes(SC, first=False)
        work[0] = []
        o += kread(order[0]) + kread(order[1]) + kread(order[2])
        q = []
        for n, i in enumerate(order):
            o += setc(i, "0")
            m = qk(b1[i], i, CM)
            nxt = kread(order[n + 3]) if n + 3 < 9 else []
            o += [f"@wait_ds k{i}", m[0]] + q[:4] + [m[1]] + nxt
            q = q[4:]
            if n >= 1:
                q = q + work[order[n - 1]]
            must = len(q) - len(work[order[n - 1]]) if n >= 1 else 0
            take = max(must, 4)
            o += q[:take]
            q = q[take:]
        o += vrd + q + work[order[-1]][:4] + vchk
        o += vread(0, VF[0]) + vread(8, VF[1])
        o += work[order[-1]][4:] + cross
        o += stamp(7)
        o += [f"v_mov_b32 v{CM+r}, {NEG}" for r in range(16)] + [f"s_max_u32 s{sI0}, s{sI0}, 1"]
        o += setc(1, f"v{vMx}")
    else:
        o += wait_land(ST_K, inline=True)
        o += stamp(6)
        o += kread(0) + kread(8) + kread(1) + kread(2)
        o += ["@wait_ds k0"] + qk(SF, 0, None) + ["@wait_ds k8"] + qk(SC, 8, None)
        for i in range(3, 8):
            o += kread(i)
        Lf, Lfb, Ln, Lnb = lab('nf'), lab('nfb'), lab('nc'), lab('ncb')
        slow.extend([f"{Lf}:", "s_nop 7"] + [f"v_mov_b32 v{SF+r}, {NEG}" for r in range(16)] + [f"s_branch {Lfb}"])
        slow.extend([f"{Ln}:"] + [f"v_mov_b32 v{CM+r}, {NEG}" for r in range(16)] + [f"s_branch {Lnb}"])
        o += [f"s_cmp_lg_u32 s{sI0}, 0", f"!s_cbranch_scc1 {Lf}", f"!{Lfb}:"]
        o += mrg + maxes(SC, first=True) + cross
        o += stamp(7)
        o += [f"v_mov_b32 v{CM+r}, v{vMx}" for r in range(16)]
        o += [f"s_cmp_gt_u32 s{sI0}, 1", f"!s_cbranch_scc1 {Ln}", f"!{Lnb}:"]

    def expcvt(s, p, sub):
        e = []
        for r in range(16):
            if sub:
                e.append(f"v_add_f32 v{s+r}, v{s+r}, v{vMx}")
        for r in range(16):
            e.append(f"v_exp_f32 v{s+r}, v{s+r}")
            if r % 2 == 1 and r >= 3:
                e.append(f"v_cvt_pk_bf16_f32 v{p+(r-3)//2}, v{s+r-3}, v{s+r-2}")
        e.append(f"v_cvt_pk_bf16_f32 v{p+7}, v{s+14}, v{s+15}")
        return e

    def spread(mf, va):
        r = []
        n = len(mf)
        k = 0
        for idx, g in enumerate(mf):
            r += g
            want = (len(va) * (idx + 1)) // n - k
            r += va[k:k + want]
            k += want
        return r

    ev = expcvt(SC, PA, True)
    ev += [x for p in range(8) for x in (f"v_and_b32 v{PB+p}, v{PA+p}, v{MK+p}", f"v_xor_b32 v{PF+p}, v{PA+p}, v{PB+p}")]
    q1 = qk(bufs[1], 1, CM)
    if guard:
        o += spread([[q1[0]], [q1[1]]], ev)
    else:
        o += spread([[q1[0]], [q1[1]] + vrd], ev[:-16]) + vchk + vread(0, VF[0]) + vread(8, VF[1]) + ev[-16:]
    prev_pv = [["@wait_ds v8", mfma(OACC, VF[0], PF, None)], [mfma(OACC, VF[0] + 4, PF + 4, OACC)] + vread(1, VF[0]),
               [mfma(OACC, VF[1], PB, OACC)], [mfma(OACC, VF[1] + 4, PB + 4, OACC)] + vread(2, VF[1])]
    gearly, glate = check_ev(GRDY, 'own', vG)
    for i in range(1, 8):
        P = (PB, PA)[i % 2]
        seq = []
        if i + 1 <= 7:
            o += setc(i + 1, f"v{vMx}")
            nq = qk(bufs[i + 1], i + 1, CM)
            seq += [[nq[0]], [nq[1]]]
        seq += prev_pv
        if i == 6:
            seq[-1] = seq[-1] + gearly
        if i == 7:
            seq[0] = glate + [f"ds_read_b32 v{vG}, v{vGA}", f"ds_read_b32 v{vEc}, v{vM} offset:{16*EPOCH}"] + seq[0]
        o += spread(seq, expcvt(bufs[i], P, False))
        vb = VF[(i + 1) % 2]
        prev_pv = [[f"@wait_ds v{i}", mfma(OACC, vb, P, OACC)],
                   [mfma(OACC, vb + 4, P + 4, OACC)] + (vread(i + 2, vb) if i + 2 <= 7 else [])]
    o += prev_pv[0] + prev_pv[1]
    return o


vGA, vEc = 8, 6
CPARK = (7, 12, 14, 248, 249)


def finish_o(A, D, vscale, t, u, soff, vtag, snot, eps=None, hook=None):
    o = [f"v_mov_b32 v{t}, v{A+15}", f"v_mov_b32 v{u}, v{A+15}", f"v_permlane32_swap_b32 v{t}, v{u}"] + (hook or [])
    if eps is not None:
        o += [f"v_add_f32 v{u}, s{eps}, v{u}"]
    o += [f"v_rcp_f32 v{u}, v{u}", f"v_mov_b32 v{t}, 0xffff", f"v_mul_f32 v{u}, v{u}, v{vscale}"]
    for p in range(8):
        o += [f"v_mul_f32 v{A+2*p}, v{A+2*p}, v{u}"]
        if p % 4 != 3:
            o += [f"v_mul_f32 v{A+2*p+1}, v{A+2*p+1}, v{u}"]
        o += [f"v_cvt_pk_bf16_f32 v{D+p}, v{A+2*p}, v{A+2*p+1}"]
        if p % 4 == 3:
            e = p // 4
            o += [f"v_bfi_b32 v{D+p}, v{t}, v{D+p}, v{vtag}",
                  f"buffer_store_dwordx4 v[{D+4*e}:{D+4*e+3}], v{vL16}, s[{sWSD}:{sWSD+3}], s{soff} offen offset:{1024*e} sc1"]
    return o + notify(snot, t, vtag)


def c_tail():
    lim = 2.0 ** OPT.get('lim', 60)
    hook = [f"v_cmp_nge_f32 vcc, {fhex(lim)}, v{TMP+1}", "!s_cbranch_vccnz L_attn_fb", "L_ctail2:"]
    o = finish_o(OACC, PA, vG, TMP, TMP + 1, sSt + 1, vEc, sSt + 2, hook=hook)
    o += signal(E_OA)
    o += stamp(3)
    if OPT.get('alt') == 8:
        o += ["s_waitcnt vmcnt(1)", f"!s_memtime s[{sStamp+8}:{sStamp+9}]", "s_waitcnt vmcnt(0)", f"!s_memtime s[{sStamp+10}:{sStamp+11}]"]
    o += c_phase3()
    o += stamp_flush(TMP, 0)
    o += ["s_endpgm"]
    return o


def cpf():
    o = []
    if OPT.get('cpf', 1):
        o += [f"s_cmp_eq_u32 s{sWave}, 1", f"s_cselect_b32 s16, s{sAW}, s{sBW}", f"s_cselect_b32 s17, s{sAW+1}, s{sBW+1}",
              "s_mov_b32 s18x, 1204224".replace("s18x", "s10"), "s_mov_b32 s11, 0x20000",
              f"s_cmp_eq_u32 s{sWave}, 0", f"s_cselect_b32 s8, s{sX}, s16", f"s_cselect_b32 s9, s{sX+1}, s17",
              f"s_cselect_b32 s10, 1835008, s10",
              f"s_cselect_b32 s{sT0}, 56, 25", f"s_mul_i32 s{sT1}, s{sT0}, s2", f"v_add_u32 v16, s{sT1}, v0",
              "v_mul_u32_u24 v17, 9363, v16", "v_lshrrev_b32 v17, 17, v17",
              f"s_cselect_b32 s{sT1}, 0, 896", f"v_mul_u32_u24 v17, s{sT1}, v17",
              f"v_lshl_add_u32 v16, v16, 7, v17", f"v_add_u32 v16, s{sT1}, v16",
              f"v_cmp_gt_u32 vcc, s{sT0}, v0", f"s_cmp_lt_u32 s{sWave}, 3", "s_cselect_b64 exec, vcc, 1",
              "!buffer_load_dword v238, v16, s[8:11], 0 offen", "s_mov_b64 exec, -1"]
    return o


def c_wave():
    ROLE[0] = 'C'
    o = ["@reset", "L_cwave:"] + stamp(4, 's')
    o += ["v_lshlrev_b32 v20, 3, v0", "v_mov_b32 v22, 0", "v_mov_b32 v23, 0", f"v_add_u32 v20, {MISC}, v20", "ds_write_b64 v20, v[22:23]",
          ]
    o += c_setup()
    o += stamp(5, 's') + ["s_waitcnt lgkmcnt(0)", "s_mov_b32 s1, s2"] + stamp(6, 's') + ([] if OPT.get('cpfpos', 1) else cpf()) + ["s_barrier"] + stamp(7, 's')
    o += srd(sWSD, sWS, WS_SIZE)
    if OPT.get('cpfpos', 1):
        o += cpf()
    o += [f"s_cmp_eq_u32 s{sZ}, 0", "!s_cbranch_scc1 L_cY"]
    o += c_gemm(False)
    o += ["s_branch L_attn", "@reset", "L_cY:"]
    o += c_gemm(True)
    o += ["L_attn:", f"s_setprio {OPT.get('cprio', 1)}"]
    o += [f"s_lshl_b32 s{sT0}, s{sWave}, 11",
          f"s_add_u32 s{sT1}, s{sT0}, {KL}", f"v_add_u32 v{vKA}, s{sT1}, v{vL16}",
          f"s_add_u32 s{sT1}, s{sT0}, {VL}", f"v_add_u32 v{vVA}, s{sT1}, v{vL16}",
          f"s_lshl_b32 s{sT0}, s{sWave}, 8", f"s_add_u32 s{sT0}, s{sT0}, {GL}", f"v_lshl_add_u32 v{vGA}, v0, 2, s{sT0}",
          f"s_lshl_b32 s{sT0}, s{sWave}, 2", f"s_add_u32 s{sT0}, s{sT0}, {MISC}", f"v_mov_b32 v{vOwn}, s{sT0}",
          f"s_lshl_b32 s{sT0}, s{sTile}, 4", f"s_add_u32 s{sT0}, s{sT0}, s{sH}",
          f"s_lshr_b32 s{sT1}, s{sT0}, 3", f"s_lshl_b32 s{sT1}, s{sT1}, 5", f"s_and_b32 s{sT2}, s{sH}, 7",
          f"s_add_u32 s{sT1}, s{sT1}, s{sT2}", f"s_lshl_b32 s{sT1}, s{sT1}, 2", f"s_add_u32 s{sSt+2}, s{sT1}, {NA}",
          f"s_lshl_b32 s{sT0}, s{sT0}, 11", f"s_add_u32 s{sSt+1}, s{sT0}, {OA}",
          f"s_min_u32 s{sSt}, s{sTile}, 8", f"s_sub_u32 s{sSt}, 8, s{sSt}"]
    o += p3_slot() + p3_early(CPARK, WBA, WBAS, tmp=128, sRt=12, sTT=13, sNo=14)
    o += attention(False)
    o += ["L_ctail:"]
    o += c_tail()
    o += ["@reset", "L_attn_fb:"]
    o += attention(True)
    o += ["s_waitcnt lgkmcnt(0)", f"v_mov_b32 v{TMP}, v{OACC+15}", f"v_mov_b32 v{TMP+1}, v{OACC+15}",
          f"v_permlane32_swap_b32 v{TMP}, v{TMP+1}", "s_branch L_ctail2", "@reset"]
    return o


def code_prefetch():
    n = OPT['prefetch']
    if not n:
        return []
    o = ["s_getpc_b64 s[38:39]", "L_pc:",
         f"s_sub_u32 s38, s38, L_pc-{NAME}_kernel", "s_subb_u32 s39, s39, 0",
         f"s_lshr_b32 s{sT0}, s2, 3", f"s_lshl_b32 s{sT1}, s{sWave}, 5", f"s_add_u32 s{sT0}, s{sT0}, s{sT1}",
         f"s_mul_i32 s{sT0}, s{sT0}, {128*n}",
         f"v_lshl_add_u32 v20, v0, 7, s{sT0}",
         f"v_min_u32 v20, L_end-{NAME}_kernel-4, v20",
         f"s_mov_b64 exec, {(1 << n) - 1}",
         "!global_load_dword v239, v20, s[38:39]", "s_mov_b64 exec, -1"]
    return o


sXD, sWD, sQBD, sQAD, sGD = 36, 40, 44, 48, 52
sKGD, sVGD = 56, 60
sRt, sTT, sE2, sL2 = 64, 65, 66, 67
sOBo, sA, sB, sC = 68, 69, 70, 71
sOff, sLi, sKh = 72, 73, 75
sEarly = 61
sOBn = 62
sNo = 63
sC7 = 53
sCc, sCx, sCw, sRot = 60, 20, 21, 61
sOBd = 60
vX, vW, vQ, vPat, vK, vV, vWO = 2, 3, 4, 5, 6, 7, 8
vEp = 15
GV = 16
HQ = 28
PQR = 16
vG1 = 27
KVr = 88
IDF = 48
sRet = 54


def p3_slot():
    return [f"s_and_b32 s{sT0}, s{sRB}, 3", f"s_lshl_b32 s{sT0}, s{sT0}, 3", f"s_and_b32 s{sT1}, s{sH}, 7",
            f"s_add_u32 s{sJ3}, s{sT0}, s{sT1}",
            f"s_cmp_ge_u32 s{sJ3}, 14", f"s_cselect_b32 s{sT0}, 14, 0", f"s_cselect_b32 s{sT1}, 1, 0",
            f"s_sub_u32 s{sT0}, s{sJ3}, s{sT0}", f"s_lshr_b32 s{sCT}, s{sT0}, 1", f"s_and_b32 s{sT0}, s{sT0}, 1",
            f"s_lshr_b32 s{sT2}, s{sH}, 3", f"s_lshl_b32 s{sT2}, s{sT2}, 1", f"s_add_u32 s{sT1}, s{sT1}, s{sT2}",
            f"s_and_b32 s{sT2}, s{sRB}, 12", f"s_add_u32 s{sT1}, s{sT1}, s{sT2}",
            f"s_lshl_b32 s{sT1}, s{sT1}, 1", f"s_add_u32 s{sT1}, s{sT1}, s{sT0}", f"s_lshl_b32 s{sTB}, s{sT1}, 1"]


def h_setup():
    return p3_slot() + [
            f"s_lshl_b32 s{sT0}, s{sW4}, 2", f"s_add_u32 s{sT0}, s{sT0}, {MISC}", f"v_mov_b32 v{vOwn}, s{sT0}",
            f"v_lshrrev_b32 v{vLow}, 5, v0", f"v_add_u32 v{vLow}, -1, v{vLow}",
            f"s_mov_b32 s{sE2}, {fhex(1e-6)}", f"s_mov_b32 s{sL2}, {fhex(LOG2E)}",
            f"s_lshl_b32 s{sT0}, s{sRB}, 2", f"s_add_u32 s{sT0}, s{sT0}, s{sW4}", f"s_lshl_b32 s{sT0}, s{sT0}, 4",
            f"s_add_u32 s{sT0}, s{sT0}, s{sH}",
            f"s_lshr_b32 s{sT1}, s{sT0}, 3", f"s_lshl_b32 s{sT1}, s{sT1}, 5", f"s_and_b32 s{sT2}, s{sH}, 7",
            f"s_add_u32 s{sT1}, s{sT1}, s{sT2}", f"s_lshl_b32 s{sT1}, s{sT1}, 2", f"s_add_u32 s{sOBn}, s{sT1}, {NB}",
            f"s_lshl_b32 s{sT0}, s{sT0}, 11", f"s_add_u32 s{sOBo}, s{sT0}, {OB}"]


def qb_phi():
    R, A = 96, 64
    t, u = 24, 25
    o = spin_ev(R_Q, 'own', HQ)
    o += [f"s_lshl_b32 s{sT0}, s{sW4}, 12", f"v_add_u32 v{t}, s{sT0}, v{vL16}",
          f"ds_read_b128 v[{R}:{R+3}], v{t}", f"ds_read_b128 v[{R+4}:{R+7}], v{t} offset:1024",
          f"s_lshl_b32 s{sT0}, s{sW4}, 8", f"s_add_u32 s{sT0}, s{sT0}, {GL}", f"v_lshl_add_u32 v{26}, v0, 2, s{sT0}",
          f"v_lshlrev_b32 v{t}, 16, v{R+6}", f"v_lshlrev_b32 v{u}, 16, v{R+6}",
          f"v_permlane32_swap_b32 v{t}, v{u}",
          f"v_mul_f32 v{u}, s{sL2}, v{u}", f"v_exp_f32_e64 v{u}, -v{u}", f"v_add_f32 v{u}, 1.0, v{u}",
          f"v_rcp_f32 v{u}, v{u}", f"ds_write_b32 v26, v{u}"] + signal(GRDY) + [f"v_sub_f32 v{vG1}, 1.0, v{u}"]
    for p in range(8):
        o += [f"v_lshlrev_b32 v{A+2*p}, 16, v{R+p}", f"v_and_b32 v{A+2*p+1}, 0xffff0000, v{R+p}"]
        o += phi_pair(A + 2 * p, A + 2 * p + 1, t, u, PQR + p, sL2, sE2)
    o += [f"v_and_b32 v{PQR+6}, v{PQR+6}, v{vLow}", f"v_and_b32 v{PQR+7}, v{PQR+7}, v{vLow}"]
    return o


def ob_tile(read_kv=True):
    o = []
    if read_kv:
        o += spin_ev(KVRDY, 3, HQ)
        o += [f"v_add_u32 v24, {KVF}, v{vL16}",
              f"ds_read_b128 v[{KVr}:{KVr+3}], v24", f"ds_read_b128 v[{KVr+4}:{KVr+7}], v24 offset:1024"]
    o += [mfma(64, KVr, PQR, None), mfma(64, KVr + 4, PQR + 4, 64)]
    o += finish_o(64, 80, vG1, 24, 25, sOBo, vEp, sOBn, eps=sE2)
    return o


def call(name):
    return ["@drain", f"!s_call_b64 s[{sRet}:{sRet+1}], L_sub_{name}", "@reset"]


def subroutines():
    o = []
    for name, body in (("phi", qb_phi()), ("ob", ob_tile()), ("r0", woa_read(0) + signal(R1)), ("r1", woa_read(1))):
        o += ["@reset", f"L_sub_{name}:"] + body + ["s_waitcnt lgkmcnt(0)", f"!s_setpc_b64 s[{sRet}:{sRet+1}]"]
    for name, w in (("d7", f"!s_waitcnt vmcnt({OPT.get('wlead', 20) - 1})"), ("d7e", f"!s_waitcnt vmcnt({OPT.get('elead', 14) - 1})")):
        o += ["@reset", f"L_sub_{name}:"]
        for m in range(7):
            o += [w, f"!buffer_load_dwordx4 v{vWO}, s[{sXD}:{sXD+3}], s{sOff} offen lds",
                  f"!s_add_u32 s{sOff}, s{sOff}, s{sC7}", "!s_addk_i32 m0, 1024"]
        o += [f"!s_setpc_b64 s[{sRet}:{sRet+1}]"]
    return o


def wait_serving(rd, red, cmp_ok, early=None):
    L, L1, L2 = lab('ws'), lab('ws1'), lab('ws2')
    o = ["@drain", f"s_mov_b32 s{sTO}, 0", f"!{L}:", "!" + rd, f"!ds_read_b32 v24, v{vM} offset:{16*KVRDY+12}"]
    o += ["!" + x for x in _tmo()]
    o += ["!s_waitcnt lgkmcnt(0)", f"!v_cmp_lt_u32 vcc, s{sOBd}, v24", f"!s_cbranch_vccz {L1}",
          f"!s_call_b64 s[{sRet}:{sRet+1}], L_sub_ob", f"!s_mov_b32 s{sOBd}, 1", f"!s_mov_b32 s{sTO}, 0", f"!s_branch {L}", f"!{L1}:"]
    o += ["!" + x for x in red + [cmp_ok, f"s_cbranch_vccnz {L2}"]]
    if early is not None:
        o += [f"!s_mov_b32 s{early}, 1"]
    o += [f"!s_sleep {OPT.get('ssleep', 2)}", f"!s_branch {L}", "@reset", f"!{L2}:"]
    return o


def serve_ev(ev, early=None):
    return wait_serving(f"ds_read_b128 v[{HQ}:{HQ+3}], v{vM} offset:{16*ev}",
                        [f"v_min3_u32 v{HQ}, v{HQ}, v{HQ+1}, v{HQ+2}", f"v_min_u32 v{HQ}, v{HQ}, v{HQ+3}"],
                        f"v_cmp_ne_u32 vcc, 0, v{HQ}", early)


def serve_land(st):
    return wait_serving(f"ds_read_b32 v{HQ}, v{vM} offset:{256+4*st}", [], f"v_cmp_eq_u32 vcc, 2, v{HQ}")


def dma(vaddr, sd, soff, lds, extra="", tag=None, sbase=None):
    o = [f"s_add_u32 m0, s{sLi}, {lds}"]
    if sbase is not None:
        if soff:
            o.append(f"s_add_u32 s{sOff}, s{sbase}, {soff}")
            so = f"s{sOff}"
        else:
            so = f"s{sbase}"
    elif soff:
        o.append(f"s_mov_b32 s{sOff}, {soff}")
        so = f"s{sOff}"
    else:
        so = "0"
    o.append(f"buffer_load_dwordx4 v{vaddr}, s[{sd}:{sd+3}], {so} offen {extra} lds" + (f" ;@tag={tag}" if tag else ""))
    return o


def spin_vm(body, cond, sleep=0):
    L = lab('pv')
    o = [f"!s_mov_b32 s{sTO}, 0", f"!{L}:"]
    o += ["!" + b for b in body + _tmo()]
    o += ["s_waitcnt vmcnt(0)"]
    o += ["!" + c for c in cond]
    o += [f"!s_cbranch_vccnz {L}"]
    return o


def flag_ld(vdst, vaddr, soff):
    if 1:
        return [f"v_mov_b32 v{vdst}, 0", f"buffer_atomic_or v{vdst}, v{vaddr}, s[{sWSD}:{sWSD+3}], {soff} offen sc0 sc1"]
    return [f"buffer_load_dword v{vdst}, v{vaddr}, s[{sWSD}:{sWSD+3}], {soff} offen sc1"]


def light_poll(vdst, vaddr, soff, mask, cmp_bad, first_issued=False, sleep=None, flag=False, hook=None):
    sleep = OPT.get('psleep', 1) if sleep is None else sleep
    L, L2, L0 = lab('lp'), lab('lpx'), lab('lp0')
    ld = f"buffer_load_dword v{vdst}, v{vaddr}, s[{sWSD}:{sWSD+3}], {soff} offen sc1"
    o = [f"s_mov_b64 exec, {mask}", f"s_mov_b32 s{sTO}, 0"]
    if first_issued:
        o += [f"!s_branch {L0}"]
    o += [f"!{L}:"] + ["!!" + x for x in (flag_ld(vdst, vaddr, soff) if flag else [ld])] + [f"!{L0}:"] + ["!" + x for x in _tmo()] + ["s_waitcnt vmcnt(0)"]
    o += ["!" + c for c in cmp_bad]
    o += [f"!s_cbranch_vccz {L2}"]
    if hook:
        o += ["!!s_mov_b64 s[50:51], vcc", "!!s_mov_b64 exec, -1"] + ["!!" + x.lstrip('!') for x in hook if not x.startswith('@')] + ["!!s_mov_b64 vcc, s[50:51]"]
    o += ["!!s_mov_b64 exec, vcc"] + ([f"!!s_sleep {sleep}"] if sleep else []) + \
         [f"!!s_branch {L}", f"!{L2}:", "s_mov_b64 exec, -1"]
    return o


sEp = 2


def spoll(pair, off_sreg, dst, nload, ncheck, sleep=1):
    L, L2 = lab('sq'), lab('sqx')
    o = [f"s_add_u32 s{pair}, s{sWSD}, s{off_sreg}", f"s_addc_u32 s{pair+1}, s{sWSD+1}, 0",
         "s_waitcnt lgkmcnt(0)", f"!s_mov_b32 s{sTO}, 0", f"!{L}:",
         f"!s_load_dwordx{nload} s[{dst}:{dst+nload-1}], s[{pair}:{pair+1}], 0 glc"]
    o += ["!" + x for x in _tmo()] + ["!s_waitcnt lgkmcnt(0)"]
    o += [f"!s_xor_b32 s{dst}, s{dst}, s{sEp}"]
    for i in range(1, ncheck):
        o += [f"!s_xor_b32 s{dst+i}, s{dst+i}, s{sEp}", f"!s_or_b32 s{dst}, s{dst}, s{dst+i}"]
    o += [f"!s_cbranch_scc0 {L2}"] + ([f"!!s_sleep {sleep}"] if sleep else []) + [f"!!s_branch {L}", f"!{L2}:"]
    return o


def notify(soff, vt, vep, fan=1):
    return [f"v_lshlrev_b32 v{vt}, 7, v0", f"s_mov_b64 exec, {(1 << fan) - 1}",
            f"buffer_store_dword v{vep}, v{vt}, s[{sWSD}:{sWSD+3}], s{soff} offen sc1", "s_mov_b64 exec, -1"]


def fmap(d, t):
    return [f"v_bfe_u32 v{d}, v0, 4, 1", f"v_bfe_u32 v{t}, v0, 2, 1", f"v_lshl_add_u32 v{d}, v{d}, 1, v{t}",
            f"v_mul_u32_u24 v{d}, 7, v{d}", f"v_bfe_u32 v{t}, v0, 3, 1", f"v_lshl_add_u32 v{d}, v{t}, 2, v{d}",
            f"v_and_b32 v{t}, 3, v0", f"v_add_u32 v{d}, v{d}, v{t}"]


def l_wave():
    ROLE[0] = 'L'
    o = [f"s_setprio {OPT.get('lprio', 2)}"]
    t0, t1, t2 = 24, 25, 26
    sHW = sW4
    o += [f"s_lshl_b32 s{sLi}, s{sHW}, 10",
          f"v_mov_b32 v{vMl}, v{vMs}", f"s_mov_b32 s{sT0}, {LANDC}", f"v_writelane_b32 v{vMl}, s{sT0}, 0"]
    o += [f"v_lshrrev_b32 v{t0}, 3, v0", f"s_lshl_b32 s{sT0}, s{sRB}, 4", f"s_add_u32 s{sT0}, s{sT0}, s{sHW}",
          f"s_lshl_b32 s{sT0}, s{sT0}, 3", f"v_add_u32 v{t1}, s{sT0}, v{t0}", f"v_mul_u32_u24 v{vX}, 896, v{t1}",
          f"v_lshrrev_b32 v{t1}, 4, v0", f"s_lshl_b32 s{sT0}, s{sHW}, 2", f"v_add_u32 v{t1}, s{sT0}, v{t1}",
          f"v_and_b32 v{t2}, 7, v0", f"v_xor_b32 v{t1}, v{t1}, v{t2}", f"v_lshl_add_u32 v{vX}, v{t1}, 4, v{vX}"]
    o += [f"s_lshl_b32 s{sT2}, s{sZ}, 4", f"s_add_u32 s{sT1}, s{sT2}, 112", f"s_add_u32 s{sT2}, s{sT2}, 48",
          f"s_mul_i32 s{sT1}, s{sT1}, s{sHH}", f"s_add_u32 s{sT1}, s{sT1}, 896",
          f"s_lshl_b32 s{sT0}, s{sHW}, 3", f"v_add_u32 v{t1}, s{sT0}, v{t0}", f"v_mul_u32_u24 v{vW}, 2688, v{t1}",
          f"v_bfe_u32 v{t1}, v0, 2, 1", f"v_bfe_u32 v{t2}, v0, 4, 1", f"v_xor_b32 v{t1}, v{t1}, v{t2}",
          f"v_mul_u32_u24 v{t2}, s{sT2}, v{t1}", f"v_add3_u32 v{vW}, v{vW}, v{t2}, s{sT1}",
          f"v_and_b32 v{t2}, 3, v0", f"v_lshl_add_u32 v{vW}, v{t2}, 4, v{vW}"]
    o += [f"s_mov_b32 s{sXD+2}, 1835008", f"s_mov_b32 s{sXD+3}, 0x20000",
          f"s_mov_b32 s{sWD+2}, 1204224", f"s_mov_b32 s{sWD+3}, 0x20000",
          f"s_cmp_eq_u32 s{sH}, 15", f"s_cselect_b32 s{sWD+2}, 0, s{sWD+2}",
          ] + {0: [f"s_mov_b32 s{sCc}, 0"],
               1: [f"s_xor_b32 s{sT0}, s{sRB}, s{sH}", f"s_and_b32 s{sT0}, s{sT0}, 1", f"s_mul_i32 s{sCc}, s{sT0}, {OPT.get('rotk', 3)}"],
               2: [f"s_add_u32 s{sT0}, s{sRB}, s{sH}", f"s_and_b32 s{sT0}, s{sT0}, 3", f"s_mul_i32 s{sCc}, s{sT0}, {OPT.get('rotk', 2)}"],
               3: [f"s_and_b32 s{sT0}, s{sRB}, 3", f"s_lshl_b32 s{sT0}, s{sT0}, 1", f"s_and_b32 s{sT1}, s{sH}, 7", f"s_add_u32 s{sCc}, s{sT0}, s{sT1}"],
               }[OPT.get('rotm', 0)] + [
          f"s_cmp_ge_u32 s{sCc}, 7", f"s_cselect_b32 s{sT0}, 7, 0", f"s_sub_u32 s{sCc}, s{sCc}, s{sT0}",
          f"s_cmp_ge_u32 s{sCc}, 7", f"s_cselect_b32 s{sT0}, 7, 0", f"s_sub_u32 s{sCc}, s{sCc}, s{sT0}",
          f"s_mov_b32 s{sRot}, s{sCc}",
          f"s_cmp_eq_u32 s{sZ}, 0"]
    o += stamp(1, 'f')
    o += ["s_waitcnt lgkmcnt(0)", "s_mov_b32 s1, s2",
          f"s_mov_b32 s{sXD}, s{sX}", f"s_mov_b32 s{sXD+1}, s{sX+1}",
          f"s_cselect_b32 s{sWD}, s{sBW}, s{sAW}", f"s_cselect_b32 s{sWD+1}, s{sBW+1}, s{sAW+1}",
          f"s_lshl_b32 s{sCx}, s{sCc}, 7", f"s_mul_i32 s{sCw}, s{sCc}, {64*2688}"]
    nextc = [f"s_add_u32 s{sCc}, s{sCc}, 1", f"s_cmp_eq_u32 s{sCc}, 7", f"s_cselect_b32 s{sCc}, 0, s{sCc}"]
    setc_ = [f"s_lshl_b32 s{sCx}, s{sCc}, 7", f"s_mul_i32 s{sCw}, s{sCc}, {64*2688}"]
    ops = []
    for c in range(7):
        for ii in range(8):
            pre = (nextc + setc_) if (ii == 0 and c) else []
            ops.append((pre + dma(vX, sXD, 16 * ii * 896, XR(c) + 2048 * ii, sbase=sCx), c))
        for p in range(2):
            for ii in range(4):
                ops.append((dma(vW, sWD, 16 * ii * 2688 + 896 * p, WR(c) + 8192 * p + 2048 * ii, sbase=sCw), c))
    for q, sd in enumerate((sQBD, sQAD)):
        for c in range(7):
            for ii in range(2):
                pre = (nextc + setc_[1:]) if ii == 0 else []
                ops.append((pre + dma(vQ, sd, 32 * ii * 2688, QLOC[7 * q + c] + 2048 * ii, sbase=sCw), 7 + 7 * q + c))
    late = srd(sWSD, sWS, WS_SIZE) + srd(sQBD, sBW, 1204224) + srd(sQAD, sAW, 1204224) + srd(sGD, sGW, 896)
    late += [f"v_lshrrev_b32 v{t0}, 2, v0", f"s_lshl_b32 s{sT0}, s{sHW}, 4", f"v_add_u32 v{t0}, s{sT0}, v{t0}",
             f"v_mul_u32_u24 v{vQ}, 2688, v{t0}", f"v_and_b32 v{t1}, 3, v0", f"v_lshl_add_u32 v{vQ}, v{t1}, 4, v{vQ}",
             f"s_mul_i32 s{sT0}, s{sH}, 56", f"s_lshl_b32 s{sT1}, s{sPar}, 3", f"s_sub_u32 s{sT0}, s{sT0}, s{sT1}",
             f"v_add_u32 v{vQ}, s{sT0}, v{vQ}",
             f"v_bfe_u32 v{t0}, v0, 4, 1", f"v_lshlrev_b32 v{t0}, 5, v{t0}", f"v_and_b32 v{t1}, 15, v0",
             f"s_lshl_b32 s{sT0}, s{sHW}, 4", f"v_add3_u32 v{t0}, v{t0}, v{t1}, s{sT0}",
             f"v_lshlrev_b32 v27, 1, v{t0}",
             f"s_xor_b32 s{sT0}, s{sPar}, 1", f"s_mul_i32 s{sT0}, s{sT0}, 56", f"s_add_u32 s{sT0}, s{sT0}, {QBB}",
             f"v_lshl_add_u32 v{vPat}, v{t0}, 6, s{sT0}"]
    for c in range(7):
        late += [[f"s_lshl_b32 s{sT0}, s{sRot}, 7", f"buffer_load_ushort v{GV+c}, v27, s[{sGD}:{sGD+3}], s{sT0} offen",
                  f"s_add_u32 s{sRot}, s{sRot}, 1", f"s_cmp_eq_u32 s{sRot}, 7", f"s_cselect_b32 s{sRot}, 0, s{sRot}"]]
    late += [f"s_mul_i32 s{sT0}, s{sHW}, {VG}", f"s_add_u32 s{sT0}, s{sT0}, {OPT.get('wsoff', 0) << 20}", [f"s_add_u32 s{sKGD}, s{sWS}, s{sT0}", f"s_addc_u32 s{sKGD+1}, s{sWS+1}, 0"],
             f"s_mov_b32 s{sKGD+2}, 1835008", f"s_mov_b32 s{sKGD+3}, 0x20000"]
    late += [f"s_lshl_b32 s{sT0}, s{sRB}, 2", f"s_sub_u32 s{sT0}, s{sT0}, 8", f"s_mul_i32 s{sA}, s{sT0}, 28672",
             f"s_mul_i32 s{sT1}, s{sH}, 7", f"s_lshr_b32 s{sT1}, s{sT1}, 1", f"s_lshl_b32 s{sT1}, s{sT1}, 9",
             f"s_add_u32 s{sT1}, s{sT1}, s{sA}",
             f"v_add_u32 v{vK}, s{sT1}, v{vL16}",
             f"s_mul_i32 s{sT1}, s{sH}, 448", f"s_add_u32 s{sT1}, s{sT1}, s{sA}",
             f"v_lshrrev_b32 v{t0}, 5, v0", f"v_mul_u32_u24 v{t0}, 7168, v{t0}"] + fmap(t1, t2) + [
             f"v_lshl_add_u32 v{t0}, v{t1}, 4, v{t0}", f"v_add_u32 v{vV}, s{sT1}, v{t0}"]
    vFl = 32
    late += [f"s_mul_i32 s{sT0}, s{sH}, 28", f"s_add_u32 s{sT1}, s{sT0}, 27",
             f"s_lshr_b32 s{sT0}, s{sT0}, 6", [f"s_lshr_b32 s{sT1}, s{sT1}, 6", f"s_cmp_eq_u32 s{sT0}, s{sT1}",
             f"s_cselect_b32 s{sB}, 0x15, 63"],
             f"s_min_u32 s{sT0}, s{sRB}, 2", f"s_lshl_b32 s{sT0}, s{sT0}, 1", f"s_sub_u32 s{sT0}, 4, s{sT0}",
             f"s_lshl_b32 s{sT1}, -1, s{sT0}", f"s_and_b32 s{sB}, s{sB}, s{sT1}", f"s_mov_b32 s{sB+1}, 0",
             ]
    late += [h_setup()] + p3_early()
    late += [f"v_lshrrev_b32 v{t0}, 3, v0", f"s_mul_i32 s{sT0}, s{sHW}, 224", f"v_add_u32 v{t1}, s{sT0}, v{t0}",
             f"v_mul_u32_u24 v{vWO}, 896, v{t1}",
             f"v_bfe_u32 v{t1}, v0, 2, 1", f"v_bfe_u32 v{t2}, v0, 4, 1", f"v_xor_b32 v{t1}, v{t1}, v{t2}",
             f"v_lshl_add_u32 v{vWO}, v{t1}, 6, v{vWO}", f"v_and_b32 v{t2}, 3, v0", f"v_lshl_add_u32 v{vWO}, v{t2}, 4, v{vWO}",
             f"s_lshl_b32 s{sT0}, s{sCT}, 7", f"v_add_u32 v{vWO}, s{sT0}, v{vWO}"]
    pieces = [late[i:i + 6] for i in range(0, len(late), 6)]
    last_of = {}
    for n, (_, st) in enumerate(ops):
        last_of[st] = n
    def lead_at(n):
        return OPT['l1'] if ops[n][1] < 7 else OPT['l3']
    sig_next = 0

    def do_signal(st):
        r = [f"@wait_vm o{last_of[st]}"]
        if 7 <= st <= 13:
            r.append(f"ds_write_b16 v{vPat}, v{GV+st-7} offset:{QLOC[st-7]-QBB}")
        return r + land(st)

    ep = spin_ev(EPOCH, 0, vEp)
    ep += [f"v_readfirstlane_b32 s{sEp}, v{vEp}",
          f"s_lshl_b32 s{sA}, s{sRB}, 4", f"s_add_u32 s{sA}, s{sA}, s{sH}", f"s_lshl_b32 s{sA}, s{sA}, 7",
          f"s_mul_i32 s{sT1}, s{sHW}, {FV-FK}", f"s_add_u32 s{sA}, s{sA}, s{sT1}", f"s_add_u32 s{sA}, s{sA}, {FK}",
          f"v_lshlrev_b32 v32, 2, v0", f"s_andn2_b32 s{sT0}, 63, s{sB}", "!s_cbranch_scc0 L_lnf",
          f"s_mov_b32 exec_lo, s{sT0}", "s_mov_b32 exec_hi, 0",
          f"!buffer_store_dword v{vEp}, v32, s[{sWSD}:{sWSD+3}], s{sA} offen sc1", "s_mov_b64 exec, -1", "L_lnf:"]

    def emit_ops(n0, n1, sig, fine, lead=None):
        r = []
        for n in range(n0, n1):
            ins, st = ops[n]
            need = {64: 1, 80: 2, 96: 3, 124: 4}.get(n)
            if need:
                assert sig >= need
                r += spin_ev(E_PA, 'all', HQ, ge=need)
                if need == 3:
                    r += ep
            ins = ins[:-1] + [ins[-1] + f" ;@tag=o{n}"]
            if n == 0:
                r += stamp(2, 'f')
            r += ins
            if n == 15:
                r += stamp(3, 'f') + ["s_barrier"] + stamp(4, 'f')
            if n >= 16 and pieces:
                r += sum([x if isinstance(x, list) else [x] for x in pieces.pop(0)], [])
            done = n - (lead or lead_at(n))
            if done >= 0 and n >= 15:
                r += [f"@wait_vm o{done}"]
            while sig < 21 and last_of[sig] <= done and n >= 15:
                r += do_signal(sig)
                r += {0: stamp(5, 'f'), 1: stamp(6, 'f'), 2: stamp(7, 'f'), 4: stamp(8, 'f'), 6: stamp(9, 'f'), 10: stamp(10, 'f')}.get(sig, [])
                sig += 1
        return r, sig

    def tail(sig, pf=False):
        r, sig = emit_ops(HOLD, len(ops), sig, False, None if pf else OPT.get('l3z', 14))
        r += stamp(1) + stamp(11, 'f')
        if pf and OPT.get('ypf', 0):
            r += [f"s_cmp_eq_u32 s{sHW}, 0", f"s_cselect_b32 s48, s{sAO}, s{sBO}", f"s_cselect_b32 s49, s{sAO+1}, s{sBO+1}",
                  f"s_and_b32 s{sT0}, s{sRB}, 3", f"s_lshl_b32 s{sT0}, s{sT0}, 2", f"s_and_b32 s{sT1}, s{sHH}, 3",
                  f"s_add_u32 s{sT0}, s{sT0}, s{sT1}", f"s_mul_i32 s{sT0}, s{sT0}, {196*128}",
                  f"v_lshl_add_u32 v33, v0, 7, s{sT0}", "s_mov_b32 exec_hi, 0x1ffff"]
            for i in range(4):
                r += [f"global_load_dword v{40+i}, v33, s[48:49]"] + ([f"v_add_u32 v33, {49*128}, v33"] if i < 3 else [])
            r += ["s_mov_b64 exec, -1"]
        for st in range(sig, 21):
            r += do_signal(st)
        return r
    HOLD = OPT.get('hold', 126)
    r, sig = emit_ops(0, HOLD, 0, True)
    assert not pieces
    o += r
    if HOLD < len(ops):
        o += [f"s_cmp_eq_u32 s{sZ}, 0", "!s_cbranch_scc0 L_lhold"]
    o += tail(sig, True)
    if HOLD < len(ops):
        o += ["s_branch L_ljoin", "@reset", "L_lhold:"]
        while last_of[sig] < HOLD:
            o += [f"s_waitcnt vmcnt({HOLD - 1 - last_of[sig]})"] + do_signal(sig)
            sig += 1
        o += spin_ev(STI, 'all', HQ) if ZD else spin_ev(X_PUB, 'hi', HQ)
        o += tail(sig)
        o += ["@reset", "L_ljoin:"]
    d7 = [f"!s_call_b64 s[{sRet}:{sRet+1}], L_sub_d7e"]

    def batch(ptr, row0, lds, stride, n, sub=d7):
        return [f"s_mov_b32 s{sXD}, s{ptr}", f"s_mov_b32 s{sXD+1}, s{ptr+1}", f"s_mov_b32 s{sOff}, {row0*896}",
                f"s_mul_i32 s{sLi}, s{sHW}, {stride}", f"s_add_u32 m0, s{sLi}, {lds}"] + sub * n
    o += [f"s_mov_b32 s{sXD+2}, 401408", f"s_mov_b32 s{sC7}, 7168"]
    if OPT.get('otouch', 0):
        o += [f"s_lshl_b32 s{sT0}, s{sRB}, 6", f"s_add_u32 s{sT0}, s{sT0}, s{sH}", f"s_lshl_b32 s{sT0}, s{sT0}, 11",
              f"s_lshl_b32 s{sT1}, s{sHW}, 21", f"s_add_u32 s{sT0}, s{sT0}, s{sT1}", f"s_add_u32 s{sT0}, s{sT0}, {OA}",
              "v_lshrrev_b32 v33, 4, v0", "v_lshlrev_b32 v33, 15, v33", "v_and_b32 v34, 15, v0", "v_lshl_add_u32 v33, v34, 7, v33",
              f"!buffer_load_dword v34, v33, s[{sWSD}:{sWSD+3}], s{sT0} offen"]
    o += [f"s_cmp_eq_u32 s{sHW}, 0", "!s_cbranch_scc0 L_lgV"] + spin_ev(E_P2, 'all', HQ) + spin_ev(F_K, 'hi', HQ, ge=2) + ["s_branch L_lg", "L_lgV:"]
    o += spin_ev(E_P3A, 'all', HQ) + ["L_lg:"]
    o += stamp(6, 'z')
    o += spoll(42, sA, 44, 8, 6, sleep=OPT.get('fsleep', 1))
    o += stamp(2)
    if OPT.get('alt') == 5:
        o += [f"s_add_u32 s{sStamp+14}, s{sStamp}, s{sTO}"]
    o += [f"s_cmp_eq_u32 s{sHW}, 0", "!s_cbranch_scc0 L_lV"]
    for j in range(12):
        for e in range(2):
            o += [f"s_mov_b32 m0, {KL + 2048*j + 1024*e - 1024*e}",
                  f"buffer_load_dwordx4 v{vK}, s[{sKGD}:{sKGD+3}], 0 offen offset:{1024*e} sc1 lds"]
        o += [f"v_add_u32 v{vK}, 28672, v{vK}"]
    o += [f"s_mov_b32 s{sA}, {4*ST_K}", "s_branch L_lKV", "@reset", "L_lV:"]
    o += [f"v_mov_b32 v{36+i}, 0x3f803f80" for i in range(4)]
    o += [f"v_lshlrev_b32 v{t0}, 9, v0", f"v_add_u32 v{t0}, {VL+496}, v{t0}",
          "s_mov_b32 exec_hi, 0xffff", f"ds_write_b128 v{t0}, v[36:39]",
          "s_mov_b32 exec_lo, 0x7fffffff", "s_mov_b32 exec_hi, 0x7fffffff", f"s_mov_b32 s{sOff}, 14336"]
    for j in range(12):
        for e in range(2):
            pre = [f"v_add_u32 v{t2}, s{sOff}, v{vV}"] if e else []
            o += pre + [f"s_mov_b32 m0, {VL + 2048*j + 1024*e}",
                        f"buffer_load_dwordx4 v{t2 if e else vV}, s[{sKGD}:{sKGD+3}], 0 offen sc1 lds"]
        o += [f"v_add_u32 v{vV}, 28672, v{vV}"]
    o += ["s_mov_b64 exec, -1", f"s_mov_b32 s{sA}, {4*ST_V}", "@reset", "L_lKV:"]
    o += stamp(3) + signal(KVISS)

    kvland = [f"v_add_u32 v{t2}, s{sA}, v{vMl}", f"v_mov_b32 v{t0}, 2", f"ds_add_u32 v{t2}, v{t0}"]
    o += [f"s_cmp_ge_u32 s{sJ3}, 28", "!s_cbranch_scc0 L_lwo"] + call("phi") + \
        ["s_waitcnt vmcnt(0)"] + kvland + call("ob") + stamp_flush(20, 0) + ["s_endpgm", "@reset", "L_lwo:"]
    o += call("phi") + stamp(8, 'z')
    o += ["s_waitcnt vmcnt(0)"] + kvland
    o += stamp(4)
    o += wait_land(ST_WA1, HQ, inline=True) + call("r0")
    o += p3_setup() + [f"s_mov_b32 s{sOBd}, 0"] + serve_ev(R1)
    o += batch(sBO, 168, STG, STGS, 1)
    o += [f"s_cmp_lg_u32 s{sOBd}, 0", "!s_cbranch_scc1 L_lt0"] + call("ob") + [f"s_mov_b32 s{sOBd}, 1", "s_waitcnt vmcnt(3)", "s_branch L_lt1",
          "L_lt0:", "s_waitcnt vmcnt(0)", "L_lt1:"] + land(ST_WA2)
    o += stamp(5)
    o += ["s_branch L_p3", "@reset"]
    return o


sOb, sNb = 58, 59


def gload(g):
    r = [f"s_add_u32 s{sT2}, s{sOb}, {4096*g}"]
    for e in range(4):
        n = 4 * g + e
        r.append(f"buffer_load_dwordx4 v[{OF+4*n}:{OF+4*n+3}], v{vOG}, s[{sWSD}:{sWSD+3}], s{sT2} offen offset:{1024*e} sc1")
    return r


WA = 128
OF = 64
ACC = 32
BB = 16
vA = 2
vOG = 6
vTg = 9


def p3_early(dst=(248, 249, 250, 251, 252), base=STG, stride=STGS, tmp=240, sRt=sRt, sTT=sTT, sNo=sNo):
    t0, t1, t2, r, cg = range(tmp, tmp + 5)
    o = [f"s_lshr_b32 s{sKh}, s{sW4}, 1", f"s_and_b32 s{sRt}, s{sW4}, 1",
         f"s_add_u32 s{sTT}, s{sTB}, s{sRt}",
         f"v_bfe_u32 v{r}, v0, 2, 2", f"v_bfe_u32 v{t0}, v0, 4, 1", f"v_and_b32 v{cg}, 3, v0",
         f"v_lshl_add_u32 v{cg}, v{t0}, 2, v{cg}", f"v_lshlrev_b32 v{cg}, 3, v{cg}",
         f"s_mul_i32 s{sT0}, s{sKh}, {stride}", f"s_add_u32 s{sT0}, s{sT0}, {base}",
         f"v_add_u32 v{cg}, s{sT0}, v{cg}",
         f"v_lshrrev_b32 v{t2}, 5, v0", f"v_mul_u32_u24 v{t2}, 7, v{t2}"]
    for s_ in range(2):
        for u in range(2):
            d = dst[2 * s_ + u]
            o += [f"v_min_u32 v{t0}, {2 if u else 3}, v{r}", f"v_add3_u32 v{t0}, v{t0}, v{t2}, {14*s_+4*u}",
                  f"v_bfe_u32 v{t1}, v{t0}, 1, 1", f"v_xor_b32 v{t1}, s{sKh}, v{t1}",
                  f"v_lshl_add_u32 v{d}, v{t0}, 7, v{cg}", f"v_lshl_add_u32 v{d}, v{t1}, 6, v{d}"]
    o += [f"s_lshl_b32 s{sT0}, s{sTT}, 1", f"s_add_u32 s{sT0}, s{sT0}, s{sKh}", f"s_lshl_b32 s{sNo}, s{sT0}, 7", f"s_lshl_b32 s{sT0}, s{sT0}, 14",
          f"v_add_u32 v{dst[4]}, s{sT0}, v{vL16}"]
    return o


def p3_setup():
    return [f"v_mov_b32 v{vA+i}, v{248+i}" for i in range(5)] + [f"v_and_b32 v{vTg}, 0xffff0000, v{vEp}"]


def flip(A):
    return [f"v_xor_b32 v{A+i}, 64, v{A+i}" for i in range(4)]


FLIP = flip(vA)


def wo_frag(dst, hl, s, tag=None, A=vA):
    return [tr(dst, A + 2 * s, 28 * hl * 128), tr(dst + 2, A + 2 * s + 1, 28 * hl * 128, tag)]


def woa_read(rho):
    o = []
    A = 248 if rho == 0 else vA
    for j in range(2):
        for hl in (range(6) if rho == 0 else range(6, 8)):
            for s in range(2):
                o += wo_frag(WA + 64 * j + 8 * hl + 4 * s, hl % 6, s, A=A)
        o += flip(A)
    return o


RSTR = VL - KL


NG0 = OPT.get('ng0', 4)


def half_head(isC):
    o = spoll(42, sNb, 44, 8, 8, sleep=OPT.get('osleep', 1))
    if isC or OPT.get('hgate', 1):
        o += spin_ev(E_OA, 'all', HQ)
    o += [f"!s_memtime s[{sStamp+18}:{sStamp+19}]"] if OPT['stamps'] and OPT.get('alt', 0) in (0, 2, 6, 7, 8, 9, 10) else []
    for g in range(NG0):
        o += gload(g)
    return o


def half_sub():
    vC = 7
    o = ["@reset", "L_sub_half:"]

    def gcheck(g):
        b = OF + 16 * g
        ch = [f"v_xor_b32 v{b+4*e+3}, v{b+4*e+3}, v{vTg}" for e in range(4)]
        ch += [f"v_or3_b32 v{vC}, v{b+3}, v{b+7}, v{b+11}", f"v_or_b32 v{vC}, v{vC}, v{b+15}",
               f"v_cmp_lt_u32 vcc, 0xffff, v{vC}"]
        Ls, Lb = lab('slow'), lab('back')
        slow.extend([f"{Ls}:"] + ([f"s_add_u32 s{sStamp+14}, s{sStamp+14}, 1"] if OPT.get('alt') == 6 else []) + [f"s_mov_b32 s{sTO}, 0", f"{Ls}_s:", "s_sleep 4"] + gload(g) + _tmo() + ["s_waitcnt vmcnt(0)"] + ch +
                    [f"s_cbranch_vccnz {Ls}_s", f"s_branch {Lb}"])
        return ch + [f"!s_cbranch_vccnz {Ls}", f"!{Lb}:"]
    o += half_head(False) + ["L_half_mid:"]
    sO = 40
    o += srd(sO, sOUT, 1835008)
    o += [f"s_lshr_b32 s{sT2}, s{sWave}, 2", f"s_mul_i32 s{sT1}, s{sT2}, {RSTR}",
          f"s_mul_i32 s{sT0}, s{sW4}, 6144", f"s_add_u32 s{sT0}, s{sT0}, {KL}",
          f"s_add_u32 s44, s{sT0}, s{sT1}", f"v_add_u32 v2, s44, v{vL16}",
          f"s_sub_u32 s44, s{sT0}, s{sT1}", f"s_add_u32 s44, s44, {RSTR+4096}", f"v_add_u32 v3, s44, v{vL16}",
          f"s_lshl_b32 s{sT2}, s{sT2}, 11",
          f"s_xor_b32 s{sT1}, s{sW4}, 2", f"s_mul_i32 s{sT0}, s{sT1}, 6144", f"s_add_u32 s{sT0}, s{sT0}, s{sT2}",
          f"s_add_u32 s{sT0}, s{sT0}, {KL}", f"v_add_u32 v4, s{sT0}, v{vL16}", f"v_add_u32 v24, {RSTR}, v4",
          f"v_and_b32 v8, 31, v0", f"s_lshl_b32 s{sT0}, s{sTT}, 5", f"v_add_u32 v8, s{sT0}, v8",
          f"v_mul_u32_u24 v8, 896, v8", f"v_lshrrev_b32 v5, 5, v0",
          f"v_lshl_add_u32 v8, v5, 4, v8",
          f"s_lshl_b32 s{sT0}, s{sCT}, 1", f"s_add_u32 s{sT0}, s{sT0}, s{sKh}", f"s_lshl_b32 s{sT0}, s{sT0}, 6",
          f"s_lshr_b32 s{sT2}, s{sT2}, 6", f"s_add_u32 s{sT0}, s{sT0}, s{sT2}",
          f"v_add_u32 v8, s{sT0}, v8"]
    early, late = check_ev(E_OA, 'all', HQ)
    for n in range(16):
        if n % 4 == 0:
            o += gcheck(n // 4)
            if n // 4 + NG0 < 4:
                o += gload(n // 4 + NG0)
        if n == 12:
            o += early
        for j in ((0, 1) if n < 12 else ()):
            o.append(mfma(ACC + 16 * j, WA + 64 * j + 4 * n, OF + 4 * n, ACC + 16 * j if n else None))
    for j in (1, 0):
        for n in range(12, 16):
            o.append(mfma(ACC + 16 * j, WA + 64 * j + 4 * n, OF + 4 * n, ACC + 16 * j))
        if j == 1:
            o += late
    o += [f"ds_write_b128 v2, v[{ACC+16+4*i}:{ACC+16+4*i+3}] offset:{1024*i}" for i in range(4)]
    o += stamp(8)
    o += [f"s_cmp_lt_u32 s{sWave}, 4", "!s_cbranch_scc1 L_finC"]

    def fin(role):
        mine, spare = ACC + 8 * role, ACC + 8 * (1 - role)
        r = [f"ds_write_b128 v2, v[{spare+4*i}:{spare+4*i+3}] offset:{4096+1024*i}" for i in range(2)]
        r += ["s_waitcnt lgkmcnt(0)", "s_barrier"] + ([f"!s_memtime s[{sStamp+14}:{sStamp+15}]"] if OPT.get('alt') == 10 else [])
        r += [f"ds_read_b128 v[{OF+4*i}:{OF+4*i+3}], v3 offset:{1024*i}" for i in range(2)]
        r += [f"ds_read_b128 v[{OF+8+4*i}:{OF+8+4*i+3}], v4 offset:{1024*i}" for i in range(2)]
        r += [f"ds_read_b128 v[{OF+16+4*i}:{OF+16+4*i+3}], v24 offset:{1024*i}" for i in range(2)]
        for i in range(8):
            r += [f"v_add_f32 v{mine+i}, v{mine+i}, v{OF+i}"]
        for i in range(8):
            r += [f"v_add_f32 v{OF+8+i}, v{OF+8+i}, v{OF+16+i}"]
        for p in range(4):
            r += [f"v_add_f32 v{mine+2*p}, v{mine+2*p}, v{OF+8+2*p}", f"v_add_f32 v{mine+2*p+1}, v{mine+2*p+1}, v{OF+8+2*p+1}",
                  f"v_cvt_pk_bf16_f32 v{16+p}, v{mine+2*p}, v{mine+2*p+1}"]
        r += ["s_branch L_fin"] if role == 1 else []
        return r
    st = [x for x in o if 0]
    o += fin(1) + ["@reset", "L_finC:", "s_nop 7"] + fin(0) + ["L_fin:"]
    o += [f"v_permlane32_swap_b32 v16, v18", f"v_permlane32_swap_b32 v17, v19"]
    fl = {0: "", 1: " sc1", 2: " nt", 3: " sc0 sc1"}[OPT.get('outfl', 0)]
    o += [f"buffer_store_dwordx4 v[16:19], v8, s[{sO}:{sO+3}], 0 offen{fl}"]
    if OPT.get('until'):
        o += [f"!s_mov_b32 s45, {OPT['until']}"]
        if 'pw' in OPT:
            st = sStamp + 2 * OPT['ps']
            o += ["!s_waitcnt lgkmcnt(0)", f"!s_sub_u32 s44, s{st}, s98", f"!s_cmp_ge_u32 s{sWave}, {OPT['pw']}", "!s_cselect_b32 s44, s44, 0",
                  f"!s_cmp_le_u32 s{sWave}, {OPT['pw2']}", "!s_cselect_b32 s44, s44, 0", "!s_add_u32 s45, s45, s44"]
        o += ["!L_dly2:", f"!s_memtime s[46:47]", "!s_waitcnt lgkmcnt(0)",
              "!s_sub_u32 s46, s46, s98", f"!s_cmp_lt_u32 s46, s45", "!s_cbranch_scc1 L_dly2"]
    o += stamp(10)
    if OPT['stamps'] and 'pw' not in OPT:
        o += ["s_waitcnt vmcnt(0)"] + stamp(11)
    o += stamp_flush(20, 0)
    o += ["s_endpgm"]
    return o


def phase3():
    ROLE[0] = 'H'
    o = ["@reset", "L_p3:"]
    o += serve_land(ST_WA2) + call("r1")
    o += stamp(6)
    o += [f"s_cmp_lg_u32 s{sOBd}, 0", "!s_cbranch_scc1 L_pB"] + call("ob") + ["L_pB:"]
    if OPT.get('bgate', 0):
        o += spin_ev(E_OA, 'all', HQ)
    o += stamp(7)
    o += [f"s_mov_b32 s{sOb}, {OB}", f"s_add_u32 s{sNb}, s{sNo}, {NB}"]
    return o + half_sub()


def c_phase3():
    o = [f"s_cmp_ge_u32 s{sJ3}, 28", "!s_cbranch_scc1 L_cend"]
    o += [f"v_readfirstlane_b32 s{sEp}, v{vEc}", f"v_mov_b32 v{vEp}, v{vEc}", f"s_add_u32 s{sNb}, s14, {NA}", f"s_mov_b32 s{sOb}, {OA}"]
    o += [f"v_mov_b32 v{vA+i}, v{CPARK[i]}" for i in range(5)] + [f"v_and_b32 v{vTg}, 0xffff0000, v{vEp}"]
    o += [f"s_mul_i32 s{sB}, s{sKh}, {(WBAS - WBBS) & 0xffffffff}", f"s_add_u32 s{sB}, s{sB}, {WBA - WBB}", f"s_mov_b32 s{sTT}, s13"]
    if OPT.get('cfirst', 1):
        o += half_head(True)
    o += wait_land(ST_WB, HQ, inline=True, n=1)
    rd = lambda j, hl: sum([wo_frag(WA + 64 * j + 8 * hl + 4 * s_, hl if hl < 6 else hl - 6, s_) for s_ in range(2)], [])
    for hl in range(6):
        o += rd(0, hl)
    o += [f"v_subrev_u32 v{vA+x}, s{sB}, v{vA+x}" for x in range(4)] + rd(0, 6) + rd(0, 7) + FLIP + rd(1, 6) + rd(1, 7)
    o += [f"v_add_u32 v{vA+x}, s{sB}, v{vA+x}" for x in range(4)]
    for hl in range(6):
        o += rd(1, hl)
    o += ["s_waitcnt lgkmcnt(0)", "s_branch " + ("L_half_mid" if OPT.get('cfirst', 1) else "L_sub_half"), "@reset", "L_cend:"]
    return o


def pretouch():
    if not OPT.get('touch', 1):
        return []
    o = []
    for p in (sAW, sBW, sOUT, sAO, sBO, sGW, sDBG):
        o.append(f"!s_load_dword s44, s[{p}:{p+1}], 0")
    o += [f"s_mov_b32 s46, s{sWS}", f"s_mov_b32 s47, s{sWS+1}"]
    for i in range(6):
        o += ["!s_load_dword s44, s[46:47], 0", "s_add_u32 s46, s46, 0x200000", "s_addc_u32 s47, s47, 0"]
    return o


def x_wave():
    ROLE[0] = 'X'
    o = ["@reset", "L_xwave:", "s_waitcnt lgkmcnt(0)", "s_mov_b32 s1, s2"] + pretouch() + ["s_barrier"]
    o += srd(sWSD, sWS, WS_SIZE)
    o += h_setup() + p3_early()
    o += ["v_lshrrev_b32 v24, 5, v0", "v_lshlrev_b32 v24, 2, v24", "v_and_b32 v25, 31, v0", "v_sub_u32 v24, v25, v24",
          "v_mov_b32 v25, 0x3f80", "v_mov_b32 v26, 0x3f800000"]
    for r in range(8):
        d0 = 16 * (r >> 2) + 8 * ((r & 3) >> 1) + 2 * (r & 1)
        o += [f"v_cmp_eq_u32 vcc, {d0}, v24", f"v_cndmask_b32 v{IDF+r}, 0, v25, vcc", f"v_cmp_eq_u32 vcc, {d0+1}, v24",
              f"v_cndmask_b32 v{IDF+r}, v{IDF+r}, v26, vcc"]
    sDD, sKD = 36, 40
    sJ = sLi
    t0, t1, t2 = 24, 25, 26
    o += [f"s_sub_u32 s{sJ}, s{sWave}, 6"]
    o += srd(sDD, sDBG, 256) + srd(sKD, sWS, WS_SIZE)
    o += [f"s_cmp_eq_u32 s{sH}, 15", f"s_cselect_b32 s{sKD+2}, 0, s{sKD+2}"]
    o += [f"v_mov_b32 v{t0}, 0", f"s_lshl_b32 s{sT0}, s2, 1", f"s_add_u32 s{sT0}, s{sT0}, s{sJ}",
          f"s_cmp_eq_u32 s{sT0}, 0", "!s_cbranch_scc0 L_xnoep",
          f"s_mov_b32 s{sT0}, {EPW}",
          f"buffer_load_dword v{vEp}, v{t0}, s[{sWSD}:{sWSD+3}], s{sT0} offen sc1",
          f"v_lshrrev_b32 v{t1}, 16, v{vEp}", f"v_add_u32 v{vEp}, 1, v{vEp}", f"v_and_b32 v{vEp}, 0xffff, v{vEp}",
          f"v_max_u32 v{vEp}, 1, v{vEp}", f"v_cmp_eq_u32 vcc, v{vEp}, v{t1}", f"v_addc_co_u32 v{vEp}, vcc, 0, v{vEp}, vcc",
          f"v_and_b32 v{vEp}, 0xffff, v{vEp}", f"v_max_u32 v{vEp}, 1, v{vEp}", f"v_lshl_or_b32 v{vEp}, v{vEp}, 16, v{vEp}",
          "s_mov_b64 exec, 1",
          f"buffer_store_dword v{vEp}, v{t0}, s[{sDD}:{sDD+3}], 0 offen sc1",
          f"buffer_store_dword v{vEp}, v{t0}, s[{sWSD}:{sWSD+3}], s{sT0} offen sc1",
          "s_mov_b64 exec, -1", "@reset", "L_xnoep:"]
    if OPT.get('gpf', 1):
        if OPT.get('gpfgate', 0) >= 0:
            o += wait_land(OPT.get('gpfgate', 0), HQ, inline=True)
        o += [f"s_cmp_eq_u32 s{sJ}, 0", f"s_cselect_b32 s44, s{sAO}, s{sAW}", f"s_cselect_b32 s45, s{sAO+1}, s{sAW+1}",
              f"s_cselect_b32 s48, s{sBO}, s{sBW}", f"s_cselect_b32 s49, s{sBO+1}, s{sBW+1}",
              f"s_mov_b32 s{sT0}, 1204224", f"s_cselect_b32 s46, 401408, s{sT0}", "s_mov_b32 s47, 0x20000",
              f"s_mov_b32 s{sT0}, 2688", f"s_cselect_b32 s{sT1}, 896, s{sT0}",
              "s_mov_b32 s50, s46", "s_mov_b32 s51, 0x20000",
              f"s_mul_i32 s{sT0}, s2, 13", f"v_add_u32 v32, s{sT0}, v0", "v_mul_u32_u24 v33, 9363, v32", "v_lshrrev_b32 v33, 16, v33",
              "v_mul_u32_u24 v34, 7, v33", "v_sub_u32 v32, v32, v34", f"v_mul_u32_u24 v33, s{sT1}, v33", "v_lshl_add_u32 v32, v32, 7, v33",
              "s_mov_b64 exec, 0x1fff",
              "buffer_load_dword v33, v32, s[44:47], 0 offen", "buffer_load_dword v34, v32, s[48:51], 0 offen", "s_mov_b64 exec, -1"]
    if OPT.get('ntouch', 0):
        o += [f"s_lshl_b32 s{sT0}, s{sRB}, 4", f"s_add_u32 s{sT0}, s{sT0}, s{sH}", f"s_lshl_b32 s{sT0}, s{sT0}, 7",
              f"s_lshl_b32 s{sT1}, s{sH}, 4", f"s_add_u32 s{sT1}, s{sT1}, s{sRB}", f"s_lshl_b32 s{sT1}, s{sT1}, 9",
              f"s_lshl_b32 s{sT2}, s{sRB}, 6", f"s_add_u32 s{sT2}, s{sT2}, s{sH}", f"s_lshl_b32 s{sT2}, s{sT2}, 7",
              f"s_add_u32 s{sT0}, s{sT0}, {FK}", f"s_add_u32 s{sT1}, s{sT1}, {N1}", f"s_add_u32 s{sT2}, s{sT2}, {NA}",
              f"s_cmp_eq_u32 s{sJ}, 0", f"s_cselect_b32 s{sT1}, s{sT1}, s{sT2}", f"s_cselect_b32 s{sT2}, 7, 11",
              "v_and_b32 v35, 3, v0", f"v_lshlrev_b32 v35, s{sT2}, v35", "v_bfe_u32 v36, v0, 2, 1",
              f"v_lshlrev_b32 v36, 17, v36", f"v_add3_u32 v35, v35, v36, s{sT1}",
              f"v_writelane_b32 v35, s{sT0}, 8", f"s_add_u32 s{sT0}, s{sT0}, {FV-FK}", f"v_writelane_b32 v35, s{sT0}, 9",
              "v_mov_b32 v36, 0", "s_mov_b64 exec, 0x3ff",
              f"buffer_atomic_or v36, v35, s[{sWSD}:{sWSD+3}], 0 offen sc1", "s_mov_b64 exec, -1"]
    o += wait_land(OPT.get('epgate', 2), HQ, inline=True)
    if OPT.get('ktouch', 0):
        Lk = lab('kt')
        o += [f"s_cmp_eq_u32 s{sZ}, 0", f"!s_cbranch_scc1 {Lk}", f"s_cmp_eq_u32 s{sH}, 15", f"!s_cbranch_scc1 {Lk}",
              f"s_mul_i32 s{sT0}, s{sRB}, {4*28672}", f"s_cmp_eq_u32 s{sJ}, 0", f"s_cselect_b32 s{sT1}, 12, 10",
              f"s_lshl_b32 s{sT1}, s{sHH}, s{sT1}", f"s_add_u32 s{sT0}, s{sT0}, s{sT1}",
              f"s_mul_i32 s{sT1}, s{sJ}, {VG}", f"s_add_u32 s{sT0}, s{sT0}, s{sT1}",
              f"s_mul_i32 s{sT1}, s{sJ}, {7168-1024}", "v_bfe_u32 v33, v0, 3, 2", f"v_mul_u32_u24 v33, s{sT1}, v33",
              "v_and_b32 v34, 31, v0", "v_lshl_add_u32 v33, v34, 7, v33", "v_lshrrev_b32 v34, 5, v0", "v_mul_u32_u24 v34, 28672, v34",
              "v_add_u32 v33, v33, v34", f"s_add_u32 s{sT1}, s{sT0}, {2*28672}",
              f"buffer_load_dword v34, v33, s[{sWSD}:{sWSD+3}], s{sT0} offen", f"buffer_load_dword v35, v33, s[{sWSD}:{sWSD+3}], s{sT1} offen", f"!{Lk}:"]
    o += spin_vm([f"buffer_load_dword v{vEp}, v{t0}, s[{sDD}:{sDD+3}], 0 offen sc1"], [f"v_cmp_eq_u32 vcc, 0, v{vEp}"])
    o += [f"ds_write_b32 v{vM}, v{vEp} offset:{16*EPOCH}", f"v_readfirstlane_b32 s{sEp}, v{vEp}"]
    o += srd(sXD, sBO, 401408) + [f"s_mov_b32 s{sC7}, 7168",
          f"v_lshrrev_b32 v{t0}, 3, v0", f"v_mul_u32_u24 v{vWO}, 896, v{t0}",
          f"v_bfe_u32 v{t1}, v0, 2, 1", f"v_bfe_u32 v{t2}, v0, 4, 1", f"v_xor_b32 v{t1}, v{t1}, v{t2}",
          f"v_lshl_add_u32 v{vWO}, v{t1}, 6, v{vWO}", f"v_and_b32 v{t2}, 3, v0", f"v_lshl_add_u32 v{vWO}, v{t2}, 4, v{vWO}",
          f"s_lshl_b32 s{sT0}, s{sCT}, 7", f"v_add_u32 v{vWO}, s{sT0}, v{vWO}",
          f"v_mov_b32 v{vMl}, v{vMs}", f"s_mov_b32 s{sT0}, {LANDC}", f"v_writelane_b32 v{vMl}, s{sT0}, 0"]
    d7 = [f"!s_call_b64 s[{sRet}:{sRet+1}], L_sub_d7"]


    def ebatch():
        L = lab('eb')
        return [f"s_cmp_ge_u32 s{sJ3}, 28", f"!s_cbranch_scc1 {L}",
                f"s_mul_i32 s{sOff}, s{sJ}, {224*896}", f"s_mul_i32 s{sT0}, s{sJ}, {STGS}", f"s_add_u32 m0, s{sT0}, {STG}"] + \
            [f"!s_call_b64 s[{sRet}:{sRet+1}], L_sub_d7e"] * 3 + [f"!{L}:"]
    o += stamp(1)
    o += [f"s_setprio {OPT.get('xprio', 3)}", f"s_cmp_eq_u32 s{sZ}, 0", "!s_cbranch_scc1 L_xY"]
    o += [f"s_lshl_b32 s{sT0}, s{sHH}, 6", f"s_mul_i32 s{sT1}, s{sT0}, 2341", f"s_lshr_b32 s{sT1}, s{sT1}, 16",
          f"s_add_u32 s{sT0}, s{sT0}, 63", f"s_mul_i32 s{sT2}, s{sT0}, 2341", f"s_lshr_b32 s{sT2}, s{sT2}, 16",
          f"v_and_b32 v4, 3, v0", f"v_add_u32 v4, s{sT1}, v4", f"v_lshrrev_b32 v5, 2, v0",
          f"v_cmp_ge_u32 s[48:49], s{sT2}, v4", f"v_add_u32 v6, s{sRB}, v5", f"v_cmp_gt_u32 vcc, 16, v6",
          "s_and_b64 s[48:49], s[48:49], vcc", "s_and_b32 s48, s48, 0xfff", "s_mov_b32 s49, 0",
          f"s_cmp_eq_u32 s{sH}, 15", "s_cselect_b32 s48, 0, s48",
          "v_lshl_add_u32 v3, v6, 4, v4", "v_lshlrev_b32 v3, 5, v3",
          "v_mul_u32_u24 v4, 28, v4", "v_lshrrev_b32 v4, 6, v4", f"v_sub_u32 v4, s{sHH}, v4",
          "v_lshlrev_b32 v5, 1, v5", "v_sub_u32 v5, 4, v5", "v_add3_u32 v3, v3, v4, v5", "v_lshlrev_b32 v3, 2, v3",
          f"s_mul_i32 s50, s{sJ}, {FV-FK}", f"s_add_u32 s50, s50, {FK}",
          f"s_mul_i32 s44, s{sRB}, {4*28672}",
          f"s_cmp_eq_u32 s{sJ}, 0", "!s_cbranch_scc0 L_xZV"]
    if ZD:
        o += signal(F_K) + signal(F_K) + spin_ev(R_K, 'all', HQ) + ["s_branch L_xZn", "@reset", "L_xZV:"]
        o += signal(F_K) + signal(F_K) + spin_ev(R_V, 'all', HQ) + ["@reset", "L_xZn:"] + stamp(2)
    else:
        o += [f"s_lshl_b32 s{sT0}, s{sHH}, 12", f"s_add_u32 s44, s44, s{sT0}"]
        o += spin_ev(R_K, 'all', HQ)
        o += [f"ds_read_b128 v[{64+4*i}:{64+4*i+3}], v{vL16} offset:{STK+1024*i}" for i in range(16)] + signal(F_K) + signal(F_K)
        for i in range(16):
            o += [f"buffer_store_dwordx4 v[{64+4*i}:{64+4*i+3}], v{vL16}, s[{sKD}:{sKD+3}], s44 offen offset:{1024*(i%4)} sc1"]
            if i % 4 == 3:
                o += ["s_add_u32 s44, s44, 28672"]
        o += ["s_branch L_xZn", "@reset", "L_xZV:"]
        o += [f"s_lshl_b32 s{sT0}, s{sHH}, 10", f"s_add_u32 s44, s44, s{sT0}", f"s_add_u32 s44, s44, {VG}", "s_add_u32 s45, s44, 14336",
              f"v_lshrrev_b32 v2, 5, v0", f"v_mul_u32_u24 v2, {7168-512}, v2", f"v_add_u32 v2, v2, v{vL16}"]
        o += spin_ev(R_V, 'all', HQ)
        o += [f"ds_read_b128 v[{64+4*i}:{64+4*i+3}], v{vL16} offset:{STV+1024*i}" for i in range(16)] + signal(F_K) + signal(F_K)
        if OPT.get('vafter', 1):
            o += spin_ev(X_PUB, 2, HQ)
        for i in range(16):
            j, s_ = (i % 4) // 2, i % 2
            o += [f"buffer_store_dwordx4 v[{64+4*i}:{64+4*i+3}], v2, s[{sKD}:{sKD+3}], s{44+s_} offen offset:{512*j} sc1"]
            if i % 4 == 3:
                o += ["s_add_u32 s44, s44, 28672", "s_add_u32 s45, s45, 28672"]
        o += ["@reset", "L_xZn:"] + signal(X_PUB) + stamp(2)
    Ln = lab('nn')
    o += ["s_cmp_eq_u32 s48, 0", f"!s_cbranch_scc1 {Ln}"]
    o += ["s_waitcnt vmcnt(0)", "s_mov_b64 exec, s[48:49]",
          f"buffer_store_dword v{vEp}, v3, s[{sWSD}:{sWSD+3}], s50 offen sc1", "s_mov_b64 exec, -1", f"!{Ln}:"] + stamp(3)
    o += ebatch() + ["s_waitcnt vmcnt(0)"] + land(ST_WA1)
    o += ["s_branch L_xjoin", "@reset", "L_xY:"]
    o += fmap(t2, t1) + [f"v_lshrrev_b32 v{t1}, 5, v0", f"v_lshlrev_b32 v{t1}, 9, v{t1}", f"v_lshl_add_u32 v{t2}, v{t2}, 4, v{t1}"]
    o += [f"s_lshl_b32 s{sT0}, s{sJ}, 11", f"v_add_u32 v{t1}, s{sT0}, v{vL16}",
          f"s_add_u32 s{sT1}, s{sT0}, {STV}", f"v_add_u32 v{t2}, s{sT1}, v{t2}",
          f"v_lshrrev_b32 v2, 2, v0", f"v_lshlrev_b32 v2, 12, v2", f"v_and_b32 v3, 3, v0", f"v_lshl_add_u32 v2, v3, 9, v2",
          f"s_add_u32 s{sT0}, s{sT0}, {STV+448}", f"v_add_u32 v2, s{sT0}, v2"]
    o += [f"v_mov_b32 v{32+i}, 0x3f803f80" for i in range(4)]
    o += [f"s_lshl_b32 s{sT0}, s{sHH}, 1", f"s_add_u32 s{sT0}, s{sT0}, s{sJ}", f"s_lshl_b32 s{sT0}, s{sT0}, 4", f"s_add_u32 s{sT0}, s{sT0}, s{sRB}",
          f"s_lshl_b32 s44, s{sT0}, 11", f"s_add_u32 s44, s44, {KVP}",
          f"s_lshr_b32 s{sT1}, s{sT0}, 4", f"s_lshl_b32 s{sT1}, s{sT1}, 5", f"s_add_u32 s{sT1}, s{sT1}, s{sRB}",
          f"s_lshl_b32 s46, s{sT1}, 2", f"s_add_u32 s46, s46, {N1}"]
    o += spin_ev(R_V, 'all', HQ)
    o += ["s_mov_b64 exec, 0xffff", "ds_write_b128 v2, v[32:35]", "s_mov_b64 exec, -1"]
    o += [f"ds_read_b128 v[{96+4*i}:{96+4*i+3}], v{t2} offset:{4096*(i//2)+1024*(i%2)}" for i in range(8)] + signal(F_K)
    o += ebatch()
    o += spin_ev(R_K, 'all', HQ)
    o += [f"ds_read_b128 v[{64+4*i}:{64+4*i+3}], v{t1} offset:{STK+4096*(i//2)+1024*(i%2)}" for i in range(8)] + signal(F_K)
    o += stamp(2)
    o += [mfma(32, 64 + 4 * i, 96 + 4 * i, 32 if i else None) for i in range(8)]
    o += [f"v_cvt_pk_bf16_f32 v{56+p}, v{32+2*p}, v{33+2*p}" for p in range(8)]
    o += [f"buffer_store_dwordx4 v[{56+4*e}:{59+4*e}], v{vL16}, s[{sWSD}:{sWSD+3}], s44 offen offset:{1024*e} sc1" for e in range(2)]
    o += ["s_waitcnt vmcnt(0)"]
    o += notify(46, 24, vEp) + land(ST_WA1)
    o += stamp(3)
    o += ["s_nop 1", "@reset", "L_xjoin:", f"s_setprio {OPT.get('hprio', 2)}"]
    if OPT.get('wopf', 1):
        Lp = lab('wopf')
        o += [f"s_cmp_eq_u32 s{sJ}, 0", f"!s_cbranch_scc0 {Lp}",
              f"s_lshr_b32 s{sT0}, s2, 3", f"s_mul_i32 s{sT0}, s{sT0}, {98*128}", f"v_lshl_add_u32 v24, v0, 7, s{sT0}",
              f"v_add_u32 v25, {49*128}, v24",
              "s_mov_b32 exec_hi, 0x1ffff"]
        for p in (sAO, sBO):
            o += [f"!global_load_dword v12, v24, s[{p}:{p+1}]", f"!global_load_dword v12, v25, s[{p}:{p+1}]"]
        o += ["s_mov_b64 exec, -1", f"!{Lp}:"]
    def xb(ptr, row0, lds, n):
        return [f"s_mov_b32 s{sXD}, s{ptr}", f"s_mov_b32 s{sXD+1}, s{ptr+1}", f"s_mov_b32 s{sOff}, {row0*896}",
                f"s_mov_b32 m0, {lds}"] + d7 * n
    r0 = wait_land(ST_WA1, HQ, inline=True) + call("r0")
    o += [f"s_cmp_eq_u32 s{sJ}, 1", "!s_cbranch_scc1 L_x1p",
          f"s_cmp_ge_u32 s{sJ3}, 28", "!s_cbranch_scc1 L_xfin"]
    o += r0
    o += spin_ev(F_K, 'hi', HQ, ge=2) + spin_ev(E_P3, 'all', HQ) + spin_ev(KVISS, 'lo', HQ)
    o += stamp(4)
    o += xb(sAO, 0, WBA, 3) + xb(sAO, 224, WBA + WBAS, 3)
    o += call("phi") + p3_setup() + [f"s_mov_b32 s{sOBd}, 0"]
    o += serve_ev(GRDY)
    o += xb(sAO, 168, WBB, 1) + xb(sAO, 224 + 168, WBB + WBBS, 1)
    o += [f"s_cmp_lg_u32 s{sOBd}, 0", "!s_cbranch_scc1 L_xt0"] + call("ob") + [f"s_mov_b32 s{sOBd}, 1", "s_waitcnt vmcnt(3)", "s_branch L_xt1",
          "L_xt0:", "s_waitcnt vmcnt(0)", "L_xt1:"] + land(ST_WB) + stamp(5)
    o += ["s_branch L_p3", "@reset", "L_x1p:"]
    Lq = lab('nr0')
    o += [f"s_cmp_ge_u32 s{sJ3}, 28", f"!s_cbranch_scc1 {Lq}"] + wait_land(ST_WA1, HQ, inline=True) + call("r0") + [f"{Lq}:"]
    o += call("phi") + p3_setup() + [f"s_mov_b32 s{sOBd}, 0"]

    o += [f"s_lshl_b32 s{sT1}, s{sH}, 7", f"s_add_u32 s{sT1}, s{sT1}, {N1}"]
    o += stamp(7, 'y')
    o += spoll(56, sT1, 36, 16, 16, sleep=OPT.get('psleep', 1))
    o += [f"s_lshl_b32 s44, s{sH}, 15", f"s_add_u32 s44, s44, {KVP}"]
    o += stamp(4)

    def pl(n):
        r = [f"buffer_load_dwordx4 v[{64+4*(n%16)}:{67+4*(n%16)}], v{vL16}, s[{sWSD}:{sWSD+3}], s44 offen offset:{1024*(n%4)} sc1"]
        return r + (["s_add_u32 s44, s44, 4096"] if n % 4 == 3 else [])
    for n in range(16):
        o += pl(n)
    o += [f"s_setprio {OPT.get('kvprio', 2)}"]
    for n in range(32):
        o += [mfma(32, IDF + 4 * (n % 2), 64 + 4 * (n % 16), 32 if n else None)]
        if n < 16:
            o += pl(n + 16)
    o += [f"s_setprio {OPT.get('hprio', 2)}"]
    o += stamp(9, 'y')
    o += [f"v_cvt_pk_bf16_f32 v{96+p}, v{32+2*p}, v{33+2*p}" for p in range(8)]
    o += [f"v_add_u32 v24, {KVF}, v{vL16}",
          f"ds_write_b128 v24, v[96:99]", f"ds_write_b128 v24, v[100:103] offset:1024"] + signal(KVRDY)
    o += call("ob") + [f"s_mov_b32 s{sOBd}, 1"]
    o += stamp(5)
    o += [f"s_cmp_ge_u32 s{sJ3}, 28", "!s_cbranch_scc1 L_xend"]
    o += ["s_branch L_p3", "@reset", "L_xfin:"] + call("phi") + call("ob") + ["L_xend:"] + stamp_flush(20, 0) + ["s_endpgm"]
    return o


HEADER = f"""; Fused sliding-window attention + linear attention + gated output projection (gfx950).
; One persistent launch: 256 workgroups x 8 waves (4 compute, 2 loader, 2 auxiliary).
; @launch grid=(256,1,1) block=(512,1,1) lds=163840
.amdgcn_target "amdgcn-amd-amdhsa--gfx950"
.text
.globl {NAME}_kernel
.p2align 8
.type {NAME}_kernel,@function
{NAME}_kernel:
"""
FOOTER = f"""
.section .rodata,"a"
.p2align 6
.amdhsa_kernel {NAME}_kernel
  .amdhsa_next_free_vgpr 256
  .amdhsa_next_free_sgpr 102
  .amdhsa_accum_offset 256
  .amdhsa_group_segment_fixed_size 0
  .amdhsa_kernarg_size 80
  .amdhsa_user_sgpr_count 2
  .amdhsa_user_sgpr_kernarg_segment_ptr 1
  .amdhsa_system_sgpr_workgroup_id_x 1
.end_amdhsa_kernel
"""


def main():
    body = prologue()
    SLEEP[0] = OPT.get('sleep', 1)
    l = l_wave()
    x = x_wave()
    p3 = phase3()
    sub = subroutines()
    SLEEP[0] = 0
    c = c_wave()
    rep = []
    lines = finalize(body + l + x + p3 + sub + c, rep)
    lines += ['    ' + s if not s.endswith(':') else s for s in slow]
    lines += ["L_abort:", "L_exit:", "    s_endpgm", "L_end:"]
    open(sys.argv[1], 'w').write(HEADER + "\n".join(lines) + FOOTER)
    big = [r for r in rep if r[0] >= 3]
    print("nops inserted:", len(rep), "total states", sum(r[0] for r in rep))
    for r in big:
        print("   ", r)


main()
```

```python
import sys, math, struct
from asmlib import finalize, merge

NAME = "gated_mix__sliding_block__linear_attn_block__prompt"
OPT = dict(stamps=0, l1=16, l3=8, prefetch=2, touch=0, refetch=0, wopf=0)
for a in sys.argv[2:]:
    k, v = a.split('=')
    OPT[k] = int(v)


def fhex(x):
    return '0x%08x' % struct.unpack('<I', struct.pack('<f', x))[0]


LOG2E = math.log2(math.e)
KSCALE = LOG2E * 28 ** -0.5
SPIN = 60000

def XR(c): return 16384 * (c % 4)
def WR(c): return 65536 + 16384 * (c % 4)
QLOC = [131072 + 4096 * c for c in range(6)] + [114688] + [114688 + 4096 * c for c in (1, 2, 3)] + [49152 + 4096 * c for c in range(4)]
QBB = 114688
KL = 16384
VL = 131072
STQ, STV, STK = 0, 16384, 32768
STG, STGS = 65536, 21504
WBA, WBAS = 40960, 67584
WBB, WBBS = 0, 7168
MISC = 158720
LANDC = MISC + 256
JUNK = MISC + 512
GL = MISC + 1536
KVF = MISC + 2560
E_PA, X_PUB, E_P2, E_P3, R_K, R_V, R_Q, E_OA, F_K, E_P3A, R1, GRDY, KVRDY, EPOCH, KVISS, STI = range(16)
ST_K, ST_V, ST_WA1, ST_WB, ST_WA2 = 21, 22, 23, 24, 25

KG, VG, OA, OB, KVP, KVT = 0x000000, 0x200000, 0x400000, 0x600000, 0x800000, 0xA00000
FK, FV, N1, N2, NA, NB, EPW = 0xA40000, 0xA48000, 0xA60000, 0xA80000, 0xAA0000, 0xAC0000, 0xA50000
STAMPS = 0xB00000
WS_SIZE = 0x1000000

sX, sAW, sAO, sBW, sBO, sGW, sOUT, sDBG, sWS = 4, 6, 8, 12, 14, 16, 18, 20, 22
sWave, sH, sRB, sPar, sHH = 24, 25, 26, 27, 28
sT0, sT1, sT2, sTO = 29, 30, 31, 3
sZ = 74
sWSD = 32
sStamp = 76
sJ3, sCT, sTB = 100, 10, 11
sW4 = 101

_lab = [0]
slow = []
ROLE = ['P']
SLEEP = [0]
vL16, vM, vOne, vF, vMs = 1, 10, 11, 12, 13
vFq = 252


def lab(p):
    _lab[0] += 1
    return f"L_{p}_{_lab[0]}"


def srd(d, ptr, size, add=0):
    o = []
    if ptr == sWS:
        add += OPT.get('wsoff', 0) << 20
    if add:
        o += [f"s_add_u32 s{d}, s{ptr}, {add}", f"s_addc_u32 s{d+1}, s{ptr+1}, 0"]
    else:
        o += [f"s_mov_b32 s{d}, s{ptr}", f"s_mov_b32 s{d+1}, s{ptr+1}"]
    o += [f"s_mov_b32 s{d+2}, {size}", f"s_mov_b32 s{d+3}, 0x20000"]
    return o


def stamp(i, kind=''):
    if not OPT['stamps']:
        return []
    alt = OPT.get('alt', 0)
    if kind == 'z':
        return [f"!s_memtime s[{sStamp+2*i}:{sStamp+2*i+1}]"] if alt == 5 else []
    if kind == 's':
        return [f"!s_memtime s[{sStamp+2*i}:{sStamp+2*i+1}]"] if alt == 9 else []
    if alt == 9 and 4 <= i <= 8:
        return []
    if ROLE[0] == 'L' and (alt in (1, 11)) != (kind == 'f'):
        return []
    if kind == 'z':
        return [f"!s_memtime s[{sStamp+2*i}:{sStamp+2*i+1}]"] if alt == 5 else []
    if ROLE[0] == 'H' and alt in (1, 3, 4, 5, 11):
        return []
    if kind == 'y' and alt != 4:
        return []
    if kind == 'x' and alt != 3:
        return []
    if ROLE[0] == 'C' and (alt in (2, 11)) != (kind == 'f'):
        return []
    return [f"!s_memtime s[{sStamp+2*i}:{sStamp+2*i+1}]"]


def stamp_flush(vt, vlane):
    if not OPT['stamps'] or 'pw' in OPT:
        return []
    o = ["s_mov_b64 exec, -1", "s_waitcnt lgkmcnt(0)", f"v_mov_b32 v{vt}, 0"]
    for i in range(12):
        o.append(f"v_writelane_b32 v{vt}, s{sStamp+2*i}, {i}")
    o.append(f"v_writelane_b32 v{vt}, s0, 12")
    o += [f"s_lshl_b32 s{sT0}, s1, 3", f"s_add_u32 s{sT0}, s{sT0}, s{sWave}", f"s_lshl_b32 s{sT0}, s{sT0}, 8",
          f"s_add_u32 s{sT0}, s{sT0}, {STAMPS}",
          f"v_lshlrev_b32 v{vt+1}, 2, v{vlane}",
          f"buffer_store_dword v{vt}, v{vt+1}, s[{sWSD}:{sWSD+3}], s{sT0} offen"]
    return o


def _tmo():
    return [f"s_add_u32 s{sTO}, s{sTO}, 1", f"s_cmp_gt_u32 s{sTO}, {SPIN}", "s_cbranch_scc1 L_abort"]


def _ev_read(ev, which, q):
    if which == 'all':
        return [f"ds_read_b128 v[{q}:{q+3}], v{vM} offset:{16*ev}"], \
               [f"v_min3_u32 v{q}, v{q}, v{q+1}, v{q+2}", f"v_min_u32 v{q}, v{q}, v{q+3}"]
    if which in ('hi', 'lo'):
        return [f"ds_read_b64 v[{q}:{q+1}], v{vM} offset:{16*ev + (8 if which == 'hi' else 0)}"], \
               [f"v_min_u32 v{q}, v{q}, v{q+1}"]
    if which == 'own':
        return [f"ds_read_b32 v{q}, v{vOwn} offset:{16*ev}"], []
    return [f"ds_read_b32 v{q}, v{vM} offset:{16*ev + 4*which}"], []


def spin_ev(ev, which, q=None, ge=1):
    q = vFq if q is None else q
    L, L2 = lab('sp'), lab('spx')
    rd, red = _ev_read(ev, which, q)
    o = ["s_waitcnt lgkmcnt(0)", f"!s_mov_b32 s{sTO}, 0", f"!{L}:"]
    o += ["!" + x for x in rd + _tmo() + ["s_waitcnt lgkmcnt(0)"] + red]
    if SLEEP[0]:
        o += [f"!v_cmp_le_u32 vcc, {ge}, v{q}", f"!s_cbranch_vccnz {L2}", f"!!s_sleep {SLEEP[0]}", f"!!s_branch {L}", f"!{L2}:"]
    else:
        o += [f"!v_cmp_gt_u32 vcc, {ge}, v{q}", f"!s_cbranch_vccnz {L}"]
    return o


def check_ev(ev, which, q):
    Ls, Lb = lab('slow'), lab('back')
    rd, red = _ev_read(ev, which, q)
    slow.extend([f"{Ls}:", f"s_mov_b32 s{sTO}, 0", f"{Ls}_s:"] + rd + _tmo() + ["s_waitcnt lgkmcnt(0)"] + red +
                [f"v_cmp_eq_u32 vcc, 0, v{q}", f"s_cbranch_vccnz {Ls}_s", f"s_branch {Lb}"])
    return rd, red + [f"v_cmp_eq_u32 vcc, 0, v{q}", f"!s_cbranch_vccnz {Ls}", f"!{Lb}:"]


def wait_land(st, q=None, inline=False, n=2, near=False):
    q = vFq if q is None else q
    rd = f"ds_read_b32 v{q}, v{vM} offset:{256 + 4*st}"
    if inline:
        L, L2 = lab('wl'), lab('wlx')
        o = ["s_waitcnt lgkmcnt(0)", f"!s_mov_b32 s{sTO}, 0", f"!{L}:"] + ["!" + x for x in [rd] + _tmo() + ["s_waitcnt lgkmcnt(0)"]]
        if SLEEP[0]:
            return o + [f"!v_cmp_eq_u32 vcc, {n}, v{q}", f"!s_cbranch_vccnz {L2}", f"!!s_sleep {SLEEP[0]}", f"!!s_branch {L}", f"!{L2}:"]
        return o + [f"!v_cmp_ne_u32 vcc, {n}, v{q}", f"!s_cbranch_vccnz {L}"]
    Ls, Lb = lab('slow'), lab('back')
    if near:
        return [rd], [f"v_cmp_eq_u32 vcc, {n}, v{q}", f"!s_cbranch_vccnz {Lb}", f"!!s_mov_b32 s{sTO}, 0", f"!{Ls}:"] + \
            ["!!" + x for x in [rd] + _tmo() + ["s_waitcnt lgkmcnt(0)", f"v_cmp_ne_u32 vcc, {n}, v{q}", f"s_cbranch_vccnz {Ls}"]] + [f"!{Lb}:"]
    slow.extend([f"{Ls}:", f"s_mov_b32 s{sTO}, 0", f"{Ls}_s:", rd] + _tmo() +
                ["s_waitcnt lgkmcnt(0)", f"v_cmp_ne_u32 vcc, {n}, v{q}", f"s_cbranch_vccnz {Ls}_s", f"s_branch {Lb}"])
    return [rd], [f"v_cmp_ne_u32 vcc, {n}, v{q}", f"!s_cbranch_vccnz {Ls}", f"!{Lb}:"]


vMl = 12


def land(st):
    return [f"ds_add_u32 v{vMl}, v{vOne} offset:{4*st}"]


def signal(ev):
    return [f"ds_add_u32 v{vMs}, v{vOne} offset:{16*ev}"]


def mfma(d, a, b, c):
    cs = f"v[{c}:{c+15}]" if isinstance(c, int) and c >= 0 else "0"
    return f"v_mfma_f32_32x32x16_bf16 v[{d}:{d+15}], v[{a}:{a+3}], v[{b}:{b+3}], {cs}"


def tr(d, a, off, tag=None):
    return f"ds_read_b64_tr_b16 v[{d}:{d+1}], v{a} offset:{off}" + (f" ;@tag={tag}" if tag else "")


vOwn = 9


def common_setup():
    return [f"v_lshlrev_b32 v{vL16}, 4, v0", f"v_mov_b32 v{vM}, {MISC}", f"v_mov_b32 v{vOne}, 1",
            f"s_and_b32 s{sW4}, s{sWave}, 3",
            f"v_lshlrev_b32 v{vMs}, 2, v0", f"v_add_u32 v{vMs}, {JUNK}, v{vMs}",
            f"s_lshl_b32 s{sT0}, s{sW4}, 2", f"s_add_u32 s{sT0}, s{sT0}, {MISC}",
            f"v_writelane_b32 v{vMs}, s{sT0}, 0"]


def prologue():
    o = []
    o += ["s_load_dwordx4 s[4:7], s[0:1], 0", "s_load_dwordx8 s[12:19], s[0:1], 32",
          "s_load_dwordx4 s[20:23], s[0:1], 64", "s_load_dwordx2 s[8:9], s[0:1], 16"]
    o += stamp(0)
    if OPT['stamps']:
        o += ["!s_memrealtime s[0:1]"]
    if OPT.get('until'):
        o += ["!s_memtime s[98:99]"]
    o += ["s_cmp_ge_u32 s2, 256", "!s_cbranch_scc1 L_exit",
          "v_lshrrev_b32 v1, 6, v0", "v_and_b32 v0, 63, v0", f"v_xor_b32 v1, {OPT.get('wswap', 4)}, v1", "s_nop 0",
          f"v_readfirstlane_b32 s{sWave}, v1"] + code_prefetch() + [
          f"s_and_b32 s{sT0}, s2, 7", f"s_lshr_b32 s{sT1}, s2, 3",
          f"s_and_b32 s{sH}, s{sT0}, 1", f"s_lshl_b32 s{sH}, s{sH}, 3",
          f"s_and_b32 s{sT2}, s{sT1}, 7", f"s_add_u32 s{sH}, s{sH}, s{sT2}",
          f"s_lshr_b32 s{sRB}, s{sT0}, 1", f"s_lshl_b32 s{sRB}, s{sRB}, 2",
          f"s_lshr_b32 s{sT2}, s{sT1}, 3", f"s_add_u32 s{sRB}, s{sRB}, s{sT2}",
          f"s_and_b32 s{sPar}, s{sH}, 1", f"s_lshr_b32 s{sHH}, s{sH}, 1",
          f"s_and_b32 s{sT0}, s2, 1", f"s_xor_b32 s{sZ}, s{sPar}, s{sT0}", f"s_xor_b32 s{sZ}, s{sZ}, 1"]
    o += common_setup()
    o += [f"s_cmp_lt_u32 s{sWave}, 4", "!s_cbranch_scc1 L_cwave",
          f"s_cmp_ge_u32 s{sWave}, 6", "!s_cbranch_scc1 L_xwave"]
    return o


vXA, vW0, vW1, vQB, vQA, vLow, vSt = 2, 6, 7, 8, 9, 14, 15
PK = 16
WB = 32
MK = 56
accA, accB = 64, 96
XF = 128
QF = 240
vMA, vMB = 248, 249
TMP = 250
sMask = 40
sL2E, sEps, sKS, sTile, sSt = 72, 73, 39, 75, 36


def c_setup():
    o = []
    lo, hh, t0, t1, t2 = 20, 21, 22, 23, 24
    o += [f"v_and_b32 v{lo}, 31, v0", f"v_lshrrev_b32 v{hh}, 5, v0",
          f"s_lshl_b32 s{sTile}, s{sRB}, 2", f"s_add_u32 s{sTile}, s{sTile}, s{sWave}",
          f"s_mov_b32 s{sL2E}, {fhex(LOG2E)}", f"s_mov_b32 s{sEps}, {fhex(1e-6)}", f"s_mov_b32 s{sKS}, {fhex(KSCALE)}"]
    o += [f"v_bfe_u32 v{t0}, v0, 1, 3", f"v_xor_b32 v{t0}, v{t0}, v{hh}",
          f"s_lshl_b32 s{sT0}, s{sWave}, 12",
          f"v_add_u32 v{vSt}, s{sT0}, v{vL16}",
          f"v_lshlrev_b32 v{t1}, 7, v{lo}", f"v_add_u32 v{t1}, s{sT0}, v{t1}"]
    for s in range(4):
        o += [f"v_xor_b32 v{t2}, {2*s}, v{t0}", f"v_lshl_add_u32 v{vXA+s}, v{t2}, 4, v{t1}"]
    r, cg, row = 25, 26, 27
    o += [f"v_bfe_u32 v{r}, v0, 2, 2", f"v_bfe_u32 v{t0}, v0, 4, 1", f"v_and_b32 v{cg}, 3, v0",
          f"v_lshl_add_u32 v{cg}, v{t0}, 2, v{cg}",
          f"v_lshl_add_u32 v{row}, v{hh}, 3, v{r}"]
    o += [f"v_lshrrev_b32 v{t0}, 1, v{r}",
          f"v_lshlrev_b32 v{t1}, 7, v{row}", f"v_add_u32 v{t1}, 65536, v{t1}",
          f"v_lshl_add_u32 v{vW0}, v{t0}, 6, v{t1}",
          f"v_xor_b32 v{vW1}, 64, v{vW0}",
          f"v_lshl_add_u32 v{vW0}, v{cg}, 3, v{vW0}",
          f"s_xor_b32 s{sT0}, s{sZ}, 1",
          f"v_add_u32 v{t2}, s{sT0}, v{cg}", f"v_and_b32 v{t2}, 7, v{t2}",
          f"v_lshl_add_u32 v{vW1}, v{t2}, 3, v{vW1}"]
    o += [f"v_lshlrev_b32 v{t1}, 6, v{row}",
          f"v_add_u32 v{t2}, s{sPar}, v{cg}", f"v_and_b32 v{t2}, 7, v{t2}",
          f"v_lshl_add_u32 v{vQB}, v{t2}, 3, v{t1}", f"v_add_u32 v{vQB}, {QBB}, v{vQB}",
          f"v_and_b32 v{t0}, 1, v{cg}", f"v_lshlrev_b32 v{t0}, 1, v{t0}",
          f"v_bfe_u32 v{t2}, v{cg}, 1, 1", f"v_or_b32 v{t0}, v{t0}, v{t2}",
          f"v_and_b32 v{t2}, 4, v{cg}", f"v_or_b32 v{t0}, v{t0}, v{t2}",
          f"v_lshl_add_u32 v{vQA}, v{t0}, 3, v{t1}", f"v_add_u32 v{vQA}, {QBB}, v{vQA}"]
    o += [f"v_add_u32 v{vLow}, -1, v{hh}",
          f"s_sub_u32 s{sT0}, s{sPar}, 1",
          f"v_not_b32 v{t0}, v{vLow}",
          f"v_or_b32 v{vMA}, s{sT0}, v{t0}",
          f"s_not_b32 s{sT0}, s{sT0}",
          f"v_or_b32 v{vMB}, s{sT0}, v{vLow}"]
    o += [f"v_lshlrev_b32 v{t0}, 2, v{hh}", f"v_sub_u32 v{t0}, v{lo}, v{t0}"]
    for rr in range(16):
        b = 8 * (rr >> 2) + (rr & 3)
        o.append(f"v_cmp_le_i32 s[{sMask+2*rr}:{sMask+2*rr+1}], {b}, v{t0}")
    o += [f"v_mov_b32 v{t1}, 0xffff", f"v_mov_b32 v{t2}, 0xffff0000"]
    for p in range(8):
        o += [f"v_cndmask_b32 v{MK+p}, 0, v{t1}, s[{sMask+4*p}:{sMask+4*p+1}]",
              f"v_cndmask_b32 v{t0}, 0, v{t2}, s[{sMask+4*p+2}:{sMask+4*p+3}]",
              f"v_or_b32 v{MK+p}, v{MK+p}, v{t0}"]
    return o


ZD = OPT.get('zd', 1)
YD = OPT.get('yd', 1)
EPSM = OPT.get('epsm', 1)
sKD = 8


def gemm_frags(isY):
    fr = []
    for k in range(28):
        c, s = divmod(k, 4)
        order = [(0, 0), (0, 1), (1, 0), (1, 1)] if k < 27 else [(1, 0), (1, 1), (0, 0), (0, 1)]
        for i, (p, j) in enumerate(order):
            fr.append(dict(step=c, addr=(vW0, vW1)[j], off=XR(c) + 8192 * p + s * 2048, du=512, k=k,
                           acc=(accA, accB)[p] + 16 * j, wfirst=(p == 0 and not isY), pre=[],
                           xread=(f"ds_read_b128 v[{XF+4*k}:{XF+4*k+3}], v{vXA+s} offset:{XR(c)}" if i == 0 else None)))
    for q, a in enumerate((vQB, vQA)):
        for k in range(28):
            c, s = divmod(k, 4)
            loc = QLOC[7 * q + c]
            base = QBB if loc >= QBB else 49152
            pre = [f"v_subrev_u32 v{vQA}, {QBB-49152}, v{vQA}"] if (q, k) == (1, 12) else []
            fr.append(dict(step=7 + 7 * q + c, addr=a, off=loc - base + s * 1024, du=256, k=k,
                           acc=accB + 16 * q, wfirst=True, pre=pre, xread=None))
    return fr


def need_step(st):
    if st < 7:
        return st
    base = 7 if st < 14 else 14
    return base + {0: 0, 1: 2, 2: 2, 3: 4, 4: 4, 5: 6, 6: 6}[st - base]


def gemm_slots(isY):
    fr = gemm_frags(isY)
    N = len(fr)
    D = 5
    slots = []
    issued = 0
    checked = set()
    early = {}
    for n in range(N):
        cur = []
        f = fr[n]
        lim = 3 if n == 0 else min(n + D, N - 1)
        if (YD if isY else ZD) and n < 112:
            lim = min(lim, 111)
        if (YD if isY else ZD) and n == 112:
            lim = 114
        while issued <= lim:
            g = fr[issued]
            st = need_step(g['step'])
            if st not in checked:
                checked.add(st)
                if st == 0:
                    cur += stamp(8, 's') + wait_land(st, inline=True) + stamp(1)
                else:
                    if st not in early:
                        rd, early[st] = wait_land(st, q=vFq + 2)
                        cur += rd
                    cur += early[st]
                if st == 5:
                    cur += ["s_waitcnt vmcnt(0)"]
            b = WB + 4 * (issued % 6)
            cur += g['pre']
            if g['xread']:
                cur.append(g['xread'])
            cur += [tr(b, g['addr'], g['off']), tr(b + 2, g['addr'], g['off'] + g['du'], tag=f"f{issued}")]
            issued += 1
            last_of_step = issued == N or fr[issued]['step'] != g['step']
            if last_of_step:
                ev = {0: E_PA, 1: E_PA, 2: E_PA, 3: E_PA, 6: E_P2, 13: E_P3A, 20: E_P3}.get(g['step'])
                if ev is not None:
                    cur += signal(ev)
        if issued + 1 < N:
            st = need_step(fr[issued + 1]['step'])
            if (YD if isY else ZD) and st == 7:
                early[st] = wait_land(7, inline=True)
            if st > 0 and st not in early:
                rd, early[st] = wait_land(st, q=vFq + 2, near=(st <= OPT.get('near', 7)))
                cur += rd
        if n % 2 == 0:
            cur.append(f"@wait_ds f{n+1}")
        b = WB + 4 * (n % 6)
        x = XF + 4 * f['k']
        A, B = (b, x) if f['wfirst'] else (x, b)
        cur.append(mfma(f['acc'], A, B, f['acc'] if f['k'] else None))
        slots.append(cur)
    if OPT.get('alt') in (2, 11):
        for i in range(11):
            n = OPT['cst'] + i * OPT.get('cstep', 4)
            if n < len(slots):
                slots[n] = stamp(i + 1, 'f') + slots[n]
    return slots


def phi_pair(a, b, ta, tb, dst, l2e, eps):
    r = [f"v_mul_f32 v{ta}, s{l2e}, v{a}", f"v_mul_f32 v{tb}, s{l2e}, v{b}",
            f"v_exp_f32_e64 v{ta}, v{ta} clamp", f"v_exp_f32_e64 v{tb}, v{tb} clamp",
            f"v_max_f32 v{a}, 0, v{a}", f"v_max_f32 v{b}, 0, v{b}",
            f"v_add_f32 v{a}, v{a}, v{ta}", f"v_add_f32 v{b}, v{b}, v{tb}",
            f"v_add_f32 v{a}, s{eps}, v{a}", f"v_add_f32 v{b}, s{eps}, v{b}",
            f"v_cvt_pk_bf16_f32 v{dst}, v{a}, v{b}"]
    return r if eps is not None else r[:8] + r[10:]


def c_gemm(isY):
    slots = gemm_slots(isY)
    pa, p3a, p3b = slots[:112], slots[112:140], slots[140:168]
    o = []
    for s in pa:
        o += s
    o += stamp(2)
    wr = lambda d, i, base: f"ds_write_b128 v{vSt}, v[{d}:{d+3}] offset:{base + 1024*i}"
    vc = lambda j: [f"v_cvt_pk_bf16_f32 v{PK+8*j+i}, v{accB+16*j+2*i}, v{accB+16*j+2*i+1}" for i in range(8)]
    vw = [wr(PK + 4 * i, i, STV) for i in range(4)]
    if not isY and ZD:
        o += srd(sKD, sWS, WS_SIZE) + [f"s_cmp_eq_u32 s{sH}, 15", f"s_cselect_b32 s{sKD+2}, 0, s{sKD+2}",
              f"s_mul_i32 s36, s{sTile}, 28672", f"s_lshl_b32 s{sT0}, s{sHH}, 10", f"s_add_u32 s37, s36, s{sT0}",
              f"s_add_u32 s37, s37, {VG}", "s_add_u32 s38, s37, 14336", f"s_lshl_b32 s{sT0}, s{sHH}, 12", f"s_add_u32 s36, s36, s{sT0}"]
        for j in range(2):
            a = accA + 16 * j
            for i in range(8):
                o += [f"v_mul_f32 v{a+2*i}, s{sKS}, v{a+2*i}", f"v_mul_f32 v{a+2*i+1}, s{sKS}, v{a+2*i+1}",
                      f"v_cvt_pk_bf16_f32 v{a+i}, v{a+2*i}, v{a+2*i+1}"]
            o += [f"v_permlane32_swap_b32 v{a+x}, v{a+x+2}" for x in (0, 1, 4, 5)]
            o += [f"buffer_store_dwordx4 v[{a+4*e}:{a+4*e+3}], v{vL16}, s[{sKD}:{sKD+3}], s36 offen offset:{1024*(2*j+e)} sc1 ;@tag=kst" for e in range(2)]
        o += vc(0) + vc(1) + [f"v_lshrrev_b32 v{TMP}, 5, v0", f"v_mul_u32_u24 v{TMP}, {7168-512}, v{TMP}", f"v_add_u32 v{TMP}, v{TMP}, v{vL16}"]
        o += [f"buffer_store_dwordx4 v[{PK+4*i}:{PK+4*i+3}], v{TMP}, s[{sKD}:{sKD+3}], s{37+i%2} offen offset:{512*(i//2)} sc1 ;@tag=vst" for i in range(4)]
        o += signal(STI) + (signal(R_K) + signal(R_V) if OPT.get('w3') else ["@wait_vm kst"] + signal(R_K) + ["@wait_vm vst"] + signal(R_V))
        f = []
        per = 1
    elif not isY:
        o += vc(0)
        f = []
        for j in range(2):
            a = accA + 16 * j
            for i in range(8):
                f += [f"v_mul_f32 v{a+2*i}, s{sKS}, v{a+2*i}", f"v_mul_f32 v{a+2*i+1}, s{sKS}, v{a+2*i+1}",
                      f"v_cvt_pk_bf16_f32 v{a+i}, v{a+2*i}, v{a+2*i+1}"]
            f += [f"v_permlane32_swap_b32 v{a+x}, v{a+x+2}" for x in (0, 1, 4, 5)]
            f += [wr(a + 4 * e, 2 * j + e, STK) for e in range(2)]
        f += signal(R_K) + vc(1) + vw + signal(R_V)
        per = OPT.get('kper', 40)
    else:
        o += vc(0)
        f = vc(1) + vw + signal(R_V)
        for p in range(16):
            a = accA + 16 * (p // 8)
            i = p % 8
            f += phi_pair(a + 2 * i, a + 2 * i + 1, TMP, TMP + 1, a + i, sL2E, None if EPSM else sEps)[-1 if OPT.get('w2') else 0:]
            if p % 4 == 3:
                f.append(wr(a + i - 3, p // 4, STK))
        f += signal(R_K)
        per = OPT.get('yper', 40)
        if YD:
            o += sum([x if isinstance(x, list) else [x] for x in f], [])
            f = []
    o += merge(p3a, f, start=0, per=per)
    o += stamp(4)
    f = [f"v_cvt_pk_bf16_f32 v{PK+i}, v{accB+2*i}, v{accB+2*i+1}" for i in range(8)]
    f += [wr(PK, 0, STQ), wr(PK + 4, 1, STQ)] + signal(R_Q)
    o += merge(p3b, f, start=4, per=2)
    o += stamp(5)
    a = accB + 16
    o += [f"v_cvt_pk_bf16_f32 v{QF+i}, v{a+2*i}, v{a+2*i+1}" for i in range(8)]
    o += [f"v_and_b32 v{QF}, v{QF}, v{vMA}", f"v_and_b32 v{QF+1}, v{QF+1}, v{vMA}",
          f"v_and_b32 v{QF+6}, v{QF+6}, v{vMB}", f"v_and_b32 v{QF+7}, v{QF+7}, v{vMB}"]
    return o


CM, SA, SB, SC, SF, SX = 16, 32, 64, 80, 96, 112
KFR = 128
PA, PB, PF = 200, 208, 216
OACC = 96
VF = (224, 232)
vKA, vVA, vMx, vG = 2, 3, 4, 5
NEG = '0xf149f2ca'


def attention(guard):
    sI0 = sSt
    o = []

    def kread(i):
        b = KFR + 8 * i
        return [f"ds_read_b128 v[{b+4*s}:{b+4*s+3}], v{vKA} offset:{2048*i+1024*s} ;@tag=k{i}" for s in range(2)]

    def vread(i, buf):
        return [f"ds_read_b128 v[{buf+4*s}:{buf+4*s+3}], v{vVA} offset:{2048*i+1024*s} ;@tag=v{i}" for s in range(2)]

    def qk(d, i, c):
        b = KFR + 8 * i
        return [mfma(d, b, QF, c), mfma(d, b + 4, QF + 4, d)]

    def setc(i, src):
        L, Lb = lab('g'), lab('gb')
        slow.extend([f"{L}:", "s_nop 7"] + [f"v_mov_b32 v{CM+r}, {src}" for r in range(16)] + [f"s_branch {Lb}"])
        return [f"s_cmp_eq_u32 s{sI0}, {i}", f"!s_cbranch_scc1 {L}", f"!{Lb}:"]

    def maxes(s, first):
        m = []
        if first:
            m.append(f"v_max3_f32 v{vMx}, v{s}, v{s+1}, v{s+2}")
            rest = list(range(3, 16))
        else:
            rest = list(range(16))
        while rest:
            if len(rest) >= 2:
                m.append(f"v_max3_f32 v{vMx}, v{vMx}, v{s+rest[0]}, v{s+rest[1]}")
                rest = rest[2:]
            else:
                m.append(f"v_max_f32 v{vMx}, v{vMx}, v{s+rest[0]}")
                rest = []
        return m

    b1 = {0: SF, 8: SC}
    bufs = {}
    for i in range(1, 8):
        b1[i] = (SA, SB, SX)[i % 3]
        bufs[i] = (SA, SB)[i % 2]
    mrg = [f"v_cndmask_b32 v{SC+r}, v{SF+r}, v{SC+r}, s[{sMask+2*r}:{sMask+2*r+1}]" for r in range(16)]
    t = TMP
    cross = [f"v_mov_b32 v{t}, v{vMx}", f"v_permlane32_swap_b32 v{t}, v{vMx}",
             f"v_max_f32 v{vMx}, v{vMx}, v{t}", f"v_sub_f32 v{vMx}, 0, v{vMx}"]
    vrd, vchk = wait_land(ST_V)
    if guard:
        o += [f"v_mov_b32 v{CM+r}, {NEG}" for r in range(16)]
        o += wait_land(ST_K, inline=True)
        o += stamp(6)
        order = list(range(9))
        work = {i: maxes(b1[i], first=(i == 1)) for i in range(1, 8)}
        work[8] = mrg + maxes(SC, first=False)
        work[0] = []
        o += kread(order[0]) + kread(order[1]) + kread(order[2])
        q = []
        for n, i in enumerate(order):
            o += setc(i, "0")
            m = qk(b1[i], i, CM)
            nxt = kread(order[n + 3]) if n + 3 < 9 else []
            o += [f"@wait_ds k{i}", m[0]] + q[:4] + [m[1]] + nxt
            q = q[4:]
            if n >= 1:
                q = q + work[order[n - 1]]
            must = len(q) - len(work[order[n - 1]]) if n >= 1 else 0
            take = max(must, 4)
            o += q[:take]
            q = q[take:]
        o += vrd + q + work[order[-1]][:4] + vchk
        o += vread(0, VF[0]) + vread(8, VF[1])
        o += work[order[-1]][4:] + cross
        o += stamp(7)
        o += [f"v_mov_b32 v{CM+r}, {NEG}" for r in range(16)] + [f"s_max_u32 s{sI0}, s{sI0}, 1"]
        o += setc(1, f"v{vMx}")
    else:
        o += wait_land(ST_K, inline=True)
        o += stamp(6)
        o += kread(0) + kread(8) + kread(1) + kread(2)
        o += ["@wait_ds k0"] + qk(SF, 0, None) + ["@wait_ds k8"] + qk(SC, 8, None)
        for i in range(3, 8):
            o += kread(i)
        Lf, Lfb, Ln, Lnb = lab('nf'), lab('nfb'), lab('nc'), lab('ncb')
        slow.extend([f"{Lf}:", "s_nop 7"] + [f"v_mov_b32 v{SF+r}, {NEG}" for r in range(16)] + [f"s_branch {Lfb}"])
        slow.extend([f"{Ln}:"] + [f"v_mov_b32 v{CM+r}, {NEG}" for r in range(16)] + [f"s_branch {Lnb}"])
        o += [f"s_cmp_lg_u32 s{sI0}, 0", f"!s_cbranch_scc1 {Lf}", f"!{Lfb}:"]
        o += mrg + maxes(SC, first=True) + cross
        o += stamp(7)
        o += [f"v_mov_b32 v{CM+r}, v{vMx}" for r in range(16)]
        o += [f"s_cmp_gt_u32 s{sI0}, 1", f"!s_cbranch_scc1 {Ln}", f"!{Lnb}:"]

    def expcvt(s, p, sub):
        e = []
        for r in range(16):
            if sub:
                e.append(f"v_add_f32 v{s+r}, v{s+r}, v{vMx}")
        for r in range(16):
            e.append(f"v_exp_f32 v{s+r}, v{s+r}" if not (OPT.get('w4') and r % 2) else f"s_nop 0")
            if r % 2 == 1 and r >= 3:
                e.append(f"v_cvt_pk_bf16_f32 v{p+(r-3)//2}, v{s+r-3}, v{s+r-2}")
        e.append(f"v_cvt_pk_bf16_f32 v{p+7}, v{s+14}, v{s+15}")
        return e

    def spread(mf, va):
        r = []
        n = len(mf)
        k = 0
        for idx, g in enumerate(mf):
            r += g
            want = (len(va) * (idx + 1)) // n - k
            r += va[k:k + want]
            k += want
        return r

    ev = expcvt(SC, PA, True)
    ev += [x for p in range(8) for x in (f"v_and_b32 v{PB+p}, v{PA+p}, v{MK+p}", f"v_xor_b32 v{PF+p}, v{PA+p}, v{PB+p}")]
    q1 = qk(bufs[1], 1, CM)
    if guard:
        o += spread([[q1[0]], [q1[1]]], ev)
    else:
        o += spread([[q1[0]], [q1[1]] + vrd], ev[:-16]) + vchk + vread(0, VF[0]) + vread(8, VF[1]) + ev[-16:]
    prev_pv = [["@wait_ds v8", mfma(OACC, VF[0], PF, None)], [mfma(OACC, VF[0] + 4, PF + 4, OACC)] + vread(1, VF[0]),
               [mfma(OACC, VF[1], PB, OACC)], [mfma(OACC, VF[1] + 4, PB + 4, OACC)] + vread(2, VF[1])]
    gearly, glate = check_ev(GRDY, 'own', vG)
    for i in range(1, 8):
        P = (PB, PA)[i % 2]
        seq = []
        if i + 1 <= 7:
            o += setc(i + 1, f"v{vMx}")
            nq = qk(bufs[i + 1], i + 1, CM)
            seq += [[nq[0]], [nq[1]]]
        seq += prev_pv
        if i == 6:
            seq[-1] = seq[-1] + gearly
        if i == 7:
            seq[0] = glate + [f"ds_read_b32 v{vG}, v{vGA}", f"ds_read_b32 v{vEc}, v{vM} offset:{16*EPOCH}"] + seq[0]
        o += spread(seq, expcvt(bufs[i], P, False))
        vb = VF[(i + 1) % 2]
        prev_pv = [[f"@wait_ds v{i}", mfma(OACC, vb, P, OACC)],
                   [mfma(OACC, vb + 4, P + 4, OACC)] + (vread(i + 2, vb) if i + 2 <= 7 else [])]
    o += prev_pv[0] + prev_pv[1]
    return o


vGA, vEc = 8, 6
CPARK = (7, 12, 14, 248, 249)


def finish_o(A, D, vscale, t, u, soff, vtag, snot, eps=None, hook=None):
    o = [f"v_mov_b32 v{t}, v{A+15}", f"v_mov_b32 v{u}, v{A+15}", f"v_permlane32_swap_b32 v{t}, v{u}"] + (hook or [])
    if eps is not None:
        o += [f"v_add_f32 v{u}, s{eps}, v{u}"]
    o += [f"v_rcp_f32 v{u}, v{u}", f"v_mov_b32 v{t}, 0xffff", f"v_mul_f32 v{u}, v{u}, v{vscale}"]
    for p in range(8):
        o += [f"v_mul_f32 v{A+2*p}, v{A+2*p}, v{u}"]
        if p % 4 != 3:
            o += [f"v_mul_f32 v{A+2*p+1}, v{A+2*p+1}, v{u}"]
        o += [f"v_cvt_pk_bf16_f32 v{D+p}, v{A+2*p}, v{A+2*p+1}"]
        if p % 4 == 3:
            e = p // 4
            o += [f"v_bfi_b32 v{D+p}, v{t}, v{D+p}, v{vtag}",
                  f"buffer_store_dwordx4 v[{D+4*e}:{D+4*e+3}], v{vL16}, s[{sWSD}:{sWSD+3}], s{soff} offen offset:{1024*e} sc1"]
    return o + notify(snot, t, vtag)


def c_tail():
    lim = 2.0 ** OPT.get('lim', 60)
    hook = [f"v_cmp_nge_f32 vcc, {fhex(lim)}, v{TMP+1}", "!s_cbranch_vccnz L_attn_fb", "L_ctail2:"]
    o = finish_o(OACC, PA, vG, TMP, TMP + 1, sSt + 1, vEc, sSt + 2, hook=hook)
    o += signal(E_OA)
    o += stamp(3)
    if OPT.get('alt') == 8:
        o += ["s_waitcnt vmcnt(1)", f"!s_memtime s[{sStamp+8}:{sStamp+9}]", "s_waitcnt vmcnt(0)", f"!s_memtime s[{sStamp+10}:{sStamp+11}]"]
    o += c_phase3()
    o += stamp_flush(TMP, 0)
    o += ["s_endpgm"]
    return o


def cpf():
    o = []
    if OPT.get('cpf', 1):
        o += [f"s_cmp_eq_u32 s{sWave}, 1", f"s_cselect_b32 s16, s{sAW}, s{sBW}", f"s_cselect_b32 s17, s{sAW+1}, s{sBW+1}",
              "s_mov_b32 s18x, 1204224".replace("s18x", "s10"), "s_mov_b32 s11, 0x20000",
              f"s_cmp_eq_u32 s{sWave}, 0", f"s_cselect_b32 s8, s{sX}, s16", f"s_cselect_b32 s9, s{sX+1}, s17",
              f"s_cselect_b32 s10, 1835008, s10",
              f"s_cselect_b32 s{sT0}, 56, 25", f"s_mul_i32 s{sT1}, s{sT0}, s2", f"v_add_u32 v16, s{sT1}, v0",
              "v_mul_u32_u24 v17, 9363, v16", "v_lshrrev_b32 v17, 17, v17",
              f"s_cselect_b32 s{sT1}, 0, 896", f"v_mul_u32_u24 v17, s{sT1}, v17",
              f"v_lshl_add_u32 v16, v16, 7, v17", f"v_add_u32 v16, s{sT1}, v16",
              f"v_cmp_gt_u32 vcc, s{sT0}, v0", f"s_cmp_lt_u32 s{sWave}, 3", "s_cselect_b64 exec, vcc, 1",
              "!buffer_load_dword v238, v16, s[8:11], 0 offen", "s_mov_b64 exec, -1"]
    return o


def c_wave():
    ROLE[0] = 'C'
    o = ["@reset", "L_cwave:"] + stamp(4, 's')
    o += ["v_lshlrev_b32 v20, 3, v0", "v_mov_b32 v22, 0", "v_mov_b32 v23, 0", f"v_add_u32 v20, {MISC}, v20", "ds_write_b64 v20, v[22:23]",
          ]
    o += c_setup()
    o += stamp(5, 's') + ["s_waitcnt lgkmcnt(0)", "s_mov_b32 s1, s2"] + stamp(6, 's') + ([] if OPT.get('cpfpos', 1) else cpf()) + ["s_barrier"] + stamp(7, 's')
    o += srd(sWSD, sWS, WS_SIZE)
    if OPT.get('cpfpos', 1):
        o += cpf()
    o += [f"s_cmp_eq_u32 s{sZ}, 0", "!s_cbranch_scc1 L_cY"]
    o += c_gemm(False)
    o += ["s_branch L_attn", "@reset", "L_cY:"]
    o += c_gemm(True)
    o += ["L_attn:", f"s_setprio {OPT.get('cprio', 1)}"]
    o += [f"s_lshl_b32 s{sT0}, s{sWave}, 11",
          f"s_add_u32 s{sT1}, s{sT0}, {KL}", f"v_add_u32 v{vKA}, s{sT1}, v{vL16}",
          f"s_add_u32 s{sT1}, s{sT0}, {VL}", f"v_add_u32 v{vVA}, s{sT1}, v{vL16}",
          f"s_lshl_b32 s{sT0}, s{sWave}, 8", f"s_add_u32 s{sT0}, s{sT0}, {GL}", f"v_lshl_add_u32 v{vGA}, v0, 2, s{sT0}",
          f"s_lshl_b32 s{sT0}, s{sWave}, 2", f"s_add_u32 s{sT0}, s{sT0}, {MISC}", f"v_mov_b32 v{vOwn}, s{sT0}",
          f"s_lshl_b32 s{sT0}, s{sTile}, 4", f"s_add_u32 s{sT0}, s{sT0}, s{sH}",
          f"s_lshr_b32 s{sT1}, s{sT0}, 3", f"s_lshl_b32 s{sT1}, s{sT1}, 5", f"s_and_b32 s{sT2}, s{sH}, 7",
          f"s_add_u32 s{sT1}, s{sT1}, s{sT2}", f"s_lshl_b32 s{sT1}, s{sT1}, 2", f"s_add_u32 s{sSt+2}, s{sT1}, {NA}",
          f"s_lshl_b32 s{sT0}, s{sT0}, 11", f"s_add_u32 s{sSt+1}, s{sT0}, {OA}",
          f"s_min_u32 s{sSt}, s{sTile}, 8", f"s_sub_u32 s{sSt}, 8, s{sSt}"]
    o += p3_slot() + p3_early(CPARK, WBA, WBAS, tmp=128, sRt=12, sTT=13, sNo=14)
    o += attention(False)
    o += ["L_ctail:"]
    o += c_tail()
    o += ["@reset", "L_attn_fb:"]
    o += attention(True)
    o += ["s_waitcnt lgkmcnt(0)", f"v_mov_b32 v{TMP}, v{OACC+15}", f"v_mov_b32 v{TMP+1}, v{OACC+15}",
          f"v_permlane32_swap_b32 v{TMP}, v{TMP+1}", "s_branch L_ctail2", "@reset"]
    return o


def code_prefetch():
    n = OPT['prefetch']
    if not n:
        return []
    o = ["s_getpc_b64 s[38:39]", "L_pc:",
         f"s_sub_u32 s38, s38, L_pc-{NAME}_kernel", "s_subb_u32 s39, s39, 0",
         f"s_lshr_b32 s{sT0}, s2, 3", f"s_lshl_b32 s{sT1}, s{sWave}, 5", f"s_add_u32 s{sT0}, s{sT0}, s{sT1}",
         f"s_mul_i32 s{sT0}, s{sT0}, {128*n}",
         f"v_lshl_add_u32 v20, v0, 7, s{sT0}",
         f"v_min_u32 v20, L_end-{NAME}_kernel-4, v20",
         f"s_mov_b64 exec, {(1 << n) - 1}",
         "!global_load_dword v239, v20, s[38:39]", "s_mov_b64 exec, -1"]
    return o


sXD, sWD, sQBD, sQAD, sGD = 36, 40, 44, 48, 52
sKGD, sVGD = 56, 60
sRt, sTT, sE2, sL2 = 64, 65, 66, 67
sOBo, sA, sB, sC = 68, 69, 70, 71
sOff, sLi, sKh = 72, 73, 75
sEarly = 61
sOBn = 62
sNo = 63
sC7 = 53
sCc, sCx, sCw, sRot = 60, 20, 21, 61
sOBd = 60
vX, vW, vQ, vPat, vK, vV, vWO = 2, 3, 4, 5, 6, 7, 8
vEp = 15
GV = 16
HQ = 28
PQR = 16
vG1 = 27
KVr = 88
IDF = 48
sRet = 54


def p3_slot():
    return [f"s_and_b32 s{sT0}, s{sRB}, 3", f"s_lshl_b32 s{sT0}, s{sT0}, 3", f"s_and_b32 s{sT1}, s{sH}, 7",
            f"s_add_u32 s{sJ3}, s{sT0}, s{sT1}",
            f"s_cmp_ge_u32 s{sJ3}, 14", f"s_cselect_b32 s{sT0}, 14, 0", f"s_cselect_b32 s{sT1}, 1, 0",
            f"s_sub_u32 s{sT0}, s{sJ3}, s{sT0}", f"s_lshr_b32 s{sCT}, s{sT0}, 1", f"s_and_b32 s{sT0}, s{sT0}, 1",
            f"s_lshr_b32 s{sT2}, s{sH}, 3", f"s_lshl_b32 s{sT2}, s{sT2}, 1", f"s_add_u32 s{sT1}, s{sT1}, s{sT2}",
            f"s_and_b32 s{sT2}, s{sRB}, 12", f"s_add_u32 s{sT1}, s{sT1}, s{sT2}",
            f"s_lshl_b32 s{sT1}, s{sT1}, 1", f"s_add_u32 s{sT1}, s{sT1}, s{sT0}", f"s_lshl_b32 s{sTB}, s{sT1}, 1"]


def h_setup():
    return p3_slot() + [
            f"s_lshl_b32 s{sT0}, s{sW4}, 2", f"s_add_u32 s{sT0}, s{sT0}, {MISC}", f"v_mov_b32 v{vOwn}, s{sT0}",
            f"v_lshrrev_b32 v{vLow}, 5, v0", f"v_add_u32 v{vLow}, -1, v{vLow}",
            f"s_mov_b32 s{sE2}, {fhex(1e-6)}", f"s_mov_b32 s{sL2}, {fhex(LOG2E)}",
            f"s_lshl_b32 s{sT0}, s{sRB}, 2", f"s_add_u32 s{sT0}, s{sT0}, s{sW4}", f"s_lshl_b32 s{sT0}, s{sT0}, 4",
            f"s_add_u32 s{sT0}, s{sT0}, s{sH}",
            f"s_lshr_b32 s{sT1}, s{sT0}, 3", f"s_lshl_b32 s{sT1}, s{sT1}, 5", f"s_and_b32 s{sT2}, s{sH}, 7",
            f"s_add_u32 s{sT1}, s{sT1}, s{sT2}", f"s_lshl_b32 s{sT1}, s{sT1}, 2", f"s_add_u32 s{sOBn}, s{sT1}, {NB}",
            f"s_lshl_b32 s{sT0}, s{sT0}, 11", f"s_add_u32 s{sOBo}, s{sT0}, {OB}"]


def qb_phi():
    R, A = 96, 64
    t, u = 24, 25
    o = spin_ev(R_Q, 'own', HQ)
    o += [f"s_lshl_b32 s{sT0}, s{sW4}, 12", f"v_add_u32 v{t}, s{sT0}, v{vL16}",
          f"ds_read_b128 v[{R}:{R+3}], v{t}", f"ds_read_b128 v[{R+4}:{R+7}], v{t} offset:1024",
          f"s_lshl_b32 s{sT0}, s{sW4}, 8", f"s_add_u32 s{sT0}, s{sT0}, {GL}", f"v_lshl_add_u32 v{26}, v0, 2, s{sT0}",
          f"v_lshlrev_b32 v{t}, 16, v{R+6}", f"v_lshlrev_b32 v{u}, 16, v{R+6}",
          f"v_permlane32_swap_b32 v{t}, v{u}",
          f"v_mul_f32 v{u}, s{sL2}, v{u}", f"v_exp_f32_e64 v{u}, -v{u}", f"v_add_f32 v{u}, 1.0, v{u}",
          f"v_rcp_f32 v{u}, v{u}", f"ds_write_b32 v26, v{u}"] + signal(GRDY) + [f"v_sub_f32 v{vG1}, 1.0, v{u}"]
    for p in range(8):
        o += [f"v_lshlrev_b32 v{A+2*p}, 16, v{R+p}", f"v_and_b32 v{A+2*p+1}, 0xffff0000, v{R+p}"]
        o += phi_pair(A + 2 * p, A + 2 * p + 1, t, u, PQR + p, sL2, sE2)
    o += [f"v_and_b32 v{PQR+6}, v{PQR+6}, v{vLow}", f"v_and_b32 v{PQR+7}, v{PQR+7}, v{vLow}"]
    return o


def ob_tile(read_kv=True):
    o = []
    if read_kv:
        o += spin_ev(KVRDY, 3, HQ)
        o += [f"v_add_u32 v24, {KVF}, v{vL16}",
              f"ds_read_b128 v[{KVr}:{KVr+3}], v24", f"ds_read_b128 v[{KVr+4}:{KVr+7}], v24 offset:1024"]
    o += [mfma(64, KVr, PQR, None), mfma(64, KVr + 4, PQR + 4, 64)]
    o += finish_o(64, 80, vG1, 24, 25, sOBo, vEp, sOBn, eps=sE2)
    return o


def call(name):
    return ["@drain", f"!s_call_b64 s[{sRet}:{sRet+1}], L_sub_{name}", "@reset"]


def subroutines():
    o = []
    for name, body in (("phi", qb_phi()), ("ob", ob_tile()), ("r0", woa_read(0) + signal(R1)), ("r1", woa_read(1))):
        o += ["@reset", f"L_sub_{name}:"] + body + ["s_waitcnt lgkmcnt(0)", f"!s_setpc_b64 s[{sRet}:{sRet+1}]"]
    for name, w in (("d7", f"!s_waitcnt vmcnt({OPT.get('wlead', 20) - 1})"), ("d7e", f"!s_waitcnt vmcnt({OPT.get('elead', 14) - 1})")):
        o += ["@reset", f"L_sub_{name}:"]
        for m in range(7):
            o += [w, f"!buffer_load_dwordx4 v{vWO}, s[{sXD}:{sXD+3}], s{sOff} offen lds",
                  f"!s_add_u32 s{sOff}, s{sOff}, s{sC7}", "!s_addk_i32 m0, 1024"]
        o += [f"!s_setpc_b64 s[{sRet}:{sRet+1}]"]
    return o


def wait_serving(rd, red, cmp_ok, early=None):
    L, L1, L2 = lab('ws'), lab('ws1'), lab('ws2')
    o = ["@drain", f"s_mov_b32 s{sTO}, 0", f"!{L}:", "!" + rd, f"!ds_read_b32 v24, v{vM} offset:{16*KVRDY+12}"]
    o += ["!" + x for x in _tmo()]
    o += ["!s_waitcnt lgkmcnt(0)", f"!v_cmp_lt_u32 vcc, s{sOBd}, v24", f"!s_cbranch_vccz {L1}",
          f"!s_call_b64 s[{sRet}:{sRet+1}], L_sub_ob", f"!s_mov_b32 s{sOBd}, 1", f"!s_mov_b32 s{sTO}, 0", f"!s_branch {L}", f"!{L1}:"]
    o += ["!" + x for x in red + [cmp_ok, f"s_cbranch_vccnz {L2}"]]
    if early is not None:
        o += [f"!s_mov_b32 s{early}, 1"]
    o += [f"!s_sleep {OPT.get('ssleep', 2)}", f"!s_branch {L}", "@reset", f"!{L2}:"]
    return o


def serve_ev(ev, early=None):
    return wait_serving(f"ds_read_b128 v[{HQ}:{HQ+3}], v{vM} offset:{16*ev}",
                        [f"v_min3_u32 v{HQ}, v{HQ}, v{HQ+1}, v{HQ+2}", f"v_min_u32 v{HQ}, v{HQ}, v{HQ+3}"],
                        f"v_cmp_ne_u32 vcc, 0, v{HQ}", early)


def serve_land(st):
    return wait_serving(f"ds_read_b32 v{HQ}, v{vM} offset:{256+4*st}", [], f"v_cmp_eq_u32 vcc, 2, v{HQ}")


def dma(vaddr, sd, soff, lds, extra="", tag=None, sbase=None):
    o = [f"s_add_u32 m0, s{sLi}, {lds}"]
    if sbase is not None:
        if soff:
            o.append(f"s_add_u32 s{sOff}, s{sbase}, {soff}")
            so = f"s{sOff}"
        else:
            so = f"s{sbase}"
    elif soff:
        o.append(f"s_mov_b32 s{sOff}, {soff}")
        so = f"s{sOff}"
    else:
        so = "0"
    o.append(f"buffer_load_dwordx4 v{vaddr}, s[{sd}:{sd+3}], {so} offen {extra} lds" + (f" ;@tag={tag}" if tag else ""))
    return o


def spin_vm(body, cond, sleep=0):
    L = lab('pv')
    o = [f"!s_mov_b32 s{sTO}, 0", f"!{L}:"]
    o += ["!" + b for b in body + _tmo()]
    o += ["s_waitcnt vmcnt(0)"]
    o += ["!" + c for c in cond]
    o += [f"!s_cbranch_vccnz {L}"]
    return o


def flag_ld(vdst, vaddr, soff):
    if 1:
        return [f"v_mov_b32 v{vdst}, 0", f"buffer_atomic_or v{vdst}, v{vaddr}, s[{sWSD}:{sWSD+3}], {soff} offen sc0 sc1"]
    return [f"buffer_load_dword v{vdst}, v{vaddr}, s[{sWSD}:{sWSD+3}], {soff} offen sc1"]


def light_poll(vdst, vaddr, soff, mask, cmp_bad, first_issued=False, sleep=None, flag=False, hook=None):
    sleep = OPT.get('psleep', 1) if sleep is None else sleep
    L, L2, L0 = lab('lp'), lab('lpx'), lab('lp0')
    ld = f"buffer_load_dword v{vdst}, v{vaddr}, s[{sWSD}:{sWSD+3}], {soff} offen sc1"
    o = [f"s_mov_b64 exec, {mask}", f"s_mov_b32 s{sTO}, 0"]
    if first_issued:
        o += [f"!s_branch {L0}"]
    o += [f"!{L}:"] + ["!!" + x for x in (flag_ld(vdst, vaddr, soff) if flag else [ld])] + [f"!{L0}:"] + ["!" + x for x in _tmo()] + ["s_waitcnt vmcnt(0)"]
    o += ["!" + c for c in cmp_bad]
    o += [f"!s_cbranch_vccz {L2}"]
    if hook:
        o += ["!!s_mov_b64 s[50:51], vcc", "!!s_mov_b64 exec, -1"] + ["!!" + x.lstrip('!') for x in hook if not x.startswith('@')] + ["!!s_mov_b64 vcc, s[50:51]"]
    o += ["!!s_mov_b64 exec, vcc"] + ([f"!!s_sleep {sleep}"] if sleep else []) + \
         [f"!!s_branch {L}", f"!{L2}:", "s_mov_b64 exec, -1"]
    return o


sEp = 2


def spoll(pair, off_sreg, dst, nload, ncheck, sleep=1):
    L, L2 = lab('sq'), lab('sqx')
    o = [f"s_add_u32 s{pair}, s{sWSD}, s{off_sreg}", f"s_addc_u32 s{pair+1}, s{sWSD+1}, 0",
         "s_waitcnt lgkmcnt(0)", f"!s_mov_b32 s{sTO}, 0", f"!{L}:",
         f"!s_load_dwordx{nload} s[{dst}:{dst+nload-1}], s[{pair}:{pair+1}], 0 glc"]
    o += ["!" + x for x in _tmo()] + ["!s_waitcnt lgkmcnt(0)"]
    o += [f"!s_xor_b32 s{dst}, s{dst}, s{sEp}"]
    for i in range(1, ncheck):
        o += [f"!s_xor_b32 s{dst+i}, s{dst+i}, s{sEp}", f"!s_or_b32 s{dst}, s{dst}, s{dst+i}"]
    o += [f"!s_cbranch_scc0 {L2}"] + ([f"!!s_sleep {sleep}"] if sleep else []) + [f"!!s_branch {L}", f"!{L2}:"]
    return o


def notify(soff, vt, vep, fan=1):
    return [f"v_lshlrev_b32 v{vt}, 7, v0", f"s_mov_b64 exec, {(1 << fan) - 1}",
            f"buffer_store_dword v{vep}, v{vt}, s[{sWSD}:{sWSD+3}], s{soff} offen sc1", "s_mov_b64 exec, -1"]


def fmap(d, t):
    return [f"v_bfe_u32 v{d}, v0, 4, 1", f"v_bfe_u32 v{t}, v0, 2, 1", f"v_lshl_add_u32 v{d}, v{d}, 1, v{t}",
            f"v_mul_u32_u24 v{d}, 7, v{d}", f"v_bfe_u32 v{t}, v0, 3, 1", f"v_lshl_add_u32 v{d}, v{t}, 2, v{d}",
            f"v_and_b32 v{t}, 3, v0", f"v_add_u32 v{d}, v{d}, v{t}"]


def l_wave():
    ROLE[0] = 'L'
    o = [f"s_setprio {OPT.get('lprio', 2)}"]
    t0, t1, t2 = 24, 25, 26
    sHW = sW4
    o += [f"s_lshl_b32 s{sLi}, s{sHW}, 10",
          f"v_mov_b32 v{vMl}, v{vMs}", f"s_mov_b32 s{sT0}, {LANDC}", f"v_writelane_b32 v{vMl}, s{sT0}, 0"]
    o += [f"v_lshrrev_b32 v{t0}, 3, v0", f"s_lshl_b32 s{sT0}, s{sRB}, 4", f"s_add_u32 s{sT0}, s{sT0}, s{sHW}",
          f"s_lshl_b32 s{sT0}, s{sT0}, 3", f"v_add_u32 v{t1}, s{sT0}, v{t0}", f"v_mul_u32_u24 v{vX}, 896, v{t1}",
          f"v_lshrrev_b32 v{t1}, 4, v0", f"s_lshl_b32 s{sT0}, s{sHW}, 2", f"v_add_u32 v{t1}, s{sT0}, v{t1}",
          f"v_and_b32 v{t2}, 7, v0", f"v_xor_b32 v{t1}, v{t1}, v{t2}", f"v_lshl_add_u32 v{vX}, v{t1}, 4, v{vX}"]
    o += [f"s_lshl_b32 s{sT2}, s{sZ}, 4", f"s_add_u32 s{sT1}, s{sT2}, 112", f"s_add_u32 s{sT2}, s{sT2}, 48",
          f"s_mul_i32 s{sT1}, s{sT1}, s{sHH}", f"s_add_u32 s{sT1}, s{sT1}, 896",
          f"s_lshl_b32 s{sT0}, s{sHW}, 3", f"v_add_u32 v{t1}, s{sT0}, v{t0}", f"v_mul_u32_u24 v{vW}, 2688, v{t1}",
          f"v_bfe_u32 v{t1}, v0, 2, 1", f"v_bfe_u32 v{t2}, v0, 4, 1", f"v_xor_b32 v{t1}, v{t1}, v{t2}",
          f"v_mul_u32_u24 v{t2}, s{sT2}, v{t1}", f"v_add3_u32 v{vW}, v{vW}, v{t2}, s{sT1}",
          f"v_and_b32 v{t2}, 3, v0", f"v_lshl_add_u32 v{vW}, v{t2}, 4, v{vW}"]
    o += [f"s_mov_b32 s{sXD+2}, 1835008", f"s_mov_b32 s{sXD+3}, 0x20000",
          f"s_mov_b32 s{sWD+2}, 1204224", f"s_mov_b32 s{sWD+3}, 0x20000",
          f"s_cmp_eq_u32 s{sH}, 15", f"s_cselect_b32 s{sWD+2}, 0, s{sWD+2}",
          ] + {0: [f"s_mov_b32 s{sCc}, 0"],
               1: [f"s_xor_b32 s{sT0}, s{sRB}, s{sH}", f"s_and_b32 s{sT0}, s{sT0}, 1", f"s_mul_i32 s{sCc}, s{sT0}, {OPT.get('rotk', 3)}"],
               2: [f"s_add_u32 s{sT0}, s{sRB}, s{sH}", f"s_and_b32 s{sT0}, s{sT0}, 3", f"s_mul_i32 s{sCc}, s{sT0}, {OPT.get('rotk', 2)}"],
               3: [f"s_and_b32 s{sT0}, s{sRB}, 3", f"s_lshl_b32 s{sT0}, s{sT0}, 1", f"s_and_b32 s{sT1}, s{sH}, 7", f"s_add_u32 s{sCc}, s{sT0}, s{sT1}"],
               }[OPT.get('rotm', 0)] + [
          f"s_cmp_ge_u32 s{sCc}, 7", f"s_cselect_b32 s{sT0}, 7, 0", f"s_sub_u32 s{sCc}, s{sCc}, s{sT0}",
          f"s_cmp_ge_u32 s{sCc}, 7", f"s_cselect_b32 s{sT0}, 7, 0", f"s_sub_u32 s{sCc}, s{sCc}, s{sT0}",
          f"s_mov_b32 s{sRot}, s{sCc}",
          f"s_cmp_eq_u32 s{sZ}, 0"]
    o += stamp(1, 'f')
    o += ["s_waitcnt lgkmcnt(0)", "s_mov_b32 s1, s2",
          f"s_mov_b32 s{sXD}, s{sX}", f"s_mov_b32 s{sXD+1}, s{sX+1}",
          f"s_cselect_b32 s{sWD}, s{sBW}, s{sAW}", f"s_cselect_b32 s{sWD+1}, s{sBW+1}, s{sAW+1}",
          f"s_lshl_b32 s{sCx}, s{sCc}, 7", f"s_mul_i32 s{sCw}, s{sCc}, {64*2688}"]
    nextc = [f"s_add_u32 s{sCc}, s{sCc}, 1", f"s_cmp_eq_u32 s{sCc}, 7", f"s_cselect_b32 s{sCc}, 0, s{sCc}"]
    setc_ = [f"s_lshl_b32 s{sCx}, s{sCc}, 7", f"s_mul_i32 s{sCw}, s{sCc}, {64*2688}"]
    ops = []
    for c in range(7):
        for ii in range(8):
            pre = (nextc + setc_) if (ii == 0 and c) else []
            ops.append((pre + dma(vX, sXD, 16 * ii * 896, XR(c) + 2048 * ii, sbase=sCx), c))
        for p in range(2):
            for ii in range(4):
                ops.append((dma(vW, sWD, 16 * ii * 2688 + 896 * p, WR(c) + 8192 * p + 2048 * ii, sbase=sCw), c))
    for q, sd in enumerate((sQBD, sQAD)):
        for c in range(7):
            for ii in range(2):
                pre = (nextc + setc_[1:]) if ii == 0 else []
                ops.append((pre + dma(vQ, sd, 32 * ii * 2688, QLOC[7 * q + c] + 2048 * ii, sbase=sCw), 7 + 7 * q + c))
    late = srd(sWSD, sWS, WS_SIZE) + srd(sQBD, sBW, 1204224) + srd(sQAD, sAW, 1204224) + srd(sGD, sGW, 896)
    late += [f"v_lshrrev_b32 v{t0}, 2, v0", f"s_lshl_b32 s{sT0}, s{sHW}, 4", f"v_add_u32 v{t0}, s{sT0}, v{t0}",
             f"v_mul_u32_u24 v{vQ}, 2688, v{t0}", f"v_and_b32 v{t1}, 3, v0", f"v_lshl_add_u32 v{vQ}, v{t1}, 4, v{vQ}",
             f"s_mul_i32 s{sT0}, s{sH}, 56", f"s_lshl_b32 s{sT1}, s{sPar}, 3", f"s_sub_u32 s{sT0}, s{sT0}, s{sT1}",
             f"v_add_u32 v{vQ}, s{sT0}, v{vQ}",
             f"v_bfe_u32 v{t0}, v0, 4, 1", f"v_lshlrev_b32 v{t0}, 5, v{t0}", f"v_and_b32 v{t1}, 15, v0",
             f"s_lshl_b32 s{sT0}, s{sHW}, 4", f"v_add3_u32 v{t0}, v{t0}, v{t1}, s{sT0}",
             f"v_lshlrev_b32 v27, 1, v{t0}",
             f"s_xor_b32 s{sT0}, s{sPar}, 1", f"s_mul_i32 s{sT0}, s{sT0}, 56", f"s_add_u32 s{sT0}, s{sT0}, {QBB}",
             f"v_lshl_add_u32 v{vPat}, v{t0}, 6, s{sT0}"]
    for c in range(7):
        late += [[f"s_lshl_b32 s{sT0}, s{sRot}, 7", f"buffer_load_ushort v{GV+c}, v27, s[{sGD}:{sGD+3}], s{sT0} offen",
                  f"s_add_u32 s{sRot}, s{sRot}, 1", f"s_cmp_eq_u32 s{sRot}, 7", f"s_cselect_b32 s{sRot}, 0, s{sRot}"]]
    late += [f"s_mul_i32 s{sT0}, s{sHW}, {VG}", f"s_add_u32 s{sT0}, s{sT0}, {OPT.get('wsoff', 0) << 20}", [f"s_add_u32 s{sKGD}, s{sWS}, s{sT0}", f"s_addc_u32 s{sKGD+1}, s{sWS+1}, 0"],
             f"s_mov_b32 s{sKGD+2}, 1835008", f"s_mov_b32 s{sKGD+3}, 0x20000"]
    late += [f"s_lshl_b32 s{sT0}, s{sRB}, 2", f"s_sub_u32 s{sT0}, s{sT0}, 8", f"s_mul_i32 s{sA}, s{sT0}, 28672",
             f"s_mul_i32 s{sT1}, s{sH}, 7", f"s_lshr_b32 s{sT1}, s{sT1}, 1", f"s_lshl_b32 s{sT1}, s{sT1}, 9",
             f"s_add_u32 s{sT1}, s{sT1}, s{sA}",
             f"v_add_u32 v{vK}, s{sT1}, v{vL16}",
             f"s_mul_i32 s{sT1}, s{sH}, 448", f"s_add_u32 s{sT1}, s{sT1}, s{sA}",
             f"v_lshrrev_b32 v{t0}, 5, v0", f"v_mul_u32_u24 v{t0}, 7168, v{t0}"] + fmap(t1, t2) + [
             f"v_lshl_add_u32 v{t0}, v{t1}, 4, v{t0}", f"v_add_u32 v{vV}, s{sT1}, v{t0}"]
    vFl = 32
    late += [f"s_mul_i32 s{sT0}, s{sH}, 28", f"s_add_u32 s{sT1}, s{sT0}, 27",
             f"s_lshr_b32 s{sT0}, s{sT0}, 6", [f"s_lshr_b32 s{sT1}, s{sT1}, 6", f"s_cmp_eq_u32 s{sT0}, s{sT1}",
             f"s_cselect_b32 s{sB}, 0x15, 63"],
             f"s_min_u32 s{sT0}, s{sRB}, 2", f"s_lshl_b32 s{sT0}, s{sT0}, 1", f"s_sub_u32 s{sT0}, 4, s{sT0}",
             f"s_lshl_b32 s{sT1}, -1, s{sT0}", f"s_and_b32 s{sB}, s{sB}, s{sT1}", f"s_mov_b32 s{sB+1}, 0",
             ]
    late += [h_setup()] + p3_early()
    late += [f"v_lshrrev_b32 v{t0}, 3, v0", f"s_mul_i32 s{sT0}, s{sHW}, 224", f"v_add_u32 v{t1}, s{sT0}, v{t0}",
             f"v_mul_u32_u24 v{vWO}, 896, v{t1}",
             f"v_bfe_u32 v{t1}, v0, 2, 1", f"v_bfe_u32 v{t2}, v0, 4, 1", f"v_xor_b32 v{t1}, v{t1}, v{t2}",
             f"v_lshl_add_u32 v{vWO}, v{t1}, 6, v{vWO}", f"v_and_b32 v{t2}, 3, v0", f"v_lshl_add_u32 v{vWO}, v{t2}, 4, v{vWO}",
             f"s_lshl_b32 s{sT0}, s{sCT}, 7", f"v_add_u32 v{vWO}, s{sT0}, v{vWO}"]
    pieces = [late[i:i + 6] for i in range(0, len(late), 6)]
    last_of = {}
    for n, (_, st) in enumerate(ops):
        last_of[st] = n
    def lead_at(n):
        return OPT['l1'] if ops[n][1] < 7 else OPT['l3']
    sig_next = 0

    def do_signal(st):
        r = [f"@wait_vm o{last_of[st]}"]
        if 7 <= st <= 13:
            r.append(f"ds_write_b16 v{vPat}, v{GV+st-7} offset:{QLOC[st-7]-QBB}")
        return r + land(st)

    ep = spin_ev(EPOCH, 0, vEp)
    ep += [f"v_readfirstlane_b32 s{sEp}, v{vEp}",
          f"s_lshl_b32 s{sA}, s{sRB}, 4", f"s_add_u32 s{sA}, s{sA}, s{sH}", f"s_lshl_b32 s{sA}, s{sA}, 7",
          f"s_mul_i32 s{sT1}, s{sHW}, {FV-FK}", f"s_add_u32 s{sA}, s{sA}, s{sT1}", f"s_add_u32 s{sA}, s{sA}, {FK}",
          f"v_lshlrev_b32 v32, 2, v0", f"s_andn2_b32 s{sT0}, 63, s{sB}", "!s_cbranch_scc0 L_lnf",
          f"s_mov_b32 exec_lo, s{sT0}", "s_mov_b32 exec_hi, 0",
          f"!buffer_store_dword v{vEp}, v32, s[{sWSD}:{sWSD+3}], s{sA} offen sc1", "s_mov_b64 exec, -1", "L_lnf:"]

    def emit_ops(n0, n1, sig, fine, lead=None):
        r = []
        for n in range(n0, n1):
            ins, st = ops[n]
            need = {64: 1, 80: 2, 96: 3, 124: 4}.get(n)
            if need:
                assert sig >= need
                r += spin_ev(E_PA, 'all', HQ, ge=need)

            ins = ins[:-1] + [ins[-1] + f" ;@tag=o{n}"]
            if n == 0:
                r += stamp(2, 'f')
            r += ins
            if n == 15:
                r += stamp(3, 'f') + ["s_barrier"]
            if n >= 16 and pieces:
                r += sum([x if isinstance(x, list) else [x] for x in pieces.pop(0)], [])
            done = n - (lead or lead_at(n))
            if done >= 0 and n >= 15:
                r += [f"@wait_vm o{done}"]
            while sig < 21 and last_of[sig] <= done and n >= 15:
                r += do_signal(sig)
                r += {0: stamp(4, 'f'), 1: stamp(5, 'f'), 2: stamp(6, 'f'), 3: stamp(7, 'f'), 4: stamp(8, 'f'), 5: stamp(9, 'f'), 6: stamp(10, 'f')}.get(sig, [])
                sig += 1
        return r, sig

    def tail(sig, pf=False):
        r, sig = emit_ops(HOLD, len(ops), sig, False, None if pf else OPT.get('l3z', 14))
        r += stamp(1) + stamp(11, 'f')
        if pf and OPT.get('ypf', 0):
            r += [f"s_cmp_eq_u32 s{sHW}, 0", f"s_cselect_b32 s48, s{sAO}, s{sBO}", f"s_cselect_b32 s49, s{sAO+1}, s{sBO+1}",
                  f"s_and_b32 s{sT0}, s{sRB}, 3", f"s_lshl_b32 s{sT0}, s{sT0}, 2", f"s_and_b32 s{sT1}, s{sHH}, 3",
                  f"s_add_u32 s{sT0}, s{sT0}, s{sT1}", f"s_mul_i32 s{sT0}, s{sT0}, {196*128}",
                  f"v_lshl_add_u32 v33, v0, 7, s{sT0}", "s_mov_b32 exec_hi, 0x1ffff"]
            for i in range(4):
                r += [f"global_load_dword v{40+i}, v33, s[48:49]"] + ([f"v_add_u32 v33, {49*128}, v33"] if i < 3 else [])
            r += ["s_mov_b64 exec, -1"]
        for st in range(sig, 21):
            r += do_signal(st)
        return r + (ep if pf else [])
    HOLD = OPT.get('hold', 126)
    r, sig = emit_ops(0, HOLD, 0, True)
    assert not pieces
    o += r
    if HOLD < len(ops):
        o += [f"s_cmp_eq_u32 s{sZ}, 0", "!s_cbranch_scc0 L_lhold"]
    o += tail(sig, True)
    if HOLD < len(ops):
        o += ["s_branch L_ljoin", "@reset", "L_lhold:"]
        while last_of[sig] < HOLD:
            o += [f"s_waitcnt vmcnt({HOLD - 1 - last_of[sig]})"] + do_signal(sig)
            sig += 1
        o += [x.replace("L_lnf", "L_lnf2").replace("L_sp", "L_zsp") for x in ep]
        o += spin_ev(STI, 'all', HQ) if ZD else spin_ev(X_PUB, 'hi', HQ)
        o += tail(sig)
        o += ["@reset", "L_ljoin:"]
    d7 = [f"!s_call_b64 s[{sRet}:{sRet+1}], L_sub_d7e"]

    def batch(ptr, row0, lds, stride, n, sub=d7):
        return [f"s_mov_b32 s{sXD}, s{ptr}", f"s_mov_b32 s{sXD+1}, s{ptr+1}", f"s_mov_b32 s{sOff}, {row0*896}",
                f"s_mul_i32 s{sLi}, s{sHW}, {stride}", f"s_add_u32 m0, s{sLi}, {lds}"] + sub * n
    o += [f"s_mov_b32 s{sXD+2}, 401408", f"s_mov_b32 s{sC7}, 7168"]
    if OPT.get('otouch', 0):
        o += [f"s_lshl_b32 s{sT0}, s{sRB}, 6", f"s_add_u32 s{sT0}, s{sT0}, s{sH}", f"s_lshl_b32 s{sT0}, s{sT0}, 11",
              f"s_lshl_b32 s{sT1}, s{sHW}, 21", f"s_add_u32 s{sT0}, s{sT0}, s{sT1}", f"s_add_u32 s{sT0}, s{sT0}, {OA}",
              "v_lshrrev_b32 v33, 4, v0", "v_lshlrev_b32 v33, 15, v33", "v_and_b32 v34, 15, v0", "v_lshl_add_u32 v33, v34, 7, v33",
              f"!buffer_load_dword v34, v33, s[{sWSD}:{sWSD+3}], s{sT0} offen"]
    o += [f"s_cmp_eq_u32 s{sHW}, 0", "!s_cbranch_scc0 L_lgV"] + spin_ev(E_P2, 'all', HQ) + spin_ev(F_K, 'hi', HQ, ge=2) + ["s_branch L_lg", "L_lgV:"]
    o += spin_ev(E_P3A, 'all', HQ) + ["L_lg:"]
    if OPT.get('philate', 1) == 2:
        o += [f"s_cmp_eq_u32 s{sZ}, 0", "!s_cbranch_scc1 L_lph0"] + call("phi") + ["L_lph0:"]
    o += stamp(6, 'z')
    o += spoll(42, sA, 44, 8, 6, sleep=OPT.get('fsleep', 1))
    o += stamp(2)
    if OPT.get('alt') == 5:
        o += [f"s_add_u32 s{sStamp+14}, s{sStamp}, s{sTO}"]
    o += [f"s_cmp_eq_u32 s{sHW}, 0", "!s_cbranch_scc0 L_lV"]
    for j in range(12):
        for e in range(2):
            o += [f"s_mov_b32 m0, {KL + 2048*j + 1024*e - 1024*e}",
                  f"buffer_load_dwordx4 v{vK}, s[{sKGD}:{sKGD+3}], 0 offen offset:{1024*e} sc1 lds"]
        o += [f"v_add_u32 v{vK}, 28672, v{vK}"]
    o += [f"s_mov_b32 s{sA}, {4*ST_K}", "s_branch L_lKV", "@reset", "L_lV:"]
    o += [f"v_mov_b32 v{36+i}, 0x3f803f80" for i in range(4)]
    o += [f"v_lshlrev_b32 v{t0}, 9, v0", f"v_add_u32 v{t0}, {VL+496}, v{t0}",
          "s_mov_b32 exec_hi, 0xffff", f"ds_write_b128 v{t0}, v[36:39]",
          "s_mov_b32 exec_lo, 0x7fffffff", "s_mov_b32 exec_hi, 0x7fffffff", f"s_mov_b32 s{sOff}, 14336"]
    for j in range(12):
        for e in range(2):
            pre = [f"v_add_u32 v{t2}, s{sOff}, v{vV}"] if e else []
            o += pre + [f"s_mov_b32 m0, {VL + 2048*j + 1024*e}",
                        f"buffer_load_dwordx4 v{t2 if e else vV}, s[{sKGD}:{sKGD+3}], 0 offen sc1 lds"]
        o += [f"v_add_u32 v{vV}, 28672, v{vV}"]
    o += ["s_mov_b64 exec, -1", f"s_mov_b32 s{sA}, {4*ST_V}", "@reset", "L_lKV:"]
    o += stamp(3) + signal(KVISS)

    kvland = [f"v_add_u32 v{t2}, s{sA}, v{vMl}", f"v_mov_b32 v{t0}, 2", f"ds_add_u32 v{t2}, v{t0}"]
    o += [f"s_cmp_ge_u32 s{sJ3}, 28", "!s_cbranch_scc0 L_lwo", "s_waitcnt vmcnt(0)"] + kvland + \
        ([f"s_cmp_eq_u32 s{sZ}, 0", "!s_cbranch_scc0 L_lph2"] if OPT.get('philate', 1) == 2 else []) + call("phi") + ["L_lph2:"] + call("ob") + stamp_flush(20, 0) + ["s_endpgm", "@reset", "L_lwo:"]
    if OPT.get('philate', 1) == 2:
        o += ["s_waitcnt vmcnt(0)"] + kvland + [f"s_cmp_eq_u32 s{sZ}, 0", "!s_cbranch_scc0 L_lph1"] + call("phi") + ["L_lph1:"]
    elif OPT.get('philate', 1):
        o += ["s_waitcnt vmcnt(0)"] + kvland + call("phi")
    else:
        o += call("phi") + stamp(8, 'z')
        o += ["s_waitcnt vmcnt(0)"] + kvland
    o += stamp(4)
    o += wait_land(ST_WA1, HQ, inline=True) + call("r0")
    o += p3_setup() + [f"s_mov_b32 s{sOBd}, 0"] + serve_ev(R1)
    o += batch(sBO, 168, STG, STGS, 1)
    o += [f"s_cmp_lg_u32 s{sOBd}, 0", "!s_cbranch_scc1 L_lt0"] + call("ob") + [f"s_mov_b32 s{sOBd}, 1", "s_waitcnt vmcnt(3)", "s_branch L_lt1",
          "L_lt0:", "s_waitcnt vmcnt(0)", "L_lt1:"] + land(ST_WA2)
    o += stamp(5)
    o += ["s_branch L_p3", "@reset"]
    return o


sOb, sNb = 58, 59


def gload(g):
    r = [f"s_add_u32 s{sT2}, s{sOb}, {4096*g}"]
    for e in range(4):
        n = 4 * g + e
        r.append(f"buffer_load_dwordx4 v[{OF+4*n}:{OF+4*n+3}], v{vOG}, s[{sWSD}:{sWSD+3}], s{sT2} offen offset:{1024*e} sc1")
    return r


WA = 128
OF = 64
ACC = 32
BB = 16
vA = 2
vOG = 6
vTg = 9


def p3_early(dst=(248, 249, 250, 251, 252), base=STG, stride=STGS, tmp=240, sRt=sRt, sTT=sTT, sNo=sNo):
    t0, t1, t2, r, cg = range(tmp, tmp + 5)
    o = [f"s_lshr_b32 s{sKh}, s{sW4}, 1", f"s_and_b32 s{sRt}, s{sW4}, 1",
         f"s_add_u32 s{sTT}, s{sTB}, s{sRt}",
         f"v_bfe_u32 v{r}, v0, 2, 2", f"v_bfe_u32 v{t0}, v0, 4, 1", f"v_and_b32 v{cg}, 3, v0",
         f"v_lshl_add_u32 v{cg}, v{t0}, 2, v{cg}", f"v_lshlrev_b32 v{cg}, 3, v{cg}",
         f"s_mul_i32 s{sT0}, s{sKh}, {stride}", f"s_add_u32 s{sT0}, s{sT0}, {base}",
         f"v_add_u32 v{cg}, s{sT0}, v{cg}",
         f"v_lshrrev_b32 v{t2}, 5, v0", f"v_mul_u32_u24 v{t2}, 7, v{t2}"]
    for s_ in range(2):
        for u in range(2):
            d = dst[2 * s_ + u]
            o += [f"v_min_u32 v{t0}, {2 if u else 3}, v{r}", f"v_add3_u32 v{t0}, v{t0}, v{t2}, {14*s_+4*u}",
                  f"v_bfe_u32 v{t1}, v{t0}, 1, 1", f"v_xor_b32 v{t1}, s{sKh}, v{t1}",
                  f"v_lshl_add_u32 v{d}, v{t0}, 7, v{cg}", f"v_lshl_add_u32 v{d}, v{t1}, 6, v{d}"]
    o += [f"s_lshl_b32 s{sT0}, s{sTT}, 1", f"s_add_u32 s{sT0}, s{sT0}, s{sKh}", f"s_lshl_b32 s{sNo}, s{sT0}, 7", f"s_lshl_b32 s{sT0}, s{sT0}, 14",
          f"v_add_u32 v{dst[4]}, s{sT0}, v{vL16}"]
    return o


def p3_setup():
    return [f"v_mov_b32 v{vA+i}, v{248+i}" for i in range(5)] + [f"v_and_b32 v{vTg}, 0xffff0000, v{vEp}"]


def flip(A):
    return [f"v_xor_b32 v{A+i}, 64, v{A+i}" for i in range(4)]


FLIP = flip(vA)


def wo_frag(dst, hl, s, tag=None, A=vA):
    return [tr(dst, A + 2 * s, 28 * hl * 128), tr(dst + 2, A + 2 * s + 1, 28 * hl * 128, tag)]


def woa_read(rho):
    o = []
    A = 248 if rho == 0 else vA
    for j in range(2):
        for hl in (range(6) if rho == 0 else range(6, 8)):
            for s in range(2):
                o += wo_frag(WA + 64 * j + 8 * hl + 4 * s, hl % 6, s, A=A)
        o += flip(A)
    return o


RSTR = VL - KL


NG0 = OPT.get('ng0', 2)


def half_head(isC):
    o = spoll(42, sNb, 44, 8, 8, sleep=OPT.get('osleep', 1))
    if isC or OPT.get('hgate', 0):
        o += spin_ev(E_OA, 'all', HQ)
    o += [f"!s_memtime s[{sStamp+18}:{sStamp+19}]"] if OPT['stamps'] and OPT.get('alt', 0) in (0, 2, 6, 7, 8, 9, 10) else []
    for g in range(NG0):
        o += gload(g)
    return o


def half_sub():
    vC = 7
    o = ["@reset", "L_sub_half:"]

    def gcheck(g):
        b = OF + 16 * g
        ch = [f"v_xor_b32 v{b+4*e+3}, v{b+4*e+3}, v{vTg}" for e in range(4)]
        ch += [f"v_or3_b32 v{vC}, v{b+3}, v{b+7}, v{b+11}", f"v_or_b32 v{vC}, v{vC}, v{b+15}",
               f"v_cmp_lt_u32 vcc, 0xffff, v{vC}"]
        Ls, Lb = lab('slow'), lab('back')
        slow.extend([f"{Ls}:"] + ([f"s_add_u32 s{sStamp+14}, s{sStamp+14}, 1"] if OPT.get('alt') == 6 else []) + [f"s_mov_b32 s{sTO}, 0", f"{Ls}_s:", "s_sleep 4"] + gload(g) + _tmo() + ["s_waitcnt vmcnt(0)"] + ch +
                    [f"s_cbranch_vccnz {Ls}_s", f"s_branch {Lb}"])
        return ch + [f"!s_cbranch_vccnz {Ls}", f"!{Lb}:"]
    o += half_head(False) + ["L_half_mid:"]
    sO = 40
    o += srd(sO, sOUT, 1835008)
    o += [f"s_lshr_b32 s{sT2}, s{sWave}, 2", f"s_mul_i32 s{sT1}, s{sT2}, {RSTR}",
          f"s_mul_i32 s{sT0}, s{sW4}, 6144", f"s_add_u32 s{sT0}, s{sT0}, {KL}",
          f"s_add_u32 s44, s{sT0}, s{sT1}", f"v_add_u32 v2, s44, v{vL16}",
          f"s_sub_u32 s44, s{sT0}, s{sT1}", f"s_add_u32 s44, s44, {RSTR+4096}", f"v_add_u32 v3, s44, v{vL16}",
          f"s_lshl_b32 s{sT2}, s{sT2}, 11",
          f"s_xor_b32 s{sT1}, s{sW4}, 2", f"s_mul_i32 s{sT0}, s{sT1}, 6144", f"s_add_u32 s{sT0}, s{sT0}, s{sT2}",
          f"s_add_u32 s{sT0}, s{sT0}, {KL}", f"v_add_u32 v4, s{sT0}, v{vL16}", f"v_add_u32 v24, {RSTR}, v4",
          f"v_and_b32 v8, 31, v0", f"s_lshl_b32 s{sT0}, s{sTT}, 5", f"v_add_u32 v8, s{sT0}, v8",
          f"v_mul_u32_u24 v8, 896, v8", f"v_lshrrev_b32 v5, 5, v0",
          f"v_lshl_add_u32 v8, v5, 4, v8",
          f"s_lshl_b32 s{sT0}, s{sCT}, 1", f"s_add_u32 s{sT0}, s{sT0}, s{sKh}", f"s_lshl_b32 s{sT0}, s{sT0}, 6",
          f"s_lshr_b32 s{sT2}, s{sT2}, 6", f"s_add_u32 s{sT0}, s{sT0}, s{sT2}",
          f"v_add_u32 v8, s{sT0}, v8"]
    early, late = check_ev(E_OA, 'all', HQ)
    for n in range(16):
        if n % 4 == 0:
            o += gcheck(n // 4)
            if n // 4 + NG0 < 4:
                o += gload(n // 4 + NG0)
        if n == 12:
            o += early
        for j in ((0, 1) if n < 12 else ()):
            o.append(mfma(ACC + 16 * j, WA + 64 * j + 4 * n, OF + 4 * n, ACC + 16 * j if n else None))
    for j in (1, 0):
        for n in range(12, 16):
            o.append(mfma(ACC + 16 * j, WA + 64 * j + 4 * n, OF + 4 * n, ACC + 16 * j))
        if j == 1:
            o += late
    o += [f"ds_write_b128 v2, v[{ACC+16+4*i}:{ACC+16+4*i+3}] offset:{1024*i}" for i in range(4)]
    o += stamp(8)
    o += [f"s_cmp_lt_u32 s{sWave}, 4", "!s_cbranch_scc1 L_finC"]

    def fin(role):
        mine, spare = ACC + 8 * role, ACC + 8 * (1 - role)
        r = [f"ds_write_b128 v2, v[{spare+4*i}:{spare+4*i+3}] offset:{4096+1024*i}" for i in range(2)]
        r += ["s_waitcnt lgkmcnt(0)", "s_barrier"] + ([f"!s_memtime s[{sStamp+14}:{sStamp+15}]"] if OPT.get('alt') == 10 else [])
        r += [f"ds_read_b128 v[{OF+4*i}:{OF+4*i+3}], v3 offset:{1024*i}" for i in range(2)]
        r += [f"ds_read_b128 v[{OF+8+4*i}:{OF+8+4*i+3}], v4 offset:{1024*i}" for i in range(2)]
        r += [f"ds_read_b128 v[{OF+16+4*i}:{OF+16+4*i+3}], v24 offset:{1024*i}" for i in range(2)]
        for i in range(8):
            r += [f"v_add_f32 v{mine+i}, v{mine+i}, v{OF+i}"]
        for i in range(8):
            r += [f"v_add_f32 v{OF+8+i}, v{OF+8+i}, v{OF+16+i}"]
        for p in range(4):
            r += [f"v_add_f32 v{mine+2*p}, v{mine+2*p}, v{OF+8+2*p}", f"v_add_f32 v{mine+2*p+1}, v{mine+2*p+1}, v{OF+8+2*p+1}",
                  f"v_cvt_pk_bf16_f32 v{16+p}, v{mine+2*p}, v{mine+2*p+1}"]
        r += ["s_branch L_fin"] if role == 1 else []
        return r
    st = [x for x in o if 0]
    o += fin(1) + ["@reset", "L_finC:", "s_nop 7"] + fin(0) + ["L_fin:"]
    o += [f"v_permlane32_swap_b32 v16, v18", f"v_permlane32_swap_b32 v17, v19"]
    fl = {0: "", 1: " sc1", 2: " nt", 3: " sc0 sc1"}[OPT.get('outfl', 0)]
    o += [f"buffer_store_dwordx4 v[16:19], v8, s[{sO}:{sO+3}], 0 offen{fl}"]
    if OPT.get('until'):
        o += [f"!s_mov_b32 s45, {OPT['until']}"]
        if 'pw' in OPT:
            st = sStamp + 2 * OPT['ps']
            o += ["!s_waitcnt lgkmcnt(0)", f"!s_sub_u32 s44, s{st}, s98", f"!s_cmp_ge_u32 s{sWave}, {OPT['pw']}", "!s_cselect_b32 s44, s44, 0",
                  f"!s_cmp_le_u32 s{sWave}, {OPT['pw2']}", "!s_cselect_b32 s44, s44, 0", "!s_add_u32 s45, s45, s44"]
        o += ["!L_dly2:", f"!s_memtime s[46:47]", "!s_waitcnt lgkmcnt(0)",
              "!s_sub_u32 s46, s46, s98", f"!s_cmp_lt_u32 s46, s45", "!s_cbranch_scc1 L_dly2"]
    o += stamp(10)
    if OPT['stamps'] and 'pw' not in OPT:
        o += ["s_waitcnt vmcnt(0)"] + stamp(11)
    o += stamp_flush(20, 0)
    o += ["s_endpgm"]
    return o


def phase3():
    ROLE[0] = 'H'
    o = ["@reset", "L_p3:"]
    o += serve_land(ST_WA2) + call("r1")
    o += stamp(6)
    o += [f"s_cmp_lg_u32 s{sOBd}, 0", "!s_cbranch_scc1 L_pB"] + call("ob") + ["L_pB:"]
    if OPT.get('bgate', 0):
        o += spin_ev(E_OA, 'all', HQ)
    o += stamp(7)
    o += [f"s_mov_b32 s{sOb}, {OB}", f"s_add_u32 s{sNb}, s{sNo}, {NB}"]
    if OPT.get('w1'):
        o += [f"s_mov_b32 s{sWSD+2}, 0", f"v_mov_b32 v{vTg}, 0"]
    return o + half_sub()


def c_phase3():
    o = [f"s_cmp_ge_u32 s{sJ3}, 28", "!s_cbranch_scc1 L_cend"]
    o += [f"v_readfirstlane_b32 s{sEp}, v{vEc}", f"v_mov_b32 v{vEp}, v{vEc}", f"s_add_u32 s{sNb}, s14, {NA}", f"s_mov_b32 s{sOb}, {OA}"]
    o += [f"v_mov_b32 v{vA+i}, v{CPARK[i]}" for i in range(5)] + [f"v_and_b32 v{vTg}, 0xffff0000, v{vEp}"]
    o += [f"s_mul_i32 s{sB}, s{sKh}, {(WBAS - WBBS) & 0xffffffff}", f"s_add_u32 s{sB}, s{sB}, {WBA - WBB}", f"s_mov_b32 s{sTT}, s13"]
    if OPT.get('cfirst', 0):
        o += half_head(True)
    o += wait_land(ST_WB, HQ, inline=True, n=1)
    rd = lambda j, hl: sum([wo_frag(WA + 64 * j + 8 * hl + 4 * s_, hl if hl < 6 else hl - 6, s_) for s_ in range(2)], [])
    for hl in range(6):
        o += rd(0, hl)
    o += [f"v_subrev_u32 v{vA+x}, s{sB}, v{vA+x}" for x in range(4)] + rd(0, 6) + rd(0, 7) + FLIP + rd(1, 6) + rd(1, 7)
    o += [f"v_add_u32 v{vA+x}, s{sB}, v{vA+x}" for x in range(4)]
    for hl in range(6):
        o += rd(1, hl)
    o += ["s_waitcnt lgkmcnt(0)", "s_branch " + ("L_half_mid" if OPT.get('cfirst', 0) else "L_sub_half"), "@reset", "L_cend:"]
    return o


def pretouch():
    if not OPT.get('touch', 1):
        return []
    o = []
    for p in (sAW, sBW, sOUT, sAO, sBO, sGW, sDBG):
        o.append(f"!s_load_dword s44, s[{p}:{p+1}], 0")
    o += [f"s_mov_b32 s46, s{sWS}", f"s_mov_b32 s47, s{sWS+1}"]
    for i in range(6):
        o += ["!s_load_dword s44, s[46:47], 0", "s_add_u32 s46, s46, 0x200000", "s_addc_u32 s47, s47, 0"]
    return o


def x_wave():
    ROLE[0] = 'X'
    o = ["@reset", "L_xwave:", "s_waitcnt lgkmcnt(0)", "s_mov_b32 s1, s2"] + pretouch() + ["s_barrier"]
    o += srd(sWSD, sWS, WS_SIZE)
    o += h_setup() + p3_early()
    o += ["v_lshrrev_b32 v24, 5, v0", "v_lshlrev_b32 v24, 2, v24", "v_and_b32 v25, 31, v0", "v_sub_u32 v24, v25, v24",
          "v_mov_b32 v25, 0x3f80", "v_mov_b32 v26, 0x3f800000"]
    for r in range(8):
        d0 = 16 * (r >> 2) + 8 * ((r & 3) >> 1) + 2 * (r & 1)
        o += [f"v_cmp_eq_u32 vcc, {d0}, v24", f"v_cndmask_b32 v{IDF+r}, 0, v25, vcc", f"v_cmp_eq_u32 vcc, {d0+1}, v24",
              f"v_cndmask_b32 v{IDF+r}, v{IDF+r}, v26, vcc"]
    sDD, sKD = 36, 40
    sJ = sLi
    t0, t1, t2 = 24, 25, 26
    o += [f"s_sub_u32 s{sJ}, s{sWave}, 6"]
    o += srd(sDD, sDBG, 256) + srd(sKD, sWS, WS_SIZE)
    o += [f"s_cmp_eq_u32 s{sH}, 15", f"s_cselect_b32 s{sKD+2}, 0, s{sKD+2}"]
    o += [f"v_mov_b32 v{t0}, 0", f"s_lshl_b32 s{sT0}, s2, 1", f"s_add_u32 s{sT0}, s{sT0}, s{sJ}",
          f"s_cmp_eq_u32 s{sT0}, 0", "!s_cbranch_scc0 L_xnoep",
          f"s_mov_b32 s{sT0}, {EPW}",
          f"buffer_load_dword v{vEp}, v{t0}, s[{sWSD}:{sWSD+3}], s{sT0} offen sc1",
          f"v_lshrrev_b32 v{t1}, 16, v{vEp}", f"v_add_u32 v{vEp}, 1, v{vEp}", f"v_and_b32 v{vEp}, 0xffff, v{vEp}",
          f"v_max_u32 v{vEp}, 1, v{vEp}", f"v_cmp_eq_u32 vcc, v{vEp}, v{t1}", f"v_addc_co_u32 v{vEp}, vcc, 0, v{vEp}, vcc",
          f"v_and_b32 v{vEp}, 0xffff, v{vEp}", f"v_max_u32 v{vEp}, 1, v{vEp}", f"v_lshl_or_b32 v{vEp}, v{vEp}, 16, v{vEp}",
          "s_mov_b64 exec, 1",
          f"buffer_store_dword v{vEp}, v{t0}, s[{sDD}:{sDD+3}], 0 offen sc1",
          f"buffer_store_dword v{vEp}, v{t0}, s[{sWSD}:{sWSD+3}], s{sT0} offen sc1",
          "s_mov_b64 exec, -1", "@reset", "L_xnoep:"]
    if OPT.get('gpf', 1):
        if OPT.get('gpfgate', 0) >= 0:
            o += wait_land(OPT.get('gpfgate', 0), HQ, inline=True)
        o += [f"s_cmp_eq_u32 s{sJ}, 0", f"s_cselect_b32 s44, s{sAO}, s{sAW}", f"s_cselect_b32 s45, s{sAO+1}, s{sAW+1}",
              f"s_cselect_b32 s48, s{sBO}, s{sBW}", f"s_cselect_b32 s49, s{sBO+1}, s{sBW+1}",
              f"s_mov_b32 s{sT0}, 1204224", f"s_cselect_b32 s46, 401408, s{sT0}", "s_mov_b32 s47, 0x20000",
              f"s_mov_b32 s{sT0}, 2688", f"s_cselect_b32 s{sT1}, 896, s{sT0}",
              "s_mov_b32 s50, s46", "s_mov_b32 s51, 0x20000",
              f"s_mul_i32 s{sT0}, s2, 13", f"v_add_u32 v32, s{sT0}, v0", "v_mul_u32_u24 v33, 9363, v32", "v_lshrrev_b32 v33, 16, v33",
              "v_mul_u32_u24 v34, 7, v33", "v_sub_u32 v32, v32, v34", f"v_mul_u32_u24 v33, s{sT1}, v33", "v_lshl_add_u32 v32, v32, 7, v33",
              "s_mov_b64 exec, 0x1fff",
              "buffer_load_dword v33, v32, s[44:47], 0 offen", "buffer_load_dword v34, v32, s[48:51], 0 offen", "s_mov_b64 exec, -1"]
    if OPT.get('ntouch', 0):
        o += [f"s_lshl_b32 s{sT0}, s{sRB}, 4", f"s_add_u32 s{sT0}, s{sT0}, s{sH}", f"s_lshl_b32 s{sT0}, s{sT0}, 7",
              f"s_lshl_b32 s{sT1}, s{sH}, 4", f"s_add_u32 s{sT1}, s{sT1}, s{sRB}", f"s_lshl_b32 s{sT1}, s{sT1}, 9",
              f"s_lshl_b32 s{sT2}, s{sRB}, 6", f"s_add_u32 s{sT2}, s{sT2}, s{sH}", f"s_lshl_b32 s{sT2}, s{sT2}, 7",
              f"s_add_u32 s{sT0}, s{sT0}, {FK}", f"s_add_u32 s{sT1}, s{sT1}, {N1}", f"s_add_u32 s{sT2}, s{sT2}, {NA}",
              f"s_cmp_eq_u32 s{sJ}, 0", f"s_cselect_b32 s{sT1}, s{sT1}, s{sT2}", f"s_cselect_b32 s{sT2}, 7, 11",
              "v_and_b32 v35, 3, v0", f"v_lshlrev_b32 v35, s{sT2}, v35", "v_bfe_u32 v36, v0, 2, 1",
              f"v_lshlrev_b32 v36, 17, v36", f"v_add3_u32 v35, v35, v36, s{sT1}",
              f"v_writelane_b32 v35, s{sT0}, 8", f"s_add_u32 s{sT0}, s{sT0}, {FV-FK}", f"v_writelane_b32 v35, s{sT0}, 9",
              "v_mov_b32 v36, 0", "s_mov_b64 exec, 0x3ff",
              f"buffer_atomic_or v36, v35, s[{sWSD}:{sWSD+3}], 0 offen sc1", "s_mov_b64 exec, -1"]
    o += wait_land(OPT.get('epgate', 2), HQ, inline=True)
    if OPT.get('ktouch', 0):
        Lk = lab('kt')
        o += [f"s_cmp_eq_u32 s{sZ}, 0", f"!s_cbranch_scc1 {Lk}", f"s_cmp_eq_u32 s{sH}, 15", f"!s_cbranch_scc1 {Lk}",
              f"s_mul_i32 s{sT0}, s{sRB}, {4*28672}", f"s_cmp_eq_u32 s{sJ}, 0", f"s_cselect_b32 s{sT1}, 12, 10",
              f"s_lshl_b32 s{sT1}, s{sHH}, s{sT1}", f"s_add_u32 s{sT0}, s{sT0}, s{sT1}",
              f"s_mul_i32 s{sT1}, s{sJ}, {VG}", f"s_add_u32 s{sT0}, s{sT0}, s{sT1}",
              f"s_mul_i32 s{sT1}, s{sJ}, {7168-1024}", "v_bfe_u32 v33, v0, 3, 2", f"v_mul_u32_u24 v33, s{sT1}, v33",
              "v_and_b32 v34, 31, v0", "v_lshl_add_u32 v33, v34, 7, v33", "v_lshrrev_b32 v34, 5, v0", "v_mul_u32_u24 v34, 28672, v34",
              "v_add_u32 v33, v33, v34", f"s_add_u32 s{sT1}, s{sT0}, {2*28672}",
              f"buffer_load_dword v34, v33, s[{sWSD}:{sWSD+3}], s{sT0} offen", f"buffer_load_dword v35, v33, s[{sWSD}:{sWSD+3}], s{sT1} offen", f"!{Lk}:"]
    o += spin_vm([f"buffer_load_dword v{vEp}, v{t0}, s[{sDD}:{sDD+3}], 0 offen sc1"], [f"v_cmp_eq_u32 vcc, 0, v{vEp}"])
    o += [f"ds_write_b32 v{vM}, v{vEp} offset:{16*EPOCH}", f"v_readfirstlane_b32 s{sEp}, v{vEp}"]
    o += srd(sXD, sBO, 401408) + [f"s_mov_b32 s{sC7}, 7168",
          f"v_lshrrev_b32 v{t0}, 3, v0", f"v_mul_u32_u24 v{vWO}, 896, v{t0}",
          f"v_bfe_u32 v{t1}, v0, 2, 1", f"v_bfe_u32 v{t2}, v0, 4, 1", f"v_xor_b32 v{t1}, v{t1}, v{t2}",
          f"v_lshl_add_u32 v{vWO}, v{t1}, 6, v{vWO}", f"v_and_b32 v{t2}, 3, v0", f"v_lshl_add_u32 v{vWO}, v{t2}, 4, v{vWO}",
          f"s_lshl_b32 s{sT0}, s{sCT}, 7", f"v_add_u32 v{vWO}, s{sT0}, v{vWO}",
          f"v_mov_b32 v{vMl}, v{vMs}", f"s_mov_b32 s{sT0}, {LANDC}", f"v_writelane_b32 v{vMl}, s{sT0}, 0"]
    d7 = [f"!s_call_b64 s[{sRet}:{sRet+1}], L_sub_d7"]


    def ebatch():
        L = lab('eb')
        return [f"s_cmp_ge_u32 s{sJ3}, 28", f"!s_cbranch_scc1 {L}",
                f"s_mul_i32 s{sOff}, s{sJ}, {224*896}", f"s_mul_i32 s{sT0}, s{sJ}, {STGS}", f"s_add_u32 m0, s{sT0}, {STG}"] + \
            [f"!s_call_b64 s[{sRet}:{sRet+1}], L_sub_d7e"] * 3 + [f"!{L}:"]
    o += stamp(1)
    o += [f"s_setprio {OPT.get('xprio', 3)}", f"s_cmp_eq_u32 s{sZ}, 0", "!s_cbranch_scc1 L_xY"]
    o += [f"s_lshl_b32 s{sT0}, s{sHH}, 6", f"s_mul_i32 s{sT1}, s{sT0}, 2341", f"s_lshr_b32 s{sT1}, s{sT1}, 16",
          f"s_add_u32 s{sT0}, s{sT0}, 63", f"s_mul_i32 s{sT2}, s{sT0}, 2341", f"s_lshr_b32 s{sT2}, s{sT2}, 16",
          f"v_and_b32 v4, 3, v0", f"v_add_u32 v4, s{sT1}, v4", f"v_lshrrev_b32 v5, 2, v0",
          f"v_cmp_ge_u32 s[48:49], s{sT2}, v4", f"v_add_u32 v6, s{sRB}, v5", f"v_cmp_gt_u32 vcc, 16, v6",
          "s_and_b64 s[48:49], s[48:49], vcc", "s_and_b32 s48, s48, 0xfff", "s_mov_b32 s49, 0",
          f"s_cmp_eq_u32 s{sH}, 15", "s_cselect_b32 s48, 0, s48",
          "v_lshl_add_u32 v3, v6, 4, v4", "v_lshlrev_b32 v3, 5, v3",
          "v_mul_u32_u24 v4, 28, v4", "v_lshrrev_b32 v4, 6, v4", f"v_sub_u32 v4, s{sHH}, v4",
          "v_lshlrev_b32 v5, 1, v5", "v_sub_u32 v5, 4, v5", "v_add3_u32 v3, v3, v4, v5", "v_lshlrev_b32 v3, 2, v3",
          f"s_mul_i32 s50, s{sJ}, {FV-FK}", f"s_add_u32 s50, s50, {FK}",
          f"s_mul_i32 s44, s{sRB}, {4*28672}",
          f"s_cmp_eq_u32 s{sJ}, 0", "!s_cbranch_scc0 L_xZV"]
    if ZD:
        o += signal(F_K) + signal(F_K) + spin_ev(R_K, 'all', HQ) + ["s_branch L_xZn", "@reset", "L_xZV:"]
        o += signal(F_K) + signal(F_K) + spin_ev(R_V, 'all', HQ) + ["@reset", "L_xZn:"] + stamp(2)
    else:
        o += [f"s_lshl_b32 s{sT0}, s{sHH}, 12", f"s_add_u32 s44, s44, s{sT0}"]
        o += spin_ev(R_K, 'all', HQ)
        o += [f"ds_read_b128 v[{64+4*i}:{64+4*i+3}], v{vL16} offset:{STK+1024*i}" for i in range(16)] + signal(F_K) + signal(F_K)
        for i in range(16):
            o += [f"buffer_store_dwordx4 v[{64+4*i}:{64+4*i+3}], v{vL16}, s[{sKD}:{sKD+3}], s44 offen offset:{1024*(i%4)} sc1"]
            if i % 4 == 3:
                o += ["s_add_u32 s44, s44, 28672"]
        o += ["s_branch L_xZn", "@reset", "L_xZV:"]
        o += [f"s_lshl_b32 s{sT0}, s{sHH}, 10", f"s_add_u32 s44, s44, s{sT0}", f"s_add_u32 s44, s44, {VG}", "s_add_u32 s45, s44, 14336",
              f"v_lshrrev_b32 v2, 5, v0", f"v_mul_u32_u24 v2, {7168-512}, v2", f"v_add_u32 v2, v2, v{vL16}"]
        o += spin_ev(R_V, 'all', HQ)
        o += [f"ds_read_b128 v[{64+4*i}:{64+4*i+3}], v{vL16} offset:{STV+1024*i}" for i in range(16)] + signal(F_K) + signal(F_K)
        if OPT.get('vafter', 1):
            o += spin_ev(X_PUB, 2, HQ)
        for i in range(16):
            j, s_ = (i % 4) // 2, i % 2
            o += [f"buffer_store_dwordx4 v[{64+4*i}:{64+4*i+3}], v2, s[{sKD}:{sKD+3}], s{44+s_} offen offset:{512*j} sc1"]
            if i % 4 == 3:
                o += ["s_add_u32 s44, s44, 28672", "s_add_u32 s45, s45, 28672"]
        o += ["@reset", "L_xZn:"] + signal(X_PUB) + stamp(2)
    Ln = lab('nn')
    o += ["s_cmp_eq_u32 s48, 0", f"!s_cbranch_scc1 {Ln}"]
    o += ["s_waitcnt vmcnt(0)", "s_mov_b64 exec, s[48:49]",
          f"buffer_store_dword v{vEp}, v3, s[{sWSD}:{sWSD+3}], s50 offen sc1", "s_mov_b64 exec, -1", f"!{Ln}:"] + stamp(3)
    o += ebatch() + ["s_waitcnt vmcnt(0)"] + land(ST_WA1)
    o += ["s_branch L_xjoin", "@reset", "L_xY:"]
    o += fmap(t2, t1) + [f"v_lshrrev_b32 v{t1}, 5, v0", f"v_lshlrev_b32 v{t1}, 9, v{t1}", f"v_lshl_add_u32 v{t2}, v{t2}, 4, v{t1}"]
    o += [f"s_lshl_b32 s{sT0}, s{sJ}, 11", f"v_add_u32 v{t1}, s{sT0}, v{vL16}",
          f"s_add_u32 s{sT1}, s{sT0}, {STV}", f"v_add_u32 v{t2}, s{sT1}, v{t2}",
          f"v_lshrrev_b32 v2, 2, v0", f"v_lshlrev_b32 v2, 12, v2", f"v_and_b32 v3, 3, v0", f"v_lshl_add_u32 v2, v3, 9, v2",
          f"s_add_u32 s{sT0}, s{sT0}, {STV+448}", f"v_add_u32 v2, s{sT0}, v2"]
    o += [f"v_mov_b32 v{32+i}, 0x3f803f80" for i in range(4)]
    o += [f"s_lshl_b32 s{sT0}, s{sHH}, 1", f"s_add_u32 s{sT0}, s{sT0}, s{sJ}", f"s_lshl_b32 s{sT0}, s{sT0}, 4", f"s_add_u32 s{sT0}, s{sT0}, s{sRB}",
          f"s_lshl_b32 s44, s{sT0}, 11", f"s_add_u32 s44, s44, {KVP}",
          f"s_lshr_b32 s{sT1}, s{sT0}, 4", f"s_lshl_b32 s{sT1}, s{sT1}, 5", f"s_add_u32 s{sT1}, s{sT1}, s{sRB}",
          f"s_lshl_b32 s46, s{sT1}, 2", f"s_add_u32 s46, s46, {N1}"]
    o += spin_ev(R_V, 'all', HQ)
    o += ["s_mov_b64 exec, 0xffff", "ds_write_b128 v2, v[32:35]", "s_mov_b64 exec, -1"]
    o += [f"ds_read_b128 v[{96+4*i}:{96+4*i+3}], v{t2} offset:{4096*(i//2)+1024*(i%2)}" for i in range(8)] + signal(F_K)
    if EPSM:
        o += [f"v_mov_b32 v{56+i}, 0x35863586" for i in range(4)]
        o += [mfma(32, 56, 96 + 4 * i, 32 if i else None) for i in range(8)]
    o += ebatch()
    o += spin_ev(R_K, 'all', HQ)
    o += [f"ds_read_b128 v[{64+4*i}:{64+4*i+3}], v{t1} offset:{STK+4096*(i//2)+1024*(i%2)}" for i in range(8)] + signal(F_K)
    o += stamp(2)
    o += [mfma(32, 64 + 4 * i, 96 + 4 * i, 32 if (i or EPSM) else None) for i in range(8)]
    o += [f"v_cvt_pk_bf16_f32 v{56+p}, v{32+2*p}, v{33+2*p}" for p in range(8)]
    o += [f"buffer_store_dwordx4 v[{56+4*e}:{59+4*e}], v{vL16}, s[{sWSD}:{sWSD+3}], s44 offen offset:{1024*e} sc1" for e in range(2)]
    o += ["s_waitcnt vmcnt(0)"]
    o += notify(46, 24, vEp) + land(ST_WA1)
    o += stamp(3)
    o += ["s_nop 1", "@reset", "L_xjoin:", f"s_setprio {OPT.get('hprio', 2)}"]
    if OPT.get('wopf', 1):
        Lp = lab('wopf')
        o += [f"s_cmp_eq_u32 s{sJ}, 0", f"!s_cbranch_scc0 {Lp}",
              f"s_lshr_b32 s{sT0}, s2, 3", f"s_mul_i32 s{sT0}, s{sT0}, {98*128}", f"v_lshl_add_u32 v24, v0, 7, s{sT0}",
              f"v_add_u32 v25, {49*128}, v24",
              "s_mov_b32 exec_hi, 0x1ffff"]
        for p in (sAO, sBO):
            o += [f"!global_load_dword v12, v24, s[{p}:{p+1}]", f"!global_load_dword v12, v25, s[{p}:{p+1}]"]
        o += ["s_mov_b64 exec, -1", f"!{Lp}:"]
    def xb(ptr, row0, lds, n):
        return [f"s_mov_b32 s{sXD}, s{ptr}", f"s_mov_b32 s{sXD+1}, s{ptr+1}", f"s_mov_b32 s{sOff}, {row0*896}",
                f"s_mov_b32 m0, {lds}"] + d7 * n
    r0 = wait_land(ST_WA1, HQ, inline=True) + call("r0")
    o += [f"s_cmp_eq_u32 s{sJ}, 1", "!s_cbranch_scc1 L_x1p",
          f"s_cmp_ge_u32 s{sJ3}, 28", "!s_cbranch_scc1 L_xfin"]
    phi0 = call("phi") + p3_setup() + [f"s_mov_b32 s{sOBd}, 0"]
    o += r0 + (phi0 if OPT.get('x0phi', 0) else [])
    o += spin_ev(F_K, 'hi', HQ, ge=2) + spin_ev(E_P3, 'all', HQ) + spin_ev(KVISS, 'lo', HQ)
    o += stamp(4)
    o += xb(sAO, 0, WBA, 3) + xb(sAO, 224, WBA + WBAS, 3)
    o += ([] if OPT.get('x0phi', 0) else phi0)
    o += serve_ev(GRDY)
    o += xb(sAO, 168, WBB, 1) + xb(sAO, 224 + 168, WBB + WBBS, 1)
    if OPT.get('wbfirst', 0):
        o += ["s_waitcnt vmcnt(0)"] + land(ST_WB) + stamp(5)
    else:
        o += [f"s_cmp_lg_u32 s{sOBd}, 0", "!s_cbranch_scc1 L_xt0"] + call("ob") + [f"s_mov_b32 s{sOBd}, 1", "s_waitcnt vmcnt(3)", "s_branch L_xt1",
              "L_xt0:", "s_waitcnt vmcnt(0)", "L_xt1:"] + land(ST_WB) + stamp(5)
    o += ["s_branch L_p3", "@reset", "L_x1p:"]
    Lq = lab('nr0')
    o += [f"s_cmp_ge_u32 s{sJ3}, 28", f"!s_cbranch_scc1 {Lq}"] + wait_land(ST_WA1, HQ, inline=True) + call("r0") + [f"{Lq}:"]
    o += call("phi") + p3_setup() + [f"s_mov_b32 s{sOBd}, 0"]

    o += [f"s_lshl_b32 s{sT1}, s{sH}, 7", f"s_add_u32 s{sT1}, s{sT1}, {N1}"]
    o += stamp(7, 'y')
    o += spoll(56, sT1, 36, 16, 16, sleep=OPT.get('psleep', 1))
    o += [f"s_lshl_b32 s44, s{sH}, 15", f"s_add_u32 s44, s44, {KVP}"]
    o += stamp(4)

    def pl(n):
        r = [f"buffer_load_dwordx4 v[{64+4*(n%16)}:{67+4*(n%16)}], v{vL16}, s[{sWSD}:{sWSD+3}], s44 offen offset:{1024*(n%4)} sc1"]
        return r + (["s_add_u32 s44, s44, 4096"] if n % 4 == 3 else [])
    for n in range(16):
        o += pl(n)
    o += [f"s_setprio {OPT.get('kvprio', 2)}"]
    for n in range(32):
        o += [mfma(32, IDF + 4 * (n % 2), 64 + 4 * (n % 16), 32 if n else None)]
        if n < 16:
            o += pl(n + 16)
    o += [f"s_setprio {OPT.get('hprio', 2)}"]
    o += stamp(9, 'y')
    o += [f"v_cvt_pk_bf16_f32 v{96+p}, v{32+2*p}, v{33+2*p}" for p in range(8)]
    o += [f"v_add_u32 v24, {KVF}, v{vL16}",
          f"ds_write_b128 v24, v[96:99]", f"ds_write_b128 v24, v[100:103] offset:1024"] + signal(KVRDY)
    o += call("ob") + [f"s_mov_b32 s{sOBd}, 1"]
    o += stamp(5)
    o += [f"s_cmp_ge_u32 s{sJ3}, 28", "!s_cbranch_scc1 L_xend"]
    o += ["s_branch L_p3", "@reset", "L_xfin:"] + call("phi") + call("ob") + ["L_xend:"] + stamp_flush(20, 0) + ["s_endpgm"]
    return o


HEADER = f"""; Fused sliding-window attention + linear attention + gated output projection (gfx950).
; One persistent launch: 256 workgroups x 8 waves (4 compute, 2 loader, 2 auxiliary).
; @launch grid=(256,1,1) block=(512,1,1) lds=163840
.amdgcn_target "amdgcn-amd-amdhsa--gfx950"
.text
.globl {NAME}_kernel
.p2align 8
.type {NAME}_kernel,@function
{NAME}_kernel:
"""
FOOTER = f"""
.section .rodata,"a"
.p2align 6
.amdhsa_kernel {NAME}_kernel
  .amdhsa_next_free_vgpr 256
  .amdhsa_next_free_sgpr 102
  .amdhsa_accum_offset 256
  .amdhsa_group_segment_fixed_size 0
  .amdhsa_kernarg_size 80
  .amdhsa_user_sgpr_count 2
  .amdhsa_user_sgpr_kernarg_segment_ptr 1
  .amdhsa_system_sgpr_workgroup_id_x 1
.end_amdhsa_kernel
"""


def main():
    body = prologue()
    SLEEP[0] = OPT.get('sleep', 1)
    l = l_wave()
    x = x_wave()
    p3 = phase3()
    sub = subroutines()
    SLEEP[0] = 0
    c = c_wave()
    rep = []
    lines = finalize(body + l + x + p3 + sub + c, rep)
    lines += ['    ' + s if not s.endswith(':') else s for s in slow]
    lines += ["L_abort:", "L_exit:", "    s_endpgm", "L_end:"]
    open(sys.argv[1], 'w').write(HEADER + "\n".join(lines) + FOOTER)
    big = [r for r in rep if r[0] >= 3]
    print("nops inserted:", len(rep), "total states", sum(r[0] for r in rep))
    for r in big:
        print("   ", r)


main()
```

```python
import sys, math, struct
from asmlib import finalize, merge

NAME = "gated_mix__sliding_block__linear_attn_block__prompt"
OPT = dict(stamps=0, l1=16, l3=8, prefetch=2, touch=0, refetch=0, wopf=0)
for a in sys.argv[2:]:
    k, v = a.split('=')
    OPT[k] = int(v)


def fhex(x):
    return '0x%08x' % struct.unpack('<I', struct.pack('<f', x))[0]


LOG2E = math.log2(math.e)
KSCALE = LOG2E * 28 ** -0.5
SPIN = 60000

def XR(c): return 16384 * (c % 4)
def WR(c): return 65536 + 16384 * (c % 4)
QLOC = [131072 + 4096 * c for c in range(6)] + [114688] + [114688 + 4096 * c for c in (1, 2, 3)] + [49152 + 4096 * c for c in range(4)]
QBB = 114688
KL = 16384
VL = 131072
STQ, STV, STK = 0, 16384, 32768
STG, STGS = 65536, 21504
WBA, WBAS = 40960, 67584
WBB, WBBS = 0, 7168
MISC = 158720
LANDC = MISC + 256
JUNK = MISC + 512
GL = MISC + 1536
KVF = MISC + 2560
E_PA, X_PUB, E_P2, E_P3, R_K, R_V, R_Q, E_OA, F_K, E_P3A, R1, GRDY, KVRDY, EPOCH, KVISS, STI = range(16)
ST_K, ST_V, ST_WA1, ST_WB, ST_WA2 = 21, 22, 23, 24, 25

KG, VG, OA, OB, KVP, KVT = 0x000000, 0x200000, 0x400000, 0x600000, 0x800000, 0xA00000
FK, FV, N1, N2, NA, NB, EPW = 0xA40000, 0xA48000, 0xA60000, 0xA80000, 0xAA0000, 0xAC0000, 0xA50000
STAMPS = 0xB00000
WS_SIZE = 0x1000000

sX, sAW, sAO, sBW, sBO, sGW, sOUT, sDBG, sWS = 4, 6, 8, 12, 14, 16, 18, 20, 22
sWave, sH, sRB, sPar, sHH = 24, 25, 26, 27, 28
sT0, sT1, sT2, sTO = 29, 30, 31, 3
sZ = 74
sWSD = 32
sStamp = 76
sJ3, sCT, sTB = 100, 10, 11
sW4 = 101

_lab = [0]
slow = []
ROLE = ['P']
SLEEP = [0]
vL16, vM, vOne, vF, vMs = 1, 10, 11, 12, 13
vFq = 252


def lab(p):
    _lab[0] += 1
    return f"L_{p}_{_lab[0]}"


def srd(d, ptr, size, add=0):
    o = []
    if ptr == sWS:
        add += OPT.get('wsoff', 0) << 20
    if add:
        o += [f"s_add_u32 s{d}, s{ptr}, {add}", f"s_addc_u32 s{d+1}, s{ptr+1}, 0"]
    else:
        o += [f"s_mov_b32 s{d}, s{ptr}", f"s_mov_b32 s{d+1}, s{ptr+1}"]
    o += [f"s_mov_b32 s{d+2}, {size}", f"s_mov_b32 s{d+3}, 0x20000"]
    return o


def stamp(i, kind=''):
    if not OPT['stamps']:
        return []
    alt = OPT.get('alt', 0)
    if kind == 'z':
        return [f"!s_memtime s[{sStamp+2*i}:{sStamp+2*i+1}]"] if alt == 5 else []
    if kind == 's':
        return [f"!s_memtime s[{sStamp+2*i}:{sStamp+2*i+1}]"] if alt == 9 else []
    if alt == 9 and 4 <= i <= 8:
        return []
    if ROLE[0] == 'L' and (alt in (1, 11)) != (kind == 'f'):
        return []
    if kind == 'z':
        return [f"!s_memtime s[{sStamp+2*i}:{sStamp+2*i+1}]"] if alt == 5 else []
    if ROLE[0] == 'H' and alt in (1, 3, 4, 5, 11):
        return []
    if kind == 'y' and alt != 4:
        return []
    if kind == 'x' and alt != 3:
        return []
    if ROLE[0] == 'C' and (alt in (2, 11)) != (kind == 'f'):
        return []
    return [f"!s_memtime s[{sStamp+2*i}:{sStamp+2*i+1}]"]


def stamp_flush(vt, vlane):
    if not OPT['stamps'] or 'pw' in OPT:
        return []
    o = ["s_mov_b64 exec, -1", "s_waitcnt lgkmcnt(0)", f"v_mov_b32 v{vt}, 0"]
    for i in range(12):
        o.append(f"v_writelane_b32 v{vt}, s{sStamp+2*i}, {i}")
    o.append(f"v_writelane_b32 v{vt}, s0, 12")
    o += [f"s_lshl_b32 s{sT0}, s1, 3", f"s_add_u32 s{sT0}, s{sT0}, s{sWave}", f"s_lshl_b32 s{sT0}, s{sT0}, 8",
          f"s_add_u32 s{sT0}, s{sT0}, {STAMPS}",
          f"v_lshlrev_b32 v{vt+1}, 2, v{vlane}",
          f"buffer_store_dword v{vt}, v{vt+1}, s[{sWSD}:{sWSD+3}], s{sT0} offen"]
    return o


def _tmo():
    return [f"s_add_u32 s{sTO}, s{sTO}, 1", f"s_cmp_gt_u32 s{sTO}, {SPIN}", "s_cbranch_scc1 L_abort"]


def _ev_read(ev, which, q):
    if which == 'all':
        return [f"ds_read_b128 v[{q}:{q+3}], v{vM} offset:{16*ev}"], \
               [f"v_min3_u32 v{q}, v{q}, v{q+1}, v{q+2}", f"v_min_u32 v{q}, v{q}, v{q+3}"]
    if which in ('hi', 'lo'):
        return [f"ds_read_b64 v[{q}:{q+1}], v{vM} offset:{16*ev + (8 if which == 'hi' else 0)}"], \
               [f"v_min_u32 v{q}, v{q}, v{q+1}"]
    if which == 'own':
        return [f"ds_read_b32 v{q}, v{vOwn} offset:{16*ev}"], []
    return [f"ds_read_b32 v{q}, v{vM} offset:{16*ev + 4*which}"], []


def spin_ev(ev, which, q=None, ge=1):
    q = vFq if q is None else q
    L, L2 = lab('sp'), lab('spx')
    rd, red = _ev_read(ev, which, q)
    o = ["s_waitcnt lgkmcnt(0)", f"!s_mov_b32 s{sTO}, 0", f"!{L}:"]
    o += ["!" + x for x in rd + _tmo() + ["s_waitcnt lgkmcnt(0)"] + red]
    if SLEEP[0]:
        o += [f"!v_cmp_le_u32 vcc, {ge}, v{q}", f"!s_cbranch_vccnz {L2}", f"!!s_sleep {SLEEP[0]}", f"!!s_branch {L}", f"!{L2}:"]
    else:
        o += [f"!v_cmp_gt_u32 vcc, {ge}, v{q}", f"!s_cbranch_vccnz {L}"]
    return o


def check_ev(ev, which, q, ge=1):
    Ls, Lb = lab('slow'), lab('back')
    rd, red = _ev_read(ev, which, q)
    slow.extend([f"{Ls}:", f"s_mov_b32 s{sTO}, 0", f"{Ls}_s:"] + rd + _tmo() + ["s_waitcnt lgkmcnt(0)"] + red +
                [f"v_cmp_gt_u32 vcc, {ge}, v{q}", f"s_cbranch_vccnz {Ls}_s", f"s_branch {Lb}"])
    return rd, red + [f"v_cmp_gt_u32 vcc, {ge}, v{q}", f"!s_cbranch_vccnz {Ls}", f"!{Lb}:"]


def wait_land(st, q=None, inline=False, n=2, near=False):
    q = vFq if q is None else q
    rd = f"ds_read_b32 v{q}, v{vM} offset:{256 + 4*st}"
    if inline:
        L, L2 = lab('wl'), lab('wlx')
        o = ["s_waitcnt lgkmcnt(0)", f"!s_mov_b32 s{sTO}, 0", f"!{L}:"] + ["!" + x for x in [rd] + _tmo() + ["s_waitcnt lgkmcnt(0)"]]
        if SLEEP[0]:
            return o + [f"!v_cmp_eq_u32 vcc, {n}, v{q}", f"!s_cbranch_vccnz {L2}", f"!!s_sleep {SLEEP[0]}", f"!!s_branch {L}", f"!{L2}:"]
        return o + [f"!v_cmp_ne_u32 vcc, {n}, v{q}", f"!s_cbranch_vccnz {L}"]
    Ls, Lb = lab('slow'), lab('back')
    if near:
        return [rd], [f"v_cmp_eq_u32 vcc, {n}, v{q}", f"!s_cbranch_vccnz {Lb}", f"!!s_mov_b32 s{sTO}, 0", f"!{Ls}:"] + \
            ["!!" + x for x in [rd] + _tmo() + ["s_waitcnt lgkmcnt(0)", f"v_cmp_ne_u32 vcc, {n}, v{q}", f"s_cbranch_vccnz {Ls}"]] + [f"!{Lb}:"]
    slow.extend([f"{Ls}:", f"s_mov_b32 s{sTO}, 0", f"{Ls}_s:", rd] + _tmo() +
                ["s_waitcnt lgkmcnt(0)", f"v_cmp_ne_u32 vcc, {n}, v{q}", f"s_cbranch_vccnz {Ls}_s", f"s_branch {Lb}"])
    return [rd], [f"v_cmp_ne_u32 vcc, {n}, v{q}", f"!s_cbranch_vccnz {Ls}", f"!{Lb}:"]


vMl = 12


def land(st):
    return [f"ds_add_u32 v{vMl}, v{vOne} offset:{4*st}"]


def signal(ev):
    return [f"ds_add_u32 v{vMs}, v{vOne} offset:{16*ev}"]


def mfma(d, a, b, c):
    cs = f"v[{c}:{c+15}]" if isinstance(c, int) and c >= 0 else "0"
    return f"v_mfma_f32_32x32x16_bf16 v[{d}:{d+15}], v[{a}:{a+3}], v[{b}:{b+3}], {cs}"


def tr(d, a, off, tag=None):
    return f"ds_read_b64_tr_b16 v[{d}:{d+1}], v{a} offset:{off}" + (f" ;@tag={tag}" if tag else "")


vOwn = 9


def common_setup():
    return [f"v_lshlrev_b32 v{vL16}, 4, v0", f"v_mov_b32 v{vM}, {MISC}", f"v_mov_b32 v{vOne}, 1",
            f"s_and_b32 s{sW4}, s{sWave}, 3",
            f"v_lshlrev_b32 v{vMs}, 2, v0", f"v_add_u32 v{vMs}, {JUNK}, v{vMs}",
            f"s_lshl_b32 s{sT0}, s{sW4}, 2", f"s_add_u32 s{sT0}, s{sT0}, {MISC}",
            f"v_writelane_b32 v{vMs}, s{sT0}, 0"]


def prologue():
    o = []
    o += ["s_load_dwordx4 s[4:7], s[0:1], 0", "s_load_dwordx8 s[12:19], s[0:1], 32",
          "s_load_dwordx4 s[20:23], s[0:1], 64", "s_load_dwordx2 s[8:9], s[0:1], 16"]
    o += stamp(0)
    if OPT['stamps']:
        o += ["!s_memrealtime s[0:1]"]
    if OPT.get('until'):
        o += ["!s_memtime s[98:99]"]
    o += ["s_cmp_ge_u32 s2, 256", "!s_cbranch_scc1 L_exit",
          "v_lshrrev_b32 v1, 6, v0", "v_and_b32 v0, 63, v0", f"v_xor_b32 v1, {OPT.get('wswap', 4)}, v1", "s_nop 0",
          f"v_readfirstlane_b32 s{sWave}, v1"] + code_prefetch() + [
          f"s_and_b32 s{sT0}, s2, 7", f"s_lshr_b32 s{sT1}, s2, 3",
          f"s_and_b32 s{sH}, s{sT0}, 1", f"s_lshl_b32 s{sH}, s{sH}, 3",
          f"s_and_b32 s{sT2}, s{sT1}, 7", f"s_add_u32 s{sH}, s{sH}, s{sT2}",
          f"s_lshr_b32 s{sRB}, s{sT0}, 1", f"s_lshl_b32 s{sRB}, s{sRB}, 2",
          f"s_lshr_b32 s{sT2}, s{sT1}, 3", f"s_add_u32 s{sRB}, s{sRB}, s{sT2}",
          f"s_and_b32 s{sPar}, s{sH}, 1", f"s_lshr_b32 s{sHH}, s{sH}, 1",
          f"s_and_b32 s{sT0}, s2, 1", f"s_xor_b32 s{sZ}, s{sPar}, s{sT0}", f"s_xor_b32 s{sZ}, s{sZ}, 1"]
    o += common_setup()
    o += [f"s_cmp_lt_u32 s{sWave}, 4", "!s_cbranch_scc1 L_cwave",
          f"s_cmp_ge_u32 s{sWave}, 6", "!s_cbranch_scc1 L_xwave"]
    return o


vXA, vW0, vW1, vQB, vQA, vLow, vSt = 2, 6, 7, 8, 9, 14, 15
PK = 16
WB = 32
MK = 56
accA, accB = 64, 96
XF = 128
QF = 240
vMA, vMB = 248, 249
TMP = 250
sMask = 40
sL2E, sEps, sKS, sTile, sSt = 72, 73, 39, 75, 36


def c_setup():
    o = []
    lo, hh, t0, t1, t2 = 20, 21, 22, 23, 24
    o += [f"v_and_b32 v{lo}, 31, v0", f"v_lshrrev_b32 v{hh}, 5, v0",
          f"s_lshl_b32 s{sTile}, s{sRB}, 2", f"s_add_u32 s{sTile}, s{sTile}, s{sWave}",
          f"s_mov_b32 s{sL2E}, {fhex(LOG2E)}", f"s_mov_b32 s{sEps}, {fhex(1e-6)}", f"s_mov_b32 s{sKS}, {fhex(KSCALE)}"]
    o += [f"v_bfe_u32 v{t0}, v0, 1, 3", f"v_xor_b32 v{t0}, v{t0}, v{hh}",
          f"s_lshl_b32 s{sT0}, s{sWave}, 12",
          f"v_add_u32 v{vSt}, s{sT0}, v{vL16}",
          f"v_lshlrev_b32 v{t1}, 7, v{lo}", f"v_add_u32 v{t1}, s{sT0}, v{t1}"]
    for s in range(4):
        o += [f"v_xor_b32 v{t2}, {2*s}, v{t0}", f"v_lshl_add_u32 v{vXA+s}, v{t2}, 4, v{t1}"]
    r, cg, row = 25, 26, 27
    o += [f"v_bfe_u32 v{r}, v0, 2, 2", f"v_bfe_u32 v{t0}, v0, 4, 1", f"v_and_b32 v{cg}, 3, v0",
          f"v_lshl_add_u32 v{cg}, v{t0}, 2, v{cg}",
          f"v_lshl_add_u32 v{row}, v{hh}, 3, v{r}"]
    o += [f"v_lshrrev_b32 v{t0}, 1, v{r}",
          f"v_lshlrev_b32 v{t1}, 7, v{row}", f"v_add_u32 v{t1}, 65536, v{t1}",
          f"v_lshl_add_u32 v{vW0}, v{t0}, 6, v{t1}",
          f"v_xor_b32 v{vW1}, 64, v{vW0}",
          f"v_lshl_add_u32 v{vW0}, v{cg}, 3, v{vW0}",
          f"s_xor_b32 s{sT0}, s{sZ}, 1",
          f"v_add_u32 v{t2}, s{sT0}, v{cg}", f"v_and_b32 v{t2}, 7, v{t2}",
          f"v_lshl_add_u32 v{vW1}, v{t2}, 3, v{vW1}"]
    o += [f"v_lshlrev_b32 v{t1}, 6, v{row}",
          f"v_add_u32 v{t2}, s{sPar}, v{cg}", f"v_and_b32 v{t2}, 7, v{t2}",
          f"v_lshl_add_u32 v{vQB}, v{t2}, 3, v{t1}", f"v_add_u32 v{vQB}, {QBB}, v{vQB}",
          f"v_and_b32 v{t0}, 1, v{cg}", f"v_lshlrev_b32 v{t0}, 1, v{t0}",
          f"v_bfe_u32 v{t2}, v{cg}, 1, 1", f"v_or_b32 v{t0}, v{t0}, v{t2}",
          f"v_and_b32 v{t2}, 4, v{cg}", f"v_or_b32 v{t0}, v{t0}, v{t2}",
          f"v_lshl_add_u32 v{vQA}, v{t0}, 3, v{t1}", f"v_add_u32 v{vQA}, {QBB}, v{vQA}"]
    o += [f"v_add_u32 v{vLow}, -1, v{hh}",
          f"s_sub_u32 s{sT0}, s{sPar}, 1",
          f"v_not_b32 v{t0}, v{vLow}",
          f"v_or_b32 v{vMA}, s{sT0}, v{t0}",
          f"s_not_b32 s{sT0}, s{sT0}",
          f"v_or_b32 v{vMB}, s{sT0}, v{vLow}"]
    o += [f"v_lshlrev_b32 v{t0}, 2, v{hh}", f"v_sub_u32 v{t0}, v{lo}, v{t0}"]
    for rr in range(16):
        b = 8 * (rr >> 2) + (rr & 3)
        o.append(f"v_cmp_le_i32 s[{sMask+2*rr}:{sMask+2*rr+1}], {b}, v{t0}")
    o += [f"v_mov_b32 v{t1}, 0xffff", f"v_mov_b32 v{t2}, 0xffff0000"]
    for p in range(8):
        o += [f"v_cndmask_b32 v{MK+p}, 0, v{t1}, s[{sMask+4*p}:{sMask+4*p+1}]",
              f"v_cndmask_b32 v{t0}, 0, v{t2}, s[{sMask+4*p+2}:{sMask+4*p+3}]",
              f"v_or_b32 v{MK+p}, v{MK+p}, v{t0}"]
    return o


ZD = OPT.get('zd', 1)
YD = OPT.get('yd', 1)
EPSM = OPT.get('epsm', 1)
sKD = 8


def gemm_frags(isY):
    fr = []
    for k in range(28):
        c, s = divmod(k, 4)
        order = [(0, 0), (0, 1), (1, 0), (1, 1)] if k < 27 else [(1, 0), (1, 1), (0, 0), (0, 1)]
        for i, (p, j) in enumerate(order):
            fr.append(dict(step=c, addr=(vW0, vW1)[j], off=XR(c) + 8192 * p + s * 2048, du=512, k=k,
                           acc=(accA, accB)[p] + 16 * j, wfirst=(p == 0 and not isY), pre=[],
                           xread=(f"ds_read_b128 v[{XF+4*k}:{XF+4*k+3}], v{vXA+s} offset:{XR(c)}" if i == 0 else None)))
    for q, a in enumerate((vQB, vQA)):
        for k in range(28):
            c, s = divmod(k, 4)
            loc = QLOC[7 * q + c]
            base = QBB if loc >= QBB else 49152
            pre = [f"v_subrev_u32 v{vQA}, {QBB-49152}, v{vQA}"] if (q, k) == (1, 12) else []
            fr.append(dict(step=7 + 7 * q + c, addr=a, off=loc - base + s * 1024, du=256, k=k,
                           acc=accB + 16 * q, wfirst=True, pre=pre, xread=None))
    return fr


def need_step(st):
    if st < 7:
        return st
    base = 7 if st < 14 else 14
    return base + {0: 0, 1: 2, 2: 2, 3: 4, 4: 4, 5: 6, 6: 6}[st - base]


def gemm_slots(isY):
    fr = gemm_frags(isY)
    N = len(fr)
    D = 5
    slots = []
    issued = 0
    checked = set()
    early = {}
    for n in range(N):
        cur = []
        f = fr[n]
        lim = 3 if n == 0 else min(n + D, N - 1)
        if (YD if isY else ZD) and n < 112:
            lim = min(lim, 111)
        if (YD if isY else ZD) and n == 112:
            lim = 114
        while issued <= lim:
            g = fr[issued]
            st = need_step(g['step'])
            if st not in checked:
                checked.add(st)
                if st == 0:
                    cur += stamp(8, 's') + wait_land(st, inline=True) + stamp(1)
                else:
                    if st not in early:
                        rd, early[st] = wait_land(st, q=vFq + 2)
                        cur += rd
                    cur += early[st]
                if st == 5:
                    cur += ["s_waitcnt vmcnt(0)"]
            b = WB + 4 * (issued % 6)
            cur += g['pre']
            if g['xread']:
                cur.append(g['xread'])
            cur += [tr(b, g['addr'], g['off']), tr(b + 2, g['addr'], g['off'] + g['du'], tag=f"f{issued}")]
            issued += 1
            last_of_step = issued == N or fr[issued]['step'] != g['step']
            if last_of_step:
                ev = {0: E_PA, 1: E_PA, 2: E_PA, 3: E_PA, 6: E_P2, 13: E_P3A, 20: E_P3}.get(g['step'])
                if ev is not None:
                    cur += signal(ev)
        if issued + 1 < N:
            st = need_step(fr[issued + 1]['step'])
            if (YD if isY else ZD) and st == 7:
                early[st] = wait_land(7, inline=True)
            if st > 0 and st not in early:
                rd, early[st] = wait_land(st, q=vFq + 2, near=(st <= OPT.get('near', 7)))
                cur += rd
        if n % 2 == 0:
            cur.append(f"@wait_ds f{n+1}")
        b = WB + 4 * (n % 6)
        x = XF + 4 * f['k']
        A, B = (b, x) if f['wfirst'] else (x, b)
        cur.append(mfma(f['acc'], A, B, f['acc'] if f['k'] else None))
        slots.append(cur)
    if OPT.get('alt') in (2, 11):
        for i in range(11):
            n = OPT['cst'] + i * OPT.get('cstep', 4)
            if n < len(slots):
                slots[n] = stamp(i + 1, 'f') + slots[n]
    return slots


def phi_pair(a, b, ta, tb, dst, l2e, eps):
    r = [f"v_mul_f32 v{ta}, s{l2e}, v{a}", f"v_mul_f32 v{tb}, s{l2e}, v{b}",
            f"v_exp_f32_e64 v{ta}, v{ta} clamp", f"v_exp_f32_e64 v{tb}, v{tb} clamp",
            f"v_max_f32 v{a}, 0, v{a}", f"v_max_f32 v{b}, 0, v{b}",
            f"v_add_f32 v{a}, v{a}, v{ta}", f"v_add_f32 v{b}, v{b}, v{tb}",
            f"v_add_f32 v{a}, s{eps}, v{a}", f"v_add_f32 v{b}, s{eps}, v{b}",
            f"v_cvt_pk_bf16_f32 v{dst}, v{a}, v{b}"]
    return r if eps is not None else r[:8] + r[10:]


def c_gemm(isY):
    slots = gemm_slots(isY)
    pa, p3a, p3b = slots[:112], slots[112:140], slots[140:168]
    o = []
    for s in pa:
        o += s
    o += stamp(2)
    wr = lambda d, i, base: f"ds_write_b128 v{vSt}, v[{d}:{d+3}] offset:{base + 1024*i}"
    vc = lambda j: [f"v_cvt_pk_bf16_f32 v{PK+8*j+i}, v{accB+16*j+2*i}, v{accB+16*j+2*i+1}" for i in range(8)]
    vw = [wr(PK + 4 * i, i, STV) for i in range(4)]
    if not isY and ZD:
        o += srd(sKD, sWS, WS_SIZE) + [f"s_cmp_eq_u32 s{sH}, 15", f"s_cselect_b32 s{sKD+2}, 0, s{sKD+2}",
              f"s_mul_i32 s36, s{sTile}, 28672", f"s_lshl_b32 s{sT0}, s{sHH}, 10", f"s_add_u32 s37, s36, s{sT0}",
              f"s_add_u32 s37, s37, {VG}", "s_add_u32 s38, s37, 14336", f"s_lshl_b32 s{sT0}, s{sHH}, 12", f"s_add_u32 s36, s36, s{sT0}"]
        for j in range(2):
            a = accA + 16 * j
            for i in range(8):
                o += [f"v_mul_f32 v{a+2*i}, s{sKS}, v{a+2*i}", f"v_mul_f32 v{a+2*i+1}, s{sKS}, v{a+2*i+1}",
                      f"v_cvt_pk_bf16_f32 v{a+i}, v{a+2*i}, v{a+2*i+1}"]
            o += [f"v_permlane32_swap_b32 v{a+x}, v{a+x+2}" for x in (0, 1, 4, 5)]
            o += [f"buffer_store_dwordx4 v[{a+4*e}:{a+4*e+3}], v{vL16}, s[{sKD}:{sKD+3}], s36 offen offset:{1024*(2*j+e)} sc1 ;@tag=kst" for e in range(2)]
        o += vc(0) + vc(1) + [f"v_lshrrev_b32 v{TMP}, 5, v0", f"v_mul_u32_u24 v{TMP}, {7168-512}, v{TMP}", f"v_add_u32 v{TMP}, v{TMP}, v{vL16}"]
        o += [f"buffer_store_dwordx4 v[{PK+4*i}:{PK+4*i+3}], v{TMP}, s[{sKD}:{sKD+3}], s{37+i%2} offen offset:{512*(i//2)} sc1 ;@tag=vst" for i in range(4)]
        o += signal(STI) + (signal(R_K) + signal(R_V) if OPT.get('w3') else ["@wait_vm kst"] + signal(R_K) + ["@wait_vm vst"] + signal(R_V))
        f = []
        per = 1
    elif not isY:
        o += vc(0)
        f = []
        for j in range(2):
            a = accA + 16 * j
            for i in range(8):
                f += [f"v_mul_f32 v{a+2*i}, s{sKS}, v{a+2*i}", f"v_mul_f32 v{a+2*i+1}, s{sKS}, v{a+2*i+1}",
                      f"v_cvt_pk_bf16_f32 v{a+i}, v{a+2*i}, v{a+2*i+1}"]
            f += [f"v_permlane32_swap_b32 v{a+x}, v{a+x+2}" for x in (0, 1, 4, 5)]
            f += [wr(a + 4 * e, 2 * j + e, STK) for e in range(2)]
        f += signal(R_K) + vc(1) + vw + signal(R_V)
        per = OPT.get('kper', 40)
    else:
        o += vc(0)
        f = vc(1) + vw + signal(R_V)
        for p in range(16):
            a = accA + 16 * (p // 8)
            i = p % 8
            f += phi_pair(a + 2 * i, a + 2 * i + 1, TMP, TMP + 1, a + i, sL2E, None if EPSM else sEps)[-1 if OPT.get('w2') else 0:]
            if p % 4 == 3:
                f.append(wr(a + i - 3, p // 4, STK))
        f += signal(R_K)
        per = OPT.get('yper', 40)
        if YD:
            o += sum([x if isinstance(x, list) else [x] for x in f], [])
            f = []
    o += merge(p3a, f, start=0, per=per)
    o += stamp(4)
    f = [f"v_cvt_pk_bf16_f32 v{PK+i}, v{accB+2*i}, v{accB+2*i+1}" for i in range(8)]
    f += [wr(PK, 0, STQ), wr(PK + 4, 1, STQ)] + signal(R_Q)
    o += merge(p3b, f, start=4, per=2)
    o += stamp(5)
    a = accB + 16
    o += [f"v_cvt_pk_bf16_f32 v{QF+i}, v{a+2*i}, v{a+2*i+1}" for i in range(8)]
    o += [f"v_and_b32 v{QF}, v{QF}, v{vMA}", f"v_and_b32 v{QF+1}, v{QF+1}, v{vMA}",
          f"v_and_b32 v{QF+6}, v{QF+6}, v{vMB}", f"v_and_b32 v{QF+7}, v{QF+7}, v{vMB}"]
    return o


CM, SA, SB, SC, SF, SX = 16, 32, 64, 80, 96, 112
KFR = 128
PA, PB, PF = 200, 208, 216
OACC = 96
VF = (224, 232)
vKA, vVA, vMx, vG = 2, 3, 4, 5
NEG = '0xf149f2ca'


def attention(guard):
    sI0 = sSt
    o = []

    def kread(i):
        b = KFR + 8 * i
        return [f"ds_read_b128 v[{b+4*s}:{b+4*s+3}], v{vKA} offset:{2048*i+1024*s} ;@tag=k{i}" for s in range(2)]

    def vread(i, buf):
        return [f"ds_read_b128 v[{buf+4*s}:{buf+4*s+3}], v{vVA} offset:{2048*i+1024*s} ;@tag=v{i}" for s in range(2)]

    def qk(d, i, c):
        b = KFR + 8 * i
        return [mfma(d, b, QF, c), mfma(d, b + 4, QF + 4, d)]

    def setc(i, src):
        L, Lb = lab('g'), lab('gb')
        slow.extend([f"{L}:", "s_nop 7"] + [f"v_mov_b32 v{CM+r}, {src}" for r in range(16)] + [f"s_branch {Lb}"])
        return [f"s_cmp_eq_u32 s{sI0}, {i}", f"!s_cbranch_scc1 {L}", f"!{Lb}:"]

    def maxes(s, first):
        m = []
        if first:
            m.append(f"v_max3_f32 v{vMx}, v{s}, v{s+1}, v{s+2}")
            rest = list(range(3, 16))
        else:
            rest = list(range(16))
        while rest:
            if len(rest) >= 2:
                m.append(f"v_max3_f32 v{vMx}, v{vMx}, v{s+rest[0]}, v{s+rest[1]}")
                rest = rest[2:]
            else:
                m.append(f"v_max_f32 v{vMx}, v{vMx}, v{s+rest[0]}")
                rest = []
        return m

    b1 = {0: SF, 8: SC}
    bufs = {}
    for i in range(1, 8):
        b1[i] = (SA, SB, SX)[i % 3]
        bufs[i] = (SA, SB)[i % 2]
    mrg = [f"v_cndmask_b32 v{SC+r}, v{SF+r}, v{SC+r}, s[{sMask+2*r}:{sMask+2*r+1}]" for r in range(16)]
    t = TMP
    cross = [f"v_mov_b32 v{t}, v{vMx}", f"v_permlane32_swap_b32 v{t}, v{vMx}",
             f"v_max_f32 v{vMx}, v{vMx}, v{t}", f"v_sub_f32 v{vMx}, 0, v{vMx}"]
    vrd, vchk = wait_land(ST_V)
    if guard:
        o += [f"v_mov_b32 v{CM+r}, {NEG}" for r in range(16)]
        o += wait_land(ST_K, inline=True)
        o += stamp(6)
        order = list(range(9))
        work = {i: maxes(b1[i], first=(i == 1)) for i in range(1, 8)}
        work[8] = mrg + maxes(SC, first=False)
        work[0] = []
        o += kread(order[0]) + kread(order[1]) + kread(order[2])
        q = []
        for n, i in enumerate(order):
            o += setc(i, "0")
            m = qk(b1[i], i, CM)
            nxt = kread(order[n + 3]) if n + 3 < 9 else []
            o += [f"@wait_ds k{i}", m[0]] + q[:4] + [m[1]] + nxt
            q = q[4:]
            if n >= 1:
                q = q + work[order[n - 1]]
            must = len(q) - len(work[order[n - 1]]) if n >= 1 else 0
            take = max(must, 4)
            o += q[:take]
            q = q[take:]
        o += vrd + q + work[order[-1]][:4] + vchk
        o += vread(0, VF[0]) + vread(8, VF[1])
        o += work[order[-1]][4:] + cross
        o += stamp(7)
        o += [f"v_mov_b32 v{CM+r}, {NEG}" for r in range(16)] + [f"s_max_u32 s{sI0}, s{sI0}, 1"]
        o += setc(1, f"v{vMx}")
    else:
        o += wait_land(ST_K, inline=True)
        o += stamp(6)
        o += kread(0) + kread(8) + kread(1) + kread(2)
        o += ["@wait_ds k0"] + qk(SF, 0, None) + ["@wait_ds k8"] + qk(SC, 8, None)
        for i in range(3, 8):
            o += kread(i)
        Lf, Lfb, Ln, Lnb = lab('nf'), lab('nfb'), lab('nc'), lab('ncb')
        slow.extend([f"{Lf}:", "s_nop 7"] + [f"v_mov_b32 v{SF+r}, {NEG}" for r in range(16)] + [f"s_branch {Lfb}"])
        slow.extend([f"{Ln}:"] + [f"v_mov_b32 v{CM+r}, {NEG}" for r in range(16)] + [f"s_branch {Lnb}"])
        o += [f"s_cmp_lg_u32 s{sI0}, 0", f"!s_cbranch_scc1 {Lf}", f"!{Lfb}:"]
        o += mrg + maxes(SC, first=True) + cross
        o += stamp(7)
        o += [f"v_mov_b32 v{CM+r}, v{vMx}" for r in range(16)]
        o += [f"s_cmp_gt_u32 s{sI0}, 1", f"!s_cbranch_scc1 {Ln}", f"!{Lnb}:"]

    def expcvt(s, p, sub):
        e = []
        for r in range(16):
            if sub:
                e.append(f"v_add_f32 v{s+r}, v{s+r}, v{vMx}")
        for r in range(16):
            e.append(f"v_exp_f32 v{s+r}, v{s+r}" if not (OPT.get('w4') and r % 2) else f"s_nop 0")
            if r % 2 == 1 and r >= 3:
                e.append(f"v_cvt_pk_bf16_f32 v{p+(r-3)//2}, v{s+r-3}, v{s+r-2}")
        e.append(f"v_cvt_pk_bf16_f32 v{p+7}, v{s+14}, v{s+15}")
        return e

    def spread(mf, va):
        r = []
        n = len(mf)
        k = 0
        for idx, g in enumerate(mf):
            r += g
            want = (len(va) * (idx + 1)) // n - k
            r += va[k:k + want]
            k += want
        return r

    ev = expcvt(SC, PA, True)
    ev += [x for p in range(8) for x in (f"v_and_b32 v{PB+p}, v{PA+p}, v{MK+p}", f"v_xor_b32 v{PF+p}, v{PA+p}, v{PB+p}")]
    q1 = qk(bufs[1], 1, CM)
    if guard:
        o += spread([[q1[0]], [q1[1]]], ev)
    else:
        o += spread([[q1[0]], [q1[1]] + vrd], ev[:-16]) + vchk + vread(0, VF[0]) + vread(8, VF[1]) + ev[-16:]
    prev_pv = [["@wait_ds v8", mfma(OACC, VF[0], PF, None)], [mfma(OACC, VF[0] + 4, PF + 4, OACC)] + vread(1, VF[0]),
               [mfma(OACC, VF[1], PB, OACC)], [mfma(OACC, VF[1] + 4, PB + 4, OACC)] + vread(2, VF[1])]
    gearly, glate = check_ev(GRDY, 'own', vG)
    for i in range(1, 8):
        P = (PB, PA)[i % 2]
        seq = []
        if i + 1 <= 7:
            o += setc(i + 1, f"v{vMx}")
            nq = qk(bufs[i + 1], i + 1, CM)
            seq += [[nq[0]], [nq[1]]]
        seq += prev_pv
        if i == 6:
            seq[-1] = seq[-1] + gearly
        if i == 7:
            seq[0] = glate + [f"ds_read_b32 v{vG}, v{vGA}", f"ds_read_b32 v{vEc}, v{vM} offset:{16*EPOCH}"] + seq[0]
        o += spread(seq, expcvt(bufs[i], P, False))
        vb = VF[(i + 1) % 2]
        prev_pv = [[f"@wait_ds v{i}", mfma(OACC, vb, P, OACC)],
                   [mfma(OACC, vb + 4, P + 4, OACC)] + (vread(i + 2, vb) if i + 2 <= 7 else [])]
    o += prev_pv[0] + prev_pv[1]
    return o


vGA, vEc = 8, 6
CPARK = (7, 12, 14, 248, 249)


def finish_o(A, D, vscale, t, u, soff, vtag, snot, eps=None, hook=None):
    o = [f"v_mov_b32 v{t}, v{A+15}", f"v_mov_b32 v{u}, v{A+15}", f"v_permlane32_swap_b32 v{t}, v{u}"] + (hook or [])
    if eps is not None:
        o += [f"v_add_f32 v{u}, s{eps}, v{u}"]
    o += [f"v_rcp_f32 v{u}, v{u}", f"v_mov_b32 v{t}, 0xffff", f"v_mul_f32 v{u}, v{u}, v{vscale}"]
    for p in range(8):
        o += [f"v_mul_f32 v{A+2*p}, v{A+2*p}, v{u}"]
        if p % 4 != 3:
            o += [f"v_mul_f32 v{A+2*p+1}, v{A+2*p+1}, v{u}"]
        o += [f"v_cvt_pk_bf16_f32 v{D+p}, v{A+2*p}, v{A+2*p+1}"]
        if p % 4 == 3:
            e = p // 4
            o += [f"v_bfi_b32 v{D+p}, v{t}, v{D+p}, v{vtag}",
                  f"buffer_store_dwordx4 v[{D+4*e}:{D+4*e+3}], v{vL16}, s[{sWSD}:{sWSD+3}], s{soff} offen offset:{1024*e} sc1"]
    return o + notify(snot, t, vtag)


def c_tail():
    lim = 2.0 ** OPT.get('lim', 60)
    hook = [f"v_cmp_nge_f32 vcc, {fhex(lim)}, v{TMP+1}", "!s_cbranch_vccnz L_attn_fb", "L_ctail2:"]
    o = finish_o(OACC, PA, vG, TMP, TMP + 1, sSt + 1, vEc, sSt + 2, hook=hook)
    o += signal(E_OA)
    o += stamp(3)
    if OPT.get('alt') == 8:
        o += ["s_waitcnt vmcnt(1)", f"!s_memtime s[{sStamp+8}:{sStamp+9}]", "s_waitcnt vmcnt(0)", f"!s_memtime s[{sStamp+10}:{sStamp+11}]"]
    o += c_phase3()
    o += stamp_flush(TMP, 0)
    o += ["s_endpgm"]
    return o


def cpf():
    o = []
    if OPT.get('cpf', 1):
        sk = OPT.get('cskip', 2)
        nx = 7 - sk
        px = (2048 * nx + 255) // 256
        pw = ((448 - 64 * sk) * 14 + 255) // 256
        mx = (-(-(1 << 18) // nx), 18)
        for n in range(256 * px):
            assert (n * mx[0]) >> mx[1] == n // nx
        o += [f"s_cmp_eq_u32 s{sWave}, 1", f"s_cselect_b32 s16, s{sAW}, s{sBW}", f"s_cselect_b32 s17, s{sAW+1}, s{sBW+1}",
              "s_mov_b32 s10, 1204224", "s_mov_b32 s11, 0x20000",
              f"s_cmp_eq_u32 s{sWave}, 0", f"s_cselect_b32 s8, s{sX}, s16", f"s_cselect_b32 s9, s{sX+1}, s17",
              f"s_cselect_b32 s10, 1835008, s10",
              f"s_cselect_b32 s{sT0}, {px}, {pw}", f"s_mul_i32 s{sT1}, s{sT0}, s2", f"v_add_u32 v16, s{sT1}, v0",
              f"s_mov_b32 s16, 9363", f"s_cselect_b32 s16, {mx[0]}, s16", f"s_cselect_b32 s17, {mx[1]}, 17",
              "v_mul_u32_u24 v17, s16, v16", "v_lshrrev_b32 v17, s17, v17",
              f"s_mov_b32 s16, 896", f"s_cselect_b32 s16, {128*sk}, s16", f"v_mul_u32_u24 v17, s16, v17",
              f"s_mov_b32 s16, {896 + 64*sk*2688}", f"s_cselect_b32 s16, {128*sk}, s16",
              f"v_lshl_add_u32 v16, v16, 7, v17", f"v_add_u32 v16, s16, v16",
              f"v_cmp_gt_u32 vcc, s{sT0}, v0", f"s_cmp_lt_u32 s{sWave}, 3", "s_cselect_b64 exec, vcc, 1",
              "!buffer_load_dword v238, v16, s[8:11], 0 offen", "s_mov_b64 exec, -1"]
    return o


def c_wave():
    ROLE[0] = 'C'
    o = ["@reset", "L_cwave:"] + stamp(4, 's')
    o += ["v_lshlrev_b32 v20, 3, v0", "v_mov_b32 v22, 0", "v_mov_b32 v23, 0", f"v_add_u32 v20, {MISC}, v20", "ds_write_b64 v20, v[22:23]",
          ]
    o += c_setup()
    o += stamp(5, 's') + ["s_waitcnt lgkmcnt(0)", "s_mov_b32 s1, s2"] + stamp(6, 's') + ([] if OPT.get('cpfpos', 1) else cpf()) + ["s_barrier"] + stamp(7, 's')
    o += srd(sWSD, sWS, WS_SIZE)
    if OPT.get('cpfpos', 1) == 2:
        o += wait_land(0, inline=True)
    if OPT.get('cpfpos', 1):
        o += cpf()
    o += [f"s_cmp_eq_u32 s{sZ}, 0", "!s_cbranch_scc1 L_cY"]
    o += c_gemm(False)
    o += ["s_branch L_attn", "@reset", "L_cY:"]
    o += c_gemm(True)
    o += ["L_attn:", f"s_setprio {OPT.get('cprio', 1)}"]
    o += [f"s_lshl_b32 s{sT0}, s{sWave}, 11",
          f"s_add_u32 s{sT1}, s{sT0}, {KL}", f"v_add_u32 v{vKA}, s{sT1}, v{vL16}",
          f"s_add_u32 s{sT1}, s{sT0}, {VL}", f"v_add_u32 v{vVA}, s{sT1}, v{vL16}",
          f"s_lshl_b32 s{sT0}, s{sWave}, 8", f"s_add_u32 s{sT0}, s{sT0}, {GL}", f"v_lshl_add_u32 v{vGA}, v0, 2, s{sT0}",
          f"s_lshl_b32 s{sT0}, s{sWave}, 2", f"s_add_u32 s{sT0}, s{sT0}, {MISC}", f"v_mov_b32 v{vOwn}, s{sT0}",
          f"s_lshl_b32 s{sT0}, s{sTile}, 4", f"s_add_u32 s{sT0}, s{sT0}, s{sH}",
          f"s_lshr_b32 s{sT1}, s{sT0}, 3", f"s_lshl_b32 s{sT1}, s{sT1}, 5", f"s_and_b32 s{sT2}, s{sH}, 7",
          f"s_add_u32 s{sT1}, s{sT1}, s{sT2}", f"s_lshl_b32 s{sT1}, s{sT1}, 2", f"s_add_u32 s{sSt+2}, s{sT1}, {NA}",
          f"s_lshl_b32 s{sT0}, s{sT0}, 11", f"s_add_u32 s{sSt+1}, s{sT0}, {OA}",
          f"s_min_u32 s{sSt}, s{sTile}, 8", f"s_sub_u32 s{sSt}, 8, s{sSt}"]
    o += p3_slot() + p3_early(CPARK, WBA, WBAS, tmp=128, sRt=12, sTT=13, sNo=14)
    o += attention(False)
    o += ["L_ctail:"]
    o += c_tail()
    o += ["@reset", "L_attn_fb:"]
    o += attention(True)
    o += ["s_waitcnt lgkmcnt(0)", f"v_mov_b32 v{TMP}, v{OACC+15}", f"v_mov_b32 v{TMP+1}, v{OACC+15}",
          f"v_permlane32_swap_b32 v{TMP}, v{TMP+1}", "s_branch L_ctail2", "@reset"]
    return o


def code_prefetch():
    n = OPT['prefetch']
    if not n:
        return []
    o = ["s_getpc_b64 s[38:39]", "L_pc:",
         f"s_sub_u32 s38, s38, L_pc-{NAME}_kernel", "s_subb_u32 s39, s39, 0",
         f"s_lshr_b32 s{sT0}, s2, 3", f"s_lshl_b32 s{sT1}, s{sWave}, 5", f"s_add_u32 s{sT0}, s{sT0}, s{sT1}",
         f"s_mul_i32 s{sT0}, s{sT0}, {128*n}",
         f"v_lshl_add_u32 v20, v0, 7, s{sT0}",
         f"v_min_u32 v20, L_end-{NAME}_kernel-4, v20",
         f"s_mov_b64 exec, {(1 << n) - 1}",
         "!global_load_dword v239, v20, s[38:39]", "s_mov_b64 exec, -1"]
    return o


sXD, sWD, sQBD, sQAD, sGD = 36, 40, 44, 48, 52
sKGD, sVGD = 56, 60
sRt, sTT, sE2, sL2 = 64, 65, 66, 67
sOBo, sA, sB, sC = 68, 69, 70, 71
sOff, sLi, sKh = 72, 73, 75
sEarly = 61
sOBn = 62
sNo = 63
sC7 = 53
sCc, sCx, sCw, sRot = 60, 20, 21, 61
sOBd = 60
vX, vW, vQ, vPat, vK, vV, vWO = 2, 3, 4, 5, 6, 7, 8
vEp = 15
GV = 16
HQ = 28
PQR = 16
vG1 = 27
KVr = 88
IDF = 48
sRet = 54


def p3_slot():
    return [f"s_and_b32 s{sT0}, s{sRB}, 3", f"s_lshl_b32 s{sT0}, s{sT0}, 3", f"s_and_b32 s{sT1}, s{sH}, 7",
            f"s_add_u32 s{sJ3}, s{sT0}, s{sT1}",
            f"s_cmp_ge_u32 s{sJ3}, 14", f"s_cselect_b32 s{sT0}, 14, 0", f"s_cselect_b32 s{sT1}, 1, 0",
            f"s_sub_u32 s{sT0}, s{sJ3}, s{sT0}", f"s_lshr_b32 s{sCT}, s{sT0}, 1", f"s_and_b32 s{sT0}, s{sT0}, 1",
            f"s_lshr_b32 s{sT2}, s{sH}, 3", f"s_lshl_b32 s{sT2}, s{sT2}, 1", f"s_add_u32 s{sT1}, s{sT1}, s{sT2}",
            f"s_and_b32 s{sT2}, s{sRB}, 12", f"s_add_u32 s{sT1}, s{sT1}, s{sT2}",
            f"s_lshl_b32 s{sT1}, s{sT1}, 1", f"s_add_u32 s{sT1}, s{sT1}, s{sT0}", f"s_lshl_b32 s{sTB}, s{sT1}, 1"]


def h_setup():
    return p3_slot() + [
            f"s_lshl_b32 s{sT0}, s{sW4}, 2", f"s_add_u32 s{sT0}, s{sT0}, {MISC}", f"v_mov_b32 v{vOwn}, s{sT0}",
            f"v_lshrrev_b32 v{vLow}, 5, v0", f"v_add_u32 v{vLow}, -1, v{vLow}",
            f"s_mov_b32 s{sE2}, {fhex(1e-6)}", f"s_mov_b32 s{sL2}, {fhex(LOG2E)}",
            f"s_lshl_b32 s{sT0}, s{sRB}, 2", f"s_add_u32 s{sT0}, s{sT0}, s{sW4}", f"s_lshl_b32 s{sT0}, s{sT0}, 4",
            f"s_add_u32 s{sT0}, s{sT0}, s{sH}",
            f"s_lshr_b32 s{sT1}, s{sT0}, 3", f"s_lshl_b32 s{sT1}, s{sT1}, 5", f"s_and_b32 s{sT2}, s{sH}, 7",
            f"s_add_u32 s{sT1}, s{sT1}, s{sT2}", f"s_lshl_b32 s{sT1}, s{sT1}, 2", f"s_add_u32 s{sOBn}, s{sT1}, {NB}",
            f"s_lshl_b32 s{sT0}, s{sT0}, 11", f"s_add_u32 s{sOBo}, s{sT0}, {OB}"]


def qb_phi():
    R, A = 96, 64
    t, u = 24, 25
    o = spin_ev(R_Q, 'own', HQ)
    o += [f"s_lshl_b32 s{sT0}, s{sW4}, 12", f"v_add_u32 v{t}, s{sT0}, v{vL16}",
          f"ds_read_b128 v[{R}:{R+3}], v{t}", f"ds_read_b128 v[{R+4}:{R+7}], v{t} offset:1024",
          f"s_lshl_b32 s{sT0}, s{sW4}, 8", f"s_add_u32 s{sT0}, s{sT0}, {GL}", f"v_lshl_add_u32 v{26}, v0, 2, s{sT0}",
          f"v_lshlrev_b32 v{t}, 16, v{R+6}", f"v_lshlrev_b32 v{u}, 16, v{R+6}",
          f"v_permlane32_swap_b32 v{t}, v{u}",
          f"v_mul_f32 v{u}, s{sL2}, v{u}", f"v_exp_f32_e64 v{u}, -v{u}", f"v_add_f32 v{u}, 1.0, v{u}",
          f"v_rcp_f32 v{u}, v{u}", f"ds_write_b32 v26, v{u}"] + signal(GRDY) + [f"v_sub_f32 v{vG1}, 1.0, v{u}"]
    for p in range(8):
        o += [f"v_lshlrev_b32 v{A+2*p}, 16, v{R+p}", f"v_and_b32 v{A+2*p+1}, 0xffff0000, v{R+p}"]
        o += phi_pair(A + 2 * p, A + 2 * p + 1, t, u, PQR + p, sL2, sE2)
    o += [f"v_and_b32 v{PQR+6}, v{PQR+6}, v{vLow}", f"v_and_b32 v{PQR+7}, v{PQR+7}, v{vLow}"]
    return o


def ob_tile(read_kv=True):
    o = []
    if read_kv:
        o += spin_ev(KVRDY, 3, HQ)
        o += [f"v_add_u32 v24, {KVF}, v{vL16}",
              f"ds_read_b128 v[{KVr}:{KVr+3}], v24", f"ds_read_b128 v[{KVr+4}:{KVr+7}], v24 offset:1024"]
    o += [mfma(64, KVr, PQR, None), mfma(64, KVr + 4, PQR + 4, 64)]
    o += finish_o(64, 80, vG1, 24, 25, sOBo, vEp, sOBn, eps=sE2)
    return o


def call(name):
    return ["@drain", f"!s_call_b64 s[{sRet}:{sRet+1}], L_sub_{name}", "@reset"]


def subroutines():
    o = []
    for name, body in (("phi", qb_phi()), ("ob", ob_tile()), ("r0", woa_read(0) + signal(R1)), ("r1", woa_read(1) + signal(R1))):
        o += ["@reset", f"L_sub_{name}:"] + body + ["s_waitcnt lgkmcnt(0)", f"!s_setpc_b64 s[{sRet}:{sRet+1}]"]
    for name, w in (("d7", f"!s_waitcnt vmcnt({OPT.get('wlead', 20) - 1})"), ("d7e", f"!s_waitcnt vmcnt({OPT.get('elead', 14) - 1})")):
        o += ["@reset", f"L_sub_{name}:"]
        for m in range(7):
            o += [w, f"!buffer_load_dwordx4 v{vWO}, s[{sXD}:{sXD+3}], s{sOff} offen lds",
                  f"!s_add_u32 s{sOff}, s{sOff}, s{sC7}", "!s_addk_i32 m0, 1024"]
        o += [f"!s_setpc_b64 s[{sRet}:{sRet+1}]"]
    return o


def wait_serving(rd, red, cmp_ok, early=None):
    L, L1, L2 = lab('ws'), lab('ws1'), lab('ws2')
    o = ["@drain", f"s_mov_b32 s{sTO}, 0", f"!{L}:", "!" + rd, f"!ds_read_b32 v24, v{vM} offset:{16*KVRDY+12}"]
    o += ["!" + x for x in _tmo()]
    o += ["!s_waitcnt lgkmcnt(0)", f"!v_cmp_lt_u32 vcc, s{sOBd}, v24", f"!s_cbranch_vccz {L1}",
          f"!s_call_b64 s[{sRet}:{sRet+1}], L_sub_ob", f"!s_mov_b32 s{sOBd}, 1", f"!s_mov_b32 s{sTO}, 0", f"!s_branch {L}", f"!{L1}:"]
    o += ["!" + x for x in red + [cmp_ok, f"s_cbranch_vccnz {L2}"]]
    if early is not None:
        o += [f"!s_mov_b32 s{early}, 1"]
    o += [f"!s_sleep {OPT.get('ssleep', 2)}", f"!s_branch {L}", "@reset", f"!{L2}:"]
    return o


def serve_ev(ev, early=None):
    return wait_serving(f"ds_read_b128 v[{HQ}:{HQ+3}], v{vM} offset:{16*ev}",
                        [f"v_min3_u32 v{HQ}, v{HQ}, v{HQ+1}, v{HQ+2}", f"v_min_u32 v{HQ}, v{HQ}, v{HQ+3}"],
                        f"v_cmp_ne_u32 vcc, 0, v{HQ}", early)


def serve_land(st):
    return wait_serving(f"ds_read_b32 v{HQ}, v{vM} offset:{256+4*st}", [], f"v_cmp_eq_u32 vcc, 2, v{HQ}")


def dma(vaddr, sd, soff, lds, extra="", tag=None, sbase=None):
    o = [f"s_add_u32 m0, s{sLi}, {lds}"]
    if sbase is not None:
        if soff:
            o.append(f"s_add_u32 s{sOff}, s{sbase}, {soff}")
            so = f"s{sOff}"
        else:
            so = f"s{sbase}"
    elif soff:
        o.append(f"s_mov_b32 s{sOff}, {soff}")
        so = f"s{sOff}"
    else:
        so = "0"
    o.append(f"buffer_load_dwordx4 v{vaddr}, s[{sd}:{sd+3}], {so} offen {extra} lds" + (f" ;@tag={tag}" if tag else ""))
    return o


def spin_vm(body, cond, sleep=0):
    L = lab('pv')
    o = [f"!s_mov_b32 s{sTO}, 0", f"!{L}:"]
    o += ["!" + b for b in body + _tmo()]
    o += ["s_waitcnt vmcnt(0)"]
    o += ["!" + c for c in cond]
    o += [f"!s_cbranch_vccnz {L}"]
    return o


def flag_ld(vdst, vaddr, soff):
    if 1:
        return [f"v_mov_b32 v{vdst}, 0", f"buffer_atomic_or v{vdst}, v{vaddr}, s[{sWSD}:{sWSD+3}], {soff} offen sc0 sc1"]
    return [f"buffer_load_dword v{vdst}, v{vaddr}, s[{sWSD}:{sWSD+3}], {soff} offen sc1"]


def light_poll(vdst, vaddr, soff, mask, cmp_bad, first_issued=False, sleep=None, flag=False, hook=None):
    sleep = OPT.get('psleep', 1) if sleep is None else sleep
    L, L2, L0 = lab('lp'), lab('lpx'), lab('lp0')
    ld = f"buffer_load_dword v{vdst}, v{vaddr}, s[{sWSD}:{sWSD+3}], {soff} offen sc1"
    o = [f"s_mov_b64 exec, {mask}", f"s_mov_b32 s{sTO}, 0"]
    if first_issued:
        o += [f"!s_branch {L0}"]
    o += [f"!{L}:"] + ["!!" + x for x in (flag_ld(vdst, vaddr, soff) if flag else [ld])] + [f"!{L0}:"] + ["!" + x for x in _tmo()] + ["s_waitcnt vmcnt(0)"]
    o += ["!" + c for c in cmp_bad]
    o += [f"!s_cbranch_vccz {L2}"]
    if hook:
        o += ["!!s_mov_b64 s[50:51], vcc", "!!s_mov_b64 exec, -1"] + ["!!" + x.lstrip('!') for x in hook if not x.startswith('@')] + ["!!s_mov_b64 vcc, s[50:51]"]
    o += ["!!s_mov_b64 exec, vcc"] + ([f"!!s_sleep {sleep}"] if sleep else []) + \
         [f"!!s_branch {L}", f"!{L2}:", "s_mov_b64 exec, -1"]
    return o


sEp = 2


def spoll(pair, off_sreg, dst, nload, ncheck, sleep=1):
    L, L2 = lab('sq'), lab('sqx')
    o = [f"s_add_u32 s{pair}, s{sWSD}, s{off_sreg}", f"s_addc_u32 s{pair+1}, s{sWSD+1}, 0",
         "s_waitcnt lgkmcnt(0)", f"!s_mov_b32 s{sTO}, 0", f"!{L}:",
         f"!s_load_dwordx{nload} s[{dst}:{dst+nload-1}], s[{pair}:{pair+1}], 0 glc"]
    o += ["!" + x for x in _tmo()] + ["!s_waitcnt lgkmcnt(0)"]
    o += [f"!s_xor_b32 s{dst}, s{dst}, s{sEp}"]
    for i in range(1, ncheck):
        o += [f"!s_xor_b32 s{dst+i}, s{dst+i}, s{sEp}", f"!s_or_b32 s{dst}, s{dst}, s{dst+i}"]
    o += [f"!s_cbranch_scc0 {L2}"] + ([f"!!s_sleep {sleep}"] if sleep else []) + [f"!!s_branch {L}", f"!{L2}:"]
    return o


def notify(soff, vt, vep, fan=1):
    return [f"v_lshlrev_b32 v{vt}, 7, v0", f"s_mov_b64 exec, {(1 << fan) - 1}",
            f"buffer_store_dword v{vep}, v{vt}, s[{sWSD}:{sWSD+3}], s{soff} offen sc1", "s_mov_b64 exec, -1"]


def fmap(d, t):
    return [f"v_bfe_u32 v{d}, v0, 4, 1", f"v_bfe_u32 v{t}, v0, 2, 1", f"v_lshl_add_u32 v{d}, v{d}, 1, v{t}",
            f"v_mul_u32_u24 v{d}, 7, v{d}", f"v_bfe_u32 v{t}, v0, 3, 1", f"v_lshl_add_u32 v{d}, v{t}, 2, v{d}",
            f"v_and_b32 v{t}, 3, v0", f"v_add_u32 v{d}, v{d}, v{t}"]


def l_wave():
    ROLE[0] = 'L'
    o = [f"s_setprio {OPT.get('lprio', 2)}"]
    t0, t1, t2 = 24, 25, 26
    sHW = sW4
    o += [f"s_lshl_b32 s{sLi}, s{sHW}, 10",
          f"v_mov_b32 v{vMl}, v{vMs}", f"s_mov_b32 s{sT0}, {LANDC}", f"v_writelane_b32 v{vMl}, s{sT0}, 0"]
    o += [f"v_lshrrev_b32 v{t0}, 3, v0", f"s_lshl_b32 s{sT0}, s{sRB}, 4", f"s_add_u32 s{sT0}, s{sT0}, s{sHW}",
          f"s_lshl_b32 s{sT0}, s{sT0}, 3", f"v_add_u32 v{t1}, s{sT0}, v{t0}", f"v_mul_u32_u24 v{vX}, 896, v{t1}",
          f"v_lshrrev_b32 v{t1}, 4, v0", f"s_lshl_b32 s{sT0}, s{sHW}, 2", f"v_add_u32 v{t1}, s{sT0}, v{t1}",
          f"v_and_b32 v{t2}, 7, v0", f"v_xor_b32 v{t1}, v{t1}, v{t2}", f"v_lshl_add_u32 v{vX}, v{t1}, 4, v{vX}"]
    o += [f"s_lshl_b32 s{sT2}, s{sZ}, 4", f"s_add_u32 s{sT1}, s{sT2}, 112", f"s_add_u32 s{sT2}, s{sT2}, 48",
          f"s_mul_i32 s{sT1}, s{sT1}, s{sHH}", f"s_add_u32 s{sT1}, s{sT1}, 896",
          f"s_lshl_b32 s{sT0}, s{sHW}, 3", f"v_add_u32 v{t1}, s{sT0}, v{t0}", f"v_mul_u32_u24 v{vW}, 2688, v{t1}",
          f"v_bfe_u32 v{t1}, v0, 2, 1", f"v_bfe_u32 v{t2}, v0, 4, 1", f"v_xor_b32 v{t1}, v{t1}, v{t2}",
          f"v_mul_u32_u24 v{t2}, s{sT2}, v{t1}", f"v_add3_u32 v{vW}, v{vW}, v{t2}, s{sT1}",
          f"v_and_b32 v{t2}, 3, v0", f"v_lshl_add_u32 v{vW}, v{t2}, 4, v{vW}"]
    o += [f"s_mov_b32 s{sXD+2}, 1835008", f"s_mov_b32 s{sXD+3}, 0x20000",
          f"s_mov_b32 s{sWD+2}, 1204224", f"s_mov_b32 s{sWD+3}, 0x20000",
          f"s_cmp_eq_u32 s{sH}, 15", f"s_cselect_b32 s{sWD+2}, 0, s{sWD+2}",
          ] + {0: [f"s_mov_b32 s{sCc}, 0"],
               1: [f"s_xor_b32 s{sT0}, s{sRB}, s{sH}", f"s_and_b32 s{sT0}, s{sT0}, 1", f"s_mul_i32 s{sCc}, s{sT0}, {OPT.get('rotk', 3)}"],
               2: [f"s_add_u32 s{sT0}, s{sRB}, s{sH}", f"s_and_b32 s{sT0}, s{sT0}, 3", f"s_mul_i32 s{sCc}, s{sT0}, {OPT.get('rotk', 2)}"],
               3: [f"s_and_b32 s{sT0}, s{sRB}, 3", f"s_lshl_b32 s{sT0}, s{sT0}, 1", f"s_and_b32 s{sT1}, s{sH}, 7", f"s_add_u32 s{sCc}, s{sT0}, s{sT1}"],
               }[OPT.get('rotm', 0)] + [
          f"s_cmp_ge_u32 s{sCc}, 7", f"s_cselect_b32 s{sT0}, 7, 0", f"s_sub_u32 s{sCc}, s{sCc}, s{sT0}",
          f"s_cmp_ge_u32 s{sCc}, 7", f"s_cselect_b32 s{sT0}, 7, 0", f"s_sub_u32 s{sCc}, s{sCc}, s{sT0}",
          f"s_mov_b32 s{sRot}, s{sCc}",
          f"s_cmp_eq_u32 s{sZ}, 0"]
    o += stamp(1, 'f')
    o += ["s_waitcnt lgkmcnt(0)", "s_mov_b32 s1, s2",
          f"s_mov_b32 s{sXD}, s{sX}", f"s_mov_b32 s{sXD+1}, s{sX+1}",
          f"s_cselect_b32 s{sWD}, s{sBW}, s{sAW}", f"s_cselect_b32 s{sWD+1}, s{sBW+1}, s{sAW+1}",
          f"s_lshl_b32 s{sCx}, s{sCc}, 7", f"s_mul_i32 s{sCw}, s{sCc}, {64*2688}"]
    nextc = [f"s_add_u32 s{sCc}, s{sCc}, 1", f"s_cmp_eq_u32 s{sCc}, 7", f"s_cselect_b32 s{sCc}, 0, s{sCc}"]
    setc_ = [f"s_lshl_b32 s{sCx}, s{sCc}, 7", f"s_mul_i32 s{sCw}, s{sCc}, {64*2688}"]
    ops = []
    for c in range(7):
        for ii in range(8):
            pre = (nextc + setc_) if (ii == 0 and c) else []
            ops.append((pre + dma(vX, sXD, 16 * ii * 896, XR(c) + 2048 * ii, sbase=sCx), c))
        for p in range(2):
            for ii in range(4):
                ops.append((dma(vW, sWD, 16 * ii * 2688 + 896 * p, WR(c) + 8192 * p + 2048 * ii, sbase=sCw), c))
    for q, sd in enumerate((sQBD, sQAD)):
        for c in range(7):
            for ii in range(2):
                pre = (nextc + setc_[1:]) if ii == 0 else []
                ops.append((pre + dma(vQ, sd, 32 * ii * 2688, QLOC[7 * q + c] + 2048 * ii, sbase=sCw), 7 + 7 * q + c))
    late = srd(sWSD, sWS, WS_SIZE) + srd(sQBD, sBW, 1204224) + srd(sQAD, sAW, 1204224) + srd(sGD, sGW, 896)
    late += [f"v_lshrrev_b32 v{t0}, 2, v0", f"s_lshl_b32 s{sT0}, s{sHW}, 4", f"v_add_u32 v{t0}, s{sT0}, v{t0}",
             f"v_mul_u32_u24 v{vQ}, 2688, v{t0}", f"v_and_b32 v{t1}, 3, v0", f"v_lshl_add_u32 v{vQ}, v{t1}, 4, v{vQ}",
             f"s_mul_i32 s{sT0}, s{sH}, 56", f"s_lshl_b32 s{sT1}, s{sPar}, 3", f"s_sub_u32 s{sT0}, s{sT0}, s{sT1}",
             f"v_add_u32 v{vQ}, s{sT0}, v{vQ}",
             f"v_bfe_u32 v{t0}, v0, 4, 1", f"v_lshlrev_b32 v{t0}, 5, v{t0}", f"v_and_b32 v{t1}, 15, v0",
             f"s_lshl_b32 s{sT0}, s{sHW}, 4", f"v_add3_u32 v{t0}, v{t0}, v{t1}, s{sT0}",
             f"v_lshlrev_b32 v27, 1, v{t0}",
             f"s_xor_b32 s{sT0}, s{sPar}, 1", f"s_mul_i32 s{sT0}, s{sT0}, 56", f"s_add_u32 s{sT0}, s{sT0}, {QBB}",
             f"v_lshl_add_u32 v{vPat}, v{t0}, 6, s{sT0}"]
    for c in range(7):
        late += [[f"s_lshl_b32 s{sT0}, s{sRot}, 7", f"buffer_load_ushort v{GV+c}, v27, s[{sGD}:{sGD+3}], s{sT0} offen",
                  f"s_add_u32 s{sRot}, s{sRot}, 1", f"s_cmp_eq_u32 s{sRot}, 7", f"s_cselect_b32 s{sRot}, 0, s{sRot}"]]
    late += [f"s_mul_i32 s{sT0}, s{sHW}, {VG}", f"s_add_u32 s{sT0}, s{sT0}, {OPT.get('wsoff', 0) << 20}", [f"s_add_u32 s{sKGD}, s{sWS}, s{sT0}", f"s_addc_u32 s{sKGD+1}, s{sWS+1}, 0"],
             f"s_mov_b32 s{sKGD+2}, 1835008", f"s_mov_b32 s{sKGD+3}, 0x20000"]
    late += [f"s_lshl_b32 s{sT0}, s{sRB}, 2", f"s_sub_u32 s{sT0}, s{sT0}, 8", f"s_mul_i32 s{sA}, s{sT0}, 28672",
             f"s_mul_i32 s{sT1}, s{sH}, 7", f"s_lshr_b32 s{sT1}, s{sT1}, 1", f"s_lshl_b32 s{sT1}, s{sT1}, 9",
             f"s_add_u32 s{sT1}, s{sT1}, s{sA}",
             f"v_add_u32 v{vK}, s{sT1}, v{vL16}",
             f"s_mul_i32 s{sT1}, s{sH}, 448", f"s_add_u32 s{sT1}, s{sT1}, s{sA}",
             f"v_lshrrev_b32 v{t0}, 5, v0", f"v_mul_u32_u24 v{t0}, 7168, v{t0}"] + fmap(t1, t2) + [
             f"v_lshl_add_u32 v{t0}, v{t1}, 4, v{t0}", f"v_add_u32 v{vV}, s{sT1}, v{t0}"]
    vFl = 32
    late += [f"s_mul_i32 s{sT0}, s{sH}, 28", f"s_add_u32 s{sT1}, s{sT0}, 27",
             f"s_lshr_b32 s{sT0}, s{sT0}, 6", [f"s_lshr_b32 s{sT1}, s{sT1}, 6", f"s_cmp_eq_u32 s{sT0}, s{sT1}",
             f"s_cselect_b32 s{sB}, 0x15, 63"],
             f"s_min_u32 s{sT0}, s{sRB}, 2", f"s_lshl_b32 s{sT0}, s{sT0}, 1", f"s_sub_u32 s{sT0}, 4, s{sT0}",
             f"s_lshl_b32 s{sT1}, -1, s{sT0}", f"s_and_b32 s{sB}, s{sB}, s{sT1}", f"s_mov_b32 s{sB+1}, 0",
             ]
    late += [h_setup()] + p3_early()
    late += [f"v_lshrrev_b32 v{t0}, 3, v0", f"s_mul_i32 s{sT0}, s{sHW}, 224", f"v_add_u32 v{t1}, s{sT0}, v{t0}",
             f"v_mul_u32_u24 v{vWO}, 896, v{t1}",
             f"v_bfe_u32 v{t1}, v0, 2, 1", f"v_bfe_u32 v{t2}, v0, 4, 1", f"v_xor_b32 v{t1}, v{t1}, v{t2}",
             f"v_lshl_add_u32 v{vWO}, v{t1}, 6, v{vWO}", f"v_and_b32 v{t2}, 3, v0", f"v_lshl_add_u32 v{vWO}, v{t2}, 4, v{vWO}",
             f"s_lshl_b32 s{sT0}, s{sCT}, 7", f"v_add_u32 v{vWO}, s{sT0}, v{vWO}"]
    pieces = [late[i:i + 6] for i in range(0, len(late), 6)]
    last_of = {}
    for n, (_, st) in enumerate(ops):
        last_of[st] = n
    def lead_at(n):
        return OPT['l1'] if ops[n][1] < 7 else OPT['l3']
    sig_next = 0

    def do_signal(st):
        r = [f"@wait_vm o{last_of[st]}"]
        if 7 <= st <= 13:
            r.append(f"ds_write_b16 v{vPat}, v{GV+st-7} offset:{QLOC[st-7]-QBB}")
        return r + land(st)

    ep = spin_ev(EPOCH, 0, vEp)
    ep += [f"v_readfirstlane_b32 s{sEp}, v{vEp}",
          f"s_lshl_b32 s{sA}, s{sRB}, 4", f"s_add_u32 s{sA}, s{sA}, s{sH}", f"s_lshl_b32 s{sA}, s{sA}, 7",
          f"s_mul_i32 s{sT1}, s{sHW}, {FV-FK}", f"s_add_u32 s{sA}, s{sA}, s{sT1}", f"s_add_u32 s{sA}, s{sA}, {FK}",
          f"v_lshlrev_b32 v32, 2, v0", f"s_andn2_b32 s{sT0}, 63, s{sB}", "!s_cbranch_scc0 L_lnf",
          f"s_mov_b32 exec_lo, s{sT0}", "s_mov_b32 exec_hi, 0",
          f"!buffer_store_dword v{vEp}, v32, s[{sWSD}:{sWSD+3}], s{sA} offen sc1", "s_mov_b64 exec, -1", "L_lnf:"]

    setv = [f"s_sub_u32 vcc_lo, 0, s{sZ}", "s_mov_b32 vcc_hi, 0"] if OPT.get('zl', 0) else []

    def emit_ops(n0, n1, sig, fine, lead=None):
        r = []
        for n in range(n0, n1):
            ins, st = ops[n]
            need = {64: 1, 80: 2, 96: 3, 124: 4}.get(n)
            if need:
                assert sig >= need
                r += spin_ev(E_PA, 'all', HQ, ge=need) + setv

            ins = ins[:-1] + [ins[-1] + f" ;@tag=o{n}"]
            if n == 0:
                r += stamp(2, 'f')
            r += ins
            if n == 15:
                r += stamp(3, 'f') + ["s_barrier"] + setv
            if n >= 16 and pieces:
                r += sum([x if isinstance(x, list) else [x] for x in pieces.pop(0)], [])
            done = n - (lead or lead_at(n))
            if done >= 0 and n >= 15:
                r += [f"@wait_vm o{done}"]
            zl = OPT.get('zl', 0)
            if zl and 15 <= n < 112 and n % OPT.get('zle', 2) == 1:
                Lz = lab('zl')
                extra = 7 if 16 <= n < 16 + zl + 30 else 0
                r += [f"!s_cbranch_vccz {Lz}", f"!!s_waitcnt vmcnt({zl})", f"!{Lz}:"]
            while sig < 21 and last_of[sig] <= done and n >= 15:
                r += do_signal(sig)
                r += {0: stamp(4, 'f'), 1: stamp(5, 'f'), 2: stamp(6, 'f'), 3: stamp(7, 'f'), 4: stamp(8, 'f'), 5: stamp(9, 'f'), 6: stamp(10, 'f')}.get(sig, [])
                sig += 1
        return r, sig

    def tail(sig, pf=False):
        r, sig = emit_ops(HOLD, len(ops), sig, False, None if pf else OPT.get('l3z', 14))
        r += stamp(1) + stamp(11, 'f')
        if pf and OPT.get('ypf', 0):
            r += [f"s_cmp_eq_u32 s{sHW}, 0", f"s_cselect_b32 s48, s{sAO}, s{sBO}", f"s_cselect_b32 s49, s{sAO+1}, s{sBO+1}",
                  f"s_and_b32 s{sT0}, s{sRB}, 3", f"s_lshl_b32 s{sT0}, s{sT0}, 2", f"s_and_b32 s{sT1}, s{sHH}, 3",
                  f"s_add_u32 s{sT0}, s{sT0}, s{sT1}", f"s_mul_i32 s{sT0}, s{sT0}, {196*128}",
                  f"v_lshl_add_u32 v33, v0, 7, s{sT0}", "s_mov_b32 exec_hi, 0x1ffff"]
            for i in range(4):
                r += [f"global_load_dword v{40+i}, v33, s[48:49]"] + ([f"v_add_u32 v33, {49*128}, v33"] if i < 3 else [])
            r += ["s_mov_b64 exec, -1"]
        for st in range(sig, 21):
            r += do_signal(st)
        return r + (ep if pf else [])
    HOLD = OPT.get('hold', 126)
    r, sig = emit_ops(0, HOLD, 0, True)
    assert not pieces
    o += r
    if HOLD < len(ops):
        o += [f"s_cmp_eq_u32 s{sZ}, 0", "!s_cbranch_scc0 L_lhold"]
    o += tail(sig, True)
    if HOLD < len(ops):
        o += ["s_branch L_ljoin", "@reset", "L_lhold:"]
        while last_of[sig] < HOLD:
            o += [f"s_waitcnt vmcnt({HOLD - 1 - last_of[sig]})"] + do_signal(sig)
            sig += 1
        o += [x.replace("L_lnf", "L_lnf2").replace("L_sp", "L_zsp") for x in ep]
        o += spin_ev(STI, 'all', HQ) if ZD else spin_ev(X_PUB, 'hi', HQ)
        o += tail(sig)
        o += ["@reset", "L_ljoin:"]
    d7 = [f"!s_call_b64 s[{sRet}:{sRet+1}], L_sub_d7e"]

    def batch(ptr, row0, lds, stride, n, sub=d7):
        return [f"s_mov_b32 s{sXD}, s{ptr}", f"s_mov_b32 s{sXD+1}, s{ptr+1}", f"s_mov_b32 s{sOff}, {row0*896}",
                f"s_mul_i32 s{sLi}, s{sHW}, {stride}", f"s_add_u32 m0, s{sLi}, {lds}"] + sub * n
    o += [f"s_mov_b32 s{sXD+2}, 401408", f"s_mov_b32 s{sC7}, 7168"]
    if OPT.get('otouch', 0):
        o += [f"s_lshl_b32 s{sT0}, s{sRB}, 6", f"s_add_u32 s{sT0}, s{sT0}, s{sH}", f"s_lshl_b32 s{sT0}, s{sT0}, 11",
              f"s_lshl_b32 s{sT1}, s{sHW}, 21", f"s_add_u32 s{sT0}, s{sT0}, s{sT1}", f"s_add_u32 s{sT0}, s{sT0}, {OA}",
              "v_lshrrev_b32 v33, 4, v0", "v_lshlrev_b32 v33, 15, v33", "v_and_b32 v34, 15, v0", "v_lshl_add_u32 v33, v34, 7, v33",
              f"!buffer_load_dword v34, v33, s[{sWSD}:{sWSD+3}], s{sT0} offen"]
    o += [f"s_cmp_eq_u32 s{sHW}, 0", "!s_cbranch_scc0 L_lgV"] + spin_ev(E_P2, 'all', HQ) + spin_ev(F_K, 'hi', HQ, ge=2) + ["s_branch L_lg", "L_lgV:"]
    o += spin_ev(E_P3A, 'all', HQ) + ["L_lg:"]
    if OPT.get('philate', 1) == 2:
        o += [f"s_cmp_eq_u32 s{sZ}, 0", "!s_cbranch_scc1 L_lph0"] + call("phi") + ["L_lph0:"]
    o += stamp(6, 'z')
    o += spoll(42, sA, 44, 8, 6, sleep=OPT.get('fsleep', 1))
    o += stamp(2)
    if OPT.get('alt') == 5:
        o += [f"s_add_u32 s{sStamp+14}, s{sStamp}, s{sTO}"]
    o += [f"s_cmp_eq_u32 s{sHW}, 0", "!s_cbranch_scc0 L_lV"]
    for j in range(12):
        for e in range(2):
            o += [f"s_mov_b32 m0, {KL + 2048*j + 1024*e - 1024*e}",
                  f"buffer_load_dwordx4 v{vK}, s[{sKGD}:{sKGD+3}], 0 offen offset:{1024*e} sc1 lds"]
        o += [f"v_add_u32 v{vK}, 28672, v{vK}"]
    o += [f"s_mov_b32 s{sA}, {4*ST_K}", "s_branch L_lKV", "@reset", "L_lV:"]
    o += [f"v_mov_b32 v{36+i}, 0x3f803f80" for i in range(4)]
    o += [f"v_lshlrev_b32 v{t0}, 9, v0", f"v_add_u32 v{t0}, {VL+496}, v{t0}",
          "s_mov_b32 exec_hi, 0xffff", f"ds_write_b128 v{t0}, v[36:39]",
          "s_mov_b32 exec_lo, 0x7fffffff", "s_mov_b32 exec_hi, 0x7fffffff", f"s_mov_b32 s{sOff}, 14336"]
    for j in range(12):
        for e in range(2):
            pre = [f"v_add_u32 v{t2}, s{sOff}, v{vV}"] if e else []
            o += pre + [f"s_mov_b32 m0, {VL + 2048*j + 1024*e}",
                        f"buffer_load_dwordx4 v{t2 if e else vV}, s[{sKGD}:{sKGD+3}], 0 offen sc1 lds"]
        o += [f"v_add_u32 v{vV}, 28672, v{vV}"]
    o += ["s_mov_b64 exec, -1", f"s_mov_b32 s{sA}, {4*ST_V}", "@reset", "L_lKV:"]
    o += stamp(3) + signal(KVISS)

    kvland = [f"v_add_u32 v{t2}, s{sA}, v{vMl}", f"v_mov_b32 v{t0}, 2", f"ds_add_u32 v{t2}, v{t0}"]
    o += [f"s_cmp_ge_u32 s{sJ3}, 28", "!s_cbranch_scc0 L_lwo", "s_waitcnt vmcnt(0)"] + kvland + \
        ([f"s_cmp_eq_u32 s{sZ}, 0", "!s_cbranch_scc0 L_lph2"] if OPT.get('philate', 1) == 2 else []) + call("phi") + ["L_lph2:"] + call("ob") + stamp_flush(20, 0) + ["s_endpgm", "@reset", "L_lwo:"]
    if OPT.get('philate', 1) == 2:
        o += ["s_waitcnt vmcnt(0)"] + kvland + [f"s_cmp_eq_u32 s{sZ}, 0", "!s_cbranch_scc0 L_lph1"] + call("phi") + ["L_lph1:"]
    elif OPT.get('philate', 1):
        o += ["s_waitcnt vmcnt(0)"] + kvland + call("phi")
    else:
        o += call("phi") + stamp(8, 'z')
        o += ["s_waitcnt vmcnt(0)"] + kvland
    o += stamp(4)
    o += wait_land(ST_WA1, HQ, inline=True) + call("r0")
    o += p3_setup() + [f"s_mov_b32 s{sOBd}, 0"] + serve_ev(R1)
    o += batch(sBO, 168, STG, STGS, 1)
    o += [f"s_cmp_lg_u32 s{sOBd}, 0", "!s_cbranch_scc1 L_lt0"] + call("ob") + [f"s_mov_b32 s{sOBd}, 1", "s_waitcnt vmcnt(3)", "s_branch L_lt1",
          "L_lt0:", "s_waitcnt vmcnt(0)", "L_lt1:"] + land(ST_WA2)
    o += stamp(5)
    o += ["s_branch L_p3", "@reset"]
    return o


sOb, sNb = 58, 59


def gload(g):
    r = [f"s_add_u32 s{sT2}, s{sOb}, {4096*g}"]
    for e in range(4):
        n = 4 * g + e
        r.append(f"buffer_load_dwordx4 v[{OF+4*n}:{OF+4*n+3}], v{vOG}, s[{sWSD}:{sWSD+3}], s{sT2} offen offset:{1024*e} sc1")
    return r


WA = 128
OF = 64
ACC = 32
BB = 16
vA = 2
vOG = 6
vTg = 9


def p3_early(dst=(248, 249, 250, 251, 252), base=STG, stride=STGS, tmp=240, sRt=sRt, sTT=sTT, sNo=sNo):
    t0, t1, t2, r, cg = range(tmp, tmp + 5)
    o = [f"s_lshr_b32 s{sKh}, s{sW4}, 1", f"s_and_b32 s{sRt}, s{sW4}, 1",
         f"s_add_u32 s{sTT}, s{sTB}, s{sRt}",
         f"v_bfe_u32 v{r}, v0, 2, 2", f"v_bfe_u32 v{t0}, v0, 4, 1", f"v_and_b32 v{cg}, 3, v0",
         f"v_lshl_add_u32 v{cg}, v{t0}, 2, v{cg}", f"v_lshlrev_b32 v{cg}, 3, v{cg}",
         f"s_mul_i32 s{sT0}, s{sKh}, {stride}", f"s_add_u32 s{sT0}, s{sT0}, {base}",
         f"v_add_u32 v{cg}, s{sT0}, v{cg}",
         f"v_lshrrev_b32 v{t2}, 5, v0", f"v_mul_u32_u24 v{t2}, 7, v{t2}"]
    for s_ in range(2):
        for u in range(2):
            d = dst[2 * s_ + u]
            o += [f"v_min_u32 v{t0}, {2 if u else 3}, v{r}", f"v_add3_u32 v{t0}, v{t0}, v{t2}, {14*s_+4*u}",
                  f"v_bfe_u32 v{t1}, v{t0}, 1, 1", f"v_xor_b32 v{t1}, s{sKh}, v{t1}",
                  f"v_lshl_add_u32 v{d}, v{t0}, 7, v{cg}", f"v_lshl_add_u32 v{d}, v{t1}, 6, v{d}"]
    o += [f"s_lshl_b32 s{sT0}, s{sTT}, 1", f"s_add_u32 s{sT0}, s{sT0}, s{sKh}", f"s_lshl_b32 s{sNo}, s{sT0}, 7", f"s_lshl_b32 s{sT0}, s{sT0}, 14",
          f"v_add_u32 v{dst[4]}, s{sT0}, v{vL16}"]
    return o


def p3_setup():
    return [f"v_mov_b32 v{vA+i}, v{248+i}" for i in range(5)] + [f"v_and_b32 v{vTg}, 0xffff0000, v{vEp}"]


def flip(A):
    return [f"v_xor_b32 v{A+i}, 64, v{A+i}" for i in range(4)]


FLIP = flip(vA)


def wo_frag(dst, hl, s, tag=None, A=vA):
    return [tr(dst, A + 2 * s, 28 * hl * 128), tr(dst + 2, A + 2 * s + 1, 28 * hl * 128, tag)]


def woa_read(rho):
    o = []
    A = 248 if rho == 0 else vA
    for j in range(2):
        for hl in (range(6) if rho == 0 else range(6, 8)):
            for s in range(2):
                o += wo_frag(WA + 64 * j + 8 * hl + 4 * s, hl % 6, s, A=A)
        o += flip(A)
    return o


RSTR = VL - KL


NG0 = OPT.get('ng0', 2)


def gready(g, first=False):
    L, L2, L3 = lab('gr'), lab('grx'), lab('grc')
    chk = [f"s_xor_b32 s{sT0}, s{44+2*g}, s{sEp}", f"s_xor_b32 s{sT1}, s{45+2*g}, s{sEp}", f"s_or_b32 s{sT0}, s{sT0}, s{sT1}"]
    loop = [f"{L}:", "s_load_dwordx8 s[44:51], s[56:57], 0 glc"] + _tmo() + ["s_waitcnt lgkmcnt(0)"] + chk
    if first:
        return [f"s_add_u32 s56, s{sWSD}, s{sNb}", f"s_addc_u32 s57, s{sWSD+1}, 0", "s_waitcnt lgkmcnt(0)", f"!s_mov_b32 s{sTO}, 0"] + \
            ["!" + x for x in loop] + [f"!s_cbranch_scc1 {L}"]
    slow.extend([f"{L3}:", f"s_mov_b32 s{sTO}, 0"] + loop + [f"s_cbranch_scc1 {L}", f"s_branch {L2}"])
    return chk + [f"!s_cbranch_scc1 {L3}", f"!{L2}:"]


def half_head(isC):
    if OPT.get('pergrp', 1):
        o = gready(0, True)
        o += [f"!s_memtime s[{sStamp+18}:{sStamp+19}]"] if OPT['stamps'] and OPT.get('alt', 0) in (0, 2, 6, 7, 8, 9, 10) else []
        for g in range(NG0):
            o += (gready(g) if g else []) + gload(g)
        return o
    o = spoll(42, sNb, 44, 8, 8, sleep=OPT.get('osleep', 1))
    if isC or OPT.get('hgate', 0):
        o += spin_ev(E_OA, 'all', HQ)
    o += [f"!s_memtime s[{sStamp+18}:{sStamp+19}]"] if OPT['stamps'] and OPT.get('alt', 0) in (0, 2, 6, 7, 8, 9, 10) else []
    for g in range(NG0):
        o += gload(g)
    return o


def half_sub():
    vC = 7
    o = ["@reset", "L_sub_half:"]

    def gcheck(g):
        b = OF + 16 * g
        ch = [f"v_xor_b32 v{b+4*e+3}, v{b+4*e+3}, v{vTg}" for e in range(4)]
        ch += [f"v_or3_b32 v{vC}, v{b+3}, v{b+7}, v{b+11}", f"v_or_b32 v{vC}, v{vC}, v{b+15}",
               f"v_cmp_lt_u32 vcc, 0xffff, v{vC}"]
        Ls, Lb = lab('slow'), lab('back')
        slow.extend([f"{Ls}:"] + ([f"s_add_u32 s{sStamp+14}, s{sStamp+14}, 1"] if OPT.get('alt') == 6 else []) + [f"s_mov_b32 s{sTO}, 0", f"{Ls}_s:", "s_sleep 4"] + gload(g) + _tmo() + ["s_waitcnt vmcnt(0)"] + ch +
                    [f"s_cbranch_vccnz {Ls}_s", f"s_branch {Lb}"])
        return ch + [f"!s_cbranch_vccnz {Ls}", f"!{Lb}:"]
    o += half_head(False) + ["L_half_mid:"]
    sO = 40
    DB, DW, DS_ = 65536, 8448, 1056
    o += srd(sO, sOUT, 1835008)
    o += [f"s_mul_i32 s{sT0}, s{sWave}, {DW}", f"s_add_u32 s{sT0}, s{sT0}, {DB}", f"v_add_u32 v2, s{sT0}, v{vL16}",
          f"s_lshr_b32 s{sT1}, s{sWave}, 2", f"s_mul_i32 s{sT0}, s{sT1}, {DW}", f"s_add_u32 s{sT0}, s{sT0}, {DB}",
          f"s_and_b32 s{sT2}, s{sWave}, 3", f"s_lshl_b32 s{sT2}, s{sT2}, 3",
          "v_lshrrev_b32 v5, 3, v0", f"v_add_u32 v5, s{sT2}, v5", f"v_lshl_add_u32 v3, v5, 4, s{sT0}",
          "v_and_b32 v24, 7, v0", f"v_mul_u32_u24 v4, {DS_}, v24", "v_xor_b32 v24, 4, v24", f"v_mul_u32_u24 v24, {DS_}, v24",
          "v_add_u32 v24, v24, v3", "v_add_u32 v3, v4, v3",
          f"s_add_u32 s{sT1}, s{sT1}, s{sTB}", f"s_lshl_b32 s{sT1}, s{sT1}, 5", f"v_add_u32 v8, s{sT1}, v5",
          "v_mul_u32_u24 v8, 896, v8", "v_and_b32 v5, 7, v0", "v_lshl_add_u32 v8, v5, 4, v8",
          f"s_lshl_b32 s{sT0}, s{sCT}, 7", f"v_add_u32 v8, s{sT0}, v8"]
    e1, l1 = check_ev(E_OA, 'all', HQ, ge=2)
    e2, l2 = check_ev(R1, 'all', 20, ge=2)
    for n in range(16):
        if n % 4 == 0:
            o += gcheck(n // 4)
            if n // 4 + NG0 < 4:
                o += (gready(n // 4 + NG0) if OPT.get('pergrp', 1) else []) + gload(n // 4 + NG0)
        if n == 8:
            o += e1 + e2
        if n == 11:
            o += l1 + l2
        for j in ((0, 1) if n < 12 else ()):
            o.append(mfma(ACC + 16 * j, WA + 64 * j + 4 * n, OF + 4 * n, ACC + 16 * j if n else None))
    for j in (1, 0):
        for n in range(12, 16):
            o.append(mfma(ACC + 16 * j, WA + 64 * j + 4 * n, OF + 4 * n, ACC + 16 * j))
    o += [f"ds_write_b128 v2, v[{ACC+16+4*i}:{ACC+16+4*i+3}] offset:{DS_*(4+i)}" for i in range(4)]
    o += stamp(8)
    o += [f"ds_write_b128 v2, v[{ACC+4*i}:{ACC+4*i+3}] offset:{DS_*i}" for i in range(4)]
    o += ["s_waitcnt lgkmcnt(0)", "s_barrier"] + ([f"!s_memtime s[{sStamp+14}:{sStamp+15}]"] if OPT.get('alt') == 10 else [])
    for src in range(4):
        role, kh = src >> 1, src & 1
        for hh_ in range(2):
            d = OF + 8 * src + 4 * hh_
            o += [f"ds_read_b128 v[{d}:{d+3}], v{24 if kh else 3} offset:{DW*(4*role+2*kh) + 512*hh_}"]
    for i in range(8):
        o += [f"v_add_f32 v{OF+i}, v{OF+i}, v{OF+8+i}"]
    for i in range(8):
        o += [f"v_add_f32 v{OF+16+i}, v{OF+16+i}, v{OF+24+i}"]
    for p in range(4):
        o += [f"v_add_f32 v{OF+2*p}, v{OF+2*p}, v{OF+16+2*p}", f"v_add_f32 v{OF+2*p+1}, v{OF+2*p+1}, v{OF+17+2*p}",
              f"v_cvt_pk_bf16_f32 v{16+p}, v{OF+2*p}, v{OF+2*p+1}"]
    fl = {0: "", 1: " sc1", 2: " nt", 3: " sc0 sc1"}[OPT.get('outfl', 0)]
    o += [f"buffer_store_dwordx4 v[16:19], v8, s[{sO}:{sO+3}], 0 offen{fl}"]
    if OPT.get('until'):
        o += [f"!s_mov_b32 s45, {OPT['until']}"]
        if 'pw' in OPT:
            st = sStamp + 2 * OPT['ps']
            o += ["!s_waitcnt lgkmcnt(0)", f"!s_sub_u32 s44, s{st}, s98", f"!s_cmp_ge_u32 s{sWave}, {OPT['pw']}", "!s_cselect_b32 s44, s44, 0",
                  f"!s_cmp_le_u32 s{sWave}, {OPT['pw2']}", "!s_cselect_b32 s44, s44, 0", "!s_add_u32 s45, s45, s44"]
        o += ["!L_dly2:", f"!s_memtime s[46:47]", "!s_waitcnt lgkmcnt(0)",
              "!s_sub_u32 s46, s46, s98", f"!s_cmp_lt_u32 s46, s45", "!s_cbranch_scc1 L_dly2"]
    o += stamp(10)
    if OPT['stamps'] and 'pw' not in OPT:
        o += ["s_waitcnt vmcnt(0)"] + stamp(11)
    o += stamp_flush(20, 0)
    o += ["s_endpgm"]
    return o


def phase3():
    ROLE[0] = 'H'
    o = ["@reset", "L_p3:"]
    o += serve_land(ST_WA2) + call("r1")
    o += stamp(6)
    o += [f"s_cmp_lg_u32 s{sOBd}, 0", "!s_cbranch_scc1 L_pB"] + call("ob") + ["L_pB:"]
    if OPT.get('bgate', 0):
        o += spin_ev(E_OA, 'all', HQ)
    o += stamp(7)
    o += [f"s_mov_b32 s{sOb}, {OB}", f"s_add_u32 s{sNb}, s{sNo}, {NB}"]
    if OPT.get('w1'):
        o += [f"s_mov_b32 s{sWSD+2}, 0", f"v_mov_b32 v{vTg}, 0"]
    return o + half_sub()


def c_phase3():
    o = [f"s_cmp_ge_u32 s{sJ3}, 28", "!s_cbranch_scc1 L_cend"]
    o += [f"v_readfirstlane_b32 s{sEp}, v{vEc}", f"v_mov_b32 v{vEp}, v{vEc}", f"s_add_u32 s{sNb}, s14, {NA}", f"s_mov_b32 s{sOb}, {OA}"]
    o += [f"v_mov_b32 v{vA+i}, v{CPARK[i]}" for i in range(5)] + [f"v_and_b32 v{vTg}, 0xffff0000, v{vEp}"]
    o += [f"s_mul_i32 s{sB}, s{sKh}, {(WBAS - WBBS) & 0xffffffff}", f"s_add_u32 s{sB}, s{sB}, {WBA - WBB}", f"s_mov_b32 s{sTT}, s13"]
    if OPT.get('cfirst', 0):
        o += half_head(True)
    o += wait_land(ST_WB, HQ, inline=True, n=1)
    rd = lambda j, hl: sum([wo_frag(WA + 64 * j + 8 * hl + 4 * s_, hl if hl < 6 else hl - 6, s_) for s_ in range(2)], [])
    for hl in range(6):
        o += rd(0, hl)
    o += [f"v_subrev_u32 v{vA+x}, s{sB}, v{vA+x}" for x in range(4)] + rd(0, 6) + rd(0, 7) + FLIP + rd(1, 6) + rd(1, 7)
    o += [f"v_add_u32 v{vA+x}, s{sB}, v{vA+x}" for x in range(4)]
    for hl in range(6):
        o += rd(1, hl)
    o += signal(E_OA)
    o += ["s_waitcnt lgkmcnt(0)", "s_branch " + ("L_half_mid" if OPT.get('cfirst', 0) else "L_sub_half"), "@reset", "L_cend:"]
    return o


def pretouch():
    if not OPT.get('touch', 1):
        return []
    o = []
    for p in (sAW, sBW, sOUT, sAO, sBO, sGW, sDBG):
        o.append(f"!s_load_dword s44, s[{p}:{p+1}], 0")
    o += [f"s_mov_b32 s46, s{sWS}", f"s_mov_b32 s47, s{sWS+1}"]
    for i in range(6):
        o += ["!s_load_dword s44, s[46:47], 0", "s_add_u32 s46, s46, 0x200000", "s_addc_u32 s47, s47, 0"]
    return o


def x_wave():
    ROLE[0] = 'X'
    o = ["@reset", "L_xwave:", "s_waitcnt lgkmcnt(0)", "s_mov_b32 s1, s2"] + pretouch() + ["s_barrier"]
    o += srd(sWSD, sWS, WS_SIZE)
    o += h_setup() + p3_early()
    o += ["v_lshrrev_b32 v24, 5, v0", "v_lshlrev_b32 v24, 2, v24", "v_and_b32 v25, 31, v0", "v_sub_u32 v24, v25, v24",
          "v_mov_b32 v25, 0x3f80", "v_mov_b32 v26, 0x3f800000"]
    for r in range(8):
        d0 = 16 * (r >> 2) + 8 * ((r & 3) >> 1) + 2 * (r & 1)
        o += [f"v_cmp_eq_u32 vcc, {d0}, v24", f"v_cndmask_b32 v{IDF+r}, 0, v25, vcc", f"v_cmp_eq_u32 vcc, {d0+1}, v24",
              f"v_cndmask_b32 v{IDF+r}, v{IDF+r}, v26, vcc"]
    sDD, sKD = 36, 40
    sJ = sLi
    t0, t1, t2 = 24, 25, 26
    o += [f"s_sub_u32 s{sJ}, s{sWave}, 6"]
    o += srd(sDD, sDBG, 256) + srd(sKD, sWS, WS_SIZE)
    o += [f"s_cmp_eq_u32 s{sH}, 15", f"s_cselect_b32 s{sKD+2}, 0, s{sKD+2}"]
    o += [f"v_mov_b32 v{t0}, 0", f"s_lshl_b32 s{sT0}, s2, 1", f"s_add_u32 s{sT0}, s{sT0}, s{sJ}",
          f"s_cmp_eq_u32 s{sT0}, 0", "!s_cbranch_scc0 L_xnoep",
          f"s_mov_b32 s{sT0}, {EPW}",
          f"buffer_load_dword v{vEp}, v{t0}, s[{sWSD}:{sWSD+3}], s{sT0} offen sc1",
          f"v_lshrrev_b32 v{t1}, 16, v{vEp}", f"v_add_u32 v{vEp}, 1, v{vEp}", f"v_and_b32 v{vEp}, 0xffff, v{vEp}",
          f"v_max_u32 v{vEp}, 1, v{vEp}", f"v_cmp_eq_u32 vcc, v{vEp}, v{t1}", f"v_addc_co_u32 v{vEp}, vcc, 0, v{vEp}, vcc",
          f"v_and_b32 v{vEp}, 0xffff, v{vEp}", f"v_max_u32 v{vEp}, 1, v{vEp}", f"v_lshl_or_b32 v{vEp}, v{vEp}, 16, v{vEp}",
          "s_mov_b64 exec, 1",
          f"buffer_store_dword v{vEp}, v{t0}, s[{sDD}:{sDD+3}], 0 offen sc1",
          f"buffer_store_dword v{vEp}, v{t0}, s[{sWSD}:{sWSD+3}], s{sT0} offen sc1",
          "s_mov_b64 exec, -1", "@reset", "L_xnoep:"]
    if OPT.get('gpf', 1):
        if OPT.get('gpfgate', 0) >= 0:
            o += wait_land(OPT.get('gpfgate', 0), HQ, inline=True)
        o += [f"s_cmp_eq_u32 s{sJ}, 0", f"s_cselect_b32 s44, s{sAO}, s{sAW}", f"s_cselect_b32 s45, s{sAO+1}, s{sAW+1}",
              f"s_cselect_b32 s48, s{sBO}, s{sBW}", f"s_cselect_b32 s49, s{sBO+1}, s{sBW+1}",
              f"s_mov_b32 s{sT0}, 1204224", f"s_cselect_b32 s46, 401408, s{sT0}", "s_mov_b32 s47, 0x20000",
              f"s_mov_b32 s{sT0}, 2688", f"s_cselect_b32 s{sT1}, 896, s{sT0}",
              "s_mov_b32 s50, s46", "s_mov_b32 s51, 0x20000",
              f"s_mul_i32 s{sT0}, s2, 13", f"v_add_u32 v32, s{sT0}, v0", "v_mul_u32_u24 v33, 9363, v32", "v_lshrrev_b32 v33, 16, v33",
              "v_mul_u32_u24 v34, 7, v33", "v_sub_u32 v32, v32, v34", f"v_mul_u32_u24 v33, s{sT1}, v33", "v_lshl_add_u32 v32, v32, 7, v33",
              "s_mov_b64 exec, 0x1fff",
              "buffer_load_dword v33, v32, s[44:47], 0 offen", "buffer_load_dword v34, v32, s[48:51], 0 offen", "s_mov_b64 exec, -1"]
    if OPT.get('ntouch', 0):
        o += [f"s_lshl_b32 s{sT0}, s{sRB}, 4", f"s_add_u32 s{sT0}, s{sT0}, s{sH}", f"s_lshl_b32 s{sT0}, s{sT0}, 7",
              f"s_lshl_b32 s{sT1}, s{sH}, 4", f"s_add_u32 s{sT1}, s{sT1}, s{sRB}", f"s_lshl_b32 s{sT1}, s{sT1}, 9",
              f"s_lshl_b32 s{sT2}, s{sRB}, 6", f"s_add_u32 s{sT2}, s{sT2}, s{sH}", f"s_lshl_b32 s{sT2}, s{sT2}, 7",
              f"s_add_u32 s{sT0}, s{sT0}, {FK}", f"s_add_u32 s{sT1}, s{sT1}, {N1}", f"s_add_u32 s{sT2}, s{sT2}, {NA}",
              f"s_cmp_eq_u32 s{sJ}, 0", f"s_cselect_b32 s{sT1}, s{sT1}, s{sT2}", f"s_cselect_b32 s{sT2}, 7, 11",
              "v_and_b32 v35, 3, v0", f"v_lshlrev_b32 v35, s{sT2}, v35", "v_bfe_u32 v36, v0, 2, 1",
              f"v_lshlrev_b32 v36, 17, v36", f"v_add3_u32 v35, v35, v36, s{sT1}",
              f"v_writelane_b32 v35, s{sT0}, 8", f"s_add_u32 s{sT0}, s{sT0}, {FV-FK}", f"v_writelane_b32 v35, s{sT0}, 9",
              "v_mov_b32 v36, 0", "s_mov_b64 exec, 0x3ff",
              f"buffer_atomic_or v36, v35, s[{sWSD}:{sWSD+3}], 0 offen sc1", "s_mov_b64 exec, -1"]
    o += wait_land(OPT.get('epgate', 2), HQ, inline=True)
    if OPT.get('ktouch', 0):
        Lk = lab('kt')
        o += [f"s_cmp_eq_u32 s{sZ}, 0", f"!s_cbranch_scc1 {Lk}", f"s_cmp_eq_u32 s{sH}, 15", f"!s_cbranch_scc1 {Lk}",
              f"s_mul_i32 s{sT0}, s{sRB}, {4*28672}", f"s_cmp_eq_u32 s{sJ}, 0", f"s_cselect_b32 s{sT1}, 12, 10",
              f"s_lshl_b32 s{sT1}, s{sHH}, s{sT1}", f"s_add_u32 s{sT0}, s{sT0}, s{sT1}",
              f"s_mul_i32 s{sT1}, s{sJ}, {VG}", f"s_add_u32 s{sT0}, s{sT0}, s{sT1}",
              f"s_mul_i32 s{sT1}, s{sJ}, {7168-1024}", "v_bfe_u32 v33, v0, 3, 2", f"v_mul_u32_u24 v33, s{sT1}, v33",
              "v_and_b32 v34, 31, v0", "v_lshl_add_u32 v33, v34, 7, v33", "v_lshrrev_b32 v34, 5, v0", "v_mul_u32_u24 v34, 28672, v34",
              "v_add_u32 v33, v33, v34", f"s_add_u32 s{sT1}, s{sT0}, {2*28672}",
              f"buffer_load_dword v34, v33, s[{sWSD}:{sWSD+3}], s{sT0} offen", f"buffer_load_dword v35, v33, s[{sWSD}:{sWSD+3}], s{sT1} offen", f"!{Lk}:"]
    o += spin_vm([f"buffer_load_dword v{vEp}, v{t0}, s[{sDD}:{sDD+3}], 0 offen sc1"], [f"v_cmp_eq_u32 vcc, 0, v{vEp}"])
    o += [f"ds_write_b32 v{vM}, v{vEp} offset:{16*EPOCH}", f"v_readfirstlane_b32 s{sEp}, v{vEp}"]
    o += srd(sXD, sBO, 401408) + [f"s_mov_b32 s{sC7}, 7168",
          f"v_lshrrev_b32 v{t0}, 3, v0", f"v_mul_u32_u24 v{vWO}, 896, v{t0}",
          f"v_bfe_u32 v{t1}, v0, 2, 1", f"v_bfe_u32 v{t2}, v0, 4, 1", f"v_xor_b32 v{t1}, v{t1}, v{t2}",
          f"v_lshl_add_u32 v{vWO}, v{t1}, 6, v{vWO}", f"v_and_b32 v{t2}, 3, v0", f"v_lshl_add_u32 v{vWO}, v{t2}, 4, v{vWO}",
          f"s_lshl_b32 s{sT0}, s{sCT}, 7", f"v_add_u32 v{vWO}, s{sT0}, v{vWO}",
          f"v_mov_b32 v{vMl}, v{vMs}", f"s_mov_b32 s{sT0}, {LANDC}", f"v_writelane_b32 v{vMl}, s{sT0}, 0"]
    d7 = [f"!s_call_b64 s[{sRet}:{sRet+1}], L_sub_d7"]


    def ebatch():
        L = lab('eb')
        return [f"s_cmp_ge_u32 s{sJ3}, 28", f"!s_cbranch_scc1 {L}",
                f"s_mul_i32 s{sOff}, s{sJ}, {224*896}", f"s_mul_i32 s{sT0}, s{sJ}, {STGS}", f"s_add_u32 m0, s{sT0}, {STG}"] + \
            [f"!s_call_b64 s[{sRet}:{sRet+1}], L_sub_d7e"] * 3 + [f"!{L}:"]
    o += stamp(1)
    o += [f"s_setprio {OPT.get('xprio', 3)}", f"s_cmp_eq_u32 s{sZ}, 0", "!s_cbranch_scc1 L_xY"]
    o += [f"s_lshl_b32 s{sT0}, s{sHH}, 6", f"s_mul_i32 s{sT1}, s{sT0}, 2341", f"s_lshr_b32 s{sT1}, s{sT1}, 16",
          f"s_add_u32 s{sT0}, s{sT0}, 63", f"s_mul_i32 s{sT2}, s{sT0}, 2341", f"s_lshr_b32 s{sT2}, s{sT2}, 16",
          f"v_and_b32 v4, 3, v0", f"v_add_u32 v4, s{sT1}, v4", f"v_lshrrev_b32 v5, 2, v0",
          f"v_cmp_ge_u32 s[48:49], s{sT2}, v4", f"v_add_u32 v6, s{sRB}, v5", f"v_cmp_gt_u32 vcc, 16, v6",
          "s_and_b64 s[48:49], s[48:49], vcc", "s_and_b32 s48, s48, 0xfff", "s_mov_b32 s49, 0",
          f"s_cmp_eq_u32 s{sH}, 15", "s_cselect_b32 s48, 0, s48",
          "v_lshl_add_u32 v3, v6, 4, v4", "v_lshlrev_b32 v3, 5, v3",
          "v_mul_u32_u24 v4, 28, v4", "v_lshrrev_b32 v4, 6, v4", f"v_sub_u32 v4, s{sHH}, v4",
          "v_lshlrev_b32 v5, 1, v5", "v_sub_u32 v5, 4, v5", "v_add3_u32 v3, v3, v4, v5", "v_lshlrev_b32 v3, 2, v3",
          f"s_mul_i32 s50, s{sJ}, {FV-FK}", f"s_add_u32 s50, s50, {FK}",
          f"s_mul_i32 s44, s{sRB}, {4*28672}",
          f"s_cmp_eq_u32 s{sJ}, 0", "!s_cbranch_scc0 L_xZV"]
    if ZD:
        o += signal(F_K) + signal(F_K) + spin_ev(R_K, 'all', HQ) + ["s_branch L_xZn", "@reset", "L_xZV:"]
        o += signal(F_K) + signal(F_K) + spin_ev(R_V, 'all', HQ) + ["@reset", "L_xZn:"] + stamp(2)
    else:
        o += [f"s_lshl_b32 s{sT0}, s{sHH}, 12", f"s_add_u32 s44, s44, s{sT0}"]
        o += spin_ev(R_K, 'all', HQ)
        o += [f"ds_read_b128 v[{64+4*i}:{64+4*i+3}], v{vL16} offset:{STK+1024*i}" for i in range(16)] + signal(F_K) + signal(F_K)
        for i in range(16):
            o += [f"buffer_store_dwordx4 v[{64+4*i}:{64+4*i+3}], v{vL16}, s[{sKD}:{sKD+3}], s44 offen offset:{1024*(i%4)} sc1"]
            if i % 4 == 3:
                o += ["s_add_u32 s44, s44, 28672"]
        o += ["s_branch L_xZn", "@reset", "L_xZV:"]
        o += [f"s_lshl_b32 s{sT0}, s{sHH}, 10", f"s_add_u32 s44, s44, s{sT0}", f"s_add_u32 s44, s44, {VG}", "s_add_u32 s45, s44, 14336",
              f"v_lshrrev_b32 v2, 5, v0", f"v_mul_u32_u24 v2, {7168-512}, v2", f"v_add_u32 v2, v2, v{vL16}"]
        o += spin_ev(R_V, 'all', HQ)
        o += [f"ds_read_b128 v[{64+4*i}:{64+4*i+3}], v{vL16} offset:{STV+1024*i}" for i in range(16)] + signal(F_K) + signal(F_K)
        if OPT.get('vafter', 1):
            o += spin_ev(X_PUB, 2, HQ)
        for i in range(16):
            j, s_ = (i % 4) // 2, i % 2
            o += [f"buffer_store_dwordx4 v[{64+4*i}:{64+4*i+3}], v2, s[{sKD}:{sKD+3}], s{44+s_} offen offset:{512*j} sc1"]
            if i % 4 == 3:
                o += ["s_add_u32 s44, s44, 28672", "s_add_u32 s45, s45, 28672"]
        o += ["@reset", "L_xZn:"] + signal(X_PUB) + stamp(2)
    Ln = lab('nn')
    o += ["s_cmp_eq_u32 s48, 0", f"!s_cbranch_scc1 {Ln}"]
    o += ["s_waitcnt vmcnt(0)", "s_mov_b64 exec, s[48:49]",
          f"buffer_store_dword v{vEp}, v3, s[{sWSD}:{sWSD+3}], s50 offen sc1", "s_mov_b64 exec, -1", f"!{Ln}:"] + stamp(3)
    o += ebatch() + ["s_waitcnt vmcnt(0)"] + land(ST_WA1)
    o += ["s_branch L_xjoin", "@reset", "L_xY:"]
    o += fmap(t2, t1) + [f"v_lshrrev_b32 v{t1}, 5, v0", f"v_lshlrev_b32 v{t1}, 9, v{t1}", f"v_lshl_add_u32 v{t2}, v{t2}, 4, v{t1}"]
    o += [f"s_lshl_b32 s{sT0}, s{sJ}, 11", f"v_add_u32 v{t1}, s{sT0}, v{vL16}",
          f"s_add_u32 s{sT1}, s{sT0}, {STV}", f"v_add_u32 v{t2}, s{sT1}, v{t2}",
          f"v_lshrrev_b32 v2, 2, v0", f"v_lshlrev_b32 v2, 12, v2", f"v_and_b32 v3, 3, v0", f"v_lshl_add_u32 v2, v3, 9, v2",
          f"s_add_u32 s{sT0}, s{sT0}, {STV+448}", f"v_add_u32 v2, s{sT0}, v2"]
    o += [f"v_mov_b32 v{32+i}, 0x3f803f80" for i in range(4)]
    o += [f"s_lshl_b32 s{sT0}, s{sHH}, 1", f"s_add_u32 s{sT0}, s{sT0}, s{sJ}", f"s_lshl_b32 s{sT0}, s{sT0}, 4", f"s_add_u32 s{sT0}, s{sT0}, s{sRB}",
          f"s_lshl_b32 s44, s{sT0}, 11", f"s_add_u32 s44, s44, {KVP}",
          f"s_lshr_b32 s{sT1}, s{sT0}, 4", f"s_lshl_b32 s{sT1}, s{sT1}, 5", f"s_add_u32 s{sT1}, s{sT1}, s{sRB}",
          f"s_lshl_b32 s46, s{sT1}, 2", f"s_add_u32 s46, s46, {N1}"]
    o += spin_ev(R_V, 'all', HQ)
    o += ["s_mov_b64 exec, 0xffff", "ds_write_b128 v2, v[32:35]", "s_mov_b64 exec, -1"]
    o += [f"ds_read_b128 v[{96+4*i}:{96+4*i+3}], v{t2} offset:{4096*(i//2)+1024*(i%2)}" for i in range(8)] + signal(F_K)
    if EPSM:
        o += [f"v_mov_b32 v{56+i}, 0x35863586" for i in range(4)]
        o += [mfma(32, 56, 96 + 4 * i, 32 if i else None) for i in range(8)]
    o += ebatch()
    o += spin_ev(R_K, 'all', HQ)
    o += [f"ds_read_b128 v[{64+4*i}:{64+4*i+3}], v{t1} offset:{STK+4096*(i//2)+1024*(i%2)}" for i in range(8)] + signal(F_K)
    o += stamp(2)
    o += [mfma(32, 64 + 4 * i, 96 + 4 * i, 32 if (i or EPSM) else None) for i in range(8)]
    o += [f"v_cvt_pk_bf16_f32 v{56+p}, v{32+2*p}, v{33+2*p}" for p in range(8)]
    o += [f"buffer_store_dwordx4 v[{56+4*e}:{59+4*e}], v{vL16}, s[{sWSD}:{sWSD+3}], s44 offen offset:{1024*e} sc1" for e in range(2)]
    o += ["s_waitcnt vmcnt(0)"]
    o += notify(46, 24, vEp) + land(ST_WA1)
    o += stamp(3)
    o += ["s_nop 1", "@reset", "L_xjoin:", f"s_setprio {OPT.get('hprio', 2)}"]
    if OPT.get('wopf', 1):
        Lp = lab('wopf')
        o += [f"s_cmp_eq_u32 s{sJ}, 0", f"!s_cbranch_scc0 {Lp}",
              f"s_lshr_b32 s{sT0}, s2, 3", f"s_mul_i32 s{sT0}, s{sT0}, {98*128}", f"v_lshl_add_u32 v24, v0, 7, s{sT0}",
              f"v_add_u32 v25, {49*128}, v24",
              "s_mov_b32 exec_hi, 0x1ffff"]
        for p in (sAO, sBO):
            o += [f"!global_load_dword v12, v24, s[{p}:{p+1}]", f"!global_load_dword v12, v25, s[{p}:{p+1}]"]
        o += ["s_mov_b64 exec, -1", f"!{Lp}:"]
    def xb(ptr, row0, lds, n):
        return [f"s_mov_b32 s{sXD}, s{ptr}", f"s_mov_b32 s{sXD+1}, s{ptr+1}", f"s_mov_b32 s{sOff}, {row0*896}",
                f"s_mov_b32 m0, {lds}"] + d7 * n
    r0 = wait_land(ST_WA1, HQ, inline=True) + call("r0")
    o += [f"s_cmp_eq_u32 s{sJ}, 1", "!s_cbranch_scc1 L_x1p",
          f"s_cmp_ge_u32 s{sJ3}, 28", "!s_cbranch_scc1 L_xfin"]
    phi0 = call("phi") + p3_setup() + [f"s_mov_b32 s{sOBd}, 0"]
    o += r0 + (phi0 if OPT.get('x0phi', 0) else [])
    o += spin_ev(F_K, 'hi', HQ, ge=2) + spin_ev(E_P3, 'all', HQ) + spin_ev(KVISS, 'lo', HQ)
    o += stamp(4)
    o += xb(sAO, 0, WBA, 3) + xb(sAO, 224, WBA + WBAS, 3)
    o += ([] if OPT.get('x0phi', 0) else phi0)
    o += serve_ev(GRDY)
    o += xb(sAO, 168, WBB, 1) + xb(sAO, 224 + 168, WBB + WBBS, 1)
    if OPT.get('wbfirst', 0):
        o += ["s_waitcnt vmcnt(0)"] + land(ST_WB) + stamp(5)
    else:
        o += [f"s_cmp_lg_u32 s{sOBd}, 0", "!s_cbranch_scc1 L_xt0"] + call("ob") + [f"s_mov_b32 s{sOBd}, 1", "s_waitcnt vmcnt(3)", "s_branch L_xt1",
              "L_xt0:", "s_waitcnt vmcnt(0)", "L_xt1:"] + land(ST_WB) + stamp(5)
    o += ["s_branch L_p3", "@reset", "L_x1p:"]
    Lq = lab('nr0')
    o += [f"s_cmp_ge_u32 s{sJ3}, 28", f"!s_cbranch_scc1 {Lq}"] + wait_land(ST_WA1, HQ, inline=True) + call("r0") + [f"{Lq}:"]
    o += call("phi") + p3_setup() + [f"s_mov_b32 s{sOBd}, 0"]

    o += [f"s_lshl_b32 s{sT1}, s{sH}, 7", f"s_add_u32 s{sT1}, s{sT1}, {N1}"]
    o += stamp(7, 'y')
    o += spoll(56, sT1, 36, 16, 16, sleep=OPT.get('psleep', 1))
    o += [f"s_lshl_b32 s44, s{sH}, 15", f"s_add_u32 s44, s44, {KVP}"]
    o += stamp(4)

    def pl(n):
        r = [f"buffer_load_dwordx4 v[{64+4*(n%16)}:{67+4*(n%16)}], v{vL16}, s[{sWSD}:{sWSD+3}], s44 offen offset:{1024*(n%4)} sc1"]
        return r + (["s_add_u32 s44, s44, 4096"] if n % 4 == 3 else [])
    for n in range(16):
        o += pl(n)
    o += [f"s_setprio {OPT.get('kvprio', 2)}"]
    for n in range(32):
        o += [mfma(32, IDF + 4 * (n % 2), 64 + 4 * (n % 16), 32 if n else None)]
        if n < 16:
            o += pl(n + 16)
    o += [f"s_setprio {OPT.get('hprio', 2)}"]
    o += stamp(9, 'y')
    o += [f"v_cvt_pk_bf16_f32 v{96+p}, v{32+2*p}, v{33+2*p}" for p in range(8)]
    o += [f"v_add_u32 v24, {KVF}, v{vL16}",
          f"ds_write_b128 v24, v[96:99]", f"ds_write_b128 v24, v[100:103] offset:1024"] + signal(KVRDY)
    o += call("ob") + [f"s_mov_b32 s{sOBd}, 1"]
    o += stamp(5)
    o += [f"s_cmp_ge_u32 s{sJ3}, 28", "!s_cbranch_scc1 L_xend"]
    o += ["s_branch L_p3", "@reset", "L_xfin:"] + call("phi") + call("ob") + ["L_xend:"] + stamp_flush(20, 0) + ["s_endpgm"]
    return o


HEADER = f"""; Fused sliding-window attention + linear attention + gated output projection (gfx950).
; One persistent launch: 256 workgroups x 8 waves (4 compute, 2 loader, 2 auxiliary).
; @launch grid=(256,1,1) block=(512,1,1) lds=163840
.amdgcn_target "amdgcn-amd-amdhsa--gfx950"
.text
.globl {NAME}_kernel
.p2align 8
.type {NAME}_kernel,@function
{NAME}_kernel:
"""
FOOTER = f"""
.section .rodata,"a"
.p2align 6
.amdhsa_kernel {NAME}_kernel
  .amdhsa_next_free_vgpr 256
  .amdhsa_next_free_sgpr 102
  .amdhsa_accum_offset 256
  .amdhsa_group_segment_fixed_size 0
  .amdhsa_kernarg_size 80
  .amdhsa_user_sgpr_count 2
  .amdhsa_user_sgpr_kernarg_segment_ptr 1
  .amdhsa_system_sgpr_workgroup_id_x 1
.end_amdhsa_kernel
"""


def main():
    body = prologue()
    SLEEP[0] = OPT.get('sleep', 1)
    l = l_wave()
    x = x_wave()
    p3 = phase3()
    sub = subroutines()
    SLEEP[0] = 0
    c = c_wave()
    rep = []
    lines = finalize(body + l + x + p3 + sub + c, rep)
    lines += ['    ' + s if not s.endswith(':') else s for s in slow]
    lines += ["L_abort:", "L_exit:", "    s_endpgm", "L_end:"]
    open(sys.argv[1], 'w').write(HEADER + "\n".join(lines) + FOOTER)
    big = [r for r in rep if r[0] >= 3]
    print("nops inserted:", len(rep), "total states", sum(r[0] for r in rep))
    for r in big:
        print("   ", r)


main()
```
